```python
import torch

def _softmax(x, axis=-1):
    return torch.softmax(x, dim=axis)
def _gelu(x):
    return torch.nn.functional.gelu(x, approximate="tanh")
def _silu(x):
    return torch.nn.functional.silu(x)
def _sigmoid(x):
    return torch.sigmoid(x)
def _layernorm(x, axis=-1, eps=1e-5):
    m = x.mean(dim=axis, keepdim=True)
    v = x.var(dim=axis, keepdim=True, unbiased=False)
    return (x - m) / torch.sqrt(v + eps)
def _scatter_add(tgt, idx, src, axis=0):
    return tgt.clone().index_add_(axis, idx, src)
def _segment_sum(src, seg, n):
    out = torch.zeros((n,) + src.shape[1:], dtype=src.dtype)
    return out.index_add_(0, seg, src)
def _pad(x, pw):
    flat = tuple(v for pair in reversed(pw) for v in pair)
    return torch.nn.functional.pad(x, flat)

kernel_name = 'interleave_layers__ssm_conv_h3__mixer_channel_mlp__prompt'

def setup_inputs():

    _w = (lambda a: (lambda t: t.to(torch.bfloat16) if t.is_floating_point() else t)(torch.as_tensor(a)))
    def _A_setup():
        B, S, D = 1, 2048, 640
        ks = 4
        return {
            "q": _w((lambda *s: torch.randn(*s, dtype=torch.bfloat16) * 0.05)(B, S, D)),
            "k": _w((lambda *s: torch.randn(*s, dtype=torch.bfloat16) * 0.2)(B, S, D)),
            "v": _w((lambda *s: torch.randn(*s, dtype=torch.bfloat16) * 0.2)(B, S, D)),
            "shift_k": _w((lambda *s: torch.randn(*s, dtype=torch.bfloat16) * 0.2)(D, ks) * 0.5),
            "ssm_k": _w((lambda *s: torch.randn(*s, dtype=torch.bfloat16) * 0.4)(D, S) * (1.0 / S ** 0.5)),
            "ssm_D": _w((lambda *s: torch.randn(*s, dtype=torch.bfloat16) * 0.2)(D)),
        }
    _A_in = _A_setup()

    def _B_setup():
        B, S, D, F = 1, 2048, 640, 1728
        return {
            "x": _w((lambda *s: torch.randn(*s, dtype=torch.bfloat16) * 0.05)(B, S, D)),
            "w1": _w((lambda *s: torch.randn(*s, dtype=torch.bfloat16) * 0.8)(D, F) * (D ** -0.5)),
            "b1": _w((lambda *s: torch.randn(*s, dtype=torch.bfloat16) * 0.4)(F)),
            "w2": _w((lambda *s: torch.randn(*s, dtype=torch.bfloat16) * 0.05)(F, D) * (F ** -0.5)),
            "b2": _w((lambda *s: torch.randn(*s, dtype=torch.bfloat16) * 0.05)(D)),
        }
    _B_in = _B_setup()

    return {
        "A_q": _A_in["q"],
        "A_k": _A_in["k"],
        "A_v": _A_in["v"],
        "A_shift_k": _A_in["shift_k"],
        "A_ssm_k": _A_in["ssm_k"],
        "A_ssm_D": _A_in["ssm_D"],
        "B_x": _B_in["x"],
        "B_w1": _B_in["w1"],
        "B_b1": _B_in["b1"],
        "B_w2": _B_in["w2"],
        "B_b2": _B_in["b2"],
    }

def reference(A_q, A_k, A_v, A_shift_k, A_ssm_k, A_ssm_D, B_x, B_w1, B_b1, B_w2, B_b2):
    def _A_ref(q, k, v, shift_k, ssm_k, ssm_D):
        B, S, D = q.shape
        ks = shift_k.shape[-1]
        k_pad = _pad(k, ((0, 0), (ks - 1, 0), (0, 0)))
        k_shift = torch.zeros_like(k)
        for t in range(ks):
            k_shift = k_shift + k_pad[:, t:t + S, :] * shift_k[:, ks - 1 - t][None, None, :]
        kv = k_shift * v
        L = 2 * S
        kv_pad = _pad(kv, ((0, 0), (0, S), (0, 0)))
        kf_pad = _pad(ssm_k, ((0, 0), (0, S)))
        kv_f = (lambda x, axes=(-2,-1): torch.fft.rfft2(x.float(), dim=axes))(kv_pad[:, None, :, :], axes=(1, 2))
        kf_f = (lambda x, axes=(-2,-1): torch.fft.rfft2(x.float(), dim=axes))(kf_pad[:, None, :], axes=(1, 2))
        kf_f = (lambda x, *d: x.permute(*d))(kf_f, 1, 2, 0)
        y_f = kv_f * kf_f[None, :, :, :]
        y = (lambda x, s, axes=(-2,-1): torch.fft.irfft2(x, s=s, dim=axes).to(torch.bfloat16))(y_f, (1, L), axes=(1, 2))[:, 0, :S, :]
        y = y + kv * ssm_D[None, None, :]
        return q * y

    def _B_ref(x, w1, b1, w2, b2):
        y = _layernorm(x, axis=-1)
        h = _gelu(torch.einsum("bsd,df->bsf", y, w1) + b1)
        return torch.einsum("bsf,fd->bsd", h, w2) + b2

    x = A_q
    x = x + _A_ref(_layernorm(x, axis=-1), A_k, A_v, A_shift_k, A_ssm_k, A_ssm_D)
    x = x + _B_ref(_layernorm(x, axis=-1), B_w1, B_b1, B_w2, B_b2)
    x = x + _A_ref(_layernorm(x, axis=-1), A_k, A_v, A_shift_k, A_ssm_k, A_ssm_D)
    x = x + _B_ref(_layernorm(x, axis=-1), B_w1, B_b1, B_w2, B_b2)
    return x
```

```python
import re

REG_RE = re.compile(r'^(-|\|)?(abs\()?([vsa])(\d+)\)?\|?$')
RANGE_RE = re.compile(r'^(-|\|)?([vsa])\[(\d+):(\d+)\]\|?$')

TRANS = ('v_exp_f32', 'v_log_f32', 'v_rcp_f32', 'v_rsq_f32', 'v_sqrt_f32', 'v_sin_f32', 'v_cos_f32',
         'v_rcp_iflag_f32', 'v_exp_f16', 'v_rcp_f16')


def regs_of(tok):
    tok = tok.strip()
    if tok in ('vcc',):
        return {('s', 106), ('s', 107)}
    if tok == 'vcc_lo':
        return {('s', 106)}
    if tok == 'vcc_hi':
        return {('s', 107)}
    if tok == 'exec':
        return {('s', 126), ('s', 127)}
    if tok == 'exec_lo':
        return {('s', 126)}
    if tok == 'exec_hi':
        return {('s', 127)}
    if tok == 'm0':
        return {('s', 124)}
    m = REG_RE.match(tok)
    if m:
        return {(m.group(3), int(m.group(4)))}
    m = RANGE_RE.match(tok)
    if m:
        return {(m.group(2), i) for i in range(int(m.group(3)), int(m.group(4)) + 1)}
    return set()


def split_ops(s):
    out, depth, cur = [], 0, ''
    for ch in s:
        if ch in '[(':
            depth += 1
        if ch in '])':
            depth -= 1
        if ch == ',' and depth == 0:
            out.append(cur.strip())
            cur = ''
        else:
            cur += ch
    if cur.strip():
        out.append(cur.strip())
    return out


class Ins:
    __slots__ = ('text', 'mn', 'ops', 'mods', 'wr', 'rd', 'cls', 'passes', 'srcA', 'srcB', 'srcC', 'states',
                 'is_dpp', 'store_data', 'label', 'target', 'lanesel')

    def __init__(self, text):
        self.text = text
        self.label = None
        self.target = None
        self.wr, self.rd = set(), set()
        self.srcA = self.srcB = self.srcC = set()
        self.passes = 0
        self.states = 1
        self.is_dpp = False
        self.store_data = set()
        self.lanesel = set()
        t = text.split(';')[0].strip()
        if t.endswith(':'):
            self.label = t[:-1]
            self.cls = 'label'
            self.mn = ''
            self.states = 0
            return
        if not t or t.startswith('.'):
            self.cls = 'none'
            self.mn = ''
            self.states = 0
            return
        parts = t.split(None, 1)
        mn = parts[0]
        self.mn = mn
        rest = parts[1] if len(parts) > 1 else ''
        ops = split_ops(rest)
        mods = ''
        if ops:
            lp = ops[-1].split(None, 1)
            if len(lp) > 1:
                ops[-1] = lp[0]
                mods = lp[1]
        self.ops, self.mods = ops, mods
        R = [regs_of(o) for o in ops]
        base = mn.replace('_e32', '').replace('_e64', '').replace('_dpp', '').replace('_sdwa', '')
        if mn == 's_nop':
            self.cls = 'salu'
            self.states = int(ops[0], 0) + 1
            return
        if mn.startswith('s_cbranch') or mn == 's_branch':
            self.cls = 'branch'
            self.target = ops[0]
            if 'vcc' in mn:
                self.rd |= regs_of('vcc')
            if 'exec' in mn:
                self.rd |= regs_of('exec')
            return
        if mn.startswith('s_load') or mn.startswith('s_buffer_load') or mn.startswith('s_memtime') or mn.startswith('s_memrealtime') or mn.startswith('s_atomic'):
            self.cls = 'smem'
            self.wr = R[0]
            for r in R[1:]:
                self.rd |= r
            return
        if mn.startswith('s_'):
            self.cls = 'salu'
            nodst = ('s_cmp', 's_waitcnt', 's_barrier', 's_endpgm', 's_setprio', 's_sleep', 's_bitcmp', 's_sendmsg', 's_setreg', 's_setpc')
            if any(mn.startswith(x) for x in nodst):
                for r in R:
                    self.rd |= r
            else:
                if R:
                    self.wr = set(R[0])
                for r in R[1:]:
                    self.rd |= r
                if 'saveexec' in mn:
                    self.wr |= regs_of('exec')
                    self.rd |= regs_of('exec')
                if mn.startswith('s_addk') or mn.startswith('s_mulk'):
                    self.rd |= R[0]
            return
        if mn.startswith('v_mfma'):
            self.cls = 'mfma'
            self.wr = set(R[0])
            self.srcA, self.srcB, self.srcC = R[1], R[2], R[3]
            self.rd = R[1] | R[2] | R[3]
            if '32x32x16' in mn or '32x32x8' in mn:
                self.passes = 8
            elif '16x16x32' in mn or '16x16x16' in mn:
                self.passes = 4
            else:
                raise ValueError('unknown mfma ' + mn)
            return
        if mn.startswith('buffer_') or mn.startswith('global_') or mn.startswith('flat_'):
            self.cls = 'vmem'
            lds = bool(re.search(r'\blds\b', mods)) or '_lds_' in mn
            if mn in ('buffer_wbl2', 'buffer_inv'):
                return
            if lds:
                for r in R:
                    self.rd |= r
                self.rd |= regs_of('m0')
            elif '_load' in mn:
                self.wr = set(R[0])
                for r in R[1:]:
                    self.rd |= r
                if 'd16' in mn:
                    self.rd |= R[0]
            elif '_store' in mn:
                for r in R:
                    self.rd |= r
                data = R[0] if mn.startswith('buffer_') else R[1]
                if len(data) >= 3:
                    self.store_data = set(data)
            elif '_atomic' in mn:
                for r in R:
                    self.rd |= r
                if 'sc0' in mods:
                    self.wr = set(R[0])
            else:
                raise ValueError('unknown vmem ' + mn)
            return
        if mn.startswith('ds_'):
            self.cls = 'ds'
            if mn.startswith('ds_read') or mn.startswith('ds_bpermute') or mn.startswith('ds_permute') or mn.startswith('ds_swizzle') or '_rtn' in mn:
                self.wr = set(R[0])
                for r in R[1:]:
                    self.rd |= r
                if 'd16' in mn:
                    self.rd |= R[0]
            else:
                for r in R:
                    self.rd |= r
            return
        if mn.startswith('v_'):
            self.cls = 'trans' if base in TRANS else 'valu'
            if 'dpp' in mn or re.search(r'\b(row_shr|row_shl|row_ror|row_bcast|wave_shr|wave_shl|wave_ror|wave_rol|quad_perm|row_mirror|row_half_mirror|row_newbcast)\b', mods):
                self.is_dpp = True
            if base.startswith('v_cmpx'):
                self.wr = set(R[0]) | regs_of('exec')
                for r in R[1:]:
                    self.rd |= r
            elif base.startswith('v_cmp'):
                self.wr = set(R[0])
                for r in R[1:]:
                    self.rd |= r
            elif base.startswith('v_permlane') and 'swap' in base:
                self.cls = 'permlane'
                self.wr = R[0] | R[1]
                self.rd = R[0] | R[1]
            elif base in ('v_readlane_b32', 'v_readfirstlane_b32'):
                self.cls = 'readlane'
                self.wr = set(R[0])
                self.rd = set(R[1])
                if len(R) > 2:
                    self.lanesel = set(R[2])
                    self.rd |= R[2]
            elif base == 'v_writelane_b32':
                self.cls = 'writelane'
                self.wr = set(R[0])
                self.rd = R[0] | R[1]
                self.lanesel = set(R[2])
                self.rd |= R[2]
            elif base.endswith('_co_u32') or base in ('v_div_scale_f32', 'v_mad_u64_u32'):
                self.wr = R[0] | R[1]
                for r in R[2:]:
                    self.rd |= r
            elif base == 'v_nop':
                pass
            else:
                self.wr = set(R[0])
                for r in R[1:]:
                    self.rd |= r
                if base.startswith('v_fmac') or base.startswith('v_pk_fmac') or base.startswith('v_dot2c') or self.is_dpp or 'sdwa' in mn or 'op_sel' in mods and not base.startswith('v_pk'):
                    self.rd |= R[0]
                if base == 'v_cndmask_b32' and len(ops) == 3:
                    self.rd |= regs_of('vcc')
            return
        raise ValueError('cannot classify: ' + text)


VALU_LIKE = ('valu', 'trans', 'permlane', 'readlane', 'writelane')
EXEC = regs_of('exec')
M0 = regs_of('m0')


def sg(s):
    return {r for r in s if r[0] == 's'}


def vg(s):
    return {r for r in s if r[0] in 'va'}


def required(p, c):
    need = 0
    pv = p.cls in VALU_LIKE
    cv = c.cls in VALU_LIKE
    if pv:
        pw_v, pw_s = vg(p.wr), sg(p.wr)
        if pw_s:
            if c.cls == 'vmem' and pw_s & c.rd:
                need = max(need, 5)
            if cv and pw_s & c.lanesel:
                need = max(need, 4)
            if (cv or c.cls == 'mfma') and pw_s & sg(c.rd):
                need = max(need, 2)
            if c.cls in ('salu', 'smem', 'branch') and pw_s & c.rd:
                need = max(need, 2)
            if pw_s & EXEC:
                if c.is_dpp:
                    need = max(need, 5)
                if c.cls in ('readlane', 'writelane', 'permlane', 'mfma'):
                    need = max(need, 4)
        if pw_v:
            if c.is_dpp and pw_v & c.rd:
                need = max(need, 2)
            if c.cls == 'readlane' and pw_v & c.rd:
                need = max(need, 1)
            if c.cls == 'permlane' and pw_v & c.rd:
                need = max(need, 2)
            if c.cls == 'mfma' and pw_v & c.rd:
                need = max(need, 2)
            if p.cls == 'trans' and cv and c.cls != 'trans' and pw_v & c.rd:
                need = max(need, 1)
            if ('sdwa' in p.mn or ('op_sel' in p.mods and not p.mn.startswith('v_pk'))) and cv and pw_v & (c.rd | c.wr):
                need = max(need, 1)
    if p.cls == 'salu' and (p.wr & M0):
        if c.cls == 'vmem' and (c.rd & M0):
            need = max(need, 1)
        if c.cls == 'ds' and 'addtid' in c.mn:
            need = max(need, 1)
    if p.cls == 'vmem' and p.store_data:
        if p.store_data & c.wr:
            need = max(need, 2 if cv else 1)
    if p.cls == 'mfma':
        D = p.wr
        n = p.passes
        if c.cls == 'mfma':
            if D & c.srcC:
                if not (c.srcC == D and c.passes == n):
                    need = max(need, {4: 6, 8: 10}[n])
            if D & (c.srcA | c.srcB):
                need = max(need, {4: 8, 8: 12}[n])
            if D & c.wr and not (D & c.srcC):
                need = max(need, {4: 8, 8: 12}[n])
        elif cv or c.cls in ('vmem', 'ds'):
            if D & (c.rd | c.wr):
                need = max(need, {4: 8, 8: 12}[n])
        if cv and (p.srcC & c.wr):
            need = max(need, {4: 3, 8: 7}[n])
    return need


WINDOW = 14


def fix_hazards(lines, verbose=False):
    ins = [Ins(l) for l in lines]
    labels = {}

    def rebuild():
        labels.clear()
        for i, x in enumerate(ins):
            if x.label:
                labels[x.label] = i

    def history(i):
        res = []

        def walk(j, acc, dist):
            while j >= 0 and dist < WINDOW:
                x = ins[j]
                if x.label:
                    for k, y in enumerate(ins):
                        if y.cls == 'branch' and y.target == x.label:
                            walk2(k, list(acc), dist)
                    j -= 1
                    continue
                if x.cls == 'none':
                    j -= 1
                    continue
                if x.mn in ('s_branch', 's_endpgm', 's_setpc_b64'):
                    break
                acc.append((x, dist))
                dist += x.states
                j -= 1
            res.append(acc)

        seen = set()

        def walk2(k, acc, dist):
            key = (k, dist)
            if key in seen:
                return
            seen.add(key)
            y = ins[k]
            acc.append((y, dist))
            dist += y.states
            walk(k - 1, acc, dist)

        walk(i - 1, [], 0)
        return res

    changed = True
    total = 0
    while changed:
        changed = False
        rebuild()
        i = 0
        while i < len(ins):
            c = ins[i]
            if c.cls in ('label', 'none'):
                i += 1
                continue
            worst = 0
            for path in history(i):
                for p, dist in path:
                    n = required(p, c) - dist
                    if n > worst:
                        worst = n
                        why = p
            if worst > 0:
                if verbose:
                    print('nop %d before "%s" due to "%s"' % (worst, c.text.strip(), why.text.strip()))
                ins.insert(i, Ins('    s_nop %d' % (worst - 1)))
                total += 1
                rebuild()
                i += 1
                changed = True
            i += 1
    return [x.text for x in ins], total


class Asm:
    def __init__(self):
        self.lines = []
        self._lab = 0

    def __call__(self, s):
        for l in s.strip('\n').split('\n'):
            l = l.strip()
            if not l:
                continue
            if l.endswith(':') or l.startswith('.'):
                self.lines.append(l)
            else:
                self.lines.append('    ' + l)

    def c(self, s):
        self.lines.append('    ; ' + s)

    def label(self, name):
        self.lines.append(name + ':')

    def newlabel(self, base='L'):
        self._lab += 1
        return '%s_%d' % (base, self._lab)


def vr(a, n=1):
    return 'v%d' % a if n == 1 else 'v[%d:%d]' % (a, a + n - 1)


def sr(a, n=1):
    return 's%d' % a if n == 1 else 's[%d:%d]' % (a, a + n - 1)


def kernel_text(name, body_lines, vgprs, sgprs=102):
    fixed, n = fix_hazards(body_lines)
    s = '.globl %s\n.p2align 8\n.type %s,@function\n%s:\n' % (name, name, name)
    s += '\n'.join(fixed) + '\n'
    return s


def descriptor_text(name, vgprs, sgprs=96, accum=None):
    if accum is None:
        accum = (vgprs + 3) // 4 * 4
    return ('.p2align 6\n.amdhsa_kernel %s\n  .amdhsa_next_free_vgpr %d\n  .amdhsa_next_free_sgpr %d\n'
            '  .amdhsa_accum_offset %d\n  .amdhsa_group_segment_fixed_size 0\n  .amdhsa_kernarg_size 112\n'
            '  .amdhsa_user_sgpr_count 2\n  .amdhsa_user_sgpr_kernarg_segment_ptr 1\n'
            '  .amdhsa_system_sgpr_workgroup_id_x 1\n.end_amdhsa_kernel\n') % (name, vgprs, sgprs, accum)
```

```python
import sys
from asmlib import *

NAME = 'interleave_layers__ssm_conv_h3__mixer_channel_mlp__prompt'
YT, X1, YR, ZI, WST, PART = 0, 0x400000, 0x800000, 0xC00000, 0x1000000, 0x2000000
ROWS_B = 2048 * 1280
STREAM = 82 * 1024

def srd(a, d, lo, hi, size, add=None):
    if add is None:
        a('s_mov_b32 s%d, s%d' % (d, lo)); a('s_mov_b32 s%d, s%d' % (d + 1, hi))
    else:
        a('s_add_u32 s%d, s%d, %s' % (d, lo, add)); a('s_addc_u32 s%d, s%d, 0' % (d + 1, hi))
    a('s_mov_b32 s%d, %s' % (d + 2, size)); a('s_mov_b32 s%d, 0x20000' % (d + 3))

def conv_kernel():
    a = Asm()
    a('''
    s_cmp_ge_u32 s2, 460
    s_cbranch_scc1 C_END
    s_load_dwordx4 s[4:7], s[0:1], 8
    s_load_dwordx4 s[8:11], s[0:1], 24
    s_load_dwordx2 s[12:13], s[0:1], 40
    s_load_dwordx2 s[14:15], s[0:1], 104
    s_load_dwordx2 s[16:17], s[0:1], 56
    s_load_dwordx2 s[18:19], s[0:1], 72
    v_lshrrev_b32 v1, 6, v0
    v_readfirstlane_b32 s21, v1
    v_and_b32 v1, 63, v0
    s_cmp_ge_u32 s2, 160
    s_cbranch_scc1 C_PACK
    s_and_b32 s20, s2, 7
    s_mul_i32 s20, s20, 20
    s_lshr_b32 s22, s2, 3
    s_add_u32 s20, s20, s22
    s_lshl_b32 s20, s20, 2          ; c0
    s_lshl_b32 s22, s20, 3
    s_lshl_b32 s23, s20, 1          ; c0*2
    s_add_u32 s50, s20, s21
    s_lshl_b32 s50, s50, 12         ; (c0+w)*4096
    v_and_b32 v2, 15, v1            ; r / i
    v_lshrrev_b32 v3, 4, v1         ; q
    v_mul_u32_u24 v5, 10240, v0
    v_add_u32 v5, s23, v5           ; vm0
    v_add_u32 v6, 5120, v5          ; vm1
    v_subrev_u32 v4, 3840, v5       ; vh
    s_waitcnt lgkmcnt(0)
    s_load_dwordx8 s[40:47], s[8:9], s22
    s_load_dwordx2 s[48:49], s[12:13], s23
    ''')
    srd(a, 24, 4, 5, hex(ROWS_B))
    srd(a, 28, 6, 7, hex(ROWS_B))
    srd(a, 32, 10, 11, 4096, 's50')
    srd(a, 36, 14, 15, 4096, 's50')
    K0, V0 = 16, 38
    for i in range(3):
        a('buffer_load_dwordx2 %s, v4, s[24:27], 0 offen offset:%d' % (vr(K0 + 2 * i, 2), 1280 * i))
    for i in range(8):
        a('buffer_load_dwordx2 %s, v%d, s[24:27], 0 offen offset:%d' % (vr(K0 + 6 + 2 * i, 2), 5 + i // 4, 1280 * (i % 4)))
    for i in range(8):
        a('buffer_load_dwordx2 %s, v%d, s[28:31], 0 offen offset:%d' % (vr(V0 + 2 * i, 2), 5 + i // 4, 1280 * (i % 4)))
    A0, A1, ACC = 80, 112, 144
    B0, B1 = 16, 48
    SP = 176
    a('''
    v_lshlrev_b32 v7, 4, v3
    v_lshl_add_u32 v7, v2, 1, v7
    v_subrev_u32 v7, 30, v7
    v_lshlrev_b32 v12, 6, v1
    buffer_load_dword v13, v12, s[32:35], 0 offen
    ''')
    for j in range(8):
        a('v_add_u32 v12, %d, v7' % (2 * j))
        a('buffer_load_ushort v%d, v12, s[32:35], 0 offen' % (SP + j))
    a('v_add_u32 v7, 64, v7')
    for i in range(1, 8):
        a('buffer_load_dwordx4 %s, v7, s[32:35], 0 offen offset:%d' % (vr(A0 + 4 * i, 4), 512 * i - 64))
    for i in range(8):
        a('buffer_load_dwordx4 %s, v7, s[32:35], 0 offen offset:%d' % (vr(A1 + 4 * i, 4), 512 * i))
    a('v_add_u32 v7, 64, v7')
    a('''
    s_mul_i32 s51, s21, 4608
    v_lshlrev_b32 v12, 5, v2                 ; 32 i
    v_lshlrev_b32 v8, 4, v3                  ; 16 q
    v_sub_u32 v8, v8, v12
    v_add_u32 v8, 480, v8
    v_add_u32 v8, s51, v8                    ; vB
    v_lshlrev_b32 v9, 3, v3                  ; 8 q
    v_add_u32 v10, v12, v9
    v_sub_u32 v9, 504, v10
    v_add_u32 v9, s51, v9                    ; vE
    v_lshlrev_b32 v11, 4, v0
    v_sub_u32 v11, 4080, v11
    ''')
    a('''
    v_lshrrev_b32 v12, 5, v0
    v_mul_u32_u24 v12, 4608, v12
    v_and_b32 v14, 31, v0
    v_lshl_add_u32 v12, v14, 4, v12
    v_mov_b32 v72, 0
    v_mov_b32 v73, 0
    v_mov_b32 v74, 0
    v_mov_b32 v75, 0
    s_cmp_ge_u32 s21, 2
    s_cbranch_scc1 C_NOZ
    ds_write_b128 v12, v[72:75] offset:4096
    C_NOZ:
    s_waitcnt lgkmcnt(0)
    ''')
    for c in range(4):
        for h in range(2):
            a('s_lshl_b32 s%d, s%d, 16' % (52 + 4 * c + 2 * h, 40 + 2 * c + h))
            a('s_and_b32 s%d, s%d, 0xffff0000' % (52 + 4 * c + 2 * h + 1, 40 + 2 * c + h))
    a('''
    s_cmp_ge_u32 s21, 2
    s_cselect_b32 s68, s49, s48
    s_bitcmp1_b32 s21, 0
    s_cbranch_scc1 C_DHI
    s_lshl_b32 s68, s68, 16
    C_DHI:
    s_and_b32 s68, s68, 0xffff0000
    s_mov_b32 s69, 0xffff0000
    s_waitcnt vmcnt(24)
    ''')
    KF, VF, OUT = 54, 65, 76
    for c in range(4):
        d = c >> 1
        for i in range(11):
            if c & 1:
                a('v_and_b32 v%d, s69, v%d' % (KF + i, K0 + 2 * i + d))
            else:
                a('v_lshlrev_b32 v%d, 16, v%d' % (KF + i, K0 + 2 * i + d))
        for t in range(8):
            a('v_mul_f32 v%d, s%d, v%d' % (VF + t, 52 + 4 * c + 3, KF + t))
        for jj in (2, 1, 0):
            for t in range(8):
                a('v_fmac_f32 v%d, s%d, v%d' % (VF + t, 52 + 4 * c + jj, KF + 3 + t - jj))
        for t in range(8):
            if c & 1:
                a('v_and_b32 v%d, s69, v%d' % (KF + t, V0 + 2 * t + d))
            else:
                a('v_lshlrev_b32 v%d, 16, v%d' % (KF + t, V0 + 2 * t + d))
        for t in range(8):
            a('v_mul_f32 v%d, v%d, v%d' % (VF + t, VF + t, KF + t))
        for dd in range(4):
            a('v_cvt_pk_bf16_f32 v%d, v%d, v%d' % (OUT + dd, VF + 7 - 2 * dd, VF + 6 - 2 * dd))
        a('ds_write_b128 v11, %s offset:%d' % (vr(OUT, 4), 4608 * c))
    a('s_waitcnt lgkmcnt(0)')
    a('s_barrier')
    def breads(B):
        for b in range(8):
            a('ds_read_b128 %s, v8 offset:%d' % (vr(B + 4 * b, 4), 512 * (7 - b)))
        a('v_add_u32 v8, 64, v8')
    def aloads(A):
        for i in range(8):
            a('buffer_load_dwordx4 %s, v7, s[32:35], 0 offen offset:%d' % (vr(A + 4 * i, 4), 512 * i))
        a('v_add_u32 v7, 64, v7')
    def mfmas(A, B):
        for aa in range(8):
            for tau in range(aa, 8):
                a('v_mfma_f32_16x16x32_bf16 %s, %s, %s, %s' % (vr(ACC + 4 * tau, 4), vr(A + 4 * aa, 4), vr(B + 4 * (tau - aa), 4), vr(ACC + 4 * tau, 4)))
    breads(B0)
    for i in range(32):
        a('v_mov_b32 v%d, 0' % (ACC + i))
    a('s_waitcnt vmcnt(8)')
    for p in range(4):
        a('v_lshl_or_b32 v%d, v%d, 16, v%d' % (A0 + p, SP + 2 * p + 1, SP + 2 * p))
    a('s_mov_b32 s70, 0')
    a.label('C_LOOP')
    a('s_waitcnt lgkmcnt(0)')
    breads(B1)
    a('s_waitcnt vmcnt(8)')
    mfmas(A0, B0)
    aloads(A0)
    a('s_waitcnt lgkmcnt(0)')
    breads(B0)
    a('s_waitcnt vmcnt(8)')
    mfmas(A1, B1)
    aloads(A1)
    a('''
    s_add_u32 s70, s70, 1
    s_cmp_lt_u32 s70, 4
    s_cbranch_scc1 C_LOOP
    s_waitcnt lgkmcnt(0)
    ''')
    E = 48
    for tau in range(8):
        a('ds_read_b64 %s, v9 offset:%d' % (vr(E + 2 * tau, 2), 512 * (7 - tau)))
    a('s_waitcnt lgkmcnt(0)')
    T = 64
    for tau in range(8):
        e0, e1 = E + 2 * tau, E + 2 * tau + 1
        a('v_and_b32 v%d, s69, v%d' % (T + 0, e1))
        a('v_lshlrev_b32 v%d, 16, v%d' % (T + 1, e1))
        a('v_and_b32 v%d, s69, v%d' % (T + 2, e0))
        a('v_lshlrev_b32 v%d, 16, v%d' % (T + 3, e0))
        for r in range(4):
            a('v_fmac_f32 v%d, s68, v%d' % (ACC + 4 * tau + r, T + r))
        a('v_cvt_pk_bf16_f32 v%d, v%d, v%d' % (e0, ACC + 4 * tau, ACC + 4 * tau + 1))
        a('v_cvt_pk_bf16_f32 v%d, v%d, v%d' % (e1, ACC + 4 * tau + 2, ACC + 4 * tau + 3))
        a('buffer_store_dwordx2 %s, v10, s[36:39], 0 offen offset:%d' % (vr(e0, 2), 512 * tau))
    a('s_endpgm')
    a.label('C_PACK')
    a('''
    v_lshrrev_b32 v2, 5, v1          ; kh
    v_and_b32 v3, 31, v1             ; quad
    v_and_b32 v4, 7, v1              ; cq
    v_lshrrev_b32 v5, 2, v4
    v_lshlrev_b32 v5, 4, v5          ; 16*(cq>>2)
    v_and_b32 v6, 1, v4
    v_lshl_add_u32 v5, v6, 3, v5     ; + 8*(cq&1)
    v_bfe_u32 v6, v4, 1, 1
    v_lshl_add_u32 v5, v6, 2, v5     ; rho0
    v_lshl_add_u32 v5, v2, 5, v5     ; kh*32 + rho0
    v_lshlrev_b32 v5, 4, v5          ; byte offset in fragment
    v_lshrrev_b32 v6, 3, v3          ; quad>>3
    s_mov_b32 s60, 0x05040100
    s_mov_b32 s61, 0x07060302
    s_mov_b32 s62, %d
    v_mov_b32 v9, 0x80000000
    s_waitcnt lgkmcnt(0)
    ''' % STREAM)
    srd(a, 36, 14, 15, 64 * STREAM, hex(WST))
    a('''
    s_cmp_ge_u32 s2, 320
    s_cbranch_scc1 C_PACK2
    s_sub_u32 s22, s2, 160
    s_lshl_b32 s22, s22, 2
    s_add_u32 s22, s22, s21          ; item
    s_mul_hi_u32 s23, s22, 53687092  ; j = item/80
    s_mul_i32 s24, s23, 80
    s_sub_u32 s24, s22, s24          ; rem
    s_lshr_b32 s25, s24, 1           ; ks
    s_and_b32 s26, s24, 1            ; fg
    ''')
    srd(a, 32, 16, 17, 640 * 3456)
    a('''
    s_lshl_b32 s27, s26, 7
    v_lshl_add_u32 v7, v3, 2, s27    ; f_local
    s_mul_i32 s28, s25, %d           ; ks*16*3456
    s_mul_i32 s29, s23, 432
    s_add_u32 s28, s28, s29
    v_mul_u32_u24 v8, %d, v2         ; kh*8*3456
    v_lshl_add_u32 v8, v7, 1, v8
    v_add_u32 v8, s28, v8            ; src offset
    v_cmp_gt_u32 vcc, 216, v7
    v_cndmask_b32 v8, v9, v8, vcc
    ''' % (16 * 3456, 8 * 3456))
    for e in range(8):
        a('s_mov_b32 s%d, %d' % (40 + e, e * 3456))
    for e in range(8):
        a('buffer_load_dwordx2 %s, v8, s[32:35], s%d offen' % (vr(16 + 2 * e, 2), 40 + e))
    a('''
    s_lshl_b32 s27, s26, 2
    v_add_u32 v6, s27, v6            ; wv
    s_lshl_b32 s29, s23, 3
    v_add_u32 v10, s29, v6           ; j*8+wv
    v_mul_lo_u32 v10, v10, s62
    s_lshl_b32 s29, s25, 10
    v_add3_u32 v10, v10, s29, v5
    v_cmp_gt_u32 vcc, 7, v6
    v_cndmask_b32 v10, v9, v10, vcc
    s_branch C_PACKST
    C_PACK2:
    s_sub_u32 s22, s2, 320
    s_lshl_b32 s22, s22, 2
    s_add_u32 s22, s22, s21          ; item
    s_mul_hi_u32 s23, s22, 61356676  ; j = item/70
    s_mul_i32 s24, s23, 70
    s_sub_u32 s24, s22, s24          ; rem
    s_mul_hi_u32 s25, s24, 858993460
    s_mul_i32 s26, s25, 5
    s_sub_u32 s26, s24, s26          ; ng
    ''')
    srd(a, 32, 18, 19, 1728 * 1280)
    a('''
    s_mul_i32 s28, s23, %d           ; j*216*1280
    s_mul_i32 s29, s25, %d           ; ks*16*1280
    s_add_u32 s28, s28, s29
    s_lshl_b32 s29, s26, 8           ; ng*128*2
    s_add_u32 s28, s28, s29
    v_mul_u32_u24 v8, %d, v2         ; kh*8*1280
    v_lshl_add_u32 v8, v3, 3, v8
    v_add_u32 v8, s28, v8
    s_lshl_b32 s29, s25, 1
    v_add_u32 v7, s29, v2            ; octet = 2ks+kh
    v_cmp_gt_u32 vcc, 27, v7
    v_cndmask_b32 v8, v9, v8, vcc
    ''' % (216 * 1280, 16 * 1280, 8 * 1280))
    for e in range(8):
        a('s_mov_b32 s%d, %d' % (40 + e, e * 1280))
    for e in range(8):
        a('buffer_load_dwordx2 %s, v8, s[32:35], s%d offen' % (vr(16 + 2 * e, 2), 40 + e))
    a('''
    s_lshl_b32 s27, s26, 2
    v_add_u32 v6, s27, v6            ; nt
    v_and_b32 v11, 7, v6             ; wv
    v_lshrrev_b32 v12, 3, v6         ; slot
    s_lshl_b32 s29, s23, 3
    v_add_u32 v10, s29, v11
    v_mul_lo_u32 v10, v10, s62
    v_mul_u32_u24 v12, %d, v12       ; slot*14*1024
    s_add_u32 s29, s25, 40
    s_lshl_b32 s29, s29, 10
    v_add3_u32 v10, v10, s29, v5
    v_add_u32 v10, v10, v12
    C_PACKST:
    s_waitcnt vmcnt(0)
    ''' % (14 * 1024))
    for col in range(4):
        d = col >> 1
        sel = 's61' if col & 1 else 's60'
        for p in range(4):
            a('v_perm_b32 v%d, v%d, v%d, %s' % (32 + 4 * col + p, 16 + 2 * (2 * p + 1) + d, 16 + 2 * (2 * p) + d, sel))
        a('buffer_store_dwordx4 %s, v10, s[36:39], 0 offen offset:%d' % (vr(32 + 4 * col, 4), 16 * col))
    a.label('C_END')
    a('s_endpgm')
    return a.lines, 184

def wave_sum(a, v):
    a('v_add_f32 v%d, v%d, v%d row_shr:1 row_mask:0xf bank_mask:0xf bound_ctrl:0' % (v, v, v))
    a('v_add_f32 v%d, v%d, v%d row_shr:2 row_mask:0xf bank_mask:0xf bound_ctrl:0' % (v, v, v))
    a('v_add_f32 v%d, v%d, v%d row_shr:4 row_mask:0xf bank_mask:0xf bound_ctrl:0' % (v, v, v))
    a('v_add_f32 v%d, v%d, v%d row_shr:8 row_mask:0xf bank_mask:0xf bound_ctrl:0' % (v, v, v))
    a('v_add_f32 v%d, v%d, v%d row_bcast:15 row_mask:0xa bank_mask:0xf' % (v, v, v))
    a('v_add_f32 v%d, v%d, v%d row_bcast:31 row_mask:0xc bank_mask:0xf' % (v, v, v))

def layernorm(a, X, D, T, s_mean, s_rstd):
    a('v_add_f32 v%d, v%d, v%d' % (T, X, X + 1))
    a('v_add_f32 v%d, v%d, v%d' % (T + 1, X + 2, X + 3))
    for i in range(4, 10, 2):
        a('v_add_f32 v%d, v%d, v%d' % (T, T, X + i))
        a('v_add_f32 v%d, v%d, v%d' % (T + 1, T + 1, X + i + 1))
    a('v_add_f32 v%d, v%d, v%d' % (T, T, T + 1))
    wave_sum(a, T)
    a('v_mul_f32 v%d, s80, v%d' % (T, T))
    a('v_readlane_b32 s%d, v%d, 63' % (s_mean, T))
    for i in range(10):
        a('v_subrev_f32 v%d, s%d, v%d' % (D + i, s_mean, X + i))
    a('v_mul_f32 v%d, v%d, v%d' % (T, D, D))
    a('v_mul_f32 v%d, v%d, v%d' % (T + 1, D + 1, D + 1))
    for i in range(2, 10, 2):
        a('v_fmac_f32 v%d, v%d, v%d' % (T, D + i, D + i))
        a('v_fmac_f32 v%d, v%d, v%d' % (T + 1, D + i + 1, D + i + 1))
    a('v_add_f32 v%d, v%d, v%d' % (T, T, T + 1))
    wave_sum(a, T)
    a('v_mov_b32 v%d, s81' % (T + 1))
    a('v_fmac_f32 v%d, s80, v%d' % (T + 1, T))
    a('v_rsq_f32 v%d, v%d' % (T, T + 1))
    a('v_readlane_b32 s%d, v%d, 63' % (s_rstd, T))

def unpack10(a, dst, src):
    for i in range(5):
        a('v_lshlrev_b32 v%d, 16, v%d' % (dst + 2 * i, src + i))
        a('v_and_b32 v%d, s82, v%d' % (dst + 2 * i + 1, src + i))

def pack10(a, dst, src):
    for i in range(5):
        a('v_cvt_pk_bf16_f32 v%d, v%d, v%d' % (dst + i, src + 2 * i, src + 2 * i + 1))

def row_kernel(kind):
    a = Asm()
    L = kind.upper()
    a('''
    s_cmp_ge_u32 s2, 256
    s_cbranch_scc1 %s_END
    s_load_dwordx2 s[4:5], s[0:1], 0       ; q
    s_load_dwordx2 s[6:7], s[0:1], 80      ; b2
    s_load_dwordx2 s[8:9], s[0:1], 88      ; out
    s_load_dwordx2 s[14:15], s[0:1], 104   ; ws
    v_lshrrev_b32 v1, 6, v0
    v_readfirstlane_b32 s21, v1
    v_and_b32 v1, 63, v0
    s_mov_b32 s80, 0x3acccccd       ; 1/640
    s_mov_b32 s81, 0x3727c5ac       ; 1e-5
    s_mov_b32 s82, 0xffff0000
    s_lshl_b32 s22, s2, 3
    s_add_u32 s22, s22, s21         ; token t
    s_mul_i32 s23, s22, 1280        ; row byte offset
    v_lshlrev_b32 v2, 4, v1         ; lane*16
    v_lshlrev_b32 v3, 2, v1         ; lane*4
    s_waitcnt lgkmcnt(0)
    ''' % L)
    srd(a, 24, 14, 15, hex(ROWS_B), hex(X1))
    srd(a, 28, 14, 15, hex(ROWS_B), hex(YR))
    XR, YRG, X, Y, D, T, P = 8, 16, 24, 34, 44, 54, 64
    def rowload(dst, s):
        a('buffer_load_dwordx4 %s, v2, s[%d:%d], s23 offen' % (vr(dst, 4), s, s + 3))
        a('buffer_load_dword v%d, v3, s[%d:%d], s23 offen offset:1024' % (dst + 4, s, s + 3))
    def rowstore(src, s):
        a('buffer_store_dwordx4 %s, v2, s[%d:%d], s23 offen' % (vr(src, 4), s, s + 3))
        a('buffer_store_dword v%d, v3, s[%d:%d], s23 offen offset:1024' % (src + 4, s, s + 3))
    if kind == 'ln1':
        srd(a, 32, 4, 5, hex(ROWS_B))
        srd(a, 36, 14, 15, hex(ROWS_B))
        a('''
        s_lshl_b32 s40, s2, 4
        v_lshlrev_b32 v4, 12, v0
        buffer_load_dwordx4 v[64:67], v4, s[36:39], s40 offen
        v_add_u32 v5, 0x200000, v4
        buffer_load_dwordx4 v[68:71], v5, s[36:39], s40 offen
        ''')
        rowload(XR, 32)
        a('v_lshlrev_b32 v6, 1, v0')
        a('s_waitcnt vmcnt(3)')
        for e in range(8):
            a('ds_write_b16%s v6, v%d offset:%d' % ('_d16_hi' if e & 1 else '', 64 + (e >> 1), 1280 * e))
        a('s_cmp_ge_u32 s21, 2')
        a('s_cbranch_scc1 LN1_SKIP')
        a('s_waitcnt vmcnt(2)')
        for e in range(8):
            a('ds_write_b16%s v6, v%d offset:%d' % ('_d16_hi' if e & 1 else '', 68 + (e >> 1), 1280 * e + 1024))
        a.label('LN1_SKIP')
        a('''
        s_mul_i32 s41, s21, 1280
        v_add_u32 v6, s41, v2
        v_add_u32 v7, s41, v3
        s_waitcnt lgkmcnt(0)
        s_barrier
        ds_read_b128 v[16:19], v6
        ds_read_b32 v20, v7 offset:1024
        s_waitcnt vmcnt(0)
        ''')
        unpack10(a, X, XR)
        a('s_waitcnt lgkmcnt(0)')
        rowstore(YRG, 28)
    else:
        srd(a, 32, 14, 15, hex(8 * ROWS_B), hex(PART))
        srd(a, 36, 6, 7, 1280)
        rowload(XR, 24)
        a('buffer_load_dwordx4 v[56:59], v2, s[36:39], 0 offen')
        a('buffer_load_dword v60, v3, s[36:39], 0 offen offset:1024')
        a('s_mov_b32 s40, s23')
        for j in range(8):
            a('buffer_load_dwordx4 %s, v2, s[32:35], s40 offen' % vr(P + 6 * j, 4))
            a('buffer_load_dword v%d, v3, s[32:35], s40 offen offset:1024' % (P + 6 * j + 4))
            if j < 7:
                a('s_add_u32 s40, s40, %s' % hex(ROWS_B))
        if kind == 'red1':
            rowload(YRG, 28)
            tail = 2
        else:
            tail = 0
        a('s_waitcnt vmcnt(%d)' % (16 + tail))
        unpack10(a, X, XR)
        unpack10(a, D, 56)
        for j in range(8):
            a('s_waitcnt vmcnt(%d)' % (14 - 2 * j + tail))
            unpack10(a, Y, P + 6 * j)
            for i in range(10):
                a('v_add_f32 v%d, v%d, v%d' % (D + i, D + i, Y + i))
        for i in range(10):
            a('v_add_f32 v%d, v%d, v%d' % (X + i, X + i, D + i))
        pack10(a, XR, X)
        if kind == 'red2':
            srd(a, 40, 8, 9, hex(ROWS_B))
            rowstore(XR, 40)
            a.label('%s_END' % L)
            a('s_endpgm')
            return a.lines, 112
        unpack10(a, X, XR)
        a('s_waitcnt vmcnt(0)')
    unpack10(a, Y, YRG)
    layernorm(a, X, D, T, 84, 85)
    for i in range(10):
        a('v_mul_f32 v%d, s85, v%d' % (D + i, D + i))
    for i in range(10):
        a('v_fmac_f32 v%d, v%d, v%d' % (X + i, D + i, Y + i))
    pack10(a, XR, X)
    rowstore(XR, 24)
    unpack10(a, X, XR)
    layernorm(a, X, D, T, 84, 85)
    for i in range(10):
        a('v_mul_f32 v%d, s85, v%d' % (X + i, D + i))
    layernorm(a, X, D, T, 84, 85)
    for i in range(10):
        a('v_mul_f32 v%d, s85, v%d' % (D + i, D + i))
    pack10(a, P, D)
    srd(a, 40, 14, 15, hex(ROWS_B), hex(ZI))
    a('''
    s_lshr_b32 s44, s22, 6
    s_mul_i32 s44, s44, 81920
    s_and_b32 s45, s22, 63
    s_lshl_b32 s45, s45, 8
    s_add_u32 s44, s44, s45          ; g*81920 + m*256
    s_and_b32 s45, s22, 15
    v_and_b32 v4, 15, v1
    v_xor_b32 v4, s45, v4
    v_lshlrev_b32 v4, 4, v4
    v_lshrrev_b32 v5, 4, v1
    v_lshl_add_u32 v4, v5, 14, v4
    v_lshrrev_b32 v5, 2, v1
    v_xor_b32 v5, s45, v5
    v_lshlrev_b32 v5, 4, v5
    v_and_b32 v6, 3, v1
    v_lshl_add_u32 v5, v6, 2, v5
    v_add_u32 v5, 0x10000, v5
    buffer_store_dwordx4 %s, v4, s[40:43], s44 offen
    buffer_store_dword v%d, v5, s[40:43], s44 offen
    ''' % (vr(P, 4), P + 4))
    a.label('%s_END' % L)
    a('s_endpgm')
    return a.lines, 112

def mlp_kernel():
    a = Asm()
    D = 14
    RING = 16
    BB = 72
    ACC1 = 96
    ACC2 = [128, 160]
    ZA = 192
    T = 200
    a('''
    s_cmp_ge_u32 s2, 256
    s_cbranch_scc1 M_END
    s_load_dwordx2 s[6:7], s[0:1], 64      ; b1
    s_load_dwordx2 s[14:15], s[0:1], 104   ; ws
    v_lshrrev_b32 v1, 6, v0
    v_readfirstlane_b32 s21, v1            ; w
    v_and_b32 v1, 63, v0
    s_and_b32 s22, s2, 7                   ; j
    s_lshr_b32 s23, s2, 3                  ; g
    s_mul_i32 s40, s23, 81920
    s_add_u32 s41, s40, %s                 ; ZI + g*81920
    s_mul_i32 s42, s22, %s
    s_add_u32 s42, s42, s40
    s_add_u32 s42, s42, %s                 ; PART + j*ROWS + g*81920
    s_lshl_b32 s43, s22, 3
    s_add_u32 s43, s43, s21
    s_mul_i32 s43, s43, %d
    s_add_u32 s43, s43, %s                 ; WST + stream
    s_mov_b32 s44, %d
    s_cmp_ge_u32 s21, 4
    s_cselect_b32 s44, %d, s44
    v_lshlrev_b32 v2, 4, v1                ; lane*16
    v_and_b32 v3, 31, v1                   ; mm
    v_lshrrev_b32 v4, 5, v1                ; half
    s_mul_i32 s45, s22, 432
    s_lshl_b32 s46, s21, 6
    s_add_u32 s45, s45, s46                ; b1 byte offset
    v_lshlrev_b32 v5, 4, v4                ; half*16
    s_waitcnt lgkmcnt(0)
    ''' % (hex(ZI), hex(ROWS_B), hex(PART), STREAM, hex(WST), 82 * 1024, 68 * 1024))
    srd(a, 24, 14, 15, 81920, 's41')
    srd(a, 28, 14, 15, 's44', 's43')
    srd(a, 32, 6, 7, 3456)
    srd(a, 36, 14, 15, 81920, 's42')
    a('buffer_load_dwordx4 %s, v5, s[32:35], s45 offen' % vr(T, 4))
    a('buffer_load_dwordx4 %s, v5, s[32:35], s45 offen offset:32' % vr(T + 4, 4))
    a('s_lshl_b32 s47, s21, 10')
    for i in range(10):
        a('s_mov_b32 m0, s47')
        a('buffer_load_dwordx4 v2, s[24:27], s47 offen lds')
        if i < 9:
            a('s_add_u32 s47, s47, 8192')
    def ringload(f):
        slot = f % D
        if f % 4 == 0:
            a('s_movk_i32 s48, %d' % (f * 1024) if f * 1024 < 32768 else 's_mov_b32 s48, %d' % (f * 1024))
        a('buffer_load_dwordx4 %s, v2, s[28:31], s48 offen offset:%d' % (vr(RING + 4 * slot, 4), (f % 4) * 1024))
    a('s_cmp_eq_u32 s21, 7')
    a('s_cbranch_scc0 M_NORM')
    for f in range(40, 40 + D):
        ringload(f)
    a('s_waitcnt vmcnt(%d)' % D)
    a('s_barrier')
    a('s_branch M_G2')
    a.label('M_NORM')
    for f in range(D):
        ringload(f)
    a('v_and_b32 v6, 15, v3')
    a('v_lshlrev_b32 v7, 8, v3')
    for k in range(8):
        a('v_add_u32 v8, %d, v4' % (2 * k))
        a('v_xor_b32 v8, v8, v6')
        a('v_lshl_add_u32 v%d, v8, 4, v7' % (ZA + k))
    a('s_mov_b32 s82, 0xffff0000')
    a('s_waitcnt vmcnt(%d)' % D)
    for i in range(8):
        a('v_lshlrev_b32 v%d, 16, v%d' % (ACC1 + 2 * i, T + i))
        a('v_and_b32 v%d, s82, v%d' % (ACC1 + 2 * i + 1, T + i))
    for i in range(16):
        a('v_mov_b32 v%d, v%d' % (ACC1 + 16 + i, ACC1 + i))
    a('s_barrier')
    def zread(ks):
        s = BB + 8 * (ks % 3)
        aa = ks >> 3
        if ks == 24:
            for k in range(8):
                a('v_add_u32 v%d, 0x8000, v%d' % (ZA + k, ZA + k))
        off = aa * 16384 - (32768 if ks >= 24 else 0)
        a('ds_read_b128 %s, v%d offset:%d' % (vr(s, 4), ZA + (ks & 7), off))
        a('ds_read_b128 %s, v%d offset:%d' % (vr(s + 4, 4), ZA + (ks & 7), off + 8192))
    zread(0); zread(1)
    for ks in range(40):
        if ks + 2 < 40:
            zread(ks + 2)
        pend = 2 * min(2, 39 - ks)
        a('s_waitcnt vmcnt(%d) lgkmcnt(%d)' % (D - 1, pend))
        s = BB + 8 * (ks % 3)
        A = vr(RING + 4 * (ks % D), 4)
        a('v_mfma_f32_32x32x16_bf16 %s, %s, %s, %s' % (vr(ACC1, 16), A, vr(s, 4), vr(ACC1, 16)))
        a('v_mfma_f32_32x32x16_bf16 %s, %s, %s, %s' % (vr(ACC1 + 16, 16), A, vr(s + 4, 4), vr(ACC1 + 16, 16)))
        ringload(ks + D)
    import math
    c1 = -2.0 * math.sqrt(2.0 / math.pi) * math.log2(math.e)
    c2 = c1 * 0.044715
    import struct
    f2h = lambda x: hex(struct.unpack('<I', struct.pack('<f', x))[0])
    a('s_mov_b32 s83, %s' % f2h(c2))
    a('v_mov_b32 v9, %s' % f2h(c1))
    a('s_lshl_b32 s49, s21, 12')
    a('v_add_u32 v10, s49, v2')
    a('v_add_u32 v10, 81920, v10')
    for mt in range(2):
        for q in range(2):
            X = ACC1 + 16 * mt + 8 * q
            for i in range(8):
                a('v_mul_f32 v%d, v%d, v%d' % (T + i, X + i, X + i))
            for i in range(8):
                a('v_fma_f32 v%d, v%d, s83, v9' % (T + i, T + i))
            for i in range(8):
                a('v_mul_f32 v%d, v%d, v%d' % (T + i, T + i, X + i))
            for i in range(8):
                a('v_exp_f32 v%d, v%d' % (T + i, T + i))
            for i in range(8):
                a('v_add_f32 v%d, 1.0, v%d' % (T + i, T + i))
            for i in range(8):
                a('v_rcp_f32 v%d, v%d' % (T + i, T + i))
            for i in range(8):
                a('v_mul_f32 v%d, v%d, v%d' % (T + i, T + i, X + i))
            o = T + 8 + 4 * ((2 * mt + q) & 1)
            for i in range(4):
                a('v_cvt_pk_bf16_f32 v%d, v%d, v%d' % (o + i, T + 2 * i, T + 2 * i + 1))
            a('ds_write_b128 v10, %s offset:%d' % (vr(o, 4), (q * 2 + mt) * 1024))
    a.label('M_G2')
    a('''
    v_add_u32 v11, 81920, v2
    v_mul_u32_u24 v12, 1280, v3
    v_add_u32 v12, v12, v5
    v_add_u32 v13, 40960, v12              ; mt=1
    s_lshl_b32 s50, s21, 6
    s_waitcnt lgkmcnt(0)
    s_barrier
    ''')
    queue = ['r%d' % f for f in range(40, 40 + D)]
    def hread(i):
        ks = i % 14
        s = BB + 8 * (i % 3)
        a('ds_read_b128 %s, v11 offset:%d' % (vr(s, 4), (2 * ks) * 1024))
        a('ds_read_b128 %s, v11 offset:%d' % (vr(s + 4, 4), (2 * ks + 1) * 1024))
    def epilogue(slot, q_):
        AC = ACC2[slot & 1]
        for mt in range(2):
            for q in range(2):
                o = T + 4 * (2 * mt + q)
                X = AC + 16 * mt + 8 * q
                for i in range(4):
                    a('v_cvt_pk_bf16_f32 v%d, v%d, v%d' % (o + i, X + 2 * i, X + 2 * i + 1))
                a('buffer_store_dwordx4 %s, v%d, s[36:39], s50 offen offset:%d' % (vr(o, 4), 12 + mt, 512 * slot + 32 * q))
                if q_ is not None:
                    q_.append('st')
    hread(0); hread(1)
    for i in range(42):
        slot, ks = divmod(i, 14)
        if i == 28:
            a('s_cmp_ge_u32 s21, 4')
            a('s_cbranch_scc1 M_FIN1')
        if i + 2 < 42:
            hread(i + 2)
        pend = 2 * min(2, 41 - i)
        idx = queue.index('r%d' % (40 + i))
        n = len(queue) - 1 - idx
        queue = queue[idx + 1:]
        a('s_waitcnt vmcnt(%d) lgkmcnt(%d)' % (n, pend))
        s = BB + 8 * (i % 3)
        A = vr(RING + 4 * ((40 + i) % D), 4)
        AC = ACC2[slot & 1]
        for mt in range(2):
            C = '0' if ks == 0 else vr(AC + 16 * mt, 16)
            a('v_mfma_f32_32x32x16_bf16 %s, %s, %s, %s' % (vr(AC + 16 * mt, 16), A, vr(s + 4 * mt, 4), C))
        if 40 + i + D < 82:
            ringload(40 + i + D)
            queue.append('r%d' % (40 + i + D))
        if ks == 2 and slot > 0:
            epilogue(slot - 1, queue)
    epilogue(2, None)
    a('s_endpgm')
    a.label('M_FIN1')
    epilogue(1, None)
    a.label('M_END')
    a('s_endpgm')
    return a.lines, 216

def build(extra_launch=''):
    hdr = open('cdna_kernels/%s.s.ref' % NAME).read().split('\n')
    head = [l for l in hdr if l.startswith(';') and '@launch' not in l and 'Override launch' not in l and 'grid=ceil' not in l]
    launches = [
        ('conv_kernel', 460, 256, 18944),
        ('ln1_kernel', 256, 512, 10240),
        ('mlp_kernel', 256, 512, 110592),
        ('red1_kernel', 256, 512, 0),
        ('mlp_kernel', 256, 512, 110592),
        ('red2_kernel', 256, 512, 0),
    ]
    s = '\n'.join(head) + '\n'
    for k, g, b, l in launches:
        s += '; @launch kernel=%s grid=(%d,1,1) block=(%d,1,1) lds=%d\n' % (k, g, b, l)
    s += extra_launch
    s += '.amdgcn_target "amdgcn-amd-amdhsa--gfx950"\n.text\n'
    ks = [('conv_kernel', conv_kernel()), ('ln1_kernel', row_kernel('ln1')), ('mlp_kernel', mlp_kernel()),
          ('red1_kernel', row_kernel('red1')), ('red2_kernel', row_kernel('red2'))]
    if extra_launch:
        ks.append(('nop_kernel', (['    s_endpgm'], 8)))
    for n, (lines, vg_) in ks:
        s += kernel_text(n, lines, vg_)
    s += '.section .rodata,"a"\n'
    for n, (lines, vg_) in ks:
        s += descriptor_text(n, vg_)
    return s

if __name__ == '__main__':
    out = sys.argv[1]
    nextra = int(sys.argv[2]) if len(sys.argv) > 2 else 0
    open(out, 'w').write(build('; @launch kernel=nop_kernel grid=(256,1,1) block=(64,1,1) lds=0\n' * nextra))
```

```python
import sys, os, math, struct
from asmlib import *

NAME = 'interleave_layers__ssm_conv_h3__mixer_channel_mlp__prompt'
STAMP = int(os.environ.get('STAMP', '0'))
FORCE_SLOW = int(os.environ.get('FORCE_SLOW', '0'))
STOP = os.environ.get('STOP', '')
LIMIT = 20000
NOW = int(os.environ.get('NOW', '0'))

EPOCH, HELLO, KVFA, KVFB, YF, ZF, PF = 0, 0x1000, 0x2000, 0x4000, 0x6000, 0xA000, 0x12000
KVA, KVB, YT, XR, YR, ZI, PART = 0x100000, 0x400000, 0x700000, 0xA00000, 0xD00000, 0x1000000, 0x1400000
STAMPS = 0x8000000
ROWS_B = 2048 * 1280
L_U, L_SYNC, L_W2, L_ZE, L_H, L_RS = 49920, 63744, 65536, 106496, 147456, 40960
HSTR = 4160
LF_Z0, LF_CV, LF_U = L_SYNC + 16, L_SYNC + 32, L_SYNC + 48
pQ, pK, pV, pSH, pH, pD, pW1, pB1, pW2, pB2, pOUT, pWS = 4, 6, 8, 10, 12, 14, 16, 18, 20, 22, 24, 26
sX, sW, sI, sM = 28, 29, 30, 31
WS, RA, RB, RC, RD = 32, 36, 40, 44, 48
sG, sTAG, sXCC, sSLOW, sP, sLIM, sCNT = 52, 53, 54, 55, 56, 57, 58
sHI, sINV, sEPS, sC2 = 59, 60, 61, 62
sST = 86
vL, vL16, vL4, vC1, vST = 1, 2, 3, 6, 7

f2h = lambda x: hex(struct.unpack('<I', struct.pack('<f', x))[0])
R4 = lambda d: 's[%d:%d]' % (d, d + 3)


def srd(a, d, p, size, add=None):
    if add is None:
        a('s_mov_b32 s%d, s%d' % (d, p)); a('s_mov_b32 s%d, s%d' % (d + 1, p + 1))
    else:
        a('s_add_u32 s%d, s%d, %s' % (d, p, add)); a('s_addc_u32 s%d, s%d, 0' % (d + 1, p + 1))
    a('s_mov_b32 s%d, %s' % (d + 2, size)); a('s_mov_b32 s%d, 0x20000' % (d + 3))


def stamp(a, idx):
    if not STAMP:
        return
    a('s_memrealtime s[%d:%d]' % (sST, sST + 1))
    if isinstance(idx, tuple):
        a('s_mul_i32 s88, s%d, %d' % (idx[0], idx[1]))
        a('s_add_u32 s88, s88, %d' % idx[2])
        a('s_lshl_b64 exec, 1, s88')
        a('s_waitcnt lgkmcnt(0)')
        a('v_mov_b32 v%d, s%d' % (vST, sST))
        a('s_mov_b64 exec, -1')
    else:
        a('s_waitcnt lgkmcnt(0)')
        a('v_writelane_b32 v%d, s%d, %d' % (vST, sST, idx))


def endk(a):
    if STAMP:
        a('s_waitcnt vmcnt(0)')
        stamp(a, 63)
        a('s_lshl_b32 s63, s2, 3')
        a('s_add_u32 s63, s63, s%d' % sW)
        a('s_lshl_b32 s63, s63, 8')
        a('s_add_u32 s63, s63, %s' % hex(STAMPS))
        a('s_mov_b64 exec, -1')
        a('buffer_store_dword v%d, v%d, %s, s63 offen' % (vST, vL4, R4(WS)))
    a('s_endpgm')


def setexec(a, n):
    if n == 64:
        a('s_mov_b64 exec, -1')
    elif n <= 6:
        a('s_mov_b64 exec, %d' % ((1 << n) - 1))
    elif n <= 32:
        a('s_mov_b32 exec_lo, %s' % ('-1' if n == 32 else hex((1 << n) - 1))); a('s_mov_b32 exec_hi, 0')
    else:
        a('s_mov_b32 exec_lo, -1'); a('s_mov_b32 exec_hi, %s' % hex((1 << (n - 32)) - 1))


def poll(a, soff, nl, vT, pre=False):
    L, C, D = a.newlabel('PL'), a.newlabel('PC'), a.newlabel('PD')
    a('s_mov_b32 s%d, 0' % sCNT)
    setexec(a, nl)
    if pre:
        a('s_branch %s' % C)
    a.label(L)
    a('buffer_load_dword v%d, v%d, %s, s%d offen sc1' % (vT, vL4, R4(WS), soff))
    a.label(C)
    a('s_add_u32 s%d, s%d, 1' % (sCNT, sCNT))
    a('s_waitcnt vmcnt(0)')
    a('v_cmp_ne_u32 vcc, s%d, v%d' % (sTAG, vT))
    a('s_cbranch_vccz %s' % D)
    a('s_cmp_lt_u32 s%d, s%d' % (sCNT, sLIM))
    a('s_cbranch_scc1 %s' % L)
    a('s_mov_b32 s%d, 0' % sLIM)
    a.label(D)
    setexec(a, 64)


def flag_store(a, soff, vT, sc1):
    a('v_mov_b32 v%d, s%d' % (vT, sTAG))
    a('s_mov_b64 exec, 1')
    a('buffer_store_dword v%d, off, %s, s%d%s' % (vT, R4(WS), soff, ' sc1' if sc1 else ''))
    a('s_mov_b64 exec, -1')


def hello_check(a, vT, st):
    L, D = a.newlabel('HL'), a.newlabel('HD')
    a('s_lshl_b32 s%d, s%d, 7' % (st, sX))
    a('s_add_u32 s%d, s%d, %d' % (st, st, HELLO))
    a('s_mov_b32 s%d, 0' % sCNT)
    setexec(a, 32)
    a.label(L)
    a('buffer_load_dword v%d, v%d, %s, s%d offen sc1' % (vT, vL4, R4(WS), st))
    a('s_add_u32 s%d, s%d, 1' % (sCNT, sCNT))
    a('s_waitcnt vmcnt(0)')
    a('v_xor_b32 v%d, s%d, v%d' % (vT, sTAG, vT))
    a('v_cmp_lt_u32 vcc, 15, v%d' % vT)
    a('v_and_b32 v%d, 1, v%d' % (vT + 1, vT))
    a('v_cmp_ne_u32 s[64:65], 0, v%d' % (vT + 1))
    a('s_or_b64 vcc, vcc, s[64:65]')
    a('s_cbranch_vccz %s' % D)
    a('s_cmp_lt_u32 s%d, s%d' % (sCNT, sLIM))
    a('s_cbranch_scc1 %s' % L)
    a('s_mov_b32 s%d, 0' % sLIM)
    a.label(D)
    a('s_lshl_b32 s%d, s%d, 1' % (st, sXCC))
    a('v_cmp_ne_u32 vcc, s%d, v%d' % (st, vT))
    a('s_cmp_lg_u64 vcc, 0')
    a('s_cselect_b32 s%d, 1, %d' % (sSLOW, FORCE_SLOW))
    setexec(a, 64)


def get_tag(a, vE):
    a('v_readfirstlane_b32 s%d, v%d' % (sTAG, vE))
    a('s_mul_i32 s%d, s%d, 0x9E3779B1' % (sTAG, sTAG))
    a('s_add_u32 s%d, s%d, 0x7F4A7C15' % (sTAG, sTAG))


def lds_spin(a, addr, n, vT):
    L, D = a.newlabel('SL'), a.newlabel('SD')
    a('v_mov_b32 v%d, %d' % (vT + 4, addr))
    a('s_mov_b32 s%d, 0' % sCNT)
    a.label(L)
    a('ds_read_b128 %s, v%d' % (vr(vT, 4), vT + 4))
    a('s_add_u32 s%d, s%d, 1' % (sCNT, sCNT))
    a('s_waitcnt lgkmcnt(0)')
    for k in range(1, n):
        a('v_and_b32 v%d, v%d, v%d' % (vT, vT, vT + k))
    a('v_cmp_eq_u32 vcc, 0, v%d' % vT)
    a('s_cbranch_vccz %s' % D)
    a('s_cmp_lt_u32 s%d, %d' % (sCNT, 4 * LIMIT))
    a('s_cbranch_scc1 %s' % L)
    a.label(D)


def lds_flag(a, base, sIdx, vT):
    a('s_lshl_b32 s64, s%d, 2' % sIdx)
    a('s_add_u32 s64, s64, %d' % base)
    a('v_mov_b32 v%d, s64' % vT)
    a('v_mov_b32 v%d, 1' % (vT + 1))
    a('ds_write_b32 v%d, v%d' % (vT, vT + 1))


def wave_sum(v):
    return ['v_add_f32 v%d, v%d, v%d row_shr:1 row_mask:0xf bank_mask:0xf bound_ctrl:0' % (v, v, v),
            'v_add_f32 v%d, v%d, v%d row_shr:2 row_mask:0xf bank_mask:0xf bound_ctrl:0' % (v, v, v),
            'v_add_f32 v%d, v%d, v%d row_shr:4 row_mask:0xf bank_mask:0xf bound_ctrl:0' % (v, v, v),
            'v_add_f32 v%d, v%d, v%d row_shr:8 row_mask:0xf bank_mask:0xf bound_ctrl:0' % (v, v, v),
            'v_add_f32 v%d, v%d, v%d row_bcast:15 row_mask:0xa bank_mask:0xf' % (v, v, v),
            'v_add_f32 v%d, v%d, v%d row_bcast:31 row_mask:0xc bank_mask:0xf' % (v, v, v)]


def layernorm(X, D, T, sm, sr_):
    o = []
    o.append('v_add_f32 v%d, v%d, v%d' % (T, X, X + 1))
    o.append('v_add_f32 v%d, v%d, v%d' % (T + 1, X + 2, X + 3))
    for i in range(4, 10, 2):
        o.append('v_add_f32 v%d, v%d, v%d' % (T, T, X + i))
        o.append('v_add_f32 v%d, v%d, v%d' % (T + 1, T + 1, X + i + 1))
    o.append('v_add_f32 v%d, v%d, v%d' % (T, T, T + 1))
    o += wave_sum(T)
    o.append('v_mul_f32 v%d, s%d, v%d' % (T, sINV, T))
    o.append('v_readlane_b32 s%d, v%d, 63' % (sm, T))
    for i in range(10):
        o.append('v_subrev_f32 v%d, s%d, v%d' % (D + i, sm, X + i))
    o.append('v_mul_f32 v%d, v%d, v%d' % (T, D, D))
    o.append('v_mul_f32 v%d, v%d, v%d' % (T + 1, D + 1, D + 1))
    for i in range(2, 10, 2):
        o.append('v_fmac_f32 v%d, v%d, v%d' % (T, D + i, D + i))
        o.append('v_fmac_f32 v%d, v%d, v%d' % (T + 1, D + i + 1, D + i + 1))
    o.append('v_add_f32 v%d, v%d, v%d' % (T, T, T + 1))
    o += wave_sum(T)
    o.append('v_mov_b32 v%d, s%d' % (T + 1, sEPS))
    o.append('v_fmac_f32 v%d, s%d, v%d' % (T + 1, sINV, T))
    o.append('v_rsq_f32 v%d, v%d' % (T, T + 1))
    o.append('v_readlane_b32 s%d, v%d, 63' % (sr_, T))
    return o


def unpack10(dst, src):
    o = []
    for i in range(5):
        o.append('v_lshlrev_b32 v%d, 16, v%d' % (dst + 2 * i, src[i]))
        o.append('v_and_b32 v%d, s%d, v%d' % (dst + 2 * i + 1, sHI, src[i]))
    return o


def pack10(dst, src):
    return ['v_cvt_pk_bf16_f32 v%d, v%d, v%d' % (dst[i], src + 2 * i, src + 2 * i + 1) for i in range(5)]


class Blk:
    def __init__(self, B, sm, sr_, yraw=None):
        self.XR = [B, B + 1, B + 2, B + 3, B + 4]
        self.YR = yraw or [B + 8, B + 9, B + 10, B + 11, B + 5]
        self.ZP = [B + 12, B + 13, B + 14, B + 15, B + 6]
        self.X, self.Y, self.D, self.T = B + 16, B + 26, B + 36, B + 46
        self.sm, self.sr = sm, sr_


def gate_ln_z(b):
    o = []
    o += unpack10(b.Y, b.YR)
    o += layernorm(b.X, b.D, b.T, b.sm, b.sr)
    for i in range(10):
        o.append('v_mul_f32 v%d, s%d, v%d' % (b.D + i, b.sr, b.D + i))
    for i in range(10):
        o.append('v_fmac_f32 v%d, v%d, v%d' % (b.X + i, b.D + i, b.Y + i))
    o += pack10(b.XR, b.X)
    o += unpack10(b.X, b.XR)
    o += layernorm(b.X, b.D, b.T, b.sm, b.sr)
    for i in range(10):
        o.append('v_mul_f32 v%d, s%d, v%d' % (b.X + i, b.sr, b.D + i))
    o += layernorm(b.X, b.D, b.T, b.sm, b.sr)
    for i in range(10):
        o.append('v_mul_f32 v%d, s%d, v%d' % (b.D + i, b.sr, b.D + i))
    o += pack10(b.ZP, b.D)
    return o


def row_store(a, regs, srdn, soff, sc1):
    c = ' sc1' if sc1 else ''
    a('buffer_store_dwordx4 %s, v%d, %s, s%d offen%s' % (vr(regs[0], 4), vL16, R4(srdn), soff, c))
    a('buffer_store_dword v%d, v%d, %s, s%d offen offset:1024%s' % (regs[4], vL4, R4(srdn), soff, c))


def row_load(a, regs, srdn, soff, sc1=True):
    c = ' sc1' if sc1 else ''
    a('buffer_load_dwordx4 %s, v%d, %s, s%s offen%s' % (vr(regs[0], 4), vL16, R4(srdn), soff, c))
    a('buffer_load_dword v%d, v%d, %s, s%s offen offset:1024%s' % (regs[4], vL4, R4(srdn), soff, c))


def z_addr(a, sj, va, vb, st):
    a('s_and_b32 s%d, s%d, 15' % (st, sj))
    a('s_lshl_b32 s%d, s%d, 8' % (st + 1, sj))
    a('v_and_b32 v%d, 15, v%d' % (va, vL))
    a('v_xor_b32 v%d, s%d, v%d' % (va, st, va))
    a('v_lshlrev_b32 v%d, 4, v%d' % (va, va))
    a('v_lshrrev_b32 v%d, 4, v%d' % (vb, vL))
    a('v_lshl_add_u32 v%d, v%d, 13, v%d' % (va, vb, va))
    a('v_add_u32 v%d, s%d, v%d' % (va, st + 1, va))
    a('v_lshrrev_b32 v%d, 2, v%d' % (vb, vL))
    a('v_xor_b32 v%d, s%d, v%d' % (vb, st, vb))
    a('v_lshlrev_b32 v%d, 2, v%d' % (vb, vb))
    a('v_and_or_b32 v%d, v%d, 3, v%d' % (vb, vL, vb))
    a('v_lshlrev_b32 v%d, 2, v%d' % (vb, vb))
    a('s_add_u32 s%d, s%d, 0x8000' % (st + 1, st + 1))
    a('v_add_u32 v%d, s%d, v%d' % (vb, st + 1, vb))


def z_store(a, b, va, vb, soff, sc1):
    c = ' sc1' if sc1 else ''
    a('buffer_store_dwordx4 %s, v%d, %s, s%d offen%s' % (vr(b.ZP[0], 4), va, R4(WS), soff, c))
    a('buffer_store_dword v%d, v%d, %s, s%d offen%s' % (b.ZP[4], vb, R4(WS), soff, c))


def both(a, fn):
    S, D = a.newlabel('BS'), a.newlabel('BD')
    a('s_cmp_lg_u32 s%d, 0' % sSLOW)
    a('s_cbranch_scc1 %s' % S)
    fn(False)
    a('s_branch %s' % D)
    a.label(S)
    fn(True)
    a.label(D)


def emit(a, lst):
    for l in lst:
        a(l)


def zip2(x, y):
    o = []
    for p, q in zip(x, y):
        o += [p, q]
    return o


vW2O = 8
WB = 96


def w2_setup(a, sWp):
    srd(a, RA, pW2, 1728 * 1280)
    a('s_mul_i32 s70, s%d, 10240' % sWp)
    a('s_add_u32 s70, s70, %d' % L_W2)
    a('s_mul_i32 s71, s%d, %d' % (sM, 128 * 1280))
    a('s_mul_i32 s72, s%d, 320' % sWp)
    a('s_add_u32 s71, s71, s72')
    a('s_movk_i32 s72, 3277')
    a('s_movk_i32 s73, 960')
    for q in range(5):
        a('v_add_u32 v14, %d, v%d' % (64 * q, vL))
        a('v_mul_u32_u24 v15, s72, v14')
        a('v_lshrrev_b32 v15, 16, v15')
        a('v_lshlrev_b32 v14, 4, v14')
        a('v_mad_u32_u24 v14, v15, s73, v14')
        a('v_add_u32 v%d, s71, v14' % (vW2O + q))
    a('v_lshrrev_b32 v14, 5, v%d' % vL)
    a('v_bfe_u32 v15, v%d, 2, 2' % vL)
    a('v_lshl_add_u32 v14, v14, 2, v15')
    a('v_mul_u32_u24 v13, 320, v14')
    a('v_bfe_u32 v14, v%d, 4, 1' % vL)
    a('v_lshl_add_u32 v13, v14, 5, v13')
    a('v_and_b32 v14, 1, v%d' % vL)
    a('v_lshl_add_u32 v13, v14, 4, v13')
    a('v_bfe_u32 v14, v%d, 1, 1' % vL)
    a('v_lshl_add_u32 v13, v14, 3, v13')
    a('v_add_u32 v13, s70, v13')
    a('v_add_u32 v0, s70, v%d' % vL16)


def w2_loads():
    o = []
    if NOW:
        return o
    for ks in range(8):
        for q in range(5):
            g = ['s_mov_b32 s71, %d' % (ks * 20480)] if q == 0 else []
            g.append('buffer_load_dwordx4 %s, v%d, %s, s71 offen' % (vr(WB + (q * 8 + ks) * 4, 4), vW2O + q, R4(RA)))
            o.append(g)
    return o


def w2_xpose(a, waited):
    for ks in range(8):
        h = ks & 1
        if not waited:
            a('s_waitcnt vmcnt(%d)' % (35 - 5 * ks))
        for q in range(5):
            a('ds_write_b128 v0, %s offset:%d' % (vr(WB + (q * 8 + ks) * 4, 4), 5120 * h + 1024 * q))
        for j in range(5):
            for hh in range(2):
                a('ds_read_b64_tr_b16 %s, v13 offset:%d' % (vr(WB + (j * 8 + ks) * 4 + 2 * hh, 2), 5120 * h + 2560 * hh + 64 * j))
        a('s_waitcnt lgkmcnt(4)')
    a('s_waitcnt lgkmcnt(0)')


def w1_setup(a):
    srd(a, RA, pW1, 640 * 3456)
    a('s_mul_i32 s70, s%d, 10240' % sW)
    a('s_add_u32 s70, s70, %d' % L_ZE)
    a('s_lshl_b32 s71, s%d, 8' % sM)
    a('s_lshl_b32 s72, s%d, 6' % sW)
    a('s_add_u32 s71, s71, s72')
    a('v_lshrrev_b32 v14, 2, v%d' % vL)
    a('v_mul_u32_u24 v8, 3456, v14')
    a('v_and_b32 v14, 3, v%d' % vL)
    a('v_lshl_add_u32 v8, v14, 4, v8')
    a('v_add_u32 v8, s71, v8')
    a('v_lshrrev_b32 v14, 5, v%d' % vL)
    a('v_bfe_u32 v15, v%d, 2, 2' % vL)
    a('v_lshl_add_u32 v14, v14, 3, v15')
    a('v_lshlrev_b32 v13, 6, v14')
    a('v_bfe_u32 v14, v%d, 4, 1' % vL)
    a('v_lshl_add_u32 v13, v14, 5, v13')
    a('v_and_b32 v14, 3, v%d' % vL)
    a('v_lshl_add_u32 v13, v14, 3, v13')
    a('v_add_u32 v13, s70, v13')
    a('v_add_u32 v9, s70, v%d' % vL16)


def w1_loads(a):
    for ks in range(40):
        a('s_mov_b32 s71, %d' % (ks * 55296))
        a('buffer_load_dwordx4 %s, v8, %s, s71 offen' % (vr(WB + 4 * ks, 4), R4(RA)))


def kv_phase(a):
    K0, V0, SH, OUT = 16, 30, 40, 48
    KF, TP, AC = 56, 64, 68
    a.label('KV')
    a('buffer_load_dword v4, off, %s, 0 sc1' % R4(WS))
    srd(a, RB, pK, hex(ROWS_B))
    srd(a, RC, pV, hex(ROWS_B))
    srd(a, RD, pSH, 5120)
    a('s_min_u32 s63, s%d, 4' % sW)
    a('s_mul_i32 s64, s%d, 80' % sX)
    a('s_lshl_b32 s65, s63, 4')
    a('s_add_u32 s64, s64, s65')
    a('s_mul_i32 s65, s%d, %d' % (sI, 64 * 1280))
    a('s_lshl_b32 s66, s64, 1')
    a('s_add_u32 s65, s65, s66')
    a('v_and_b32 v14, 15, v%d' % vL)
    a('v_lshrrev_b32 v15, 4, v%d' % vL)
    a('v_mul_u32_u24 v10, 5120, v14')
    a('v_lshl_add_u32 v10, v15, 3, v10')
    a('v_add_u32 v10, s65, v10')
    a('v_subrev_u32 v9, 3840, v10')
    for r in range(3):
        a('buffer_load_dwordx2 %s, v9, %s, 0 offen offset:%d' % (vr(K0 + 2 * r, 2), R4(RB), 1280 * r))
    for r in range(4):
        a('buffer_load_dwordx2 %s, v10, %s, 0 offen offset:%d' % (vr(K0 + 6 + 2 * r, 2), R4(RB), 1280 * r))
    for r in range(4):
        a('buffer_load_dwordx2 %s, v10, %s, 0 offen offset:%d' % (vr(V0 + 2 * r, 2), R4(RC), 1280 * r))
    a('v_lshlrev_b32 v11, 5, v15')
    a('s_lshl_b32 s66, s64, 3')
    a('buffer_load_dwordx4 %s, v11, %s, s66 offen' % (vr(SH, 4), R4(RD)))
    a('buffer_load_dwordx4 %s, v11, %s, s66 offen offset:16' % (vr(SH + 4, 4), R4(RD)))
    a('s_barrier')
    a('v_lshlrev_b32 v5, 14, v15')
    a('v_lshlrev_b32 v14, 3, v14')
    a('v_sub_u32 v5, v5, v14')
    a('v_add_u32 v5, 120, v5')
    a('s_lshl_b32 s67, s64, 12')
    a('s_lshl_b32 s66, s%d, 7' % sI)
    a('s_sub_u32 s67, s67, s66')
    a('s_add_u32 s67, s67, 3968')
    a('s_mul_i32 s68, s%d, 5' % sX)
    a('s_add_u32 s68, s68, s63')
    a('s_lshl_b32 s68, s68, 7')
    a('s_lshl_b32 s66, s%d, 2' % sI)
    a('s_add_u32 s68, s68, s66')
    a('s_waitcnt vmcnt(13)')
    get_tag(a, 4)
    a('s_cmp_lg_u32 s%d, 7' % sW)
    a('s_cbranch_scc1 KV_NOH')
    a('s_lshl_b32 s66, s%d, 1' % sXCC)
    a('s_xor_b32 s66, s66, s%d' % sTAG)
    a('v_mov_b32 v4, s66')
    a('s_lshl_b32 s66, s%d, 7' % sX)
    a('s_lshl_b32 s69, s%d, 2' % sI)
    a('s_add_u32 s66, s66, s69')
    a('s_mov_b64 exec, 1')
    a('s_add_u32 s66, s66, %d' % HELLO)
    a('buffer_store_dword v4, off, %s, s66 sc1' % R4(WS))
    a('s_mov_b64 exec, -1')
    a('s_waitcnt vmcnt(1)')
    a('s_branch KV_GO')
    a.label('KV_NOH')
    a('s_waitcnt vmcnt(0)')
    a.label('KV_GO')
    stamp(a, 1)
    for e in range(4):
        d = e >> 1
        def unp(dst, src):
            if e & 1:
                a('v_and_b32 v%d, s%d, v%d' % (dst, sHI, src))
            else:
                a('v_lshlrev_b32 v%d, 16, v%d' % (dst, src))
        for r in range(7):
            unp(KF + r, K0 + 2 * r + d)
        for j in range(4):
            src = SH + 2 * e + (j >> 1)
            if j & 1:
                a('v_and_b32 v%d, s%d, v%d' % (TP + j, sHI, src))
            else:
                a('v_lshlrev_b32 v%d, 16, v%d' % (TP + j, src))
        for t in range(4):
            a('v_mul_f32 v%d, v%d, v%d' % (AC + t, TP + 3, KF + t))
        for jj in (2, 1, 0):
            for t in range(4):
                a('v_fmac_f32 v%d, v%d, v%d' % (AC + t, TP + jj, KF + 3 + t - jj))
        for t in range(4):
            unp(KF + t, V0 + 2 * t + d)
        for t in range(4):
            a('v_mul_f32 v%d, v%d, v%d' % (AC + t, AC + t, KF + t))
        a('v_cvt_pk_bf16_f32 v%d, v%d, v%d' % (OUT + 2 * e, AC + 3, AC + 2))
        a('v_cvt_pk_bf16_f32 v%d, v%d, v%d' % (OUT + 2 * e + 1, AC + 1, AC))
        a('s_add_u32 s66, s67, %s' % hex(KVA + 4096 * e))
        a('buffer_store_dwordx2 %s, v5, %s, s66 offen' % (vr(OUT + 2 * e, 2), R4(WS)))
    a('s_lshl_b32 s66, s%d, 1' % sXCC)
    a('s_add_u32 s66, s66, s%d' % sTAG)
    a('v_mov_b32 v4, s66')
    a('s_add_u32 s66, s68, %d' % KVFA)
    a('s_waitcnt vmcnt(0)')
    a('s_mov_b64 exec, 1')
    a('buffer_store_dword v4, off, %s, s66' % R4(WS))
    a('s_mov_b64 exec, -1')
    stamp(a, 2)
    a('s_cmp_lt_u32 s%d, 14' % sM)
    a('s_cbranch_scc1 KV_MEM')
    a('v_mov_b32 v4, s%d' % sTAG)
    a('v_mov_b32 v14, %d' % L_SYNC)
    a('ds_write_b32 v14, v4')
    a('s_waitcnt lgkmcnt(0)')
    a('s_barrier')
    a.label('KV_MEM')
    hello_check(a, 14, 66)
    a('s_cmp_eq_u32 s%d, 0' % sSLOW)
    a('s_cbranch_scc1 KV_DONE')
    for e in range(4):
        a('s_add_u32 s66, s67, %s' % hex(KVB + 4096 * e))
        a('buffer_store_dwordx2 %s, v5, %s, s66 offen sc1' % (vr(OUT + 2 * e, 2), R4(WS)))
    a('s_add_u32 s66, s68, %d' % KVFB)
    a('s_waitcnt vmcnt(0)')
    flag_store(a, 66, 4, True)
    a.label('KV_DONE')
    stamp(a, 3)
    a('s_cmp_ge_u32 s%d, 14' % sM)
    a('s_cbranch_scc1 S_MAIN')
    a('s_cmp_eq_u32 s%d, 7' % sW)
    a('s_cbranch_scc1 G2_W7')
    a('s_branch G1_INIT')


class LdsQ:
    def __init__(self, a):
        self.a, self.q = a, []
    def issue(self, key, text):
        self.a(text); self.q.append(key)
    def wait(self, keys):
        last = -1
        for i, k in enumerate(self.q):
            if k in keys:
                last = i
        if last >= 0:
            n = len(self.q) - 1 - last
            self.a('s_waitcnt lgkmcnt(%d)' % n)
            self.q = self.q[last + 1:]


CACC, CB, CA, CE = 16, 32, 64, 80
vCA, vCB = 14, 15
CF0, CF1 = 36, 40


def lds_gate(a):
    lds_spin(a, LF_U, 3, 16)


def conv_part(a, taus, kappas, started, hooks={}):
    mf = []
    for k in kappas:
        for aa in range(max(taus) + 1):
            for t in taus:
                if t >= aa:
                    mf.append((('A', aa, k), ('B', t - aa, k), t))
    order, last = [], {}
    for i, (fa, fb, t) in enumerate(mf):
        for f in (fb, fa):
            if f not in last:
                order.append(f)
            last[f] = i
    free = {'A': list(range(4)), 'B': list(range(8))}
    slot = {}
    q = LdsQ(a)
    nxt = 0
    def reg(f):
        return (CA if f[0] == 'A' else CB) + 4 * slot[f]
    def try_issue(budget):
        nonlocal nxt
        while nxt < len(order) and budget > 0:
            f = order[nxt]
            cost = 2 if f[0] == 'A' else 1
            if not free[f[0]] or len(q.q) + cost > 14:
                break
            slot[f] = free[f[0]].pop(0)
            if f[0] == 'A':
                off = 512 * f[1] + 64 * f[2]
                q.issue(f, 'ds_read_b64 %s, v%d offset:%d' % (vr(reg(f), 2), vCA, off))
                q.issue(f, 'ds_read_b64 %s, v%d offset:%d' % (vr(reg(f) + 2, 2), vCA, off + 8))
            else:
                q.issue(f, 'ds_read_b128 %s, v%d offset:%d' % (vr(reg(f), 4), vCB, 512 * (7 - f[1]) + 64 * f[2]))
            budget -= cost
            nxt += 1
    try_issue(12)
    for i, (fa, fb, t) in enumerate(mf):
        while fa not in slot or fb not in slot:
            n0 = nxt
            try_issue(2)
            if nxt == n0:
                q.wait([q.q[0]])
        q.wait([fa, fb])
        acc = CACC + 4 * (t - taus[0])
        c = vr(acc, 4) if t in started else '0'
        started.add(t)
        a('v_mfma_f32_16x16x32_bf16 %s, %s, %s, %s' % (vr(acc, 4), vr(reg(fa), 4), vr(reg(fb), 4), c))
        for f in (fa, fb):
            if last[f] == i:
                free[f[0]].append(slot[f])
        try_issue(3)
        if i in hooks:
            hooks[i]()


def conv_epilogue(a, taus, stage):
    T = 88
    for n, t in enumerate(taus):
        a('ds_read_b64 %s, v4 offset:%d' % (vr(CE + 2 * n, 2), 512 * (7 - t)))
    a('s_waitcnt lgkmcnt(0)')
    for pr in range(len(taus) // 2):
        Q = CB + 4 * pr
        for h in range(2):
            n = 2 * pr + h
            e0, e1 = CE + 2 * n, CE + 2 * n + 1
            acc = CACC + 4 * n
            a('v_and_b32 v%d, s%d, v%d' % (T + 0, sHI, e1))
            a('v_lshlrev_b32 v%d, 16, v%d' % (T + 1, e1))
            a('v_and_b32 v%d, s%d, v%d' % (T + 2, sHI, e0))
            a('v_lshlrev_b32 v%d, 16, v%d' % (T + 3, e0))
            for r in range(4):
                a('v_fmac_f32 v%d, s74, v%d' % (acc + r, T + r))
            a('v_cvt_pk_bf16_f32 v%d, v%d, v%d' % (Q + 2 * h, acc, acc + 1))
            a('v_cvt_pk_bf16_f32 v%d, v%d, v%d' % (Q + 2 * h + 1, acc + 2, acc + 3))
        a('v_permlane16_swap_b32 v%d, v%d' % (Q, Q + 2))
        a('v_permlane16_swap_b32 v%d, v%d' % (Q + 1, Q + 3))
        a('buffer_store_dwordx4 %s, v5, %s, s75 offen offset:%d sc1' % (vr(Q, 4), R4(WS), 512 * taus[2 * pr]))


def conv_flag(a, stage):
    a('s_add_u32 s66, s76, %d' % (YF + 4096 * stage))
    a('s_waitcnt vmcnt(0)')
    flag_store(a, 66, 88, True)


def conv_phase(a):
    a.label('CONVW')
    a('s_cmp_ge_u32 s%d, 14' % sM)
    a('s_cbranch_scc1 S_WAIT')
    a('s_sub_u32 s69, s%d, 4' % sW)
    a('s_mul_i32 s63, s%d, 3' % sM)
    a('s_lshl_b32 s64, s%d, 1' % sM)
    a('s_add_u32 s64, s64, 12')
    a('s_cmp_lt_u32 s%d, 12' % sM)
    a('s_cselect_b32 s63, s63, s64')
    a('s_cselect_b32 s77, 3, 2')
    a('s_cmp_ge_u32 s69, s77')
    a('s_cbranch_scc1 G2_NOCONV')
    a('s_setprio 3')
    a('buffer_load_dword v4, off, %s, 0 sc1' % R4(WS))
    a('s_lshr_b32 s64, s%d, 4' % sI)
    a('s_mul_i32 s64, s64, 40')
    a('s_add_u32 s63, s63, s64')
    a('s_add_u32 s63, s63, s69')
    a('s_mul_i32 s64, s%d, 80' % sX)
    a('s_add_u32 s64, s64, s63')
    a('s_lshl_b32 s65, s64, 12')
    srd(a, RB, pH, 4096, 's65')
    a('v_subrev_u32 v14, 32, v%d' % vL16)
    a('v_subrev_u32 v15, 16, v%d' % vL16)
    a('v_add_u32 v5, 992, v%d' % vL16)
    HQ, HD = 16, 40
    a('buffer_load_dwordx4 %s, v14, %s, 0 offen' % (vr(HQ, 4), R4(RB)))
    a('buffer_load_dwordx2 %s, v15, %s, 0 offen' % (vr(HD, 2), R4(RB)))
    for j in range(1, 5):
        a('buffer_load_dwordx4 %s, v5, %s, 0 offen offset:%d' % (vr(HQ + 4 * j, 4), R4(RB), 1024 * (j - 1)))
        a('buffer_load_dwordx2 %s, v5, %s, 0 offen offset:%d' % (vr(HD + 2 * j, 2), R4(RB), 1024 * (j - 1) + 16))
    a('s_barrier')
    a('s_and_b32 s66, s64, 0xfffffffe')
    a('s_lshl_b32 s66, s66, 1')
    a('s_load_dword s74, s[%d:%d], s66' % (pD, pD + 1))
    a('s_add_u32 s75, s65, %s' % hex(YT))
    a('s_lshl_b32 s76, s64, 2')
    a('s_lshr_b32 s78, s63, 4')
    a('s_mul_i32 s79, s%d, 5' % sX)
    a('s_add_u32 s78, s78, s79')
    a('s_lshl_b32 s78, s78, 7')
    a('s_add_u32 s78, s78, %d' % KVFA)
    a('s_mov_b32 s79, s65')
    w2_setup(a, 69)
    a('s_mul_i32 s80, s69, 16640')
    a('s_mul_i32 s81, s69, 4608')
    a('s_add_u32 s81, s81, %d' % L_U)
    a('v_add_u32 v5, s80, v%d' % vL16)
    a('v_mov_b32 v56, 0'); a('v_mov_b32 v57, 0'); a('v_mov_b32 v58, 0'); a('v_mov_b32 v59, 0')
    a('v_add_u32 v14, s81, v%d' % vL16)
    setexec(a, 32)
    a('ds_write_b128 v14, v[56:59] offset:4096')
    setexec(a, 64)
    a('s_waitcnt lgkmcnt(0)')
    a('s_bitcmp1_b32 s64, 0')
    a('s_cbranch_scc1 CV_DHI')
    a('s_lshl_b32 s74, s74, 16')
    a.label('CV_DHI')
    a('s_and_b32 s74, s74, 0xffff0000')
    for j in range(5):
        a('s_waitcnt vmcnt(%d)' % (2 * (4 - j)))
        if j == 0:
            get_tag(a, 4)
        if j == 4:
            a('s_mov_b64 exec, 3')
        d = [HQ + 4 * j + e for e in range(4)] + [HD + 2 * j, HD + 2 * j + 1]
        T1, T2, T3 = 52 + 12 * (j & 1), 56 + 12 * (j & 1), 60 + 12 * (j & 1)
        a('ds_write_b128 v5, %s offset:%d' % (vr(d[0], 4), 1024 * j))
        for e in range(4):
            a('v_alignbit_b32 v%d, v%d, v%d, 16' % (T1 + e, d[e + 1], d[e]))
        a('ds_write_b128 v5, %s offset:%d' % (vr(T1, 4), 1024 * j + HSTR))
        for e in range(4):
            a('v_mov_b32 v%d, v%d' % (T2 + e, d[e + 1]))
        a('ds_write_b128 v5, %s offset:%d' % (vr(T2, 4), 1024 * j + 2 * HSTR))
        for e in range(4):
            a('v_alignbit_b32 v%d, v%d, v%d, 16' % (T3 + e, d[e + 2], d[e + 1]))
        a('ds_write_b128 v5, %s offset:%d' % (vr(T3, 4), 1024 * j + 3 * HSTR))
        if j == 2:
            a('s_waitcnt lgkmcnt(8)')
    setexec(a, 64)
    stamp(a, 1)
    a('v_and_b32 v16, 15, v%d' % vL)
    a('v_lshrrev_b32 v17, 4, v%d' % vL)
    a('v_add_u32 v18, 1, v16')
    a('v_and_b32 v19, 3, v18')
    a('v_mul_u32_u24 v%d, %d, v19' % (vCA, HSTR))
    a('v_lshrrev_b32 v18, 2, v18')
    a('v_lshl_add_u32 v%d, v18, 3, v%d' % (vCA, vCA))
    a('v_lshl_add_u32 v%d, v17, 4, v%d' % (vCA, vCA))
    a('v_add_u32 v%d, s80, v%d' % (vCA, vCA))
    a('v_lshlrev_b32 v18, 5, v16')
    a('v_lshlrev_b32 v19, 4, v17')
    a('v_sub_u32 v%d, v19, v18' % vCB)
    a('s_add_u32 s66, s81, 480')
    a('v_add_u32 v%d, s66, v%d' % (vCB, vCB))
    a('v_lshl_add_u32 v19, v17, 3, v18')
    a('s_add_u32 s66, s81, 504')
    a('v_sub_u32 v4, s66, v19')
    a('v_and_b32 v19, 1, v17')
    a('v_lshl_add_u32 v5, v19, 9, v18')
    a('v_lshrrev_b32 v19, 1, v17')
    a('v_lshl_add_u32 v5, v19, 4, v5')
    a('s_waitcnt lgkmcnt(0)')
    hello_check(a, 16, 66)
    stamp(a, 2)
    a('v_and_b32 v16, 31, v%d' % vL)
    a('v_lshlrev_b32 v16, 2, v16')
    a('v_lshrrev_b32 v17, 5, v%d' % vL)
    a('v_lshl_add_u32 v16, v17, 13, v16')
    assert KVFB - KVFA == 8192
    a('s_lshl_b32 s66, s%d, 1' % sXCC)
    a('v_mov_b32 v18, s66')
    a('v_cmp_eq_u32 vcc, 0, v17')
    a('v_cndmask_b32 v18, 0, v18, vcc')
    a('v_add_u32 v18, s%d, v18' % sTAG)
    a('s_mov_b32 s%d, 0' % sCNT)
    a.label('CV_POLL')
    a('buffer_load_dword v19, v16, %s, s78 offen sc1' % R4(WS))
    a('s_add_u32 s%d, s%d, 1' % (sCNT, sCNT))
    a('s_waitcnt vmcnt(0)')
    a('v_cmp_ne_u32 vcc, v18, v19')
    a('s_mov_b32 s66, %s' % hex(KVA))
    if not FORCE_SLOW:
        a('s_cmp_eq_u32 vcc_lo, 0')
        a('s_cbranch_scc1 CV_GOT')
    a('s_mov_b32 s66, %s' % hex(KVB))
    a('s_cmp_eq_u32 vcc_hi, 0')
    a('s_cbranch_scc1 CV_GOT')
    a('s_cmp_lt_u32 s%d, s%d' % (sCNT, sLIM))
    a('s_cbranch_scc1 CV_POLL')
    a('s_mov_b32 s%d, 0' % sLIM)
    a.label('CV_GOT')
    a('s_add_u32 s66, s66, s79')
    a('s_mov_b32 m0, s81')
    for k in range(4):
        a('buffer_load_dwordx4 v%d, %s, s66 offen offset:%d sc1 lds' % (vL16, R4(WS), 1024 * k))
    stamp(a, 3)
    a('s_waitcnt vmcnt(0)')
    lds_flag(a, LF_U, 69, 16)
    a('s_waitcnt lgkmcnt(0)')
    stamp(a, 4)
    conv_part(a, [0, 1], range(8), set())
    conv_epilogue(a, [0, 1], 0)
    stamp(a, 5)
    conv_part(a, [2, 3], range(8), set(), {CF0: lambda: conv_flag(a, 0)})
    conv_epilogue(a, [2, 3], 1)
    stamp(a, 6)
    hk = {CF1: lambda: conv_flag(a, 1)}
    for n, g in enumerate(w2_loads()):
        hk[CF1 + 1 + 3 * n] = (lambda g=g: emit(a, g))
    conv_part(a, [4, 5, 6, 7], range(8), set(), hk)
    conv_epilogue(a, [4, 5, 6, 7], 2)
    stamp(a, 7)
    lds_flag(a, LF_CV, 69, 16)
    conv_flag(a, 2)
    a('s_setprio 0')
    w2_xpose(a, True)
    a('s_branch G2_READY')
    a.label('G2_NOCONV')
    a('s_barrier')
    lds_flag(a, LF_U, 69, 16)
    lds_flag(a, LF_CV, 69, 16)
    w2_setup(a, 69)
    lds_gate(a)
    for g in w2_loads():
        emit(a, g)
    w2_xpose(a, False)
    a('s_barrier')
    a('v_mov_b32 v16, %d' % L_SYNC)
    a('ds_read_b32 v17, v16')
    a('s_waitcnt lgkmcnt(0)')
    a('v_readfirstlane_b32 s%d, v17' % sTAG)
    hello_check(a, 16, 66)
    a('s_branch G2_START')
    a.label('G2_W7')
    a('s_mov_b32 s69, 3')
    w2_setup(a, 69)
    lds_gate(a)
    for g in w2_loads():
        emit(a, g)
    w2_xpose(a, False)
    a.label('G2_READY')
    stamp(a, 8)
    a('s_barrier')
    a('s_branch G2_START')


def tok_scalars(a, sSig, sJ, sRow, sZ, sZF):
    a('s_and_b32 s63, s%d, 3' % sSig)
    a('s_lshl_b32 s64, s63, 9')
    a('s_lshl_b32 s65, s%d, 5' % sG)
    a('s_add_u32 s64, s64, s65')
    a('s_add_u32 s64, s64, s%d' % sJ)
    a('s_mul_i32 s%d, s64, 1280' % sRow)
    a('s_lshl_b32 s64, s%d, 2' % sG)
    a('s_add_u32 s64, s64, s63')
    a('s_mul_i32 s%d, s64, 40960' % sZ)
    a('s_add_u32 s%d, s%d, %s' % (sZ, sZ, hex(ZI)))
    a('s_lshl_b32 s64, s%d, 4' % sG)
    a('s_add_u32 s64, s64, s%d' % sSig)
    a('s_lshl_b32 s64, s64, 7')
    a('s_lshl_b32 s65, s%d, 2' % sJ)
    a('s_add_u32 s64, s64, s65')
    a('s_add_u32 s%d, s64, %d' % (sZF, ZF + 4 * 128))


def pf_off(a, sSig, sD):
    a('s_lshl_b32 s%d, s%d, 3' % (sD, sG))
    a('s_add_u32 s%d, s%d, s%d' % (sD, sD, sSig))
    a('s_lshl_b32 s%d, s%d, 8' % (sD, sD))
    a('s_add_u32 s%d, s%d, %s' % (sD, sD, hex(PF)))


def part_off(a, sSig, sD):
    a('s_mul_i32 s63, s%d, 43' % sSig)
    a('s_lshr_b32 s63, s63, 7')
    a('s_mul_i32 s63, s63, 3')
    a('s_sub_u32 s63, s%d, s63' % sSig)
    a('s_mul_i32 s64, s%d, 3' % sG)
    a('s_add_u32 s63, s63, s64')
    a('s_mul_i32 s%d, s63, %d' % (sD, 14 * 40960))
    a('s_add_u32 s%d, s%d, %s' % (sD, sD, hex(PART)))


PQ, P5, B2F = 96, 156, 176


def load_b2(a):
    srd(a, RD, pB2, 1280)
    a('buffer_load_dwordx4 %s, v%d, %s, 0 offen' % (vr(PQ, 4), vL16, R4(RD)))
    a('buffer_load_dword v%d, v%d, %s, 0 offen offset:1024' % (P5, vL4, R4(RD)))
    a('s_waitcnt vmcnt(0)')
    emit(a, unpack10(B2F, [PQ, PQ + 1, PQ + 2, PQ + 3, P5]))


def full_r_issue(a, b, sSig, sJ, sRow):
    part_off(a, sSig, 66)
    a('s_mul_i32 s63, s%d, 1280' % sJ)
    a('s_add_u32 s66, s66, s63')
    a('s_add_u32 s67, s%d, %s' % (sRow, hex(XR)))
    row_load(a, [PQ + 56, 0, 0, 0, P5 + 14], WS, 67)
    for r in range(14):
        row_load(a, [PQ + 4 * r, 0, 0, 0, P5 + r], WS, 66)
        if r < 13:
            a('s_add_u32 s66, s66, 40960')
    a('s_add_u32 s67, s%d, %s' % (sRow, hex(YR)))
    row_load(a, b.YR, WS, 67)


def full_r_sum(a, b, younger=0):
    a('s_waitcnt vmcnt(%d)' % (30 + younger))
    emit(a, unpack10(b.X, [PQ + 56 + e for e in range(4)] + [P5 + 14]))
    for i in range(10):
        a('v_add_f32 v%d, v%d, v%d' % (b.X + i, b.X + i, B2F + i))
    for r in range(14):
        a('s_waitcnt vmcnt(%d)' % (28 - 2 * r + younger))
        T = b.D if r & 1 else b.Y
        emit(a, unpack10(T, [PQ + 4 * r + e for e in range(4)] + [P5 + r]))
        for i in range(10):
            a('v_add_f32 v%d, v%d, v%d' % (b.X + i, b.X + i, T + i))


def lf_task(a, b, sSig, sJ, sRow, sZ, sZF, va, vb, defer=None):
    F, D = a.newlabel('LF_F'), a.newlabel('LF_D')
    emit(a, pack10(b.XR, b.X))
    a('s_cmp_ge_u32 s%d, 4' % sSig)
    a('s_cbranch_scc1 %s' % F)
    emit(a, unpack10(b.X, b.XR))
    a('s_waitcnt vmcnt(0)')
    emit(a, gate_ln_z(b))
    a('s_add_u32 s67, s%d, %s' % (sRow, hex(XR)))
    def st(sc1):
        z_store(a, b, va, vb, sZ, sc1)
        row_store(a, b.XR, WS, 67, sc1)
        if defer is None:
            a('s_waitcnt vmcnt(0)')
            flag_store(a, sZF, b.T, sc1)
    both(a, st)
    if defer is not None:
        a('s_mov_b32 s%d, s%d' % (defer, sZF))
    a('s_branch %s' % D)
    a.label(F)
    row_store(a, b.XR, RB, sRow, False)
    a('s_cmp_lg_u32 s%d, 4' % sSig)
    a('s_cbranch_scc1 %s' % D)
    both(a, lambda sc1: flag_store(a, sZF, b.T, sc1))
    a.label(D)


def s_phase(a):
    a.label('S_WAIT')
    a('s_barrier')
    a('s_barrier')
    a('v_mov_b32 v14, %d' % L_SYNC)
    a('ds_read_b32 v4, v14')
    a('s_waitcnt lgkmcnt(0)')
    a('v_readfirstlane_b32 s%d, v4' % sTAG)
    hello_check(a, 14, 66)
    a.label('S_MAIN')
    QR = 190
    QR = 192
    srd(a, RA, pQ, hex(ROWS_B))
    srd(a, RB, pOUT, hex(ROWS_B))
    a('s_sub_u32 s70, s%d, 14' % sM)
    a('s_lshl_b32 s71, s%d, 5' % sG)
    a('s_lshl_b32 s72, s70, 4')
    a('s_add_u32 s71, s71, s72')
    a('s_lshl_b32 s72, s%d, 1' % sW)
    a('s_add_u32 s72, s72, s71')
    a('s_mul_i32 s73, s72, 1280')
    a('s_mov_b32 s66, s73')
    for s in range(4):
        for e in range(2):
            R = QR + 8 * (2 * s + e)
            a('buffer_load_dwordx4 %s, v%d, %s, s66 offen offset:%d' % (vr(R, 4), vL16, R4(RA), 1280 * e))
            a('buffer_load_dword v%d, v%d, %s, s66 offen offset:%d' % (R + 4, vL4, R4(RA), 1280 * e + 1024))
        if s < 3:
            a('s_add_u32 s66, s66, %d' % (512 * 1280))
    load_b2(a)
    a('v_lshrrev_b32 v14, 1, v%d' % vL)
    a('v_and_b32 v15, 1, v%d' % vL)
    a('v_lshlrev_b32 v8, 12, v14')
    a('v_lshl_add_u32 v8, v15, 4, v8')
    a('v_mul_u32_u24 v9, 10304, v15')
    a('v_lshl_add_u32 v9, v14, 1, v9')
    a('s_mul_i32 s66, s%d, 160' % sW)
    a('v_add_u32 v9, s66, v9')
    a('s_mul_i32 s66, s%d, 2560' % sW)
    a('s_cmp_ge_u32 s%d, 4' % sW)
    a('s_cselect_b32 s67, 64, 0')
    a('s_add_u32 s66, s66, s67')
    a('v_add_u32 v10, s66, v%d' % vL16)
    a('v_add_u32 v11, s66, v%d' % vL4)
    a('s_mul_i32 s74, s%d, %d' % (sW, 80 * 4096))
    a('s_lshl_b32 s75, s71, 1')
    a('s_add_u32 s74, s74, s75')
    a('s_add_u32 s74, s74, %s' % hex(YT))
    a('s_mul_i32 s75, s%d, 320' % sW)
    a('s_add_u32 s75, s75, %d' % YF)
    a('s_lshl_b32 s76, s70, 4')
    a('s_lshl_b32 s77, s%d, 1' % sW)
    a('s_add_u32 s76, s76, s77')
    z_addr(a, 76, 12, 13, 66)
    a('s_add_u32 s77, s76, 1')
    z_addr(a, 77, 4, 5, 66)
    a('s_lshl_b32 s78, s%d, 2' % sG)
    a('s_mul_i32 s78, s78, 40960')
    a('s_add_u32 s78, s78, %s' % hex(ZI))
    a('s_lshl_b32 s79, s%d, 11' % sG)
    a('s_lshl_b32 s77, s76, 2')
    a('s_add_u32 s79, s79, s77')
    a('s_add_u32 s79, s79, %d' % ZF)
    a('s_mov_b32 s%d, 0' % sP)
    b0, b1 = Blk(16, 80, 81), Blk(64, 82, 83)
    a.label('LN1_LOOP')
    stamp(a, (sP, 4, 4))
    L, D = a.newlabel('YL'), a.newlabel('YD')
    a('s_mov_b32 s%d, 0' % sCNT)
    setexec(a, 20)
    a.label(L)
    a('buffer_load_dwordx4 v[112:115], v%d, %s, s75 offen sc1' % (vL16, R4(WS)))
    a('s_add_u32 s%d, s%d, 1' % (sCNT, sCNT))
    a('s_waitcnt vmcnt(0)')
    for e in range(4):
        a('v_xor_b32 v%d, s%d, v%d' % (112 + e, sTAG, 112 + e))
    a('v_or3_b32 v112, v112, v113, v114')
    a('v_or_b32 v112, v112, v115')
    a('v_cmp_ne_u32 vcc, 0, v112')
    a('s_cbranch_vccz %s' % D)
    a('s_cmp_lt_u32 s%d, s%d' % (sCNT, sLIM))
    a('s_cbranch_scc1 %s' % L)
    a('s_mov_b32 s%d, 0' % sLIM)
    a.label(D)
    setexec(a, 64)
    stamp(a, (sP, 4, 5))
    a('buffer_load_dwordx4 v[112:115], v8, %s, s74 offen sc1' % R4(WS))
    a('s_add_u32 s66, s74, %d' % (32 * 4096))
    a('buffer_load_dwordx4 v[116:119], v8, %s, s66 offen sc1' % R4(WS))
    a('s_add_u32 s66, s74, %d' % (64 * 4096))
    setexec(a, 32)
    a('buffer_load_dwordx4 v[120:123], v8, %s, s66 offen sc1' % R4(WS))
    setexec(a, 64)
    for e, b in enumerate((b0, b1)):
        emit(a, unpack10(b.X, [QR + 8 * e + k for k in range(5)]))
    for k in range(3):
        a('s_waitcnt vmcnt(%d)' % (2 - k))
        if k == 2:
            setexec(a, 32)
        for j in range(8):
            a('ds_write_b16%s v9, v%d offset:%d' % ('_d16_hi' if j & 1 else '', 112 + 4 * k + (j >> 1), 1280 * j + 64 * k))
        a('s_waitcnt lgkmcnt(4)')
    setexec(a, 64)
    for k in range(48):
        if (k & 7) < 5:
            a('v_mov_b32 v%d, v%d' % (QR + k, QR + 16 + k))
    a('s_waitcnt lgkmcnt(0)')
    a('s_barrier')
    for e, b in enumerate((b0, b1)):
        a('ds_read_b128 %s, v10 offset:%d' % (vr(b.YR[0], 4), 1280 * e))
        a('ds_read_b32 v%d, v11 offset:%d' % (b.YR[4], 1280 * e + 1024))
    a('v_xor_b32 v9, 0x8000, v9')
    a('v_xor_b32 v10, 0x8000, v10')
    a('v_xor_b32 v11, 0x8000, v11')
    a('s_waitcnt lgkmcnt(0)')
    stamp(a, (sP, 4, 6))
    emit(a, zip2(gate_ln_z(b0), gate_ln_z(b1)))
    a('s_add_u32 s66, s73, %s' % hex(XR))
    a('s_add_u32 s67, s73, %s' % hex(XR + 1280))
    a('s_add_u32 s68, s73, %s' % hex(YR))
    a('s_add_u32 s69, s73, %s' % hex(YR + 1280))
    def st(sc1):
        z_store(a, b0, 12, 13, 78, sc1)
        z_store(a, b1, 4, 5, 78, sc1)
        row_store(a, b0.XR, WS, 66, sc1)
        row_store(a, b1.XR, WS, 67, sc1)
        row_store(a, b0.YR, WS, 68, sc1)
        row_store(a, b1.YR, WS, 69, sc1)
        a('v_mov_b32 v112, s%d' % sTAG)
        a('v_mov_b32 v113, s%d' % sTAG)
        a('s_waitcnt vmcnt(0)')
        a('s_mov_b64 exec, 1')
        a('buffer_store_dwordx2 v[112:113], off, %s, s79%s' % (R4(WS), ' sc1' if sc1 else ''))
        a('s_mov_b64 exec, -1')
    both(a, st)
    stamp(a, (sP, 4, 7))
    a('s_add_u32 s73, s73, %d' % (512 * 1280))
    a('s_add_u32 s74, s74, 1024')
    a('s_add_u32 s78, s78, 40960')
    a('s_add_u32 s79, s79, 128')
    a('s_cmp_lt_u32 s%d, 2' % sP)
    a('s_cselect_b32 s66, 4096, 0')
    a('s_add_u32 s75, s75, s66')
    a('s_add_u32 s%d, s%d, 1' % (sP, sP))
    a('s_cmp_lt_u32 s%d, 4' % sP)
    a('s_cbranch_scc1 LN1_LOOP')
    a('s_cmp_lg_u32 s2, 112')
    a('s_cbranch_scc1 S_NOEP')
    a('s_cmp_lg_u32 s%d, 0' % sW)
    a('s_cbranch_scc1 S_NOEP')
    a('s_mov_b32 s66, 0')
    flag_store(a, 66, 112, True)
    a.label('S_NOEP')
    if STOP == 'front':
        endk(a)
        return
    a('s_lshl_b32 s70, s70, 3')
    a('s_add_u32 s70, s70, s%d' % sW)
    z_addr(a, 70, 12, 13, 66)
    a('s_mov_b32 s%d, 0' % sP)
    a.label('S_TASK')
    tok_scalars(a, sP, 70, 71, 72, 73)
    pf_off(a, sP, 74)
    poll(a, 74, 56, 14)
    stamp(a, (sP, 4, 20))
    full_r_issue(a, b0, sP, 70, 71)
    full_r_sum(a, b0)
    stamp(a, (sP, 4, 21))
    lf_task(a, b0, sP, 70, 71, 72, 73, 12, 13)
    stamp(a, (sP, 4, 22))
    a('s_add_u32 s%d, s%d, 1' % (sP, sP))
    a('s_cmp_lt_u32 s%d, 8' % sP)
    a('s_cbranch_scc1 S_TASK')
    endk(a)


ZA, GT, RQ, R5, ZR, ACC, BIAS = 8, 16, 28, 44, 48, 64, 80


def stage_z(a, sSig1):
    a('s_and_b32 s63, s%d, 3' % sSig1)
    a('s_lshl_b32 s64, s%d, 2' % sG)
    a('s_add_u32 s64, s64, s63')
    a('s_mul_i32 s64, s64, 40960')
    a('s_mul_i32 s65, s%d, 10240' % sW)
    a('s_add_u32 s64, s64, s65')
    a('s_add_u32 s64, s64, %s' % hex(ZI))
    a('s_bitcmp1_b32 s%d, 0' % sSig1)
    a('s_cselect_b32 s63, 0, %d' % L_ZE)
    a('s_add_u32 s65, s65, s63')
    for g in range(3):
        a('s_add_u32 m0, s65, %d' % (4096 * g))
        for k in range(4 if g < 2 else 2):
            a('buffer_load_dwordx4 v%d, %s, s64 offen offset:%d sc1 lds' % (vL16, R4(WS), 1024 * k))
        if g < 2:
            a('s_add_u32 s64, s64, 4096')


def zf_off(a, sSig1, sD):
    a('s_lshl_b32 s%d, s%d, 4' % (sD, sG))
    a('s_add_u32 s%d, s%d, s%d' % (sD, sD, sSig1))
    a('s_lshl_b32 s%d, s%d, 7' % (sD, sD))
    a('s_add_u32 s%d, s%d, %d' % (sD, sD, ZF))


def quarter_setup(a):
    a('s_cmp_eq_u32 s%d, 3' % sW)
    a('s_cselect_b32 s%d, s%d, s%d' % (RC, pB2, pWS))
    a('s_cselect_b32 s%d, s%d, s%d' % (RC + 1, pB2 + 1, pWS + 1))
    a('s_cselect_b32 s%d, 1280, s%d' % (RC + 2, WS + 2))
    a('s_mov_b32 s%d, 0x20000' % (RC + 3))
    a('s_mul_i32 s63, s%d, 2560' % sW)
    a('s_add_u32 s63, s63, %d' % L_RS)
    a('v_add_u32 v4, s63, v%d' % vL16)
    a('v_lshlrev_b32 v5, 3, v%d' % vL)
    a('v_add_u32 v5, s63, v5')
    a('s_add_u32 s76, s%d, 16' % sM)


def quarter_issue(a, sSig):
    part_off(a, sSig, 66)
    a('s_mul_i32 s63, s76, 1280')
    a('s_add_u32 s66, s66, s63')
    a('s_mul_i32 s63, s%d, 40960' % sW)
    a('s_add_u32 s66, s66, s63')
    for k in range(3):
        row_load(a, [RQ + 4 * k, 0, 0, 0, R5 + k], WS, 66)
        a('s_add_u32 s66, s66, 163840')
    a('s_and_b32 s63, s%d, 3' % sSig)
    a('s_lshl_b32 s63, s63, 9')
    a('s_lshl_b32 s64, s%d, 5' % sG)
    a('s_add_u32 s63, s63, s64')
    a('s_add_u32 s63, s63, s76')
    a('s_mul_i32 s63, s63, 1280')
    a('s_add_u32 s63, s63, %s' % hex(XR))
    a('s_cmp_eq_u32 s%d, 2' % sW)
    a('s_cselect_b32 s66, s63, s66')
    a('s_cmp_eq_u32 s%d, 3' % sW)
    a('s_cselect_b32 s66, 0, s66')
    row_load(a, [RQ + 12, 0, 0, 0, R5 + 3], RC, 66)


def quarter_sum(a, sSig, younger=0):
    S, T = GT, ZR
    a('s_waitcnt vmcnt(%d)' % (6 + younger))
    emit(a, unpack10(S, [RQ + e for e in range(4)] + [R5]))
    for k in range(1, 4):
        a('s_waitcnt vmcnt(%d)' % (6 - 2 * k + younger))
        emit(a, unpack10(T, [RQ + 4 * k + e for e in range(4)] + [R5 + k]))
        for i in range(10):
            a('v_add_f32 v%d, v%d, v%d' % (S + i, S + i, T + i))
    A, D = a.newlabel('QA'), a.newlabel('QD')
    a('s_bitcmp1_b32 s%d, 0' % sSig)
    a('s_cbranch_scc1 %s' % A)
    for off, lab in ((0, D), (10240, None)):
        a('ds_write_b128 v4, %s offset:%d' % (vr(S, 4), off))
        a('ds_write_b128 v4, %s offset:%d' % (vr(S + 4, 4), off + 1024))
        a('ds_write_b64 v5, %s offset:%d' % (vr(S + 8, 2), off + 2048))
        if lab:
            a('s_branch %s' % D)
            a.label(A)
    a.label(D)


def g1_phase(a):
    a.label('G1_INIT')
    if STOP == 'front':
        a('v_mov_b32 v16, %d' % L_SYNC)
        a('v_mov_b32 v17, s%d' % sTAG)
        a('ds_write_b32 v16, v17')
        a('s_waitcnt lgkmcnt(0)')
        a('s_barrier')
        endk(a)
        return
    a('s_cmp_eq_u32 s%d, 13' % sM)
    a('s_cselect_b32 s66, 2, 4')
    a('s_cmp_ge_u32 s%d, s66' % sW)
    a('s_cbranch_scc1 G1X_INIT')
    srd(a, RB, pB1, 3456)
    a('v_lshrrev_b32 v14, 5, v%d' % vL)
    a('v_lshlrev_b32 v14, 3, v14')
    a('s_lshl_b32 s66, s%d, 8' % sM)
    a('s_lshl_b32 s67, s%d, 6' % sW)
    a('s_add_u32 s66, s66, s67')
    for q in range(4):
        a('buffer_load_dwordx2 %s, v14, %s, s66 offen offset:%d' % (vr(ZR + 2 * q, 2), R4(RB), 16 * q))
    w1_setup(a)
    lds_gate(a)
    w1_loads(a)
    for ks in range(40):
        a('s_waitcnt vmcnt(%d)' % (39 - ks))
        a('ds_write_b128 v9, %s offset:%d' % (vr(WB + 4 * ks, 4), 1024 * (ks & 3)))
        for hh in range(2):
            a('ds_read_b64_tr_b16 %s, v13 offset:%d' % (vr(WB + 4 * ks + 2 * hh, 2), 1024 * (ks & 3) + 256 * hh))
        if ks & 3 == 3:
            a('s_waitcnt lgkmcnt(3)')
    for i in range(8):
        a('v_lshlrev_b32 v%d, 16, v%d' % (BIAS + 2 * i, ZR + i))
        a('v_and_b32 v%d, s%d, v%d' % (BIAS + 2 * i + 1, sHI, ZR + i))
    a('v_and_b32 v14, 31, v%d' % vL)
    a('v_lshrrev_b32 v15, 5, v%d' % vL)
    a('v_and_b32 v16, 15, v14')
    a('v_xor_b32 v15, v15, v16')
    a('v_lshlrev_b32 v15, 4, v15')
    a('v_lshl_add_u32 v15, v14, 8, v15')
    a('v_add_u32 v15, %d, v15' % L_ZE)
    a('s_waitcnt lgkmcnt(0)')
    a('v_mov_b32 v16, v15')
    for k in range(8):
        a('v_xor_b32 v%d, %d, v16' % (ZA + k, 32 * k))
    c1 = -2.0 * math.sqrt(2.0 / math.pi) * math.log2(math.e)
    a('v_mov_b32 v%d, %s' % (vC1, f2h(c1)))
    a('s_lshl_b32 s66, s%d, 11' % sW)
    a('s_add_u32 s66, s66, %d' % L_H)
    a('v_add_u32 v0, s66, v%d' % vL16)
    stamp(a, 4)
    a.label('G1_COMMON')
    quarter_setup(a)
    a('s_mov_b32 s%d, 0' % sP)
    zf_off(a, sP, 66)
    poll(a, 66, 32, GT)
    stamp(a, 5)
    stage_z(a, sP)
    a('v_mov_b32 v%d, %d' % (GT + 2, L_SYNC))
    a('v_mov_b32 v%d, s%d' % (GT + 3, sTAG))
    a('ds_write_b32 v%d, v%d' % (GT + 2, GT + 3))
    a('s_waitcnt vmcnt(0)')
    lds_flag(a, LF_Z0, sW, GT)
    a('s_cmp_eq_u32 s85, 1')
    a('s_cbranch_scc1 G1X_LOOP')
    lds_spin(a, LF_Z0, 4, GT)
    a('s_setprio 2')
    a.label('G1_LOOP')
    stamp(a, (sP, 4, 8))
    a('s_sub_u32 s77, s%d, 2' % sP)
    pf_off(a, 77, 74)
    a('s_cmp_lt_u32 s%d, 2' % sP)
    a('s_cbranch_scc1 G1_NOPF')
    setexec(a, 56)
    a('buffer_load_dword v%d, v%d, %s, s74 offen sc1' % (GT, vL4, R4(WS)))
    setexec(a, 64)
    a.label('G1_NOPF')
    a('s_cmp_gt_u32 s%d, 7' % sP)
    a('s_cbranch_scc1 G1_NOM1')
    def zread(ks):
        a('ds_read_b128 %s, v%d offset:%d' % (vr(ZR + 4 * (ks % 4), 4), ZA + (ks & 7), (ks >> 3) * 8192))
    for ks in range(3):
        zread(ks)
    for ks in range(40):
        a('s_waitcnt lgkmcnt(%d)' % min(2, 39 - ks))
        c = vr(BIAS, 16) if ks == 0 else vr(ACC, 16)
        a('v_mfma_f32_32x32x16_bf16 %s, %s, %s, %s' % (vr(ACC, 16), vr(WB + 4 * ks, 4), vr(ZR + 4 * (ks % 4), 4), c))
        if ks + 3 < 40:
            zread(ks + 3)
        if 32 <= ks + 3 < 40:
            k = (ks + 3) & 7
            a('v_xor_b32 v%d, %s, v%d' % (ZA + k, hex(L_ZE), ZA + k))
    a.label('G1_NOM1')
    stamp(a, (sP, 4, 9))
    a('s_cmp_lt_u32 s%d, 2' % sP)
    a('s_cbranch_scc1 G1_NOR1')
    poll(a, 74, 56, GT, pre=True)
    quarter_issue(a, 77)
    a.label('G1_NOR1')
    a('s_cmp_gt_u32 s%d, 7' % sP)
    a('s_cbranch_scc1 G1_NOGELU')
    T = ZR
    for t in range(2):
        X = ACC + 8 * t
        for i in range(8):
            a('v_mul_f32 v%d, v%d, v%d' % (T + i, X + i, X + i))
        for i in range(8):
            a('v_fma_f32 v%d, v%d, s%d, v%d' % (T + i, T + i, sC2, vC1))
        for i in range(8):
            a('v_mul_f32 v%d, v%d, v%d' % (T + i, T + i, X + i))
        for i in range(8):
            a('v_exp_f32 v%d, v%d' % (T + i, T + i))
        for i in range(8):
            a('v_add_f32 v%d, 1.0, v%d' % (T + i, T + i))
        for i in range(8):
            a('v_rcp_f32 v%d, v%d' % (T + i, T + i))
        for i in range(8):
            a('v_mul_f32 v%d, v%d, v%d' % (T + i, T + i, X + i))
        o = T + 8 + 4 * t
        for i in range(4):
            a('v_cvt_pk_bf16_f32 v%d, v%d, v%d' % (o + i, T + 2 * i, T + 2 * i + 1))
        a('ds_write_b128 v0, %s offset:%d' % (vr(o, 4), 1024 * t))
    a('v_xor_b32 v0, 0x2000, v0')
    a.label('G1_NOGELU')
    stamp(a, (sP, 4, 10))
    a('s_cmp_lt_u32 s%d, 2' % sP)
    a('s_cbranch_scc1 G1_NOR2')
    a('s_waitcnt lgkmcnt(0)')
    quarter_sum(a, 77)
    a.label('G1_NOR2')
    g1_tail(a, 'G1')
    a.label('G1X_INIT')
    srd(a, RB, pOUT, hex(ROWS_B))
    load_b2(a)
    a('s_add_u32 s70, s%d, 28' % sW)
    z_addr(a, 70, 12, 13, 66)
    a('s_sub_u32 s66, s%d, 2' % sW)
    a('s_lshl_b32 s66, s66, 13')
    a('s_add_u32 s66, s66, %d' % (L_H + 4096))
    a('v_add_u32 v14, s66, v%d' % vL16)
    for e in range(4):
        a('v_mov_b32 v%d, 0' % (16 + e))
    for k in range(4):
        a('ds_write_b128 v14, v[16:19] offset:%d' % (1024 * k))
    a('s_mov_b32 s85, 1')
    a('s_branch G1_COMMON')
    a.label('G1X_LOOP')
    bx = Blk(192, 80, 81)
    a('s_cmp_lt_u32 s%d, 3' % sP)
    a('s_cbranch_scc1 G1X_NOL')
    a('s_sub_u32 s78, s%d, 3' % sP)
    tok_scalars(a, 78, 70, 71, 72, 73)
    lf_task(a, bx, 78, 70, 71, 72, 73, 12, 13)
    a.label('G1X_NOL')
    a('s_cmp_eq_u32 s%d, 10' % sP)
    a('s_cbranch_scc1 G1X_END')
    a('s_cmp_lt_u32 s%d, 2' % sP)
    a('s_cbranch_scc1 G1X_NOR')
    a('s_sub_u32 s77, s%d, 2' % sP)
    pf_off(a, 77, 74)
    poll(a, 74, 56, GT)
    quarter_issue(a, 77)
    tok_scalars(a, 77, 70, 71, 72, 73)
    full_r_issue(a, bx, 77, 70, 71)
    quarter_sum(a, 77, younger=32)
    full_r_sum(a, bx)
    a.label('G1X_NOR')
    g1_tail(a, 'G1X')
    a.label('G1X_END')
    endk(a)


def g1_tail(a, P):
    a('s_cmp_lg_u32 s%d, 0' % sP)
    a('s_cbranch_scc1 %s_NOCV' % P)
    lds_spin(a, LF_CV, 3, GT)
    a.label('%s_NOCV' % P)
    a('s_cmp_gt_u32 s%d, 7' % sP)
    a('s_cbranch_scc1 %s_NOZ' % P)
    a('s_add_u32 s75, s%d, 1' % sP)
    zf_off(a, 75, 66)
    poll(a, 66, 32, GT)
    a('s_cmp_eq_u32 s%d, 7' % sP)
    a('s_cbranch_scc1 %s_NOZ' % P)
    stage_z(a, 75)
    a.label('%s_NOZ' % P)
    a('s_waitcnt vmcnt(0) lgkmcnt(0)')
    stamp(a, (sP, 4, 11))
    a('s_barrier')
    a('s_add_u32 s%d, s%d, 1' % (sP, sP))
    if P == 'G1':
        a('s_cmp_lt_u32 s%d, 10' % sP)
        a('s_cbranch_scc1 G1_LOOP')
        endk(a)
    else:
        a('s_branch G1X_LOOP')


def g2_phase(a):
    a.label('G2_START')
    if STOP == 'front':
        endk(a)
        return
    HF, AC, EP = 32, [64, 80], [16, 24]
    srd(a, RB, pOUT, hex(ROWS_B))
    a('s_sub_u32 s69, s%d, 4' % sW)
    a('s_add_u32 s70, s%d, 16' % sM)
    z_addr(a, 70, 14, 15, 66)
    a('v_add_u32 v0, %d, v%d' % (L_H, vL16))
    a('v_and_b32 v4, 15, v%d' % vL)
    a('v_mul_u32_u24 v4, 1280, v4')
    a('v_bfe_u32 v5, v%d, 4, 1' % vL)
    a('v_lshl_add_u32 v4, v5, 5, v4')
    a('v_lshrrev_b32 v5, 5, v%d' % vL)
    a('v_lshl_add_u32 v4, v5, 4, v4')
    a('v_add_u32 v5, 20480, v4')
    a('v_lshlrev_b32 v13, 3, v%d' % vL)
    a('v_add_u32 v13, %d, v13' % L_RS)
    a('v_add_u32 v6, %d, v%d' % (L_RS, vL16))
    a('s_mov_b32 s%d, 1' % sP)
    a('s_mov_b32 s84, 0')
    b = Blk(16, 80, 81, yraw=[8, 9, 10, 11, 12])
    a.label('G2_LOOP')
    stamp(a, (sP, 4, 8))
    a('s_cmp_lt_u32 s%d, 3' % sP)
    a('s_cbranch_scc1 G2_NOL')
    a('s_sub_u32 s78, s%d, 3' % sP)
    a('s_and_b32 s63, s78, 3')
    a('s_cmp_lg_u32 s63, s69')
    a('s_cbranch_scc1 G2_NOL')
    A, D = a.newlabel('RA'), a.newlabel('RD')
    a('s_bitcmp1_b32 s78, 0')
    a('s_cbranch_scc1 %s' % A)
    for off, lab in ((0, D), (10240, None)):
        for w in range(4):
            R = b.X if w == 0 else 64 + 10 * (w - 1)
            a('ds_read_b128 %s, v6 offset:%d' % (vr(R, 4), off + 2560 * w))
            a('ds_read_b128 %s, v6 offset:%d' % (vr(R + 4, 4), off + 2560 * w + 1024))
            a('ds_read_b64 %s, v13 offset:%d' % (vr(R + 8, 2), off + 2560 * w + 2048))
        if lab:
            a('s_branch %s' % D)
            a.label(A)
    a.label(D)
    tok_scalars(a, 78, 70, 71, 72, 73)
    for w in range(1, 4):
        a('s_waitcnt lgkmcnt(%d)' % (9 - 3 * w))
        R = 64 + 10 * (w - 1)
        for i in range(10):
            a('v_add_f32 v%d, v%d, v%d' % (b.X + i, b.X + i, R + i))
    lf_task(a, b, 78, 70, 71, 72, 73, 14, 15, defer=84)
    a.label('G2_NOL')
    stamp(a, (sP, 4, 9))
    a('s_cmp_gt_u32 s%d, 8' % sP)
    a('s_cbranch_scc1 G2_NOM2')
    for ks in range(8):
        a('ds_read_b128 %s, v0 offset:%d' % (vr(HF + 4 * ks, 4), 1024 * ks))
    a('v_xor_b32 v0, 0x2000, v0')
    a('s_sub_u32 s77, s%d, 1' % sP)
    part_off(a, 77, 75)
    a('s_mul_i32 s63, s%d, 40960' % sM)
    a('s_add_u32 s75, s75, s63')
    a('s_mul_i32 s63, s69, 320')
    a('s_add_u32 s75, s75, s63')
    pf_off(a, 77, 74)
    a('s_lshl_b32 s63, s%d, 4' % sM)
    a('s_add_u32 s74, s74, s63')
    a('s_lshl_b32 s63, s69, 2')
    a('s_add_u32 s74, s74, s63')
    def m2(sc1):
        c = ' sc1' if sc1 else ''
        def epi(j):
            X, E = AC[j & 1], EP[j & 1]
            o = ['v_cvt_pk_bf16_f32 v%d, v%d, v%d' % (E + i, X + 2 * i, X + 2 * i + 1) for i in range(8)]
            o += ['v_permlane16_swap_b32 v%d, v%d' % (E + i, E + 4 + i) for i in range(4)]
            o += ['buffer_store_dwordx4 %s, v4, %s, s75 offen offset:%d%s' % (vr(E, 4), R4(WS), 64 * j, c),
                  'buffer_store_dwordx4 %s, v5, %s, s75 offen offset:%d%s' % (vr(E + 4, 4), R4(WS), 64 * j, c)]
            return o
        pend = []
        for j in range(5):
            for ks in range(8):
                if j == 0:
                    a('s_waitcnt lgkmcnt(%d)' % (7 - ks))
                cc = '0' if ks == 0 else vr(AC[j & 1], 16)
                a('v_mfma_f32_32x32x16_bf16 %s, %s, %s, %s' % (vr(AC[j & 1], 16), vr(WB + (j * 8 + ks) * 4, 4), vr(HF + 4 * ks, 4), cc))
                if j == 1 and ks == 0:
                    N = a.newlabel('NZF')
                    a('s_cmp_eq_u32 s84, 0')
                    a('s_cbranch_scc1 %s' % N)
                    a('s_waitcnt vmcnt(0)')
                    flag_store(a, 84, EP[1], sc1)
                    a('s_mov_b32 s84, 0')
                    a.label(N)
                if ks >= 1 and pend:
                    n = 2 if ks < 7 else len(pend)
                    emit(a, pend[:n]); pend = pend[n:]
            pend = epi(j)
        emit(a, pend)
        a('s_waitcnt vmcnt(0)')
        flag_store(a, 74, EP[1], sc1)
    both(a, m2)
    a.label('G2_NOM2')
    stamp(a, (sP, 4, 10))
    a('s_sub_u32 s63, s%d, 2' % sP)
    a('s_cmp_lg_u32 s63, s69')
    a('s_cbranch_scc1 G2_NOY')
    a('s_mov_b32 s78, s63')
    tok_scalars(a, 78, 70, 71, 72, 73)
    a('s_add_u32 s67, s71, %s' % hex(YR))
    row_load(a, b.YR, WS, 67)
    a.label('G2_NOY')
    a('s_cmp_eq_u32 s%d, 10' % sP)
    a('s_cbranch_scc1 G2_END')
    a('s_barrier')
    a('s_add_u32 s%d, s%d, 1' % (sP, sP))
    a('s_branch G2_LOOP')
    a.label('G2_END')
    endk(a)


def kernel():
    a = Asm()
    c1 = -2.0 * math.sqrt(2.0 / math.pi) * math.log2(math.e)
    a('s_cmp_ge_u32 s2, 256')
    a('s_cbranch_scc1 END')
    a('s_load_dwordx2 s[26:27], s[0:1], 104')
    a('s_load_dwordx4 s[4:7], s[0:1], 0')
    a('s_load_dwordx4 s[8:11], s[0:1], 16')
    a('s_load_dwordx4 s[12:15], s[0:1], 32')
    a('s_load_dwordx4 s[16:19], s[0:1], 56')
    a('s_load_dwordx4 s[20:23], s[0:1], 72')
    a('s_load_dwordx2 s[24:25], s[0:1], 88')
    a('v_lshrrev_b32 v1, 6, v0')
    a('v_readfirstlane_b32 s%d, v1' % sW)
    a('v_and_b32 v%d, 63, v0' % vL)
    a('v_lshlrev_b32 v%d, 4, v%d' % (vL16, vL))
    a('v_lshlrev_b32 v%d, 2, v%d' % (vL4, vL))
    a('s_and_b32 s%d, s2, 7' % sX)
    a('s_lshr_b32 s%d, s2, 3' % sI)
    a('s_and_b32 s%d, s%d, 15' % (sM, sI))
    a('s_lshr_b32 s%d, s%d, 4' % (sG, sI))
    a('s_lshl_b32 s63, s%d, 1' % sX)
    a('s_add_u32 s%d, s%d, s63' % (sG, sG))
    a('s_getreg_b32 s%d, hwreg(HW_REG_XCC_ID, 0, 3)' % sXCC)
    a('s_mov_b32 s%d, %d' % (sLIM, LIMIT))
    a('s_mov_b32 s%d, 0xffff0000' % sHI)
    a('s_mov_b32 s%d, 0x3acccccd' % sINV)
    a('s_mov_b32 s%d, 0x3727c5ac' % sEPS)
    a('s_mov_b32 s%d, %s' % (sC2, f2h(c1 * 0.044715)))
    a('s_mov_b32 s85, 0')
    a('s_mov_b32 s%d, 0' % sSLOW)
    if STAMP:
        a('v_mov_b32 v%d, 0' % vST)
    for r in (8, 12, 13):
        a('v_mov_b32 v%d, 0' % r)
    a('v_add_u32 v4, %d, v%d' % (L_SYNC, vL4))
    a('ds_write_b32 v4, v8')
    a('s_waitcnt lgkmcnt(0)')
    srd(a, WS, pWS, '0x10000000')
    for r in (RA, RB, RC, RD):
        a('s_mov_b64 s[%d:%d], s[%d:%d]' % (r, r + 1, WS, WS + 1))
        a('s_mov_b64 s[%d:%d], s[%d:%d]' % (r + 2, r + 3, WS + 2, WS + 3))
    stamp(a, 0)
    a('s_sub_u32 s63, s%d, 4' % sW)
    a('s_cmp_lt_u32 s63, 3')
    a('s_cbranch_scc1 CONVW')
    kv_phase(a)
    conv_phase(a)
    s_phase(a)
    g1_phase(a)
    g2_phase(a)
    a.label('END')
    a('s_endpgm')
    return a.lines


def build():
    ref = open('cdna_kernels/%s.s.ref' % NAME).read().split('\n')
    head = [l for l in ref if l.startswith(';') and '@launch' not in l and 'Override launch' not in l and 'grid=ceil' not in l]
    s = '\n'.join(head) + '\n'
    s += '; @launch grid=(256,1,1) block=(512,1,1) lds=163840\n'
    s += '.amdgcn_target "amdgcn-amd-amdhsa--gfx950"\n.text\n'
    s += kernel_text(NAME + '_kernel', kernel(), 256)
    s += '.section .rodata,"a"\n'
    s += descriptor_text(NAME + '_kernel', 256, 102)
    return s


if __name__ == '__main__':
    for n in range(320):
        assert (n * 3277) >> 16 == n // 20
    for n in range(9):
        assert (n * 43) >> 7 == n // 3
    open(sys.argv[1], 'w').write(build())
```

```python
import sys, os, math, struct
from asmlib import *

NAME = 'interleave_layers__ssm_conv_h3__mixer_channel_mlp__prompt'
STAMP = int(os.environ.get('STAMP', '0'))
FORCE_SLOW = int(os.environ.get('FORCE_SLOW', '0'))
STOP = os.environ.get('STOP', '')
LIMIT = 20000
DBG = int(os.environ.get('DBG', '0'))
NOW = int(os.environ.get('NOW', '0'))

EPOCH, HELLO, KVFA, KVFB, YF, ZF, PF = 0, 0x1000, 0x2000, 0x4000, 0x6000, 0xA000, 0x12000
KVA, KVB, YT, XR, YR, ZI, PART = 0x100000, 0x400000, 0x700000, 0xA00000, 0xD00000, 0x1000000, 0x1400000
STAMPS = 0x8000000
ROWS_B = 2048 * 1280
L_U, L_SYNC, L_W2, L_ZE, L_H, L_RS = 49920, 63744, 65536, 106496, 147456, 40960
HSTR = 4160
LF_Z0, LF_CV, LF_U = L_SYNC + 16, L_SYNC + 32, L_SYNC + 48
pQ, pK, pV, pSH, pH, pD, pW1, pB1, pW2, pB2, pOUT, pWS = 4, 6, 8, 10, 12, 14, 16, 18, 20, 22, 24, 26
sX, sW, sI, sM = 28, 29, 30, 31
WS, RA, RB, RC, RD = 32, 36, 40, 44, 48
sG, sTAG, sXCC, sSLOW, sP, sLIM, sCNT = 52, 53, 54, 55, 56, 57, 58
sHI, sINV, sEPS, sC2 = 59, 60, 61, 62
sST = 86
vL, vL16, vL4, vC1, vST = 1, 2, 3, 6, 7

f2h = lambda x: hex(struct.unpack('<I', struct.pack('<f', x))[0])
R4 = lambda d: 's[%d:%d]' % (d, d + 3)


def srd(a, d, p, size, add=None):
    if add is None:
        a('s_mov_b32 s%d, s%d' % (d, p)); a('s_mov_b32 s%d, s%d' % (d + 1, p + 1))
    else:
        a('s_add_u32 s%d, s%d, %s' % (d, p, add)); a('s_addc_u32 s%d, s%d, 0' % (d + 1, p + 1))
    a('s_mov_b32 s%d, %s' % (d + 2, size)); a('s_mov_b32 s%d, 0x20000' % (d + 3))


def stamp(a, idx):
    if not STAMP:
        return
    a('s_memrealtime s[%d:%d]' % (sST, sST + 1))
    if isinstance(idx, tuple):
        a('s_mul_i32 s88, s%d, %d' % (idx[0], idx[1]))
        a('s_add_u32 s88, s88, %d' % idx[2])
        a('s_lshl_b64 exec, 1, s88')
        a('s_waitcnt lgkmcnt(0)')
        a('v_mov_b32 v%d, s%d' % (vST, sST))
        a('s_mov_b64 exec, -1')
    else:
        a('s_waitcnt lgkmcnt(0)')
        a('v_writelane_b32 v%d, s%d, %d' % (vST, sST, idx))


def dstamp(a, slot, inv=False):
    if not DBG:
        return
    a('s_memrealtime s[%d:%d]' % (sST, sST + 1))
    a('s_waitcnt lgkmcnt(0)')
    if inv:
        a('s_not_b32 s%d, s%d' % (sST, sST))
    a('v_mov_b32 v%d, s%d' % (vST, sST))
    a('s_mov_b64 exec, 1')
    a('buffer_atomic_umax v%d, off, s[92:95], 0 offset:%d' % (vST, 4 * slot))
    a('s_mov_b64 exec, -1')


def endk(a):
    dstamp(a, 15)
    if STAMP:
        a('s_waitcnt vmcnt(0)')
        stamp(a, 63)
        a('s_lshl_b32 s63, s2, 3')
        a('s_add_u32 s63, s63, s%d' % sW)
        a('s_lshl_b32 s63, s63, 8')
        a('s_add_u32 s63, s63, %s' % hex(STAMPS))
        a('s_mov_b64 exec, -1')
        a('buffer_store_dword v%d, v%d, %s, s63 offen' % (vST, vL4, R4(WS)))
    a('s_endpgm')


def setexec(a, n):
    if n == 64:
        a('s_mov_b64 exec, -1')
    elif n <= 6:
        a('s_mov_b64 exec, %d' % ((1 << n) - 1))
    elif n <= 32:
        a('s_mov_b32 exec_lo, %s' % ('-1' if n == 32 else hex((1 << n) - 1))); a('s_mov_b32 exec_hi, 0')
    else:
        a('s_mov_b32 exec_lo, -1'); a('s_mov_b32 exec_hi, %s' % hex((1 << (n - 32)) - 1))


def poll(a, soff, nl, vT, pre=False):
    L, C, D = a.newlabel('PL'), a.newlabel('PC'), a.newlabel('PD')
    a('s_mov_b32 s%d, 0' % sCNT)
    setexec(a, nl)
    if pre:
        a('s_branch %s' % C)
    a.label(L)
    a('buffer_load_dword v%d, v%d, %s, s%d offen sc1' % (vT, vL4, R4(WS), soff))
    a.label(C)
    a('s_add_u32 s%d, s%d, 1' % (sCNT, sCNT))
    a('s_waitcnt vmcnt(0)')
    a('v_cmp_ne_u32 vcc, s%d, v%d' % (sTAG, vT))
    a('s_cbranch_vccz %s' % D)
    a('s_cmp_lt_u32 s%d, s%d' % (sCNT, sLIM))
    a('s_cbranch_scc1 %s' % L)
    a('s_mov_b32 s%d, 0' % sLIM)
    a.label(D)
    setexec(a, 64)


def flag_store(a, soff, vT, sc1):
    a('v_mov_b32 v%d, s%d' % (vT, sTAG))
    a('s_mov_b64 exec, 1')
    a('buffer_store_dword v%d, off, %s, s%d%s' % (vT, R4(WS), soff, ' sc1' if sc1 else ''))
    a('s_mov_b64 exec, -1')


def hello_check(a, vT, st):
    L, D = a.newlabel('HL'), a.newlabel('HD')
    a('s_lshl_b32 s%d, s%d, 7' % (st, sX))
    a('s_add_u32 s%d, s%d, %d' % (st, st, HELLO))
    a('s_mov_b32 s%d, 0' % sCNT)
    setexec(a, 32)
    a.label(L)
    a('buffer_load_dword v%d, v%d, %s, s%d offen sc1' % (vT, vL4, R4(WS), st))
    a('s_add_u32 s%d, s%d, 1' % (sCNT, sCNT))
    a('s_waitcnt vmcnt(0)')
    a('v_xor_b32 v%d, s%d, v%d' % (vT, sTAG, vT))
    a('v_cmp_lt_u32 vcc, 15, v%d' % vT)
    a('v_and_b32 v%d, 1, v%d' % (vT + 1, vT))
    a('v_cmp_ne_u32 s[64:65], 0, v%d' % (vT + 1))
    a('s_or_b64 vcc, vcc, s[64:65]')
    a('s_cbranch_vccz %s' % D)
    a('s_cmp_lt_u32 s%d, s%d' % (sCNT, sLIM))
    a('s_cbranch_scc1 %s' % L)
    a('s_mov_b32 s%d, 0' % sLIM)
    a.label(D)
    a('s_lshl_b32 s%d, s%d, 1' % (st, sXCC))
    a('v_cmp_ne_u32 vcc, s%d, v%d' % (st, vT))
    a('s_cmp_lg_u64 vcc, 0')
    a('s_cselect_b32 s%d, 1, %d' % (sSLOW, FORCE_SLOW))
    setexec(a, 64)


def get_tag(a, vE):
    a('v_readfirstlane_b32 s%d, v%d' % (sTAG, vE))
    a('s_mul_i32 s%d, s%d, 0x9E3779B1' % (sTAG, sTAG))
    a('s_add_u32 s%d, s%d, 0x7F4A7C15' % (sTAG, sTAG))


def lds_spin(a, addr, n, vT):
    L, D = a.newlabel('SL'), a.newlabel('SD')
    a('v_mov_b32 v%d, %d' % (vT + 4, addr))
    a('s_mov_b32 s%d, 0' % sCNT)
    a.label(L)
    a('ds_read_b128 %s, v%d' % (vr(vT, 4), vT + 4))
    a('s_add_u32 s%d, s%d, 1' % (sCNT, sCNT))
    a('s_waitcnt lgkmcnt(0)')
    for k in range(1, n):
        a('v_and_b32 v%d, v%d, v%d' % (vT, vT, vT + k))
    a('v_cmp_eq_u32 vcc, 0, v%d' % vT)
    a('s_cbranch_vccz %s' % D)
    a('s_cmp_lt_u32 s%d, %d' % (sCNT, 4 * LIMIT))
    a('s_cbranch_scc1 %s' % L)
    a.label(D)


def lds_flag(a, base, sIdx, vT):
    a('s_lshl_b32 s64, s%d, 2' % sIdx)
    a('s_add_u32 s64, s64, %d' % base)
    a('v_mov_b32 v%d, s64' % vT)
    a('v_mov_b32 v%d, 1' % (vT + 1))
    a('ds_write_b32 v%d, v%d' % (vT, vT + 1))


def wave_sum(v):
    return ['v_add_f32 v%d, v%d, v%d row_shr:1 row_mask:0xf bank_mask:0xf bound_ctrl:0' % (v, v, v),
            'v_add_f32 v%d, v%d, v%d row_shr:2 row_mask:0xf bank_mask:0xf bound_ctrl:0' % (v, v, v),
            'v_add_f32 v%d, v%d, v%d row_shr:4 row_mask:0xf bank_mask:0xf bound_ctrl:0' % (v, v, v),
            'v_add_f32 v%d, v%d, v%d row_shr:8 row_mask:0xf bank_mask:0xf bound_ctrl:0' % (v, v, v),
            'v_add_f32 v%d, v%d, v%d row_bcast:15 row_mask:0xa bank_mask:0xf' % (v, v, v),
            'v_add_f32 v%d, v%d, v%d row_bcast:31 row_mask:0xc bank_mask:0xf' % (v, v, v)]


def layernorm(X, D, T, sm, sr_):
    o = []
    o.append('v_add_f32 v%d, v%d, v%d' % (T, X, X + 1))
    o.append('v_add_f32 v%d, v%d, v%d' % (T + 1, X + 2, X + 3))
    for i in range(4, 10, 2):
        o.append('v_add_f32 v%d, v%d, v%d' % (T, T, X + i))
        o.append('v_add_f32 v%d, v%d, v%d' % (T + 1, T + 1, X + i + 1))
    o.append('v_add_f32 v%d, v%d, v%d' % (T, T, T + 1))
    o += wave_sum(T)
    o.append('v_mul_f32 v%d, s%d, v%d' % (T, sINV, T))
    o.append('v_readlane_b32 s%d, v%d, 63' % (sm, T))
    for i in range(10):
        o.append('v_subrev_f32 v%d, s%d, v%d' % (D + i, sm, X + i))
    o.append('v_mul_f32 v%d, v%d, v%d' % (T, D, D))
    o.append('v_mul_f32 v%d, v%d, v%d' % (T + 1, D + 1, D + 1))
    for i in range(2, 10, 2):
        o.append('v_fmac_f32 v%d, v%d, v%d' % (T, D + i, D + i))
        o.append('v_fmac_f32 v%d, v%d, v%d' % (T + 1, D + i + 1, D + i + 1))
    o.append('v_add_f32 v%d, v%d, v%d' % (T, T, T + 1))
    o += wave_sum(T)
    o.append('v_mov_b32 v%d, s%d' % (T + 1, sEPS))
    o.append('v_fmac_f32 v%d, s%d, v%d' % (T + 1, sINV, T))
    o.append('v_rsq_f32 v%d, v%d' % (T, T + 1))
    o.append('v_readlane_b32 s%d, v%d, 63' % (sr_, T))
    return o


def unpack10(dst, src):
    o = []
    for i in range(5):
        o.append('v_lshlrev_b32 v%d, 16, v%d' % (dst + 2 * i, src[i]))
        o.append('v_and_b32 v%d, s%d, v%d' % (dst + 2 * i + 1, sHI, src[i]))
    return o


def pack10(dst, src):
    return ['v_cvt_pk_bf16_f32 v%d, v%d, v%d' % (dst[i], src + 2 * i, src + 2 * i + 1) for i in range(5)]


class Blk:
    def __init__(self, B, sm, sr_, yraw=None):
        self.XR = [B, B + 1, B + 2, B + 3, B + 4]
        self.YR = yraw or [B + 8, B + 9, B + 10, B + 11, B + 5]
        self.ZP = [B + 12, B + 13, B + 14, B + 15, B + 6]
        self.X, self.Y, self.D, self.T = B + 16, B + 26, B + 36, B + 46
        self.sm, self.sr = sm, sr_


def gate_ln_z(b):
    o = []
    o += unpack10(b.Y, b.YR)
    o += layernorm(b.X, b.D, b.T, b.sm, b.sr)
    for i in range(10):
        o.append('v_mul_f32 v%d, s%d, v%d' % (b.D + i, b.sr, b.D + i))
    for i in range(10):
        o.append('v_fmac_f32 v%d, v%d, v%d' % (b.X + i, b.D + i, b.Y + i))
    o += pack10(b.XR, b.X)
    o += unpack10(b.X, b.XR)
    o += layernorm(b.X, b.D, b.T, b.sm, b.sr)
    for i in range(10):
        o.append('v_mul_f32 v%d, s%d, v%d' % (b.X + i, b.sr, b.D + i))
    o += layernorm(b.X, b.D, b.T, b.sm, b.sr)
    for i in range(10):
        o.append('v_mul_f32 v%d, s%d, v%d' % (b.D + i, b.sr, b.D + i))
    o += pack10(b.ZP, b.D)
    return o


def row_store(a, regs, srdn, soff, sc1):
    c = ' sc1' if sc1 else ''
    a('buffer_store_dwordx4 %s, v%d, %s, s%d offen%s' % (vr(regs[0], 4), vL16, R4(srdn), soff, c))
    a('buffer_store_dword v%d, v%d, %s, s%d offen offset:1024%s' % (regs[4], vL4, R4(srdn), soff, c))


def row_load(a, regs, srdn, soff, sc1=True):
    c = ' sc1' if sc1 else ''
    a('buffer_load_dwordx4 %s, v%d, %s, s%s offen%s' % (vr(regs[0], 4), vL16, R4(srdn), soff, c))
    a('buffer_load_dword v%d, v%d, %s, s%s offen offset:1024%s' % (regs[4], vL4, R4(srdn), soff, c))


def z_addr(a, sj, va, vb, st):
    a('s_and_b32 s%d, s%d, 15' % (st, sj))
    a('s_lshl_b32 s%d, s%d, 8' % (st + 1, sj))
    a('v_and_b32 v%d, 15, v%d' % (va, vL))
    a('v_xor_b32 v%d, s%d, v%d' % (va, st, va))
    a('v_lshlrev_b32 v%d, 4, v%d' % (va, va))
    a('v_lshrrev_b32 v%d, 4, v%d' % (vb, vL))
    a('v_lshl_add_u32 v%d, v%d, 13, v%d' % (va, vb, va))
    a('v_add_u32 v%d, s%d, v%d' % (va, st + 1, va))
    a('v_lshrrev_b32 v%d, 2, v%d' % (vb, vL))
    a('v_xor_b32 v%d, s%d, v%d' % (vb, st, vb))
    a('v_lshlrev_b32 v%d, 2, v%d' % (vb, vb))
    a('v_and_or_b32 v%d, v%d, 3, v%d' % (vb, vL, vb))
    a('v_lshlrev_b32 v%d, 2, v%d' % (vb, vb))
    a('s_add_u32 s%d, s%d, 0x8000' % (st + 1, st + 1))
    a('v_add_u32 v%d, s%d, v%d' % (vb, st + 1, vb))


def z_store(a, b, va, vb, soff, sc1):
    c = ' sc1' if sc1 else ''
    a('buffer_store_dwordx4 %s, v%d, %s, s%d offen%s' % (vr(b.ZP[0], 4), va, R4(WS), soff, c))
    a('buffer_store_dword v%d, v%d, %s, s%d offen%s' % (b.ZP[4], vb, R4(WS), soff, c))


def both(a, fn):
    S, D = a.newlabel('BS'), a.newlabel('BD')
    a('s_cmp_lg_u32 s%d, 0' % sSLOW)
    a('s_cbranch_scc1 %s' % S)
    fn(False)
    a('s_branch %s' % D)
    a.label(S)
    fn(True)
    a.label(D)


def emit(a, lst):
    for l in lst:
        a(l)


def zip2(x, y):
    o = []
    for p, q in zip(x, y):
        o += [p, q]
    return o


vW2O = 8
WB = 96


def w2_setup(a, sWp):
    srd(a, RA, pW2, 1728 * 1280)
    a('s_mul_i32 s70, s%d, 10240' % sWp)
    a('s_add_u32 s70, s70, %d' % L_W2)
    a('s_mul_i32 s71, s%d, %d' % (sM, 128 * 1280))
    a('s_mul_i32 s72, s%d, 320' % sWp)
    a('s_add_u32 s71, s71, s72')
    a('s_movk_i32 s72, 3277')
    a('s_movk_i32 s73, 960')
    for q in range(5):
        a('v_add_u32 v14, %d, v%d' % (64 * q, vL))
        a('v_mul_u32_u24 v15, s72, v14')
        a('v_lshrrev_b32 v15, 16, v15')
        a('v_lshlrev_b32 v14, 4, v14')
        a('v_mad_u32_u24 v14, v15, s73, v14')
        a('v_add_u32 v%d, s71, v14' % (vW2O + q))
    a('v_lshrrev_b32 v14, 5, v%d' % vL)
    a('v_bfe_u32 v15, v%d, 2, 2' % vL)
    a('v_lshl_add_u32 v14, v14, 2, v15')
    a('v_mul_u32_u24 v13, 320, v14')
    a('v_bfe_u32 v14, v%d, 4, 1' % vL)
    a('v_lshl_add_u32 v13, v14, 5, v13')
    a('v_and_b32 v14, 1, v%d' % vL)
    a('v_lshl_add_u32 v13, v14, 4, v13')
    a('v_bfe_u32 v14, v%d, 1, 1' % vL)
    a('v_lshl_add_u32 v13, v14, 3, v13')
    a('v_add_u32 v13, s70, v13')
    a('v_add_u32 v0, s70, v%d' % vL16)


def w2_loads():
    o = []
    if NOW:
        return o
    for ks in range(8):
        for q in range(5):
            g = ['s_mov_b32 s71, %d' % (ks * 20480)] if q == 0 else []
            g.append('buffer_load_dwordx4 %s, v%d, %s, s71 offen' % (vr(WB + (q * 8 + ks) * 4, 4), vW2O + q, R4(RA)))
            o.append(g)
    return o


def w2_xpose(a, waited):
    for ks in range(8):
        h = ks & 1
        if not waited:
            a('s_waitcnt vmcnt(%d)' % (35 - 5 * ks))
        for q in range(5):
            a('ds_write_b128 v0, %s offset:%d' % (vr(WB + (q * 8 + ks) * 4, 4), 5120 * h + 1024 * q))
        for j in range(5):
            for hh in range(2):
                a('ds_read_b64_tr_b16 %s, v13 offset:%d' % (vr(WB + (j * 8 + ks) * 4 + 2 * hh, 2), 5120 * h + 2560 * hh + 64 * j))
        a('s_waitcnt lgkmcnt(4)')
    a('s_waitcnt lgkmcnt(0)')


def w1_setup(a):
    srd(a, RA, pW1, 640 * 3456)
    a('s_mul_i32 s70, s%d, 10240' % sW)
    a('s_add_u32 s70, s70, %d' % L_ZE)
    a('s_lshl_b32 s71, s%d, 8' % sM)
    a('s_lshl_b32 s72, s%d, 6' % sW)
    a('s_add_u32 s71, s71, s72')
    a('v_lshrrev_b32 v14, 2, v%d' % vL)
    a('v_mul_u32_u24 v8, 3456, v14')
    a('v_and_b32 v14, 3, v%d' % vL)
    a('v_lshl_add_u32 v8, v14, 4, v8')
    a('v_add_u32 v8, s71, v8')
    a('v_lshrrev_b32 v14, 5, v%d' % vL)
    a('v_bfe_u32 v15, v%d, 2, 2' % vL)
    a('v_lshl_add_u32 v14, v14, 3, v15')
    a('v_lshlrev_b32 v13, 6, v14')
    a('v_bfe_u32 v14, v%d, 4, 1' % vL)
    a('v_lshl_add_u32 v13, v14, 5, v13')
    a('v_and_b32 v14, 3, v%d' % vL)
    a('v_lshl_add_u32 v13, v14, 3, v13')
    a('v_add_u32 v13, s70, v13')
    a('v_add_u32 v9, s70, v%d' % vL16)


def w1_loads(a):
    for ks in range(40):
        a('s_mov_b32 s71, %d' % (ks * 55296))
        a('buffer_load_dwordx4 %s, v8, %s, s71 offen' % (vr(WB + 4 * ks, 4), R4(RA)))


def kv_phase(a):
    K0, V0, SH, OUT = 16, 30, 40, 48
    KF, TP, AC = 56, 64, 68
    a.label('KV')
    a('buffer_load_dword v4, off, %s, 0 sc1' % R4(WS))
    srd(a, RB, pK, hex(ROWS_B))
    srd(a, RC, pV, hex(ROWS_B))
    srd(a, RD, pSH, 5120)
    a('s_min_u32 s63, s%d, 4' % sW)
    a('s_mul_i32 s64, s%d, 80' % sX)
    a('s_lshl_b32 s65, s63, 4')
    a('s_add_u32 s64, s64, s65')
    a('s_mul_i32 s65, s%d, %d' % (sI, 64 * 1280))
    a('s_lshl_b32 s66, s64, 1')
    a('s_add_u32 s65, s65, s66')
    a('v_and_b32 v14, 15, v%d' % vL)
    a('v_lshrrev_b32 v15, 4, v%d' % vL)
    a('v_mul_u32_u24 v10, 5120, v14')
    a('v_lshl_add_u32 v10, v15, 3, v10')
    a('v_add_u32 v10, s65, v10')
    a('v_subrev_u32 v9, 3840, v10')
    for r in range(3):
        a('buffer_load_dwordx2 %s, v9, %s, 0 offen offset:%d' % (vr(K0 + 2 * r, 2), R4(RB), 1280 * r))
    for r in range(4):
        a('buffer_load_dwordx2 %s, v10, %s, 0 offen offset:%d' % (vr(K0 + 6 + 2 * r, 2), R4(RB), 1280 * r))
    for r in range(4):
        a('buffer_load_dwordx2 %s, v10, %s, 0 offen offset:%d' % (vr(V0 + 2 * r, 2), R4(RC), 1280 * r))
    a('v_lshlrev_b32 v11, 5, v15')
    a('s_lshl_b32 s66, s64, 3')
    a('buffer_load_dwordx4 %s, v11, %s, s66 offen' % (vr(SH, 4), R4(RD)))
    a('buffer_load_dwordx4 %s, v11, %s, s66 offen offset:16' % (vr(SH + 4, 4), R4(RD)))
    a('s_barrier')
    a('v_lshlrev_b32 v5, 14, v15')
    a('v_lshlrev_b32 v14, 3, v14')
    a('v_sub_u32 v5, v5, v14')
    a('v_add_u32 v5, 120, v5')
    a('s_lshl_b32 s67, s64, 12')
    a('s_lshl_b32 s66, s%d, 7' % sI)
    a('s_sub_u32 s67, s67, s66')
    a('s_add_u32 s67, s67, 3968')
    a('s_mul_i32 s68, s%d, 5' % sX)
    a('s_add_u32 s68, s68, s63')
    a('s_lshl_b32 s68, s68, 7')
    a('s_lshl_b32 s66, s%d, 2' % sI)
    a('s_add_u32 s68, s68, s66')
    a('s_waitcnt vmcnt(13)')
    get_tag(a, 4)
    a('s_cmp_lg_u32 s%d, 7' % sW)
    a('s_cbranch_scc1 KV_NOH')
    a('s_lshl_b32 s66, s%d, 1' % sXCC)
    a('s_xor_b32 s66, s66, s%d' % sTAG)
    a('v_mov_b32 v4, s66')
    a('s_lshl_b32 s66, s%d, 7' % sX)
    a('s_lshl_b32 s69, s%d, 2' % sI)
    a('s_add_u32 s66, s66, s69')
    a('s_mov_b64 exec, 1')
    a('s_add_u32 s66, s66, %d' % HELLO)
    a('buffer_store_dword v4, off, %s, s66 sc1' % R4(WS))
    a('s_mov_b64 exec, -1')
    a('s_waitcnt vmcnt(1)')
    a('s_branch KV_GO')
    a.label('KV_NOH')
    a('s_waitcnt vmcnt(0)')
    a.label('KV_GO')
    stamp(a, 1)
    for e in range(4):
        d = e >> 1
        def unp(dst, src):
            if e & 1:
                a('v_and_b32 v%d, s%d, v%d' % (dst, sHI, src))
            else:
                a('v_lshlrev_b32 v%d, 16, v%d' % (dst, src))
        for r in range(7):
            unp(KF + r, K0 + 2 * r + d)
        for j in range(4):
            src = SH + 2 * e + (j >> 1)
            if j & 1:
                a('v_and_b32 v%d, s%d, v%d' % (TP + j, sHI, src))
            else:
                a('v_lshlrev_b32 v%d, 16, v%d' % (TP + j, src))
        for t in range(4):
            a('v_mul_f32 v%d, v%d, v%d' % (AC + t, TP + 3, KF + t))
        for jj in (2, 1, 0):
            for t in range(4):
                a('v_fmac_f32 v%d, v%d, v%d' % (AC + t, TP + jj, KF + 3 + t - jj))
        for t in range(4):
            unp(KF + t, V0 + 2 * t + d)
        for t in range(4):
            a('v_mul_f32 v%d, v%d, v%d' % (AC + t, AC + t, KF + t))
        a('v_cvt_pk_bf16_f32 v%d, v%d, v%d' % (OUT + 2 * e, AC + 3, AC + 2))
        a('v_cvt_pk_bf16_f32 v%d, v%d, v%d' % (OUT + 2 * e + 1, AC + 1, AC))
        a('s_add_u32 s66, s67, %s' % hex(KVA + 4096 * e))
        a('buffer_store_dwordx2 %s, v5, %s, s66 offen' % (vr(OUT + 2 * e, 2), R4(WS)))
    a('s_lshl_b32 s66, s%d, 1' % sXCC)
    a('s_add_u32 s66, s66, s%d' % sTAG)
    a('v_mov_b32 v4, s66')
    a('s_add_u32 s66, s68, %d' % KVFA)
    a('s_waitcnt vmcnt(0)')
    a('s_mov_b64 exec, 1')
    a('buffer_store_dword v4, off, %s, s66' % R4(WS))
    a('s_mov_b64 exec, -1')
    stamp(a, 2)
    dstamp(a, 2)
    a('s_cmp_lt_u32 s%d, 14' % sM)
    a('s_cbranch_scc1 KV_MEM')
    a('v_mov_b32 v4, s%d' % sTAG)
    a('v_mov_b32 v14, %d' % L_SYNC)
    a('ds_write_b32 v14, v4')
    a('s_waitcnt lgkmcnt(0)')
    a('s_barrier')
    a.label('KV_MEM')
    hello_check(a, 14, 66)
    a('s_cmp_eq_u32 s%d, 0' % sSLOW)
    a('s_cbranch_scc1 KV_DONE')
    for e in range(4):
        a('s_add_u32 s66, s67, %s' % hex(KVB + 4096 * e))
        a('buffer_store_dwordx2 %s, v5, %s, s66 offen sc1' % (vr(OUT + 2 * e, 2), R4(WS)))
    a('s_add_u32 s66, s68, %d' % KVFB)
    a('s_waitcnt vmcnt(0)')
    flag_store(a, 66, 4, True)
    a.label('KV_DONE')
    stamp(a, 3)
    a('s_cmp_ge_u32 s%d, 14' % sM)
    a('s_cbranch_scc1 S_MAIN')
    a('s_cmp_eq_u32 s%d, 7' % sW)
    a('s_cbranch_scc1 G2_W7')
    a('s_branch G1_INIT')


class LdsQ:
    def __init__(self, a):
        self.a, self.q = a, []
    def issue(self, key, text):
        self.a(text); self.q.append(key)
    def wait(self, keys):
        last = -1
        for i, k in enumerate(self.q):
            if k in keys:
                last = i
        if last >= 0:
            n = len(self.q) - 1 - last
            self.a('s_waitcnt lgkmcnt(%d)' % n)
            self.q = self.q[last + 1:]


CACC, CB, CA, CE = 16, 32, 64, 80
vCA, vCB = 14, 15
CF0, CF1 = 36, 40


def lds_gate(a):
    lds_spin(a, LF_U, 3, 16)


def conv_part(a, taus, kappas, started, hooks={}):
    mf = []
    for k in kappas:
        for aa in range(max(taus) + 1):
            for t in taus:
                if t >= aa:
                    mf.append((('A', aa, k), ('B', t - aa, k), t))
    order, last = [], {}
    for i, (fa, fb, t) in enumerate(mf):
        for f in (fb, fa):
            if f not in last:
                order.append(f)
            last[f] = i
    free = {'A': list(range(4)), 'B': list(range(8))}
    slot = {}
    q = LdsQ(a)
    nxt = 0
    def reg(f):
        return (CA if f[0] == 'A' else CB) + 4 * slot[f]
    def try_issue(budget):
        nonlocal nxt
        while nxt < len(order) and budget > 0:
            f = order[nxt]
            cost = 2 if f[0] == 'A' else 1
            if not free[f[0]] or len(q.q) + cost > 14:
                break
            slot[f] = free[f[0]].pop(0)
            if f[0] == 'A':
                off = 512 * f[1] + 64 * f[2]
                q.issue(f, 'ds_read_b64 %s, v%d offset:%d' % (vr(reg(f), 2), vCA, off))
                q.issue(f, 'ds_read_b64 %s, v%d offset:%d' % (vr(reg(f) + 2, 2), vCA, off + 8))
            else:
                q.issue(f, 'ds_read_b128 %s, v%d offset:%d' % (vr(reg(f), 4), vCB, 512 * (7 - f[1]) + 64 * f[2]))
            budget -= cost
            nxt += 1
    try_issue(12)
    for i, (fa, fb, t) in enumerate(mf):
        while fa not in slot or fb not in slot:
            n0 = nxt
            try_issue(2)
            if nxt == n0:
                q.wait([q.q[0]])
        q.wait([fa, fb])
        acc = CACC + 4 * (t - taus[0])
        c = vr(acc, 4) if t in started else '0'
        started.add(t)
        a('v_mfma_f32_16x16x32_bf16 %s, %s, %s, %s' % (vr(acc, 4), vr(reg(fa), 4), vr(reg(fb), 4), c))
        for f in (fa, fb):
            if last[f] == i:
                free[f[0]].append(slot[f])
        try_issue(3)
        if i in hooks:
            hooks[i]()


def conv_epilogue(a, taus, stage):
    T = 88
    for n, t in enumerate(taus):
        a('ds_read_b64 %s, v4 offset:%d' % (vr(CE + 2 * n, 2), 512 * (7 - t)))
    a('s_waitcnt lgkmcnt(0)')
    for pr in range(len(taus) // 2):
        Q = CB + 4 * pr
        for h in range(2):
            n = 2 * pr + h
            e0, e1 = CE + 2 * n, CE + 2 * n + 1
            acc = CACC + 4 * n
            a('v_and_b32 v%d, s%d, v%d' % (T + 0, sHI, e1))
            a('v_lshlrev_b32 v%d, 16, v%d' % (T + 1, e1))
            a('v_and_b32 v%d, s%d, v%d' % (T + 2, sHI, e0))
            a('v_lshlrev_b32 v%d, 16, v%d' % (T + 3, e0))
            for r in range(4):
                a('v_fmac_f32 v%d, s74, v%d' % (acc + r, T + r))
            a('v_cvt_pk_bf16_f32 v%d, v%d, v%d' % (Q + 2 * h, acc, acc + 1))
            a('v_cvt_pk_bf16_f32 v%d, v%d, v%d' % (Q + 2 * h + 1, acc + 2, acc + 3))
        a('v_permlane16_swap_b32 v%d, v%d' % (Q, Q + 2))
        a('v_permlane16_swap_b32 v%d, v%d' % (Q + 1, Q + 3))
        a('buffer_store_dwordx4 %s, v5, %s, s75 offen offset:%d sc1' % (vr(Q, 4), R4(WS), 512 * taus[2 * pr]))


def conv_flag(a, stage):
    a('s_add_u32 s66, s76, %d' % (YF + 4096 * stage))
    a('s_waitcnt vmcnt(0)')
    flag_store(a, 66, 88, True)


def conv_phase(a):
    a.label('CONVW')
    a('s_cmp_ge_u32 s%d, 14' % sM)
    a('s_cbranch_scc1 S_WAIT')
    a('s_sub_u32 s69, s%d, 4' % sW)
    a('s_mul_i32 s63, s%d, 3' % sM)
    a('s_lshl_b32 s64, s%d, 1' % sM)
    a('s_add_u32 s64, s64, 12')
    a('s_cmp_lt_u32 s%d, 12' % sM)
    a('s_cselect_b32 s63, s63, s64')
    a('s_cselect_b32 s77, 3, 2')
    a('s_cmp_ge_u32 s69, s77')
    a('s_cbranch_scc1 G2_NOCONV')
    a('s_setprio 3')
    a('buffer_load_dword v4, off, %s, 0 sc1' % R4(WS))
    a('s_lshr_b32 s64, s%d, 4' % sI)
    a('s_mul_i32 s64, s64, 40')
    a('s_add_u32 s63, s63, s64')
    a('s_add_u32 s63, s63, s69')
    a('s_mul_i32 s64, s%d, 80' % sX)
    a('s_add_u32 s64, s64, s63')
    a('s_lshl_b32 s65, s64, 12')
    srd(a, RB, pH, 4096, 's65')
    a('v_subrev_u32 v14, 32, v%d' % vL16)
    a('v_subrev_u32 v15, 16, v%d' % vL16)
    a('v_add_u32 v5, 992, v%d' % vL16)
    HQ, HD = 16, 40
    a('buffer_load_dwordx4 %s, v14, %s, 0 offen' % (vr(HQ, 4), R4(RB)))
    a('buffer_load_dwordx2 %s, v15, %s, 0 offen' % (vr(HD, 2), R4(RB)))
    for j in range(1, 5):
        a('buffer_load_dwordx4 %s, v5, %s, 0 offen offset:%d' % (vr(HQ + 4 * j, 4), R4(RB), 1024 * (j - 1)))
        a('buffer_load_dwordx2 %s, v5, %s, 0 offen offset:%d' % (vr(HD + 2 * j, 2), R4(RB), 1024 * (j - 1) + 16))
    a('s_barrier')
    a('s_and_b32 s66, s64, 0xfffffffe')
    a('s_lshl_b32 s66, s66, 1')
    a('s_load_dword s74, s[%d:%d], s66' % (pD, pD + 1))
    a('s_add_u32 s75, s65, %s' % hex(YT))
    a('s_lshl_b32 s76, s64, 2')
    a('s_lshr_b32 s78, s63, 4')
    a('s_mul_i32 s79, s%d, 5' % sX)
    a('s_add_u32 s78, s78, s79')
    a('s_lshl_b32 s78, s78, 7')
    a('s_add_u32 s78, s78, %d' % KVFA)
    a('s_mov_b32 s79, s65')
    w2_setup(a, 69)
    a('s_mul_i32 s80, s69, 16640')
    a('s_mul_i32 s81, s69, 4608')
    a('s_add_u32 s81, s81, %d' % L_U)
    a('v_add_u32 v5, s80, v%d' % vL16)
    a('v_mov_b32 v56, 0'); a('v_mov_b32 v57, 0'); a('v_mov_b32 v58, 0'); a('v_mov_b32 v59, 0')
    a('v_add_u32 v14, s81, v%d' % vL16)
    setexec(a, 32)
    a('ds_write_b128 v14, v[56:59] offset:4096')
    setexec(a, 64)
    a('s_waitcnt lgkmcnt(0)')
    a('s_bitcmp1_b32 s64, 0')
    a('s_cbranch_scc1 CV_DHI')
    a('s_lshl_b32 s74, s74, 16')
    a.label('CV_DHI')
    a('s_and_b32 s74, s74, 0xffff0000')
    for j in range(5):
        a('s_waitcnt vmcnt(%d)' % (2 * (4 - j)))
        if j == 0:
            get_tag(a, 4)
        if j == 4:
            a('s_mov_b64 exec, 3')
        d = [HQ + 4 * j + e for e in range(4)] + [HD + 2 * j, HD + 2 * j + 1]
        T1, T2, T3 = 52 + 12 * (j & 1), 56 + 12 * (j & 1), 60 + 12 * (j & 1)
        a('ds_write_b128 v5, %s offset:%d' % (vr(d[0], 4), 1024 * j))
        for e in range(4):
            a('v_alignbit_b32 v%d, v%d, v%d, 16' % (T1 + e, d[e + 1], d[e]))
        a('ds_write_b128 v5, %s offset:%d' % (vr(T1, 4), 1024 * j + HSTR))
        for e in range(4):
            a('v_mov_b32 v%d, v%d' % (T2 + e, d[e + 1]))
        a('ds_write_b128 v5, %s offset:%d' % (vr(T2, 4), 1024 * j + 2 * HSTR))
        for e in range(4):
            a('v_alignbit_b32 v%d, v%d, v%d, 16' % (T3 + e, d[e + 2], d[e + 1]))
        a('ds_write_b128 v5, %s offset:%d' % (vr(T3, 4), 1024 * j + 3 * HSTR))
        if j == 2:
            a('s_waitcnt lgkmcnt(8)')
    setexec(a, 64)
    stamp(a, 1)
    a('v_and_b32 v16, 15, v%d' % vL)
    a('v_lshrrev_b32 v17, 4, v%d' % vL)
    a('v_add_u32 v18, 1, v16')
    a('v_and_b32 v19, 3, v18')
    a('v_mul_u32_u24 v%d, %d, v19' % (vCA, HSTR))
    a('v_lshrrev_b32 v18, 2, v18')
    a('v_lshl_add_u32 v%d, v18, 3, v%d' % (vCA, vCA))
    a('v_lshl_add_u32 v%d, v17, 4, v%d' % (vCA, vCA))
    a('v_add_u32 v%d, s80, v%d' % (vCA, vCA))
    a('v_lshlrev_b32 v18, 5, v16')
    a('v_lshlrev_b32 v19, 4, v17')
    a('v_sub_u32 v%d, v19, v18' % vCB)
    a('s_add_u32 s66, s81, 480')
    a('v_add_u32 v%d, s66, v%d' % (vCB, vCB))
    a('v_lshl_add_u32 v19, v17, 3, v18')
    a('s_add_u32 s66, s81, 504')
    a('v_sub_u32 v4, s66, v19')
    a('v_and_b32 v19, 1, v17')
    a('v_lshl_add_u32 v5, v19, 9, v18')
    a('v_lshrrev_b32 v19, 1, v17')
    a('v_lshl_add_u32 v5, v19, 4, v5')
    a('s_waitcnt lgkmcnt(0)')
    hello_check(a, 16, 66)
    stamp(a, 2)
    a('v_and_b32 v16, 31, v%d' % vL)
    a('v_lshlrev_b32 v16, 2, v16')
    a('v_lshrrev_b32 v17, 5, v%d' % vL)
    a('v_lshl_add_u32 v16, v17, 13, v16')
    assert KVFB - KVFA == 8192
    a('s_lshl_b32 s66, s%d, 1' % sXCC)
    a('v_mov_b32 v18, s66')
    a('v_cmp_eq_u32 vcc, 0, v17')
    a('v_cndmask_b32 v18, 0, v18, vcc')
    a('v_add_u32 v18, s%d, v18' % sTAG)
    a('s_mov_b32 s%d, 0' % sCNT)
    a.label('CV_POLL')
    a('buffer_load_dword v19, v16, %s, s78 offen sc1' % R4(WS))
    a('s_add_u32 s%d, s%d, 1' % (sCNT, sCNT))
    a('s_waitcnt vmcnt(0)')
    a('v_cmp_ne_u32 vcc, v18, v19')
    a('s_mov_b32 s66, %s' % hex(KVA))
    if not FORCE_SLOW:
        a('s_cmp_eq_u32 vcc_lo, 0')
        a('s_cbranch_scc1 CV_GOT')
    a('s_mov_b32 s66, %s' % hex(KVB))
    a('s_cmp_eq_u32 vcc_hi, 0')
    a('s_cbranch_scc1 CV_GOT')
    a('s_cmp_lt_u32 s%d, s%d' % (sCNT, sLIM))
    a('s_cbranch_scc1 CV_POLL')
    a('s_mov_b32 s%d, 0' % sLIM)
    a.label('CV_GOT')
    a('s_add_u32 s66, s66, s79')
    a('s_mov_b32 m0, s81')
    for k in range(4):
        a('buffer_load_dwordx4 v%d, %s, s66 offen offset:%d sc1 lds' % (vL16, R4(WS), 1024 * k))
    stamp(a, 3)
    a('s_waitcnt vmcnt(0)')
    lds_flag(a, LF_U, 69, 16)
    a('s_waitcnt lgkmcnt(0)')
    stamp(a, 4)
    dstamp(a, 3)
    conv_part(a, [0, 1], range(8), set())
    conv_epilogue(a, [0, 1], 0)
    stamp(a, 5)
    conv_part(a, [2, 3], range(8), set(), {CF0: lambda: conv_flag(a, 0)})
    conv_epilogue(a, [2, 3], 1)
    stamp(a, 6)
    hk = {CF1: lambda: conv_flag(a, 1)}
    for n, g in enumerate(w2_loads()):
        hk[CF1 + 1 + 3 * n] = (lambda g=g: emit(a, g))
    conv_part(a, [4, 5, 6, 7], range(8), set(), hk)
    conv_epilogue(a, [4, 5, 6, 7], 2)
    stamp(a, 7)
    dstamp(a, 4)
    lds_flag(a, LF_CV, 69, 16)
    conv_flag(a, 2)
    a('s_setprio 0')
    w2_xpose(a, True)
    a('s_branch G2_READY')
    a.label('G2_NOCONV')
    a('s_barrier')
    lds_flag(a, LF_U, 69, 16)
    lds_flag(a, LF_CV, 69, 16)
    w2_setup(a, 69)
    lds_gate(a)
    for g in w2_loads():
        emit(a, g)
    w2_xpose(a, False)
    a('s_barrier')
    a('v_mov_b32 v16, %d' % L_SYNC)
    a('ds_read_b32 v17, v16')
    a('s_waitcnt lgkmcnt(0)')
    a('v_readfirstlane_b32 s%d, v17' % sTAG)
    hello_check(a, 16, 66)
    a('s_branch G2_START')
    a.label('G2_W7')
    a('s_mov_b32 s69, 3')
    w2_setup(a, 69)
    lds_gate(a)
    for g in w2_loads():
        emit(a, g)
    w2_xpose(a, False)
    a.label('G2_READY')
    stamp(a, 8)
    dstamp(a, 5)
    a('s_barrier')
    a('s_branch G2_START')


def tok_scalars(a, sSig, sJ, sRow, sZ, sZF):
    a('s_and_b32 s63, s%d, 3' % sSig)
    a('s_lshl_b32 s64, s63, 9')
    a('s_lshl_b32 s65, s%d, 5' % sG)
    a('s_add_u32 s64, s64, s65')
    a('s_add_u32 s64, s64, s%d' % sJ)
    a('s_mul_i32 s%d, s64, 1280' % sRow)
    a('s_lshl_b32 s64, s%d, 2' % sG)
    a('s_add_u32 s64, s64, s63')
    a('s_mul_i32 s%d, s64, 40960' % sZ)
    a('s_add_u32 s%d, s%d, %s' % (sZ, sZ, hex(ZI)))
    a('s_lshl_b32 s64, s%d, 4' % sG)
    a('s_add_u32 s64, s64, s%d' % sSig)
    a('s_lshl_b32 s64, s64, 7')
    a('s_lshl_b32 s65, s%d, 2' % sJ)
    a('s_add_u32 s64, s64, s65')
    a('s_add_u32 s%d, s64, %d' % (sZF, ZF + 4 * 128))


def pf_off(a, sSig, sD):
    a('s_lshl_b32 s%d, s%d, 3' % (sD, sG))
    a('s_add_u32 s%d, s%d, s%d' % (sD, sD, sSig))
    a('s_lshl_b32 s%d, s%d, 8' % (sD, sD))
    a('s_add_u32 s%d, s%d, %s' % (sD, sD, hex(PF)))


def part_off(a, sSig, sD):
    a('s_mul_i32 s63, s%d, 43' % sSig)
    a('s_lshr_b32 s63, s63, 7')
    a('s_mul_i32 s63, s63, 3')
    a('s_sub_u32 s63, s%d, s63' % sSig)
    a('s_mul_i32 s64, s%d, 3' % sG)
    a('s_add_u32 s63, s63, s64')
    a('s_mul_i32 s%d, s63, %d' % (sD, 14 * 40960))
    a('s_add_u32 s%d, s%d, %s' % (sD, sD, hex(PART)))


PQ, P5, B2F = 96, 156, 176


def load_b2(a):
    srd(a, RD, pB2, 1280)
    a('buffer_load_dwordx4 %s, v%d, %s, 0 offen' % (vr(PQ, 4), vL16, R4(RD)))
    a('buffer_load_dword v%d, v%d, %s, 0 offen offset:1024' % (P5, vL4, R4(RD)))
    a('s_waitcnt vmcnt(0)')
    emit(a, unpack10(B2F, [PQ, PQ + 1, PQ + 2, PQ + 3, P5]))


def full_r_issue(a, b, sSig, sJ, sRow):
    part_off(a, sSig, 66)
    a('s_mul_i32 s63, s%d, 1280' % sJ)
    a('s_add_u32 s66, s66, s63')
    a('s_add_u32 s67, s%d, %s' % (sRow, hex(XR)))
    row_load(a, [PQ + 56, 0, 0, 0, P5 + 14], WS, 67)
    for r in range(14):
        row_load(a, [PQ + 4 * r, 0, 0, 0, P5 + r], WS, 66)
        if r < 13:
            a('s_add_u32 s66, s66, 40960')
    a('s_add_u32 s67, s%d, %s' % (sRow, hex(YR)))
    row_load(a, b.YR, WS, 67)


def full_r_sum(a, b, younger=0):
    a('s_waitcnt vmcnt(%d)' % (30 + younger))
    emit(a, unpack10(b.X, [PQ + 56 + e for e in range(4)] + [P5 + 14]))
    for i in range(10):
        a('v_add_f32 v%d, v%d, v%d' % (b.X + i, b.X + i, B2F + i))
    for r in range(14):
        a('s_waitcnt vmcnt(%d)' % (28 - 2 * r + younger))
        T = b.D if r & 1 else b.Y
        emit(a, unpack10(T, [PQ + 4 * r + e for e in range(4)] + [P5 + r]))
        for i in range(10):
            a('v_add_f32 v%d, v%d, v%d' % (b.X + i, b.X + i, T + i))


def lf_task(a, b, sSig, sJ, sRow, sZ, sZF, va, vb, defer=None):
    F, D = a.newlabel('LF_F'), a.newlabel('LF_D')
    emit(a, pack10(b.XR, b.X))
    a('s_cmp_ge_u32 s%d, 4' % sSig)
    a('s_cbranch_scc1 %s' % F)
    emit(a, unpack10(b.X, b.XR))
    a('s_waitcnt vmcnt(0)')
    emit(a, gate_ln_z(b))
    a('s_add_u32 s67, s%d, %s' % (sRow, hex(XR)))
    def st(sc1):
        z_store(a, b, va, vb, sZ, sc1)
        row_store(a, b.XR, WS, 67, sc1)
        if defer is None:
            a('s_waitcnt vmcnt(0)')
            flag_store(a, sZF, b.T, sc1)
    both(a, st)
    if defer is not None:
        a('s_mov_b32 s%d, s%d' % (defer, sZF))
    a('s_branch %s' % D)
    a.label(F)
    row_store(a, b.XR, RB, sRow, False)
    a('s_cmp_lg_u32 s%d, 4' % sSig)
    a('s_cbranch_scc1 %s' % D)
    both(a, lambda sc1: flag_store(a, sZF, b.T, sc1))
    a.label(D)


def s_phase(a):
    a.label('S_WAIT')
    a('s_barrier')
    a('s_barrier')
    a('v_mov_b32 v14, %d' % L_SYNC)
    a('ds_read_b32 v4, v14')
    a('s_waitcnt lgkmcnt(0)')
    a('v_readfirstlane_b32 s%d, v4' % sTAG)
    hello_check(a, 14, 66)
    a.label('S_MAIN')
    QR = 190
    QR = 192
    srd(a, RA, pQ, hex(ROWS_B))
    srd(a, RB, pOUT, hex(ROWS_B))
    a('s_sub_u32 s70, s%d, 14' % sM)
    a('s_lshl_b32 s71, s%d, 5' % sG)
    a('s_lshl_b32 s72, s70, 4')
    a('s_add_u32 s71, s71, s72')
    a('s_lshl_b32 s72, s%d, 1' % sW)
    a('s_add_u32 s72, s72, s71')
    a('s_mul_i32 s73, s72, 1280')
    a('s_mov_b32 s66, s73')
    for s in range(4):
        for e in range(2):
            R = QR + 8 * (2 * s + e)
            a('buffer_load_dwordx4 %s, v%d, %s, s66 offen offset:%d' % (vr(R, 4), vL16, R4(RA), 1280 * e))
            a('buffer_load_dword v%d, v%d, %s, s66 offen offset:%d' % (R + 4, vL4, R4(RA), 1280 * e + 1024))
        if s < 3:
            a('s_add_u32 s66, s66, %d' % (512 * 1280))
    load_b2(a)
    a('v_lshrrev_b32 v14, 1, v%d' % vL)
    a('v_and_b32 v15, 1, v%d' % vL)
    a('v_lshlrev_b32 v8, 12, v14')
    a('v_lshl_add_u32 v8, v15, 4, v8')
    a('v_mul_u32_u24 v9, 10304, v15')
    a('v_lshl_add_u32 v9, v14, 1, v9')
    a('s_mul_i32 s66, s%d, 160' % sW)
    a('v_add_u32 v9, s66, v9')
    a('s_mul_i32 s66, s%d, 2560' % sW)
    a('s_cmp_ge_u32 s%d, 4' % sW)
    a('s_cselect_b32 s67, 64, 0')
    a('s_add_u32 s66, s66, s67')
    a('v_add_u32 v10, s66, v%d' % vL16)
    a('v_add_u32 v11, s66, v%d' % vL4)
    a('s_mul_i32 s74, s%d, %d' % (sW, 80 * 4096))
    a('s_lshl_b32 s75, s71, 1')
    a('s_add_u32 s74, s74, s75')
    a('s_add_u32 s74, s74, %s' % hex(YT))
    a('s_mul_i32 s75, s%d, 320' % sW)
    a('s_add_u32 s75, s75, %d' % YF)
    a('s_lshl_b32 s76, s70, 4')
    a('s_lshl_b32 s77, s%d, 1' % sW)
    a('s_add_u32 s76, s76, s77')
    z_addr(a, 76, 12, 13, 66)
    a('s_add_u32 s77, s76, 1')
    z_addr(a, 77, 4, 5, 66)
    a('s_lshl_b32 s78, s%d, 2' % sG)
    a('s_mul_i32 s78, s78, 40960')
    a('s_add_u32 s78, s78, %s' % hex(ZI))
    a('s_lshl_b32 s79, s%d, 11' % sG)
    a('s_lshl_b32 s77, s76, 2')
    a('s_add_u32 s79, s79, s77')
    a('s_add_u32 s79, s79, %d' % ZF)
    a('s_mov_b32 s%d, 0' % sP)
    b0, b1 = Blk(16, 80, 81), Blk(64, 82, 83)
    a.label('LN1_LOOP')
    stamp(a, (sP, 4, 4))
    L, D = a.newlabel('YL'), a.newlabel('YD')
    a('s_mov_b32 s%d, 0' % sCNT)
    setexec(a, 20)
    a.label(L)
    a('buffer_load_dwordx4 v[112:115], v%d, %s, s75 offen sc1' % (vL16, R4(WS)))
    a('s_add_u32 s%d, s%d, 1' % (sCNT, sCNT))
    a('s_waitcnt vmcnt(0)')
    for e in range(4):
        a('v_xor_b32 v%d, s%d, v%d' % (112 + e, sTAG, 112 + e))
    a('v_or3_b32 v112, v112, v113, v114')
    a('v_or_b32 v112, v112, v115')
    a('v_cmp_ne_u32 vcc, 0, v112')
    a('s_cbranch_vccz %s' % D)
    a('s_cmp_lt_u32 s%d, s%d' % (sCNT, sLIM))
    a('s_cbranch_scc1 %s' % L)
    a('s_mov_b32 s%d, 0' % sLIM)
    a.label(D)
    setexec(a, 64)
    stamp(a, (sP, 4, 5))
    a('buffer_load_dwordx4 v[112:115], v8, %s, s74 offen sc1' % R4(WS))
    a('s_add_u32 s66, s74, %d' % (32 * 4096))
    a('buffer_load_dwordx4 v[116:119], v8, %s, s66 offen sc1' % R4(WS))
    a('s_add_u32 s66, s74, %d' % (64 * 4096))
    setexec(a, 32)
    a('buffer_load_dwordx4 v[120:123], v8, %s, s66 offen sc1' % R4(WS))
    setexec(a, 64)
    for e, b in enumerate((b0, b1)):
        emit(a, unpack10(b.X, [QR + 8 * e + k for k in range(5)]))
    for k in range(3):
        a('s_waitcnt vmcnt(%d)' % (2 - k))
        if k == 2:
            setexec(a, 32)
        for j in range(8):
            a('ds_write_b16%s v9, v%d offset:%d' % ('_d16_hi' if j & 1 else '', 112 + 4 * k + (j >> 1), 1280 * j + 64 * k))
        a('s_waitcnt lgkmcnt(4)')
    setexec(a, 64)
    for k in range(48):
        if (k & 7) < 5:
            a('v_mov_b32 v%d, v%d' % (QR + k, QR + 16 + k))
    a('s_waitcnt lgkmcnt(0)')
    a('s_barrier')
    for e, b in enumerate((b0, b1)):
        a('ds_read_b128 %s, v10 offset:%d' % (vr(b.YR[0], 4), 1280 * e))
        a('ds_read_b32 v%d, v11 offset:%d' % (b.YR[4], 1280 * e + 1024))
    a('v_xor_b32 v9, 0x8000, v9')
    a('v_xor_b32 v10, 0x8000, v10')
    a('v_xor_b32 v11, 0x8000, v11')
    a('s_waitcnt lgkmcnt(0)')
    stamp(a, (sP, 4, 6))
    emit(a, zip2(gate_ln_z(b0), gate_ln_z(b1)))
    a('s_add_u32 s66, s73, %s' % hex(XR))
    a('s_add_u32 s67, s73, %s' % hex(XR + 1280))
    a('s_add_u32 s68, s73, %s' % hex(YR))
    a('s_add_u32 s69, s73, %s' % hex(YR + 1280))
    def st(sc1):
        z_store(a, b0, 12, 13, 78, sc1)
        z_store(a, b1, 4, 5, 78, sc1)
        row_store(a, b0.XR, WS, 66, sc1)
        row_store(a, b1.XR, WS, 67, sc1)
        row_store(a, b0.YR, WS, 68, sc1)
        row_store(a, b1.YR, WS, 69, sc1)
        a('v_mov_b32 v112, s%d' % sTAG)
        a('v_mov_b32 v113, s%d' % sTAG)
        a('s_waitcnt vmcnt(0)')
        a('s_mov_b64 exec, 1')
        a('buffer_store_dwordx2 v[112:113], off, %s, s79%s' % (R4(WS), ' sc1' if sc1 else ''))
        a('s_mov_b64 exec, -1')
    both(a, st)
    stamp(a, (sP, 4, 7))
    a('s_add_u32 s73, s73, %d' % (512 * 1280))
    a('s_add_u32 s74, s74, 1024')
    a('s_add_u32 s78, s78, 40960')
    a('s_add_u32 s79, s79, 128')
    a('s_cmp_lt_u32 s%d, 2' % sP)
    a('s_cselect_b32 s66, 4096, 0')
    a('s_add_u32 s75, s75, s66')
    a('s_add_u32 s%d, s%d, 1' % (sP, sP))
    a('s_cmp_lt_u32 s%d, 4' % sP)
    a('s_cbranch_scc1 LN1_LOOP')
    dstamp(a, 8)
    a('s_cmp_lg_u32 s2, 112')
    a('s_cbranch_scc1 S_NOEP')
    a('s_cmp_lg_u32 s%d, 0' % sW)
    a('s_cbranch_scc1 S_NOEP')
    a('s_mov_b32 s66, 0')
    flag_store(a, 66, 112, True)
    a.label('S_NOEP')
    if STOP == 'front':
        endk(a)
        return
    a('s_lshl_b32 s70, s70, 3')
    a('s_add_u32 s70, s70, s%d' % sW)
    z_addr(a, 70, 12, 13, 66)
    a('s_mov_b32 s%d, 0' % sP)
    a.label('S_TASK')
    tok_scalars(a, sP, 70, 71, 72, 73)
    pf_off(a, sP, 74)
    poll(a, 74, 56, 14)
    stamp(a, (sP, 4, 20))
    full_r_issue(a, b0, sP, 70, 71)
    full_r_sum(a, b0)
    stamp(a, (sP, 4, 21))
    lf_task(a, b0, sP, 70, 71, 72, 73, 12, 13)
    stamp(a, (sP, 4, 22))
    a('s_add_u32 s%d, s%d, 1' % (sP, sP))
    a('s_cmp_lt_u32 s%d, 8' % sP)
    a('s_cbranch_scc1 S_TASK')
    endk(a)


ZA, GT, RQ, R5, ZR, ACC, BIAS = 8, 16, 28, 44, 48, 64, 80


def stage_z(a, sSig1):
    a('s_and_b32 s63, s%d, 3' % sSig1)
    a('s_lshl_b32 s64, s%d, 2' % sG)
    a('s_add_u32 s64, s64, s63')
    a('s_mul_i32 s64, s64, 40960')
    a('s_mul_i32 s65, s%d, 10240' % sW)
    a('s_add_u32 s64, s64, s65')
    a('s_add_u32 s64, s64, %s' % hex(ZI))
    a('s_bitcmp1_b32 s%d, 0' % sSig1)
    a('s_cselect_b32 s63, 0, %d' % L_ZE)
    a('s_add_u32 s65, s65, s63')
    for g in range(3):
        a('s_add_u32 m0, s65, %d' % (4096 * g))
        for k in range(4 if g < 2 else 2):
            a('buffer_load_dwordx4 v%d, %s, s64 offen offset:%d sc1 lds' % (vL16, R4(WS), 1024 * k))
        if g < 2:
            a('s_add_u32 s64, s64, 4096')


def zf_off(a, sSig1, sD):
    a('s_lshl_b32 s%d, s%d, 4' % (sD, sG))
    a('s_add_u32 s%d, s%d, s%d' % (sD, sD, sSig1))
    a('s_lshl_b32 s%d, s%d, 7' % (sD, sD))
    a('s_add_u32 s%d, s%d, %d' % (sD, sD, ZF))


def quarter_setup(a):
    a('s_cmp_eq_u32 s%d, 3' % sW)
    a('s_cselect_b32 s%d, s%d, s%d' % (RC, pB2, pWS))
    a('s_cselect_b32 s%d, s%d, s%d' % (RC + 1, pB2 + 1, pWS + 1))
    a('s_cselect_b32 s%d, 1280, s%d' % (RC + 2, WS + 2))
    a('s_mov_b32 s%d, 0x20000' % (RC + 3))
    a('s_mul_i32 s63, s%d, 2560' % sW)
    a('s_add_u32 s63, s63, %d' % L_RS)
    a('v_add_u32 v4, s63, v%d' % vL16)
    a('v_lshlrev_b32 v5, 3, v%d' % vL)
    a('v_add_u32 v5, s63, v5')
    a('s_add_u32 s76, s%d, 16' % sM)


def quarter_issue(a, sSig):
    part_off(a, sSig, 66)
    a('s_mul_i32 s63, s76, 1280')
    a('s_add_u32 s66, s66, s63')
    a('s_mul_i32 s63, s%d, 40960' % sW)
    a('s_add_u32 s66, s66, s63')
    for k in range(3):
        row_load(a, [RQ + 4 * k, 0, 0, 0, R5 + k], WS, 66)
        a('s_add_u32 s66, s66, 163840')
    a('s_and_b32 s63, s%d, 3' % sSig)
    a('s_lshl_b32 s63, s63, 9')
    a('s_lshl_b32 s64, s%d, 5' % sG)
    a('s_add_u32 s63, s63, s64')
    a('s_add_u32 s63, s63, s76')
    a('s_mul_i32 s63, s63, 1280')
    a('s_add_u32 s63, s63, %s' % hex(XR))
    a('s_cmp_eq_u32 s%d, 2' % sW)
    a('s_cselect_b32 s66, s63, s66')
    a('s_cmp_eq_u32 s%d, 3' % sW)
    a('s_cselect_b32 s66, 0, s66')
    row_load(a, [RQ + 12, 0, 0, 0, R5 + 3], RC, 66)


def quarter_sum(a, sSig, younger=0):
    S, T = GT, ZR
    a('s_waitcnt vmcnt(%d)' % (6 + younger))
    emit(a, unpack10(S, [RQ + e for e in range(4)] + [R5]))
    for k in range(1, 4):
        a('s_waitcnt vmcnt(%d)' % (6 - 2 * k + younger))
        emit(a, unpack10(T, [RQ + 4 * k + e for e in range(4)] + [R5 + k]))
        for i in range(10):
            a('v_add_f32 v%d, v%d, v%d' % (S + i, S + i, T + i))
    A, D = a.newlabel('QA'), a.newlabel('QD')
    a('s_bitcmp1_b32 s%d, 0' % sSig)
    a('s_cbranch_scc1 %s' % A)
    for off, lab in ((0, D), (10240, None)):
        a('ds_write_b128 v4, %s offset:%d' % (vr(S, 4), off))
        a('ds_write_b128 v4, %s offset:%d' % (vr(S + 4, 4), off + 1024))
        a('ds_write_b64 v5, %s offset:%d' % (vr(S + 8, 2), off + 2048))
        if lab:
            a('s_branch %s' % D)
            a.label(A)
    a.label(D)


def g1_phase(a):
    a.label('G1_INIT')
    if STOP == 'front':
        a('v_mov_b32 v16, %d' % L_SYNC)
        a('v_mov_b32 v17, s%d' % sTAG)
        a('ds_write_b32 v16, v17')
        a('s_waitcnt lgkmcnt(0)')
        a('s_barrier')
        endk(a)
        return
    a('s_cmp_eq_u32 s%d, 13' % sM)
    a('s_cselect_b32 s66, 2, 4')
    a('s_cmp_ge_u32 s%d, s66' % sW)
    a('s_cbranch_scc1 G1X_INIT')
    srd(a, RB, pB1, 3456)
    a('v_lshrrev_b32 v14, 5, v%d' % vL)
    a('v_lshlrev_b32 v14, 3, v14')
    a('s_lshl_b32 s66, s%d, 8' % sM)
    a('s_lshl_b32 s67, s%d, 6' % sW)
    a('s_add_u32 s66, s66, s67')
    for q in range(4):
        a('buffer_load_dwordx2 %s, v14, %s, s66 offen offset:%d' % (vr(ZR + 2 * q, 2), R4(RB), 16 * q))
    w1_setup(a)
    lds_gate(a)
    w1_loads(a)
    for ks in range(40):
        a('s_waitcnt vmcnt(%d)' % (39 - ks))
        a('ds_write_b128 v9, %s offset:%d' % (vr(WB + 4 * ks, 4), 1024 * (ks & 3)))
        for hh in range(2):
            a('ds_read_b64_tr_b16 %s, v13 offset:%d' % (vr(WB + 4 * ks + 2 * hh, 2), 1024 * (ks & 3) + 256 * hh))
        if ks & 3 == 3:
            a('s_waitcnt lgkmcnt(3)')
    for i in range(8):
        a('v_lshlrev_b32 v%d, 16, v%d' % (BIAS + 2 * i, ZR + i))
        a('v_and_b32 v%d, s%d, v%d' % (BIAS + 2 * i + 1, sHI, ZR + i))
    a('v_and_b32 v14, 31, v%d' % vL)
    a('v_lshrrev_b32 v15, 5, v%d' % vL)
    a('v_and_b32 v16, 15, v14')
    a('v_xor_b32 v15, v15, v16')
    a('v_lshlrev_b32 v15, 4, v15')
    a('v_lshl_add_u32 v15, v14, 8, v15')
    a('v_add_u32 v15, %d, v15' % L_ZE)
    a('s_waitcnt lgkmcnt(0)')
    a('v_mov_b32 v16, v15')
    for k in range(8):
        a('v_xor_b32 v%d, %d, v16' % (ZA + k, 32 * k))
    c1 = -2.0 * math.sqrt(2.0 / math.pi) * math.log2(math.e)
    a('v_mov_b32 v%d, %s' % (vC1, f2h(c1)))
    a('s_lshl_b32 s66, s%d, 11' % sW)
    a('s_add_u32 s66, s66, %d' % L_H)
    a('v_add_u32 v0, s66, v%d' % vL16)
    stamp(a, 4)
    dstamp(a, 6)
    a.label('G1_COMMON')
    quarter_setup(a)
    a('s_mov_b32 s%d, 0' % sP)
    zf_off(a, sP, 66)
    poll(a, 66, 32, GT)
    stamp(a, 5)
    stage_z(a, sP)
    a('v_mov_b32 v%d, %d' % (GT + 2, L_SYNC))
    a('v_mov_b32 v%d, s%d' % (GT + 3, sTAG))
    a('ds_write_b32 v%d, v%d' % (GT + 2, GT + 3))
    a('s_waitcnt vmcnt(0)')
    lds_flag(a, LF_Z0, sW, GT)
    a('s_cmp_eq_u32 s85, 1')
    a('s_cbranch_scc1 G1X_LOOP')
    lds_spin(a, LF_Z0, 4, GT)
    dstamp(a, 7)
    a('s_setprio 2')
    a.label('G1_LOOP')
    stamp(a, (sP, 4, 8))
    a('s_sub_u32 s77, s%d, 2' % sP)
    pf_off(a, 77, 74)
    a('s_cmp_lt_u32 s%d, 2' % sP)
    a('s_cbranch_scc1 G1_NOPF')
    setexec(a, 56)
    a('buffer_load_dword v%d, v%d, %s, s74 offen sc1' % (GT, vL4, R4(WS)))
    setexec(a, 64)
    a.label('G1_NOPF')
    a('s_cmp_gt_u32 s%d, 7' % sP)
    a('s_cbranch_scc1 G1_NOM1')
    def zread(ks):
        a('ds_read_b128 %s, v%d offset:%d' % (vr(ZR + 4 * (ks % 4), 4), ZA + (ks & 7), (ks >> 3) * 8192))
    for ks in range(3):
        zread(ks)
    for ks in range(40):
        a('s_waitcnt lgkmcnt(%d)' % min(2, 39 - ks))
        c = vr(BIAS, 16) if ks == 0 else vr(ACC, 16)
        a('v_mfma_f32_32x32x16_bf16 %s, %s, %s, %s' % (vr(ACC, 16), vr(WB + 4 * ks, 4), vr(ZR + 4 * (ks % 4), 4), c))
        if ks + 3 < 40:
            zread(ks + 3)
        if 32 <= ks + 3 < 40:
            k = (ks + 3) & 7
            a('v_xor_b32 v%d, %s, v%d' % (ZA + k, hex(L_ZE), ZA + k))
    a.label('G1_NOM1')
    stamp(a, (sP, 4, 9))
    a('s_cmp_lt_u32 s%d, 2' % sP)
    a('s_cbranch_scc1 G1_NOR1')
    poll(a, 74, 56, GT, pre=True)
    quarter_issue(a, 77)
    a.label('G1_NOR1')
    a('s_cmp_gt_u32 s%d, 7' % sP)
    a('s_cbranch_scc1 G1_NOGELU')
    T = ZR
    for t in range(2):
        X = ACC + 8 * t
        for i in range(8):
            a('v_mul_f32 v%d, v%d, v%d' % (T + i, X + i, X + i))
        for i in range(8):
            a('v_fma_f32 v%d, v%d, s%d, v%d' % (T + i, T + i, sC2, vC1))
        for i in range(8):
            a('v_mul_f32 v%d, v%d, v%d' % (T + i, T + i, X + i))
        for i in range(8):
            a('v_exp_f32 v%d, v%d' % (T + i, T + i))
        for i in range(8):
            a('v_add_f32 v%d, 1.0, v%d' % (T + i, T + i))
        for i in range(8):
            a('v_rcp_f32 v%d, v%d' % (T + i, T + i))
        for i in range(8):
            a('v_mul_f32 v%d, v%d, v%d' % (T + i, T + i, X + i))
        o = T + 8 + 4 * t
        for i in range(4):
            a('v_cvt_pk_bf16_f32 v%d, v%d, v%d' % (o + i, T + 2 * i, T + 2 * i + 1))
        a('ds_write_b128 v0, %s offset:%d' % (vr(o, 4), 1024 * t))
    a('v_xor_b32 v0, 0x2000, v0')
    a.label('G1_NOGELU')
    stamp(a, (sP, 4, 10))
    a('s_cmp_lt_u32 s%d, 2' % sP)
    a('s_cbranch_scc1 G1_NOR2')
    a('s_waitcnt lgkmcnt(0)')
    quarter_sum(a, 77)
    a.label('G1_NOR2')
    g1_tail(a, 'G1')
    a.label('G1X_INIT')
    srd(a, RB, pOUT, hex(ROWS_B))
    load_b2(a)
    a('s_add_u32 s70, s%d, 28' % sW)
    z_addr(a, 70, 12, 13, 66)
    a('s_sub_u32 s66, s%d, 2' % sW)
    a('s_lshl_b32 s66, s66, 13')
    a('s_add_u32 s66, s66, %d' % (L_H + 4096))
    a('v_add_u32 v14, s66, v%d' % vL16)
    for e in range(4):
        a('v_mov_b32 v%d, 0' % (16 + e))
    for k in range(4):
        a('ds_write_b128 v14, v[16:19] offset:%d' % (1024 * k))
    a('s_mov_b32 s85, 1')
    a('s_branch G1_COMMON')
    a.label('G1X_LOOP')
    bx = Blk(192, 80, 81)
    a('s_cmp_lt_u32 s%d, 3' % sP)
    a('s_cbranch_scc1 G1X_NOL')
    a('s_sub_u32 s78, s%d, 3' % sP)
    tok_scalars(a, 78, 70, 71, 72, 73)
    lf_task(a, bx, 78, 70, 71, 72, 73, 12, 13)
    a.label('G1X_NOL')
    a('s_cmp_eq_u32 s%d, 10' % sP)
    a('s_cbranch_scc1 G1X_END')
    a('s_cmp_lt_u32 s%d, 2' % sP)
    a('s_cbranch_scc1 G1X_NOR')
    a('s_sub_u32 s77, s%d, 2' % sP)
    pf_off(a, 77, 74)
    poll(a, 74, 56, GT)
    quarter_issue(a, 77)
    tok_scalars(a, 77, 70, 71, 72, 73)
    full_r_issue(a, bx, 77, 70, 71)
    quarter_sum(a, 77, younger=32)
    full_r_sum(a, bx)
    a.label('G1X_NOR')
    g1_tail(a, 'G1X')
    a.label('G1X_END')
    endk(a)


def g1_tail(a, P):
    a('s_cmp_lg_u32 s%d, 0' % sP)
    a('s_cbranch_scc1 %s_NOCV' % P)
    lds_spin(a, LF_CV, 3, GT)
    a.label('%s_NOCV' % P)
    a('s_cmp_gt_u32 s%d, 7' % sP)
    a('s_cbranch_scc1 %s_NOZ' % P)
    a('s_add_u32 s75, s%d, 1' % sP)
    zf_off(a, 75, 66)
    poll(a, 66, 32, GT)
    a('s_cmp_eq_u32 s%d, 7' % sP)
    a('s_cbranch_scc1 %s_NOZ' % P)
    stage_z(a, 75)
    a.label('%s_NOZ' % P)
    a('s_waitcnt vmcnt(0) lgkmcnt(0)')
    stamp(a, (sP, 4, 11))
    a('s_barrier')
    a('s_add_u32 s%d, s%d, 1' % (sP, sP))
    if P == 'G1':
        a('s_cmp_lt_u32 s%d, 10' % sP)
        a('s_cbranch_scc1 G1_LOOP')
        endk(a)
    else:
        a('s_branch G1X_LOOP')


def g2_phase(a):
    a.label('G2_START')
    if STOP == 'front':
        endk(a)
        return
    HF, AC, EP = 32, [64, 80], [16, 24]
    srd(a, RB, pOUT, hex(ROWS_B))
    a('s_sub_u32 s69, s%d, 4' % sW)
    a('s_add_u32 s70, s%d, 16' % sM)
    z_addr(a, 70, 14, 15, 66)
    a('v_add_u32 v0, %d, v%d' % (L_H, vL16))
    a('v_and_b32 v4, 15, v%d' % vL)
    a('v_mul_u32_u24 v4, 1280, v4')
    a('v_bfe_u32 v5, v%d, 4, 1' % vL)
    a('v_lshl_add_u32 v4, v5, 5, v4')
    a('v_lshrrev_b32 v5, 5, v%d' % vL)
    a('v_lshl_add_u32 v4, v5, 4, v4')
    a('v_add_u32 v5, 20480, v4')
    a('v_lshlrev_b32 v13, 3, v%d' % vL)
    a('v_add_u32 v13, %d, v13' % L_RS)
    a('v_add_u32 v6, %d, v%d' % (L_RS, vL16))
    a('s_mov_b32 s%d, 1' % sP)
    a('s_mov_b32 s84, 0')
    b = Blk(16, 80, 81, yraw=[8, 9, 10, 11, 12])
    a.label('G2_LOOP')
    stamp(a, (sP, 4, 8))
    a('s_cmp_lt_u32 s%d, 3' % sP)
    a('s_cbranch_scc1 G2_NOL')
    a('s_sub_u32 s78, s%d, 3' % sP)
    a('s_and_b32 s63, s78, 3')
    a('s_cmp_lg_u32 s63, s69')
    a('s_cbranch_scc1 G2_NOL')
    A, D = a.newlabel('RA'), a.newlabel('RD')
    a('s_bitcmp1_b32 s78, 0')
    a('s_cbranch_scc1 %s' % A)
    for off, lab in ((0, D), (10240, None)):
        for w in range(4):
            R = b.X if w == 0 else 64 + 10 * (w - 1)
            a('ds_read_b128 %s, v6 offset:%d' % (vr(R, 4), off + 2560 * w))
            a('ds_read_b128 %s, v6 offset:%d' % (vr(R + 4, 4), off + 2560 * w + 1024))
            a('ds_read_b64 %s, v13 offset:%d' % (vr(R + 8, 2), off + 2560 * w + 2048))
        if lab:
            a('s_branch %s' % D)
            a.label(A)
    a.label(D)
    tok_scalars(a, 78, 70, 71, 72, 73)
    for w in range(1, 4):
        a('s_waitcnt lgkmcnt(%d)' % (9 - 3 * w))
        R = 64 + 10 * (w - 1)
        for i in range(10):
            a('v_add_f32 v%d, v%d, v%d' % (b.X + i, b.X + i, R + i))
    lf_task(a, b, 78, 70, 71, 72, 73, 14, 15, defer=84)
    a.label('G2_NOL')
    stamp(a, (sP, 4, 9))
    a('s_cmp_gt_u32 s%d, 8' % sP)
    a('s_cbranch_scc1 G2_NOM2')
    for ks in range(8):
        a('ds_read_b128 %s, v0 offset:%d' % (vr(HF + 4 * ks, 4), 1024 * ks))
    a('v_xor_b32 v0, 0x2000, v0')
    a('s_sub_u32 s77, s%d, 1' % sP)
    part_off(a, 77, 75)
    a('s_mul_i32 s63, s%d, 40960' % sM)
    a('s_add_u32 s75, s75, s63')
    a('s_mul_i32 s63, s69, 320')
    a('s_add_u32 s75, s75, s63')
    pf_off(a, 77, 74)
    a('s_lshl_b32 s63, s%d, 4' % sM)
    a('s_add_u32 s74, s74, s63')
    a('s_lshl_b32 s63, s69, 2')
    a('s_add_u32 s74, s74, s63')
    def m2(sc1):
        c = ' sc1' if sc1 else ''
        def epi(j):
            X, E = AC[j & 1], EP[j & 1]
            o = ['v_cvt_pk_bf16_f32 v%d, v%d, v%d' % (E + i, X + 2 * i, X + 2 * i + 1) for i in range(8)]
            o += ['v_permlane16_swap_b32 v%d, v%d' % (E + i, E + 4 + i) for i in range(4)]
            o += ['buffer_store_dwordx4 %s, v4, %s, s75 offen offset:%d%s' % (vr(E, 4), R4(WS), 64 * j, c),
                  'buffer_store_dwordx4 %s, v5, %s, s75 offen offset:%d%s' % (vr(E + 4, 4), R4(WS), 64 * j, c)]
            return o
        pend = []
        for j in range(5):
            for ks in range(8):
                if j == 0:
                    a('s_waitcnt lgkmcnt(%d)' % (7 - ks))
                cc = '0' if ks == 0 else vr(AC[j & 1], 16)
                a('v_mfma_f32_32x32x16_bf16 %s, %s, %s, %s' % (vr(AC[j & 1], 16), vr(WB + (j * 8 + ks) * 4, 4), vr(HF + 4 * ks, 4), cc))
                if j == 1 and ks == 0:
                    N = a.newlabel('NZF')
                    a('s_cmp_eq_u32 s84, 0')
                    a('s_cbranch_scc1 %s' % N)
                    a('s_waitcnt vmcnt(0)')
                    flag_store(a, 84, EP[1], sc1)
                    a('s_mov_b32 s84, 0')
                    a.label(N)
                if ks >= 1 and pend:
                    n = 2 if ks < 7 else len(pend)
                    emit(a, pend[:n]); pend = pend[n:]
            pend = epi(j)
        emit(a, pend)
        a('s_waitcnt vmcnt(0)')
        flag_store(a, 74, EP[1], sc1)
    both(a, m2)
    a.label('G2_NOM2')
    stamp(a, (sP, 4, 10))
    a('s_sub_u32 s63, s%d, 2' % sP)
    a('s_cmp_lg_u32 s63, s69')
    a('s_cbranch_scc1 G2_NOY')
    a('s_mov_b32 s78, s63')
    tok_scalars(a, 78, 70, 71, 72, 73)
    a('s_add_u32 s67, s71, %s' % hex(YR))
    row_load(a, b.YR, WS, 67)
    a.label('G2_NOY')
    a('s_cmp_eq_u32 s%d, 10' % sP)
    a('s_cbranch_scc1 G2_END')
    a('s_barrier')
    a('s_add_u32 s%d, s%d, 1' % (sP, sP))
    a('s_branch G2_LOOP')
    a.label('G2_END')
    endk(a)


def kernel():
    a = Asm()
    c1 = -2.0 * math.sqrt(2.0 / math.pi) * math.log2(math.e)
    a('s_cmp_ge_u32 s2, 256')
    a('s_cbranch_scc1 END')
    a('s_load_dwordx2 s[26:27], s[0:1], 104')
    a('s_load_dwordx4 s[4:7], s[0:1], 0')
    a('s_load_dwordx4 s[8:11], s[0:1], 16')
    a('s_load_dwordx4 s[12:15], s[0:1], 32')
    a('s_load_dwordx4 s[16:19], s[0:1], 56')
    a('s_load_dwordx4 s[20:23], s[0:1], 72')
    a('s_load_dwordx2 s[24:25], s[0:1], 88')
    a('v_lshrrev_b32 v1, 6, v0')
    a('v_readfirstlane_b32 s%d, v1' % sW)
    a('v_and_b32 v%d, 63, v0' % vL)
    a('v_lshlrev_b32 v%d, 4, v%d' % (vL16, vL))
    a('v_lshlrev_b32 v%d, 2, v%d' % (vL4, vL))
    a('s_and_b32 s%d, s2, 7' % sX)
    a('s_lshr_b32 s%d, s2, 3' % sI)
    a('s_and_b32 s%d, s%d, 15' % (sM, sI))
    a('s_lshr_b32 s%d, s%d, 4' % (sG, sI))
    a('s_lshl_b32 s63, s%d, 1' % sX)
    a('s_add_u32 s%d, s%d, s63' % (sG, sG))
    a('s_getreg_b32 s%d, hwreg(HW_REG_XCC_ID, 0, 3)' % sXCC)
    a('s_mov_b32 s%d, %d' % (sLIM, LIMIT))
    a('s_mov_b32 s%d, 0xffff0000' % sHI)
    a('s_mov_b32 s%d, 0x3acccccd' % sINV)
    a('s_mov_b32 s%d, 0x3727c5ac' % sEPS)
    a('s_mov_b32 s%d, %s' % (sC2, f2h(c1 * 0.044715)))
    a('s_mov_b32 s85, 0')
    a('s_mov_b32 s%d, 0' % sSLOW)
    if STAMP:
        a('v_mov_b32 v%d, 0' % vST)
    for r in (8, 12, 13):
        a('v_mov_b32 v%d, 0' % r)
    a('v_add_u32 v4, %d, v%d' % (L_SYNC, vL4))
    a('ds_write_b32 v4, v8')
    a('s_waitcnt lgkmcnt(0)')
    srd(a, WS, pWS, '0x10000000')
    for r in (RA, RB, RC, RD):
        a('s_mov_b64 s[%d:%d], s[%d:%d]' % (r, r + 1, WS, WS + 1))
        a('s_mov_b64 s[%d:%d], s[%d:%d]' % (r + 2, r + 3, WS + 2, WS + 3))
    stamp(a, 0)
    if DBG:
        a('s_load_dwordx2 s[92:93], s[0:1], 96')
        a('s_mov_b32 s94, 256')
        a('s_mov_b32 s95, 0x20000')
        a('s_waitcnt lgkmcnt(0)')
        dstamp(a, 0, True)
        dstamp(a, 1)
    a('s_sub_u32 s63, s%d, 4' % sW)
    a('s_cmp_lt_u32 s63, 3')
    a('s_cbranch_scc1 CONVW')
    kv_phase(a)
    conv_phase(a)
    s_phase(a)
    g1_phase(a)
    g2_phase(a)
    a.label('END')
    a('s_endpgm')
    return a.lines


def build():
    ref = open('cdna_kernels/%s.s.ref' % NAME).read().split('\n')
    head = [l for l in ref if l.startswith(';') and '@launch' not in l and 'Override launch' not in l and 'grid=ceil' not in l]
    s = '\n'.join(head) + '\n'
    s += '; @launch grid=(256,1,1) block=(512,1,1) lds=163840\n'
    s += '.amdgcn_target "amdgcn-amd-amdhsa--gfx950"\n.text\n'
    s += kernel_text(NAME + '_kernel', kernel(), 256)
    s += '.section .rodata,"a"\n'
    s += descriptor_text(NAME + '_kernel', 256, 102)
    return s


if __name__ == '__main__':
    for n in range(320):
        assert (n * 3277) >> 16 == n // 20
    for n in range(9):
        assert (n * 43) >> 7 == n // 3
    open(sys.argv[1], 'w').write(build())
```

```python
import sys, os, math, struct
from asmlib import *

NAME = 'interleave_layers__ssm_conv_h3__mixer_channel_mlp__prompt'
STAMP = int(os.environ.get('STAMP', '0'))
FORCE_SLOW = int(os.environ.get('FORCE_SLOW', '0'))
STOP = os.environ.get('STOP', '')
LIMIT = 20000
DBG = int(os.environ.get('DBG', '0'))
NOW = int(os.environ.get('NOW', '0'))

EPOCH, HELLO, KVFA, KVFB, YF, ZF, PF = 0, 0x1000, 0x2000, 0x4000, 0x6000, 0xA000, 0x12000
KVA, KVB, YT, XR, YR, ZI, PART = 0x100000, 0x400000, 0x700000, 0xA00000, 0xD00000, 0x1000000, 0x1400000
STAMPS = 0x8000000
ROWS_B = 2048 * 1280
L_U, L_SYNC, L_W2, L_ZE, L_H, L_RS = 49920, 63744, 65536, 106496, 147456, 40960
HSTR = 4160
LF_Z0, LF_CV, LF_U = L_SYNC + 16, L_SYNC + 32, L_SYNC + 48
pQ, pK, pV, pSH, pH, pD, pW1, pB1, pW2, pB2, pOUT, pWS = 4, 6, 8, 10, 12, 14, 16, 18, 20, 22, 24, 26
sX, sW, sI, sM = 28, 29, 30, 31
WS, RA, RB, RC, RD = 32, 36, 40, 44, 48
sG, sTAG, sXCC, sSLOW, sP, sLIM, sCNT = 52, 53, 54, 55, 56, 57, 58
sHI, sINV, sEPS, sC2 = 59, 60, 61, 62
sST = 86
vL, vL16, vL4, vC1, vST = 1, 2, 3, 6, 7

f2h = lambda x: hex(struct.unpack('<I', struct.pack('<f', x))[0])
R4 = lambda d: 's[%d:%d]' % (d, d + 3)


def srd(a, d, p, size, add=None):
    if add is None:
        a('s_mov_b32 s%d, s%d' % (d, p)); a('s_mov_b32 s%d, s%d' % (d + 1, p + 1))
    else:
        a('s_add_u32 s%d, s%d, %s' % (d, p, add)); a('s_addc_u32 s%d, s%d, 0' % (d + 1, p + 1))
    a('s_mov_b32 s%d, %s' % (d + 2, size)); a('s_mov_b32 s%d, 0x20000' % (d + 3))


def stamp(a, idx):
    if not STAMP:
        return
    a('s_memrealtime s[%d:%d]' % (sST, sST + 1))
    if isinstance(idx, tuple):
        a('s_mul_i32 s88, s%d, %d' % (idx[0], idx[1]))
        a('s_add_u32 s88, s88, %d' % idx[2])
        a('s_lshl_b64 exec, 1, s88')
        a('s_waitcnt lgkmcnt(0)')
        a('v_mov_b32 v%d, s%d' % (vST, sST))
        a('s_mov_b64 exec, -1')
    else:
        a('s_waitcnt lgkmcnt(0)')
        a('v_writelane_b32 v%d, s%d, %d' % (vST, sST, idx))


def dstamp(a, slot):
    if not DBG:
        return
    L = a.newlabel('DS')
    a('s_cmp_eq_u32 s91, 0')
    a('s_cbranch_scc1 %s' % L)
    a('s_memrealtime s[%d:%d]' % (sST, sST + 1))
    a('s_waitcnt lgkmcnt(0)')
    a('v_mov_b32 v%d, s%d' % (vST, sST))
    a('s_mov_b64 exec, 1')
    a('buffer_store_dword v%d, off, s[92:95], 0 offset:%d' % (vST, 4 * slot))
    a('s_mov_b64 exec, -1')
    a.label(L)


def endk(a):
    dstamp(a, 15)
    if STAMP:
        a('s_waitcnt vmcnt(0)')
        stamp(a, 63)
        a('s_lshl_b32 s63, s2, 3')
        a('s_add_u32 s63, s63, s%d' % sW)
        a('s_lshl_b32 s63, s63, 8')
        a('s_add_u32 s63, s63, %s' % hex(STAMPS))
        a('s_mov_b64 exec, -1')
        a('buffer_store_dword v%d, v%d, %s, s63 offen' % (vST, vL4, R4(WS)))
    a('s_endpgm')


def setexec(a, n):
    if n == 64:
        a('s_mov_b64 exec, -1')
    elif n <= 6:
        a('s_mov_b64 exec, %d' % ((1 << n) - 1))
    elif n <= 32:
        a('s_mov_b32 exec_lo, %s' % ('-1' if n == 32 else hex((1 << n) - 1))); a('s_mov_b32 exec_hi, 0')
    else:
        a('s_mov_b32 exec_lo, -1'); a('s_mov_b32 exec_hi, %s' % hex((1 << (n - 32)) - 1))


def poll(a, soff, nl, vT, pre=False):
    L, C, D = a.newlabel('PL'), a.newlabel('PC'), a.newlabel('PD')
    a('s_mov_b32 s%d, 0' % sCNT)
    setexec(a, nl)
    if pre:
        a('s_branch %s' % C)
    a.label(L)
    a('buffer_load_dword v%d, v%d, %s, s%d offen sc1' % (vT, vL4, R4(WS), soff))
    a.label(C)
    a('s_add_u32 s%d, s%d, 1' % (sCNT, sCNT))
    a('s_waitcnt vmcnt(0)')
    a('v_cmp_ne_u32 vcc, s%d, v%d' % (sTAG, vT))
    a('s_cbranch_vccz %s' % D)
    a('s_cmp_lt_u32 s%d, s%d' % (sCNT, sLIM))
    a('s_cbranch_scc1 %s' % L)
    a('s_mov_b32 s%d, 0' % sLIM)
    a.label(D)
    setexec(a, 64)


def flag_store(a, soff, vT, sc1):
    a('v_mov_b32 v%d, s%d' % (vT, sTAG))
    a('s_mov_b64 exec, 1')
    a('buffer_store_dword v%d, off, %s, s%d%s' % (vT, R4(WS), soff, ' sc1' if sc1 else ''))
    a('s_mov_b64 exec, -1')


def hello_check(a, vT, st):
    L, D = a.newlabel('HL'), a.newlabel('HD')
    a('s_lshl_b32 s%d, s%d, 7' % (st, sX))
    a('s_add_u32 s%d, s%d, %d' % (st, st, HELLO))
    a('s_mov_b32 s%d, 0' % sCNT)
    setexec(a, 32)
    a.label(L)
    a('buffer_load_dword v%d, v%d, %s, s%d offen sc1' % (vT, vL4, R4(WS), st))
    a('s_add_u32 s%d, s%d, 1' % (sCNT, sCNT))
    a('s_waitcnt vmcnt(0)')
    a('v_xor_b32 v%d, s%d, v%d' % (vT, sTAG, vT))
    a('v_cmp_lt_u32 vcc, 15, v%d' % vT)
    a('v_and_b32 v%d, 1, v%d' % (vT + 1, vT))
    a('v_cmp_ne_u32 s[64:65], 0, v%d' % (vT + 1))
    a('s_or_b64 vcc, vcc, s[64:65]')
    a('s_cbranch_vccz %s' % D)
    a('s_cmp_lt_u32 s%d, s%d' % (sCNT, sLIM))
    a('s_cbranch_scc1 %s' % L)
    a('s_mov_b32 s%d, 0' % sLIM)
    a.label(D)
    a('s_lshl_b32 s%d, s%d, 1' % (st, sXCC))
    a('v_cmp_ne_u32 vcc, s%d, v%d' % (st, vT))
    a('s_cmp_lg_u64 vcc, 0')
    a('s_cselect_b32 s%d, 1, %d' % (sSLOW, FORCE_SLOW))
    setexec(a, 64)


def get_tag(a, vE):
    a('v_readfirstlane_b32 s%d, v%d' % (sTAG, vE))
    a('s_mul_i32 s%d, s%d, 0x9E3779B1' % (sTAG, sTAG))
    a('s_add_u32 s%d, s%d, 0x7F4A7C15' % (sTAG, sTAG))


def lds_spin(a, addr, n, vT):
    L, D = a.newlabel('SL'), a.newlabel('SD')
    a('v_mov_b32 v%d, %d' % (vT + 4, addr))
    a('s_mov_b32 s%d, 0' % sCNT)
    a.label(L)
    a('ds_read_b128 %s, v%d' % (vr(vT, 4), vT + 4))
    a('s_add_u32 s%d, s%d, 1' % (sCNT, sCNT))
    a('s_waitcnt lgkmcnt(0)')
    for k in range(1, n):
        a('v_and_b32 v%d, v%d, v%d' % (vT, vT, vT + k))
    a('v_cmp_eq_u32 vcc, 0, v%d' % vT)
    a('s_cbranch_vccz %s' % D)
    a('s_cmp_lt_u32 s%d, %d' % (sCNT, 4 * LIMIT))
    a('s_cbranch_scc1 %s' % L)
    a.label(D)


def lds_flag(a, base, sIdx, vT):
    a('s_lshl_b32 s64, s%d, 2' % sIdx)
    a('s_add_u32 s64, s64, %d' % base)
    a('v_mov_b32 v%d, s64' % vT)
    a('v_mov_b32 v%d, 1' % (vT + 1))
    a('ds_write_b32 v%d, v%d' % (vT, vT + 1))


def wave_sum(v):
    return ['v_add_f32 v%d, v%d, v%d row_shr:1 row_mask:0xf bank_mask:0xf bound_ctrl:0' % (v, v, v),
            'v_add_f32 v%d, v%d, v%d row_shr:2 row_mask:0xf bank_mask:0xf bound_ctrl:0' % (v, v, v),
            'v_add_f32 v%d, v%d, v%d row_shr:4 row_mask:0xf bank_mask:0xf bound_ctrl:0' % (v, v, v),
            'v_add_f32 v%d, v%d, v%d row_shr:8 row_mask:0xf bank_mask:0xf bound_ctrl:0' % (v, v, v),
            'v_add_f32 v%d, v%d, v%d row_bcast:15 row_mask:0xa bank_mask:0xf' % (v, v, v),
            'v_add_f32 v%d, v%d, v%d row_bcast:31 row_mask:0xc bank_mask:0xf' % (v, v, v)]


def layernorm(X, D, T, sm, sr_):
    o = []
    o.append('v_add_f32 v%d, v%d, v%d' % (T, X, X + 1))
    o.append('v_add_f32 v%d, v%d, v%d' % (T + 1, X + 2, X + 3))
    for i in range(4, 10, 2):
        o.append('v_add_f32 v%d, v%d, v%d' % (T, T, X + i))
        o.append('v_add_f32 v%d, v%d, v%d' % (T + 1, T + 1, X + i + 1))
    o.append('v_add_f32 v%d, v%d, v%d' % (T, T, T + 1))
    o += wave_sum(T)
    o.append('v_mul_f32 v%d, s%d, v%d' % (T, sINV, T))
    o.append('v_readlane_b32 s%d, v%d, 63' % (sm, T))
    for i in range(10):
        o.append('v_subrev_f32 v%d, s%d, v%d' % (D + i, sm, X + i))
    o.append('v_mul_f32 v%d, v%d, v%d' % (T, D, D))
    o.append('v_mul_f32 v%d, v%d, v%d' % (T + 1, D + 1, D + 1))
    for i in range(2, 10, 2):
        o.append('v_fmac_f32 v%d, v%d, v%d' % (T, D + i, D + i))
        o.append('v_fmac_f32 v%d, v%d, v%d' % (T + 1, D + i + 1, D + i + 1))
    o.append('v_add_f32 v%d, v%d, v%d' % (T, T, T + 1))
    o += wave_sum(T)
    o.append('v_mov_b32 v%d, s%d' % (T + 1, sEPS))
    o.append('v_fmac_f32 v%d, s%d, v%d' % (T + 1, sINV, T))
    o.append('v_rsq_f32 v%d, v%d' % (T, T + 1))
    o.append('v_readlane_b32 s%d, v%d, 63' % (sr_, T))
    return o


def unpack10(dst, src):
    o = []
    for i in range(5):
        o.append('v_lshlrev_b32 v%d, 16, v%d' % (dst + 2 * i, src[i]))
        o.append('v_and_b32 v%d, s%d, v%d' % (dst + 2 * i + 1, sHI, src[i]))
    return o


def pack10(dst, src):
    return ['v_cvt_pk_bf16_f32 v%d, v%d, v%d' % (dst[i], src + 2 * i, src + 2 * i + 1) for i in range(5)]


class Blk:
    def __init__(self, B, sm, sr_, yraw=None):
        self.XR = [B, B + 1, B + 2, B + 3, B + 4]
        self.YR = yraw or [B + 8, B + 9, B + 10, B + 11, B + 5]
        self.ZP = [B + 12, B + 13, B + 14, B + 15, B + 6]
        self.X, self.Y, self.D, self.T = B + 16, B + 26, B + 36, B + 46
        self.sm, self.sr = sm, sr_


def gate_ln_z(b):
    o = []
    o += unpack10(b.Y, b.YR)
    o += layernorm(b.X, b.D, b.T, b.sm, b.sr)
    for i in range(10):
        o.append('v_mul_f32 v%d, s%d, v%d' % (b.D + i, b.sr, b.D + i))
    for i in range(10):
        o.append('v_fmac_f32 v%d, v%d, v%d' % (b.X + i, b.D + i, b.Y + i))
    o += pack10(b.XR, b.X)
    o += unpack10(b.X, b.XR)
    o += layernorm(b.X, b.D, b.T, b.sm, b.sr)
    for i in range(10):
        o.append('v_mul_f32 v%d, s%d, v%d' % (b.X + i, b.sr, b.D + i))
    o += layernorm(b.X, b.D, b.T, b.sm, b.sr)
    for i in range(10):
        o.append('v_mul_f32 v%d, s%d, v%d' % (b.D + i, b.sr, b.D + i))
    o += pack10(b.ZP, b.D)
    return o


def row_store(a, regs, srdn, soff, sc1):
    c = ' sc1' if sc1 else ''
    a('buffer_store_dwordx4 %s, v%d, %s, s%d offen%s' % (vr(regs[0], 4), vL16, R4(srdn), soff, c))
    a('buffer_store_dword v%d, v%d, %s, s%d offen offset:1024%s' % (regs[4], vL4, R4(srdn), soff, c))


def row_load(a, regs, srdn, soff, sc1=True):
    c = ' sc1' if sc1 else ''
    a('buffer_load_dwordx4 %s, v%d, %s, s%s offen%s' % (vr(regs[0], 4), vL16, R4(srdn), soff, c))
    a('buffer_load_dword v%d, v%d, %s, s%s offen offset:1024%s' % (regs[4], vL4, R4(srdn), soff, c))


def z_addr(a, sj, va, vb, st):
    a('s_and_b32 s%d, s%d, 15' % (st, sj))
    a('s_lshl_b32 s%d, s%d, 8' % (st + 1, sj))
    a('v_and_b32 v%d, 15, v%d' % (va, vL))
    a('v_xor_b32 v%d, s%d, v%d' % (va, st, va))
    a('v_lshlrev_b32 v%d, 4, v%d' % (va, va))
    a('v_lshrrev_b32 v%d, 4, v%d' % (vb, vL))
    a('v_lshl_add_u32 v%d, v%d, 13, v%d' % (va, vb, va))
    a('v_add_u32 v%d, s%d, v%d' % (va, st + 1, va))
    a('v_lshrrev_b32 v%d, 2, v%d' % (vb, vL))
    a('v_xor_b32 v%d, s%d, v%d' % (vb, st, vb))
    a('v_lshlrev_b32 v%d, 2, v%d' % (vb, vb))
    a('v_and_or_b32 v%d, v%d, 3, v%d' % (vb, vL, vb))
    a('v_lshlrev_b32 v%d, 2, v%d' % (vb, vb))
    a('s_add_u32 s%d, s%d, 0x8000' % (st + 1, st + 1))
    a('v_add_u32 v%d, s%d, v%d' % (vb, st + 1, vb))


def z_store(a, b, va, vb, soff, sc1):
    c = ' sc1' if sc1 else ''
    a('buffer_store_dwordx4 %s, v%d, %s, s%d offen%s' % (vr(b.ZP[0], 4), va, R4(WS), soff, c))
    a('buffer_store_dword v%d, v%d, %s, s%d offen%s' % (b.ZP[4], vb, R4(WS), soff, c))


def both(a, fn):
    S, D = a.newlabel('BS'), a.newlabel('BD')
    a('s_cmp_lg_u32 s%d, 0' % sSLOW)
    a('s_cbranch_scc1 %s' % S)
    fn(False)
    a('s_branch %s' % D)
    a.label(S)
    fn(True)
    a.label(D)


def emit(a, lst):
    for l in lst:
        a(l)


def zip2(x, y):
    o = []
    for p, q in zip(x, y):
        o += [p, q]
    return o


vW2O = 8
WB = 96


def w2_setup(a, sWp):
    srd(a, RA, pW2, 1728 * 1280)
    a('s_mul_i32 s70, s%d, 10240' % sWp)
    a('s_add_u32 s70, s70, %d' % L_W2)
    a('s_mul_i32 s71, s%d, %d' % (sM, 128 * 1280))
    a('s_mul_i32 s72, s%d, 320' % sWp)
    a('s_add_u32 s71, s71, s72')
    a('s_movk_i32 s72, 3277')
    a('s_movk_i32 s73, 960')
    for q in range(5):
        a('v_add_u32 v14, %d, v%d' % (64 * q, vL))
        a('v_mul_u32_u24 v15, s72, v14')
        a('v_lshrrev_b32 v15, 16, v15')
        a('v_lshlrev_b32 v14, 4, v14')
        a('v_mad_u32_u24 v14, v15, s73, v14')
        a('v_add_u32 v%d, s71, v14' % (vW2O + q))
    a('v_lshrrev_b32 v14, 5, v%d' % vL)
    a('v_bfe_u32 v15, v%d, 2, 2' % vL)
    a('v_lshl_add_u32 v14, v14, 2, v15')
    a('v_mul_u32_u24 v13, 320, v14')
    a('v_bfe_u32 v14, v%d, 4, 1' % vL)
    a('v_lshl_add_u32 v13, v14, 5, v13')
    a('v_and_b32 v14, 1, v%d' % vL)
    a('v_lshl_add_u32 v13, v14, 4, v13')
    a('v_bfe_u32 v14, v%d, 1, 1' % vL)
    a('v_lshl_add_u32 v13, v14, 3, v13')
    a('v_add_u32 v13, s70, v13')
    a('v_add_u32 v0, s70, v%d' % vL16)


def w2_loads():
    o = []
    if NOW:
        return o
    for ks in range(8):
        for q in range(5):
            g = ['s_mov_b32 s71, %d' % (ks * 20480)] if q == 0 else []
            g.append('buffer_load_dwordx4 %s, v%d, %s, s71 offen' % (vr(WB + (q * 8 + ks) * 4, 4), vW2O + q, R4(RA)))
            o.append(g)
    return o


def w2_xpose(a, waited):
    for ks in range(8):
        h = ks & 1
        if not waited:
            a('s_waitcnt vmcnt(%d)' % (35 - 5 * ks))
        for q in range(5):
            a('ds_write_b128 v0, %s offset:%d' % (vr(WB + (q * 8 + ks) * 4, 4), 5120 * h + 1024 * q))
        for j in range(5):
            for hh in range(2):
                a('ds_read_b64_tr_b16 %s, v13 offset:%d' % (vr(WB + (j * 8 + ks) * 4 + 2 * hh, 2), 5120 * h + 2560 * hh + 64 * j))
        a('s_waitcnt lgkmcnt(4)')
    a('s_waitcnt lgkmcnt(0)')


def w1_setup(a):
    srd(a, RA, pW1, 640 * 3456)
    a('s_mul_i32 s70, s%d, 10240' % sW)
    a('s_add_u32 s70, s70, %d' % L_ZE)
    a('s_lshl_b32 s71, s%d, 8' % sM)
    a('s_lshl_b32 s72, s%d, 6' % sW)
    a('s_add_u32 s71, s71, s72')
    a('v_lshrrev_b32 v14, 2, v%d' % vL)
    a('v_mul_u32_u24 v8, 3456, v14')
    a('v_and_b32 v14, 3, v%d' % vL)
    a('v_lshl_add_u32 v8, v14, 4, v8')
    a('v_add_u32 v8, s71, v8')
    a('v_lshrrev_b32 v14, 5, v%d' % vL)
    a('v_bfe_u32 v15, v%d, 2, 2' % vL)
    a('v_lshl_add_u32 v14, v14, 3, v15')
    a('v_lshlrev_b32 v13, 6, v14')
    a('v_bfe_u32 v14, v%d, 4, 1' % vL)
    a('v_lshl_add_u32 v13, v14, 5, v13')
    a('v_and_b32 v14, 3, v%d' % vL)
    a('v_lshl_add_u32 v13, v14, 3, v13')
    a('v_add_u32 v13, s70, v13')
    a('v_add_u32 v9, s70, v%d' % vL16)


def w1_loads(a):
    for ks in range(40):
        a('s_mov_b32 s71, %d' % (ks * 55296))
        a('buffer_load_dwordx4 %s, v8, %s, s71 offen' % (vr(WB + 4 * ks, 4), R4(RA)))


def kv_phase(a):
    K0, V0, SH, OUT = 16, 30, 40, 48
    KF, TP, AC = 56, 64, 68
    a.label('KV')
    a('buffer_load_dword v4, off, %s, 0 sc1' % R4(WS))
    srd(a, RB, pK, hex(ROWS_B))
    srd(a, RC, pV, hex(ROWS_B))
    srd(a, RD, pSH, 5120)
    a('s_min_u32 s63, s%d, 4' % sW)
    a('s_mul_i32 s64, s%d, 80' % sX)
    a('s_lshl_b32 s65, s63, 4')
    a('s_add_u32 s64, s64, s65')
    a('s_mul_i32 s65, s%d, %d' % (sI, 64 * 1280))
    a('s_lshl_b32 s66, s64, 1')
    a('s_add_u32 s65, s65, s66')
    a('v_and_b32 v14, 15, v%d' % vL)
    a('v_lshrrev_b32 v15, 4, v%d' % vL)
    a('v_mul_u32_u24 v10, 5120, v14')
    a('v_lshl_add_u32 v10, v15, 3, v10')
    a('v_add_u32 v10, s65, v10')
    a('v_subrev_u32 v9, 3840, v10')
    for r in range(3):
        a('buffer_load_dwordx2 %s, v9, %s, 0 offen offset:%d' % (vr(K0 + 2 * r, 2), R4(RB), 1280 * r))
    for r in range(4):
        a('buffer_load_dwordx2 %s, v10, %s, 0 offen offset:%d' % (vr(K0 + 6 + 2 * r, 2), R4(RB), 1280 * r))
    for r in range(4):
        a('buffer_load_dwordx2 %s, v10, %s, 0 offen offset:%d' % (vr(V0 + 2 * r, 2), R4(RC), 1280 * r))
    a('v_lshlrev_b32 v11, 5, v15')
    a('s_lshl_b32 s66, s64, 3')
    a('buffer_load_dwordx4 %s, v11, %s, s66 offen' % (vr(SH, 4), R4(RD)))
    a('buffer_load_dwordx4 %s, v11, %s, s66 offen offset:16' % (vr(SH + 4, 4), R4(RD)))
    a('s_barrier')
    a('v_lshlrev_b32 v5, 14, v15')
    a('v_lshlrev_b32 v14, 3, v14')
    a('v_sub_u32 v5, v5, v14')
    a('v_add_u32 v5, 120, v5')
    a('s_lshl_b32 s67, s64, 12')
    a('s_lshl_b32 s66, s%d, 7' % sI)
    a('s_sub_u32 s67, s67, s66')
    a('s_add_u32 s67, s67, 3968')
    a('s_mul_i32 s68, s%d, 5' % sX)
    a('s_add_u32 s68, s68, s63')
    a('s_lshl_b32 s68, s68, 7')
    a('s_lshl_b32 s66, s%d, 2' % sI)
    a('s_add_u32 s68, s68, s66')
    a('s_waitcnt vmcnt(13)')
    get_tag(a, 4)
    a('s_cmp_lg_u32 s%d, 7' % sW)
    a('s_cbranch_scc1 KV_NOH')
    a('s_lshl_b32 s66, s%d, 1' % sXCC)
    a('s_xor_b32 s66, s66, s%d' % sTAG)
    a('v_mov_b32 v4, s66')
    a('s_lshl_b32 s66, s%d, 7' % sX)
    a('s_lshl_b32 s69, s%d, 2' % sI)
    a('s_add_u32 s66, s66, s69')
    a('s_mov_b64 exec, 1')
    a('s_add_u32 s66, s66, %d' % HELLO)
    a('buffer_store_dword v4, off, %s, s66 sc1' % R4(WS))
    a('s_mov_b64 exec, -1')
    a('s_waitcnt vmcnt(1)')
    a('s_branch KV_GO')
    a.label('KV_NOH')
    a('s_waitcnt vmcnt(0)')
    a.label('KV_GO')
    stamp(a, 1)
    for e in range(4):
        d = e >> 1
        def unp(dst, src):
            if e & 1:
                a('v_and_b32 v%d, s%d, v%d' % (dst, sHI, src))
            else:
                a('v_lshlrev_b32 v%d, 16, v%d' % (dst, src))
        for r in range(7):
            unp(KF + r, K0 + 2 * r + d)
        for j in range(4):
            src = SH + 2 * e + (j >> 1)
            if j & 1:
                a('v_and_b32 v%d, s%d, v%d' % (TP + j, sHI, src))
            else:
                a('v_lshlrev_b32 v%d, 16, v%d' % (TP + j, src))
        for t in range(4):
            a('v_mul_f32 v%d, v%d, v%d' % (AC + t, TP + 3, KF + t))
        for jj in (2, 1, 0):
            for t in range(4):
                a('v_fmac_f32 v%d, v%d, v%d' % (AC + t, TP + jj, KF + 3 + t - jj))
        for t in range(4):
            unp(KF + t, V0 + 2 * t + d)
        for t in range(4):
            a('v_mul_f32 v%d, v%d, v%d' % (AC + t, AC + t, KF + t))
        a('v_cvt_pk_bf16_f32 v%d, v%d, v%d' % (OUT + 2 * e, AC + 3, AC + 2))
        a('v_cvt_pk_bf16_f32 v%d, v%d, v%d' % (OUT + 2 * e + 1, AC + 1, AC))
        a('s_add_u32 s66, s67, %s' % hex(KVA + 4096 * e))
        a('buffer_store_dwordx2 %s, v5, %s, s66 offen' % (vr(OUT + 2 * e, 2), R4(WS)))
    a('s_lshl_b32 s66, s%d, 1' % sXCC)
    a('s_add_u32 s66, s66, s%d' % sTAG)
    a('v_mov_b32 v4, s66')
    a('s_add_u32 s66, s68, %d' % KVFA)
    a('s_waitcnt vmcnt(0)')
    a('s_mov_b64 exec, 1')
    a('buffer_store_dword v4, off, %s, s66' % R4(WS))
    a('s_mov_b64 exec, -1')
    stamp(a, 2)
    dstamp(a, 2)
    a('s_cmp_lt_u32 s%d, 14' % sM)
    a('s_cbranch_scc1 KV_MEM')
    a('v_mov_b32 v4, s%d' % sTAG)
    a('v_mov_b32 v14, %d' % L_SYNC)
    a('ds_write_b32 v14, v4')
    a('s_waitcnt lgkmcnt(0)')
    a('s_barrier')
    a.label('KV_MEM')
    hello_check(a, 14, 66)
    a('s_cmp_eq_u32 s%d, 0' % sSLOW)
    a('s_cbranch_scc1 KV_DONE')
    for e in range(4):
        a('s_add_u32 s66, s67, %s' % hex(KVB + 4096 * e))
        a('buffer_store_dwordx2 %s, v5, %s, s66 offen sc1' % (vr(OUT + 2 * e, 2), R4(WS)))
    a('s_add_u32 s66, s68, %d' % KVFB)
    a('s_waitcnt vmcnt(0)')
    flag_store(a, 66, 4, True)
    a.label('KV_DONE')
    stamp(a, 3)
    a('s_cmp_ge_u32 s%d, 14' % sM)
    a('s_cbranch_scc1 S_MAIN')
    a('s_cmp_eq_u32 s%d, 7' % sW)
    a('s_cbranch_scc1 G2_W7')
    a('s_branch G1_INIT')


class LdsQ:
    def __init__(self, a):
        self.a, self.q = a, []
    def issue(self, key, text):
        self.a(text); self.q.append(key)
    def wait(self, keys):
        last = -1
        for i, k in enumerate(self.q):
            if k in keys:
                last = i
        if last >= 0:
            n = len(self.q) - 1 - last
            self.a('s_waitcnt lgkmcnt(%d)' % n)
            self.q = self.q[last + 1:]


CACC, CB, CA, CE = 16, 32, 64, 80
vCA, vCB = 14, 15
CF0, CF1 = 36, 40


def lds_gate(a):
    lds_spin(a, LF_U, 3, 16)


def conv_part(a, taus, kappas, started, hooks={}):
    mf = []
    for k in kappas:
        for aa in range(max(taus) + 1):
            for t in taus:
                if t >= aa:
                    mf.append((('A', aa, k), ('B', t - aa, k), t))
    order, last = [], {}
    for i, (fa, fb, t) in enumerate(mf):
        for f in (fb, fa):
            if f not in last:
                order.append(f)
            last[f] = i
    free = {'A': list(range(4)), 'B': list(range(8))}
    slot = {}
    q = LdsQ(a)
    nxt = 0
    def reg(f):
        return (CA if f[0] == 'A' else CB) + 4 * slot[f]
    def try_issue(budget):
        nonlocal nxt
        while nxt < len(order) and budget > 0:
            f = order[nxt]
            cost = 2 if f[0] == 'A' else 1
            if not free[f[0]] or len(q.q) + cost > 14:
                break
            slot[f] = free[f[0]].pop(0)
            if f[0] == 'A':
                off = 512 * f[1] + 64 * f[2]
                q.issue(f, 'ds_read_b64 %s, v%d offset:%d' % (vr(reg(f), 2), vCA, off))
                q.issue(f, 'ds_read_b64 %s, v%d offset:%d' % (vr(reg(f) + 2, 2), vCA, off + 8))
            else:
                q.issue(f, 'ds_read_b128 %s, v%d offset:%d' % (vr(reg(f), 4), vCB, 512 * (7 - f[1]) + 64 * f[2]))
            budget -= cost
            nxt += 1
    try_issue(12)
    for i, (fa, fb, t) in enumerate(mf):
        while fa not in slot or fb not in slot:
            n0 = nxt
            try_issue(2)
            if nxt == n0:
                q.wait([q.q[0]])
        q.wait([fa, fb])
        acc = CACC + 4 * (t - taus[0])
        c = vr(acc, 4) if t in started else '0'
        started.add(t)
        a('v_mfma_f32_16x16x32_bf16 %s, %s, %s, %s' % (vr(acc, 4), vr(reg(fa), 4), vr(reg(fb), 4), c))
        for f in (fa, fb):
            if last[f] == i:
                free[f[0]].append(slot[f])
        try_issue(3)
        if i in hooks:
            hooks[i]()


def conv_epilogue(a, taus, stage):
    T = 88
    for n, t in enumerate(taus):
        a('ds_read_b64 %s, v4 offset:%d' % (vr(CE + 2 * n, 2), 512 * (7 - t)))
    a('s_waitcnt lgkmcnt(0)')
    for pr in range(len(taus) // 2):
        Q = CB + 4 * pr
        for h in range(2):
            n = 2 * pr + h
            e0, e1 = CE + 2 * n, CE + 2 * n + 1
            acc = CACC + 4 * n
            a('v_and_b32 v%d, s%d, v%d' % (T + 0, sHI, e1))
            a('v_lshlrev_b32 v%d, 16, v%d' % (T + 1, e1))
            a('v_and_b32 v%d, s%d, v%d' % (T + 2, sHI, e0))
            a('v_lshlrev_b32 v%d, 16, v%d' % (T + 3, e0))
            for r in range(4):
                a('v_fmac_f32 v%d, s74, v%d' % (acc + r, T + r))
            a('v_cvt_pk_bf16_f32 v%d, v%d, v%d' % (Q + 2 * h, acc, acc + 1))
            a('v_cvt_pk_bf16_f32 v%d, v%d, v%d' % (Q + 2 * h + 1, acc + 2, acc + 3))
        a('v_permlane16_swap_b32 v%d, v%d' % (Q, Q + 2))
        a('v_permlane16_swap_b32 v%d, v%d' % (Q + 1, Q + 3))
        a('buffer_store_dwordx4 %s, v5, %s, s75 offen offset:%d sc1' % (vr(Q, 4), R4(WS), 512 * taus[2 * pr]))


def conv_flag(a, stage):
    a('s_add_u32 s66, s76, %d' % (YF + 4096 * stage))
    a('s_waitcnt vmcnt(0)')
    flag_store(a, 66, 88, True)


def conv_phase(a):
    a.label('CONVW')
    a('s_cmp_ge_u32 s%d, 14' % sM)
    a('s_cbranch_scc1 S_WAIT')
    a('s_sub_u32 s69, s%d, 4' % sW)
    a('s_mul_i32 s63, s%d, 3' % sM)
    a('s_lshl_b32 s64, s%d, 1' % sM)
    a('s_add_u32 s64, s64, 12')
    a('s_cmp_lt_u32 s%d, 12' % sM)
    a('s_cselect_b32 s63, s63, s64')
    a('s_cselect_b32 s77, 3, 2')
    a('s_cmp_ge_u32 s69, s77')
    a('s_cbranch_scc1 G2_NOCONV')
    a('s_setprio 3')
    a('buffer_load_dword v4, off, %s, 0 sc1' % R4(WS))
    a('s_lshr_b32 s64, s%d, 4' % sI)
    a('s_mul_i32 s64, s64, 40')
    a('s_add_u32 s63, s63, s64')
    a('s_add_u32 s63, s63, s69')
    a('s_mul_i32 s64, s%d, 80' % sX)
    a('s_add_u32 s64, s64, s63')
    a('s_lshl_b32 s65, s64, 12')
    srd(a, RB, pH, 4096, 's65')
    a('v_subrev_u32 v14, 32, v%d' % vL16)
    a('v_subrev_u32 v15, 16, v%d' % vL16)
    a('v_add_u32 v5, 992, v%d' % vL16)
    HQ, HD = 16, 40
    a('buffer_load_dwordx4 %s, v14, %s, 0 offen' % (vr(HQ, 4), R4(RB)))
    a('buffer_load_dwordx2 %s, v15, %s, 0 offen' % (vr(HD, 2), R4(RB)))
    for j in range(1, 5):
        a('buffer_load_dwordx4 %s, v5, %s, 0 offen offset:%d' % (vr(HQ + 4 * j, 4), R4(RB), 1024 * (j - 1)))
        a('buffer_load_dwordx2 %s, v5, %s, 0 offen offset:%d' % (vr(HD + 2 * j, 2), R4(RB), 1024 * (j - 1) + 16))
    a('s_barrier')
    a('s_and_b32 s66, s64, 0xfffffffe')
    a('s_lshl_b32 s66, s66, 1')
    a('s_load_dword s74, s[%d:%d], s66' % (pD, pD + 1))
    a('s_add_u32 s75, s65, %s' % hex(YT))
    a('s_lshl_b32 s76, s64, 2')
    a('s_lshr_b32 s78, s63, 4')
    a('s_mul_i32 s79, s%d, 5' % sX)
    a('s_add_u32 s78, s78, s79')
    a('s_lshl_b32 s78, s78, 7')
    a('s_add_u32 s78, s78, %d' % KVFA)
    a('s_mov_b32 s79, s65')
    w2_setup(a, 69)
    a('s_mul_i32 s80, s69, 16640')
    a('s_mul_i32 s81, s69, 4608')
    a('s_add_u32 s81, s81, %d' % L_U)
    a('v_add_u32 v5, s80, v%d' % vL16)
    a('v_mov_b32 v56, 0'); a('v_mov_b32 v57, 0'); a('v_mov_b32 v58, 0'); a('v_mov_b32 v59, 0')
    a('v_add_u32 v14, s81, v%d' % vL16)
    setexec(a, 32)
    a('ds_write_b128 v14, v[56:59] offset:4096')
    setexec(a, 64)
    a('s_waitcnt lgkmcnt(0)')
    a('s_bitcmp1_b32 s64, 0')
    a('s_cbranch_scc1 CV_DHI')
    a('s_lshl_b32 s74, s74, 16')
    a.label('CV_DHI')
    a('s_and_b32 s74, s74, 0xffff0000')
    for j in range(5):
        a('s_waitcnt vmcnt(%d)' % (2 * (4 - j)))
        if j == 0:
            get_tag(a, 4)
        if j == 4:
            a('s_mov_b64 exec, 3')
        d = [HQ + 4 * j + e for e in range(4)] + [HD + 2 * j, HD + 2 * j + 1]
        T1, T2, T3 = 52 + 12 * (j & 1), 56 + 12 * (j & 1), 60 + 12 * (j & 1)
        a('ds_write_b128 v5, %s offset:%d' % (vr(d[0], 4), 1024 * j))
        for e in range(4):
            a('v_alignbit_b32 v%d, v%d, v%d, 16' % (T1 + e, d[e + 1], d[e]))
        a('ds_write_b128 v5, %s offset:%d' % (vr(T1, 4), 1024 * j + HSTR))
        for e in range(4):
            a('v_mov_b32 v%d, v%d' % (T2 + e, d[e + 1]))
        a('ds_write_b128 v5, %s offset:%d' % (vr(T2, 4), 1024 * j + 2 * HSTR))
        for e in range(4):
            a('v_alignbit_b32 v%d, v%d, v%d, 16' % (T3 + e, d[e + 2], d[e + 1]))
        a('ds_write_b128 v5, %s offset:%d' % (vr(T3, 4), 1024 * j + 3 * HSTR))
        if j == 2:
            a('s_waitcnt lgkmcnt(8)')
    setexec(a, 64)
    stamp(a, 1)
    a('v_and_b32 v16, 15, v%d' % vL)
    a('v_lshrrev_b32 v17, 4, v%d' % vL)
    a('v_add_u32 v18, 1, v16')
    a('v_and_b32 v19, 3, v18')
    a('v_mul_u32_u24 v%d, %d, v19' % (vCA, HSTR))
    a('v_lshrrev_b32 v18, 2, v18')
    a('v_lshl_add_u32 v%d, v18, 3, v%d' % (vCA, vCA))
    a('v_lshl_add_u32 v%d, v17, 4, v%d' % (vCA, vCA))
    a('v_add_u32 v%d, s80, v%d' % (vCA, vCA))
    a('v_lshlrev_b32 v18, 5, v16')
    a('v_lshlrev_b32 v19, 4, v17')
    a('v_sub_u32 v%d, v19, v18' % vCB)
    a('s_add_u32 s66, s81, 480')
    a('v_add_u32 v%d, s66, v%d' % (vCB, vCB))
    a('v_lshl_add_u32 v19, v17, 3, v18')
    a('s_add_u32 s66, s81, 504')
    a('v_sub_u32 v4, s66, v19')
    a('v_and_b32 v19, 1, v17')
    a('v_lshl_add_u32 v5, v19, 9, v18')
    a('v_lshrrev_b32 v19, 1, v17')
    a('v_lshl_add_u32 v5, v19, 4, v5')
    a('s_waitcnt lgkmcnt(0)')
    hello_check(a, 16, 66)
    stamp(a, 2)
    a('v_and_b32 v16, 31, v%d' % vL)
    a('v_lshlrev_b32 v16, 2, v16')
    a('v_lshrrev_b32 v17, 5, v%d' % vL)
    a('v_lshl_add_u32 v16, v17, 13, v16')
    assert KVFB - KVFA == 8192
    a('s_lshl_b32 s66, s%d, 1' % sXCC)
    a('v_mov_b32 v18, s66')
    a('v_cmp_eq_u32 vcc, 0, v17')
    a('v_cndmask_b32 v18, 0, v18, vcc')
    a('v_add_u32 v18, s%d, v18' % sTAG)
    a('s_mov_b32 s%d, 0' % sCNT)
    a.label('CV_POLL')
    a('buffer_load_dword v19, v16, %s, s78 offen sc1' % R4(WS))
    a('s_add_u32 s%d, s%d, 1' % (sCNT, sCNT))
    a('s_waitcnt vmcnt(0)')
    a('v_cmp_ne_u32 vcc, v18, v19')
    a('s_mov_b32 s66, %s' % hex(KVA))
    if not FORCE_SLOW:
        a('s_cmp_eq_u32 vcc_lo, 0')
        a('s_cbranch_scc1 CV_GOT')
    a('s_mov_b32 s66, %s' % hex(KVB))
    a('s_cmp_eq_u32 vcc_hi, 0')
    a('s_cbranch_scc1 CV_GOT')
    a('s_cmp_lt_u32 s%d, s%d' % (sCNT, sLIM))
    a('s_cbranch_scc1 CV_POLL')
    a('s_mov_b32 s%d, 0' % sLIM)
    a.label('CV_GOT')
    a('s_add_u32 s66, s66, s79')
    a('s_mov_b32 m0, s81')
    for k in range(4):
        a('buffer_load_dwordx4 v%d, %s, s66 offen offset:%d sc1 lds' % (vL16, R4(WS), 1024 * k))
    stamp(a, 3)
    a('s_waitcnt vmcnt(0)')
    lds_flag(a, LF_U, 69, 16)
    a('s_waitcnt lgkmcnt(0)')
    stamp(a, 4)
    dstamp(a, 3)
    conv_part(a, [0, 1], range(8), set())
    conv_epilogue(a, [0, 1], 0)
    stamp(a, 5)
    conv_part(a, [2, 3], range(8), set(), {CF0: lambda: conv_flag(a, 0)})
    conv_epilogue(a, [2, 3], 1)
    stamp(a, 6)
    hk = {CF1: lambda: conv_flag(a, 1)}
    for n, g in enumerate(w2_loads()):
        hk[CF1 + 1 + 3 * n] = (lambda g=g: emit(a, g))
    conv_part(a, [4, 5, 6, 7], range(8), set(), hk)
    conv_epilogue(a, [4, 5, 6, 7], 2)
    stamp(a, 7)
    dstamp(a, 4)
    lds_flag(a, LF_CV, 69, 16)
    conv_flag(a, 2)
    a('s_setprio 0')
    w2_xpose(a, True)
    a('s_branch G2_READY')
    a.label('G2_NOCONV')
    a('s_barrier')
    lds_flag(a, LF_U, 69, 16)
    lds_flag(a, LF_CV, 69, 16)
    w2_setup(a, 69)
    lds_gate(a)
    for g in w2_loads():
        emit(a, g)
    w2_xpose(a, False)
    a('s_barrier')
    a('v_mov_b32 v16, %d' % L_SYNC)
    a('ds_read_b32 v17, v16')
    a('s_waitcnt lgkmcnt(0)')
    a('v_readfirstlane_b32 s%d, v17' % sTAG)
    hello_check(a, 16, 66)
    a('s_branch G2_START')
    a.label('G2_W7')
    a('s_mov_b32 s69, 3')
    w2_setup(a, 69)
    lds_gate(a)
    for g in w2_loads():
        emit(a, g)
    w2_xpose(a, False)
    a.label('G2_READY')
    stamp(a, 8)
    dstamp(a, 5)
    a('s_barrier')
    a('s_branch G2_START')


def tok_scalars(a, sSig, sJ, sRow, sZ, sZF):
    a('s_and_b32 s63, s%d, 3' % sSig)
    a('s_lshl_b32 s64, s63, 9')
    a('s_lshl_b32 s65, s%d, 5' % sG)
    a('s_add_u32 s64, s64, s65')
    a('s_add_u32 s64, s64, s%d' % sJ)
    a('s_mul_i32 s%d, s64, 1280' % sRow)
    a('s_lshl_b32 s64, s%d, 2' % sG)
    a('s_add_u32 s64, s64, s63')
    a('s_mul_i32 s%d, s64, 40960' % sZ)
    a('s_add_u32 s%d, s%d, %s' % (sZ, sZ, hex(ZI)))
    a('s_lshl_b32 s64, s%d, 4' % sG)
    a('s_add_u32 s64, s64, s%d' % sSig)
    a('s_lshl_b32 s64, s64, 7')
    a('s_lshl_b32 s65, s%d, 2' % sJ)
    a('s_add_u32 s64, s64, s65')
    a('s_add_u32 s%d, s64, %d' % (sZF, ZF + 4 * 128))


def pf_off(a, sSig, sD):
    a('s_lshl_b32 s%d, s%d, 3' % (sD, sG))
    a('s_add_u32 s%d, s%d, s%d' % (sD, sD, sSig))
    a('s_lshl_b32 s%d, s%d, 8' % (sD, sD))
    a('s_add_u32 s%d, s%d, %s' % (sD, sD, hex(PF)))


def part_off(a, sSig, sD):
    a('s_mul_i32 s63, s%d, 43' % sSig)
    a('s_lshr_b32 s63, s63, 7')
    a('s_mul_i32 s63, s63, 3')
    a('s_sub_u32 s63, s%d, s63' % sSig)
    a('s_mul_i32 s64, s%d, 3' % sG)
    a('s_add_u32 s63, s63, s64')
    a('s_mul_i32 s%d, s63, %d' % (sD, 14 * 40960))
    a('s_add_u32 s%d, s%d, %s' % (sD, sD, hex(PART)))


PQ, P5, B2F = 96, 156, 176


def load_b2(a):
    srd(a, RD, pB2, 1280)
    a('buffer_load_dwordx4 %s, v%d, %s, 0 offen' % (vr(PQ, 4), vL16, R4(RD)))
    a('buffer_load_dword v%d, v%d, %s, 0 offen offset:1024' % (P5, vL4, R4(RD)))
    a('s_waitcnt vmcnt(0)')
    emit(a, unpack10(B2F, [PQ, PQ + 1, PQ + 2, PQ + 3, P5]))


def full_r_issue(a, b, sSig, sJ, sRow):
    part_off(a, sSig, 66)
    a('s_mul_i32 s63, s%d, 1280' % sJ)
    a('s_add_u32 s66, s66, s63')
    a('s_add_u32 s67, s%d, %s' % (sRow, hex(XR)))
    row_load(a, [PQ + 56, 0, 0, 0, P5 + 14], WS, 67)
    for r in range(14):
        row_load(a, [PQ + 4 * r, 0, 0, 0, P5 + r], WS, 66)
        if r < 13:
            a('s_add_u32 s66, s66, 40960')
    a('s_add_u32 s67, s%d, %s' % (sRow, hex(YR)))
    row_load(a, b.YR, WS, 67)


def full_r_sum(a, b, younger=0):
    a('s_waitcnt vmcnt(%d)' % (30 + younger))
    emit(a, unpack10(b.X, [PQ + 56 + e for e in range(4)] + [P5 + 14]))
    for i in range(10):
        a('v_add_f32 v%d, v%d, v%d' % (b.X + i, b.X + i, B2F + i))
    for r in range(14):
        a('s_waitcnt vmcnt(%d)' % (28 - 2 * r + younger))
        T = b.D if r & 1 else b.Y
        emit(a, unpack10(T, [PQ + 4 * r + e for e in range(4)] + [P5 + r]))
        for i in range(10):
            a('v_add_f32 v%d, v%d, v%d' % (b.X + i, b.X + i, T + i))


def lf_task(a, b, sSig, sJ, sRow, sZ, sZF, va, vb, defer=None):
    F, D = a.newlabel('LF_F'), a.newlabel('LF_D')
    emit(a, pack10(b.XR, b.X))
    a('s_cmp_ge_u32 s%d, 4' % sSig)
    a('s_cbranch_scc1 %s' % F)
    emit(a, unpack10(b.X, b.XR))
    a('s_waitcnt vmcnt(0)')
    emit(a, gate_ln_z(b))
    a('s_add_u32 s67, s%d, %s' % (sRow, hex(XR)))
    def st(sc1):
        z_store(a, b, va, vb, sZ, sc1)
        row_store(a, b.XR, WS, 67, sc1)
        if defer is None:
            a('s_waitcnt vmcnt(0)')
            flag_store(a, sZF, b.T, sc1)
    both(a, st)
    if defer is not None:
        a('s_mov_b32 s%d, s%d' % (defer, sZF))
    a('s_branch %s' % D)
    a.label(F)
    row_store(a, b.XR, RB, sRow, False)
    a('s_cmp_lg_u32 s%d, 4' % sSig)
    a('s_cbranch_scc1 %s' % D)
    both(a, lambda sc1: flag_store(a, sZF, b.T, sc1))
    a.label(D)


def s_phase(a):
    a.label('S_WAIT')
    a('s_barrier')
    a('s_barrier')
    a('v_mov_b32 v14, %d' % L_SYNC)
    a('ds_read_b32 v4, v14')
    a('s_waitcnt lgkmcnt(0)')
    a('v_readfirstlane_b32 s%d, v4' % sTAG)
    hello_check(a, 14, 66)
    a.label('S_MAIN')
    QR = 190
    QR = 192
    srd(a, RA, pQ, hex(ROWS_B))
    srd(a, RB, pOUT, hex(ROWS_B))
    a('s_sub_u32 s70, s%d, 14' % sM)
    a('s_lshl_b32 s71, s%d, 5' % sG)
    a('s_lshl_b32 s72, s70, 4')
    a('s_add_u32 s71, s71, s72')
    a('s_lshl_b32 s72, s%d, 1' % sW)
    a('s_add_u32 s72, s72, s71')
    a('s_mul_i32 s73, s72, 1280')
    a('s_mov_b32 s66, s73')
    for s in range(4):
        for e in range(2):
            R = QR + 8 * (2 * s + e)
            a('buffer_load_dwordx4 %s, v%d, %s, s66 offen offset:%d' % (vr(R, 4), vL16, R4(RA), 1280 * e))
            a('buffer_load_dword v%d, v%d, %s, s66 offen offset:%d' % (R + 4, vL4, R4(RA), 1280 * e + 1024))
        if s < 3:
            a('s_add_u32 s66, s66, %d' % (512 * 1280))
    load_b2(a)
    a('v_lshrrev_b32 v14, 1, v%d' % vL)
    a('v_and_b32 v15, 1, v%d' % vL)
    a('v_lshlrev_b32 v8, 12, v14')
    a('v_lshl_add_u32 v8, v15, 4, v8')
    a('v_mul_u32_u24 v9, 10304, v15')
    a('v_lshl_add_u32 v9, v14, 1, v9')
    a('s_mul_i32 s66, s%d, 160' % sW)
    a('v_add_u32 v9, s66, v9')
    a('s_mul_i32 s66, s%d, 2560' % sW)
    a('s_cmp_ge_u32 s%d, 4' % sW)
    a('s_cselect_b32 s67, 64, 0')
    a('s_add_u32 s66, s66, s67')
    a('v_add_u32 v10, s66, v%d' % vL16)
    a('v_add_u32 v11, s66, v%d' % vL4)
    a('s_mul_i32 s74, s%d, %d' % (sW, 80 * 4096))
    a('s_lshl_b32 s75, s71, 1')
    a('s_add_u32 s74, s74, s75')
    a('s_add_u32 s74, s74, %s' % hex(YT))
    a('s_mul_i32 s75, s%d, 320' % sW)
    a('s_add_u32 s75, s75, %d' % YF)
    a('s_lshl_b32 s76, s70, 4')
    a('s_lshl_b32 s77, s%d, 1' % sW)
    a('s_add_u32 s76, s76, s77')
    z_addr(a, 76, 12, 13, 66)
    a('s_add_u32 s77, s76, 1')
    z_addr(a, 77, 4, 5, 66)
    a('s_lshl_b32 s78, s%d, 2' % sG)
    a('s_mul_i32 s78, s78, 40960')
    a('s_add_u32 s78, s78, %s' % hex(ZI))
    a('s_lshl_b32 s79, s%d, 11' % sG)
    a('s_lshl_b32 s77, s76, 2')
    a('s_add_u32 s79, s79, s77')
    a('s_add_u32 s79, s79, %d' % ZF)
    a('s_mov_b32 s%d, 0' % sP)
    b0, b1 = Blk(16, 80, 81), Blk(64, 82, 83)
    a.label('LN1_LOOP')
    stamp(a, (sP, 4, 4))
    L, D = a.newlabel('YL'), a.newlabel('YD')
    a('s_mov_b32 s%d, 0' % sCNT)
    setexec(a, 20)
    a.label(L)
    a('buffer_load_dwordx4 v[112:115], v%d, %s, s75 offen sc1' % (vL16, R4(WS)))
    a('s_add_u32 s%d, s%d, 1' % (sCNT, sCNT))
    a('s_waitcnt vmcnt(0)')
    for e in range(4):
        a('v_xor_b32 v%d, s%d, v%d' % (112 + e, sTAG, 112 + e))
    a('v_or3_b32 v112, v112, v113, v114')
    a('v_or_b32 v112, v112, v115')
    a('v_cmp_ne_u32 vcc, 0, v112')
    a('s_cbranch_vccz %s' % D)
    a('s_cmp_lt_u32 s%d, s%d' % (sCNT, sLIM))
    a('s_cbranch_scc1 %s' % L)
    a('s_mov_b32 s%d, 0' % sLIM)
    a.label(D)
    setexec(a, 64)
    stamp(a, (sP, 4, 5))
    a('buffer_load_dwordx4 v[112:115], v8, %s, s74 offen sc1' % R4(WS))
    a('s_add_u32 s66, s74, %d' % (32 * 4096))
    a('buffer_load_dwordx4 v[116:119], v8, %s, s66 offen sc1' % R4(WS))
    a('s_add_u32 s66, s74, %d' % (64 * 4096))
    setexec(a, 32)
    a('buffer_load_dwordx4 v[120:123], v8, %s, s66 offen sc1' % R4(WS))
    setexec(a, 64)
    for e, b in enumerate((b0, b1)):
        emit(a, unpack10(b.X, [QR + 8 * e + k for k in range(5)]))
    for k in range(3):
        a('s_waitcnt vmcnt(%d)' % (2 - k))
        if k == 2:
            setexec(a, 32)
        for j in range(8):
            a('ds_write_b16%s v9, v%d offset:%d' % ('_d16_hi' if j & 1 else '', 112 + 4 * k + (j >> 1), 1280 * j + 64 * k))
        a('s_waitcnt lgkmcnt(4)')
    setexec(a, 64)
    for k in range(48):
        if (k & 7) < 5:
            a('v_mov_b32 v%d, v%d' % (QR + k, QR + 16 + k))
    a('s_waitcnt lgkmcnt(0)')
    a('s_barrier')
    for e, b in enumerate((b0, b1)):
        a('ds_read_b128 %s, v10 offset:%d' % (vr(b.YR[0], 4), 1280 * e))
        a('ds_read_b32 v%d, v11 offset:%d' % (b.YR[4], 1280 * e + 1024))
    a('v_xor_b32 v9, 0x8000, v9')
    a('v_xor_b32 v10, 0x8000, v10')
    a('v_xor_b32 v11, 0x8000, v11')
    a('s_waitcnt lgkmcnt(0)')
    stamp(a, (sP, 4, 6))
    emit(a, zip2(gate_ln_z(b0), gate_ln_z(b1)))
    a('s_add_u32 s66, s73, %s' % hex(XR))
    a('s_add_u32 s67, s73, %s' % hex(XR + 1280))
    a('s_add_u32 s68, s73, %s' % hex(YR))
    a('s_add_u32 s69, s73, %s' % hex(YR + 1280))
    def st(sc1):
        z_store(a, b0, 12, 13, 78, sc1)
        z_store(a, b1, 4, 5, 78, sc1)
        row_store(a, b0.XR, WS, 66, sc1)
        row_store(a, b1.XR, WS, 67, sc1)
        row_store(a, b0.YR, WS, 68, sc1)
        row_store(a, b1.YR, WS, 69, sc1)
        a('v_mov_b32 v112, s%d' % sTAG)
        a('v_mov_b32 v113, s%d' % sTAG)
        a('s_waitcnt vmcnt(0)')
        a('s_mov_b64 exec, 1')
        a('buffer_store_dwordx2 v[112:113], off, %s, s79%s' % (R4(WS), ' sc1' if sc1 else ''))
        a('s_mov_b64 exec, -1')
    both(a, st)
    stamp(a, (sP, 4, 7))
    a('s_add_u32 s73, s73, %d' % (512 * 1280))
    a('s_add_u32 s74, s74, 1024')
    a('s_add_u32 s78, s78, 40960')
    a('s_add_u32 s79, s79, 128')
    a('s_cmp_lt_u32 s%d, 2' % sP)
    a('s_cselect_b32 s66, 4096, 0')
    a('s_add_u32 s75, s75, s66')
    a('s_add_u32 s%d, s%d, 1' % (sP, sP))
    a('s_cmp_lt_u32 s%d, 4' % sP)
    a('s_cbranch_scc1 LN1_LOOP')
    dstamp(a, 8)
    a('s_cmp_lg_u32 s2, 112')
    a('s_cbranch_scc1 S_NOEP')
    a('s_cmp_lg_u32 s%d, 0' % sW)
    a('s_cbranch_scc1 S_NOEP')
    a('s_mov_b32 s66, 0')
    flag_store(a, 66, 112, True)
    a.label('S_NOEP')
    if STOP == 'front':
        endk(a)
        return
    a('s_lshl_b32 s70, s70, 3')
    a('s_add_u32 s70, s70, s%d' % sW)
    z_addr(a, 70, 12, 13, 66)
    a('s_mov_b32 s%d, 0' % sP)
    a.label('S_TASK')
    tok_scalars(a, sP, 70, 71, 72, 73)
    pf_off(a, sP, 74)
    poll(a, 74, 56, 14)
    stamp(a, (sP, 4, 20))
    full_r_issue(a, b0, sP, 70, 71)
    full_r_sum(a, b0)
    stamp(a, (sP, 4, 21))
    lf_task(a, b0, sP, 70, 71, 72, 73, 12, 13)
    stamp(a, (sP, 4, 22))
    a('s_add_u32 s%d, s%d, 1' % (sP, sP))
    a('s_cmp_lt_u32 s%d, 8' % sP)
    a('s_cbranch_scc1 S_TASK')
    endk(a)


ZA, GT, RQ, R5, ZR, ACC, BIAS = 8, 16, 28, 44, 48, 64, 80


def stage_z(a, sSig1):
    a('s_and_b32 s63, s%d, 3' % sSig1)
    a('s_lshl_b32 s64, s%d, 2' % sG)
    a('s_add_u32 s64, s64, s63')
    a('s_mul_i32 s64, s64, 40960')
    a('s_mul_i32 s65, s%d, 10240' % sW)
    a('s_add_u32 s64, s64, s65')
    a('s_add_u32 s64, s64, %s' % hex(ZI))
    a('s_bitcmp1_b32 s%d, 0' % sSig1)
    a('s_cselect_b32 s63, 0, %d' % L_ZE)
    a('s_add_u32 s65, s65, s63')
    for g in range(3):
        a('s_add_u32 m0, s65, %d' % (4096 * g))
        for k in range(4 if g < 2 else 2):
            a('buffer_load_dwordx4 v%d, %s, s64 offen offset:%d sc1 lds' % (vL16, R4(WS), 1024 * k))
        if g < 2:
            a('s_add_u32 s64, s64, 4096')


def zf_off(a, sSig1, sD):
    a('s_lshl_b32 s%d, s%d, 4' % (sD, sG))
    a('s_add_u32 s%d, s%d, s%d' % (sD, sD, sSig1))
    a('s_lshl_b32 s%d, s%d, 7' % (sD, sD))
    a('s_add_u32 s%d, s%d, %d' % (sD, sD, ZF))


def quarter_setup(a):
    a('s_cmp_eq_u32 s%d, 3' % sW)
    a('s_cselect_b32 s%d, s%d, s%d' % (RC, pB2, pWS))
    a('s_cselect_b32 s%d, s%d, s%d' % (RC + 1, pB2 + 1, pWS + 1))
    a('s_cselect_b32 s%d, 1280, s%d' % (RC + 2, WS + 2))
    a('s_mov_b32 s%d, 0x20000' % (RC + 3))
    a('s_mul_i32 s63, s%d, 2560' % sW)
    a('s_add_u32 s63, s63, %d' % L_RS)
    a('v_add_u32 v4, s63, v%d' % vL16)
    a('v_lshlrev_b32 v5, 3, v%d' % vL)
    a('v_add_u32 v5, s63, v5')
    a('s_add_u32 s76, s%d, 16' % sM)


def quarter_issue(a, sSig):
    part_off(a, sSig, 66)
    a('s_mul_i32 s63, s76, 1280')
    a('s_add_u32 s66, s66, s63')
    a('s_mul_i32 s63, s%d, 40960' % sW)
    a('s_add_u32 s66, s66, s63')
    for k in range(3):
        row_load(a, [RQ + 4 * k, 0, 0, 0, R5 + k], WS, 66)
        a('s_add_u32 s66, s66, 163840')
    a('s_and_b32 s63, s%d, 3' % sSig)
    a('s_lshl_b32 s63, s63, 9')
    a('s_lshl_b32 s64, s%d, 5' % sG)
    a('s_add_u32 s63, s63, s64')
    a('s_add_u32 s63, s63, s76')
    a('s_mul_i32 s63, s63, 1280')
    a('s_add_u32 s63, s63, %s' % hex(XR))
    a('s_cmp_eq_u32 s%d, 2' % sW)
    a('s_cselect_b32 s66, s63, s66')
    a('s_cmp_eq_u32 s%d, 3' % sW)
    a('s_cselect_b32 s66, 0, s66')
    row_load(a, [RQ + 12, 0, 0, 0, R5 + 3], RC, 66)


def quarter_sum(a, sSig, younger=0):
    S, T = GT, ZR
    a('s_waitcnt vmcnt(%d)' % (6 + younger))
    emit(a, unpack10(S, [RQ + e for e in range(4)] + [R5]))
    for k in range(1, 4):
        a('s_waitcnt vmcnt(%d)' % (6 - 2 * k + younger))
        emit(a, unpack10(T, [RQ + 4 * k + e for e in range(4)] + [R5 + k]))
        for i in range(10):
            a('v_add_f32 v%d, v%d, v%d' % (S + i, S + i, T + i))
    A, D = a.newlabel('QA'), a.newlabel('QD')
    a('s_bitcmp1_b32 s%d, 0' % sSig)
    a('s_cbranch_scc1 %s' % A)
    for off, lab in ((0, D), (10240, None)):
        a('ds_write_b128 v4, %s offset:%d' % (vr(S, 4), off))
        a('ds_write_b128 v4, %s offset:%d' % (vr(S + 4, 4), off + 1024))
        a('ds_write_b64 v5, %s offset:%d' % (vr(S + 8, 2), off + 2048))
        if lab:
            a('s_branch %s' % D)
            a.label(A)
    a.label(D)


def g1_phase(a):
    a.label('G1_INIT')
    if STOP == 'front':
        a('v_mov_b32 v16, %d' % L_SYNC)
        a('v_mov_b32 v17, s%d' % sTAG)
        a('ds_write_b32 v16, v17')
        a('s_waitcnt lgkmcnt(0)')
        a('s_barrier')
        endk(a)
        return
    a('s_cmp_eq_u32 s%d, 13' % sM)
    a('s_cselect_b32 s66, 2, 4')
    a('s_cmp_ge_u32 s%d, s66' % sW)
    a('s_cbranch_scc1 G1X_INIT')
    srd(a, RB, pB1, 3456)
    a('v_lshrrev_b32 v14, 5, v%d' % vL)
    a('v_lshlrev_b32 v14, 3, v14')
    a('s_lshl_b32 s66, s%d, 8' % sM)
    a('s_lshl_b32 s67, s%d, 6' % sW)
    a('s_add_u32 s66, s66, s67')
    for q in range(4):
        a('buffer_load_dwordx2 %s, v14, %s, s66 offen offset:%d' % (vr(ZR + 2 * q, 2), R4(RB), 16 * q))
    w1_setup(a)
    lds_gate(a)
    w1_loads(a)
    for ks in range(40):
        a('s_waitcnt vmcnt(%d)' % (39 - ks))
        a('ds_write_b128 v9, %s offset:%d' % (vr(WB + 4 * ks, 4), 1024 * (ks & 3)))
        for hh in range(2):
            a('ds_read_b64_tr_b16 %s, v13 offset:%d' % (vr(WB + 4 * ks + 2 * hh, 2), 1024 * (ks & 3) + 256 * hh))
        if ks & 3 == 3:
            a('s_waitcnt lgkmcnt(3)')
    for i in range(8):
        a('v_lshlrev_b32 v%d, 16, v%d' % (BIAS + 2 * i, ZR + i))
        a('v_and_b32 v%d, s%d, v%d' % (BIAS + 2 * i + 1, sHI, ZR + i))
    a('v_and_b32 v14, 31, v%d' % vL)
    a('v_lshrrev_b32 v15, 5, v%d' % vL)
    a('v_and_b32 v16, 15, v14')
    a('v_xor_b32 v15, v15, v16')
    a('v_lshlrev_b32 v15, 4, v15')
    a('v_lshl_add_u32 v15, v14, 8, v15')
    a('v_add_u32 v15, %d, v15' % L_ZE)
    a('s_waitcnt lgkmcnt(0)')
    a('v_mov_b32 v16, v15')
    for k in range(8):
        a('v_xor_b32 v%d, %d, v16' % (ZA + k, 32 * k))
    c1 = -2.0 * math.sqrt(2.0 / math.pi) * math.log2(math.e)
    a('v_mov_b32 v%d, %s' % (vC1, f2h(c1)))
    a('s_lshl_b32 s66, s%d, 11' % sW)
    a('s_add_u32 s66, s66, %d' % L_H)
    a('v_add_u32 v0, s66, v%d' % vL16)
    stamp(a, 4)
    dstamp(a, 6)
    a.label('G1_COMMON')
    quarter_setup(a)
    a('s_mov_b32 s%d, 0' % sP)
    zf_off(a, sP, 66)
    poll(a, 66, 32, GT)
    stamp(a, 5)
    stage_z(a, sP)
    a('v_mov_b32 v%d, %d' % (GT + 2, L_SYNC))
    a('v_mov_b32 v%d, s%d' % (GT + 3, sTAG))
    a('ds_write_b32 v%d, v%d' % (GT + 2, GT + 3))
    a('s_waitcnt vmcnt(0)')
    lds_flag(a, LF_Z0, sW, GT)
    a('s_cmp_eq_u32 s85, 1')
    a('s_cbranch_scc1 G1X_LOOP')
    lds_spin(a, LF_Z0, 4, GT)
    dstamp(a, 7)
    a('s_setprio 2')
    a.label('G1_LOOP')
    stamp(a, (sP, 4, 8))
    a('s_sub_u32 s77, s%d, 2' % sP)
    pf_off(a, 77, 74)
    a('s_cmp_lt_u32 s%d, 2' % sP)
    a('s_cbranch_scc1 G1_NOPF')
    setexec(a, 56)
    a('buffer_load_dword v%d, v%d, %s, s74 offen sc1' % (GT, vL4, R4(WS)))
    setexec(a, 64)
    a.label('G1_NOPF')
    a('s_cmp_gt_u32 s%d, 7' % sP)
    a('s_cbranch_scc1 G1_NOM1')
    def zread(ks):
        a('ds_read_b128 %s, v%d offset:%d' % (vr(ZR + 4 * (ks % 4), 4), ZA + (ks & 7), (ks >> 3) * 8192))
    for ks in range(3):
        zread(ks)
    for ks in range(40):
        a('s_waitcnt lgkmcnt(%d)' % min(2, 39 - ks))
        c = vr(BIAS, 16) if ks == 0 else vr(ACC, 16)
        a('v_mfma_f32_32x32x16_bf16 %s, %s, %s, %s' % (vr(ACC, 16), vr(WB + 4 * ks, 4), vr(ZR + 4 * (ks % 4), 4), c))
        if ks + 3 < 40:
            zread(ks + 3)
        if 32 <= ks + 3 < 40:
            k = (ks + 3) & 7
            a('v_xor_b32 v%d, %s, v%d' % (ZA + k, hex(L_ZE), ZA + k))
    a.label('G1_NOM1')
    stamp(a, (sP, 4, 9))
    a('s_cmp_lt_u32 s%d, 2' % sP)
    a('s_cbranch_scc1 G1_NOR1')
    poll(a, 74, 56, GT, pre=True)
    quarter_issue(a, 77)
    a.label('G1_NOR1')
    a('s_cmp_gt_u32 s%d, 7' % sP)
    a('s_cbranch_scc1 G1_NOGELU')
    T = ZR
    for t in range(2):
        X = ACC + 8 * t
        for i in range(8):
            a('v_mul_f32 v%d, v%d, v%d' % (T + i, X + i, X + i))
        for i in range(8):
            a('v_fma_f32 v%d, v%d, s%d, v%d' % (T + i, T + i, sC2, vC1))
        for i in range(8):
            a('v_mul_f32 v%d, v%d, v%d' % (T + i, T + i, X + i))
        for i in range(8):
            a('v_exp_f32 v%d, v%d' % (T + i, T + i))
        for i in range(8):
            a('v_add_f32 v%d, 1.0, v%d' % (T + i, T + i))
        for i in range(8):
            a('v_rcp_f32 v%d, v%d' % (T + i, T + i))
        for i in range(8):
            a('v_mul_f32 v%d, v%d, v%d' % (T + i, T + i, X + i))
        o = T + 8 + 4 * t
        for i in range(4):
            a('v_cvt_pk_bf16_f32 v%d, v%d, v%d' % (o + i, T + 2 * i, T + 2 * i + 1))
        a('ds_write_b128 v0, %s offset:%d' % (vr(o, 4), 1024 * t))
    a('v_xor_b32 v0, 0x2000, v0')
    a.label('G1_NOGELU')
    stamp(a, (sP, 4, 10))
    a('s_cmp_lt_u32 s%d, 2' % sP)
    a('s_cbranch_scc1 G1_NOR2')
    a('s_waitcnt lgkmcnt(0)')
    quarter_sum(a, 77)
    a.label('G1_NOR2')
    g1_tail(a, 'G1')
    a.label('G1X_INIT')
    srd(a, RB, pOUT, hex(ROWS_B))
    load_b2(a)
    a('s_add_u32 s70, s%d, 28' % sW)
    z_addr(a, 70, 12, 13, 66)
    a('s_sub_u32 s66, s%d, 2' % sW)
    a('s_lshl_b32 s66, s66, 13')
    a('s_add_u32 s66, s66, %d' % (L_H + 4096))
    a('v_add_u32 v14, s66, v%d' % vL16)
    for e in range(4):
        a('v_mov_b32 v%d, 0' % (16 + e))
    for k in range(4):
        a('ds_write_b128 v14, v[16:19] offset:%d' % (1024 * k))
    a('s_mov_b32 s85, 1')
    a('s_branch G1_COMMON')
    a.label('G1X_LOOP')
    bx = Blk(192, 80, 81)
    a('s_cmp_lt_u32 s%d, 3' % sP)
    a('s_cbranch_scc1 G1X_NOL')
    a('s_sub_u32 s78, s%d, 3' % sP)
    tok_scalars(a, 78, 70, 71, 72, 73)
    lf_task(a, bx, 78, 70, 71, 72, 73, 12, 13)
    a.label('G1X_NOL')
    a('s_cmp_eq_u32 s%d, 10' % sP)
    a('s_cbranch_scc1 G1X_END')
    a('s_cmp_lt_u32 s%d, 2' % sP)
    a('s_cbranch_scc1 G1X_NOR')
    a('s_sub_u32 s77, s%d, 2' % sP)
    pf_off(a, 77, 74)
    poll(a, 74, 56, GT)
    quarter_issue(a, 77)
    tok_scalars(a, 77, 70, 71, 72, 73)
    full_r_issue(a, bx, 77, 70, 71)
    quarter_sum(a, 77, younger=32)
    full_r_sum(a, bx)
    a.label('G1X_NOR')
    g1_tail(a, 'G1X')
    a.label('G1X_END')
    endk(a)


def g1_tail(a, P):
    a('s_cmp_lg_u32 s%d, 0' % sP)
    a('s_cbranch_scc1 %s_NOCV' % P)
    lds_spin(a, LF_CV, 3, GT)
    a.label('%s_NOCV' % P)
    a('s_cmp_gt_u32 s%d, 7' % sP)
    a('s_cbranch_scc1 %s_NOZ' % P)
    a('s_add_u32 s75, s%d, 1' % sP)
    zf_off(a, 75, 66)
    poll(a, 66, 32, GT)
    a('s_cmp_eq_u32 s%d, 7' % sP)
    a('s_cbranch_scc1 %s_NOZ' % P)
    stage_z(a, 75)
    a.label('%s_NOZ' % P)
    a('s_waitcnt vmcnt(0) lgkmcnt(0)')
    stamp(a, (sP, 4, 11))
    a('s_barrier')
    a('s_add_u32 s%d, s%d, 1' % (sP, sP))
    if P == 'G1':
        a('s_cmp_lt_u32 s%d, 10' % sP)
        a('s_cbranch_scc1 G1_LOOP')
        endk(a)
    else:
        a('s_branch G1X_LOOP')


def g2_phase(a):
    a.label('G2_START')
    if STOP == 'front':
        endk(a)
        return
    HF, AC, EP = 32, [64, 80], [16, 24]
    srd(a, RB, pOUT, hex(ROWS_B))
    a('s_sub_u32 s69, s%d, 4' % sW)
    a('s_add_u32 s70, s%d, 16' % sM)
    z_addr(a, 70, 14, 15, 66)
    a('v_add_u32 v0, %d, v%d' % (L_H, vL16))
    a('v_and_b32 v4, 15, v%d' % vL)
    a('v_mul_u32_u24 v4, 1280, v4')
    a('v_bfe_u32 v5, v%d, 4, 1' % vL)
    a('v_lshl_add_u32 v4, v5, 5, v4')
    a('v_lshrrev_b32 v5, 5, v%d' % vL)
    a('v_lshl_add_u32 v4, v5, 4, v4')
    a('v_add_u32 v5, 20480, v4')
    a('v_lshlrev_b32 v13, 3, v%d' % vL)
    a('v_add_u32 v13, %d, v13' % L_RS)
    a('v_add_u32 v6, %d, v%d' % (L_RS, vL16))
    a('s_mov_b32 s%d, 1' % sP)
    a('s_mov_b32 s84, 0')
    b = Blk(16, 80, 81, yraw=[8, 9, 10, 11, 12])
    a.label('G2_LOOP')
    stamp(a, (sP, 4, 8))
    a('s_cmp_lt_u32 s%d, 3' % sP)
    a('s_cbranch_scc1 G2_NOL')
    a('s_sub_u32 s78, s%d, 3' % sP)
    a('s_and_b32 s63, s78, 3')
    a('s_cmp_lg_u32 s63, s69')
    a('s_cbranch_scc1 G2_NOL')
    A, D = a.newlabel('RA'), a.newlabel('RD')
    a('s_bitcmp1_b32 s78, 0')
    a('s_cbranch_scc1 %s' % A)
    for off, lab in ((0, D), (10240, None)):
        for w in range(4):
            R = b.X if w == 0 else 64 + 10 * (w - 1)
            a('ds_read_b128 %s, v6 offset:%d' % (vr(R, 4), off + 2560 * w))
            a('ds_read_b128 %s, v6 offset:%d' % (vr(R + 4, 4), off + 2560 * w + 1024))
            a('ds_read_b64 %s, v13 offset:%d' % (vr(R + 8, 2), off + 2560 * w + 2048))
        if lab:
            a('s_branch %s' % D)
            a.label(A)
    a.label(D)
    tok_scalars(a, 78, 70, 71, 72, 73)
    for w in range(1, 4):
        a('s_waitcnt lgkmcnt(%d)' % (9 - 3 * w))
        R = 64 + 10 * (w - 1)
        for i in range(10):
            a('v_add_f32 v%d, v%d, v%d' % (b.X + i, b.X + i, R + i))
    lf_task(a, b, 78, 70, 71, 72, 73, 14, 15, defer=84)
    a.label('G2_NOL')
    stamp(a, (sP, 4, 9))
    a('s_cmp_gt_u32 s%d, 8' % sP)
    a('s_cbranch_scc1 G2_NOM2')
    for ks in range(8):
        a('ds_read_b128 %s, v0 offset:%d' % (vr(HF + 4 * ks, 4), 1024 * ks))
    a('v_xor_b32 v0, 0x2000, v0')
    a('s_sub_u32 s77, s%d, 1' % sP)
    part_off(a, 77, 75)
    a('s_mul_i32 s63, s%d, 40960' % sM)
    a('s_add_u32 s75, s75, s63')
    a('s_mul_i32 s63, s69, 320')
    a('s_add_u32 s75, s75, s63')
    pf_off(a, 77, 74)
    a('s_lshl_b32 s63, s%d, 4' % sM)
    a('s_add_u32 s74, s74, s63')
    a('s_lshl_b32 s63, s69, 2')
    a('s_add_u32 s74, s74, s63')
    def m2(sc1):
        c = ' sc1' if sc1 else ''
        def epi(j):
            X, E = AC[j & 1], EP[j & 1]
            o = ['v_cvt_pk_bf16_f32 v%d, v%d, v%d' % (E + i, X + 2 * i, X + 2 * i + 1) for i in range(8)]
            o += ['v_permlane16_swap_b32 v%d, v%d' % (E + i, E + 4 + i) for i in range(4)]
            o += ['buffer_store_dwordx4 %s, v4, %s, s75 offen offset:%d%s' % (vr(E, 4), R4(WS), 64 * j, c),
                  'buffer_store_dwordx4 %s, v5, %s, s75 offen offset:%d%s' % (vr(E + 4, 4), R4(WS), 64 * j, c)]
            return o
        pend = []
        for j in range(5):
            for ks in range(8):
                if j == 0:
                    a('s_waitcnt lgkmcnt(%d)' % (7 - ks))
                cc = '0' if ks == 0 else vr(AC[j & 1], 16)
                a('v_mfma_f32_32x32x16_bf16 %s, %s, %s, %s' % (vr(AC[j & 1], 16), vr(WB + (j * 8 + ks) * 4, 4), vr(HF + 4 * ks, 4), cc))
                if j == 1 and ks == 0:
                    N = a.newlabel('NZF')
                    a('s_cmp_eq_u32 s84, 0')
                    a('s_cbranch_scc1 %s' % N)
                    a('s_waitcnt vmcnt(0)')
                    flag_store(a, 84, EP[1], sc1)
                    a('s_mov_b32 s84, 0')
                    a.label(N)
                if ks >= 1 and pend:
                    n = 2 if ks < 7 else len(pend)
                    emit(a, pend[:n]); pend = pend[n:]
            pend = epi(j)
        emit(a, pend)
        a('s_waitcnt vmcnt(0)')
        flag_store(a, 74, EP[1], sc1)
    both(a, m2)
    a.label('G2_NOM2')
    stamp(a, (sP, 4, 10))
    a('s_sub_u32 s63, s%d, 2' % sP)
    a('s_cmp_lg_u32 s63, s69')
    a('s_cbranch_scc1 G2_NOY')
    a('s_mov_b32 s78, s63')
    tok_scalars(a, 78, 70, 71, 72, 73)
    a('s_add_u32 s67, s71, %s' % hex(YR))
    row_load(a, b.YR, WS, 67)
    a.label('G2_NOY')
    a('s_cmp_eq_u32 s%d, 10' % sP)
    a('s_cbranch_scc1 G2_END')
    a('s_barrier')
    a('s_add_u32 s%d, s%d, 1' % (sP, sP))
    a('s_branch G2_LOOP')
    a.label('G2_END')
    endk(a)


def kernel():
    a = Asm()
    c1 = -2.0 * math.sqrt(2.0 / math.pi) * math.log2(math.e)
    a('s_cmp_ge_u32 s2, 256')
    a('s_cbranch_scc1 END')
    a('s_load_dwordx2 s[26:27], s[0:1], 104')
    a('s_load_dwordx4 s[4:7], s[0:1], 0')
    a('s_load_dwordx4 s[8:11], s[0:1], 16')
    a('s_load_dwordx4 s[12:15], s[0:1], 32')
    a('s_load_dwordx4 s[16:19], s[0:1], 56')
    a('s_load_dwordx4 s[20:23], s[0:1], 72')
    a('s_load_dwordx2 s[24:25], s[0:1], 88')
    a('v_lshrrev_b32 v1, 6, v0')
    a('v_readfirstlane_b32 s%d, v1' % sW)
    a('v_and_b32 v%d, 63, v0' % vL)
    a('v_lshlrev_b32 v%d, 4, v%d' % (vL16, vL))
    a('v_lshlrev_b32 v%d, 2, v%d' % (vL4, vL))
    a('s_and_b32 s%d, s2, 7' % sX)
    a('s_lshr_b32 s%d, s2, 3' % sI)
    a('s_and_b32 s%d, s%d, 15' % (sM, sI))
    a('s_lshr_b32 s%d, s%d, 4' % (sG, sI))
    a('s_lshl_b32 s63, s%d, 1' % sX)
    a('s_add_u32 s%d, s%d, s63' % (sG, sG))
    a('s_getreg_b32 s%d, hwreg(HW_REG_XCC_ID, 0, 3)' % sXCC)
    a('s_mov_b32 s%d, %d' % (sLIM, LIMIT))
    a('s_mov_b32 s%d, 0xffff0000' % sHI)
    a('s_mov_b32 s%d, 0x3acccccd' % sINV)
    a('s_mov_b32 s%d, 0x3727c5ac' % sEPS)
    a('s_mov_b32 s%d, %s' % (sC2, f2h(c1 * 0.044715)))
    a('s_mov_b32 s85, 0')
    a('s_mov_b32 s%d, 0' % sSLOW)
    if STAMP:
        a('v_mov_b32 v%d, 0' % vST)
    for r in (8, 12, 13):
        a('v_mov_b32 v%d, 0' % r)
    a('v_add_u32 v4, %d, v%d' % (L_SYNC, vL4))
    a('ds_write_b32 v4, v8')
    a('s_waitcnt lgkmcnt(0)')
    srd(a, WS, pWS, '0x10000000')
    for r in (RA, RB, RC, RD):
        a('s_mov_b64 s[%d:%d], s[%d:%d]' % (r, r + 1, WS, WS + 1))
        a('s_mov_b64 s[%d:%d], s[%d:%d]' % (r + 2, r + 3, WS + 2, WS + 3))
    stamp(a, 0)
    if DBG:
        a('s_load_dwordx2 s[92:93], s[0:1], 96')
        a('s_mov_b32 s94, 256')
        a('s_mov_b32 s95, 0x20000')
        a('s_waitcnt lgkmcnt(0)')
        a('s_cmp_eq_u32 s2, 40')
        a('s_cselect_b32 s91, 1, 0')
        dstamp(a, 0)
        a('s_cmp_eq_u32 s2, 112')
        a('s_cselect_b32 s91, 1, s91')
    a('s_sub_u32 s63, s%d, 4' % sW)
    a('s_cmp_lt_u32 s63, 3')
    a('s_cbranch_scc1 CONVW')
    kv_phase(a)
    conv_phase(a)
    s_phase(a)
    g1_phase(a)
    g2_phase(a)
    a.label('END')
    a('s_endpgm')
    return a.lines


def build():
    ref = open('cdna_kernels/%s.s.ref' % NAME).read().split('\n')
    head = [l for l in ref if l.startswith(';') and '@launch' not in l and 'Override launch' not in l and 'grid=ceil' not in l]
    s = '\n'.join(head) + '\n'
    s += '; @launch grid=(256,1,1) block=(512,1,1) lds=163840\n'
    s += '.amdgcn_target "amdgcn-amd-amdhsa--gfx950"\n.text\n'
    s += kernel_text(NAME + '_kernel', kernel(), 256)
    s += '.section .rodata,"a"\n'
    s += descriptor_text(NAME + '_kernel', 256, 102)
    return s


if __name__ == '__main__':
    for n in range(320):
        assert (n * 3277) >> 16 == n // 20
    for n in range(9):
        assert (n * 43) >> 7 == n // 3
    open(sys.argv[1], 'w').write(build())
```

```python
import re

REG_RE = re.compile(r'^(-|\|)?(abs\()?([vsa])(\d+)\)?\|?$')
RANGE_RE = re.compile(r'^(-|\|)?([vsa])\[(\d+):(\d+)\]\|?$')

TRANS = ('v_exp_f32', 'v_log_f32', 'v_rcp_f32', 'v_rsq_f32', 'v_sqrt_f32', 'v_sin_f32', 'v_cos_f32',
         'v_rcp_iflag_f32', 'v_exp_f16', 'v_rcp_f16')


def regs_of(tok):
    tok = tok.strip()
    if tok in ('vcc',):
        return {('s', 106), ('s', 107)}
    if tok == 'vcc_lo':
        return {('s', 106)}
    if tok == 'vcc_hi':
        return {('s', 107)}
    if tok == 'exec':
        return {('s', 126), ('s', 127)}
    if tok == 'exec_lo':
        return {('s', 126)}
    if tok == 'exec_hi':
        return {('s', 127)}
    if tok == 'm0':
        return {('s', 124)}
    m = REG_RE.match(tok)
    if m:
        return {(m.group(3), int(m.group(4)))}
    m = RANGE_RE.match(tok)
    if m:
        return {(m.group(2), i) for i in range(int(m.group(3)), int(m.group(4)) + 1)}
    return set()


def split_ops(s):
    out, depth, cur = [], 0, ''
    for ch in s:
        if ch in '[(':
            depth += 1
        if ch in '])':
            depth -= 1
        if ch == ',' and depth == 0:
            out.append(cur.strip())
            cur = ''
        else:
            cur += ch
    if cur.strip():
        out.append(cur.strip())
    return out


class Ins:
    __slots__ = ('text', 'mn', 'ops', 'mods', 'wr', 'rd', 'cls', 'passes', 'srcA', 'srcB', 'srcC', 'states',
                 'is_dpp', 'store_data', 'label', 'target', 'lanesel')

    def __init__(self, text):
        self.text = text
        self.label = None
        self.target = None
        self.wr, self.rd = set(), set()
        self.srcA = self.srcB = self.srcC = set()
        self.passes = 0
        self.states = 1
        self.is_dpp = False
        self.store_data = set()
        self.lanesel = set()
        t = text.split(';')[0].strip()
        if t.endswith(':'):
            self.label = t[:-1]
            self.cls = 'label'
            self.mn = ''
            self.states = 0
            return
        if not t or t.startswith('.'):
            self.cls = 'none'
            self.mn = ''
            self.states = 0
            return
        parts = t.split(None, 1)
        mn = parts[0]
        self.mn = mn
        rest = parts[1] if len(parts) > 1 else ''
        ops = split_ops(rest)
        mods = ''
        if ops:
            lp = ops[-1].split(None, 1)
            if len(lp) > 1:
                ops[-1] = lp[0]
                mods = lp[1]
        self.ops, self.mods = ops, mods
        R = [regs_of(o) for o in ops]
        base = mn.replace('_e32', '').replace('_e64', '').replace('_dpp', '').replace('_sdwa', '')
        if mn == 's_nop':
            self.cls = 'salu'
            self.states = int(ops[0], 0) + 1
            return
        if mn.startswith('s_cbranch') or mn == 's_branch':
            self.cls = 'branch'
            self.target = ops[0]
            if 'vcc' in mn:
                self.rd |= regs_of('vcc')
            if 'exec' in mn:
                self.rd |= regs_of('exec')
            return
        if mn.startswith('s_load') or mn.startswith('s_buffer_load') or mn.startswith('s_memtime') or mn.startswith('s_memrealtime') or mn.startswith('s_atomic'):
            self.cls = 'smem'
            self.wr = R[0]
            for r in R[1:]:
                self.rd |= r
            return
        if mn.startswith('s_'):
            self.cls = 'salu'
            nodst = ('s_cmp', 's_waitcnt', 's_barrier', 's_endpgm', 's_setprio', 's_sleep', 's_bitcmp', 's_sendmsg', 's_setreg', 's_setpc')
            if any(mn.startswith(x) for x in nodst):
                for r in R:
                    self.rd |= r
            else:
                if R:
                    self.wr = set(R[0])
                for r in R[1:]:
                    self.rd |= r
                if 'saveexec' in mn:
                    self.wr |= regs_of('exec')
                    self.rd |= regs_of('exec')
                if mn.startswith('s_addk') or mn.startswith('s_mulk'):
                    self.rd |= R[0]
            return
        if mn.startswith('v_mfma'):
            self.cls = 'mfma'
            self.wr = set(R[0])
            self.srcA, self.srcB, self.srcC = R[1], R[2], R[3]
            self.rd = R[1] | R[2] | R[3]
            if '32x32x16' in mn or '32x32x8' in mn:
                self.passes = 8
            elif '16x16x32' in mn or '16x16x16' in mn:
                self.passes = 4
            else:
                raise ValueError('unknown mfma ' + mn)
            return
        if mn.startswith('buffer_') or mn.startswith('global_') or mn.startswith('flat_'):
            self.cls = 'vmem'
            lds = bool(re.search(r'\blds\b', mods)) or '_lds_' in mn
            if mn in ('buffer_wbl2', 'buffer_inv'):
                return
            if lds:
                for r in R:
                    self.rd |= r
                self.rd |= regs_of('m0')
            elif '_load' in mn:
                self.wr = set(R[0])
                for r in R[1:]:
                    self.rd |= r
                if 'd16' in mn:
                    self.rd |= R[0]
            elif '_store' in mn:
                for r in R:
                    self.rd |= r
                data = R[0] if mn.startswith('buffer_') else R[1]
                if len(data) >= 3:
                    self.store_data = set(data)
            elif '_atomic' in mn:
                for r in R:
                    self.rd |= r
                if 'sc0' in mods:
                    self.wr = set(R[0])
            else:
                raise ValueError('unknown vmem ' + mn)
            return
        if mn.startswith('ds_'):
            self.cls = 'ds'
            if mn.startswith('ds_read') or mn.startswith('ds_bpermute') or mn.startswith('ds_permute') or mn.startswith('ds_swizzle') or '_rtn' in mn:
                self.wr = set(R[0])
                for r in R[1:]:
                    self.rd |= r
                if 'd16' in mn:
                    self.rd |= R[0]
            else:
                for r in R:
                    self.rd |= r
            return
        if mn.startswith('v_'):
            self.cls = 'trans' if base in TRANS else 'valu'
            if 'dpp' in mn or re.search(r'\b(row_shr|row_shl|row_ror|row_bcast|wave_shr|wave_shl|wave_ror|wave_rol|quad_perm|row_mirror|row_half_mirror|row_newbcast)\b', mods):
                self.is_dpp = True
            if base.startswith('v_cmpx'):
                self.wr = set(R[0]) | regs_of('exec')
                for r in R[1:]:
                    self.rd |= r
            elif base.startswith('v_cmp'):
                self.wr = set(R[0])
                for r in R[1:]:
                    self.rd |= r
            elif base.startswith('v_permlane') and 'swap' in base:
                self.cls = 'permlane'
                self.wr = R[0] | R[1]
                self.rd = R[0] | R[1]
            elif base == 'v_swap_b32':
                self.wr = R[0] | R[1]
                self.rd = R[0] | R[1]
            elif base in ('v_readlane_b32', 'v_readfirstlane_b32'):
                self.cls = 'readlane'
                self.wr = set(R[0])
                self.rd = set(R[1])
                if len(R) > 2:
                    self.lanesel = set(R[2])
                    self.rd |= R[2]
            elif base == 'v_writelane_b32':
                self.cls = 'writelane'
                self.wr = set(R[0])
                self.rd = R[0] | R[1]
                self.lanesel = set(R[2])
                self.rd |= R[2]
            elif base.endswith('_co_u32') or base in ('v_div_scale_f32', 'v_mad_u64_u32'):
                self.wr = R[0] | R[1]
                for r in R[2:]:
                    self.rd |= r
            elif base == 'v_nop':
                pass
            else:
                self.wr = set(R[0])
                for r in R[1:]:
                    self.rd |= r
                if base.startswith('v_fmac') or base.startswith('v_pk_fmac') or base.startswith('v_dot2c') or self.is_dpp or 'sdwa' in mn or 'op_sel' in mods and not base.startswith('v_pk'):
                    self.rd |= R[0]
                if base == 'v_cndmask_b32' and len(ops) == 3:
                    self.rd |= regs_of('vcc')
            return
        raise ValueError('cannot classify: ' + text)


VALU_LIKE = ('valu', 'trans', 'permlane', 'readlane', 'writelane')
EXEC = regs_of('exec')
M0 = regs_of('m0')


def sg(s):
    return {r for r in s if r[0] == 's'}


def vg(s):
    return {r for r in s if r[0] in 'va'}


def required(p, c):
    need = 0
    pv = p.cls in VALU_LIKE
    cv = c.cls in VALU_LIKE
    if pv:
        pw_v, pw_s = vg(p.wr), sg(p.wr)
        if pw_s:
            if c.cls == 'vmem' and pw_s & c.rd:
                need = max(need, 5)
            if cv and pw_s & c.lanesel:
                need = max(need, 4)
            if (cv or c.cls == 'mfma') and pw_s & sg(c.rd):
                need = max(need, 2)
            if c.cls in ('salu', 'smem', 'branch') and pw_s & c.rd:
                need = max(need, 2)
            if pw_s & EXEC:
                if c.is_dpp:
                    need = max(need, 5)
                if c.cls in ('readlane', 'writelane', 'permlane', 'mfma'):
                    need = max(need, 4)
        if pw_v:
            if c.is_dpp and pw_v & c.rd:
                need = max(need, 2)
            if c.cls == 'readlane' and pw_v & c.rd:
                need = max(need, 1)
            if c.cls == 'permlane' and pw_v & c.rd:
                need = max(need, 2)
            if c.cls == 'mfma' and pw_v & c.rd:
                need = max(need, 2)
            if p.cls == 'trans' and cv and c.cls != 'trans' and pw_v & c.rd:
                need = max(need, 1)
            if ('sdwa' in p.mn or ('op_sel' in p.mods and not p.mn.startswith('v_pk'))) and cv and pw_v & (c.rd | c.wr):
                need = max(need, 1)
    if p.cls == 'salu' and (p.wr & M0):
        if c.cls == 'vmem' and (c.rd & M0):
            need = max(need, 1)
        if c.cls == 'ds' and 'addtid' in c.mn:
            need = max(need, 1)
    if p.cls == 'vmem' and p.store_data:
        if p.store_data & c.wr:
            need = max(need, 2 if cv else 1)
    if p.cls == 'mfma':
        D = p.wr
        n = p.passes
        if c.cls == 'mfma':
            if D & c.srcC:
                if not (c.srcC == D and c.passes == n):
                    need = max(need, {4: 6, 8: 10}[n])
            if D & (c.srcA | c.srcB):
                need = max(need, {4: 8, 8: 12}[n])
            if D & c.wr and not (D & c.srcC):
                need = max(need, {4: 8, 8: 12}[n])
        elif cv or c.cls in ('vmem', 'ds'):
            if D & (c.rd | c.wr):
                need = max(need, {4: 8, 8: 12}[n])
        if cv and (p.srcC & c.wr):
            need = max(need, {4: 3, 8: 7}[n])
    return need


WINDOW = 14


def fix_hazards(lines, verbose=False):
    ins = [Ins(l) for l in lines]
    labels = {}

    def rebuild():
        labels.clear()
        for i, x in enumerate(ins):
            if x.label:
                labels[x.label] = i

    def history(i):
        res = []

        def walk(j, acc, dist):
            while j >= 0 and dist < WINDOW:
                x = ins[j]
                if x.label:
                    for k, y in enumerate(ins):
                        if y.cls == 'branch' and y.target == x.label:
                            walk2(k, list(acc), dist)
                    j -= 1
                    continue
                if x.cls == 'none':
                    j -= 1
                    continue
                if x.mn in ('s_branch', 's_endpgm', 's_setpc_b64'):
                    break
                if x.cls == 'mfma':
                    later = [d for (y, d) in acc if y.cls == 'mfma']
                    if later:
                        dist = max(dist, later[-1] + x.passes - 1)
                acc.append((x, dist))
                dist += x.states
                j -= 1
            res.append(acc)

        seen = set()

        def walk2(k, acc, dist):
            key = (k, dist)
            if key in seen:
                return
            seen.add(key)
            y = ins[k]
            acc.append((y, dist))
            dist += y.states
            walk(k - 1, acc, dist)

        walk(i - 1, [], 0)
        return res

    changed = True
    total = 0
    while changed:
        changed = False
        rebuild()
        i = 0
        while i < len(ins):
            c = ins[i]
            if c.cls in ('label', 'none'):
                i += 1
                continue
            worst = 0
            for path in history(i):
                for p, dist in path:
                    n = required(p, c) - dist
                    if n > worst:
                        worst = n
                        why = p
            if worst > 0:
                if verbose:
                    print('nop %d before "%s" due to "%s"' % (worst, c.text.strip(), why.text.strip()))
                ins.insert(i, Ins('    s_nop %d' % (worst - 1)))
                total += 1
                rebuild()
                i += 1
                changed = True
            i += 1
    return [x.text for x in ins], total


class Asm:
    def __init__(self):
        self.lines = []
        self._lab = 0

    def __call__(self, s):
        for l in s.strip('\n').split('\n'):
            l = l.strip()
            if not l:
                continue
            if l.endswith(':') or l.startswith('.'):
                self.lines.append(l)
            else:
                self.lines.append('    ' + l)

    def c(self, s):
        self.lines.append('    ; ' + s)

    def label(self, name):
        self.lines.append(name + ':')

    def newlabel(self, base='L'):
        self._lab += 1
        return '%s_%d' % (base, self._lab)


def vr(a, n=1):
    return 'v%d' % a if n == 1 else 'v[%d:%d]' % (a, a + n - 1)


def sr(a, n=1):
    return 's%d' % a if n == 1 else 's[%d:%d]' % (a, a + n - 1)


def kernel_text(name, body_lines, vgprs, sgprs=102):
    fixed, n = fix_hazards(body_lines)
    s = '.globl %s\n.p2align 8\n.type %s,@function\n%s:\n' % (name, name, name)
    s += '\n'.join(fixed) + '\n'
    return s


def descriptor_text(name, vgprs, sgprs=96, accum=None):
    if accum is None:
        accum = (vgprs + 3) // 4 * 4
    return ('.p2align 6\n.amdhsa_kernel %s\n  .amdhsa_next_free_vgpr %d\n  .amdhsa_next_free_sgpr %d\n'
            '  .amdhsa_accum_offset %d\n  .amdhsa_group_segment_fixed_size 0\n  .amdhsa_kernarg_size 112\n'
            '  .amdhsa_user_sgpr_count 2\n  .amdhsa_user_sgpr_kernarg_segment_ptr 1\n'
            '  .amdhsa_system_sgpr_workgroup_id_x 1\n.end_amdhsa_kernel\n') % (name, vgprs, sgprs, accum)
```

```python
import sys, os, math, struct
from asmlib import *

NAME = 'interleave_layers__ssm_conv_h3__mixer_channel_mlp__prompt'
STAMP = int(os.environ.get('STAMP', '0'))
FORCE_SLOW = int(os.environ.get('FORCE_SLOW', '0'))
STOP = os.environ.get('STOP', '')
LIMIT = 20000
DBG = int(os.environ.get('DBG', '0'))
NOW = int(os.environ.get('NOW', '0'))

EPOCH, HELLO, KVFA, KVFB, YF, ZF, PF, RF = 0, 0x1000, 0x2000, 0x4000, 0x6000, 0xA000, 0x12000, 0x1A000
KVA, KVB, YT, XR, YR, ZI, PART = 0x100000, 0x400000, 0x700000, 0xA00000, 0xD00000, 0x1000000, 0x1400000
STAMPS = 0x8000000
ROWS_B = 2048 * 1280
L_U, L_SYNC, L_W2, L_ZE, L_H, L_RS = 49920, 63744, 65536, 106496, 147456, 40960
HSTR = 4160
LF_Z0, LF_CV, LF_U, LF_R = L_SYNC + 16, L_SYNC + 32, L_SYNC + 48, L_SYNC + 64
PR_G1A, PR_G1B, PR_G2, PR_L = [int(x) for x in os.environ.get('PRIO', '1,3,2,2').split(',')]
SVP = [int(x) for x in os.environ.get('SVP', '8').split(',')]
KZP = int(os.environ.get('KZP', '32'))
pQ, pK, pV, pSH, pH, pD, pW1, pB1, pW2, pB2, pOUT, pWS = 4, 6, 8, 10, 12, 14, 16, 18, 20, 22, 24, 26
sX, sW, sI, sM = 28, 29, 30, 31
WS, RA, RB, RC, RD = 32, 36, 40, 44, 48
sG, sTAG, sXCC, sSLOW, sP, sLIM, sCNT = 52, 53, 54, 55, 56, 57, 58
sHI, sINV, sEPS, sC2 = 59, 60, 61, 62
sLO1, sHI1 = 89, 90
sST = 86
vL, vL16, vL4, vC1, vST = 1, 2, 3, 6, 7

f2h = lambda x: hex(struct.unpack('<I', struct.pack('<f', x))[0])
R4 = lambda d: 's[%d:%d]' % (d, d + 3)


def srd(a, d, p, size, add=None):
    if add is None:
        a('s_mov_b32 s%d, s%d' % (d, p)); a('s_mov_b32 s%d, s%d' % (d + 1, p + 1))
    else:
        a('s_add_u32 s%d, s%d, %s' % (d, p, add)); a('s_addc_u32 s%d, s%d, 0' % (d + 1, p + 1))
    a('s_mov_b32 s%d, %s' % (d + 2, size)); a('s_mov_b32 s%d, 0x20000' % (d + 3))


def stamp(a, idx):
    if not STAMP:
        return
    a('s_memrealtime s[%d:%d]' % (sST, sST + 1))
    if isinstance(idx, tuple):
        a('s_mul_i32 s88, s%d, %d' % (idx[0], idx[1]))
        a('s_add_u32 s88, s88, %d' % idx[2])
        a('s_lshl_b64 exec, 1, s88')
        a('s_waitcnt lgkmcnt(0)')
        a('v_mov_b32 v%d, s%d' % (vST, sST))
        a('s_mov_b64 exec, -1')
    else:
        a('s_waitcnt lgkmcnt(0)')
        a('v_writelane_b32 v%d, s%d, %d' % (vST, sST, idx))


FP = int(os.environ.get('FP', '-1'))


def fst(a, k):
    if STAMP and FP >= 0:
        a('s_memrealtime s[%d:%d]' % (92 + 2 * k, 93 + 2 * k))


def fst_flush(a):
    if STAMP and FP >= 0:
        L = a.newlabel('FS')
        a('s_waitcnt lgkmcnt(0)')
        a('s_cmp_lg_u32 s%d, %d' % (sP, FP))
        a('s_cbranch_scc1 %s' % L)
        for k in range(5):
            a('v_writelane_b32 v%d, s%d, %d' % (vST, 92 + 2 * k, 52 + k))
        a.label(L)


def dstamp(a, slot):
    if not DBG:
        return
    L = a.newlabel('DS')
    a('s_cmp_eq_u32 s91, 0')
    a('s_cbranch_scc1 %s' % L)
    a('s_memrealtime s[%d:%d]' % (sST, sST + 1))
    a('s_waitcnt lgkmcnt(0)')
    a('v_mov_b32 v%d, s%d' % (vST, sST))
    a('s_mov_b64 exec, 1')
    a('buffer_store_dword v%d, off, s[92:95], 0 offset:%d' % (vST, 4 * slot))
    a('s_mov_b64 exec, -1')
    a.label(L)


def endk(a):
    dstamp(a, 15)
    if STAMP:
        a('s_waitcnt vmcnt(0)')
        stamp(a, 63)
        a('s_lshl_b32 s63, s2, 3')
        a('s_add_u32 s63, s63, s%d' % sW)
        a('s_lshl_b32 s63, s63, 8')
        a('s_add_u32 s63, s63, %s' % hex(STAMPS))
        a('s_mov_b64 exec, -1')
        a('buffer_store_dword v%d, v%d, %s, s63 offen' % (vST, vL4, R4(WS)))
    a('s_endpgm')


def setexec(a, n):
    if n == 64:
        a('s_mov_b64 exec, -1')
    elif n <= 6:
        a('s_mov_b64 exec, %d' % ((1 << n) - 1))
    elif n <= 32:
        a('s_mov_b32 exec_lo, %s' % ('-1' if n == 32 else hex((1 << n) - 1))); a('s_mov_b32 exec_hi, 0')
    else:
        a('s_mov_b32 exec_lo, -1'); a('s_mov_b32 exec_hi, %s' % hex((1 << (n - 32)) - 1))


def poll(a, soff, nl, vT, pre=False):
    L, C, D = a.newlabel('PL'), a.newlabel('PC'), a.newlabel('PD')
    a('s_mov_b32 s%d, 0' % sCNT)
    setexec(a, nl)
    if pre:
        a('s_branch %s' % C)
    a.label(L)
    a('buffer_load_dword v%d, v%d, %s, s%d offen sc1' % (vT, vL4, R4(WS), soff))
    a.label(C)
    a('s_add_u32 s%d, s%d, 1' % (sCNT, sCNT))
    a('s_waitcnt vmcnt(0)')
    a('v_cmp_ne_u32 vcc, s%d, v%d' % (sTAG, vT))
    a('s_cbranch_vccz %s' % D)
    a('s_cmp_lt_u32 s%d, s%d' % (sCNT, sLIM))
    a('s_cbranch_scc1 %s' % L)
    a('s_mov_b32 s%d, 0' % sLIM)
    a.label(D)
    setexec(a, 64)


def flag_store(a, soff, vT, sc1):
    a('v_mov_b32 v%d, s%d' % (vT, sTAG))
    a('s_mov_b64 exec, 1')
    a('buffer_store_dword v%d, off, %s, s%d%s' % (vT, R4(WS), soff, ' sc1' if sc1 else ''))
    a('s_mov_b64 exec, -1')


def hello_check(a, vT, st):
    L, D = a.newlabel('HL'), a.newlabel('HD')
    a('s_lshl_b32 s%d, s%d, 7' % (st, sX))
    a('s_add_u32 s%d, s%d, %d' % (st, st, HELLO))
    a('s_mov_b32 s%d, 0' % sCNT)
    setexec(a, 32)
    a.label(L)
    a('buffer_load_dword v%d, v%d, %s, s%d offen sc1' % (vT, vL4, R4(WS), st))
    a('s_add_u32 s%d, s%d, 1' % (sCNT, sCNT))
    a('s_waitcnt vmcnt(0)')
    a('v_xor_b32 v%d, s%d, v%d' % (vT, sTAG, vT))
    a('v_cmp_lt_u32 vcc, 15, v%d' % vT)
    a('v_and_b32 v%d, 1, v%d' % (vT + 1, vT))
    a('v_cmp_ne_u32 s[64:65], 0, v%d' % (vT + 1))
    a('s_or_b64 vcc, vcc, s[64:65]')
    a('s_cbranch_vccz %s' % D)
    a('s_cmp_lt_u32 s%d, s%d' % (sCNT, sLIM))
    a('s_cbranch_scc1 %s' % L)
    a('s_mov_b32 s%d, 0' % sLIM)
    a.label(D)
    a('s_lshl_b32 s%d, s%d, 1' % (st, sXCC))
    a('v_cmp_ne_u32 vcc, s%d, v%d' % (st, vT))
    a('s_cmp_lg_u64 vcc, 0')
    a('s_cselect_b32 s%d, 1, %d' % (sSLOW, FORCE_SLOW))
    setexec(a, 64)


def get_tag(a, vE):
    a('v_readfirstlane_b32 s%d, v%d' % (sTAG, vE))
    a('s_mul_i32 s%d, s%d, 0x9E3779B1' % (sTAG, sTAG))
    a('s_add_u32 s%d, s%d, 0x7F4A7C15' % (sTAG, sTAG))


def lds_spin(a, addr, n, vT):
    L, D = a.newlabel('SL'), a.newlabel('SD')
    a('v_mov_b32 v%d, %d' % (vT + 4, addr))
    a('s_mov_b32 s%d, 0' % sCNT)
    a.label(L)
    a('ds_read_b128 %s, v%d' % (vr(vT, 4), vT + 4))
    a('s_add_u32 s%d, s%d, 1' % (sCNT, sCNT))
    a('s_waitcnt lgkmcnt(0)')
    for k in range(1, n):
        a('v_and_b32 v%d, v%d, v%d' % (vT, vT, vT + k))
    a('v_cmp_eq_u32 vcc, 0, v%d' % vT)
    a('s_cbranch_vccz %s' % D)
    a('s_cmp_lt_u32 s%d, %d' % (sCNT, 4 * LIMIT))
    a('s_cbranch_scc1 %s' % L)
    a.label(D)


def lds_flag(a, base, sIdx, vT):
    a('s_lshl_b32 s64, s%d, 2' % sIdx)
    a('s_add_u32 s64, s64, %d' % base)
    a('v_mov_b32 v%d, s64' % vT)
    a('v_mov_b32 v%d, 1' % (vT + 1))
    a('ds_write_b32 v%d, v%d' % (vT, vT + 1))


def wave_sum(v):
    return ['v_add_f32 v%d, v%d, v%d row_shr:1 row_mask:0xf bank_mask:0xf bound_ctrl:0' % (v, v, v),
            'v_add_f32 v%d, v%d, v%d row_shr:2 row_mask:0xf bank_mask:0xf bound_ctrl:0' % (v, v, v),
            'v_add_f32 v%d, v%d, v%d row_shr:4 row_mask:0xf bank_mask:0xf bound_ctrl:0' % (v, v, v),
            'v_add_f32 v%d, v%d, v%d row_shr:8 row_mask:0xf bank_mask:0xf bound_ctrl:0' % (v, v, v),
            'v_add_f32 v%d, v%d, v%d row_bcast:15 row_mask:0xa bank_mask:0xf' % (v, v, v),
            'v_add_f32 v%d, v%d, v%d row_bcast:31 row_mask:0xc bank_mask:0xf' % (v, v, v)]


def P2(r):
    return 'v[%d:%d]' % (r, r + 1)


def S2(r):
    return 's[%d:%d]' % (r, r + 1)


def stats(X, D, T, sm, sr_, pk, double=False):
    o = []
    if pk:
        o.append('v_pk_add_f32 %s, %s, %s' % (P2(T), P2(X), P2(X + 2)))
        for i in range(4, 10, 2):
            o.append('v_pk_add_f32 %s, %s, %s' % (P2(T), P2(T), P2(X + i)))
    else:
        o.append('v_add_f32 v%d, v%d, v%d' % (T, X, X + 1))
        o.append('v_add_f32 v%d, v%d, v%d' % (T + 1, X + 2, X + 3))
        for i in range(4, 10, 2):
            o.append('v_add_f32 v%d, v%d, v%d' % (T, T, X + i))
            o.append('v_add_f32 v%d, v%d, v%d' % (T + 1, T + 1, X + i + 1))
    o.append('v_add_f32 v%d, v%d, v%d' % (T, T, T + 1))
    o += wave_sum(T)
    o.append('v_mul_f32 v%d, s%d, v%d' % (T, sINV, T))
    o.append('v_readlane_b32 s%d, v%d, 63' % (sm, T))
    if pk:
        for i in range(0, 10, 2):
            o.append('v_pk_add_f32 %s, %s, %s op_sel_hi:[1,0] neg_lo:[0,1] neg_hi:[0,1]' % (P2(D + i), P2(X + i), S2(sm)))
        o.append('v_pk_mul_f32 %s, %s, %s' % (P2(T), P2(D), P2(D)))
        for i in range(2, 10, 2):
            o.append('v_pk_fma_f32 %s, %s, %s, %s' % (P2(T), P2(D + i), P2(D + i), P2(T)))
    else:
        for i in range(10):
            o.append('v_subrev_f32 v%d, s%d, v%d' % (D + i, sm, X + i))
        o.append('v_mul_f32 v%d, v%d, v%d' % (T, D, D))
        o.append('v_mul_f32 v%d, v%d, v%d' % (T + 1, D + 1, D + 1))
        for i in range(2, 10, 2):
            o.append('v_fmac_f32 v%d, v%d, v%d' % (T, D + i, D + i))
            o.append('v_fmac_f32 v%d, v%d, v%d' % (T + 1, D + i + 1, D + i + 1))
    o.append('v_add_f32 v%d, v%d, v%d' % (T, T, T + 1))
    o += wave_sum(T)
    if not double:
        o.append('v_mov_b32 v%d, s%d' % (T + 1, sEPS))
        o.append('v_fmac_f32 v%d, s%d, v%d' % (T + 1, sINV, T))
        o.append('v_rsq_f32 v%d, v%d' % (T, T + 1))
    else:
        o.append('v_mul_f32 v%d, s%d, v%d' % (T, sINV, T))
        o.append('v_add_f32 v%d, s%d, v%d' % (T + 1, sEPS, T))
        o.append('v_rsq_f32 v%d, v%d' % (T + 1, T + 1))
        o.append('v_mul_f32 v%d, v%d, v%d' % (T, T, T + 1))
        o.append('v_fma_f32 v%d, v%d, v%d, s%d' % (T, T, T + 1, sEPS))
        o.append('v_rsq_f32 v%d, v%d' % (T, T))
        o.append('v_mul_f32 v%d, v%d, v%d' % (T, T, T + 1))
    o.append('v_readlane_b32 s%d, v%d, 63' % (sr_, T))
    return o


def scale10(dst, src, sr_, pk):
    if pk:
        return ['v_pk_mul_f32 %s, %s, %s op_sel_hi:[1,0]' % (P2(dst + i), P2(src + i), S2(sr_)) for i in range(0, 10, 2)]
    return ['v_mul_f32 v%d, s%d, v%d' % (dst + i, sr_, src + i) for i in range(10)]


def acc10(dst, src, dot):
    o = []
    for i in range(5):
        o.append('v_dot2c_f32_bf16 v%d, s%d, v%d' % (dst + 2 * i, sLO1, src[i]))
        o.append('v_dot2c_f32_bf16 v%d, s%d, v%d' % (dst + 2 * i + 1, sHI1, src[i]))
    return o


def unpack10(dst, src):
    o = []
    for i in range(5):
        o.append('v_lshlrev_b32 v%d, 16, v%d' % (dst + 2 * i, src[i]))
        o.append('v_and_b32 v%d, s%d, v%d' % (dst + 2 * i + 1, sHI, src[i]))
    return o


def pack10(dst, src):
    return ['v_cvt_pk_bf16_f32 v%d, v%d, v%d' % (dst[i], src + 2 * i, src + 2 * i + 1) for i in range(5)]


class Blk:
    def __init__(self, B, sm, sr_, yraw=None):
        self.XR = [B, B + 1, B + 2, B + 3, B + 4]
        self.YR = yraw or [B + 8, B + 9, B + 10, B + 11, B + 5]
        self.ZP = [B + 12, B + 13, B + 14, B + 15, B + 6]
        self.X, self.Y, self.D, self.T = B + 16, B + 26, B + 36, B + 46
        self.sm, self.sr = sm, sr_


def gate_pre(b, pk):
    return stats(b.X, b.D, b.T, b.sm, b.sr, pk)


def gate_post(b, pk):
    o = unpack10(b.Y, b.YR)
    if pk:
        for i in range(0, 10, 2):
            o.append('v_pk_mul_f32 %s, %s, %s' % (P2(b.D + i), P2(b.D + i), P2(b.Y + i)))
        for i in range(0, 10, 2):
            o.append('v_pk_fma_f32 %s, %s, %s, %s op_sel_hi:[1,0,1]' % (P2(b.X + i), P2(b.D + i), S2(b.sr), P2(b.X + i)))
    else:
        for i in range(10):
            o.append('v_mul_f32 v%d, v%d, v%d' % (b.D + i, b.D + i, b.Y + i))
        for i in range(10):
            o.append('v_fmac_f32 v%d, s%d, v%d' % (b.X + i, b.sr, b.D + i))
    o += stats(b.X, b.D, b.T, b.sm, b.sr, pk, double=True)
    o += scale10(b.D, b.D, b.sr, pk)
    o += pack10(b.ZP, b.D)
    o += pack10(b.XR, b.X)
    return o


def gate_ln_z(b, pk):
    return gate_pre(b, pk) + gate_post(b, pk)


def row_store(a, regs, srdn, soff, sc1):
    c = ' sc1' if sc1 else ''
    a('buffer_store_dwordx4 %s, v%d, %s, s%d offen%s' % (vr(regs[0], 4), vL16, R4(srdn), soff, c))
    a('buffer_store_dword v%d, v%d, %s, s%d offen offset:1024%s' % (regs[4], vL4, R4(srdn), soff, c))


def row_load(a, regs, srdn, soff, sc1=True):
    c = ' sc1' if sc1 else ''
    a('buffer_load_dwordx4 %s, v%d, %s, s%s offen%s' % (vr(regs[0], 4), vL16, R4(srdn), soff, c))
    a('buffer_load_dword v%d, v%d, %s, s%s offen offset:1024%s' % (regs[4], vL4, R4(srdn), soff, c))


def z_addr(a, sj, va, vb, st):
    a('s_and_b32 s%d, s%d, 15' % (st, sj))
    a('s_lshl_b32 s%d, s%d, 8' % (st + 1, sj))
    a('v_and_b32 v%d, 15, v%d' % (va, vL))
    a('v_xor_b32 v%d, s%d, v%d' % (va, st, va))
    a('v_lshlrev_b32 v%d, 4, v%d' % (va, va))
    a('v_lshrrev_b32 v%d, 4, v%d' % (vb, vL))
    a('v_lshl_add_u32 v%d, v%d, 13, v%d' % (va, vb, va))
    a('v_add_u32 v%d, s%d, v%d' % (va, st + 1, va))
    a('v_lshrrev_b32 v%d, 2, v%d' % (vb, vL))
    a('v_xor_b32 v%d, s%d, v%d' % (vb, st, vb))
    a('v_lshlrev_b32 v%d, 2, v%d' % (vb, vb))
    a('v_and_or_b32 v%d, v%d, 3, v%d' % (vb, vL, vb))
    a('v_lshlrev_b32 v%d, 2, v%d' % (vb, vb))
    a('s_add_u32 s%d, s%d, 0x8000' % (st + 1, st + 1))
    a('v_add_u32 v%d, s%d, v%d' % (vb, st + 1, vb))


def z_store(a, b, va, vb, soff, sc1):
    c = ' sc1' if sc1 else ''
    a('buffer_store_dwordx4 %s, v%d, %s, s%d offen%s' % (vr(b.ZP[0], 4), va, R4(WS), soff, c))
    a('buffer_store_dword v%d, v%d, %s, s%d offen%s' % (b.ZP[4], vb, R4(WS), soff, c))


def both(a, fn):
    S, D = a.newlabel('BS'), a.newlabel('BD')
    a('s_cmp_lg_u32 s%d, 0' % sSLOW)
    a('s_cbranch_scc1 %s' % S)
    fn(False)
    a('s_branch %s' % D)
    a.label(S)
    fn(True)
    a.label(D)


def emit(a, lst):
    for l in lst:
        a(l)


def zip2(x, y):
    o = []
    for p, q in zip(x, y):
        o += [p, q]
    return o


vW2O = 8
WB = 96


def w2_setup(a, sWp):
    srd(a, RA, pW2, 1728 * 1280)
    a('s_mul_i32 s70, s%d, 10240' % sWp)
    a('s_add_u32 s70, s70, %d' % L_W2)
    a('s_mul_i32 s71, s%d, %d' % (sM, 128 * 1280))
    a('s_mul_i32 s72, s%d, 320' % sWp)
    a('s_add_u32 s71, s71, s72')
    a('s_movk_i32 s72, 3277')
    a('s_movk_i32 s73, 960')
    for q in range(5):
        a('v_add_u32 v14, %d, v%d' % (64 * q, vL))
        a('v_mul_u32_u24 v15, s72, v14')
        a('v_lshrrev_b32 v15, 16, v15')
        a('v_lshlrev_b32 v14, 4, v14')
        a('v_mad_u32_u24 v14, v15, s73, v14')
        a('v_add_u32 v%d, s71, v14' % (vW2O + q))
    a('v_lshrrev_b32 v14, 5, v%d' % vL)
    a('v_bfe_u32 v15, v%d, 2, 2' % vL)
    a('v_lshl_add_u32 v14, v14, 2, v15')
    a('v_mul_u32_u24 v13, 320, v14')
    a('v_add_u32 v13, s70, v13')
    a('v_bfe_u32 v14, v%d, 4, 1' % vL)
    a('v_and_b32 v15, 3, v%d' % vL)
    a('v_lshl_add_u32 v14, v14, 2, v15')
    a('v_lshl_add_u32 v6, v14, 3, v13')
    a('v_add_u32 v6, 256, v6')
    a('v_lshl_add_u32 v13, v14, 4, v13')
    a('v_add_u32 v0, s70, v%d' % vL16)


def w2_loads():
    o = []
    if NOW:
        return o
    for ks in range(8):
        for q in range(5):
            g = ['s_mov_b32 s71, %d' % (ks * 20480)] if q == 0 else []
            g.append('buffer_load_dwordx4 %s, v%d, %s, s71 offen' % (vr(WB + (q * 8 + ks) * 4, 4), vW2O + q, R4(RA)))
            o.append(g)
    return o


def w2_xpose(a, waited):
    a('s_mov_b32 s70, 0x05040100')
    a('s_mov_b32 s71, 0x07060302')
    n = 0
    for ks in range(8):
        h = ks & 1
        if not waited:
            a('s_waitcnt vmcnt(%d)' % (35 - 5 * ks))
        for q in range(5):
            R, T = WB + (q * 8 + ks) * 4, 16 + 4 * (n % 4)
            n += 1
            a('v_perm_b32 v%d, v%d, v%d, s70' % (T, R + 1, R))
            a('v_perm_b32 v%d, v%d, v%d, s70' % (T + 1, R + 3, R + 2))
            a('v_perm_b32 v%d, v%d, v%d, s71' % (T + 2, R + 1, R))
            a('v_perm_b32 v%d, v%d, v%d, s71' % (T + 3, R + 3, R + 2))
            a('ds_write_b128 v0, %s offset:%d' % (vr(T, 4), 5120 * h + 1024 * q))
        for j in range(5):
            for hh in range(2):
                if j < 4:
                    a('ds_read_b64_tr_b16 %s, v13 offset:%d' % (vr(WB + (j * 8 + ks) * 4 + 2 * hh, 2), 5120 * h + 2560 * hh + 128 * (j >> 1) + 8 * (j & 1)))
                else:
                    a('ds_read_b64_tr_b16 %s, v6 offset:%d' % (vr(WB + (j * 8 + ks) * 4 + 2 * hh, 2), 5120 * h + 2560 * hh))
        a('s_waitcnt lgkmcnt(4)')
    a('s_waitcnt lgkmcnt(0)')


def w1_setup(a):
    srd(a, RA, pW1, 640 * 3456)
    a('s_mul_i32 s70, s%d, 10240' % sW)
    a('s_add_u32 s70, s70, %d' % L_ZE)
    a('s_lshl_b32 s71, s%d, 8' % sM)
    a('s_lshl_b32 s72, s%d, 6' % sW)
    a('s_add_u32 s71, s71, s72')
    a('v_lshrrev_b32 v14, 2, v%d' % vL)
    a('v_mul_u32_u24 v8, 3456, v14')
    a('v_and_b32 v14, 3, v%d' % vL)
    a('v_lshl_add_u32 v8, v14, 4, v8')
    a('v_add_u32 v8, s71, v8')
    a('v_lshrrev_b32 v14, 5, v%d' % vL)
    a('v_bfe_u32 v15, v%d, 2, 2' % vL)
    a('v_lshl_add_u32 v14, v14, 3, v15')
    a('v_lshlrev_b32 v13, 6, v14')
    a('v_bfe_u32 v14, v%d, 4, 1' % vL)
    a('v_lshl_add_u32 v13, v14, 5, v13')
    a('v_and_b32 v14, 3, v%d' % vL)
    a('v_lshl_add_u32 v13, v14, 3, v13')
    a('v_add_u32 v13, s70, v13')
    a('v_add_u32 v9, s70, v%d' % vL16)


def w1_loads(a):
    for ks in range(40):
        a('s_mov_b32 s71, %d' % (ks * 55296))
        a('buffer_load_dwordx4 %s, v8, %s, s71 offen' % (vr(WB + 4 * ks, 4), R4(RA)))


def kv_phase(a):
    K0, V0, SH, OUT = 16, 30, 40, 48
    KF, TP, AC = 56, 64, 68
    a.label('KV')
    a('buffer_load_dword v4, off, %s, 0 sc1' % R4(WS))
    srd(a, RB, pK, hex(ROWS_B))
    srd(a, RC, pV, hex(ROWS_B))
    srd(a, RD, pSH, 5120)
    a('s_min_u32 s63, s%d, 4' % sW)
    a('s_mul_i32 s64, s%d, 80' % sX)
    a('s_lshl_b32 s65, s63, 4')
    a('s_add_u32 s64, s64, s65')
    a('s_mul_i32 s65, s%d, %d' % (sI, 64 * 1280))
    a('s_lshl_b32 s66, s64, 1')
    a('s_add_u32 s65, s65, s66')
    a('v_and_b32 v14, 15, v%d' % vL)
    a('v_lshrrev_b32 v15, 4, v%d' % vL)
    a('v_mul_u32_u24 v10, 5120, v14')
    a('v_lshl_add_u32 v10, v15, 3, v10')
    a('v_add_u32 v10, s65, v10')
    a('v_subrev_u32 v9, 3840, v10')
    for r in range(3):
        a('buffer_load_dwordx2 %s, v9, %s, 0 offen offset:%d' % (vr(K0 + 2 * r, 2), R4(RB), 1280 * r))
    for r in range(4):
        a('buffer_load_dwordx2 %s, v10, %s, 0 offen offset:%d' % (vr(K0 + 6 + 2 * r, 2), R4(RB), 1280 * r))
    for r in range(4):
        a('buffer_load_dwordx2 %s, v10, %s, 0 offen offset:%d' % (vr(V0 + 2 * r, 2), R4(RC), 1280 * r))
    a('v_lshlrev_b32 v11, 5, v15')
    a('s_lshl_b32 s66, s64, 3')
    a('buffer_load_dwordx4 %s, v11, %s, s66 offen' % (vr(SH, 4), R4(RD)))
    a('buffer_load_dwordx4 %s, v11, %s, s66 offen offset:16' % (vr(SH + 4, 4), R4(RD)))
    a('s_barrier')
    a('v_lshlrev_b32 v5, 14, v15')
    a('v_lshlrev_b32 v14, 3, v14')
    a('v_sub_u32 v5, v5, v14')
    a('v_add_u32 v5, 120, v5')
    a('s_lshl_b32 s67, s64, 12')
    a('s_lshl_b32 s66, s%d, 7' % sI)
    a('s_sub_u32 s67, s67, s66')
    a('s_add_u32 s67, s67, 3968')
    a('s_mul_i32 s68, s%d, 5' % sX)
    a('s_add_u32 s68, s68, s63')
    a('s_lshl_b32 s68, s68, 7')
    a('s_lshl_b32 s66, s%d, 2' % sI)
    a('s_add_u32 s68, s68, s66')
    a('s_waitcnt vmcnt(13)')
    get_tag(a, 4)
    a('s_cmp_lg_u32 s%d, 7' % sW)
    a('s_cbranch_scc1 KV_NOH')
    a('s_lshl_b32 s66, s%d, 1' % sXCC)
    a('s_xor_b32 s66, s66, s%d' % sTAG)
    a('v_mov_b32 v4, s66')
    a('s_lshl_b32 s66, s%d, 7' % sX)
    a('s_lshl_b32 s69, s%d, 2' % sI)
    a('s_add_u32 s66, s66, s69')
    a('s_mov_b64 exec, 1')
    a('s_add_u32 s66, s66, %d' % HELLO)
    a('buffer_store_dword v4, off, %s, s66 sc1' % R4(WS))
    a('s_mov_b64 exec, -1')
    a('s_waitcnt vmcnt(1)')
    a('s_branch KV_GO')
    a.label('KV_NOH')
    a('s_waitcnt vmcnt(0)')
    a.label('KV_GO')
    stamp(a, 1)
    for e in range(4):
        d = e >> 1
        def unp(dst, src):
            if e & 1:
                a('v_and_b32 v%d, s%d, v%d' % (dst, sHI, src))
            else:
                a('v_lshlrev_b32 v%d, 16, v%d' % (dst, src))
        for r in range(7):
            unp(KF + r, K0 + 2 * r + d)
        for j in range(4):
            src = SH + 2 * e + (j >> 1)
            if j & 1:
                a('v_and_b32 v%d, s%d, v%d' % (TP + j, sHI, src))
            else:
                a('v_lshlrev_b32 v%d, 16, v%d' % (TP + j, src))
        for t in range(4):
            a('v_mul_f32 v%d, v%d, v%d' % (AC + t, TP + 3, KF + t))
        for jj in (2, 1, 0):
            for t in range(4):
                a('v_fmac_f32 v%d, v%d, v%d' % (AC + t, TP + jj, KF + 3 + t - jj))
        for t in range(4):
            unp(KF + t, V0 + 2 * t + d)
        for t in range(4):
            a('v_mul_f32 v%d, v%d, v%d' % (AC + t, AC + t, KF + t))
        a('v_cvt_pk_bf16_f32 v%d, v%d, v%d' % (OUT + 2 * e, AC + 3, AC + 2))
        a('v_cvt_pk_bf16_f32 v%d, v%d, v%d' % (OUT + 2 * e + 1, AC + 1, AC))
        a('s_add_u32 s66, s67, %s' % hex(KVA + 4096 * e))
        a('buffer_store_dwordx2 %s, v5, %s, s66 offen' % (vr(OUT + 2 * e, 2), R4(WS)))
    a('s_lshl_b32 s66, s%d, 1' % sXCC)
    a('s_add_u32 s66, s66, s%d' % sTAG)
    a('v_mov_b32 v4, s66')
    a('s_add_u32 s66, s68, %d' % KVFA)
    a('s_waitcnt vmcnt(0)')
    a('s_mov_b64 exec, 1')
    a('buffer_store_dword v4, off, %s, s66' % R4(WS))
    a('s_mov_b64 exec, -1')
    stamp(a, 2)
    dstamp(a, 2)
    a('s_cmp_lt_u32 s%d, 14' % sM)
    a('s_cbranch_scc1 KV_MEM')
    a('v_mov_b32 v4, s%d' % sTAG)
    a('v_mov_b32 v14, %d' % L_SYNC)
    a('ds_write_b32 v14, v4')
    a('s_waitcnt lgkmcnt(0)')
    a('s_barrier')
    a.label('KV_MEM')
    hello_check(a, 14, 66)
    a('s_cmp_eq_u32 s%d, 0' % sSLOW)
    a('s_cbranch_scc1 KV_DONE')
    for e in range(4):
        a('s_add_u32 s66, s67, %s' % hex(KVB + 4096 * e))
        a('buffer_store_dwordx2 %s, v5, %s, s66 offen sc1' % (vr(OUT + 2 * e, 2), R4(WS)))
    a('s_add_u32 s66, s68, %d' % KVFB)
    a('s_waitcnt vmcnt(0)')
    flag_store(a, 66, 4, True)
    a.label('KV_DONE')
    stamp(a, 3)
    a('s_cmp_ge_u32 s%d, 14' % sM)
    a('s_cbranch_scc1 S_MAIN')
    a('s_cmp_eq_u32 s%d, 7' % sW)
    a('s_cbranch_scc1 G2_W7')
    a('s_branch G1_INIT')


class LdsQ:
    def __init__(self, a):
        self.a, self.q = a, []
    def issue(self, key, text):
        self.a(text); self.q.append(key)
    def wait(self, keys):
        last = -1
        for i, k in enumerate(self.q):
            if k in keys:
                last = i
        if last >= 0:
            n = len(self.q) - 1 - last
            self.a('s_waitcnt lgkmcnt(%d)' % n)
            self.q = self.q[last + 1:]


CACC, CB, CA, CE = 16, 32, 64, 80
vCA, vCB = 14, 15
CF0, CF1 = 36, 40


def lds_gate(a):
    lds_spin(a, LF_U, 3, 16)


def conv_part(a, taus, kappas, started, hooks={}):
    mf = []
    for k in kappas:
        for aa in range(max(taus) + 1):
            for t in taus:
                if t >= aa:
                    mf.append((('A', aa, k), ('B', t - aa, k), t))
    order, last = [], {}
    for i, (fa, fb, t) in enumerate(mf):
        for f in (fb, fa):
            if f not in last:
                order.append(f)
            last[f] = i
    free = {'A': list(range(4)), 'B': list(range(8))}
    slot = {}
    q = LdsQ(a)
    nxt = 0
    def reg(f):
        return (CA if f[0] == 'A' else CB) + 4 * slot[f]
    def try_issue(budget):
        nonlocal nxt
        while nxt < len(order) and budget > 0:
            f = order[nxt]
            cost = 2 if f[0] == 'A' else 1
            if not free[f[0]] or len(q.q) + cost > 14:
                break
            slot[f] = free[f[0]].pop(0)
            if f[0] == 'A':
                off = 512 * f[1] + 64 * f[2]
                q.issue(f, 'ds_read_b64 %s, v%d offset:%d' % (vr(reg(f), 2), vCA, off))
                q.issue(f, 'ds_read_b64 %s, v%d offset:%d' % (vr(reg(f) + 2, 2), vCA, off + 8))
            else:
                q.issue(f, 'ds_read_b128 %s, v%d offset:%d' % (vr(reg(f), 4), vCB, 512 * (7 - f[1]) + 64 * f[2]))
            budget -= cost
            nxt += 1
    try_issue(12)
    for i, (fa, fb, t) in enumerate(mf):
        while fa not in slot or fb not in slot:
            n0 = nxt
            try_issue(2)
            if nxt == n0:
                q.wait([q.q[0]])
        q.wait([fa, fb])
        acc = CACC + 4 * (t - taus[0])
        c = vr(acc, 4) if t in started else '0'
        started.add(t)
        a('v_mfma_f32_16x16x32_bf16 %s, %s, %s, %s' % (vr(acc, 4), vr(reg(fa), 4), vr(reg(fb), 4), c))
        for f in (fa, fb):
            if last[f] == i:
                free[f[0]].append(slot[f])
        try_issue(3)
        if i in hooks:
            hooks[i]()


def conv_epilogue(a, taus, stage):
    T = 88
    for n, t in enumerate(taus):
        a('ds_read_b64 %s, v4 offset:%d' % (vr(CE + 2 * n, 2), 512 * (7 - t)))
    a('s_waitcnt lgkmcnt(0)')
    for pr in range(len(taus) // 2):
        Q = CB + 4 * pr
        for h in range(2):
            n = 2 * pr + h
            e0, e1 = CE + 2 * n, CE + 2 * n + 1
            acc = CACC + 4 * n
            a('v_and_b32 v%d, s%d, v%d' % (T + 0, sHI, e1))
            a('v_lshlrev_b32 v%d, 16, v%d' % (T + 1, e1))
            a('v_and_b32 v%d, s%d, v%d' % (T + 2, sHI, e0))
            a('v_lshlrev_b32 v%d, 16, v%d' % (T + 3, e0))
            for r in range(4):
                a('v_fmac_f32 v%d, s74, v%d' % (acc + r, T + r))
            a('v_cvt_pk_bf16_f32 v%d, v%d, v%d' % (Q + 2 * h, acc, acc + 1))
            a('v_cvt_pk_bf16_f32 v%d, v%d, v%d' % (Q + 2 * h + 1, acc + 2, acc + 3))
        a('v_permlane16_swap_b32 v%d, v%d' % (Q, Q + 2))
        a('v_permlane16_swap_b32 v%d, v%d' % (Q + 1, Q + 3))
        a('buffer_store_dwordx4 %s, v5, %s, s75 offen offset:%d sc1' % (vr(Q, 4), R4(WS), 512 * taus[2 * pr]))


def conv_flag(a, stage):
    a('s_add_u32 s66, s76, %d' % (YF + 4096 * stage))
    a('s_waitcnt vmcnt(0)')
    flag_store(a, 66, 88, True)


def conv_phase(a):
    a.label('CONVW')
    a('s_cmp_ge_u32 s%d, 14' % sM)
    a('s_cbranch_scc1 S_WAIT')
    a('s_sub_u32 s69, s%d, 4' % sW)
    a('s_mul_i32 s63, s%d, 3' % sM)
    a('s_lshl_b32 s64, s%d, 1' % sM)
    a('s_add_u32 s64, s64, 12')
    a('s_cmp_lt_u32 s%d, 12' % sM)
    a('s_cselect_b32 s63, s63, s64')
    a('s_cselect_b32 s77, 3, 2')
    a('s_cmp_ge_u32 s69, s77')
    a('s_cbranch_scc1 G2_NOCONV')
    a('s_setprio 3')
    a('buffer_load_dword v4, off, %s, 0 sc1' % R4(WS))
    a('s_lshr_b32 s64, s%d, 4' % sI)
    a('s_mul_i32 s64, s64, 40')
    a('s_add_u32 s63, s63, s64')
    a('s_add_u32 s63, s63, s69')
    a('s_mul_i32 s64, s%d, 80' % sX)
    a('s_add_u32 s64, s64, s63')
    a('s_lshl_b32 s65, s64, 12')
    srd(a, RB, pH, 4096, 's65')
    a('v_subrev_u32 v14, 32, v%d' % vL16)
    a('v_subrev_u32 v15, 16, v%d' % vL16)
    a('v_add_u32 v5, 992, v%d' % vL16)
    HQ, HD = 16, 40
    a('buffer_load_dwordx4 %s, v14, %s, 0 offen' % (vr(HQ, 4), R4(RB)))
    a('buffer_load_dwordx2 %s, v15, %s, 0 offen' % (vr(HD, 2), R4(RB)))
    for j in range(1, 5):
        a('buffer_load_dwordx4 %s, v5, %s, 0 offen offset:%d' % (vr(HQ + 4 * j, 4), R4(RB), 1024 * (j - 1)))
        a('buffer_load_dwordx2 %s, v5, %s, 0 offen offset:%d' % (vr(HD + 2 * j, 2), R4(RB), 1024 * (j - 1) + 16))
    a('s_barrier')
    a('s_and_b32 s66, s64, 0xfffffffe')
    a('s_lshl_b32 s66, s66, 1')
    a('s_load_dword s74, s[%d:%d], s66' % (pD, pD + 1))
    a('s_add_u32 s75, s65, %s' % hex(YT))
    a('s_lshl_b32 s76, s64, 2')
    a('s_lshr_b32 s78, s63, 4')
    a('s_mul_i32 s79, s%d, 5' % sX)
    a('s_add_u32 s78, s78, s79')
    a('s_lshl_b32 s78, s78, 7')
    a('s_add_u32 s78, s78, %d' % KVFA)
    a('s_mov_b32 s79, s65')
    w2_setup(a, 69)
    a('s_mul_i32 s80, s69, 16640')
    a('s_mul_i32 s81, s69, 4608')
    a('s_add_u32 s81, s81, %d' % L_U)
    a('v_add_u32 v5, s80, v%d' % vL16)
    a('v_mov_b32 v56, 0'); a('v_mov_b32 v57, 0'); a('v_mov_b32 v58, 0'); a('v_mov_b32 v59, 0')
    a('v_add_u32 v14, s81, v%d' % vL16)
    setexec(a, 32)
    a('ds_write_b128 v14, v[56:59] offset:4096')
    setexec(a, 64)
    a('s_waitcnt lgkmcnt(0)')
    a('s_bitcmp1_b32 s64, 0')
    a('s_cbranch_scc1 CV_DHI')
    a('s_lshl_b32 s74, s74, 16')
    a.label('CV_DHI')
    a('s_and_b32 s74, s74, 0xffff0000')
    for j in range(5):
        a('s_waitcnt vmcnt(%d)' % (2 * (4 - j)))
        if j == 0:
            get_tag(a, 4)
        if j == 4:
            a('s_mov_b64 exec, 3')
        d = [HQ + 4 * j + e for e in range(4)] + [HD + 2 * j, HD + 2 * j + 1]
        T1, T2, T3 = 52 + 12 * (j & 1), 56 + 12 * (j & 1), 60 + 12 * (j & 1)
        a('ds_write_b128 v5, %s offset:%d' % (vr(d[0], 4), 1024 * j))
        for e in range(4):
            a('v_alignbit_b32 v%d, v%d, v%d, 16' % (T1 + e, d[e + 1], d[e]))
        a('ds_write_b128 v5, %s offset:%d' % (vr(T1, 4), 1024 * j + HSTR))
        for e in range(4):
            a('v_mov_b32 v%d, v%d' % (T2 + e, d[e + 1]))
        a('ds_write_b128 v5, %s offset:%d' % (vr(T2, 4), 1024 * j + 2 * HSTR))
        for e in range(4):
            a('v_alignbit_b32 v%d, v%d, v%d, 16' % (T3 + e, d[e + 2], d[e + 1]))
        a('ds_write_b128 v5, %s offset:%d' % (vr(T3, 4), 1024 * j + 3 * HSTR))
        if j == 2:
            a('s_waitcnt lgkmcnt(8)')
    setexec(a, 64)
    stamp(a, 1)
    a('v_and_b32 v16, 15, v%d' % vL)
    a('v_lshrrev_b32 v17, 4, v%d' % vL)
    a('v_add_u32 v18, 1, v16')
    a('v_and_b32 v19, 3, v18')
    a('v_mul_u32_u24 v%d, %d, v19' % (vCA, HSTR))
    a('v_lshrrev_b32 v18, 2, v18')
    a('v_lshl_add_u32 v%d, v18, 3, v%d' % (vCA, vCA))
    a('v_lshl_add_u32 v%d, v17, 4, v%d' % (vCA, vCA))
    a('v_add_u32 v%d, s80, v%d' % (vCA, vCA))
    a('v_lshlrev_b32 v18, 5, v16')
    a('v_lshlrev_b32 v19, 4, v17')
    a('v_sub_u32 v%d, v19, v18' % vCB)
    a('s_add_u32 s66, s81, 480')
    a('v_add_u32 v%d, s66, v%d' % (vCB, vCB))
    a('v_lshl_add_u32 v19, v17, 3, v18')
    a('s_add_u32 s66, s81, 504')
    a('v_sub_u32 v4, s66, v19')
    a('v_and_b32 v19, 1, v17')
    a('v_lshl_add_u32 v5, v19, 9, v18')
    a('v_lshrrev_b32 v19, 1, v17')
    a('v_lshl_add_u32 v5, v19, 4, v5')
    a('s_waitcnt lgkmcnt(0)')
    hello_check(a, 16, 66)
    stamp(a, 2)
    a('v_and_b32 v16, 31, v%d' % vL)
    a('v_lshlrev_b32 v16, 2, v16')
    a('v_lshrrev_b32 v17, 5, v%d' % vL)
    a('v_lshl_add_u32 v16, v17, 13, v16')
    assert KVFB - KVFA == 8192
    a('s_lshl_b32 s66, s%d, 1' % sXCC)
    a('v_mov_b32 v18, s66')
    a('v_cmp_eq_u32 vcc, 0, v17')
    a('v_cndmask_b32 v18, 0, v18, vcc')
    a('v_add_u32 v18, s%d, v18' % sTAG)
    a('s_mov_b32 s%d, 0' % sCNT)
    a.label('CV_POLL')
    a('buffer_load_dword v19, v16, %s, s78 offen sc1' % R4(WS))
    a('s_add_u32 s%d, s%d, 1' % (sCNT, sCNT))
    a('s_waitcnt vmcnt(0)')
    a('v_cmp_ne_u32 vcc, v18, v19')
    a('s_mov_b32 s66, %s' % hex(KVA))
    if not FORCE_SLOW:
        a('s_cmp_eq_u32 vcc_lo, 0')
        a('s_cbranch_scc1 CV_GOT')
    a('s_mov_b32 s66, %s' % hex(KVB))
    a('s_cmp_eq_u32 vcc_hi, 0')
    a('s_cbranch_scc1 CV_GOT')
    a('s_cmp_lt_u32 s%d, s%d' % (sCNT, sLIM))
    a('s_cbranch_scc1 CV_POLL')
    a('s_mov_b32 s%d, 0' % sLIM)
    a.label('CV_GOT')
    a('s_add_u32 s66, s66, s79')
    a('s_mov_b32 m0, s81')
    for k in range(4):
        a('buffer_load_dwordx4 v%d, %s, s66 offen offset:%d sc1 lds' % (vL16, R4(WS), 1024 * k))
    stamp(a, 3)
    a('s_waitcnt vmcnt(0)')
    lds_flag(a, LF_U, 69, 16)
    a('s_waitcnt lgkmcnt(0)')
    stamp(a, 4)
    dstamp(a, 3)
    conv_part(a, [0, 1], range(8), set())
    conv_epilogue(a, [0, 1], 0)
    stamp(a, 5)
    conv_part(a, [2, 3], range(8), set(), {CF0: lambda: conv_flag(a, 0)})
    conv_epilogue(a, [2, 3], 1)
    stamp(a, 6)
    hk = {CF1: lambda: conv_flag(a, 1)}
    for n, g in enumerate(w2_loads()):
        hk[CF1 + 1 + 3 * n] = (lambda g=g: emit(a, g))
    conv_part(a, [4, 5, 6, 7], range(8), set(), hk)
    conv_epilogue(a, [4, 5, 6, 7], 2)
    stamp(a, 7)
    dstamp(a, 4)
    lds_flag(a, LF_CV, 69, 16)
    conv_flag(a, 2)
    a('s_setprio 0')
    w2_xpose(a, True)
    a('s_branch G2_READY')
    a.label('G2_NOCONV')
    a('s_barrier')
    lds_flag(a, LF_U, 69, 16)
    lds_flag(a, LF_CV, 69, 16)
    w2_setup(a, 69)
    lds_gate(a)
    for g in w2_loads():
        emit(a, g)
    w2_xpose(a, False)
    a('s_barrier')
    a('v_mov_b32 v16, %d' % L_SYNC)
    a('ds_read_b32 v17, v16')
    a('s_waitcnt lgkmcnt(0)')
    a('v_readfirstlane_b32 s%d, v17' % sTAG)
    hello_check(a, 16, 66)
    a('s_branch G2_START')
    a.label('G2_W7')
    a('s_mov_b32 s69, 3')
    w2_setup(a, 69)
    lds_gate(a)
    for g in w2_loads():
        emit(a, g)
    w2_xpose(a, False)
    a.label('G2_READY')
    stamp(a, 8)
    dstamp(a, 5)
    a('s_barrier')
    a('s_branch G2_START')


def tok_scalars(a, sSig, sJ, sRow, sZ, sZF):
    a('s_and_b32 s63, s%d, 3' % sSig)
    a('s_lshl_b32 s64, s63, 9')
    a('s_lshl_b32 s65, s%d, 5' % sG)
    a('s_add_u32 s64, s64, s65')
    a('s_add_u32 s64, s64, s%d' % sJ)
    a('s_mul_i32 s%d, s64, 1280' % sRow)
    a('s_lshl_b32 s64, s%d, 2' % sG)
    a('s_add_u32 s64, s64, s63')
    a('s_mul_i32 s%d, s64, 40960' % sZ)
    a('s_add_u32 s%d, s%d, %s' % (sZ, sZ, hex(ZI)))
    a('s_lshl_b32 s64, s%d, 4' % sG)
    a('s_add_u32 s64, s64, s%d' % sSig)
    a('s_lshl_b32 s64, s64, 7')
    a('s_lshl_b32 s65, s%d, 2' % sJ)
    a('s_add_u32 s64, s64, s65')
    a('s_add_u32 s%d, s64, %d' % (sZF, ZF + 4 * 128))


def pf_off(a, sSig, sD):
    a('s_lshl_b32 s%d, s%d, 3' % (sD, sG))
    a('s_add_u32 s%d, s%d, s%d' % (sD, sD, sSig))
    a('s_lshl_b32 s%d, s%d, 8' % (sD, sD))
    a('s_add_u32 s%d, s%d, %s' % (sD, sD, hex(PF)))


def part_off(a, sSig, sD):
    a('s_and_b32 s63, s%d, 1' % sSig)
    a('s_lshl_b32 s64, s%d, 1' % sG)
    a('s_add_u32 s63, s63, s64')
    a('s_mul_i32 s%d, s63, %d' % (sD, 14 * 40960))
    a('s_add_u32 s%d, s%d, %s' % (sD, sD, hex(PART)))


def rf_off(a, sSig, sD, sJ=None):
    a('s_lshl_b32 s%d, s%d, 3' % (sD, sG))
    a('s_add_u32 s%d, s%d, s%d' % (sD, sD, sSig))
    a('s_lshl_b32 s%d, s%d, 9' % (sD, sD))
    if sJ is not None:
        a('s_lshl_b32 s63, s%d, 2' % sJ)
        a('s_add_u32 s%d, s%d, s63' % (sD, sD))
    a('s_add_u32 s%d, s%d, %s' % (sD, sD, hex(RF)))


PQ, P5, B2F = 96, 156, 176


def load_b2(a):
    srd(a, RD, pB2, 1280)
    a('buffer_load_dwordx4 %s, v%d, %s, 0 offen' % (vr(PQ, 4), vL16, R4(RD)))
    a('buffer_load_dword v%d, v%d, %s, 0 offen offset:1024' % (P5, vL4, R4(RD)))
    a('s_waitcnt vmcnt(0)')
    emit(a, unpack10(B2F, [PQ, PQ + 1, PQ + 2, PQ + 3, P5]))


def full_r_issue(a, b, sSig, sJ, sRow):
    part_off(a, sSig, 66)
    a('s_mul_i32 s63, s%d, 1280' % sJ)
    a('s_add_u32 s66, s66, s63')
    a('s_add_u32 s67, s%d, %s' % (sRow, hex(XR)))
    row_load(a, [PQ + 56, 0, 0, 0, P5 + 14], WS, 67)
    for r in range(14):
        row_load(a, [PQ + 4 * r, 0, 0, 0, P5 + r], WS, 66)
        if r < 13:
            a('s_add_u32 s66, s66, 40960')
    a('s_add_u32 s67, s%d, %s' % (sRow, hex(YR)))
    row_load(a, b.YR, WS, 67)


def full_r_sum(a, b, younger=0):
    rows = [14] + list(range(14))
    for n, r in enumerate(rows):
        a('s_waitcnt vmcnt(%d)' % (30 - 2 * n + younger))
        src = [PQ + 4 * r + e for e in range(4)] + [P5 + r]
        if n == 0:
            for i in range(5):
                a('v_dot2_f32_bf16 v%d, v%d, s%d, v%d' % (b.X + 2 * i, src[i], sLO1, B2F + 2 * i))
                a('v_dot2_f32_bf16 v%d, v%d, s%d, v%d' % (b.X + 2 * i + 1, src[i], sHI1, B2F + 2 * i + 1))
        else:
            emit(a, acc10(b.X, src, True))


def rd_flag(a, sSig, sJ, vT):
    N = a.newlabel('NRD')
    a('s_cmp_gt_u32 s%d, 5' % sSig)
    a('s_cbranch_scc1 %s' % N)
    rf_off(a, sSig, 66, sJ)
    both(a, lambda sc1: flag_store(a, 66, vT, sc1))
    a.label(N)


def lf_task(a, b, sSig, sRow, sZ, sZF, va, vb, pk, ywait):
    F, D = a.newlabel('LF_F'), a.newlabel('LF_D')
    a('s_cmp_ge_u32 s%d, 4' % sSig)
    a('s_cbranch_scc1 %s' % F)
    emit(a, gate_pre(b, pk))
    a('s_waitcnt vmcnt(%d)' % ywait)
    emit(a, gate_post(b, pk))
    a('s_add_u32 s67, s%d, %s' % (sRow, hex(XR)))
    def st(sc1):
        z_store(a, b, va, vb, sZ, sc1)
        a('s_waitcnt vmcnt(0)')
        flag_store(a, sZF, b.T, sc1)
        row_store(a, b.XR, WS, 67, sc1)
    both(a, st)
    a('s_branch %s' % D)
    a.label(F)
    emit(a, pack10(b.XR, b.X))
    row_store(a, b.XR, RB, sRow, False)
    a.label(D)


def s_phase(a):
    a.label('S_WAIT')
    a('s_barrier')
    a('s_barrier')
    a('v_mov_b32 v14, %d' % L_SYNC)
    a('ds_read_b32 v4, v14')
    a('s_waitcnt lgkmcnt(0)')
    a('v_readfirstlane_b32 s%d, v4' % sTAG)
    hello_check(a, 14, 66)
    a.label('S_MAIN')
    QR = 190
    QR = 192
    srd(a, RA, pQ, hex(ROWS_B))
    srd(a, RB, pOUT, hex(ROWS_B))
    a('s_sub_u32 s70, s%d, 14' % sM)
    a('s_lshl_b32 s71, s%d, 5' % sG)
    a('s_lshl_b32 s72, s70, 4')
    a('s_add_u32 s71, s71, s72')
    a('s_lshl_b32 s72, s%d, 1' % sW)
    a('s_add_u32 s72, s72, s71')
    a('s_mul_i32 s73, s72, 1280')
    a('s_mov_b32 s66, s73')
    for s in range(4):
        for e in range(2):
            R = QR + 8 * (2 * s + e)
            a('buffer_load_dwordx4 %s, v%d, %s, s66 offen offset:%d' % (vr(R, 4), vL16, R4(RA), 1280 * e))
            a('buffer_load_dword v%d, v%d, %s, s66 offen offset:%d' % (R + 4, vL4, R4(RA), 1280 * e + 1024))
        if s < 3:
            a('s_add_u32 s66, s66, %d' % (512 * 1280))
    load_b2(a)
    a('v_lshrrev_b32 v14, 1, v%d' % vL)
    a('v_and_b32 v15, 1, v%d' % vL)
    a('v_lshlrev_b32 v8, 12, v14')
    a('v_lshl_add_u32 v8, v15, 4, v8')
    a('v_mul_u32_u24 v9, 10304, v15')
    a('v_lshl_add_u32 v9, v14, 1, v9')
    a('s_mul_i32 s66, s%d, 160' % sW)
    a('v_add_u32 v9, s66, v9')
    a('s_mul_i32 s66, s%d, 2560' % sW)
    a('s_cmp_ge_u32 s%d, 4' % sW)
    a('s_cselect_b32 s67, 64, 0')
    a('s_add_u32 s66, s66, s67')
    a('v_add_u32 v10, s66, v%d' % vL16)
    a('v_add_u32 v11, s66, v%d' % vL4)
    a('s_mul_i32 s74, s%d, %d' % (sW, 80 * 4096))
    a('s_lshl_b32 s75, s71, 1')
    a('s_add_u32 s74, s74, s75')
    a('s_add_u32 s74, s74, %s' % hex(YT))
    a('s_mul_i32 s75, s%d, 320' % sW)
    a('s_add_u32 s75, s75, %d' % YF)
    a('s_lshl_b32 s76, s70, 4')
    a('s_lshl_b32 s77, s%d, 1' % sW)
    a('s_add_u32 s76, s76, s77')
    z_addr(a, 76, 12, 13, 66)
    a('s_add_u32 s77, s76, 1')
    z_addr(a, 77, 4, 5, 66)
    a('s_lshl_b32 s78, s%d, 2' % sG)
    a('s_mul_i32 s78, s78, 40960')
    a('s_add_u32 s78, s78, %s' % hex(ZI))
    a('s_lshl_b32 s79, s%d, 11' % sG)
    a('s_lshl_b32 s77, s76, 2')
    a('s_add_u32 s79, s79, s77')
    a('s_add_u32 s79, s79, %d' % ZF)
    a('s_mov_b32 s%d, 0' % sP)
    b0, b1 = Blk(16, 80, 82), Blk(64, 96, 98)
    a.label('LN1_LOOP')
    stamp(a, (sP, 4, 4))
    L, D = a.newlabel('YL'), a.newlabel('YD')
    a('s_mov_b32 s%d, 0' % sCNT)
    setexec(a, 20)
    a.label(L)
    a('buffer_load_dwordx4 v[112:115], v%d, %s, s75 offen sc1' % (vL16, R4(WS)))
    a('s_add_u32 s%d, s%d, 1' % (sCNT, sCNT))
    a('s_waitcnt vmcnt(0)')
    for e in range(4):
        a('v_xor_b32 v%d, s%d, v%d' % (112 + e, sTAG, 112 + e))
    a('v_or3_b32 v112, v112, v113, v114')
    a('v_or_b32 v112, v112, v115')
    a('v_cmp_ne_u32 vcc, 0, v112')
    a('s_cbranch_vccz %s' % D)
    a('s_cmp_lt_u32 s%d, s%d' % (sCNT, sLIM))
    a('s_cbranch_scc1 %s' % L)
    a('s_mov_b32 s%d, 0' % sLIM)
    a.label(D)
    setexec(a, 64)
    stamp(a, (sP, 4, 5))
    a('buffer_load_dwordx4 v[112:115], v8, %s, s74 offen sc1' % R4(WS))
    a('s_add_u32 s66, s74, %d' % (32 * 4096))
    a('buffer_load_dwordx4 v[116:119], v8, %s, s66 offen sc1' % R4(WS))
    a('s_add_u32 s66, s74, %d' % (64 * 4096))
    setexec(a, 32)
    a('buffer_load_dwordx4 v[120:123], v8, %s, s66 offen sc1' % R4(WS))
    setexec(a, 64)
    for e, b in enumerate((b0, b1)):
        emit(a, unpack10(b.X, [QR + 8 * e + k for k in range(5)]))
    for k in range(3):
        a('s_waitcnt vmcnt(%d)' % (2 - k))
        if k == 2:
            setexec(a, 32)
        for j in range(8):
            a('ds_write_b16%s v9, v%d offset:%d' % ('_d16_hi' if j & 1 else '', 112 + 4 * k + (j >> 1), 1280 * j + 64 * k))
        a('s_waitcnt lgkmcnt(4)')
    setexec(a, 64)
    for k in range(48):
        if (k & 7) < 5:
            a('v_mov_b32 v%d, v%d' % (QR + k, QR + 16 + k))
    a('s_waitcnt lgkmcnt(0)')
    a('s_barrier')
    for e, b in enumerate((b0, b1)):
        a('ds_read_b128 %s, v10 offset:%d' % (vr(b.YR[0], 4), 1280 * e))
        a('ds_read_b32 v%d, v11 offset:%d' % (b.YR[4], 1280 * e + 1024))
    a('v_xor_b32 v9, 0x8000, v9')
    a('v_xor_b32 v10, 0x8000, v10')
    a('v_xor_b32 v11, 0x8000, v11')
    a('s_waitcnt lgkmcnt(0)')
    stamp(a, (sP, 4, 6))
    emit(a, zip2(gate_ln_z(b0, True), gate_ln_z(b1, True)))
    a('s_add_u32 s66, s73, %s' % hex(XR))
    a('s_add_u32 s67, s73, %s' % hex(XR + 1280))
    a('s_add_u32 s68, s73, %s' % hex(YR))
    a('s_add_u32 s69, s73, %s' % hex(YR + 1280))
    def st(sc1):
        z_store(a, b0, 12, 13, 78, sc1)
        z_store(a, b1, 4, 5, 78, sc1)
        row_store(a, b0.XR, WS, 66, sc1)
        row_store(a, b1.XR, WS, 67, sc1)
        row_store(a, b0.YR, WS, 68, sc1)
        row_store(a, b1.YR, WS, 69, sc1)
        a('v_mov_b32 v112, s%d' % sTAG)
        a('v_mov_b32 v113, s%d' % sTAG)
        a('s_waitcnt vmcnt(0)')
        a('s_mov_b64 exec, 1')
        a('buffer_store_dwordx2 v[112:113], off, %s, s79%s' % (R4(WS), ' sc1' if sc1 else ''))
        a('s_mov_b64 exec, -1')
    both(a, st)
    stamp(a, (sP, 4, 7))
    a('s_add_u32 s73, s73, %d' % (512 * 1280))
    a('s_add_u32 s74, s74, 1024')
    a('s_add_u32 s78, s78, 40960')
    a('s_add_u32 s79, s79, 128')
    a('s_cmp_lt_u32 s%d, 2' % sP)
    a('s_cselect_b32 s66, 4096, 0')
    a('s_add_u32 s75, s75, s66')
    a('s_add_u32 s%d, s%d, 1' % (sP, sP))
    a('s_cmp_lt_u32 s%d, 4' % sP)
    a('s_cbranch_scc1 LN1_LOOP')
    dstamp(a, 8)
    a('s_cmp_lg_u32 s2, 112')
    a('s_cbranch_scc1 S_NOEP')
    a('s_cmp_lg_u32 s%d, 0' % sW)
    a('s_cbranch_scc1 S_NOEP')
    a('s_mov_b32 s66, 0')
    flag_store(a, 66, 112, True)
    a.label('S_NOEP')
    if STOP == 'front':
        endk(a)
        return
    a('s_lshl_b32 s70, s70, 3')
    a('s_add_u32 s70, s70, s%d' % sW)
    a('s_add_u32 s77, s70, 56')
    z_addr(a, 70, 12, 13, 66)
    a('s_mov_b32 s%d, 0' % sP)
    tok_scalars(a, sP, 70, 71, 72, 73)
    pf_off(a, sP, 74)
    poll(a, 74, 56, 14)
    full_r_issue(a, b0, sP, 70, 71)
    a.label('S_TASK')
    stamp(a, (sP, 4, 20))
    full_r_sum(a, b0)
    rd_flag(a, sP, 77, 14)
    stamp(a, (sP, 4, 21))
    a('s_add_u32 s75, s%d, 1' % sP)
    pf_off(a, 75, 74)
    a('s_cmp_ge_u32 s%d, 4' % sP)
    a('s_cbranch_scc1 S_F')
    emit(a, gate_pre(b0, True))
    setexec(a, 56)
    a('buffer_load_dword v14, v%d, %s, s74 offen sc1' % (vL4, R4(WS)))
    setexec(a, 64)
    a('s_waitcnt vmcnt(1)')
    emit(a, gate_post(b0, True))
    a('s_add_u32 s67, s71, %s' % hex(XR))
    a('s_mov_b32 s76, s73')
    def st(sc1):
        z_store(a, b0, 12, 13, 72, sc1)
        row_store(a, b0.XR, WS, 67, sc1)
    both(a, st)
    tok_scalars(a, 75, 70, 71, 72, 73)
    a('s_waitcnt vmcnt(4)')
    setexec(a, 56)
    a('v_cmp_ne_u32 vcc, s%d, v14' % sTAG)
    setexec(a, 64)
    a('s_cbranch_vccnz S_LATE')
    full_r_issue(a, b0, 75, 70, 71)
    a('s_waitcnt vmcnt(34)')
    both(a, lambda sc1: flag_store(a, 76, 14, sc1))
    a('s_branch S_NEXT')
    a.label('S_LATE')
    a('s_waitcnt vmcnt(2)')
    both(a, lambda sc1: flag_store(a, 76, 14, sc1))
    a('s_branch S_SPIN')
    a.label('S_F')
    emit(a, pack10(b0.XR, b0.X))
    row_store(a, b0.XR, RB, 71, False)
    a('s_cmp_eq_u32 s%d, 7' % sP)
    a('s_cbranch_scc1 S_END')
    tok_scalars(a, 75, 70, 71, 72, 73)
    a.label('S_SPIN')
    poll(a, 74, 56, 14)
    full_r_issue(a, b0, 75, 70, 71)
    a.label('S_NEXT')
    stamp(a, (sP, 4, 22))
    a('s_add_u32 s%d, s%d, 1' % (sP, sP))
    a('s_branch S_TASK')
    a.label('S_END')
    endk(a)


ZA, GT, RQ, R5, ZR, ACC, BIAS = 8, 16, 28, 44, 48, 64, 80
K_ZCHK, K_P1, K_P2 = 14, 26, 34


def stage_z(a, sSig1):
    a('s_and_b32 s63, s%d, 3' % sSig1)
    a('s_lshl_b32 s64, s%d, 2' % sG)
    a('s_add_u32 s64, s64, s63')
    a('s_mul_i32 s64, s64, 40960')
    a('s_mul_i32 s65, s%d, 10240' % sW)
    a('s_add_u32 s64, s64, s65')
    a('s_add_u32 s64, s64, %s' % hex(ZI))
    a('s_bitcmp1_b32 s%d, 0' % sSig1)
    a('s_cselect_b32 s63, 0, %d' % L_ZE)
    a('s_add_u32 s65, s65, s63')
    for g in range(3):
        a('s_add_u32 m0, s65, %d' % (4096 * g))
        for k in range(4 if g < 2 else 2):
            a('buffer_load_dwordx4 v%d, %s, s64 offen offset:%d sc1 lds' % (vL16, R4(WS), 1024 * k))
        if g < 2:
            a('s_add_u32 s64, s64, 4096')


def zf_off(a, sSig1, sD):
    a('s_lshl_b32 s%d, s%d, 4' % (sD, sG))
    a('s_add_u32 s%d, s%d, s%d' % (sD, sD, sSig1))
    a('s_lshl_b32 s%d, s%d, 7' % (sD, sD))
    a('s_add_u32 s%d, s%d, %d' % (sD, sD, ZF))


def quarter_setup(a):
    a('s_cmp_eq_u32 s%d, 3' % sW)
    a('s_cselect_b32 s%d, s%d, s%d' % (RC, pB2, pWS))
    a('s_cselect_b32 s%d, s%d, s%d' % (RC + 1, pB2 + 1, pWS + 1))
    a('s_cselect_b32 s%d, 1280, s%d' % (RC + 2, WS + 2))
    a('s_mov_b32 s%d, 0x20000' % (RC + 3))
    a('s_mul_i32 s63, s%d, 2560' % sW)
    a('s_add_u32 s63, s63, %d' % L_RS)
    a('v_add_u32 v4, s63, v%d' % vL16)
    a('v_lshlrev_b32 v5, 3, v%d' % vL)
    a('v_add_u32 v5, s63, v5')
    a('s_add_u32 s76, s%d, 16' % sM)
    a('s_lshl_b32 s84, s%d, 2' % sM)
    a('s_add_u32 s84, s84, s%d' % sW)


def quarter_scalars(a, sSig):
    part_off(a, sSig, 78)
    a('s_mul_i32 s63, s76, 1280')
    a('s_add_u32 s78, s78, s63')
    a('s_mul_i32 s63, s%d, 40960' % sW)
    a('s_add_u32 s78, s78, s63')
    a('s_and_b32 s63, s%d, 3' % sSig)
    a('s_lshl_b32 s63, s63, 9')
    a('s_lshl_b32 s64, s%d, 5' % sG)
    a('s_add_u32 s63, s63, s64')
    a('s_add_u32 s63, s63, s76')
    a('s_mul_i32 s63, s63, 1280')
    a('s_add_u32 s63, s63, %s' % hex(XR))
    a('s_add_u32 s79, s78, %d' % (3 * 163840))
    a('s_cmp_eq_u32 s%d, 2' % sW)
    a('s_cselect_b32 s79, s63, s79')
    a('s_cmp_eq_u32 s%d, 3' % sW)
    a('s_cselect_b32 s79, 0, s79')


def quarter_issue(a):
    a('s_add_u32 s66, s78, 163840')
    a('s_add_u32 s67, s78, 327680')
    for k, so in enumerate((78, 66, 67)):
        row_load(a, [RQ + 4 * k, 0, 0, 0, R5 + k], WS, so)
    row_load(a, [RQ + 12, 0, 0, 0, R5 + 3], RC, 79)


def quarter_sum(a, younger=None):
    S = GT
    if younger is not None:
        a('s_waitcnt vmcnt(%d)' % (6 + younger))
    emit(a, unpack10(S, [RQ + e for e in range(4)] + [R5]))
    for k in range(1, 4):
        if younger is not None:
            a('s_waitcnt vmcnt(%d)' % (6 - 2 * k + younger))
        emit(a, acc10(S, [RQ + 4 * k + e for e in range(4)] + [R5 + k], True))
    a('ds_write_b128 v4, %s' % vr(S, 4))
    a('ds_write_b128 v4, %s offset:1024' % vr(S + 4, 4))
    a('ds_write_b64 v5, %s offset:2048' % vr(S + 8, 2))
    a('s_lshl_b32 s64, s%d, 2' % sW)
    a('s_add_u32 s64, s64, %d' % LF_R)
    a('v_mov_b32 v%d, s64' % RQ)
    a('v_mov_b32 v%d, s%d' % (RQ + 1, sP))
    a('ds_write_b32 v%d, v%d' % (RQ, RQ + 1))


def g1_phase(a):
    a.label('G1_INIT')
    if STOP == 'front':
        a('v_mov_b32 v16, %d' % L_SYNC)
        a('v_mov_b32 v17, s%d' % sTAG)
        a('ds_write_b32 v16, v17')
        a('s_waitcnt lgkmcnt(0)')
        a('s_barrier')
        endk(a)
        return
    a('s_cmp_eq_u32 s%d, 13' % sM)
    a('s_cselect_b32 s66, 2, 4')
    a('s_cmp_ge_u32 s%d, s66' % sW)
    a('s_cbranch_scc1 G1X_INIT')
    srd(a, RB, pB1, 3456)
    a('v_lshrrev_b32 v14, 5, v%d' % vL)
    a('v_lshlrev_b32 v14, 3, v14')
    a('s_lshl_b32 s66, s%d, 8' % sM)
    a('s_lshl_b32 s67, s%d, 6' % sW)
    a('s_add_u32 s66, s66, s67')
    for q in range(4):
        a('buffer_load_dwordx2 %s, v14, %s, s66 offen offset:%d' % (vr(ZR + 2 * q, 2), R4(RB), 16 * q))
    w1_setup(a)
    lds_gate(a)
    w1_loads(a)
    for ks in range(40):
        a('s_waitcnt vmcnt(%d)' % (39 - ks))
        a('ds_write_b128 v9, %s offset:%d' % (vr(WB + 4 * ks, 4), 1024 * (ks & 3)))
        for hh in range(2):
            a('ds_read_b64_tr_b16 %s, v13 offset:%d' % (vr(WB + 4 * ks + 2 * hh, 2), 1024 * (ks & 3) + 256 * hh))
        if ks & 3 == 3:
            a('s_waitcnt lgkmcnt(3)')
    for i in range(8):
        a('v_lshlrev_b32 v%d, 16, v%d' % (BIAS + 2 * i, ZR + i))
        a('v_and_b32 v%d, s%d, v%d' % (BIAS + 2 * i + 1, sHI, ZR + i))
    a('v_and_b32 v14, 31, v%d' % vL)
    a('v_lshrrev_b32 v15, 5, v%d' % vL)
    a('v_and_b32 v16, 15, v14')
    a('v_xor_b32 v15, v15, v16')
    a('v_lshlrev_b32 v15, 4, v15')
    a('v_lshl_add_u32 v15, v14, 8, v15')
    a('v_add_u32 v15, %d, v15' % L_ZE)
    a('s_waitcnt lgkmcnt(0)')
    a('v_mov_b32 v16, v15')
    for k in range(8):
        a('v_xor_b32 v%d, %d, v16' % (ZA + k, 32 * k))
    c1 = -2.0 * math.sqrt(2.0 / math.pi) * math.log2(math.e)
    a('v_mov_b32 v%d, %s' % (vC1, f2h(c1)))
    a('s_lshl_b32 s66, s%d, 11' % sW)
    a('s_add_u32 s66, s66, %d' % L_H)
    a('v_add_u32 v0, s66, v%d' % vL16)
    stamp(a, 4)
    dstamp(a, 6)
    a.label('G1_COMMON')
    quarter_setup(a)
    a('s_mov_b32 s%d, 0' % sP)
    zf_off(a, sP, 66)
    poll(a, 66, 32, GT)
    stamp(a, 5)
    stage_z(a, sP)
    a('v_mov_b32 v%d, %d' % (GT + 2, L_SYNC))
    a('v_mov_b32 v%d, s%d' % (GT + 3, sTAG))
    a('ds_write_b32 v%d, v%d' % (GT + 2, GT + 3))
    a('s_waitcnt vmcnt(0)')
    lds_flag(a, LF_Z0, sW, GT)
    a('s_cmp_eq_u32 s85, 1')
    a('s_cbranch_scc1 G1X_LOOP')
    lds_spin(a, LF_Z0, 4, GT)
    dstamp(a, 7)
    VZ, VP = GT + 10, GT + 11
    def zread(ks):
        a('ds_read_b128 %s, v%d offset:%d' % (vr(ZR + 4 * (ks % 4), 4), ZA + (ks & 7), (ks >> 3) * 8192))
    def pload(v, so, nl):
        setexec(a, nl)
        a('buffer_load_dword v%d, v%d, %s, s%d offen sc1' % (v, vL4, R4(WS), so))
        setexec(a, 64)
    def pcheck(v, nl, fail):
        setexec(a, nl)
        a('v_cmp_ne_u32 vcc, s%d, v%d' % (sTAG, v))
        setexec(a, 64)
        a('s_cbranch_vccnz %s' % fail)
    rets = []
    def sv():
        k = len(rets)
        R = 'G1_RET%d' % k
        rets.append(R)
        a('s_cmp_eq_u32 s81, 3')
        a('s_cbranch_scc1 %s' % R)
        a('s_mov_b32 s80, %d' % k)
        a('s_branch G1_SV')
        a.label(R)
    def next_polls():
        a('s_sub_u32 s77, s%d, 2' % sP)
        a('s_max_i32 s77, s77, 0')
        a('s_add_u32 s75, s%d, 1' % sP)
        zf_off(a, 75, 73)
        pf_off(a, 77, 74)
        pload(VP, 74, 56)
        pload(VZ, 73, 32)
    next_polls()
    a.label('G1_LOOP')
    a('s_setprio %d' % PR_G1A)
    stamp(a, (sP, 4, 8))
    for ks in range(3):
        zread(ks)
    quarter_scalars(a, 77)
    a('s_cmp_lt_u32 s%d, 2' % sP)
    a('s_cselect_b32 s83, 2, 0')
    a('s_cmp_gt_u32 s%d, 6' % sP)
    a('s_cselect_b32 s82, 1, 0')
    a('s_add_u32 s81, s82, s83')
    a('s_sub_u32 s63, s%d, 1' % sP)
    a('s_cmp_lt_u32 s63, 2')
    a('s_cselect_b32 s72, 1, 0')
    a('s_cmp_gt_u32 s%d, 7' % sP)
    a('s_cbranch_scc1 G1_NOM1')
    sv()
    a('s_mov_b32 s72, 0')
    for ks in range(40):
        a('s_waitcnt lgkmcnt(%d)' % min(2, 39 - ks))
        c = vr(BIAS, 16) if ks == 0 else vr(ACC, 16)
        a('v_mfma_f32_32x32x16_bf16 %s, %s, %s, %s' % (vr(ACC, 16), vr(WB + 4 * ks, 4), vr(ZR + 4 * (ks % 4), 4), c))
        if ks + 3 < 40:
            zread(ks + 3)
        if 32 <= ks + 3 < 40:
            k = (ks + 3) & 7
            a('v_xor_b32 v%d, %s, v%d' % (ZA + k, hex(L_ZE), ZA + k))
        if ks in SVP:
            if ks == SVP[0]: fst(a, 0)
            a('s_cmp_eq_u32 s83, 2')
            a('s_cbranch_scc1 G1_SK%d' % ks)
            sv()
            a.label('G1_SK%d' % ks)
            if ks == SVP[0]: fst(a, 1)
        if ks == KZP:
            a('s_cmp_lg_u32 s82, 0')
            a('s_cbranch_scc1 G1_NZP')
            pload(VZ, 73, 32)
            a.label('G1_NZP')
    stamp(a, (sP, 4, 9))
    a('s_setprio %d' % PR_G1B)
    a('s_min_u32 s72, s%d, 1' % sP)
    sv()
    fst(a, 2)
    T = ZR
    for t in range(2):
        X = ACC + 8 * t
        for i in range(8):
            a('v_mul_f32 v%d, v%d, v%d' % (T + i, X + i, X + i))
        for i in range(8):
            a('v_fma_f32 v%d, v%d, s%d, v%d' % (T + i, T + i, sC2, vC1))
        for i in range(8):
            a('v_mul_f32 v%d, v%d, v%d' % (T + i, T + i, X + i))
        for i in range(8):
            a('v_exp_f32 v%d, v%d' % (T + i, T + i))
        for i in range(8):
            a('v_add_f32 v%d, 1.0, v%d' % (T + i, T + i))
        for i in range(8):
            a('v_rcp_f32 v%d, v%d' % (T + i, T + i))
        for i in range(8):
            a('v_mul_f32 v%d, v%d, v%d' % (T + i, T + i, X + i))
        o = T + 8 + 4 * t
        for i in range(4):
            a('v_cvt_pk_bf16_f32 v%d, v%d, v%d' % (o + i, T + 2 * i, T + 2 * i + 1))
        a('ds_write_b128 v0, %s offset:%d' % (vr(o, 4), 1024 * t))
        if t == 0:
            sv()
            fst(a, 3)
    a('v_xor_b32 v0, 0x2000, v0')
    a.label('G1_NOM1')
    stamp(a, (sP, 4, 10))
    a('s_cmp_lg_u32 s%d, 0' % sP)
    a('s_cbranch_scc1 G1_NOCV')
    lds_spin(a, LF_CV, 3, GT)
    a.label('G1_NOCV')
    a('s_mov_b32 s72, 1')
    a('s_mov_b32 s%d, 0' % sCNT)
    a.label('G1_FIN')
    sv()
    a('s_cmp_eq_u32 s81, 3')
    a('s_cbranch_scc1 G1_FIND')
    a('s_add_u32 s%d, s%d, 1' % (sCNT, sCNT))
    a('s_cmp_lt_u32 s%d, s%d' % (sCNT, sLIM))
    a('s_cbranch_scc1 G1_FIN')
    a('s_mov_b32 s%d, 0' % sLIM)
    a.label('G1_FIND')
    fst(a, 4)
    fst_flush(a)
    a('s_cmp_eq_u32 s%d, 9' % sP)
    a('s_cbranch_scc1 G1_END')
    if STAMP:
        stamp(a, (sP, 4, 11))
    a('s_add_u32 s%d, s%d, 1' % (sP, sP))
    next_polls()
    a('s_waitcnt vmcnt(2) lgkmcnt(0)')
    a('s_barrier')
    a('s_branch G1_LOOP')
    a.label('G1_END')
    endk(a)
    a.label('G1_SV')
    a('s_waitcnt vmcnt(0)')
    a('s_cmp_eq_u32 s83, 1')
    a('s_cbranch_scc0 G1_SV1')
    quarter_sum(a)
    rd_flag(a, 77, 84, GT)
    a('s_mov_b32 s83, 2')
    a('s_branch G1_SVZ')
    a.label('G1_SV1')
    a('s_cmp_lg_u32 s83, 0')
    a('s_cbranch_scc1 G1_SVZ')
    pcheck(VP, 56, 'G1_SV2')
    quarter_issue(a)
    a('s_mov_b32 s83, 1')
    a('s_branch G1_SVZ')
    a.label('G1_SV2')
    pload(VP, 74, 56)
    a.label('G1_SVZ')
    a('s_cmp_lg_u32 s82, 0')
    a('s_cbranch_scc1 G1_SVR')
    a('s_cmp_eq_u32 s72, 0')
    a('s_cbranch_scc1 G1_SVR')
    pcheck(VZ, 32, 'G1_SV3')
    stage_z(a, 75)
    a('s_mov_b32 s82, 1')
    a('s_branch G1_SVR')
    a.label('G1_SV3')
    pload(VZ, 73, 32)
    a.label('G1_SVR')
    a('s_add_u32 s81, s82, s83')
    for k, R in enumerate(rets[:-1]):
        a('s_cmp_eq_u32 s80, %d' % k)
        a('s_cbranch_scc1 %s' % R)
    a('s_branch %s' % rets[-1])
    a.label('G1X_INIT')
    srd(a, RB, pOUT, hex(ROWS_B))
    load_b2(a)
    a('s_add_u32 s70, s%d, 28' % sW)
    z_addr(a, 70, 12, 13, 66)
    a('s_sub_u32 s66, s%d, 2' % sW)
    a('s_lshl_b32 s66, s66, 13')
    a('s_add_u32 s66, s66, %d' % (L_H + 4096))
    a('v_add_u32 v14, s66, v%d' % vL16)
    for e in range(4):
        a('v_mov_b32 v%d, 0' % (16 + e))
    for k in range(4):
        a('ds_write_b128 v14, v[16:19] offset:%d' % (1024 * k))
    a('s_mov_b32 s85, 1')
    a('s_branch G1_COMMON')
    a.label('G1X_LOOP')
    bx = Blk(192, 80, 82)
    a('s_cmp_lt_u32 s%d, 2' % sP)
    a('s_cbranch_scc1 G1X_NOR')
    a('s_sub_u32 s77, s%d, 2' % sP)
    pf_off(a, 77, 74)
    quarter_scalars(a, 77)
    tok_scalars(a, 77, 70, 71, 72, 73)
    poll(a, 74, 56, GT)
    quarter_issue(a)
    full_r_issue(a, bx, 77, 70, 71)
    quarter_sum(a, younger=32)
    full_r_sum(a, bx)
    rd_flag(a, 77, 84, GT)
    a.label('G1X_NOR')
    a('s_cmp_gt_u32 s%d, 6' % sP)
    a('s_cbranch_scc1 G1X_NOZ')
    a('s_cmp_lg_u32 s%d, 0' % sP)
    a('s_cbranch_scc1 G1X_NOCV')
    lds_spin(a, LF_CV, 3, GT)
    a.label('G1X_NOCV')
    a('s_add_u32 s75, s%d, 1' % sP)
    zf_off(a, 75, 74)
    poll(a, 74, 32, GT)
    stage_z(a, 75)
    a.label('G1X_NOZ')
    a('s_cmp_lt_u32 s%d, 2' % sP)
    a('s_cbranch_scc1 G1X_NOL')
    lf_task(a, bx, 77, 71, 72, 73, 12, 13, False, 10)
    a.label('G1X_NOL')
    a('s_cmp_eq_u32 s%d, 9' % sP)
    a('s_cbranch_scc1 G1X_END')
    a('s_waitcnt vmcnt(0) lgkmcnt(0)')
    a('s_barrier')
    a('s_add_u32 s%d, s%d, 1' % (sP, sP))
    a('s_branch G1X_LOOP')
    a.label('G1X_END')
    endk(a)


def g2_phase(a):
    a.label('G2_START')
    if STOP == 'front':
        endk(a)
        return
    HF = 32
    srd(a, RB, pOUT, hex(ROWS_B))
    a('s_sub_u32 s69, s%d, 4' % sW)
    a('s_add_u32 s70, s%d, 16' % sM)
    z_addr(a, 70, 14, 15, 66)
    a('v_add_u32 v0, %d, v%d' % (L_H, vL16))
    a('v_lshrrev_b32 v5, 5, v%d' % vL)
    a('v_mul_u32_u24 v5, 5120, v5')
    a('v_and_b32 v6, 31, v%d' % vL)
    a('v_lshl_add_u32 v4, v6, 2, v5')
    a('v_and_b32 v6, 0x18, v%d' % vL)
    a('v_and_b32 v13, 3, v%d' % vL)
    a('v_lshl_add_u32 v6, v13, 1, v6')
    a('v_bfe_u32 v13, v%d, 2, 1' % vL)
    a('v_add_u32 v6, v6, v13')
    a('v_lshl_add_u32 v5, v6, 1, v5')
    a('v_add_u32 v5, 256, v5')
    a('v_lshlrev_b32 v13, 3, v%d' % vL)
    a('v_add_u32 v13, %d, v13' % L_RS)
    a('v_add_u32 v6, %d, v%d' % (L_RS, vL16))
    a('s_mov_b32 s%d, 1' % sP)
    a('s_mov_b32 s84, 0')
    b = Blk(16, 80, 82, yraw=[8, 9, 10, 11, 12])
    VR = 30
    a.label('G2_LOOP')
    a('s_setprio %d' % PR_G2)
    stamp(a, (sP, 4, 8))
    a('s_cmp_gt_u32 s%d, 8' % sP)
    a('s_cbranch_scc1 G2_NOH')
    for ks in range(8):
        a('ds_read_b128 %s, v0 offset:%d' % (vr(HF + 4 * ks, 4), 1024 * ks))
    a.label('G2_NOH')
    a('s_cmp_eq_u32 s84, 0')
    a('s_cbranch_scc1 G2_NOZF')
    a('s_waitcnt vmcnt(0)')
    def st(sc1):
        flag_store(a, 84, 29, sc1)
        row_store(a, b.XR, WS, 71, sc1)
    both(a, st)
    a('s_mov_b32 s84, 0')
    a.label('G2_NOZF')
    a('s_sub_u32 s78, s%d, 2' % sP)
    a('s_and_b32 s63, s78, 3')
    a('s_cmp_eq_u32 s63, s69')
    a('s_cselect_b32 s81, 1, 0')
    a('s_cmp_lt_u32 s%d, 2' % sP)
    a('s_cselect_b32 s81, 0, s81')
    a('s_cmp_eq_u32 s81, 0')
    a('s_cbranch_scc1 G2_NOY')
    tok_scalars(a, 78, 70, 71, 72, 73)
    a('s_cmp_ge_u32 s78, 4')
    a('s_cbranch_scc1 G2_NOY')
    a('s_add_u32 s67, s71, %s' % hex(YR))
    row_load(a, b.YR, WS, 67)
    a.label('G2_NOY')
    a('s_mov_b32 s83, 0')
    a('s_cmp_gt_u32 s%d, 8' % sP)
    a('s_cbranch_scc1 G2_NOM2')
    a('v_xor_b32 v0, 0x2000, v0')
    a('s_sub_u32 s77, s%d, 3' % sP)
    a('s_max_i32 s77, s77, 0')
    rf_off(a, 77, 76)
    a('v_lshlrev_b32 v29, 3, v%d' % vL)
    setexec(a, 36)
    a('buffer_load_dwordx2 %s, v29, %s, s76 offen sc1' % (vr(VR, 2), R4(WS)))
    setexec(a, 64)
    a('s_sub_u32 s77, s%d, 1' % sP)
    part_off(a, 77, 75)
    a('s_mul_i32 s63, s%d, 40960' % sM)
    a('s_add_u32 s75, s75, s63')
    a('s_mul_i32 s63, s69, 320')
    a('s_add_u32 s75, s75, s63')
    a('s_add_u32 s74, s75, 10240')
    a('s_add_u32 s79, s75, 20480')
    a('s_add_u32 s68, s75, 30720')
    SO = [75, 74, 79, 68]
    pf_off(a, 77, 83)
    a('s_lshl_b32 s63, s%d, 4' % sM)
    a('s_add_u32 s83, s83, s63')
    a('s_lshl_b32 s63, s69, 2')
    a('s_add_u32 s83, s83, s63')
    stamp(a, (sP, 4, 9))
    def m2(sc1):
        c = ' sc1' if sc1 else ''
        order = [4, 0, 1, 2, 3]
        AC = {4: 64, 0: 80, 1: 16, 2: 64, 3: 16}
        def epi_pair(pr):
            E, O = AC[2 * pr], AC[2 * pr + 1]
            cv = ['v_cvt_pk_bf16_f32 v%d, v%d, v%d' % (E + r, E + r, O + r) for r in range(16)]
            stv = [(r + 1, 'buffer_store_dword v%d, v4, %s, s%d offen offset:%d%s' % (E + r, R4(WS), SO[r >> 2], 1280 * (r & 3) + 128 * pr, c)) for r in range(16)]
            return cv, stv
        def epi4():
            X = AC[4]
            cv = ['v_cvt_pk_bf16_f32 v%d, v%d, v%d' % (X + i, X + 2 * i, X + 2 * i + 1) for i in range(8)]
            stv = [((r >> 1) + 1, 'buffer_store_short%s v%d, v5, %s, s%d offen offset:%d%s' % ('_d16_hi' if r & 1 else '', X + (r >> 1), R4(WS), SO[r >> 2], 1280 * (r & 3), c)) for r in range(16)]
            return cv, stv
        cv, stv, done = [], [], 0
        for n, j in enumerate(order):
            if n == 1:
                fst(a, 0)
                N2, L2 = a.newlabel('NRP'), a.newlabel('LRP')
                a('s_waitcnt vmcnt(0)')
                a('s_cmp_lt_u32 s%d, 3' % sP)
                a('s_cbranch_scc1 %s' % N2)
                a('s_mov_b32 s%d, 0' % sCNT)
                setexec(a, 36)
                a.label(L2)
                a('s_waitcnt vmcnt(0)')
                a('v_cmp_ne_u32 vcc, s%d, v%d' % (sTAG, VR))
                a('v_cmp_ne_u32 s[64:65], s%d, v%d' % (sTAG, VR + 1))
                a('s_or_b64 vcc, vcc, s[64:65]')
                a('s_cbranch_vccz %s' % N2)
                a('buffer_load_dwordx2 %s, v29, %s, s76 offen sc1' % (vr(VR, 2), R4(WS)))
                a('s_add_u32 s%d, s%d, 1' % (sCNT, sCNT))
                a('s_cmp_lt_u32 s%d, s%d' % (sCNT, sLIM))
                a('s_cbranch_scc1 %s' % L2)
                a('s_mov_b32 s%d, 0' % sLIM)
                a('s_waitcnt vmcnt(0)')
                a.label(N2)
                setexec(a, 64)
                fst(a, 1)
            if n == 3: fst(a, 2)
            if n == 4: fst(a, 3)
            for ks in range(8):
                if n == 0:
                    a('s_waitcnt lgkmcnt(%d)' % (7 - ks))
                cc = '0' if ks == 0 else vr(AC[j], 16)
                a('v_mfma_f32_32x32x16_bf16 %s, %s, %s, %s' % (vr(AC[j], 16), vr(HF + 4 * ks, 4), vr(WB + (j * 8 + ks) * 4, 4), cc))
                if ks >= 2 or n in (2, 4):
                    ncv = min(3, len(cv))
                    emit(a, cv[:ncv]); cv = cv[ncv:]; done += ncv
                    k = 0
                    while k < 2 and stv and stv[0][0] <= done:
                        a(stv.pop(0)[1]); k += 1
            assert not cv
            if n in (0, 2, 4):
                assert not stv
                cv, stv = epi4() if n == 0 else epi_pair((n - 2) >> 1)
                done = 0
        fst(a, 4)
        while cv or stv:
            emit(a, cv[:2]); done += len(cv[:2]); cv = cv[2:]
            while stv and stv[0][0] <= done:
                a(stv.pop(0)[1])
    both(a, m2)
    fst_flush(a)
    a.label('G2_NOM2')
    stamp(a, (sP, 4, 10))
    def pf(n):
        N = a.newlabel('NPF')
        a('s_cmp_eq_u32 s83, 0')
        a('s_cbranch_scc1 %s' % N)
        a('s_waitcnt vmcnt(%d)' % n)
        both(a, lambda sc1: flag_store(a, 83, 29, sc1))
        a.label(N)
    a('s_cmp_lg_u32 s81, 0')
    a('s_cbranch_scc1 G2_L')
    pf(0)
    a('s_branch G2_NOL')
    a.label('G2_L')
    a('s_setprio %d' % PR_L)
    L, D = a.newlabel('RL'), a.newlabel('RD')
    a('v_mov_b32 v36, %d' % LF_R)
    a('s_mov_b32 s%d, 0' % sCNT)
    a.label(L)
    a('ds_read_b128 v[32:35], v36')
    a('s_add_u32 s%d, s%d, 1' % (sCNT, sCNT))
    a('s_waitcnt lgkmcnt(0)')
    a('v_min_u32 v32, v32, v33')
    a('v_min3_u32 v32, v32, v34, v35')
    a('v_cmp_ne_u32 vcc, s%d, v32' % sP)
    a('s_cbranch_vccz %s' % D)
    a('s_cmp_lt_u32 s%d, %d' % (sCNT, 4 * LIMIT))
    a('s_cbranch_scc1 %s' % L)
    a.label(D)
    for w in range(4):
        R = b.X if w == 0 else 64 + 10 * (w - 1)
        a('ds_read_b128 %s, v6 offset:%d' % (vr(R, 4), 2560 * w))
        a('ds_read_b128 %s, v6 offset:%d' % (vr(R + 4, 4), 2560 * w + 1024))
        a('ds_read_b64 %s, v13 offset:%d' % (vr(R + 8, 2), 2560 * w + 2048))
    for w in range(1, 4):
        a('s_waitcnt lgkmcnt(%d)' % (9 - 3 * w))
        R = 64 + 10 * (w - 1)
        for i in range(0, 10, 2):
            a('v_pk_add_f32 %s, %s, %s' % (P2(b.X + i), P2(b.X + i), P2(R + i)))
    a('s_cmp_ge_u32 s78, 4')
    a('s_cbranch_scc1 G2_F')
    emit(a, gate_pre(b, True))
    pf(0)
    emit(a, gate_post(b, True))
    both(a, lambda sc1: z_store(a, b, 14, 15, 72, sc1))
    a('s_mov_b32 s84, s73')
    a('s_add_u32 s71, s71, %s' % hex(XR))
    a('s_branch G2_NOL')
    a.label('G2_F')
    emit(a, pack10(b.XR, b.X))
    row_store(a, b.XR, RB, 71, False)
    pf(2)
    a.label('G2_NOL')
    stamp(a, (sP, 4, 11))
    a('s_cmp_eq_u32 s%d, 9' % sP)
    a('s_cbranch_scc1 G2_END')
    a('s_barrier')
    a('s_add_u32 s%d, s%d, 1' % (sP, sP))
    a('s_branch G2_LOOP')
    a.label('G2_END')
    endk(a)


def kernel():
    a = Asm()
    c1 = -2.0 * math.sqrt(2.0 / math.pi) * math.log2(math.e)
    a('s_cmp_ge_u32 s2, 256')
    a('s_cbranch_scc1 END')
    a('s_load_dwordx2 s[26:27], s[0:1], 104')
    a('s_load_dwordx4 s[4:7], s[0:1], 0')
    a('s_load_dwordx4 s[8:11], s[0:1], 16')
    a('s_load_dwordx4 s[12:15], s[0:1], 32')
    a('s_load_dwordx4 s[16:19], s[0:1], 56')
    a('s_load_dwordx4 s[20:23], s[0:1], 72')
    a('s_load_dwordx2 s[24:25], s[0:1], 88')
    a('v_lshrrev_b32 v1, 6, v0')
    a('v_readfirstlane_b32 s%d, v1' % sW)
    a('v_and_b32 v%d, 63, v0' % vL)
    a('v_lshlrev_b32 v%d, 4, v%d' % (vL16, vL))
    a('v_lshlrev_b32 v%d, 2, v%d' % (vL4, vL))
    a('s_and_b32 s%d, s2, 7' % sX)
    a('s_lshr_b32 s%d, s2, 3' % sI)
    a('s_and_b32 s%d, s%d, 15' % (sM, sI))
    a('s_lshr_b32 s%d, s%d, 4' % (sG, sI))
    a('s_lshl_b32 s63, s%d, 1' % sX)
    a('s_add_u32 s%d, s%d, s63' % (sG, sG))
    a('s_getreg_b32 s%d, hwreg(HW_REG_XCC_ID, 0, 3)' % sXCC)
    a('s_mov_b32 s%d, %d' % (sLIM, LIMIT))
    a('s_mov_b32 s%d, 0xffff0000' % sHI)
    a('s_mov_b32 s%d, 0x3acccccd' % sINV)
    a('s_mov_b32 s%d, 0x3727c5ac' % sEPS)
    a('s_mov_b32 s%d, %s' % (sC2, f2h(c1 * 0.044715)))
    a('s_mov_b32 s85, 0')
    a('s_mov_b32 s%d, 0x3f80' % sLO1)
    a('s_mov_b32 s%d, 0x3f800000' % sHI1)
    a('s_mov_b32 s%d, 0' % sSLOW)
    if STAMP:
        a('v_mov_b32 v%d, 0' % vST)
    for r in (8, 12, 13):
        a('v_mov_b32 v%d, 0' % r)
    a('v_add_u32 v4, %d, v%d' % (L_SYNC, vL4))
    a('ds_write_b32 v4, v8')
    a('s_waitcnt lgkmcnt(0)')
    srd(a, WS, pWS, '0x10000000')
    for r in (RA, RB, RC, RD):
        a('s_mov_b64 s[%d:%d], s[%d:%d]' % (r, r + 1, WS, WS + 1))
        a('s_mov_b64 s[%d:%d], s[%d:%d]' % (r + 2, r + 3, WS + 2, WS + 3))
    stamp(a, 0)
    if DBG:
        a('s_load_dwordx2 s[92:93], s[0:1], 96')
        a('s_mov_b32 s94, 256')
        a('s_mov_b32 s95, 0x20000')
        a('s_waitcnt lgkmcnt(0)')
        a('s_cmp_eq_u32 s2, 40')
        a('s_cselect_b32 s91, 1, 0')
        dstamp(a, 0)
        a('s_cmp_eq_u32 s2, 112')
        a('s_cselect_b32 s91, 1, s91')
    a('s_sub_u32 s63, s%d, 4' % sW)
    a('s_cmp_lt_u32 s63, 3')
    a('s_cbranch_scc1 CONVW')
    kv_phase(a)
    conv_phase(a)
    s_phase(a)
    g1_phase(a)
    g2_phase(a)
    a.label('END')
    a('s_endpgm')
    return a.lines


def build():
    ref = open('cdna_kernels/%s.s.ref' % NAME).read().split('\n')
    head = [l for l in ref if l.startswith(';') and '@launch' not in l and 'Override launch' not in l and 'grid=ceil' not in l]
    s = '\n'.join(head) + '\n'
    s += '; @launch grid=(256,1,1) block=(512,1,1) lds=163840\n'
    s += '.amdgcn_target "amdgcn-amd-amdhsa--gfx950"\n.text\n'
    s += kernel_text(NAME + '_kernel', kernel(), 256)
    s += '.section .rodata,"a"\n'
    s += descriptor_text(NAME + '_kernel', 256, 102)
    return s


if __name__ == '__main__':
    for n in range(320):
        assert (n * 3277) >> 16 == n // 20
    for n in range(9):
        assert (n * 43) >> 7 == n // 3
    open(sys.argv[1], 'w').write(build())
```

```python
import sys, os, math, struct
from asmlib import *

NAME = 'interleave_layers__ssm_conv_h3__mixer_channel_mlp__prompt'
STAMP = int(os.environ.get('STAMP', '0'))
FORCE_SLOW = int(os.environ.get('FORCE_SLOW', '0'))
STOP = os.environ.get('STOP', '')
LIMIT = 20000
DBG = int(os.environ.get('DBG', '0'))
NOW = int(os.environ.get('NOW', '0'))

EPOCH, HELLO, KVFA, KVFB, YF, ZF, HFL, MFL = 0, 0x1000, 0x2000, 0x4000, 0x6000, 0xA000, 0x12000, 0x1A000
KVA, KVB, YT, ZI, HB, MR = 0x100000, 0x400000, 0x700000, 0x1000000, 0x1400000, 0x1C00000
HSLOT = 110592
STAMPS = 0x8000000
ROWS_B = 2048 * 1280
L_U, L_SYNC, L_RB, L_ZE = 49920, 63744, 65536, 122880
RBS, RROW = 12800, 400
HSTR = 4160
LF_G1, LF_CV, LF_U, LF_R1, LF_R2 = L_SYNC + 16, L_SYNC + 32, L_SYNC + 48, L_SYNC + 64, L_SYNC + 80
PR_G1A, PR_G1B, PR_G2, PR_G2R = [int(x) for x in os.environ.get('PRIO', '1,1,1,2').split(',')]
SVP = [int(x) for x in os.environ.get('SVP', '6,16,26').split(',')]
pQ, pK, pV, pSH, pH, pD, pW1, pB1, pW2, pB2, pOUT, pWS = 4, 6, 8, 10, 12, 14, 16, 18, 20, 22, 24, 26
sX, sW, sI, sM = 28, 29, 30, 31
WS, RA, RB, RC, RD = 32, 36, 40, 44, 48
sG, sTAG, sXCC, sSLOW, sP, sLIM, sCNT = 52, 53, 54, 55, 56, 57, 58
sHI, sINV, sEPS, sC2 = 59, 60, 61, 62
sLO1, sHI1 = 89, 90
sST = 86
vL, vL16, vL4, vC1, vST = 1, 2, 3, 6, 7

f2h = lambda x: hex(struct.unpack('<I', struct.pack('<f', x))[0])
R4 = lambda d: 's[%d:%d]' % (d, d + 3)


def srd(a, d, p, size, add=None):
    if add is None:
        a('s_mov_b32 s%d, s%d' % (d, p)); a('s_mov_b32 s%d, s%d' % (d + 1, p + 1))
    else:
        a('s_add_u32 s%d, s%d, %s' % (d, p, add)); a('s_addc_u32 s%d, s%d, 0' % (d + 1, p + 1))
    a('s_mov_b32 s%d, %s' % (d + 2, size)); a('s_mov_b32 s%d, 0x20000' % (d + 3))


def stamp(a, idx):
    if not STAMP:
        return
    a('s_memrealtime s[%d:%d]' % (sST, sST + 1))
    if isinstance(idx, tuple):
        a('s_mul_i32 s88, s%d, %d' % (idx[0], idx[1]))
        a('s_add_u32 s88, s88, %d' % idx[2])
        a('s_lshl_b64 exec, 1, s88')
        a('s_waitcnt lgkmcnt(0)')
        a('v_mov_b32 v%d, s%d' % (vST, sST))
        a('s_mov_b64 exec, -1')
    else:
        a('s_waitcnt lgkmcnt(0)')
        a('v_writelane_b32 v%d, s%d, %d' % (vST, sST, idx))


FP = int(os.environ.get('FP', '-1'))


def fst(a, k):
    if STAMP and FP >= 0:
        a('s_memrealtime s[%d:%d]' % (92 + 2 * k, 93 + 2 * k))


def fst_flush(a):
    if STAMP and FP >= 0:
        L = a.newlabel('FS')
        a('s_waitcnt lgkmcnt(0)')
        a('s_cmp_lg_u32 s%d, %d' % (sP, FP))
        a('s_cbranch_scc1 %s' % L)
        for k in range(5):
            a('v_writelane_b32 v%d, s%d, %d' % (vST, 92 + 2 * k, 52 + k))
        a.label(L)


def dstamp(a, slot):
    if not DBG:
        return
    L = a.newlabel('DS')
    a('s_cmp_eq_u32 s91, 0')
    a('s_cbranch_scc1 %s' % L)
    a('s_memrealtime s[%d:%d]' % (sST, sST + 1))
    a('s_waitcnt lgkmcnt(0)')
    a('v_mov_b32 v%d, s%d' % (vST, sST))
    a('s_mov_b64 exec, 1')
    a('buffer_store_dword v%d, off, s[92:95], 0 offset:%d' % (vST, 4 * slot))
    a('s_mov_b64 exec, -1')
    a.label(L)


def endk(a):
    dstamp(a, 15)
    if STAMP:
        a('s_waitcnt vmcnt(0)')
        stamp(a, 63)
        a('s_lshl_b32 s63, s2, 3')
        a('s_add_u32 s63, s63, s%d' % sW)
        a('s_lshl_b32 s63, s63, 8')
        a('s_add_u32 s63, s63, %s' % hex(STAMPS))
        a('s_mov_b64 exec, -1')
        a('buffer_store_dword v%d, v%d, %s, s63 offen' % (vST, vL4, R4(WS)))
    a('s_endpgm')


def setexec(a, n):
    if n == 64:
        a('s_mov_b64 exec, -1')
    elif n <= 6:
        a('s_mov_b64 exec, %d' % ((1 << n) - 1))
    elif n <= 32:
        a('s_mov_b32 exec_lo, %s' % ('-1' if n == 32 else hex((1 << n) - 1))); a('s_mov_b32 exec_hi, 0')
    else:
        a('s_mov_b32 exec_lo, -1'); a('s_mov_b32 exec_hi, %s' % hex((1 << (n - 32)) - 1))


def poll(a, soff, nl, vT, pre=False):
    L, C, D = a.newlabel('PL'), a.newlabel('PC'), a.newlabel('PD')
    a('s_mov_b32 s%d, 0' % sCNT)
    setexec(a, nl)
    if pre:
        a('s_branch %s' % C)
    a.label(L)
    a('buffer_load_dword v%d, v%d, %s, s%d offen sc1' % (vT, vL4, R4(WS), soff))
    a.label(C)
    a('s_add_u32 s%d, s%d, 1' % (sCNT, sCNT))
    a('s_waitcnt vmcnt(0)')
    a('v_cmp_ne_u32 vcc, s%d, v%d' % (sTAG, vT))
    a('s_cbranch_vccz %s' % D)
    a('s_cmp_lt_u32 s%d, s%d' % (sCNT, sLIM))
    a('s_cbranch_scc1 %s' % L)
    a('s_mov_b32 s%d, 0' % sLIM)
    a.label(D)
    setexec(a, 64)


def flag_store(a, soff, vT, sc1):
    a('v_mov_b32 v%d, s%d' % (vT, sTAG))
    a('s_mov_b64 exec, 1')
    a('buffer_store_dword v%d, off, %s, s%d%s' % (vT, R4(WS), soff, ' sc1' if sc1 else ''))
    a('s_mov_b64 exec, -1')


def hello_check(a, vT, st):
    L, D = a.newlabel('HL'), a.newlabel('HD')
    a('s_lshl_b32 s%d, s%d, 7' % (st, sX))
    a('s_add_u32 s%d, s%d, %d' % (st, st, HELLO))
    a('s_mov_b32 s%d, 0' % sCNT)
    setexec(a, 32)
    a.label(L)
    a('buffer_load_dword v%d, v%d, %s, s%d offen sc1' % (vT, vL4, R4(WS), st))
    a('s_add_u32 s%d, s%d, 1' % (sCNT, sCNT))
    a('s_waitcnt vmcnt(0)')
    a('v_xor_b32 v%d, s%d, v%d' % (vT, sTAG, vT))
    a('v_cmp_lt_u32 vcc, 15, v%d' % vT)
    a('v_and_b32 v%d, 1, v%d' % (vT + 1, vT))
    a('v_cmp_ne_u32 s[64:65], 0, v%d' % (vT + 1))
    a('s_or_b64 vcc, vcc, s[64:65]')
    a('s_cbranch_vccz %s' % D)
    a('s_cmp_lt_u32 s%d, s%d' % (sCNT, sLIM))
    a('s_cbranch_scc1 %s' % L)
    a('s_mov_b32 s%d, 0' % sLIM)
    a.label(D)
    a('s_lshl_b32 s%d, s%d, 1' % (st, sXCC))
    a('v_cmp_ne_u32 vcc, s%d, v%d' % (st, vT))
    a('s_cmp_lg_u64 vcc, 0')
    a('s_cselect_b32 s%d, 1, %d' % (sSLOW, FORCE_SLOW))
    setexec(a, 64)


def get_tag(a, vE):
    a('v_readfirstlane_b32 s%d, v%d' % (sTAG, vE))
    a('s_mul_i32 s%d, s%d, 0x9E3779B1' % (sTAG, sTAG))
    a('s_add_u32 s%d, s%d, 0x7F4A7C15' % (sTAG, sTAG))


def lds_spin(a, addr, n, vT):
    L, D = a.newlabel('SL'), a.newlabel('SD')
    a('v_mov_b32 v%d, %d' % (vT + 4, addr))
    a('s_mov_b32 s%d, 0' % sCNT)
    a.label(L)
    a('ds_read_b128 %s, v%d' % (vr(vT, 4), vT + 4))
    a('s_add_u32 s%d, s%d, 1' % (sCNT, sCNT))
    a('s_waitcnt lgkmcnt(0)')
    for k in range(1, n):
        a('v_and_b32 v%d, v%d, v%d' % (vT, vT, vT + k))
    a('v_cmp_eq_u32 vcc, 0, v%d' % vT)
    a('s_cbranch_vccz %s' % D)
    a('s_cmp_lt_u32 s%d, %d' % (sCNT, 4 * LIMIT))
    a('s_cbranch_scc1 %s' % L)
    a.label(D)


def lds_flag(a, base, sIdx, vT):
    a('s_lshl_b32 s64, s%d, 2' % sIdx)
    a('s_add_u32 s64, s64, %d' % base)
    a('v_mov_b32 v%d, s64' % vT)
    a('v_mov_b32 v%d, 1' % (vT + 1))
    a('ds_write_b32 v%d, v%d' % (vT, vT + 1))


def wave_sum(v):
    return ['v_add_f32 v%d, v%d, v%d row_shr:1 row_mask:0xf bank_mask:0xf bound_ctrl:0' % (v, v, v),
            'v_add_f32 v%d, v%d, v%d row_shr:2 row_mask:0xf bank_mask:0xf bound_ctrl:0' % (v, v, v),
            'v_add_f32 v%d, v%d, v%d row_shr:4 row_mask:0xf bank_mask:0xf bound_ctrl:0' % (v, v, v),
            'v_add_f32 v%d, v%d, v%d row_shr:8 row_mask:0xf bank_mask:0xf bound_ctrl:0' % (v, v, v),
            'v_add_f32 v%d, v%d, v%d row_bcast:15 row_mask:0xa bank_mask:0xf' % (v, v, v),
            'v_add_f32 v%d, v%d, v%d row_bcast:31 row_mask:0xc bank_mask:0xf' % (v, v, v)]


def P2(r):
    return 'v[%d:%d]' % (r, r + 1)


def S2(r):
    return 's[%d:%d]' % (r, r + 1)


def stats(X, D, T, sm, sr_, pk, double=False):
    o = []
    if pk:
        o.append('v_pk_add_f32 %s, %s, %s' % (P2(T), P2(X), P2(X + 2)))
        for i in range(4, 10, 2):
            o.append('v_pk_add_f32 %s, %s, %s' % (P2(T), P2(T), P2(X + i)))
    else:
        o.append('v_add_f32 v%d, v%d, v%d' % (T, X, X + 1))
        o.append('v_add_f32 v%d, v%d, v%d' % (T + 1, X + 2, X + 3))
        for i in range(4, 10, 2):
            o.append('v_add_f32 v%d, v%d, v%d' % (T, T, X + i))
            o.append('v_add_f32 v%d, v%d, v%d' % (T + 1, T + 1, X + i + 1))
    o.append('v_add_f32 v%d, v%d, v%d' % (T, T, T + 1))
    o += wave_sum(T)
    o.append('v_mul_f32 v%d, s%d, v%d' % (T, sINV, T))
    o.append('v_readlane_b32 s%d, v%d, 63' % (sm, T))
    if pk:
        for i in range(0, 10, 2):
            o.append('v_pk_add_f32 %s, %s, %s op_sel_hi:[1,0] neg_lo:[0,1] neg_hi:[0,1]' % (P2(D + i), P2(X + i), S2(sm)))
        o.append('v_pk_mul_f32 %s, %s, %s' % (P2(T), P2(D), P2(D)))
        for i in range(2, 10, 2):
            o.append('v_pk_fma_f32 %s, %s, %s, %s' % (P2(T), P2(D + i), P2(D + i), P2(T)))
    else:
        for i in range(10):
            o.append('v_subrev_f32 v%d, s%d, v%d' % (D + i, sm, X + i))
        o.append('v_mul_f32 v%d, v%d, v%d' % (T, D, D))
        o.append('v_mul_f32 v%d, v%d, v%d' % (T + 1, D + 1, D + 1))
        for i in range(2, 10, 2):
            o.append('v_fmac_f32 v%d, v%d, v%d' % (T, D + i, D + i))
            o.append('v_fmac_f32 v%d, v%d, v%d' % (T + 1, D + i + 1, D + i + 1))
    o.append('v_add_f32 v%d, v%d, v%d' % (T, T, T + 1))
    o += wave_sum(T)
    if not double:
        o.append('v_mov_b32 v%d, s%d' % (T + 1, sEPS))
        o.append('v_fmac_f32 v%d, s%d, v%d' % (T + 1, sINV, T))
        o.append('v_rsq_f32 v%d, v%d' % (T, T + 1))
    else:
        o.append('v_mul_f32 v%d, s%d, v%d' % (T, sINV, T))
        o.append('v_add_f32 v%d, s%d, v%d' % (T + 1, sEPS, T))
        o.append('v_rsq_f32 v%d, v%d' % (T + 1, T + 1))
        o.append('v_mul_f32 v%d, v%d, v%d' % (T, T, T + 1))
        o.append('v_fma_f32 v%d, v%d, v%d, s%d' % (T, T, T + 1, sEPS))
        o.append('v_rsq_f32 v%d, v%d' % (T, T))
        o.append('v_mul_f32 v%d, v%d, v%d' % (T, T, T + 1))
    o.append('v_readlane_b32 s%d, v%d, 63' % (sr_, T))
    return o


def scale10(dst, src, sr_, pk):
    if pk:
        return ['v_pk_mul_f32 %s, %s, %s op_sel_hi:[1,0]' % (P2(dst + i), P2(src + i), S2(sr_)) for i in range(0, 10, 2)]
    return ['v_mul_f32 v%d, s%d, v%d' % (dst + i, sr_, src + i) for i in range(10)]


def acc10(dst, src, dot):
    o = []
    for i in range(5):
        o.append('v_dot2c_f32_bf16 v%d, s%d, v%d' % (dst + 2 * i, sLO1, src[i]))
        o.append('v_dot2c_f32_bf16 v%d, s%d, v%d' % (dst + 2 * i + 1, sHI1, src[i]))
    return o


def unpack10(dst, src):
    o = []
    for i in range(5):
        o.append('v_lshlrev_b32 v%d, 16, v%d' % (dst + 2 * i, src[i]))
        o.append('v_and_b32 v%d, s%d, v%d' % (dst + 2 * i + 1, sHI, src[i]))
    return o


def pack10(dst, src):
    return ['v_cvt_pk_bf16_f32 v%d, v%d, v%d' % (dst[i], src + 2 * i, src + 2 * i + 1) for i in range(5)]


class Blk:
    def __init__(self, B, sm, sr_, yraw=None):
        self.XR = [B, B + 1, B + 2, B + 3, B + 4]
        self.YR = yraw or [B + 8, B + 9, B + 10, B + 11, B + 5]
        self.ZP = [B + 12, B + 13, B + 14, B + 15, B + 6]
        self.X, self.Y, self.D, self.T = B + 16, B + 26, B + 36, B + 46
        self.sm, self.sr = sm, sr_


def gate_pre(b, pk):
    return stats(b.X, b.D, b.T, b.sm, b.sr, pk)


def gate_post(b, pk):
    o = unpack10(b.Y, b.YR)
    if pk:
        for i in range(0, 10, 2):
            o.append('v_pk_mul_f32 %s, %s, %s' % (P2(b.D + i), P2(b.D + i), P2(b.Y + i)))
        for i in range(0, 10, 2):
            o.append('v_pk_fma_f32 %s, %s, %s, %s op_sel_hi:[1,0,1]' % (P2(b.X + i), P2(b.D + i), S2(b.sr), P2(b.X + i)))
    else:
        for i in range(10):
            o.append('v_mul_f32 v%d, v%d, v%d' % (b.D + i, b.D + i, b.Y + i))
        for i in range(10):
            o.append('v_fmac_f32 v%d, s%d, v%d' % (b.X + i, b.sr, b.D + i))
    o += stats(b.X, b.D, b.T, b.sm, b.sr, pk, double=True)
    o += scale10(b.D, b.D, b.sr, pk)
    o += pack10(b.ZP, b.D)
    o += pack10(b.XR, b.X)
    return o


def gate_ln_z(b, pk):
    return gate_pre(b, pk) + gate_post(b, pk)


def row_store(a, regs, srdn, soff, sc1):
    c = ' sc1' if sc1 else ''
    a('buffer_store_dwordx4 %s, v%d, %s, s%d offen%s' % (vr(regs[0], 4), vL16, R4(srdn), soff, c))
    a('buffer_store_dword v%d, v%d, %s, s%d offen offset:1024%s' % (regs[4], vL4, R4(srdn), soff, c))


def row_load(a, regs, srdn, soff, sc1=True):
    c = ' sc1' if sc1 else ''
    a('buffer_load_dwordx4 %s, v%d, %s, s%s offen%s' % (vr(regs[0], 4), vL16, R4(srdn), soff, c))
    a('buffer_load_dword v%d, v%d, %s, s%s offen offset:1024%s' % (regs[4], vL4, R4(srdn), soff, c))


def z_addr(a, sj, va, vb, st):
    a('s_and_b32 s%d, s%d, 15' % (st, sj))
    a('s_lshl_b32 s%d, s%d, 8' % (st + 1, sj))
    a('v_and_b32 v%d, 15, v%d' % (va, vL))
    a('v_xor_b32 v%d, s%d, v%d' % (va, st, va))
    a('v_lshlrev_b32 v%d, 4, v%d' % (va, va))
    a('v_lshrrev_b32 v%d, 4, v%d' % (vb, vL))
    a('v_lshl_add_u32 v%d, v%d, 13, v%d' % (va, vb, va))
    a('v_add_u32 v%d, s%d, v%d' % (va, st + 1, va))
    a('v_lshrrev_b32 v%d, 2, v%d' % (vb, vL))
    a('v_xor_b32 v%d, s%d, v%d' % (vb, st, vb))
    a('v_lshlrev_b32 v%d, 2, v%d' % (vb, vb))
    a('v_and_or_b32 v%d, v%d, 3, v%d' % (vb, vL, vb))
    a('v_lshlrev_b32 v%d, 2, v%d' % (vb, vb))
    a('s_add_u32 s%d, s%d, 0x8000' % (st + 1, st + 1))
    a('v_add_u32 v%d, s%d, v%d' % (vb, st + 1, vb))


def z_store(a, b, va, vb, soff, sc1):
    c = ' sc1' if sc1 else ''
    a('buffer_store_dwordx4 %s, v%d, %s, s%d offen%s' % (vr(b.ZP[0], 4), va, R4(WS), soff, c))
    a('buffer_store_dword v%d, v%d, %s, s%d offen%s' % (b.ZP[4], vb, R4(WS), soff, c))


def both(a, fn):
    S, D = a.newlabel('BS'), a.newlabel('BD')
    a('s_cmp_lg_u32 s%d, 0' % sSLOW)
    a('s_cbranch_scc1 %s' % S)
    fn(False)
    a('s_branch %s' % D)
    a.label(S)
    fn(True)
    a.label(D)


def emit(a, lst):
    for l in lst:
        a(l)


def zip2(x, y):
    o = []
    for p, q in zip(x, y):
        o += [p, q]
    return o


vW2O = 8
WB = 96
WB2 = 88


def member_ij(a, si, sc):
    a('s_cmp_ge_u32 s%d, 7' % sM)
    a('s_cselect_b32 s%d, 1, 0' % si)
    a('s_mul_i32 s%d, s%d, 7' % (sc, si))
    a('s_sub_u32 s%d, s%d, s%d' % (sc, sM, sc))
    a('s_mul_i32 s%d, s%d, 192' % (sc, sc))
    a('s_min_u32 s%d, s%d, 1088' % (sc, sc))


def w2_setup(a, sWp):
    srd(a, RA, pW2, 1728 * 1280)
    a('s_mul_i32 s70, s%d, %d' % (sWp, RBS))
    a('s_add_u32 s70, s70, %d' % L_RB)
    member_ij(a, 72, 71)
    a('s_mul_i32 s72, s72, 27')
    a('s_mul_i32 s73, s%d, 7' % sWp)
    a('s_add_u32 s72, s72, s73')
    a('s_mul_i32 s72, s72, 40960')
    a('s_add_u32 s71, s71, s72')
    a('s_movk_i32 s72, 5462')
    a('s_movk_i32 s73, 1088')
    for q in range(3):
        a('v_add_u32 v14, %d, v%d' % (64 * q, vL))
        a('v_mul_u32_u24 v15, s72, v14')
        a('v_lshrrev_b32 v15, 16, v15')
        a('v_lshlrev_b32 v14, 4, v14')
        a('v_mad_u32_u24 v14, v15, s73, v14')
        a('v_add_u32 v%d, s71, v14' % (vW2O + q))
    a('v_bfe_u32 v14, v%d, 4, 1' % vL)
    a('v_lshlrev_b32 v14, 4, v14')
    a('v_lshrrev_b32 v15, 5, v%d' % vL)
    a('v_lshl_add_u32 v14, v15, 2, v14')
    a('v_bfe_u32 v15, v%d, 2, 2' % vL)
    a('v_add_u32 v14, v14, v15')
    a('v_mul_u32_u24 v13, 192, v14')
    a('v_and_b32 v14, 3, v%d' % vL)
    a('v_lshl_add_u32 v13, v14, 3, v13')
    a('v_add_u32 v13, s70, v13')
    a('v_add_u32 v0, s70, v%d' % vL16)


def w2_loads():
    o = []
    if NOW:
        return o
    for ks in range(7):
        for n in range(6):
            g = ['s_mov_b32 s71, %d' % (ks * 40960 + (n // 3) * 20480)] if n % 3 == 0 else []
            g.append('buffer_load_dwordx4 %s, v%d, %s, s71 offen' % (vr(WB2 + (ks * 6 + n) * 4, 4), vW2O + n % 3, R4(RA)))
            o.append(g)
    return o


def w2_xpose(a, waited):
    for ks in range(7):
        h = ks & 1
        if not waited:
            a('s_waitcnt vmcnt(%d)' % (36 - 6 * ks))
        for n in range(6):
            a('ds_write_b128 v0, %s offset:%d' % (vr(WB2 + (ks * 6 + n) * 4, 4), 6144 * h + 1024 * n))
        a('s_waitcnt lgkmcnt(6)')
        for t in range(6):
            for hh in range(2):
                a('ds_read_b64_tr_b16 %s, v13 offset:%d' % (vr(WB2 + (ks * 6 + t) * 4 + 2 * hh, 2), 6144 * h + 1536 * hh + 32 * t))
                if t == 4 and hh == 0:
                    a('s_waitcnt lgkmcnt(8)')
        a('s_waitcnt lgkmcnt(6)')
    a('s_waitcnt lgkmcnt(0)')


def w1_setup(a):
    srd(a, RA, pW1, 640 * 3456)
    a('s_mul_i32 s70, s%d, 10240' % sW)
    a('s_add_u32 s70, s70, %d' % L_ZE)
    a('s_lshl_b32 s71, s%d, 8' % sM)
    a('s_lshl_b32 s72, s%d, 6' % sW)
    a('s_add_u32 s71, s71, s72')
    a('v_lshrrev_b32 v14, 2, v%d' % vL)
    a('v_mul_u32_u24 v8, 3456, v14')
    a('v_and_b32 v14, 3, v%d' % vL)
    a('v_lshl_add_u32 v8, v14, 4, v8')
    a('v_add_u32 v8, s71, v8')
    a('v_lshrrev_b32 v14, 5, v%d' % vL)
    a('v_bfe_u32 v15, v%d, 2, 2' % vL)
    a('v_lshl_add_u32 v14, v14, 3, v15')
    a('v_lshlrev_b32 v13, 6, v14')
    a('v_bfe_u32 v14, v%d, 4, 1' % vL)
    a('v_lshl_add_u32 v13, v14, 5, v13')
    a('v_and_b32 v14, 3, v%d' % vL)
    a('v_lshl_add_u32 v13, v14, 3, v13')
    a('v_add_u32 v13, s70, v13')
    a('v_add_u32 v9, s70, v%d' % vL16)


def w1_loads(a):
    for ks in range(40):
        a('s_mov_b32 s71, %d' % (ks * 55296))
        a('buffer_load_dwordx4 %s, v8, %s, s71 offen' % (vr(WB + 4 * ks, 4), R4(RA)))


def kv_phase(a):
    K0, V0, SH, OUT = 16, 30, 40, 48
    KF, TP, AC = 56, 64, 68
    a.label('KV')
    a('buffer_load_dword v4, off, %s, 0 sc1' % R4(WS))
    srd(a, RB, pK, hex(ROWS_B))
    srd(a, RC, pV, hex(ROWS_B))
    srd(a, RD, pSH, 5120)
    a('s_min_u32 s63, s%d, 4' % sW)
    a('s_mul_i32 s64, s%d, 80' % sX)
    a('s_lshl_b32 s65, s63, 4')
    a('s_add_u32 s64, s64, s65')
    a('s_mul_i32 s65, s%d, %d' % (sI, 64 * 1280))
    a('s_lshl_b32 s66, s64, 1')
    a('s_add_u32 s65, s65, s66')
    a('v_and_b32 v14, 15, v%d' % vL)
    a('v_lshrrev_b32 v15, 4, v%d' % vL)
    a('v_mul_u32_u24 v10, 5120, v14')
    a('v_lshl_add_u32 v10, v15, 3, v10')
    a('v_add_u32 v10, s65, v10')
    a('v_subrev_u32 v9, 3840, v10')
    for r in range(3):
        a('buffer_load_dwordx2 %s, v9, %s, 0 offen offset:%d' % (vr(K0 + 2 * r, 2), R4(RB), 1280 * r))
    for r in range(4):
        a('buffer_load_dwordx2 %s, v10, %s, 0 offen offset:%d' % (vr(K0 + 6 + 2 * r, 2), R4(RB), 1280 * r))
    for r in range(4):
        a('buffer_load_dwordx2 %s, v10, %s, 0 offen offset:%d' % (vr(V0 + 2 * r, 2), R4(RC), 1280 * r))
    a('v_lshlrev_b32 v11, 5, v15')
    a('s_lshl_b32 s66, s64, 3')
    a('buffer_load_dwordx4 %s, v11, %s, s66 offen' % (vr(SH, 4), R4(RD)))
    a('buffer_load_dwordx4 %s, v11, %s, s66 offen offset:16' % (vr(SH + 4, 4), R4(RD)))
    a('s_barrier')
    a('v_lshlrev_b32 v5, 14, v15')
    a('v_lshlrev_b32 v14, 3, v14')
    a('v_sub_u32 v5, v5, v14')
    a('v_add_u32 v5, 120, v5')
    a('s_lshl_b32 s67, s64, 12')
    a('s_lshl_b32 s66, s%d, 7' % sI)
    a('s_sub_u32 s67, s67, s66')
    a('s_add_u32 s67, s67, 3968')
    a('s_mul_i32 s68, s%d, 5' % sX)
    a('s_add_u32 s68, s68, s63')
    a('s_lshl_b32 s68, s68, 7')
    a('s_lshl_b32 s66, s%d, 2' % sI)
    a('s_add_u32 s68, s68, s66')
    a('s_waitcnt vmcnt(13)')
    get_tag(a, 4)
    a('s_cmp_lg_u32 s%d, 7' % sW)
    a('s_cbranch_scc1 KV_NOH')
    a('s_lshl_b32 s66, s%d, 1' % sXCC)
    a('s_xor_b32 s66, s66, s%d' % sTAG)
    a('v_mov_b32 v4, s66')
    a('s_lshl_b32 s66, s%d, 7' % sX)
    a('s_lshl_b32 s69, s%d, 2' % sI)
    a('s_add_u32 s66, s66, s69')
    a('s_mov_b64 exec, 1')
    a('s_add_u32 s66, s66, %d' % HELLO)
    a('buffer_store_dword v4, off, %s, s66 sc1' % R4(WS))
    a('s_mov_b64 exec, -1')
    a('s_waitcnt vmcnt(1)')
    a('s_branch KV_GO')
    a.label('KV_NOH')
    a('s_waitcnt vmcnt(0)')
    a.label('KV_GO')
    stamp(a, 1)
    for e in range(4):
        d = e >> 1
        def unp(dst, src):
            if e & 1:
                a('v_and_b32 v%d, s%d, v%d' % (dst, sHI, src))
            else:
                a('v_lshlrev_b32 v%d, 16, v%d' % (dst, src))
        for r in range(7):
            unp(KF + r, K0 + 2 * r + d)
        for j in range(4):
            src = SH + 2 * e + (j >> 1)
            if j & 1:
                a('v_and_b32 v%d, s%d, v%d' % (TP + j, sHI, src))
            else:
                a('v_lshlrev_b32 v%d, 16, v%d' % (TP + j, src))
        for t in range(4):
            a('v_mul_f32 v%d, v%d, v%d' % (AC + t, TP + 3, KF + t))
        for jj in (2, 1, 0):
            for t in range(4):
                a('v_fmac_f32 v%d, v%d, v%d' % (AC + t, TP + jj, KF + 3 + t - jj))
        for t in range(4):
            unp(KF + t, V0 + 2 * t + d)
        for t in range(4):
            a('v_mul_f32 v%d, v%d, v%d' % (AC + t, AC + t, KF + t))
        a('v_cvt_pk_bf16_f32 v%d, v%d, v%d' % (OUT + 2 * e, AC + 3, AC + 2))
        a('v_cvt_pk_bf16_f32 v%d, v%d, v%d' % (OUT + 2 * e + 1, AC + 1, AC))
        a('s_add_u32 s66, s67, %s' % hex(KVA + 4096 * e))
        a('buffer_store_dwordx2 %s, v5, %s, s66 offen' % (vr(OUT + 2 * e, 2), R4(WS)))
    a('s_lshl_b32 s66, s%d, 1' % sXCC)
    a('s_add_u32 s66, s66, s%d' % sTAG)
    a('v_mov_b32 v4, s66')
    a('s_add_u32 s66, s68, %d' % KVFA)
    a('s_waitcnt vmcnt(0)')
    a('s_mov_b64 exec, 1')
    a('buffer_store_dword v4, off, %s, s66' % R4(WS))
    a('s_mov_b64 exec, -1')
    stamp(a, 2)
    dstamp(a, 2)
    a('s_cmp_lt_u32 s%d, 14' % sM)
    a('s_cbranch_scc1 KV_MEM')
    a('v_mov_b32 v4, s%d' % sTAG)
    a('v_mov_b32 v14, %d' % L_SYNC)
    a('ds_write_b32 v14, v4')
    a('s_waitcnt lgkmcnt(0)')
    a('s_barrier')
    a.label('KV_MEM')
    hello_check(a, 14, 66)
    a('s_cmp_eq_u32 s%d, 0' % sSLOW)
    a('s_cbranch_scc1 KV_DONE')
    for e in range(4):
        a('s_add_u32 s66, s67, %s' % hex(KVB + 4096 * e))
        a('buffer_store_dwordx2 %s, v5, %s, s66 offen sc1' % (vr(OUT + 2 * e, 2), R4(WS)))
    a('s_add_u32 s66, s68, %d' % KVFB)
    a('s_waitcnt vmcnt(0)')
    flag_store(a, 66, 4, True)
    a.label('KV_DONE')
    stamp(a, 3)
    a('s_cmp_ge_u32 s%d, 14' % sM)
    a('s_cbranch_scc1 S_MAIN')
    a('s_cmp_eq_u32 s%d, 7' % sW)
    a('s_cbranch_scc1 G2_W7')
    a('s_branch G1_INIT')


class LdsQ:
    def __init__(self, a):
        self.a, self.q = a, []
    def issue(self, key, text):
        self.a(text); self.q.append(key)
    def wait(self, keys):
        last = -1
        for i, k in enumerate(self.q):
            if k in keys:
                last = i
        if last >= 0:
            n = len(self.q) - 1 - last
            self.a('s_waitcnt lgkmcnt(%d)' % n)
            self.q = self.q[last + 1:]


CACC, CB, CA, CE = 16, 32, 64, 80
vCA, vCB = 14, 15
CF0, CF1 = 36, 40


def lds_gate(a):
    lds_spin(a, LF_U, 3, 16)


def conv_part(a, taus, kappas, started, hooks={}):
    mf = []
    for k in kappas:
        for aa in range(max(taus) + 1):
            for t in taus:
                if t >= aa:
                    mf.append((('A', aa, k), ('B', t - aa, k), t))
    order, last = [], {}
    for i, (fa, fb, t) in enumerate(mf):
        for f in (fb, fa):
            if f not in last:
                order.append(f)
            last[f] = i
    free = {'A': list(range(4)), 'B': list(range(8))}
    slot = {}
    q = LdsQ(a)
    nxt = 0
    def reg(f):
        return (CA if f[0] == 'A' else CB) + 4 * slot[f]
    def try_issue(budget):
        nonlocal nxt
        while nxt < len(order) and budget > 0:
            f = order[nxt]
            cost = 2 if f[0] == 'A' else 1
            if not free[f[0]] or len(q.q) + cost > 14:
                break
            slot[f] = free[f[0]].pop(0)
            if f[0] == 'A':
                off = 512 * f[1] + 64 * f[2]
                q.issue(f, 'ds_read_b64 %s, v%d offset:%d' % (vr(reg(f), 2), vCA, off))
                q.issue(f, 'ds_read_b64 %s, v%d offset:%d' % (vr(reg(f) + 2, 2), vCA, off + 8))
            else:
                q.issue(f, 'ds_read_b128 %s, v%d offset:%d' % (vr(reg(f), 4), vCB, 512 * (7 - f[1]) + 64 * f[2]))
            budget -= cost
            nxt += 1
    try_issue(12)
    for i, (fa, fb, t) in enumerate(mf):
        while fa not in slot or fb not in slot:
            n0 = nxt
            try_issue(2)
            if nxt == n0:
                q.wait([q.q[0]])
        q.wait([fa, fb])
        acc = CACC + 4 * (t - taus[0])
        c = vr(acc, 4) if t in started else '0'
        started.add(t)
        a('v_mfma_f32_16x16x32_bf16 %s, %s, %s, %s' % (vr(acc, 4), vr(reg(fa), 4), vr(reg(fb), 4), c))
        for f in (fa, fb):
            if last[f] == i:
                free[f[0]].append(slot[f])
        try_issue(3)
        if i in hooks:
            hooks[i]()


def conv_epilogue(a, taus, stage):
    T = CA
    for n, t in enumerate(taus):
        a('ds_read_b64 %s, v4 offset:%d' % (vr(CE + 2 * n, 2), 512 * (7 - t)))
    a('s_waitcnt lgkmcnt(0)')
    for pr in range(len(taus) // 2):
        Q = CB + 4 * pr
        for h in range(2):
            n = 2 * pr + h
            e0, e1 = CE + 2 * n, CE + 2 * n + 1
            acc = CACC + 4 * n
            a('v_and_b32 v%d, s%d, v%d' % (T + 0, sHI, e1))
            a('v_lshlrev_b32 v%d, 16, v%d' % (T + 1, e1))
            a('v_and_b32 v%d, s%d, v%d' % (T + 2, sHI, e0))
            a('v_lshlrev_b32 v%d, 16, v%d' % (T + 3, e0))
            for r in range(4):
                a('v_fmac_f32 v%d, s74, v%d' % (acc + r, T + r))
            a('v_cvt_pk_bf16_f32 v%d, v%d, v%d' % (Q + 2 * h, acc, acc + 1))
            a('v_cvt_pk_bf16_f32 v%d, v%d, v%d' % (Q + 2 * h + 1, acc + 2, acc + 3))
        a('v_permlane16_swap_b32 v%d, v%d' % (Q, Q + 2))
        a('v_permlane16_swap_b32 v%d, v%d' % (Q + 1, Q + 3))
        a('buffer_store_dwordx4 %s, v5, %s, s75 offen offset:%d sc1' % (vr(Q, 4), R4(WS), 512 * taus[2 * pr]))


def conv_flag(a, stage):
    a('s_add_u32 s66, s76, %d' % (YF + 4096 * stage))
    a('s_waitcnt vmcnt(0)')
    flag_store(a, 66, 11, True)


def conv_phase(a):
    a.label('CONVW')
    a('s_cmp_ge_u32 s%d, 14' % sM)
    a('s_cbranch_scc1 S_WAIT')
    a('s_sub_u32 s69, s%d, 4' % sW)
    a('s_mul_i32 s63, s%d, 3' % sM)
    a('s_lshl_b32 s64, s%d, 1' % sM)
    a('s_add_u32 s64, s64, 12')
    a('s_cmp_lt_u32 s%d, 12' % sM)
    a('s_cselect_b32 s63, s63, s64')
    a('s_cselect_b32 s77, 3, 2')
    a('s_cmp_ge_u32 s69, s77')
    a('s_cbranch_scc1 G2_NOCONV')
    a('s_setprio 3')
    a('buffer_load_dword v4, off, %s, 0 sc1' % R4(WS))
    a('s_lshr_b32 s64, s%d, 4' % sI)
    a('s_mul_i32 s64, s64, 40')
    a('s_add_u32 s63, s63, s64')
    a('s_add_u32 s63, s63, s69')
    a('s_mul_i32 s64, s%d, 80' % sX)
    a('s_add_u32 s64, s64, s63')
    a('s_lshl_b32 s65, s64, 12')
    srd(a, RB, pH, 4096, 's65')
    a('v_subrev_u32 v14, 32, v%d' % vL16)
    a('v_subrev_u32 v15, 16, v%d' % vL16)
    a('v_add_u32 v5, 992, v%d' % vL16)
    HQ, HD = 16, 40
    a('buffer_load_dwordx4 %s, v14, %s, 0 offen' % (vr(HQ, 4), R4(RB)))
    a('buffer_load_dwordx2 %s, v15, %s, 0 offen' % (vr(HD, 2), R4(RB)))
    for j in range(1, 5):
        a('buffer_load_dwordx4 %s, v5, %s, 0 offen offset:%d' % (vr(HQ + 4 * j, 4), R4(RB), 1024 * (j - 1)))
        a('buffer_load_dwordx2 %s, v5, %s, 0 offen offset:%d' % (vr(HD + 2 * j, 2), R4(RB), 1024 * (j - 1) + 16))
    a('s_barrier')
    a('s_and_b32 s66, s64, 0xfffffffe')
    a('s_lshl_b32 s66, s66, 1')
    a('s_load_dword s74, s[%d:%d], s66' % (pD, pD + 1))
    a('s_add_u32 s75, s65, %s' % hex(YT))
    a('s_lshl_b32 s76, s64, 2')
    a('s_lshr_b32 s78, s63, 4')
    a('s_mul_i32 s79, s%d, 5' % sX)
    a('s_add_u32 s78, s78, s79')
    a('s_lshl_b32 s78, s78, 7')
    a('s_add_u32 s78, s78, %d' % KVFA)
    a('s_mov_b32 s79, s65')
    w2_setup(a, 69)
    a('s_mul_i32 s80, s69, 16640')
    a('s_mul_i32 s81, s69, 4608')
    a('s_add_u32 s81, s81, %d' % L_U)
    a('v_add_u32 v5, s80, v%d' % vL16)
    a('v_mov_b32 v56, 0'); a('v_mov_b32 v57, 0'); a('v_mov_b32 v58, 0'); a('v_mov_b32 v59, 0')
    a('v_add_u32 v14, s81, v%d' % vL16)
    setexec(a, 32)
    a('ds_write_b128 v14, v[56:59] offset:4096')
    setexec(a, 64)
    a('s_waitcnt lgkmcnt(0)')
    a('s_bitcmp1_b32 s64, 0')
    a('s_cbranch_scc1 CV_DHI')
    a('s_lshl_b32 s74, s74, 16')
    a.label('CV_DHI')
    a('s_and_b32 s74, s74, 0xffff0000')
    for j in range(5):
        a('s_waitcnt vmcnt(%d)' % (2 * (4 - j)))
        if j == 0:
            get_tag(a, 4)
        if j == 4:
            a('s_mov_b64 exec, 3')
        d = [HQ + 4 * j + e for e in range(4)] + [HD + 2 * j, HD + 2 * j + 1]
        T1, T2, T3 = 52 + 12 * (j & 1), 56 + 12 * (j & 1), 60 + 12 * (j & 1)
        a('ds_write_b128 v5, %s offset:%d' % (vr(d[0], 4), 1024 * j))
        for e in range(4):
            a('v_alignbit_b32 v%d, v%d, v%d, 16' % (T1 + e, d[e + 1], d[e]))
        a('ds_write_b128 v5, %s offset:%d' % (vr(T1, 4), 1024 * j + HSTR))
        for e in range(4):
            a('v_mov_b32 v%d, v%d' % (T2 + e, d[e + 1]))
        a('ds_write_b128 v5, %s offset:%d' % (vr(T2, 4), 1024 * j + 2 * HSTR))
        for e in range(4):
            a('v_alignbit_b32 v%d, v%d, v%d, 16' % (T3 + e, d[e + 2], d[e + 1]))
        a('ds_write_b128 v5, %s offset:%d' % (vr(T3, 4), 1024 * j + 3 * HSTR))
        if j == 2:
            a('s_waitcnt lgkmcnt(8)')
    setexec(a, 64)
    stamp(a, 1)
    a('v_and_b32 v16, 15, v%d' % vL)
    a('v_lshrrev_b32 v17, 4, v%d' % vL)
    a('v_add_u32 v18, 1, v16')
    a('v_and_b32 v19, 3, v18')
    a('v_mul_u32_u24 v%d, %d, v19' % (vCA, HSTR))
    a('v_lshrrev_b32 v18, 2, v18')
    a('v_lshl_add_u32 v%d, v18, 3, v%d' % (vCA, vCA))
    a('v_lshl_add_u32 v%d, v17, 4, v%d' % (vCA, vCA))
    a('v_add_u32 v%d, s80, v%d' % (vCA, vCA))
    a('v_lshlrev_b32 v18, 5, v16')
    a('v_lshlrev_b32 v19, 4, v17')
    a('v_sub_u32 v%d, v19, v18' % vCB)
    a('s_add_u32 s66, s81, 480')
    a('v_add_u32 v%d, s66, v%d' % (vCB, vCB))
    a('v_lshl_add_u32 v19, v17, 3, v18')
    a('s_add_u32 s66, s81, 504')
    a('v_sub_u32 v4, s66, v19')
    a('v_and_b32 v19, 1, v17')
    a('v_lshl_add_u32 v5, v19, 9, v18')
    a('v_lshrrev_b32 v19, 1, v17')
    a('v_lshl_add_u32 v5, v19, 4, v5')
    a('s_waitcnt lgkmcnt(0)')
    hello_check(a, 16, 66)
    stamp(a, 2)
    a('v_and_b32 v16, 31, v%d' % vL)
    a('v_lshlrev_b32 v16, 2, v16')
    a('v_lshrrev_b32 v17, 5, v%d' % vL)
    a('v_lshl_add_u32 v16, v17, 13, v16')
    assert KVFB - KVFA == 8192
    a('s_lshl_b32 s66, s%d, 1' % sXCC)
    a('v_mov_b32 v18, s66')
    a('v_cmp_eq_u32 vcc, 0, v17')
    a('v_cndmask_b32 v18, 0, v18, vcc')
    a('v_add_u32 v18, s%d, v18' % sTAG)
    a('s_mov_b32 s%d, 0' % sCNT)
    a.label('CV_POLL')
    a('buffer_load_dword v19, v16, %s, s78 offen sc1' % R4(WS))
    a('s_add_u32 s%d, s%d, 1' % (sCNT, sCNT))
    a('s_waitcnt vmcnt(0)')
    a('v_cmp_ne_u32 vcc, v18, v19')
    a('s_mov_b32 s66, %s' % hex(KVA))
    if not FORCE_SLOW:
        a('s_cmp_eq_u32 vcc_lo, 0')
        a('s_cbranch_scc1 CV_GOT')
    a('s_mov_b32 s66, %s' % hex(KVB))
    a('s_cmp_eq_u32 vcc_hi, 0')
    a('s_cbranch_scc1 CV_GOT')
    a('s_cmp_lt_u32 s%d, s%d' % (sCNT, sLIM))
    a('s_cbranch_scc1 CV_POLL')
    a('s_mov_b32 s%d, 0' % sLIM)
    a.label('CV_GOT')
    a('s_add_u32 s66, s66, s79')
    a('s_mov_b32 m0, s81')
    for k in range(4):
        a('buffer_load_dwordx4 v%d, %s, s66 offen offset:%d sc1 lds' % (vL16, R4(WS), 1024 * k))
    stamp(a, 3)
    a('s_waitcnt vmcnt(0)')
    lds_flag(a, LF_U, 69, 16)
    a('s_waitcnt lgkmcnt(0)')
    stamp(a, 4)
    dstamp(a, 3)
    conv_part(a, [0, 1], range(8), set())
    conv_epilogue(a, [0, 1], 0)
    stamp(a, 5)
    conv_part(a, [2, 3], range(8), set(), {CF0: lambda: conv_flag(a, 0)})
    conv_epilogue(a, [2, 3], 1)
    stamp(a, 6)
    hk = {CF1: lambda: conv_flag(a, 1)}
    for n, g in enumerate(w2_loads()):
        hk[CF1 + 1 + 3 * n] = (lambda g=g: emit(a, g))
    conv_part(a, [4, 5, 6, 7], range(8), set(), hk)
    conv_epilogue(a, [4, 5, 6, 7], 2)
    stamp(a, 7)
    dstamp(a, 4)
    lds_flag(a, LF_CV, 69, 16)
    conv_flag(a, 2)
    a('s_setprio 0')
    w2_xpose(a, True)
    a('s_branch G2_READY')
    a.label('G2_NOCONV')
    a('buffer_load_dword v4, off, %s, 0 sc1' % R4(WS))
    a('s_barrier')
    a('s_waitcnt vmcnt(0)')
    get_tag(a, 4)
    lds_flag(a, LF_U, 69, 16)
    lds_flag(a, LF_CV, 69, 16)
    w2_setup(a, 69)
    lds_gate(a)
    for g in w2_loads():
        emit(a, g)
    w2_xpose(a, False)
    hello_check(a, 16, 66)
    a('s_branch G2_START')
    a.label('G2_W7')
    a('s_mov_b32 s69, 3')
    w2_setup(a, 69)
    lds_gate(a)
    for g in w2_loads():
        emit(a, g)
    w2_xpose(a, False)
    a.label('G2_READY')
    stamp(a, 8)
    dstamp(a, 5)
    a('s_branch G2_START')


B2F = 16
XS = lambda s, e: 96 + 10 * (2 * s + e)
YS = lambda s, e: 176 + 10 * (2 * s + e)
GY = 84


class Tok:
    def __init__(self, e):
        W = 28 + 28 * e
        self.M0 = [W, W + 1, W + 2, W + 3, W + 24]
        self.M1 = [W + 4, W + 5, W + 6, W + 7, W + 25]
        self.ZP = [W + 8, W + 9, W + 10, W + 11, W + 26]
        self.D, self.T = W + 12, W + 22
        self.sm, self.sr = (80, 82) if e == 0 else (96, 98)


def flag_line(a, base, sSig, sD, add=0):
    a('s_lshl_b32 s%d, s%d, 3' % (sD, sG))
    if sSig is not None:
        a('s_add_u32 s%d, s%d, s%d' % (sD, sD, sSig))
    a('s_lshl_b32 s%d, s%d, 8' % (sD, sD))
    a('s_add_u32 s%d, s%d, %d' % (sD, sD, base + 256 * add))


def pk10(op, d, x, y):
    return ['v_pk_%s_f32 %s, %s, %s' % (op, P2(d + i), P2(x + i), P2(y + i)) for i in range(0, 10, 2)]


def z_tail(t, X):
    return stats(X, t.D, t.T, t.sm, t.sr, True, double=True) + scale10(t.D, t.D, t.sr, True) + pack10(t.ZP, t.D)


def s_phase(a):
    a.label('S_WAIT')
    a('s_barrier')
    a('s_barrier')
    a('v_mov_b32 v14, %d' % L_SYNC)
    a('ds_read_b32 v4, v14')
    a('s_waitcnt lgkmcnt(0)')
    a('v_readfirstlane_b32 s%d, v4' % sTAG)
    hello_check(a, 14, 66)
    a.label('S_MAIN')
    srd(a, RA, pQ, hex(ROWS_B))
    srd(a, RB, pOUT, hex(ROWS_B))
    srd(a, RD, pB2, 1280)
    a('s_sub_u32 s70, s%d, 14' % sM)
    a('s_lshl_b32 s71, s%d, 5' % sG)
    a('s_lshl_b32 s72, s70, 4')
    a('s_add_u32 s71, s71, s72')
    a('s_lshl_b32 s72, s%d, 1' % sW)
    a('s_add_u32 s72, s72, s71')
    a('s_mul_i32 s73, s72, 1280')
    a('s_mov_b32 s66, s73')
    for s in range(4):
        for e in range(2):
            R = YS(s, e)
            a('buffer_load_dwordx4 %s, v%d, %s, s66 offen offset:%d' % (vr(R, 4), vL16, R4(RA), 1280 * e))
            a('buffer_load_dword v%d, v%d, %s, s66 offen offset:%d' % (R + 4, vL4, R4(RA), 1280 * e + 1024))
        if s < 3:
            a('s_add_u32 s66, s66, %d' % (512 * 1280))
    a('buffer_load_dwordx4 %s, v%d, %s, 0 offen' % (vr(GY, 4), vL16, R4(RD)))
    a('buffer_load_dword v%d, v%d, %s, 0 offen offset:1024' % (GY + 4, vL4, R4(RD)))
    a('v_lshrrev_b32 v14, 1, v%d' % vL)
    a('v_and_b32 v15, 1, v%d' % vL)
    a('v_lshlrev_b32 v8, 12, v14')
    a('v_lshl_add_u32 v8, v15, 4, v8')
    a('v_mul_u32_u24 v9, 10304, v15')
    a('v_lshl_add_u32 v9, v14, 1, v9')
    a('s_mul_i32 s66, s%d, 160' % sW)
    a('v_add_u32 v9, s66, v9')
    a('s_mul_i32 s66, s%d, 2560' % sW)
    a('s_cmp_ge_u32 s%d, 4' % sW)
    a('s_cselect_b32 s67, 64, 0')
    a('s_add_u32 s66, s66, s67')
    a('v_add_u32 v10, s66, v%d' % vL16)
    a('v_add_u32 v11, s66, v%d' % vL4)
    a('s_mul_i32 s74, s%d, %d' % (sW, 80 * 4096))
    a('s_lshl_b32 s75, s71, 1')
    a('s_add_u32 s74, s74, s75')
    a('s_add_u32 s74, s74, %s' % hex(YT))
    a('s_mul_i32 s75, s%d, 320' % sW)
    a('s_add_u32 s75, s75, %d' % YF)
    a('s_lshl_b32 s76, s70, 4')
    a('s_lshl_b32 s77, s%d, 1' % sW)
    a('s_add_u32 s76, s76, s77')
    z_addr(a, 76, 12, 13, 66)
    a('s_add_u32 s77, s76, 1')
    z_addr(a, 77, 4, 5, 66)
    a('s_lshl_b32 s78, s%d, 2' % sG)
    a('s_mul_i32 s78, s78, 40960')
    a('s_add_u32 s78, s78, %s' % hex(ZI))
    a('s_lshl_b32 s79, s%d, 11' % sG)
    a('s_lshl_b32 s77, s76, 2')
    a('s_add_u32 s79, s79, s77')
    a('s_add_u32 s79, s79, %d' % ZF)
    a('s_mul_i32 s71, s%d, %d' % (sG, 8 * 40960))
    a('s_mul_i32 s72, s76, 1280')
    a('s_add_u32 s71, s71, s72')
    a('s_add_u32 s71, s71, %s' % hex(MR))
    flag_line(a, MFL, None, 72)
    a('s_lshr_b32 s77, s76, 3')
    a('s_lshl_b32 s77, s77, 6')
    a('s_add_u32 s72, s72, s77')
    tk = [Tok(0), Tok(1)]
    ZA_ = [(12, 13), (4, 5)]
    for s in range(4):
        a('s_waitcnt vmcnt(%d)' % (14 - 4 * s))
        def pre(e):
            t = tk[e]
            X, Y = XS(s, e), YS(s, e)
            return unpack10(X, [Y + k for k in range(5)]) + stats(X, t.D, t.T, t.sm, t.sr, True) + scale10(Y, t.D, t.sr, True)
        emit(a, zip2(pre(0), pre(1)))
    a('s_waitcnt vmcnt(0)')
    emit(a, unpack10(B2F, [GY + k for k in range(5)]))

    def z_out(sig, younger_fn):
        a('s_add_u32 s66, s78, %d' % (40960 * (sig & 3)))
        a('s_add_u32 s67, s79, %d' % (128 * sig))
        def st(sc1):
            for e in range(2):
                z_store(a, tk[e], ZA_[e][0], ZA_[e][1], 66, sc1)
        both(a, st)
        a('v_mov_b32 v26, s%d' % sTAG)
        a('v_mov_b32 v27, s%d' % sTAG)

    def z_flag():
        a('s_mov_b64 exec, 1')
        both(a, lambda sc1: a('buffer_store_dwordx2 v[26:27], off, %s, s67%s' % (R4(WS), ' sc1' if sc1 else '')))
        a('s_mov_b64 exec, -1')

    for s in range(4):
        stamp(a, 4 * s + 4)
        L, D = a.newlabel('YL'), a.newlabel('YD')
        a('s_add_u32 s66, s75, %d' % (4096 * min(s, 2)))
        a('s_mov_b32 s%d, 0' % sCNT)
        setexec(a, 20)
        a.label(L)
        a('buffer_load_dwordx4 %s, v%d, %s, s66 offen sc1' % (vr(GY, 4), vL16, R4(WS)))
        a('s_add_u32 s%d, s%d, 1' % (sCNT, sCNT))
        a('s_waitcnt vmcnt(0)')
        for e in range(4):
            a('v_xor_b32 v%d, s%d, v%d' % (GY + e, sTAG, GY + e))
        a('v_or3_b32 v%d, v%d, v%d, v%d' % (GY, GY, GY + 1, GY + 2))
        a('v_or_b32 v%d, v%d, v%d' % (GY, GY, GY + 3))
        a('v_cmp_ne_u32 vcc, 0, v%d' % GY)
        a('s_cbranch_vccz %s' % D)
        a('s_cmp_lt_u32 s%d, s%d' % (sCNT, sLIM))
        a('s_cbranch_scc1 %s' % L)
        a('s_mov_b32 s%d, 0' % sLIM)
        a.label(D)
        setexec(a, 64)
        stamp(a, 4 * s + 5)
        a('s_add_u32 s66, s74, %d' % (1024 * s))
        a('buffer_load_dwordx4 %s, v8, %s, s66 offen sc1' % (vr(GY, 4), R4(WS)))
        a('s_add_u32 s66, s66, %d' % (32 * 4096))
        a('buffer_load_dwordx4 %s, v8, %s, s66 offen sc1' % (vr(GY + 4, 4), R4(WS)))
        a('s_add_u32 s66, s66, %d' % (32 * 4096))
        setexec(a, 32)
        a('buffer_load_dwordx4 %s, v8, %s, s66 offen sc1' % (vr(GY + 8, 4), R4(WS)))
        setexec(a, 64)
        lo = 32768 * (s & 1)
        for k in range(3):
            a('s_waitcnt vmcnt(%d)' % (2 - k))
            if k == 2:
                setexec(a, 32)
            for j in range(8):
                a('ds_write_b16%s v9, v%d offset:%d' % ('_d16_hi' if j & 1 else '', GY + 4 * k + (j >> 1), lo + 1280 * j + 64 * k))
            a('s_waitcnt lgkmcnt(4)')
        setexec(a, 64)
        a('s_waitcnt lgkmcnt(0)')
        a('s_barrier')
        for e in range(2):
            a('ds_read_b128 %s, v10 offset:%d' % (vr(tk[e].M0[0], 4), lo + 1280 * e))
            a('ds_read_b32 v%d, v11 offset:%d' % (tk[e].M0[4], lo + 1280 * e + 1024))
        a('s_waitcnt lgkmcnt(0)')
        stamp(a, 4 * s + 6)
        def ln1(e):
            t = tk[e]
            X, Y = XS(s, e), YS(s, e)
            o = unpack10(t.D, t.M0)
            o += ['v_pk_fma_f32 %s, %s, %s, %s' % (P2(X + i), P2(Y + i), P2(t.D + i), P2(X + i)) for i in range(0, 10, 2)]
            return o + z_tail(t, X)
        emit(a, zip2(ln1(0), ln1(1)))
        z_out(s, None)
        for e in range(2):
            emit(a, unpack10(YS(s, e), tk[e].M0) + pk10('add', XS(s, e), XS(s, e), B2F))
        a('s_waitcnt vmcnt(0)')
        z_flag()
        stamp(a, 4 * s + 7)
    dstamp(a, 8)
    a('s_cmp_lg_u32 s2, 112')
    a('s_cbranch_scc1 S_NOEP')
    a('s_cmp_lg_u32 s%d, 0' % sW)
    a('s_cbranch_scc1 S_NOEP')
    a('s_mov_b32 s66, 0')
    flag_store(a, 66, 14, True)
    a.label('S_NOEP')
    if STOP == 'front':
        endk(a)
        return

    def m_issue(k):
        a('s_add_u32 s68, s71, %d' % (81920 * (k & 3)))
        a('s_add_u32 s69, s68, 40960')
        for e in range(2):
            for so, M in ((68, tk[e].M0), (69, tk[e].M1)):
                a('buffer_load_dwordx4 %s, v%d, %s, s%d offen offset:%d sc1' % (vr(M[0], 4), vL16, R4(WS), so, 1280 * e))
                a('buffer_load_dword v%d, v%d, %s, s%d offen offset:%d sc1' % (M[4], vL4, R4(WS), so, 1280 * e + 1024))

    poll(a, 72, 14, 14)
    m_issue(0)
    for k in range(8):
        s = k & 3
        stamp(a, 4 * k + 20)
        for e in range(2):
            a('s_waitcnt vmcnt(%d)' % (6 - 4 * e))
            emit(a, acc10(XS(s, e), tk[e].M0, True))
            a('s_waitcnt vmcnt(%d)' % (4 - 4 * e))
            emit(a, acc10(XS(s, e), tk[e].M1, True))
        stamp(a, 4 * k + 21)
        if k < 7:
            a('s_add_u32 s72, s72, 256')
            setexec(a, 14)
            a('buffer_load_dword v14, v%d, %s, s72 offen sc1' % (vL4, R4(WS)))
            setexec(a, 64)
        LATE, NEXT = a.newlabel('S_LATE'), a.newlabel('S_NEXT')
        if k < 4:
            def lt(e):
                t = tk[e]
                X, Y = XS(s, e), YS(s, e)
                o = stats(X, t.D, t.T, t.sm, t.sr, True) + pk10('mul', t.D, t.D, Y)
                o += ['v_pk_fma_f32 %s, %s, %s, %s op_sel_hi:[1,0,1]' % (P2(X + i), P2(t.D + i), S2(t.sr), P2(X + i)) for i in range(0, 10, 2)]
                return o + z_tail(t, X)
            emit(a, zip2(lt(0), lt(1)))
            z_out(k + 4, None)
            for e in range(2):
                emit(a, pk10('add', XS(s, e), XS(s, e), B2F))
        else:
            a('s_add_u32 s66, s73, %d' % (512 * 1280 * s))
            a('s_add_u32 s67, s66, 1280')
            for e in range(2):
                emit(a, pack10(tk[e].ZP, XS(s, e)))
                row_store(a, tk[e].ZP, RB, 66 + e, False)
        if k < 7:
            a('s_waitcnt vmcnt(4)')
            setexec(a, 14)
            a('v_cmp_ne_u32 vcc, s%d, v14' % sTAG)
            setexec(a, 64)
            a('s_cbranch_vccnz %s' % LATE)
            m_issue(k + 1)
            if k < 4:
                a('s_waitcnt vmcnt(8)')
                z_flag()
            a('s_branch %s' % NEXT)
            a.label(LATE)
            if k < 4:
                a('s_waitcnt vmcnt(0)')
                z_flag()
            stamp(a, 4 * k + 23)
            poll(a, 72, 14, 14)
            m_issue(k + 1)
            a.label(NEXT)
        stamp(a, 4 * k + 22)
    endk(a)


ZA, GT, ZR, NZR, GE, ACC, BIAS = 8, 16, 24, 6, 48, 64, 80


def stage_z(a, sSig1):
    a('s_and_b32 s63, s%d, 3' % sSig1)
    a('s_lshl_b32 s64, s%d, 2' % sG)
    a('s_add_u32 s64, s64, s63')
    a('s_mul_i32 s64, s64, 40960')
    a('s_mul_i32 s65, s%d, 10240' % sW)
    a('s_add_u32 s64, s64, s65')
    a('s_add_u32 s64, s64, %s' % hex(ZI))
    a('s_bitcmp1_b32 s%d, 0' % sSig1)
    a('s_cselect_b32 s63, 0, %d' % L_ZE)
    a('s_add_u32 s65, s65, s63')
    for g in range(3):
        a('s_add_u32 m0, s65, %d' % (4096 * g))
        for k in range(4 if g < 2 else 2):
            a('buffer_load_dwordx4 v%d, %s, s64 offen offset:%d sc1 lds' % (vL16, R4(WS), 1024 * k))
        if g < 2:
            a('s_add_u32 s64, s64, 4096')


def zf_off(a, sSig1, sD):
    a('s_lshl_b32 s%d, s%d, 4' % (sD, sG))
    a('s_add_u32 s%d, s%d, s%d' % (sD, sD, sSig1))
    a('s_lshl_b32 s%d, s%d, 7' % (sD, sD))
    a('s_add_u32 s%d, s%d, %d' % (sD, sD, ZF))


def cnt_set(a, vA, sVal, add, vT):
    a('s_add_u32 s63, s%d, %d' % (sVal, add))
    a('v_mov_b32 v%d, s63' % vT)
    a('ds_write_b32 v%d, v%d' % (vA, vT))


def cnt_wait(a, vA, sVal, add, vT):
    L, D = a.newlabel('CL'), a.newlabel('CD')
    a('s_add_u32 s63, s%d, %d' % (sVal, add))
    a('s_mov_b32 s%d, 0' % sCNT)
    a.label(L)
    a('ds_read_b128 %s, v%d' % (vr(vT, 4), vA))
    a('s_add_u32 s%d, s%d, 1' % (sCNT, sCNT))
    a('s_waitcnt lgkmcnt(0)')
    a('v_min_u32 v%d, v%d, v%d' % (vT, vT, vT + 1))
    a('v_min3_u32 v%d, v%d, v%d, v%d' % (vT, vT, vT + 2, vT + 3))
    a('v_cmp_gt_u32 vcc, s63, v%d' % vT)
    a('s_cbranch_vccz %s' % D)
    a('s_cmp_lt_u32 s%d, %d' % (sCNT, 4 * LIMIT))
    a('s_cbranch_scc1 %s' % L)
    a.label(D)


def g1_phase(a):
    a.label('G1_INIT')
    if STOP == 'front':
        endk(a)
        return
    a('v_mov_b32 v4, %d' % LF_G1)
    a('s_lshl_b32 s66, s%d, 2' % sW)
    a('v_add_u32 v5, s66, v4')
    a('s_mov_b32 s%d, 0' % sP)
    a('s_cmp_eq_u32 s%d, 13' % sM)
    a('s_cselect_b32 s66, 2, 4')
    a('s_cmp_ge_u32 s%d, s66' % sW)
    a('s_cbranch_scc1 G1X_INIT')
    srd(a, RB, pB1, 3456)
    a('v_lshrrev_b32 v14, 5, v%d' % vL)
    a('v_lshlrev_b32 v14, 3, v14')
    a('s_lshl_b32 s66, s%d, 8' % sM)
    a('s_lshl_b32 s67, s%d, 6' % sW)
    a('s_add_u32 s66, s66, s67')
    for q in range(4):
        a('buffer_load_dwordx2 %s, v14, %s, s66 offen offset:%d' % (vr(GE + 2 * q, 2), R4(RB), 16 * q))
    w1_setup(a)
    lds_gate(a)
    w1_loads(a)
    for ks in range(40):
        a('s_waitcnt vmcnt(%d)' % (39 - ks))
        a('ds_write_b128 v9, %s offset:%d' % (vr(WB + 4 * ks, 4), 1024 * (ks & 3)))
        for hh in range(2):
            a('ds_read_b64_tr_b16 %s, v13 offset:%d' % (vr(WB + 4 * ks + 2 * hh, 2), 1024 * (ks & 3) + 256 * hh))
        if ks & 3 == 3:
            a('s_waitcnt lgkmcnt(3)')
    for i in range(8):
        a('v_lshlrev_b32 v%d, 16, v%d' % (BIAS + 2 * i, GE + i))
        a('v_and_b32 v%d, s%d, v%d' % (BIAS + 2 * i + 1, sHI, GE + i))
    a('v_and_b32 v14, 31, v%d' % vL)
    a('v_lshrrev_b32 v15, 5, v%d' % vL)
    a('v_and_b32 v16, 15, v14')
    a('v_xor_b32 v15, v15, v16')
    a('v_lshlrev_b32 v15, 4, v15')
    a('v_lshl_add_u32 v15, v14, 8, v15')
    a('v_add_u32 v15, %d, v15' % L_ZE)
    a('s_waitcnt lgkmcnt(0)')
    a('v_mov_b32 v16, v15')
    for k in range(8):
        a('v_xor_b32 v%d, %d, v16' % (ZA + k, 32 * k))
    c1 = -2.0 * math.sqrt(2.0 / math.pi) * math.log2(math.e)
    a('v_mov_b32 v%d, %s' % (vC1, f2h(c1)))
    a('v_bfe_u32 v16, v%d, 4, 1' % vL)
    a('v_lshlrev_b32 v0, 10, v16')
    a('v_lshrrev_b32 v16, 5, v%d' % vL)
    a('v_lshl_add_u32 v0, v16, 9, v0')
    a('v_and_b32 v16, 15, v%d' % vL)
    a('v_lshl_add_u32 v0, v16, 4, v0')
    a('s_lshl_b32 s76, s%d, 2' % sM)
    a('s_add_u32 s76, s76, s%d' % sW)
    a('s_mul_i32 s77, s%d, %d' % (sG, 4 * HSLOT))
    a('s_lshl_b32 s63, s76, 11')
    a('s_add_u32 s77, s77, s63')
    a('s_add_u32 s77, s77, %s' % hex(HB))
    flag_line(a, HFL, None, 78)
    a('s_lshl_b32 s63, s76, 2')
    a('s_add_u32 s78, s78, s63')
    stamp(a, 4)
    dstamp(a, 6)
    zf_off(a, sP, 66)
    poll(a, 66, 32, GT)
    stamp(a, 5)
    stage_z(a, sP)
    VZ = GT + 4
    def zread(ks):
        a('ds_read_b128 %s, v%d offset:%d' % (vr(ZR + 4 * (ks % NZR), 4), ZA + (ks & 7), (ks >> 3) * 8192))
    def pload(v, so, nl):
        setexec(a, nl)
        a('buffer_load_dword v%d, v%d, %s, s%d offen sc1' % (v, vL4, R4(WS), so))
        setexec(a, 64)
    def pcheck(v, nl, fail):
        setexec(a, nl)
        a('v_cmp_ne_u32 vcc, s%d, v%d' % (sTAG, v))
        setexec(a, 64)
        a('s_cbranch_vccnz %s' % fail)
    rets = []
    def sv():
        k = len(rets)
        R = 'G1_RET%d' % k
        rets.append(R)
        a('s_cmp_eq_u32 s81, 0')
        a('s_cbranch_scc1 %s' % R)
        a('s_mov_b32 s80, %d' % k)
        a('s_branch G1_SV')
        a.label(R)
    a('s_waitcnt vmcnt(0)')
    cnt_set(a, 5, sP, 1, GT)
    a('s_mov_b32 s84, 0')
    dstamp(a, 7)
    a.label('G1_LOOP')
    a('s_add_u32 s75, s%d, 1' % sP)
    zf_off(a, 75, 73)
    pload(VZ, 73, 32)
    a('s_cmp_gt_u32 s%d, 6' % sP)
    a('s_cselect_b32 s82, 0, 1')
    a('s_min_u32 s72, s%d, 1' % sP)
    a('s_and_b32 s81, s82, s72')
    a('s_or_b32 s81, s81, s84')
    a('s_mov_b32 s83, 0')
    cnt_wait(a, 4, sP, 1, GT)
    a('s_setprio %d' % PR_G1A)
    stamp(a, (sP, 4, 8))
    PF_ = NZR - 1
    for ks in range(PF_):
        zread(ks)
    for ks in range(40):
        a('s_waitcnt lgkmcnt(%d)' % min(PF_ - 1, 39 - ks))
        c = vr(BIAS, 16) if ks == 0 else vr(ACC, 16)
        a('v_mfma_f32_32x32x16_bf16 %s, %s, %s, %s' % (vr(ACC, 16), vr(WB + 4 * ks, 4), vr(ZR + 4 * (ks % NZR), 4), c))
        if ks + PF_ < 40:
            zread(ks + PF_)
        if 32 <= ks + PF_ < 40:
            k = (ks + PF_) & 7
            a('v_xor_b32 v%d, %s, v%d' % (ZA + k, hex(L_ZE), ZA + k))
        if ks in SVP:
            sv()
    stamp(a, (sP, 4, 9))
    a('s_setprio %d' % PR_G1B)
    a('s_cmp_lg_u32 s82, 0')
    a('s_cbranch_scc1 G1_NSIG')
    a('s_waitcnt vmcnt(0)')
    cnt_set(a, 5, sP, 2, GT)
    a('s_mov_b32 s83, 1')
    a.label('G1_NSIG')
    sv()
    fst(a, 0)
    a('s_and_b32 s63, s%d, 3' % sP)
    a('s_mul_i32 s74, s63, %d' % HSLOT)
    a('s_add_u32 s74, s74, s77')
    T = GE
    for t in range(2):
        X = ACC + 8 * t
        for i in range(8):
            a('v_mul_f32 v%d, v%d, v%d' % (T + i, X + i, X + i))
        for i in range(8):
            a('v_fma_f32 v%d, v%d, s%d, v%d' % (T + i, T + i, sC2, vC1))
        for i in range(8):
            a('v_mul_f32 v%d, v%d, v%d' % (T + i, T + i, X + i))
        for i in range(8):
            a('v_exp_f32 v%d, v%d' % (T + i, T + i))
        for i in range(8):
            a('v_add_f32 v%d, 1.0, v%d' % (T + i, T + i))
        for i in range(8):
            a('v_rcp_f32 v%d, v%d' % (T + i, T + i))
        for i in range(8):
            a('v_mul_f32 v%d, v%d, v%d' % (T + i, T + i, X + i))
        o = T + 8 + 4 * t
        for i in range(4):
            a('v_cvt_pk_bf16_f32 v%d, v%d, v%d' % (o + i, T + 2 * i, T + 2 * i + 1))
        both(a, lambda sc1: a('buffer_store_dwordx4 %s, v0, %s, s74 offen offset:%d%s' % (vr(o, 4), R4(WS), 256 * t, ' sc1' if sc1 else '')))
    stamp(a, (sP, 4, 10))
    a('s_lshl_b32 s63, s%d, 8' % sP)
    a('s_add_u32 s84, s78, s63')
    a('s_cmp_eq_u32 s%d, 7' % sP)
    a('s_cbranch_scc1 G1_END')
    a('s_cmp_lg_u32 s83, 0')
    a('s_cbranch_scc1 G1_NEXT')
    a('s_cmp_lg_u32 s%d, 0' % sP)
    a('s_cbranch_scc1 G1_NOCV')
    lds_spin(a, LF_CV, 3, GT + 8)
    a.label('G1_NOCV')
    a('s_mov_b32 s72, 1')
    a('s_mov_b32 s81, 1')
    a('s_mov_b32 s%d, 0' % sCNT)
    a.label('G1_FIN')
    sv()
    a('s_cmp_eq_u32 s81, 0')
    a('s_cbranch_scc1 G1_FIND')
    a('s_add_u32 s%d, s%d, 1' % (sCNT, sCNT))
    a('s_cmp_lt_u32 s%d, s%d' % (sCNT, sLIM))
    a('s_cbranch_scc1 G1_FIN')
    a('s_mov_b32 s%d, 0' % sLIM)
    a.label('G1_FIND')
    fst(a, 1)
    a('s_waitcnt vmcnt(0)')
    cnt_set(a, 5, sP, 2, GT)
    a.label('G1_NEXT')
    fst_flush(a)
    stamp(a, (sP, 4, 11))
    a('s_add_u32 s%d, s%d, 1' % (sP, sP))
    a('s_branch G1_LOOP')
    a.label('G1_END')
    a('s_waitcnt vmcnt(0)')
    both(a, lambda sc1: flag_store(a, 84, GT, sc1))
    endk(a)
    a.label('G1_SV')
    a('s_waitcnt vmcnt(0)')
    a('s_cmp_eq_u32 s84, 0')
    a('s_cbranch_scc1 G1_SVZ')
    both(a, lambda sc1: flag_store(a, 84, GT, sc1))
    a('s_mov_b32 s84, 0')
    a.label('G1_SVZ')
    a('s_and_b32 s81, s82, s72')
    a('s_cbranch_scc0 G1_SVR')
    pcheck(VZ, 32, 'G1_SV3')
    stage_z(a, 75)
    a('s_mov_b32 s82, 0')
    a('s_mov_b32 s81, 0')
    a('s_branch G1_SVR')
    a.label('G1_SV3')
    pload(VZ, 73, 32)
    a.label('G1_SVR')
    for k, R in enumerate(rets[:-1]):
        a('s_cmp_eq_u32 s80, %d' % k)
        a('s_cbranch_scc1 %s' % R)
    a('s_branch %s' % rets[-1])
    a.label('G1X_INIT')
    zf_off(a, sP, 66)
    poll(a, 66, 32, GT)
    stage_z(a, sP)
    a('s_waitcnt vmcnt(0)')
    cnt_set(a, 5, sP, 1, GT)
    lds_spin(a, LF_CV, 3, GT)
    a.label('G1X_LOOP')
    a('s_add_u32 s75, s%d, 1' % sP)
    zf_off(a, 75, 74)
    poll(a, 74, 32, GT)
    cnt_wait(a, 4, sP, 1, GT)
    stage_z(a, 75)
    a('s_waitcnt vmcnt(0)')
    cnt_set(a, 5, sP, 2, GT)
    a('s_add_u32 s%d, s%d, 1' % (sP, sP))
    a('s_cmp_lt_u32 s%d, 7' % sP)
    a('s_cbranch_scc1 G1X_LOOP')
    endk(a)


def g2_phase(a):
    a.label('G2_START')
    if STOP == 'front':
        endk(a)
        return
    HBUF, AC, VP, VT = 16, 40, 8, 12
    a('s_sub_u32 s69, s%d, 4' % sW)
    member_ij(a, 67, 68)
    a('s_mul_i32 s66, s67, 27')
    a('s_mul_i32 s63, s69, 7')
    a('s_add_u32 s66, s66, s63')
    a('s_mul_i32 s85, s%d, %d' % (sG, 4 * HSLOT))
    a('s_lshl_b32 s63, s66, 11')
    a('s_add_u32 s85, s85, s63')
    a('s_add_u32 s85, s85, %s' % hex(HB))
    flag_line(a, HFL, None, 74)
    a('s_lshl_b32 s63, s66, 2')
    a('s_add_u32 s74, s74, s63')
    a('s_cmp_eq_u32 s69, 3')
    a('s_cselect_b32 s72, 63, 127')
    a('s_mov_b32 s73, 0')
    a('s_mul_i32 s82, s%d, %d' % (sG, 8 * 40960))
    a('s_mul_i32 s63, s67, 40960')
    a('s_add_u32 s82, s82, s63')
    a('s_mul_i32 s63, s69, 10240')
    a('s_add_u32 s82, s82, s63')
    a('s_add_u32 s82, s82, s68')
    a('s_add_u32 s82, s82, %s' % hex(MR))
    flag_line(a, MFL, None, 83)
    a('s_lshl_b32 s63, s69, 4')
    a('s_add_u32 s63, s63, s%d' % sM)
    a('s_lshl_b32 s63, s63, 2')
    a('s_add_u32 s83, s83, s63')
    a('v_and_b32 v0, 15, v%d' % vL)
    a('v_mul_u32_u24 v0, %d, v0' % RROW)
    a('v_lshrrev_b32 v4, 4, v%d' % vL)
    a('v_lshl_add_u32 v0, v4, 4, v0')
    a('s_mul_i32 s63, s69, %d' % RBS)
    a('s_add_u32 s63, s63, %d' % L_RB)
    a('v_add_u32 v0, s63, v0')
    a('v_lshrrev_b32 v4, 3, v%d' % vL)
    a('v_and_b32 v5, 7, v%d' % vL)
    a('v_mul_u32_u24 v6, 1280, v4')
    a('v_mad_u32_u24 v6, v5, 24, v6')
    a('v_mul_u32_u24 v4, %d, v4' % RROW)
    a('v_mad_u32_u24 v5, v5, 48, v4')
    a('s_mul_i32 s63, s69, %d' % (8 * RROW))
    a('s_add_u32 s63, s63, %d' % L_RB)
    a('v_add_u32 v5, s63, v5')
    a('v_mov_b32 v4, %d' % LF_R1)
    a('s_lshl_b32 s63, s69, 2')
    a('v_add_u32 v9, s63, v4')
    a('v_add_u32 v10, 16, v4')
    a('v_add_u32 v11, 16, v9')
    a('s_mov_b32 s%d, 0' % sP)
    a('s_mov_b32 s84, 0')

    def h_offs(sSig):
        a('s_and_b32 s63, s%d, 3' % sSig)
        a('s_mul_i32 s70, s63, %d' % HSLOT)
        a('s_add_u32 s70, s70, s85')
        a('s_add_u32 s78, s70, 4096')
        a('s_add_u32 s79, s70, 8192')
        a('s_add_u32 s77, s70, 12288')
        a('s_cmp_eq_u32 s69, 3')
        a('s_cselect_b32 s77, 0x10000000, s77')
    def hload(s, hh):
        so = [70, 70, 78, 78, 79, 79, 77][s]
        a('buffer_load_dwordx4 %s, v%d, %s, s%d offen offset:%d sc1' % (vr(HBUF + 8 * (s % 3) + 4 * hh, 4), vL16, R4(WS), so, 2048 * (s & 1 if s < 6 else 0) + 1024 * hh))
    def first_loads(sSig):
        h_offs(sSig)
        for s in range(3):
            for hh in range(2):
                hload(s, hh)
    def pload():
        a('s_mov_b64 exec, s[72:73]')
        a('buffer_load_dword v%d, v%d, %s, s74 offen sc1' % (VP, vL4, R4(WS)))
        a('s_mov_b64 exec, -1')
    def pcheck(fail):
        a('s_mov_b64 exec, s[72:73]')
        a('v_cmp_ne_u32 vcc, s%d, v%d' % (sTAG, VP))
        a('s_mov_b64 exec, -1')
        a('s_cbranch_vccnz %s' % fail)
    a.label('G2_POLL')
    a('s_mov_b32 s%d, 0' % sCNT)
    a.label('G2_PL')
    pload()
    a('s_add_u32 s%d, s%d, 1' % (sCNT, sCNT))
    a('s_waitcnt vmcnt(0)')
    pcheck('G2_PF')
    a('s_branch G2_PD')
    a.label('G2_PF')
    a('s_cmp_lt_u32 s%d, s%d' % (sCNT, sLIM))
    a('s_cbranch_scc1 G2_PL')
    a('s_mov_b32 s%d, 0' % sLIM)
    a.label('G2_PD')
    first_loads(sP)
    a.label('G2_LOOP')
    a('s_setprio %d' % PR_G2)
    stamp(a, (sP, 4, 12))
    for s in range(7):
        a('s_waitcnt vmcnt(%d)' % [4, 4, 4, 4, 4, 3, 1][s])
        if s == 0: fst(a, 0)
        if s == 2:
            a('s_cmp_eq_u32 s84, 0')
            a('s_cbranch_scc1 G2_NMF')
            both(a, lambda sc1: flag_store(a, 84, VT, sc1))
            a('s_mov_b32 s84, 0')
            a.label('G2_NMF')
        for hh in range(2):
            for t in range(6):
                acc = AC + 4 * (6 * hh + t)
                a('v_mfma_f32_16x16x32_bf16 %s, %s, %s, %s' % (vr(acc, 4), vr(WB2 + (s * 6 + t) * 4, 4), vr(HBUF + 8 * (s % 3) + 4 * hh, 4), '0' if s == 0 else vr(acc, 4)))
            if s + 3 < 7:
                hload(s + 3, hh)
        if s == 4:
            a('s_add_u32 s74, s74, 256')
            pload()
    stamp(a, (sP, 4, 13))
    a('s_setprio %d' % PR_G2R)
    a('s_add_u32 s75, s%d, 1' % sP)
    a('s_cmp_eq_u32 s%d, 7' % sP)
    a('s_cselect_b32 s81, 1, 0')
    a('s_cbranch_scc1 G2_C1D')
    a('s_waitcnt vmcnt(0)')
    pcheck('G2_C1F')
    first_loads(75)
    a('s_mov_b32 s81, 1')
    a('s_branch G2_C1D')
    a.label('G2_C1F')
    pload()
    a.label('G2_C1D')
    cnt_wait(a, 10, sP, 0, VT)
    fst(a, 1)
    for hh in range(2):
        for t in range(6):
            a('ds_write_b128 v0, %s offset:%d' % (vr(AC + 4 * (6 * hh + t), 4), 16 * RROW * hh + 64 * t))
    cnt_set(a, 9, sP, 1, VT)
    fst(a, 2)
    cnt_wait(a, 4, sP, 1, VT)
    fst(a, 3)
    for w in range(4):
        for k in range(3):
            a('ds_read_b128 %s, v5 offset:%d' % (vr(AC + 12 * w + 4 * k, 4), RBS * w + 16 * k))
    cnt_set(a, 11, sP, 1, VT)
    a('s_cmp_lg_u32 s81, 0')
    a('s_cbranch_scc1 G2_C2D')
    a('s_waitcnt vmcnt(0)')
    pcheck('G2_C2D')
    first_loads(75)
    a('s_mov_b32 s81, 1')
    a.label('G2_C2D')
    a('s_and_b32 s63, s%d, 3' % sP)
    a('s_mul_i32 s76, s63, 81920')
    a('s_add_u32 s76, s76, s82')
    a('s_lshl_b32 s63, s%d, 8' % sP)
    a('s_add_u32 s84, s83, s63')
    a('s_waitcnt lgkmcnt(7)')
    for i in range(0, 12, 2):
        a('v_pk_add_f32 %s, %s, %s' % (P2(AC + i), P2(AC + i), P2(AC + 12 + i)))
    a('s_waitcnt lgkmcnt(1)')
    for i in range(0, 12, 2):
        a('v_pk_add_f32 %s, %s, %s' % (P2(AC + 24 + i), P2(AC + 24 + i), P2(AC + 36 + i)))
    for i in range(0, 12, 2):
        a('v_pk_add_f32 %s, %s, %s' % (P2(AC + i), P2(AC + i), P2(AC + 24 + i)))
    for i in range(6):
        a('v_cvt_pk_bf16_f32 v%d, v%d, v%d' % (AC + 12 + i, AC + 2 * i, AC + 2 * i + 1))
    def st(sc1):
        c = ' sc1' if sc1 else ''
        a('buffer_store_dwordx4 %s, v6, %s, s76 offen%s' % (vr(AC + 12, 4), R4(WS), c))
        a('buffer_store_dwordx2 %s, v6, %s, s76 offen offset:16%s' % (vr(AC + 16, 2), R4(WS), c))
    both(a, st)
    fst(a, 4)
    fst_flush(a)
    stamp(a, (sP, 4, 14))
    a('s_add_u32 s%d, s%d, 1' % (sP, sP))
    a('s_cmp_eq_u32 s%d, 8' % sP)
    a('s_cselect_b32 s81, 0, s81')
    a('s_cmp_lg_u32 s81, 0')
    a('s_cbranch_scc1 G2_LOOP')
    a('s_waitcnt vmcnt(0)')
    both(a, lambda sc1: flag_store(a, 84, VT, sc1))
    a('s_mov_b32 s84, 0')
    a('s_cmp_lt_u32 s%d, 8' % sP)
    a('s_cbranch_scc1 G2_POLL')
    endk(a)


def kernel():
    a = Asm()
    c1 = -2.0 * math.sqrt(2.0 / math.pi) * math.log2(math.e)
    a('s_cmp_ge_u32 s2, 256')
    a('s_cbranch_scc1 END')
    a('s_load_dwordx2 s[26:27], s[0:1], 104')
    a('s_load_dwordx4 s[4:7], s[0:1], 0')
    a('s_load_dwordx4 s[8:11], s[0:1], 16')
    a('s_load_dwordx4 s[12:15], s[0:1], 32')
    a('s_load_dwordx4 s[16:19], s[0:1], 56')
    a('s_load_dwordx4 s[20:23], s[0:1], 72')
    a('s_load_dwordx2 s[24:25], s[0:1], 88')
    a('v_lshrrev_b32 v1, 6, v0')
    a('v_readfirstlane_b32 s%d, v1' % sW)
    a('v_and_b32 v%d, 63, v0' % vL)
    a('v_lshlrev_b32 v%d, 4, v%d' % (vL16, vL))
    a('v_lshlrev_b32 v%d, 2, v%d' % (vL4, vL))
    a('s_and_b32 s%d, s2, 7' % sX)
    a('s_lshr_b32 s%d, s2, 3' % sI)
    a('s_and_b32 s%d, s%d, 15' % (sM, sI))
    a('s_lshr_b32 s%d, s%d, 4' % (sG, sI))
    a('s_lshl_b32 s63, s%d, 1' % sX)
    a('s_add_u32 s%d, s%d, s63' % (sG, sG))
    a('s_getreg_b32 s%d, hwreg(HW_REG_XCC_ID, 0, 3)' % sXCC)
    a('s_mov_b32 s%d, %d' % (sLIM, LIMIT))
    a('s_mov_b32 s%d, 0xffff0000' % sHI)
    a('s_mov_b32 s%d, 0x3acccccd' % sINV)
    a('s_mov_b32 s%d, 0x3727c5ac' % sEPS)
    a('s_mov_b32 s%d, %s' % (sC2, f2h(c1 * 0.044715)))
    a('s_mov_b32 s85, 0')
    a('s_mov_b32 s%d, 0x3f80' % sLO1)
    a('s_mov_b32 s%d, 0x3f800000' % sHI1)
    a('s_mov_b32 s%d, 0' % sSLOW)
    if STAMP:
        a('v_mov_b32 v%d, 0' % vST)
    for r in (8, 12, 13):
        a('v_mov_b32 v%d, 0' % r)
    a('v_add_u32 v4, %d, v%d' % (L_SYNC, vL4))
    a('ds_write_b32 v4, v8')
    a('s_waitcnt lgkmcnt(0)')
    srd(a, WS, pWS, '0x10000000')
    for r in (RA, RB, RC, RD):
        a('s_mov_b64 s[%d:%d], s[%d:%d]' % (r, r + 1, WS, WS + 1))
        a('s_mov_b64 s[%d:%d], s[%d:%d]' % (r + 2, r + 3, WS + 2, WS + 3))
    stamp(a, 0)
    if DBG:
        a('s_load_dwordx2 s[92:93], s[0:1], 96')
        a('s_mov_b32 s94, 256')
        a('s_mov_b32 s95, 0x20000')
        a('s_waitcnt lgkmcnt(0)')
        a('s_cmp_eq_u32 s2, 40')
        a('s_cselect_b32 s91, 1, 0')
        dstamp(a, 0)
        a('s_cmp_eq_u32 s2, 112')
        a('s_cselect_b32 s91, 1, s91')
    a('s_sub_u32 s63, s%d, 4' % sW)
    a('s_cmp_lt_u32 s63, 3')
    a('s_cbranch_scc1 CONVW')
    kv_phase(a)
    conv_phase(a)
    s_phase(a)
    g1_phase(a)
    g2_phase(a)
    a.label('END')
    a('s_endpgm')
    return a.lines


def build():
    ref = open('cdna_kernels/%s.s.ref' % NAME).read().split('\n')
    head = [l for l in ref if l.startswith(';') and '@launch' not in l and 'Override launch' not in l and 'grid=ceil' not in l]
    s = '\n'.join(head) + '\n'
    s += '; @launch grid=(256,1,1) block=(512,1,1) lds=163840\n'
    s += '.amdgcn_target "amdgcn-amd-amdhsa--gfx950"\n.text\n'
    s += kernel_text(NAME + '_kernel', kernel(), 256)
    s += '.section .rodata,"a"\n'
    s += descriptor_text(NAME + '_kernel', 256, 102)
    return s


if __name__ == '__main__':
    for n in range(192):
        assert (n * 5462) >> 16 == n // 12
    open(sys.argv[1], 'w').write(build())
```

```python
import sys, os, math, struct
from asmlib import *

NAME = 'interleave_layers__ssm_conv_h3__mixer_channel_mlp__prompt'
STAMP = int(os.environ.get('STAMP', '0'))
FORCE_SLOW = int(os.environ.get('FORCE_SLOW', '0'))
STOP = os.environ.get('STOP', '')
LIMIT = 20000
DBG = int(os.environ.get('DBG', '0'))
NOW = int(os.environ.get('NOW', '0'))

EPOCH, HELLO, KVFA, KVFB, YF, ZF, HFL, MFL, DUMMY = 0, 0x1000, 0x2000, 0x4000, 0x6000, 0xA000, 0x12000, 0x20000, 0x30000
KVA, KVB, YT, ZI, HB, MR = 0x100000, 0x400000, 0x700000, 0x1000000, 0x1400000, 0x1C00000
HSLOT = 110592
STAMPS = 0x8000000
ROWS_B = 2048 * 1280
L_U, L_SYNC, L_RB, L_ZE = 49920, 63744, 65536, 122880
RBS, RROW = 12800, 400
HSTR = 4160
LF_G1, LF_CV, LF_U, LF_R1, LF_R2 = L_SYNC + 16, L_SYNC + 32, L_SYNC + 48, L_SYNC + 64, L_SYNC + 80
PR_G1A, PR_G1B, PR_G2, PR_G2R = [int(x) for x in os.environ.get('PRIO', '1,1,1,2').split(',')]
SVP = [int(x) for x in os.environ.get('SVP', '6,16,26').split(',')]
pQ, pK, pV, pSH, pH, pD, pW1, pB1, pW2, pB2, pOUT, pWS = 4, 6, 8, 10, 12, 14, 16, 18, 20, 22, 24, 26
sX, sW, sI, sM = 28, 29, 30, 31
WS, RA, RB, RC, RD = 32, 36, 40, 44, 48
sG, sTAG, sXCC, sSLOW, sP, sLIM, sCNT = 52, 53, 54, 55, 56, 57, 58
sHI, sINV, sEPS, sC2 = 59, 60, 61, 62
sLO1, sHI1 = 89, 90
sST = 86
vL, vL16, vL4, vC1, vST = 1, 2, 3, 6, 7

f2h = lambda x: hex(struct.unpack('<I', struct.pack('<f', x))[0])
R4 = lambda d: 's[%d:%d]' % (d, d + 3)


def srd(a, d, p, size, add=None):
    if add is None:
        a('s_mov_b32 s%d, s%d' % (d, p)); a('s_mov_b32 s%d, s%d' % (d + 1, p + 1))
    else:
        a('s_add_u32 s%d, s%d, %s' % (d, p, add)); a('s_addc_u32 s%d, s%d, 0' % (d + 1, p + 1))
    a('s_mov_b32 s%d, %s' % (d + 2, size)); a('s_mov_b32 s%d, 0x20000' % (d + 3))


def stamp(a, idx):
    if not STAMP:
        return
    a('s_memrealtime s[%d:%d]' % (sST, sST + 1))
    if isinstance(idx, tuple):
        a('s_mul_i32 s88, s%d, %d' % (idx[0], idx[1]))
        a('s_add_u32 s88, s88, %d' % idx[2])
        a('s_lshl_b64 exec, 1, s88')
        a('s_waitcnt lgkmcnt(0)')
        a('v_mov_b32 v%d, s%d' % (vST, sST))
        a('s_mov_b64 exec, -1')
    else:
        a('s_waitcnt lgkmcnt(0)')
        a('v_writelane_b32 v%d, s%d, %d' % (vST, sST, idx))


FP = int(os.environ.get('FP', '-1'))


def fst(a, k):
    if STAMP and FP >= 0:
        a('s_memrealtime s[%d:%d]' % (92 + 2 * k, 93 + 2 * k))


def fst_flush(a):
    if STAMP and FP >= 0:
        L = a.newlabel('FS')
        a('s_waitcnt lgkmcnt(0)')
        a('s_cmp_lg_u32 s%d, %d' % (sP, FP))
        a('s_cbranch_scc1 %s' % L)
        for k in range(5):
            a('v_writelane_b32 v%d, s%d, %d' % (vST, 92 + 2 * k, 52 + k))
        a.label(L)


def dstamp(a, slot):
    if not DBG:
        return
    L = a.newlabel('DS')
    a('s_cmp_eq_u32 s91, 0')
    a('s_cbranch_scc1 %s' % L)
    a('s_memrealtime s[%d:%d]' % (sST, sST + 1))
    a('s_waitcnt lgkmcnt(0)')
    a('v_mov_b32 v%d, s%d' % (vST, sST))
    a('s_mov_b64 exec, 1')
    a('buffer_store_dword v%d, off, s[92:95], 0 offset:%d' % (vST, 4 * slot))
    a('s_mov_b64 exec, -1')
    a.label(L)


def endk(a):
    dstamp(a, 15)
    if STAMP:
        a('s_waitcnt vmcnt(0)')
        stamp(a, 63)
        a('s_lshl_b32 s63, s2, 3')
        a('s_add_u32 s63, s63, s%d' % sW)
        a('s_lshl_b32 s63, s63, 8')
        a('s_add_u32 s63, s63, %s' % hex(STAMPS))
        a('s_mov_b64 exec, -1')
        a('buffer_store_dword v%d, v%d, %s, s63 offen' % (vST, vL4, R4(WS)))
    a('s_endpgm')


def setexec(a, n):
    if n == 64:
        a('s_mov_b64 exec, -1')
    elif n <= 6:
        a('s_mov_b64 exec, %d' % ((1 << n) - 1))
    elif n <= 32:
        a('s_mov_b32 exec_lo, %s' % ('-1' if n == 32 else hex((1 << n) - 1))); a('s_mov_b32 exec_hi, 0')
    else:
        a('s_mov_b32 exec_lo, -1'); a('s_mov_b32 exec_hi, %s' % hex((1 << (n - 32)) - 1))


def poll(a, soff, nl, vT, pre=False):
    L, C, D = a.newlabel('PL'), a.newlabel('PC'), a.newlabel('PD')
    a('s_mov_b32 s%d, 0' % sCNT)
    setexec(a, nl)
    if pre:
        a('s_branch %s' % C)
    a.label(L)
    a('buffer_load_dword v%d, v%d, %s, s%d offen sc1' % (vT, vL4, R4(WS), soff))
    a.label(C)
    a('s_add_u32 s%d, s%d, 1' % (sCNT, sCNT))
    a('s_waitcnt vmcnt(0)')
    a('v_cmp_ne_u32 vcc, s%d, v%d' % (sTAG, vT))
    a('s_cbranch_vccz %s' % D)
    a('s_cmp_lt_u32 s%d, s%d' % (sCNT, sLIM))
    a('s_cbranch_scc1 %s' % L)
    a('s_mov_b32 s%d, 0' % sLIM)
    a.label(D)
    setexec(a, 64)


def flag_store(a, soff, vT, sc1):
    a('v_mov_b32 v%d, s%d' % (vT, sTAG))
    a('s_mov_b64 exec, 1')
    a('buffer_store_dword v%d, off, %s, s%d%s' % (vT, R4(WS), soff, ' sc1' if sc1 else ''))
    a('s_mov_b64 exec, -1')


def hello_check(a, vT, st):
    L, D = a.newlabel('HL'), a.newlabel('HD')
    a('s_lshl_b32 s%d, s%d, 7' % (st, sX))
    a('s_add_u32 s%d, s%d, %d' % (st, st, HELLO))
    a('s_mov_b32 s%d, 0' % sCNT)
    setexec(a, 32)
    a.label(L)
    a('buffer_load_dword v%d, v%d, %s, s%d offen sc1' % (vT, vL4, R4(WS), st))
    a('s_add_u32 s%d, s%d, 1' % (sCNT, sCNT))
    a('s_waitcnt vmcnt(0)')
    a('v_xor_b32 v%d, s%d, v%d' % (vT, sTAG, vT))
    a('v_cmp_lt_u32 vcc, 15, v%d' % vT)
    a('v_and_b32 v%d, 1, v%d' % (vT + 1, vT))
    a('v_cmp_ne_u32 s[64:65], 0, v%d' % (vT + 1))
    a('s_or_b64 vcc, vcc, s[64:65]')
    a('s_cbranch_vccz %s' % D)
    a('s_cmp_lt_u32 s%d, s%d' % (sCNT, sLIM))
    a('s_cbranch_scc1 %s' % L)
    a('s_mov_b32 s%d, 0' % sLIM)
    a.label(D)
    a('s_lshl_b32 s%d, s%d, 1' % (st, sXCC))
    a('v_cmp_ne_u32 vcc, s%d, v%d' % (st, vT))
    a('s_cmp_lg_u64 vcc, 0')
    a('s_cselect_b32 s%d, 1, %d' % (sSLOW, FORCE_SLOW))
    setexec(a, 64)


def get_tag(a, vE):
    a('v_readfirstlane_b32 s%d, v%d' % (sTAG, vE))
    a('s_mul_i32 s%d, s%d, 0x9E3779B1' % (sTAG, sTAG))
    a('s_add_u32 s%d, s%d, 0x7F4A7C15' % (sTAG, sTAG))


def lds_spin(a, addr, n, vT):
    L, D = a.newlabel('SL'), a.newlabel('SD')
    a('v_mov_b32 v%d, %d' % (vT + 4, addr))
    a('s_mov_b32 s%d, 0' % sCNT)
    a.label(L)
    a('ds_read_b128 %s, v%d' % (vr(vT, 4), vT + 4))
    a('s_add_u32 s%d, s%d, 1' % (sCNT, sCNT))
    a('s_waitcnt lgkmcnt(0)')
    for k in range(1, n):
        a('v_and_b32 v%d, v%d, v%d' % (vT, vT, vT + k))
    a('v_cmp_eq_u32 vcc, 0, v%d' % vT)
    a('s_cbranch_vccz %s' % D)
    a('s_cmp_lt_u32 s%d, %d' % (sCNT, 4 * LIMIT))
    a('s_cbranch_scc1 %s' % L)
    a.label(D)


def lds_flag(a, base, sIdx, vT):
    a('s_lshl_b32 s64, s%d, 2' % sIdx)
    a('s_add_u32 s64, s64, %d' % base)
    a('v_mov_b32 v%d, s64' % vT)
    a('v_mov_b32 v%d, 1' % (vT + 1))
    a('ds_write_b32 v%d, v%d' % (vT, vT + 1))


def wave_sum(v):
    return ['v_add_f32 v%d, v%d, v%d row_shr:1 row_mask:0xf bank_mask:0xf bound_ctrl:0' % (v, v, v),
            'v_add_f32 v%d, v%d, v%d row_shr:2 row_mask:0xf bank_mask:0xf bound_ctrl:0' % (v, v, v),
            'v_add_f32 v%d, v%d, v%d row_shr:4 row_mask:0xf bank_mask:0xf bound_ctrl:0' % (v, v, v),
            'v_add_f32 v%d, v%d, v%d row_shr:8 row_mask:0xf bank_mask:0xf bound_ctrl:0' % (v, v, v),
            'v_add_f32 v%d, v%d, v%d row_bcast:15 row_mask:0xa bank_mask:0xf' % (v, v, v),
            'v_add_f32 v%d, v%d, v%d row_bcast:31 row_mask:0xc bank_mask:0xf' % (v, v, v)]


def P2(r):
    return 'v[%d:%d]' % (r, r + 1)


def S2(r):
    return 's[%d:%d]' % (r, r + 1)


def stats(X, D, T, sm, sr_, pk, double=False):
    o = []
    if pk:
        o.append('v_pk_add_f32 %s, %s, %s' % (P2(T), P2(X), P2(X + 2)))
        for i in range(4, 10, 2):
            o.append('v_pk_add_f32 %s, %s, %s' % (P2(T), P2(T), P2(X + i)))
    else:
        o.append('v_add_f32 v%d, v%d, v%d' % (T, X, X + 1))
        o.append('v_add_f32 v%d, v%d, v%d' % (T + 1, X + 2, X + 3))
        for i in range(4, 10, 2):
            o.append('v_add_f32 v%d, v%d, v%d' % (T, T, X + i))
            o.append('v_add_f32 v%d, v%d, v%d' % (T + 1, T + 1, X + i + 1))
    o.append('v_add_f32 v%d, v%d, v%d' % (T, T, T + 1))
    o += wave_sum(T)
    o.append('v_mul_f32 v%d, s%d, v%d' % (T, sINV, T))
    o.append('v_readlane_b32 s%d, v%d, 63' % (sm, T))
    if pk:
        for i in range(0, 10, 2):
            o.append('v_pk_add_f32 %s, %s, %s op_sel_hi:[1,0] neg_lo:[0,1] neg_hi:[0,1]' % (P2(D + i), P2(X + i), S2(sm)))
        o.append('v_pk_mul_f32 %s, %s, %s' % (P2(T), P2(D), P2(D)))
        for i in range(2, 10, 2):
            o.append('v_pk_fma_f32 %s, %s, %s, %s' % (P2(T), P2(D + i), P2(D + i), P2(T)))
    else:
        for i in range(10):
            o.append('v_subrev_f32 v%d, s%d, v%d' % (D + i, sm, X + i))
        o.append('v_mul_f32 v%d, v%d, v%d' % (T, D, D))
        o.append('v_mul_f32 v%d, v%d, v%d' % (T + 1, D + 1, D + 1))
        for i in range(2, 10, 2):
            o.append('v_fmac_f32 v%d, v%d, v%d' % (T, D + i, D + i))
            o.append('v_fmac_f32 v%d, v%d, v%d' % (T + 1, D + i + 1, D + i + 1))
    o.append('v_add_f32 v%d, v%d, v%d' % (T, T, T + 1))
    o += wave_sum(T)
    if not double:
        o.append('v_mov_b32 v%d, s%d' % (T + 1, sEPS))
        o.append('v_fmac_f32 v%d, s%d, v%d' % (T + 1, sINV, T))
        o.append('v_rsq_f32 v%d, v%d' % (T, T + 1))
    else:
        o.append('v_mul_f32 v%d, s%d, v%d' % (T, sINV, T))
        o.append('v_add_f32 v%d, s%d, v%d' % (T + 1, sEPS, T))
        o.append('v_rsq_f32 v%d, v%d' % (T + 1, T + 1))
        o.append('v_mul_f32 v%d, v%d, v%d' % (T, T, T + 1))
        o.append('v_fma_f32 v%d, v%d, v%d, s%d' % (T, T, T + 1, sEPS))
        o.append('v_rsq_f32 v%d, v%d' % (T, T))
        o.append('v_mul_f32 v%d, v%d, v%d' % (T, T, T + 1))
    o.append('v_readlane_b32 s%d, v%d, 63' % (sr_, T))
    return o


def scale10(dst, src, sr_, pk):
    if pk:
        return ['v_pk_mul_f32 %s, %s, %s op_sel_hi:[1,0]' % (P2(dst + i), P2(src + i), S2(sr_)) for i in range(0, 10, 2)]
    return ['v_mul_f32 v%d, s%d, v%d' % (dst + i, sr_, src + i) for i in range(10)]


def acc10(dst, src, dot):
    o = []
    for i in range(5):
        o.append('v_dot2c_f32_bf16 v%d, s%d, v%d' % (dst + 2 * i, sLO1, src[i]))
        o.append('v_dot2c_f32_bf16 v%d, s%d, v%d' % (dst + 2 * i + 1, sHI1, src[i]))
    return o


def unpack10(dst, src):
    o = []
    for i in range(5):
        o.append('v_lshlrev_b32 v%d, 16, v%d' % (dst + 2 * i, src[i]))
        o.append('v_and_b32 v%d, s%d, v%d' % (dst + 2 * i + 1, sHI, src[i]))
    return o


def pack10(dst, src):
    return ['v_cvt_pk_bf16_f32 v%d, v%d, v%d' % (dst[i], src + 2 * i, src + 2 * i + 1) for i in range(5)]


class Blk:
    def __init__(self, B, sm, sr_, yraw=None):
        self.XR = [B, B + 1, B + 2, B + 3, B + 4]
        self.YR = yraw or [B + 8, B + 9, B + 10, B + 11, B + 5]
        self.ZP = [B + 12, B + 13, B + 14, B + 15, B + 6]
        self.X, self.Y, self.D, self.T = B + 16, B + 26, B + 36, B + 46
        self.sm, self.sr = sm, sr_


def gate_pre(b, pk):
    return stats(b.X, b.D, b.T, b.sm, b.sr, pk)


def gate_post(b, pk):
    o = unpack10(b.Y, b.YR)
    if pk:
        for i in range(0, 10, 2):
            o.append('v_pk_mul_f32 %s, %s, %s' % (P2(b.D + i), P2(b.D + i), P2(b.Y + i)))
        for i in range(0, 10, 2):
            o.append('v_pk_fma_f32 %s, %s, %s, %s op_sel_hi:[1,0,1]' % (P2(b.X + i), P2(b.D + i), S2(b.sr), P2(b.X + i)))
    else:
        for i in range(10):
            o.append('v_mul_f32 v%d, v%d, v%d' % (b.D + i, b.D + i, b.Y + i))
        for i in range(10):
            o.append('v_fmac_f32 v%d, s%d, v%d' % (b.X + i, b.sr, b.D + i))
    o += stats(b.X, b.D, b.T, b.sm, b.sr, pk, double=True)
    o += scale10(b.D, b.D, b.sr, pk)
    o += pack10(b.ZP, b.D)
    o += pack10(b.XR, b.X)
    return o


def gate_ln_z(b, pk):
    return gate_pre(b, pk) + gate_post(b, pk)


def row_store(a, regs, srdn, soff, sc1):
    c = ' sc1' if sc1 else ''
    a('buffer_store_dwordx4 %s, v%d, %s, s%d offen%s' % (vr(regs[0], 4), vL16, R4(srdn), soff, c))
    a('buffer_store_dword v%d, v%d, %s, s%d offen offset:1024%s' % (regs[4], vL4, R4(srdn), soff, c))


def row_load(a, regs, srdn, soff, sc1=True):
    c = ' sc1' if sc1 else ''
    a('buffer_load_dwordx4 %s, v%d, %s, s%s offen%s' % (vr(regs[0], 4), vL16, R4(srdn), soff, c))
    a('buffer_load_dword v%d, v%d, %s, s%s offen offset:1024%s' % (regs[4], vL4, R4(srdn), soff, c))


def z_addr(a, sj, va, vb, st):
    a('s_and_b32 s%d, s%d, 15' % (st, sj))
    a('s_lshl_b32 s%d, s%d, 8' % (st + 1, sj))
    a('v_and_b32 v%d, 15, v%d' % (va, vL))
    a('v_xor_b32 v%d, s%d, v%d' % (va, st, va))
    a('v_lshlrev_b32 v%d, 4, v%d' % (va, va))
    a('v_lshrrev_b32 v%d, 4, v%d' % (vb, vL))
    a('v_lshl_add_u32 v%d, v%d, 13, v%d' % (va, vb, va))
    a('v_add_u32 v%d, s%d, v%d' % (va, st + 1, va))
    a('v_lshrrev_b32 v%d, 2, v%d' % (vb, vL))
    a('v_xor_b32 v%d, s%d, v%d' % (vb, st, vb))
    a('v_lshlrev_b32 v%d, 2, v%d' % (vb, vb))
    a('v_and_or_b32 v%d, v%d, 3, v%d' % (vb, vL, vb))
    a('v_lshlrev_b32 v%d, 2, v%d' % (vb, vb))
    a('s_add_u32 s%d, s%d, 0x8000' % (st + 1, st + 1))
    a('v_add_u32 v%d, s%d, v%d' % (vb, st + 1, vb))


def z_store(a, b, va, vb, soff, sc1):
    c = ' sc1' if sc1 else ''
    a('buffer_store_dwordx4 %s, v%d, %s, s%d offen%s' % (vr(b.ZP[0], 4), va, R4(WS), soff, c))
    a('buffer_store_dword v%d, v%d, %s, s%d offen%s' % (b.ZP[4], vb, R4(WS), soff, c))


def both(a, fn):
    S, D = a.newlabel('BS'), a.newlabel('BD')
    a('s_cmp_lg_u32 s%d, 0' % sSLOW)
    a('s_cbranch_scc1 %s' % S)
    fn(False)
    a('s_branch %s' % D)
    a.label(S)
    fn(True)
    a.label(D)


def emit(a, lst):
    for l in lst:
        a(l)


def zip2(x, y):
    o = []
    for p, q in zip(x, y):
        o += [p, q]
    return o


vW2O = 8
WB = 96
WB2 = 88


def member_ij(a, si, sc):
    a('s_cmp_ge_u32 s%d, 7' % sM)
    a('s_cselect_b32 s%d, 1, 0' % si)
    a('s_mul_i32 s%d, s%d, 7' % (sc, si))
    a('s_sub_u32 s%d, s%d, s%d' % (sc, sM, sc))
    a('s_mul_i32 s%d, s%d, 192' % (sc, sc))
    a('s_min_u32 s%d, s%d, 1088' % (sc, sc))


def w2_setup(a, sWp):
    srd(a, RA, pW2, 1728 * 1280)
    a('s_mul_i32 s70, s%d, %d' % (sWp, RBS))
    a('s_add_u32 s70, s70, %d' % L_RB)
    member_ij(a, 72, 71)
    a('s_mul_i32 s72, s72, 27')
    a('s_mul_i32 s73, s%d, 7' % sWp)
    a('s_add_u32 s72, s72, s73')
    a('s_mul_i32 s72, s72, 40960')
    a('s_add_u32 s71, s71, s72')
    a('s_movk_i32 s72, 5462')
    a('s_movk_i32 s73, 1088')
    for q in range(3):
        a('v_add_u32 v14, %d, v%d' % (64 * q, vL))
        a('v_mul_u32_u24 v15, s72, v14')
        a('v_lshrrev_b32 v15, 16, v15')
        a('v_lshlrev_b32 v14, 4, v14')
        a('v_mad_u32_u24 v14, v15, s73, v14')
        a('v_add_u32 v%d, s71, v14' % (vW2O + q))
    a('v_bfe_u32 v14, v%d, 4, 1' % vL)
    a('v_lshlrev_b32 v14, 4, v14')
    a('v_lshrrev_b32 v15, 5, v%d' % vL)
    a('v_lshl_add_u32 v14, v15, 2, v14')
    a('v_bfe_u32 v15, v%d, 2, 2' % vL)
    a('v_add_u32 v14, v14, v15')
    a('v_mul_u32_u24 v13, 192, v14')
    a('v_and_b32 v14, 3, v%d' % vL)
    a('v_lshl_add_u32 v13, v14, 3, v13')
    a('v_add_u32 v13, s70, v13')
    a('v_add_u32 v0, s70, v%d' % vL16)


def w2_loads():
    o = []
    if NOW:
        return o
    for ks in range(7):
        for n in range(6):
            g = ['s_mov_b32 s71, %d' % (ks * 40960 + (n // 3) * 20480)] if n % 3 == 0 else []
            g.append('buffer_load_dwordx4 %s, v%d, %s, s71 offen' % (vr(WB2 + (ks * 6 + n) * 4, 4), vW2O + n % 3, R4(RA)))
            o.append(g)
    return o


def w2_xpose(a, waited):
    for ks in range(7):
        h = ks & 1
        if not waited:
            a('s_waitcnt vmcnt(%d)' % (36 - 6 * ks))
        for n in range(6):
            a('ds_write_b128 v0, %s offset:%d' % (vr(WB2 + (ks * 6 + n) * 4, 4), 6144 * h + 1024 * n))
        a('s_waitcnt lgkmcnt(6)')
        for t in range(6):
            for hh in range(2):
                a('ds_read_b64_tr_b16 %s, v13 offset:%d' % (vr(WB2 + (ks * 6 + t) * 4 + 2 * hh, 2), 6144 * h + 1536 * hh + 32 * t))
                if t == 4 and hh == 0:
                    a('s_waitcnt lgkmcnt(8)')
        a('s_waitcnt lgkmcnt(6)')
    a('s_waitcnt lgkmcnt(0)')


def w1_setup(a):
    srd(a, RA, pW1, 640 * 3456)
    a('s_mul_i32 s70, s%d, 10240' % sW)
    a('s_add_u32 s70, s70, %d' % L_ZE)
    a('s_lshl_b32 s71, s%d, 8' % sM)
    a('s_lshl_b32 s72, s%d, 6' % sW)
    a('s_add_u32 s71, s71, s72')
    a('v_lshrrev_b32 v14, 2, v%d' % vL)
    a('v_mul_u32_u24 v8, 3456, v14')
    a('v_and_b32 v14, 3, v%d' % vL)
    a('v_lshl_add_u32 v8, v14, 4, v8')
    a('v_add_u32 v8, s71, v8')
    a('v_lshrrev_b32 v14, 5, v%d' % vL)
    a('v_bfe_u32 v15, v%d, 2, 2' % vL)
    a('v_lshl_add_u32 v14, v14, 3, v15')
    a('v_lshlrev_b32 v13, 6, v14')
    a('v_bfe_u32 v14, v%d, 4, 1' % vL)
    a('v_lshl_add_u32 v13, v14, 5, v13')
    a('v_and_b32 v14, 3, v%d' % vL)
    a('v_lshl_add_u32 v13, v14, 3, v13')
    a('v_add_u32 v13, s70, v13')
    a('v_add_u32 v9, s70, v%d' % vL16)


def w1_loads(a):
    for ks in range(40):
        a('s_mov_b32 s71, %d' % (ks * 55296))
        a('buffer_load_dwordx4 %s, v8, %s, s71 offen' % (vr(WB + 4 * ks, 4), R4(RA)))


def kv_phase(a):
    K0, V0, SH, OUT = 16, 30, 40, 48
    KF, TP, AC = 56, 64, 68
    a.label('KV')
    a('buffer_load_dword v4, off, %s, 0 sc1' % R4(WS))
    srd(a, RB, pK, hex(ROWS_B))
    srd(a, RC, pV, hex(ROWS_B))
    srd(a, RD, pSH, 5120)
    a('s_min_u32 s63, s%d, 4' % sW)
    a('s_mul_i32 s64, s%d, 80' % sX)
    a('s_lshl_b32 s65, s63, 4')
    a('s_add_u32 s64, s64, s65')
    a('s_mul_i32 s65, s%d, %d' % (sI, 64 * 1280))
    a('s_lshl_b32 s66, s64, 1')
    a('s_add_u32 s65, s65, s66')
    a('v_and_b32 v14, 15, v%d' % vL)
    a('v_lshrrev_b32 v15, 4, v%d' % vL)
    a('v_mul_u32_u24 v10, 5120, v14')
    a('v_lshl_add_u32 v10, v15, 3, v10')
    a('v_add_u32 v10, s65, v10')
    a('v_subrev_u32 v9, 3840, v10')
    for r in range(3):
        a('buffer_load_dwordx2 %s, v9, %s, 0 offen offset:%d' % (vr(K0 + 2 * r, 2), R4(RB), 1280 * r))
    for r in range(4):
        a('buffer_load_dwordx2 %s, v10, %s, 0 offen offset:%d' % (vr(K0 + 6 + 2 * r, 2), R4(RB), 1280 * r))
    for r in range(4):
        a('buffer_load_dwordx2 %s, v10, %s, 0 offen offset:%d' % (vr(V0 + 2 * r, 2), R4(RC), 1280 * r))
    a('v_lshlrev_b32 v11, 5, v15')
    a('s_lshl_b32 s66, s64, 3')
    a('buffer_load_dwordx4 %s, v11, %s, s66 offen' % (vr(SH, 4), R4(RD)))
    a('buffer_load_dwordx4 %s, v11, %s, s66 offen offset:16' % (vr(SH + 4, 4), R4(RD)))
    a('s_barrier')
    a('v_lshlrev_b32 v5, 14, v15')
    a('v_lshlrev_b32 v14, 3, v14')
    a('v_sub_u32 v5, v5, v14')
    a('v_add_u32 v5, 120, v5')
    a('s_lshl_b32 s67, s64, 12')
    a('s_lshl_b32 s66, s%d, 7' % sI)
    a('s_sub_u32 s67, s67, s66')
    a('s_add_u32 s67, s67, 3968')
    a('s_mul_i32 s68, s%d, 5' % sX)
    a('s_add_u32 s68, s68, s63')
    a('s_lshl_b32 s68, s68, 7')
    a('s_lshl_b32 s66, s%d, 2' % sI)
    a('s_add_u32 s68, s68, s66')
    a('s_waitcnt vmcnt(13)')
    get_tag(a, 4)
    a('s_cmp_lg_u32 s%d, 7' % sW)
    a('s_cbranch_scc1 KV_NOH')
    a('s_lshl_b32 s66, s%d, 1' % sXCC)
    a('s_xor_b32 s66, s66, s%d' % sTAG)
    a('v_mov_b32 v4, s66')
    a('s_lshl_b32 s66, s%d, 7' % sX)
    a('s_lshl_b32 s69, s%d, 2' % sI)
    a('s_add_u32 s66, s66, s69')
    a('s_mov_b64 exec, 1')
    a('s_add_u32 s66, s66, %d' % HELLO)
    a('buffer_store_dword v4, off, %s, s66 sc1' % R4(WS))
    a('s_mov_b64 exec, -1')
    a('s_waitcnt vmcnt(1)')
    a('s_branch KV_GO')
    a.label('KV_NOH')
    a('s_waitcnt vmcnt(0)')
    a.label('KV_GO')
    stamp(a, 1)
    for e in range(4):
        d = e >> 1
        def unp(dst, src):
            if e & 1:
                a('v_and_b32 v%d, s%d, v%d' % (dst, sHI, src))
            else:
                a('v_lshlrev_b32 v%d, 16, v%d' % (dst, src))
        for r in range(7):
            unp(KF + r, K0 + 2 * r + d)
        for j in range(4):
            src = SH + 2 * e + (j >> 1)
            if j & 1:
                a('v_and_b32 v%d, s%d, v%d' % (TP + j, sHI, src))
            else:
                a('v_lshlrev_b32 v%d, 16, v%d' % (TP + j, src))
        for t in range(4):
            a('v_mul_f32 v%d, v%d, v%d' % (AC + t, TP + 3, KF + t))
        for jj in (2, 1, 0):
            for t in range(4):
                a('v_fmac_f32 v%d, v%d, v%d' % (AC + t, TP + jj, KF + 3 + t - jj))
        for t in range(4):
            unp(KF + t, V0 + 2 * t + d)
        for t in range(4):
            a('v_mul_f32 v%d, v%d, v%d' % (AC + t, AC + t, KF + t))
        a('v_cvt_pk_bf16_f32 v%d, v%d, v%d' % (OUT + 2 * e, AC + 3, AC + 2))
        a('v_cvt_pk_bf16_f32 v%d, v%d, v%d' % (OUT + 2 * e + 1, AC + 1, AC))
        a('s_add_u32 s66, s67, %s' % hex(KVA + 4096 * e))
        a('buffer_store_dwordx2 %s, v5, %s, s66 offen' % (vr(OUT + 2 * e, 2), R4(WS)))
    a('s_lshl_b32 s66, s%d, 1' % sXCC)
    a('s_add_u32 s66, s66, s%d' % sTAG)
    a('v_mov_b32 v4, s66')
    a('s_add_u32 s66, s68, %d' % KVFA)
    a('s_waitcnt vmcnt(0)')
    a('s_mov_b64 exec, 1')
    a('buffer_store_dword v4, off, %s, s66' % R4(WS))
    a('s_mov_b64 exec, -1')
    stamp(a, 2)
    dstamp(a, 2)
    a('s_cmp_lt_u32 s%d, 14' % sM)
    a('s_cbranch_scc1 KV_MEM')
    a('v_mov_b32 v4, s%d' % sTAG)
    a('v_mov_b32 v14, %d' % L_SYNC)
    a('ds_write_b32 v14, v4')
    a('s_waitcnt lgkmcnt(0)')
    a('s_barrier')
    a.label('KV_MEM')
    hello_check(a, 14, 66)
    a('s_cmp_eq_u32 s%d, 0' % sSLOW)
    a('s_cbranch_scc1 KV_DONE')
    for e in range(4):
        a('s_add_u32 s66, s67, %s' % hex(KVB + 4096 * e))
        a('buffer_store_dwordx2 %s, v5, %s, s66 offen sc1' % (vr(OUT + 2 * e, 2), R4(WS)))
    a('s_add_u32 s66, s68, %d' % KVFB)
    a('s_waitcnt vmcnt(0)')
    flag_store(a, 66, 4, True)
    a.label('KV_DONE')
    stamp(a, 3)
    a('s_cmp_ge_u32 s%d, 14' % sM)
    a('s_cbranch_scc1 S_MAIN')
    a('s_cmp_eq_u32 s%d, 7' % sW)
    a('s_cbranch_scc1 G2_W7')
    a('s_branch G1_INIT')


class LdsQ:
    def __init__(self, a):
        self.a, self.q = a, []
    def issue(self, key, text):
        self.a(text); self.q.append(key)
    def wait(self, keys):
        last = -1
        for i, k in enumerate(self.q):
            if k in keys:
                last = i
        if last >= 0:
            n = len(self.q) - 1 - last
            self.a('s_waitcnt lgkmcnt(%d)' % n)
            self.q = self.q[last + 1:]


CACC, CB, CA, CE = 16, 32, 64, 80
vCA, vCB = 14, 15
CF0, CF1 = 36, 40


def lds_gate(a):
    lds_spin(a, LF_U, 3, 16)


def conv_part(a, taus, kappas, started, hooks={}):
    mf = []
    for k in kappas:
        for aa in range(max(taus) + 1):
            for t in taus:
                if t >= aa:
                    mf.append((('A', aa, k), ('B', t - aa, k), t))
    order, last = [], {}
    for i, (fa, fb, t) in enumerate(mf):
        for f in (fb, fa):
            if f not in last:
                order.append(f)
            last[f] = i
    free = {'A': list(range(4)), 'B': list(range(8))}
    slot = {}
    q = LdsQ(a)
    nxt = 0
    def reg(f):
        return (CA if f[0] == 'A' else CB) + 4 * slot[f]
    def try_issue(budget):
        nonlocal nxt
        while nxt < len(order) and budget > 0:
            f = order[nxt]
            cost = 2 if f[0] == 'A' else 1
            if not free[f[0]] or len(q.q) + cost > 14:
                break
            slot[f] = free[f[0]].pop(0)
            if f[0] == 'A':
                off = 512 * f[1] + 64 * f[2]
                q.issue(f, 'ds_read_b64 %s, v%d offset:%d' % (vr(reg(f), 2), vCA, off))
                q.issue(f, 'ds_read_b64 %s, v%d offset:%d' % (vr(reg(f) + 2, 2), vCA, off + 8))
            else:
                q.issue(f, 'ds_read_b128 %s, v%d offset:%d' % (vr(reg(f), 4), vCB, 512 * (7 - f[1]) + 64 * f[2]))
            budget -= cost
            nxt += 1
    try_issue(12)
    for i, (fa, fb, t) in enumerate(mf):
        while fa not in slot or fb not in slot:
            n0 = nxt
            try_issue(2)
            if nxt == n0:
                q.wait([q.q[0]])
        q.wait([fa, fb])
        acc = CACC + 4 * (t - taus[0])
        c = vr(acc, 4) if t in started else '0'
        started.add(t)
        a('v_mfma_f32_16x16x32_bf16 %s, %s, %s, %s' % (vr(acc, 4), vr(reg(fa), 4), vr(reg(fb), 4), c))
        for f in (fa, fb):
            if last[f] == i:
                free[f[0]].append(slot[f])
        try_issue(3)
        if i in hooks:
            hooks[i]()


def conv_epilogue(a, taus, stage):
    T = CA
    for n, t in enumerate(taus):
        a('ds_read_b64 %s, v4 offset:%d' % (vr(CE + 2 * n, 2), 512 * (7 - t)))
    a('s_waitcnt lgkmcnt(0)')
    for pr in range(len(taus) // 2):
        Q = CB + 4 * pr
        for h in range(2):
            n = 2 * pr + h
            e0, e1 = CE + 2 * n, CE + 2 * n + 1
            acc = CACC + 4 * n
            a('v_and_b32 v%d, s%d, v%d' % (T + 0, sHI, e1))
            a('v_lshlrev_b32 v%d, 16, v%d' % (T + 1, e1))
            a('v_and_b32 v%d, s%d, v%d' % (T + 2, sHI, e0))
            a('v_lshlrev_b32 v%d, 16, v%d' % (T + 3, e0))
            for r in range(4):
                a('v_fmac_f32 v%d, s74, v%d' % (acc + r, T + r))
            a('v_cvt_pk_bf16_f32 v%d, v%d, v%d' % (Q + 2 * h, acc, acc + 1))
            a('v_cvt_pk_bf16_f32 v%d, v%d, v%d' % (Q + 2 * h + 1, acc + 2, acc + 3))
        a('v_permlane16_swap_b32 v%d, v%d' % (Q, Q + 2))
        a('v_permlane16_swap_b32 v%d, v%d' % (Q + 1, Q + 3))
        a('buffer_store_dwordx4 %s, v5, %s, s75 offen offset:%d sc1' % (vr(Q, 4), R4(WS), 512 * taus[2 * pr]))


def conv_flag(a, stage):
    a('s_add_u32 s66, s76, %d' % (YF + 4096 * stage))
    a('s_waitcnt vmcnt(0)')
    flag_store(a, 66, 11, True)


def conv_phase(a):
    a.label('CONVW')
    a('s_cmp_ge_u32 s%d, 14' % sM)
    a('s_cbranch_scc1 S_WAIT')
    a('s_sub_u32 s69, s%d, 4' % sW)
    a('s_mul_i32 s63, s%d, 3' % sM)
    a('s_lshl_b32 s64, s%d, 1' % sM)
    a('s_add_u32 s64, s64, 12')
    a('s_cmp_lt_u32 s%d, 12' % sM)
    a('s_cselect_b32 s63, s63, s64')
    a('s_cselect_b32 s77, 3, 2')
    a('s_cmp_ge_u32 s69, s77')
    a('s_cbranch_scc1 G2_NOCONV')
    a('s_setprio 3')
    a('buffer_load_dword v4, off, %s, 0 sc1' % R4(WS))
    a('s_lshr_b32 s64, s%d, 4' % sI)
    a('s_mul_i32 s64, s64, 40')
    a('s_add_u32 s63, s63, s64')
    a('s_add_u32 s63, s63, s69')
    a('s_mul_i32 s64, s%d, 80' % sX)
    a('s_add_u32 s64, s64, s63')
    a('s_lshl_b32 s65, s64, 12')
    srd(a, RB, pH, 4096, 's65')
    a('v_subrev_u32 v14, 32, v%d' % vL16)
    a('v_subrev_u32 v15, 16, v%d' % vL16)
    a('v_add_u32 v5, 992, v%d' % vL16)
    HQ, HD = 16, 40
    a('buffer_load_dwordx4 %s, v14, %s, 0 offen' % (vr(HQ, 4), R4(RB)))
    a('buffer_load_dwordx2 %s, v15, %s, 0 offen' % (vr(HD, 2), R4(RB)))
    for j in range(1, 5):
        a('buffer_load_dwordx4 %s, v5, %s, 0 offen offset:%d' % (vr(HQ + 4 * j, 4), R4(RB), 1024 * (j - 1)))
        a('buffer_load_dwordx2 %s, v5, %s, 0 offen offset:%d' % (vr(HD + 2 * j, 2), R4(RB), 1024 * (j - 1) + 16))
    a('s_barrier')
    a('s_and_b32 s66, s64, 0xfffffffe')
    a('s_lshl_b32 s66, s66, 1')
    a('s_load_dword s74, s[%d:%d], s66' % (pD, pD + 1))
    a('s_add_u32 s75, s65, %s' % hex(YT))
    a('s_lshl_b32 s76, s64, 2')
    a('s_lshr_b32 s78, s63, 4')
    a('s_mul_i32 s79, s%d, 5' % sX)
    a('s_add_u32 s78, s78, s79')
    a('s_lshl_b32 s78, s78, 7')
    a('s_add_u32 s78, s78, %d' % KVFA)
    a('s_mov_b32 s79, s65')
    w2_setup(a, 69)
    a('s_mul_i32 s80, s69, 16640')
    a('s_mul_i32 s81, s69, 4608')
    a('s_add_u32 s81, s81, %d' % L_U)
    a('v_add_u32 v5, s80, v%d' % vL16)
    a('v_mov_b32 v56, 0'); a('v_mov_b32 v57, 0'); a('v_mov_b32 v58, 0'); a('v_mov_b32 v59, 0')
    a('v_add_u32 v14, s81, v%d' % vL16)
    setexec(a, 32)
    a('ds_write_b128 v14, v[56:59] offset:4096')
    setexec(a, 64)
    a('s_waitcnt lgkmcnt(0)')
    a('s_bitcmp1_b32 s64, 0')
    a('s_cbranch_scc1 CV_DHI')
    a('s_lshl_b32 s74, s74, 16')
    a.label('CV_DHI')
    a('s_and_b32 s74, s74, 0xffff0000')
    for j in range(5):
        a('s_waitcnt vmcnt(%d)' % (2 * (4 - j)))
        if j == 0:
            get_tag(a, 4)
        if j == 4:
            a('s_mov_b64 exec, 3')
        d = [HQ + 4 * j + e for e in range(4)] + [HD + 2 * j, HD + 2 * j + 1]
        T1, T2, T3 = 52 + 12 * (j & 1), 56 + 12 * (j & 1), 60 + 12 * (j & 1)
        a('ds_write_b128 v5, %s offset:%d' % (vr(d[0], 4), 1024 * j))
        for e in range(4):
            a('v_alignbit_b32 v%d, v%d, v%d, 16' % (T1 + e, d[e + 1], d[e]))
        a('ds_write_b128 v5, %s offset:%d' % (vr(T1, 4), 1024 * j + HSTR))
        for e in range(4):
            a('v_mov_b32 v%d, v%d' % (T2 + e, d[e + 1]))
        a('ds_write_b128 v5, %s offset:%d' % (vr(T2, 4), 1024 * j + 2 * HSTR))
        for e in range(4):
            a('v_alignbit_b32 v%d, v%d, v%d, 16' % (T3 + e, d[e + 2], d[e + 1]))
        a('ds_write_b128 v5, %s offset:%d' % (vr(T3, 4), 1024 * j + 3 * HSTR))
        if j == 2:
            a('s_waitcnt lgkmcnt(8)')
    setexec(a, 64)
    stamp(a, 1)
    a('v_and_b32 v16, 15, v%d' % vL)
    a('v_lshrrev_b32 v17, 4, v%d' % vL)
    a('v_add_u32 v18, 1, v16')
    a('v_and_b32 v19, 3, v18')
    a('v_mul_u32_u24 v%d, %d, v19' % (vCA, HSTR))
    a('v_lshrrev_b32 v18, 2, v18')
    a('v_lshl_add_u32 v%d, v18, 3, v%d' % (vCA, vCA))
    a('v_lshl_add_u32 v%d, v17, 4, v%d' % (vCA, vCA))
    a('v_add_u32 v%d, s80, v%d' % (vCA, vCA))
    a('v_lshlrev_b32 v18, 5, v16')
    a('v_lshlrev_b32 v19, 4, v17')
    a('v_sub_u32 v%d, v19, v18' % vCB)
    a('s_add_u32 s66, s81, 480')
    a('v_add_u32 v%d, s66, v%d' % (vCB, vCB))
    a('v_lshl_add_u32 v19, v17, 3, v18')
    a('s_add_u32 s66, s81, 504')
    a('v_sub_u32 v4, s66, v19')
    a('v_and_b32 v19, 1, v17')
    a('v_lshl_add_u32 v5, v19, 9, v18')
    a('v_lshrrev_b32 v19, 1, v17')
    a('v_lshl_add_u32 v5, v19, 4, v5')
    a('s_waitcnt lgkmcnt(0)')
    hello_check(a, 16, 66)
    stamp(a, 2)
    a('v_and_b32 v16, 31, v%d' % vL)
    a('v_lshlrev_b32 v16, 2, v16')
    a('v_lshrrev_b32 v17, 5, v%d' % vL)
    a('v_lshl_add_u32 v16, v17, 13, v16')
    assert KVFB - KVFA == 8192
    a('s_lshl_b32 s66, s%d, 1' % sXCC)
    a('v_mov_b32 v18, s66')
    a('v_cmp_eq_u32 vcc, 0, v17')
    a('v_cndmask_b32 v18, 0, v18, vcc')
    a('v_add_u32 v18, s%d, v18' % sTAG)
    a('s_mov_b32 s%d, 0' % sCNT)
    a.label('CV_POLL')
    a('buffer_load_dword v19, v16, %s, s78 offen sc1' % R4(WS))
    a('s_add_u32 s%d, s%d, 1' % (sCNT, sCNT))
    a('s_waitcnt vmcnt(0)')
    a('v_cmp_ne_u32 vcc, v18, v19')
    a('s_mov_b32 s66, %s' % hex(KVA))
    if not FORCE_SLOW:
        a('s_cmp_eq_u32 vcc_lo, 0')
        a('s_cbranch_scc1 CV_GOT')
    a('s_mov_b32 s66, %s' % hex(KVB))
    a('s_cmp_eq_u32 vcc_hi, 0')
    a('s_cbranch_scc1 CV_GOT')
    a('s_cmp_lt_u32 s%d, s%d' % (sCNT, sLIM))
    a('s_cbranch_scc1 CV_POLL')
    a('s_mov_b32 s%d, 0' % sLIM)
    a.label('CV_GOT')
    a('s_add_u32 s66, s66, s79')
    a('s_mov_b32 m0, s81')
    for k in range(4):
        a('buffer_load_dwordx4 v%d, %s, s66 offen offset:%d sc1 lds' % (vL16, R4(WS), 1024 * k))
    stamp(a, 3)
    a('s_waitcnt vmcnt(0)')
    lds_flag(a, LF_U, 69, 16)
    a('s_waitcnt lgkmcnt(0)')
    stamp(a, 4)
    dstamp(a, 3)
    conv_part(a, [0, 1], range(8), set())
    conv_epilogue(a, [0, 1], 0)
    stamp(a, 5)
    conv_part(a, [2, 3], range(8), set(), {CF0: lambda: conv_flag(a, 0)})
    conv_epilogue(a, [2, 3], 1)
    stamp(a, 6)
    hk = {CF1: lambda: conv_flag(a, 1)}
    for n, g in enumerate(w2_loads()):
        hk[CF1 + 1 + 3 * n] = (lambda g=g: emit(a, g))
    conv_part(a, [4, 5, 6, 7], range(8), set(), hk)
    conv_epilogue(a, [4, 5, 6, 7], 2)
    stamp(a, 7)
    dstamp(a, 4)
    lds_flag(a, LF_CV, 69, 16)
    conv_flag(a, 2)
    a('s_setprio 0')
    w2_xpose(a, True)
    a('s_branch G2_READY')
    a.label('G2_NOCONV')
    a('buffer_load_dword v4, off, %s, 0 sc1' % R4(WS))
    a('s_barrier')
    a('s_waitcnt vmcnt(0)')
    get_tag(a, 4)
    lds_flag(a, LF_U, 69, 16)
    lds_flag(a, LF_CV, 69, 16)
    w2_setup(a, 69)
    lds_gate(a)
    for g in w2_loads():
        emit(a, g)
    w2_xpose(a, False)
    hello_check(a, 16, 66)
    a('s_branch G2_START')
    a.label('G2_W7')
    a('s_mov_b32 s69, 3')
    w2_setup(a, 69)
    lds_gate(a)
    for g in w2_loads():
        emit(a, g)
    w2_xpose(a, False)
    a.label('G2_READY')
    stamp(a, 8)
    dstamp(a, 5)
    a('s_branch G2_START')


B2F = 16
XS = lambda s, e: 96 + 10 * (2 * s + e)
YS = lambda s, e: 176 + 10 * (2 * s + e)
GY = 84


class Tok:
    def __init__(self, e):
        W = 28 + 28 * e
        self.M0 = [W, W + 1, W + 2, W + 3, W + 24]
        self.M1 = [W + 4, W + 5, W + 6, W + 7, W + 25]
        self.ZP = [W + 8, W + 9, W + 10, W + 11, W + 26]
        self.D, self.T = W + 12, W + 22
        self.sm, self.sr = (80, 82) if e == 0 else (96, 98)


def flag_line(a, base, sSig, sD, add=0):
    a('s_lshl_b32 s%d, s%d, 3' % (sD, sG))
    if sSig is not None:
        a('s_add_u32 s%d, s%d, s%d' % (sD, sD, sSig))
    a('s_lshl_b32 s%d, s%d, 8' % (sD, sD))
    a('s_add_u32 s%d, s%d, %d' % (sD, sD, base + 256 * add))


def pk10(op, d, x, y):
    return ['v_pk_%s_f32 %s, %s, %s' % (op, P2(d + i), P2(x + i), P2(y + i)) for i in range(0, 10, 2)]


def z_tail(t, X):
    return stats(X, t.D, t.T, t.sm, t.sr, True, double=True) + scale10(t.D, t.D, t.sr, True) + pack10(t.ZP, t.D)


def s_phase(a):
    a.label('S_WAIT')
    a('s_barrier')
    a('s_barrier')
    a('v_mov_b32 v14, %d' % L_SYNC)
    a('ds_read_b32 v4, v14')
    a('s_waitcnt lgkmcnt(0)')
    a('v_readfirstlane_b32 s%d, v4' % sTAG)
    hello_check(a, 14, 66)
    a.label('S_MAIN')
    srd(a, RA, pQ, hex(ROWS_B))
    srd(a, RB, pOUT, hex(ROWS_B))
    srd(a, RD, pB2, 1280)
    a('s_sub_u32 s70, s%d, 14' % sM)
    a('s_lshl_b32 s71, s%d, 5' % sG)
    a('s_lshl_b32 s72, s70, 4')
    a('s_add_u32 s71, s71, s72')
    a('s_lshl_b32 s72, s%d, 1' % sW)
    a('s_add_u32 s72, s72, s71')
    a('s_mul_i32 s73, s72, 1280')
    a('s_mov_b32 s66, s73')
    for s in range(4):
        for e in range(2):
            R = YS(s, e)
            a('buffer_load_dwordx4 %s, v%d, %s, s66 offen offset:%d' % (vr(R, 4), vL16, R4(RA), 1280 * e))
            a('buffer_load_dword v%d, v%d, %s, s66 offen offset:%d' % (R + 4, vL4, R4(RA), 1280 * e + 1024))
        if s < 3:
            a('s_add_u32 s66, s66, %d' % (512 * 1280))
    a('buffer_load_dwordx4 %s, v%d, %s, 0 offen' % (vr(GY, 4), vL16, R4(RD)))
    a('buffer_load_dword v%d, v%d, %s, 0 offen offset:1024' % (GY + 4, vL4, R4(RD)))
    a('v_lshrrev_b32 v14, 1, v%d' % vL)
    a('v_and_b32 v15, 1, v%d' % vL)
    a('v_lshlrev_b32 v8, 12, v14')
    a('v_lshl_add_u32 v8, v15, 4, v8')
    a('v_mul_u32_u24 v9, 10304, v15')
    a('v_lshl_add_u32 v9, v14, 1, v9')
    a('s_mul_i32 s66, s%d, 160' % sW)
    a('v_add_u32 v9, s66, v9')
    a('s_mul_i32 s66, s%d, 2560' % sW)
    a('s_cmp_ge_u32 s%d, 4' % sW)
    a('s_cselect_b32 s67, 64, 0')
    a('s_add_u32 s66, s66, s67')
    a('v_add_u32 v10, s66, v%d' % vL16)
    a('v_add_u32 v11, s66, v%d' % vL4)
    a('s_mul_i32 s74, s%d, %d' % (sW, 80 * 4096))
    a('s_lshl_b32 s75, s71, 1')
    a('s_add_u32 s74, s74, s75')
    a('s_add_u32 s74, s74, %s' % hex(YT))
    a('s_mul_i32 s75, s%d, 320' % sW)
    a('s_add_u32 s75, s75, %d' % YF)
    a('s_lshl_b32 s76, s70, 4')
    a('s_lshl_b32 s77, s%d, 1' % sW)
    a('s_add_u32 s76, s76, s77')
    z_addr(a, 76, 12, 13, 66)
    a('s_add_u32 s77, s76, 1')
    z_addr(a, 77, 4, 5, 66)
    a('s_lshl_b32 s78, s%d, 2' % sG)
    a('s_mul_i32 s78, s78, 40960')
    a('s_add_u32 s78, s78, %s' % hex(ZI))
    a('s_lshl_b32 s79, s%d, 11' % sG)
    a('s_lshl_b32 s77, s76, 2')
    a('s_add_u32 s79, s79, s77')
    a('s_add_u32 s79, s79, %d' % ZF)
    a('s_mul_i32 s71, s%d, %d' % (sG, 8 * 40960))
    a('s_mul_i32 s72, s76, 1280')
    a('s_add_u32 s71, s71, s72')
    a('s_add_u32 s71, s71, %s' % hex(MR))
    a('s_lshl_b32 s72, s%d, 12' % sG)
    a('s_lshl_b32 s77, s70, 8')
    a('s_add_u32 s72, s72, s77')
    a('s_and_b32 s77, s%d, 3' % sW)
    a('s_lshl_b32 s77, s77, 6')
    a('s_add_u32 s72, s72, s77')
    a('s_add_u32 s72, s72, %d' % MFL)
    tk = [Tok(0), Tok(1)]
    ZA_ = [(12, 13), (4, 5)]
    for s in range(4):
        a('s_waitcnt vmcnt(%d)' % (14 - 4 * s))
        def pre(e):
            t = tk[e]
            X, Y = XS(s, e), YS(s, e)
            return unpack10(X, [Y + k for k in range(5)]) + stats(X, t.D, t.T, t.sm, t.sr, True) + scale10(Y, t.D, t.sr, True)
        emit(a, zip2(pre(0), pre(1)))
    a('s_waitcnt vmcnt(0)')
    emit(a, unpack10(B2F, [GY + k for k in range(5)]))

    def z_out(sig, younger_fn):
        a('s_add_u32 s66, s78, %d' % (40960 * (sig & 3)))
        a('s_add_u32 s67, s79, %d' % (128 * sig))
        def st(sc1):
            for e in range(2):
                z_store(a, tk[e], ZA_[e][0], ZA_[e][1], 66, sc1)
        both(a, st)
        a('v_mov_b32 v26, s%d' % sTAG)
        a('v_mov_b32 v27, s%d' % sTAG)

    def z_flag():
        a('s_mov_b64 exec, 1')
        both(a, lambda sc1: a('buffer_store_dwordx2 v[26:27], off, %s, s67%s' % (R4(WS), ' sc1' if sc1 else '')))
        a('s_mov_b64 exec, -1')

    for s in range(4):
        stamp(a, 4 * s + 4)
        L, D = a.newlabel('YL'), a.newlabel('YD')
        a('s_add_u32 s66, s75, %d' % (4096 * min(s, 2)))
        a('s_mov_b32 s%d, 0' % sCNT)
        setexec(a, 20)
        a.label(L)
        a('buffer_load_dwordx4 %s, v%d, %s, s66 offen sc1' % (vr(GY, 4), vL16, R4(WS)))
        a('s_add_u32 s%d, s%d, 1' % (sCNT, sCNT))
        a('s_waitcnt vmcnt(0)')
        for e in range(4):
            a('v_xor_b32 v%d, s%d, v%d' % (GY + e, sTAG, GY + e))
        a('v_or3_b32 v%d, v%d, v%d, v%d' % (GY, GY, GY + 1, GY + 2))
        a('v_or_b32 v%d, v%d, v%d' % (GY, GY, GY + 3))
        a('v_cmp_ne_u32 vcc, 0, v%d' % GY)
        a('s_cbranch_vccz %s' % D)
        a('s_cmp_lt_u32 s%d, s%d' % (sCNT, sLIM))
        a('s_cbranch_scc1 %s' % L)
        a('s_mov_b32 s%d, 0' % sLIM)
        a.label(D)
        setexec(a, 64)
        stamp(a, 4 * s + 5)
        a('s_add_u32 s66, s74, %d' % (1024 * s))
        a('buffer_load_dwordx4 %s, v8, %s, s66 offen sc1' % (vr(GY, 4), R4(WS)))
        a('s_add_u32 s66, s66, %d' % (32 * 4096))
        a('buffer_load_dwordx4 %s, v8, %s, s66 offen sc1' % (vr(GY + 4, 4), R4(WS)))
        a('s_add_u32 s66, s66, %d' % (32 * 4096))
        setexec(a, 32)
        a('buffer_load_dwordx4 %s, v8, %s, s66 offen sc1' % (vr(GY + 8, 4), R4(WS)))
        setexec(a, 64)
        lo = 32768 * (s & 1)
        for k in range(3):
            a('s_waitcnt vmcnt(%d)' % (2 - k))
            if k == 2:
                setexec(a, 32)
            for j in range(8):
                a('ds_write_b16%s v9, v%d offset:%d' % ('_d16_hi' if j & 1 else '', GY + 4 * k + (j >> 1), lo + 1280 * j + 64 * k))
            a('s_waitcnt lgkmcnt(4)')
        setexec(a, 64)
        a('s_waitcnt lgkmcnt(0)')
        a('s_barrier')
        for e in range(2):
            a('ds_read_b128 %s, v10 offset:%d' % (vr(tk[e].M0[0], 4), lo + 1280 * e))
            a('ds_read_b32 v%d, v11 offset:%d' % (tk[e].M0[4], lo + 1280 * e + 1024))
        a('s_waitcnt lgkmcnt(0)')
        stamp(a, 4 * s + 6)
        def ln1(e):
            t = tk[e]
            X, Y = XS(s, e), YS(s, e)
            o = unpack10(t.D, t.M0)
            o += ['v_pk_fma_f32 %s, %s, %s, %s' % (P2(X + i), P2(Y + i), P2(t.D + i), P2(X + i)) for i in range(0, 10, 2)]
            return o + z_tail(t, X)
        emit(a, zip2(ln1(0), ln1(1)))
        z_out(s, None)
        for e in range(2):
            emit(a, unpack10(YS(s, e), tk[e].M0) + pk10('add', XS(s, e), XS(s, e), B2F))
        a('s_waitcnt vmcnt(0)')
        z_flag()
        stamp(a, 4 * s + 7)
    dstamp(a, 8)
    a('s_cmp_lg_u32 s2, 112')
    a('s_cbranch_scc1 S_NOEP')
    a('s_cmp_lg_u32 s%d, 0' % sW)
    a('s_cbranch_scc1 S_NOEP')
    a('s_mov_b32 s66, 0')
    flag_store(a, 66, 14, True)
    a.label('S_NOEP')
    if STOP == 'front':
        endk(a)
        return

    def m_issue(k):
        a('s_add_u32 s68, s71, %d' % (81920 * (k & 3)))
        a('s_add_u32 s69, s68, 40960')
        for e in range(2):
            for so, M in ((68, tk[e].M0), (69, tk[e].M1)):
                a('buffer_load_dwordx4 %s, v%d, %s, s%d offen offset:%d sc1' % (vr(M[0], 4), vL16, R4(WS), so, 1280 * e))
                a('buffer_load_dword v%d, v%d, %s, s%d offen offset:%d sc1' % (M[4], vL4, R4(WS), so, 1280 * e + 1024))

    poll(a, 72, 14, 14)
    m_issue(0)
    for k in range(8):
        s = k & 3
        stamp(a, 4 * k + 20)
        for e in range(2):
            a('s_waitcnt vmcnt(%d)' % (6 - 4 * e))
            emit(a, acc10(XS(s, e), tk[e].M0, True))
            a('s_waitcnt vmcnt(%d)' % (4 - 4 * e))
            emit(a, acc10(XS(s, e), tk[e].M1, True))
        stamp(a, 4 * k + 21)
        if k < 7:
            a('s_add_u32 s72, s72, 512')
            setexec(a, 14)
            a('buffer_load_dword v14, v%d, %s, s72 offen sc1' % (vL4, R4(WS)))
            setexec(a, 64)
        LATE, NEXT = a.newlabel('S_LATE'), a.newlabel('S_NEXT')
        if k < 4:
            def lt(e):
                t = tk[e]
                X, Y = XS(s, e), YS(s, e)
                o = stats(X, t.D, t.T, t.sm, t.sr, True) + pk10('mul', t.D, t.D, Y)
                o += ['v_pk_fma_f32 %s, %s, %s, %s op_sel_hi:[1,0,1]' % (P2(X + i), P2(t.D + i), S2(t.sr), P2(X + i)) for i in range(0, 10, 2)]
                return o + z_tail(t, X)
            emit(a, zip2(lt(0), lt(1)))
            z_out(k + 4, None)
            for e in range(2):
                emit(a, pk10('add', XS(s, e), XS(s, e), B2F))
        else:
            a('s_add_u32 s66, s73, %d' % (512 * 1280 * s))
            a('s_add_u32 s67, s66, 1280')
            for e in range(2):
                emit(a, pack10(tk[e].ZP, XS(s, e)))
                row_store(a, tk[e].ZP, RB, 66 + e, False)
        if k < 7:
            a('s_waitcnt vmcnt(4)')
            setexec(a, 14)
            a('v_cmp_ne_u32 vcc, s%d, v14' % sTAG)
            setexec(a, 64)
            a('s_cbranch_vccnz %s' % LATE)
            m_issue(k + 1)
            if k < 4:
                a('s_waitcnt vmcnt(8)')
                z_flag()
            a('s_branch %s' % NEXT)
            a.label(LATE)
            if k < 4:
                a('s_waitcnt vmcnt(0)')
                z_flag()
            stamp(a, 4 * k + 23)
            poll(a, 72, 14, 14)
            m_issue(k + 1)
            a.label(NEXT)
        stamp(a, 4 * k + 22)
    endk(a)


ZA, GT, ZR, NZR, GE, ACC, BIAS = 8, 16, 24, 6, 48, 64, 80


def stage_z(a, sSig1):
    a('s_and_b32 s63, s%d, 3' % sSig1)
    a('s_lshl_b32 s64, s%d, 2' % sG)
    a('s_add_u32 s64, s64, s63')
    a('s_mul_i32 s64, s64, 40960')
    a('s_mul_i32 s65, s%d, 10240' % sW)
    a('s_add_u32 s64, s64, s65')
    a('s_add_u32 s64, s64, %s' % hex(ZI))
    a('s_bitcmp1_b32 s%d, 0' % sSig1)
    a('s_cselect_b32 s63, 0, %d' % L_ZE)
    a('s_add_u32 s65, s65, s63')
    for g in range(3):
        a('s_add_u32 m0, s65, %d' % (4096 * g))
        for k in range(4 if g < 2 else 2):
            a('buffer_load_dwordx4 v%d, %s, s64 offen offset:%d sc1 lds' % (vL16, R4(WS), 1024 * k))
        if g < 2:
            a('s_add_u32 s64, s64, 4096')


def zf_off(a, sSig1, sD):
    a('s_lshl_b32 s%d, s%d, 4' % (sD, sG))
    a('s_add_u32 s%d, s%d, s%d' % (sD, sD, sSig1))
    a('s_lshl_b32 s%d, s%d, 7' % (sD, sD))
    a('s_add_u32 s%d, s%d, %d' % (sD, sD, ZF))


def cnt_set(a, vA, sVal, add, vT):
    a('s_add_u32 s63, s%d, %d' % (sVal, add))
    a('v_mov_b32 v%d, s63' % vT)
    a('ds_write_b32 v%d, v%d' % (vA, vT))


def cnt_wait(a, vA, sVal, add, vT):
    L, D = a.newlabel('CL'), a.newlabel('CD')
    a('s_add_u32 s63, s%d, %d' % (sVal, add))
    a('s_mov_b32 s%d, 0' % sCNT)
    a.label(L)
    a('ds_read_b128 %s, v%d' % (vr(vT, 4), vA))
    a('s_add_u32 s%d, s%d, 1' % (sCNT, sCNT))
    a('s_waitcnt lgkmcnt(0)')
    a('v_min_u32 v%d, v%d, v%d' % (vT, vT, vT + 1))
    a('v_min3_u32 v%d, v%d, v%d, v%d' % (vT, vT, vT + 2, vT + 3))
    a('v_cmp_gt_u32 vcc, s63, v%d' % vT)
    a('s_cbranch_vccz %s' % D)
    a('s_cmp_lt_u32 s%d, %d' % (sCNT, 4 * LIMIT))
    a('s_cbranch_scc1 %s' % L)
    a.label(D)


def g1_phase(a):
    a.label('G1_INIT')
    if STOP == 'front':
        endk(a)
        return
    a('v_mov_b32 v4, %d' % LF_G1)
    a('s_lshl_b32 s66, s%d, 2' % sW)
    a('v_add_u32 v5, s66, v4')
    a('s_mov_b32 s%d, 0' % sP)
    a('s_cmp_eq_u32 s%d, 13' % sM)
    a('s_cselect_b32 s66, 2, 4')
    a('s_cmp_ge_u32 s%d, s66' % sW)
    a('s_cbranch_scc1 G1X_INIT')
    srd(a, RB, pB1, 3456)
    a('v_lshrrev_b32 v14, 5, v%d' % vL)
    a('v_lshlrev_b32 v14, 3, v14')
    a('s_lshl_b32 s66, s%d, 8' % sM)
    a('s_lshl_b32 s67, s%d, 6' % sW)
    a('s_add_u32 s66, s66, s67')
    for q in range(4):
        a('buffer_load_dwordx2 %s, v14, %s, s66 offen offset:%d' % (vr(GE + 2 * q, 2), R4(RB), 16 * q))
    w1_setup(a)
    lds_gate(a)
    w1_loads(a)
    for ks in range(40):
        a('s_waitcnt vmcnt(%d)' % (39 - ks))
        a('ds_write_b128 v9, %s offset:%d' % (vr(WB + 4 * ks, 4), 1024 * (ks & 3)))
        for hh in range(2):
            a('ds_read_b64_tr_b16 %s, v13 offset:%d' % (vr(WB + 4 * ks + 2 * hh, 2), 1024 * (ks & 3) + 256 * hh))
        if ks & 3 == 3:
            a('s_waitcnt lgkmcnt(3)')
    for i in range(8):
        a('v_lshlrev_b32 v%d, 16, v%d' % (BIAS + 2 * i, GE + i))
        a('v_and_b32 v%d, s%d, v%d' % (BIAS + 2 * i + 1, sHI, GE + i))
    a('v_and_b32 v14, 31, v%d' % vL)
    a('v_lshrrev_b32 v15, 5, v%d' % vL)
    a('v_and_b32 v16, 15, v14')
    a('v_xor_b32 v15, v15, v16')
    a('v_lshlrev_b32 v15, 4, v15')
    a('v_lshl_add_u32 v15, v14, 8, v15')
    a('v_add_u32 v15, %d, v15' % L_ZE)
    a('s_waitcnt lgkmcnt(0)')
    a('v_mov_b32 v16, v15')
    for k in range(8):
        a('v_xor_b32 v%d, %d, v16' % (ZA + k, 32 * k))
    c1 = -2.0 * math.sqrt(2.0 / math.pi) * math.log2(math.e)
    a('v_mov_b32 v%d, %s' % (vC1, f2h(c1)))
    a('v_bfe_u32 v16, v%d, 4, 1' % vL)
    a('v_lshlrev_b32 v0, 10, v16')
    a('v_lshrrev_b32 v16, 5, v%d' % vL)
    a('v_lshl_add_u32 v0, v16, 9, v0')
    a('v_and_b32 v16, 15, v%d' % vL)
    a('v_lshl_add_u32 v0, v16, 4, v0')
    a('s_lshl_b32 s76, s%d, 2' % sM)
    a('s_add_u32 s76, s76, s%d' % sW)
    a('s_mul_i32 s77, s%d, %d' % (sG, 4 * HSLOT))
    a('s_lshl_b32 s63, s76, 11')
    a('s_add_u32 s77, s77, s63')
    a('s_add_u32 s77, s77, %s' % hex(HB))
    flag_line(a, HFL, None, 78)
    a('s_lshl_b32 s63, s76, 2')
    a('s_add_u32 s78, s78, s63')
    stamp(a, 4)
    dstamp(a, 6)
    zf_off(a, sP, 66)
    poll(a, 66, 32, GT)
    stamp(a, 5)
    stage_z(a, sP)
    VZ = GT + 4
    def zread(ks):
        a('ds_read_b128 %s, v%d offset:%d' % (vr(ZR + 4 * (ks % NZR), 4), ZA + (ks & 7), (ks >> 3) * 8192))
    def pload(v, so, nl):
        setexec(a, nl)
        a('buffer_load_dword v%d, v%d, %s, s%d offen sc1' % (v, vL4, R4(WS), so))
        setexec(a, 64)
    def pcheck(v, nl, fail):
        setexec(a, nl)
        a('v_cmp_ne_u32 vcc, s%d, v%d' % (sTAG, v))
        setexec(a, 64)
        a('s_cbranch_vccnz %s' % fail)
    rets = []
    def sv():
        k = len(rets)
        R = 'G1_RET%d' % k
        rets.append(R)
        a('s_cmp_eq_u32 s81, 0')
        a('s_cbranch_scc1 %s' % R)
        a('s_mov_b32 s80, %d' % k)
        a('s_branch G1_SV')
        a.label(R)
    a('s_waitcnt vmcnt(0)')
    cnt_set(a, 5, sP, 1, GT)
    a('s_mov_b32 s84, 0')
    dstamp(a, 7)
    a.label('G1_LOOP')
    a('s_add_u32 s75, s%d, 1' % sP)
    zf_off(a, 75, 73)
    pload(VZ, 73, 32)
    a('s_cmp_gt_u32 s%d, 6' % sP)
    a('s_cselect_b32 s82, 0, 1')
    a('s_min_u32 s72, s%d, 1' % sP)
    a('s_and_b32 s81, s82, s72')
    a('s_or_b32 s81, s81, s84')
    a('s_mov_b32 s83, 0')
    cnt_wait(a, 4, sP, 1, GT)
    a('s_setprio %d' % PR_G1A)
    stamp(a, (sP, 4, 8))
    PF_ = NZR - 1
    for ks in range(PF_):
        zread(ks)
    for ks in range(40):
        a('s_waitcnt lgkmcnt(%d)' % min(PF_ - 1, 39 - ks))
        c = vr(BIAS, 16) if ks == 0 else vr(ACC, 16)
        a('v_mfma_f32_32x32x16_bf16 %s, %s, %s, %s' % (vr(ACC, 16), vr(WB + 4 * ks, 4), vr(ZR + 4 * (ks % NZR), 4), c))
        if ks + PF_ < 40:
            zread(ks + PF_)
        if 32 <= ks + PF_ < 40:
            k = (ks + PF_) & 7
            a('v_xor_b32 v%d, %s, v%d' % (ZA + k, hex(L_ZE), ZA + k))
        if ks in SVP:
            sv()
    stamp(a, (sP, 4, 9))
    a('s_setprio %d' % PR_G1B)
    a('s_cmp_lg_u32 s82, 0')
    a('s_cbranch_scc1 G1_NSIG')
    a('s_waitcnt vmcnt(0)')
    cnt_set(a, 5, sP, 2, GT)
    a('s_mov_b32 s83, 1')
    a.label('G1_NSIG')
    sv()
    fst(a, 0)
    a('s_and_b32 s63, s%d, 3' % sP)
    a('s_mul_i32 s74, s63, %d' % HSLOT)
    a('s_add_u32 s74, s74, s77')
    T = GE
    for t in range(2):
        X = ACC + 8 * t
        for i in range(8):
            a('v_mul_f32 v%d, v%d, v%d' % (T + i, X + i, X + i))
        for i in range(8):
            a('v_fma_f32 v%d, v%d, s%d, v%d' % (T + i, T + i, sC2, vC1))
        for i in range(8):
            a('v_mul_f32 v%d, v%d, v%d' % (T + i, T + i, X + i))
        for i in range(8):
            a('v_exp_f32 v%d, v%d' % (T + i, T + i))
        for i in range(8):
            a('v_add_f32 v%d, 1.0, v%d' % (T + i, T + i))
        for i in range(8):
            a('v_rcp_f32 v%d, v%d' % (T + i, T + i))
        for i in range(8):
            a('v_mul_f32 v%d, v%d, v%d' % (T + i, T + i, X + i))
        o = T + 8 + 4 * t
        for i in range(4):
            a('v_cvt_pk_bf16_f32 v%d, v%d, v%d' % (o + i, T + 2 * i, T + 2 * i + 1))
        both(a, lambda sc1: a('buffer_store_dwordx4 %s, v0, %s, s74 offen offset:%d%s' % (vr(o, 4), R4(WS), 256 * t, ' sc1' if sc1 else '')))
    stamp(a, (sP, 4, 10))
    a('s_lshl_b32 s63, s%d, 8' % sP)
    a('s_add_u32 s84, s78, s63')
    a('s_cmp_eq_u32 s%d, 7' % sP)
    a('s_cbranch_scc1 G1_END')
    a('s_cmp_lg_u32 s83, 0')
    a('s_cbranch_scc1 G1_NEXT')
    a('s_cmp_lg_u32 s%d, 0' % sP)
    a('s_cbranch_scc1 G1_NOCV')
    lds_spin(a, LF_CV, 3, GT + 8)
    a.label('G1_NOCV')
    a('s_mov_b32 s72, 1')
    a('s_mov_b32 s81, 1')
    a('s_mov_b32 s%d, 0' % sCNT)
    a.label('G1_FIN')
    sv()
    a('s_cmp_eq_u32 s81, 0')
    a('s_cbranch_scc1 G1_FIND')
    a('s_add_u32 s%d, s%d, 1' % (sCNT, sCNT))
    a('s_cmp_lt_u32 s%d, s%d' % (sCNT, sLIM))
    a('s_cbranch_scc1 G1_FIN')
    a('s_mov_b32 s%d, 0' % sLIM)
    a.label('G1_FIND')
    fst(a, 1)
    a('s_waitcnt vmcnt(0)')
    cnt_set(a, 5, sP, 2, GT)
    a.label('G1_NEXT')
    fst_flush(a)
    stamp(a, (sP, 4, 11))
    a('s_add_u32 s%d, s%d, 1' % (sP, sP))
    a('s_branch G1_LOOP')
    a.label('G1_END')
    a('s_waitcnt vmcnt(0)')
    both(a, lambda sc1: flag_store(a, 84, GT, sc1))
    endk(a)
    a.label('G1_SV')
    a('s_waitcnt vmcnt(0)')
    a('s_cmp_eq_u32 s84, 0')
    a('s_cbranch_scc1 G1_SVZ')
    both(a, lambda sc1: flag_store(a, 84, GT, sc1))
    a('s_mov_b32 s84, 0')
    a.label('G1_SVZ')
    a('s_and_b32 s81, s82, s72')
    a('s_cbranch_scc0 G1_SVR')
    pcheck(VZ, 32, 'G1_SV3')
    stage_z(a, 75)
    a('s_mov_b32 s82, 0')
    a('s_mov_b32 s81, 0')
    a('s_branch G1_SVR')
    a.label('G1_SV3')
    pload(VZ, 73, 32)
    a.label('G1_SVR')
    for k, R in enumerate(rets[:-1]):
        a('s_cmp_eq_u32 s80, %d' % k)
        a('s_cbranch_scc1 %s' % R)
    a('s_branch %s' % rets[-1])
    a.label('G1X_INIT')
    zf_off(a, sP, 66)
    poll(a, 66, 32, GT)
    stage_z(a, sP)
    a('s_waitcnt vmcnt(0)')
    cnt_set(a, 5, sP, 1, GT)
    lds_spin(a, LF_CV, 3, GT)
    a.label('G1X_LOOP')
    a('s_add_u32 s75, s%d, 1' % sP)
    zf_off(a, 75, 74)
    poll(a, 74, 32, GT)
    cnt_wait(a, 4, sP, 1, GT)
    stage_z(a, 75)
    a('s_waitcnt vmcnt(0)')
    cnt_set(a, 5, sP, 2, GT)
    a('s_add_u32 s%d, s%d, 1' % (sP, sP))
    a('s_cmp_lt_u32 s%d, 7' % sP)
    a('s_cbranch_scc1 G1X_LOOP')
    endk(a)


FLS = int(os.environ.get('FLS', '0'))
RST = [int(x) for x in os.environ.get('RST', '0,2,3').split(',')]
PLS = int(os.environ.get('PLS', '1'))


def younger(hists, cur, targets):
    n = 63
    for h in hists:
        seq = h + cur
        last = max([i for i, x in enumerate(seq) if x in targets], default=-1)
        if last >= 0:
            n = min(n, len(seq) - 1 - last)
    return n


def g2_phase(a):
    a.label('G2_START')
    if STOP == 'front':
        endk(a)
        return
    HBUF, AC, VP, VT = 12, 40, 1, 9
    a('s_sub_u32 s69, s%d, 4' % sW)
    member_ij(a, 67, 68)
    a('s_mul_i32 s66, s67, 27')
    a('s_mul_i32 s63, s69, 7')
    a('s_add_u32 s66, s66, s63')
    a('s_mul_i32 s85, s%d, %d' % (sG, 4 * HSLOT))
    a('s_lshl_b32 s63, s66, 11')
    a('s_add_u32 s85, s85, s63')
    a('s_add_u32 s85, s85, %s' % hex(HB))
    flag_line(a, HFL, None, 74)
    a('s_lshl_b32 s63, s66, 2')
    a('s_add_u32 s74, s74, s63')
    a('s_cmp_eq_u32 s69, 3')
    a('s_cselect_b32 s72, 63, 127')
    a('s_mov_b32 s73, 0')
    a('s_mul_i32 s82, s%d, %d' % (sG, 8 * 40960))
    a('s_mul_i32 s63, s67, 40960')
    a('s_add_u32 s82, s82, s63')
    a('s_mul_i32 s63, s69, 2560')
    a('s_add_u32 s82, s82, s63')
    a('s_add_u32 s82, s82, s68')
    a('s_add_u32 s82, s82, %s' % hex(MR))
    a('s_lshl_b32 s83, s%d, 12' % sG)
    a('s_lshl_b32 s63, s69, 6')
    a('s_add_u32 s83, s83, s63')
    a('s_lshl_b32 s63, s%d, 2' % sM)
    a('s_add_u32 s83, s83, s63')
    a('s_add_u32 s83, s83, %d' % MFL)
    a('s_lshl_b32 s71, s2, 7')
    a('s_lshl_b32 s63, s69, 2')
    a('s_add_u32 s71, s71, s63')
    a('s_add_u32 s71, s71, %d' % DUMMY)
    a('v_and_b32 v0, 15, v%d' % vL)
    a('v_lshrrev_b32 v4, 4, v%d' % vL)
    a('v_and_b32 v5, 1, v4')
    a('v_lshlrev_b32 v5, 3, v5')
    a('v_lshrrev_b32 v8, 1, v4')
    a('v_add_u32 v5, v5, v8')
    a('v_mul_u32_u24 v6, 1280, v5')
    a('v_mad_u32_u24 v6, v0, 12, v6')
    a('v_mul_u32_u24 v5, %d, v5' % RROW)
    a('v_mad_u32_u24 v5, v0, 24, v5')
    a('s_mul_i32 s63, s69, %d' % (2 * RROW))
    a('s_add_u32 s63, s63, %d' % L_RB)
    a('v_add_u32 v5, s63, v5')
    a('v_mul_u32_u24 v0, %d, v0' % RROW)
    a('v_lshl_add_u32 v0, v4, 4, v0')
    a('s_mul_i32 s63, s69, %d' % RBS)
    a('s_add_u32 s63, s63, %d' % L_RB)
    a('v_add_u32 v0, s63, v0')
    a('v_mov_b32 v4, %d' % LF_R1)
    a('s_lshl_b32 s63, s69, 2')
    a('v_add_u32 v8, s63, v4')
    a('s_mov_b32 s%d, 0' % sP)
    a('s_mov_b32 s84, s71')
    a('s_mov_b32 s80, 0')

    def h_offs(sSig):
        a('s_and_b32 s63, s%d, 3' % sSig)
        a('s_mul_i32 s70, s63, %d' % HSLOT)
        a('s_add_u32 s70, s70, s85')
        a('s_add_u32 s78, s70, 4096')
        a('s_add_u32 s79, s70, 8192')
        a('s_add_u32 s77, s70, 12288')
        a('s_cmp_eq_u32 s69, 3')
        a('s_cselect_b32 s77, 0x10000000, s77')
    def hload(s, hh):
        so = [70, 70, 78, 78, 79, 79, 77][s]
        a('buffer_load_dwordx4 %s, v%d, %s, s%d offen offset:%d sc1' % (vr(HBUF + 4 * s, 4), vL16, R4(WS), so, 2048 * (s & 1 if s < 6 else 0) + 1024 * hh))
    def bulk(sSig):
        h_offs(sSig)
        for s in range(7):
            hload(s, 0)
    def pload():
        a('s_mov_b64 exec, s[72:73]')
        a('buffer_load_dword v%d, v%d, %s, s74 offen sc1' % (VP, vL4, R4(WS)))
        a('s_mov_b64 exec, -1')
    def pcheck(fail):
        a('s_mov_b64 exec, s[72:73]')
        a('v_cmp_ne_u32 vcc, s%d, v%d' % (sTAG, VP))
        a('s_mov_b64 exec, -1')
        a('s_cbranch_vccnz %s' % fail)
    def flag():
        both(a, lambda sc1: flag_store(a, 84, VT, sc1))
        a('s_mov_b32 s84, s71')
    def mfmas(s, hh, extra=None):
        for t in range(6):
            acc = AC + 4 * (6 * hh + t)
            a('v_mfma_f32_16x16x32_bf16 %s, %s, %s, %s' % (vr(acc, 4), vr(WB2 + (s * 6 + t) * 4, 4), vr(HBUF + 4 * s, 4), '0' if s == 0 else vr(acc, 4)))
            if extra and t < len(extra):
                emit(a, extra[t])
    def red_write(hh):
        o = [['ds_write_b128 v0, %s offset:%d' % (vr(AC + 4 * (6 * hh + t), 4), 16 * RROW * hh + 64 * t)] for t in range(6)]
        o[5] += ['s_add_u32 s80, s80, 1', 'v_mov_b32 v%d, s80' % VT, 'ds_write_b32 v8, v%d' % VT]
        return o
    def red_peek(hh):
        a('ds_read_b128 %s, v4' % vr(AC + 24 * hh, 4))
    def red_check(hh):
        X = AC + 24 * hh
        L, C, D = a.newlabel('RL'), a.newlabel('RC'), a.newlabel('RD')
        a('s_mov_b32 s%d, 0' % sCNT)
        a('s_branch %s' % C)
        a.label(L)
        red_peek(hh)
        a('s_add_u32 s%d, s%d, 1' % (sCNT, sCNT))
        a.label(C)
        a('s_waitcnt lgkmcnt(0)')
        a('v_min_u32 v%d, v%d, v%d' % (X, X, X + 1))
        a('v_min3_u32 v%d, v%d, v%d, v%d' % (X, X, X + 2, X + 3))
        a('v_cmp_gt_u32 vcc, s80, v%d' % X)
        a('s_cbranch_vccz %s' % D)
        a('s_cmp_lt_u32 s%d, %d' % (sCNT, 4 * LIMIT))
        a('s_cbranch_scc1 %s' % L)
        a.label(D)
        for k in range(3):
            for w in range(4):
                a('ds_read_b64 %s, v5 offset:%d' % (vr(X + 8 * k + 2 * w, 2), RBS * w + 16 * RROW * hh + 8 * k))
    def red_fin(hh, sSig):
        X = AC + 24 * hh
        a('s_and_b32 s63, s%d, 3' % sSig)
        a('s_mul_i32 s76, s63, 81920')
        a('s_add_u32 s76, s76, s82')
        if hh:
            a('s_add_u32 s76, s76, 20480')
        for k in range(3):
            a('s_waitcnt lgkmcnt(%d)' % (8 - 4 * k))
            a('v_pk_add_f32 %s, %s, %s' % (P2(X + 8 * k), P2(X + 8 * k), P2(X + 8 * k + 2)))
            a('v_pk_add_f32 %s, %s, %s' % (P2(X + 8 * k + 4), P2(X + 8 * k + 4), P2(X + 8 * k + 6)))
            a('v_pk_add_f32 %s, %s, %s' % (P2(X + 8 * k), P2(X + 8 * k), P2(X + 8 * k + 4)))
        for k in range(3):
            a('v_cvt_pk_bf16_f32 v%d, v%d, v%d' % (X + 2 + k, X + 8 * k, X + 8 * k + 1))
        both(a, lambda sc1: a('buffer_store_dwordx3 %s, v6, %s, s76 offen%s' % (vr(X + 2, 3), R4(WS), ' sc1' if sc1 else '')))
    def pend(hh, sSig):
        a('s_lshl_b32 s63, s%d, 9' % sSig)
        a('s_add_u32 s84, s83, s63')
        if hh:
            a('s_add_u32 s84, s84, 256')

    BULK = ['L%d' % s for s in range(7)]

    def phase(hh, hists, red, loads, s0=0, cur=None, a0=False, tag=''):
        cur = list(cur or [])
        oh = 1 - hh
        done = set()
        for s in range(s0, 7):
            tg = {'L%d' % s}
            fl = (s == FLS and not a0)
            if fl:
                tg |= {'ST'}
            if hh == 1 and s == 0:
                tg |= {'PL'}
            n = younger(hists, cur, tg)
            a('s_waitcnt vmcnt(%d)' % n)
            if fl:
                flag()
                cur.append('FL')
            ex = None
            if red and s == RST[0]:
                ex = red_write(oh)
            mfmas(s, hh, ex)
            if red and s == RST[1] - 1:
                red_peek(oh)
            if red and s == RST[1]:
                red_check(oh)
            if s == RST[2]:
                if red:
                    if s < FLS:
                        raise ValueError
                    red_fin(oh, 75 if hh == 0 else sP)
                    pend(oh, 75 if hh == 0 else sP)
                    cur.append('st')
                elif a0:
                    a('s_waitcnt vmcnt(%d)' % len(cur))
                    flag()
                    cur.append('st')
            if hh == 1 and s == 0:
                return cur
            if loads:
                hload(s, oh)
                cur.append('l%d' % s)
            if hh == 0 and s == PLS:
                a('s_add_u32 s74, s74, 256')
                pload()
                cur.append('pl')
        return [x.upper() for x in cur]

    class Nul:
        def __call__(self, s): pass
        def label(self, n): pass
        def newlabel(self, b): return b
    real = a
    a = Nul()
    hA1 = phase(0, [BULK], True, True)
    hA0 = phase(0, [BULK], False, True, a0=True)
    c0 = phase(1, [hA1, hA0], True, True)
    hBg = phase(1, [hA1, hA0], True, True, 1, c0 + ['l0'])
    a = real
    hA1 = [x if x != 'FL' else 'X' for x in hA1]
    hA0 = [x if x != 'FL' else 'X' for x in hA0]
    hBg = [x if x != 'FL' else 'X' for x in hBg]

    a.label('G2_POLL')
    a('s_mov_b32 s%d, 0' % sCNT)
    a.label('G2_PL')
    pload()
    a('s_add_u32 s%d, s%d, 1' % (sCNT, sCNT))
    a('s_waitcnt vmcnt(0)')
    pcheck('G2_PF')
    a('s_branch G2_PD')
    a.label('G2_PF')
    a('s_cmp_lt_u32 s%d, s%d' % (sCNT, sLIM))
    a('s_cbranch_scc1 G2_PL')
    a('s_mov_b32 s%d, 0' % sLIM)
    a.label('G2_PD')
    bulk(sP)
    a.label('G2_A0')
    a('s_setprio %d' % PR_G2)
    stamp(a, (sP, 4, 12))
    phase(0, [BULK], False, True, a0=True)
    a('s_branch G2_B')
    a.label('G2_A1')
    stamp(a, (sP, 4, 12))
    phase(0, [hBg], True, True)
    a.label('G2_B')
    stamp(a, (sP, 4, 13))
    c0 = phase(1, [hA1, hA0], True, True)
    a('s_add_u32 s75, s%d, 1' % sP)
    a('s_cmp_eq_u32 s%d, 7' % sP)
    a('s_cbranch_scc1 G2_BW')
    pcheck('G2_BW')
    h_offs(75)
    hload(0, 0)
    phase(1, [hA1, hA0], True, True, 1, c0 + ['l0'])
    stamp(a, (sP, 4, 14))
    a('s_mov_b32 s75, s%d' % sP)
    a('s_add_u32 s%d, s%d, 1' % (sP, sP))
    a('s_branch G2_A1')
    a.label('G2_BW')
    pload()
    hw = phase(1, [hA1, hA0], True, False, 1, c0 + ['pl'])
    a('s_setprio %d' % PR_G2R)
    stamp(a, (sP, 4, 14))
    a('s_waitcnt vmcnt(%d)' % younger([[]], hw, {'PL'}))
    a('s_mov_b32 s81, 0')
    a('s_cmp_eq_u32 s%d, 7' % sP)
    a('s_cbranch_scc1 G2_T1')
    pcheck('G2_T1')
    bulk(75)
    a('s_mov_b32 s81, 1')
    a.label('G2_T1')
    for g in red_write(1):
        emit(a, g)
    red_peek(1)
    a('s_cmp_lg_u32 s81, 0')
    a('s_cbranch_scc1 G2_T2')
    a('s_waitcnt vmcnt(0)')
    a.label('G2_T2')
    a('s_waitcnt vmcnt(7)')
    flag()
    red_check(1)
    red_fin(1, sP)
    pend(1, sP)
    stamp(a, (sP, 4, 15))
    a('s_add_u32 s%d, s%d, 1' % (sP, sP))
    a('s_cmp_lg_u32 s81, 0')
    a('s_cbranch_scc1 G2_A0')
    a('s_waitcnt vmcnt(0)')
    flag()
    a('s_cmp_lt_u32 s%d, 8' % sP)
    a('s_cbranch_scc1 G2_POLL')
    endk(a)


def kernel():
    a = Asm()
    c1 = -2.0 * math.sqrt(2.0 / math.pi) * math.log2(math.e)
    a('s_cmp_ge_u32 s2, 256')
    a('s_cbranch_scc1 END')
    a('s_load_dwordx2 s[26:27], s[0:1], 104')
    a('s_load_dwordx4 s[4:7], s[0:1], 0')
    a('s_load_dwordx4 s[8:11], s[0:1], 16')
    a('s_load_dwordx4 s[12:15], s[0:1], 32')
    a('s_load_dwordx4 s[16:19], s[0:1], 56')
    a('s_load_dwordx4 s[20:23], s[0:1], 72')
    a('s_load_dwordx2 s[24:25], s[0:1], 88')
    a('v_lshrrev_b32 v1, 6, v0')
    a('v_readfirstlane_b32 s%d, v1' % sW)
    a('v_and_b32 v%d, 63, v0' % vL)
    a('v_lshlrev_b32 v%d, 4, v%d' % (vL16, vL))
    a('v_lshlrev_b32 v%d, 2, v%d' % (vL4, vL))
    a('s_and_b32 s%d, s2, 7' % sX)
    a('s_lshr_b32 s%d, s2, 3' % sI)
    a('s_and_b32 s%d, s%d, 15' % (sM, sI))
    a('s_lshr_b32 s%d, s%d, 4' % (sG, sI))
    a('s_lshl_b32 s63, s%d, 1' % sX)
    a('s_add_u32 s%d, s%d, s63' % (sG, sG))
    a('s_getreg_b32 s%d, hwreg(HW_REG_XCC_ID, 0, 3)' % sXCC)
    a('s_mov_b32 s%d, %d' % (sLIM, LIMIT))
    a('s_mov_b32 s%d, 0xffff0000' % sHI)
    a('s_mov_b32 s%d, 0x3acccccd' % sINV)
    a('s_mov_b32 s%d, 0x3727c5ac' % sEPS)
    a('s_mov_b32 s%d, %s' % (sC2, f2h(c1 * 0.044715)))
    a('s_mov_b32 s85, 0')
    a('s_mov_b32 s%d, 0x3f80' % sLO1)
    a('s_mov_b32 s%d, 0x3f800000' % sHI1)
    a('s_mov_b32 s%d, 0' % sSLOW)
    if STAMP:
        a('v_mov_b32 v%d, 0' % vST)
    for r in (8, 12, 13):
        a('v_mov_b32 v%d, 0' % r)
    a('v_add_u32 v4, %d, v%d' % (L_SYNC, vL4))
    a('ds_write_b32 v4, v8')
    a('s_waitcnt lgkmcnt(0)')
    srd(a, WS, pWS, '0x10000000')
    for r in (RA, RB, RC, RD):
        a('s_mov_b64 s[%d:%d], s[%d:%d]' % (r, r + 1, WS, WS + 1))
        a('s_mov_b64 s[%d:%d], s[%d:%d]' % (r + 2, r + 3, WS + 2, WS + 3))
    stamp(a, 0)
    if DBG:
        a('s_load_dwordx2 s[92:93], s[0:1], 96')
        a('s_mov_b32 s94, 256')
        a('s_mov_b32 s95, 0x20000')
        a('s_waitcnt lgkmcnt(0)')
        a('s_cmp_eq_u32 s2, 40')
        a('s_cselect_b32 s91, 1, 0')
        dstamp(a, 0)
        a('s_cmp_eq_u32 s2, 112')
        a('s_cselect_b32 s91, 1, s91')
    a('s_sub_u32 s63, s%d, 4' % sW)
    a('s_cmp_lt_u32 s63, 3')
    a('s_cbranch_scc1 CONVW')
    kv_phase(a)
    conv_phase(a)
    s_phase(a)
    g1_phase(a)
    g2_phase(a)
    a.label('END')
    a('s_endpgm')
    return a.lines


def build():
    ref = open('cdna_kernels/%s.s.ref' % NAME).read().split('\n')
    head = [l for l in ref if l.startswith(';') and '@launch' not in l and 'Override launch' not in l and 'grid=ceil' not in l]
    s = '\n'.join(head) + '\n'
    s += '; @launch grid=(256,1,1) block=(512,1,1) lds=163840\n'
    s += '.amdgcn_target "amdgcn-amd-amdhsa--gfx950"\n.text\n'
    s += kernel_text(NAME + '_kernel', kernel(), 256)
    s += '.section .rodata,"a"\n'
    s += descriptor_text(NAME + '_kernel', 256, 102)
    return s


if __name__ == '__main__':
    for n in range(192):
        assert (n * 5462) >> 16 == n // 12
    open(sys.argv[1], 'w').write(build())
```

```python
import sys, os, math, struct
from asmlib import *

NAME = 'interleave_layers__ssm_conv_h3__mixer_channel_mlp__prompt'
E = lambda k, d: int(os.environ.get(k, d))
STAMP, FORCE_SLOW, LIMIT = E('STAMP', 0), E('FORCE_SLOW', 0), 20000
NA1, NA2 = E('NA1', 12), E('NA2', 0)
PA, P1, P2_ = E('PA', 24), E('P1', 12), E('P2', 6)
PF1, PF2 = E('PF1', 1), E('PF2', 1)
B0 = E('B0', 1)
RL = E('RL', 1)
CU_ = [int(x) for x in os.environ.get('CUN', '8,4,2,2,2').split(',')]
HFK, PLK, DST = E('HFK', 8), E('PLK', 12), E('DST', 6)
PRIO = [int(x) for x in os.environ.get('PRIO', '1,2,0').split(',')]
PRK = E('PRK', 8)

EPOCH, HELLO, KVFA, KVFB, YF, ZF, HFL, MFL, DUMMY = 0, 0x40000, 0x2000, 0x4000, 0x60000, 0xC000, 0x10000, 0x20000, 0x30000
KVA, KVB, YT, ZI, HB, MR = 0x100000, 0x400000, 0x700000, 0x1000000, 0x1400000, 0x1C00000
ZSL, HSL, MSL = 40960, 114688, 122880
STAMPS = 0x8000000
ROWS_B = 2048 * 1280
L_KST, L_VST, L_OST, L_SYNC = 122880, 135168, 147456, 163328
CSL, CUO, HSTR = 21248, 16640, 4160
RING = {1: 45056, 2: 86016}
LF_LND, LF_DON, LF_I0 = L_SYNC, L_SYNC + 32, L_SYNC + 64
pQ, pK, pV, pSH, pH, pD, pW1, pB1, pW2, pB2, pOUT, pWS = 4, 6, 8, 10, 12, 14, 16, 18, 20, 22, 24, 26
sX, sW, sI, sQ = 28, 29, 30, 31
WS, RA, RB, RC, RD = 32, 36, 40, 44, 48
sHF, sTAG, sXCC, sSLOW, sP, sLIM, sCNT = 52, 53, 54, 55, 56, 57, 58
sHI, sINV, sEPS, sC2 = 59, 60, 61, 62
sLO1, sHI1 = 89, 90
sST = 86
sWO, sWL, sWS = 91, 92, 93
vL, vL16, vL4, vST = 1, 2, 3, 7
vWO, vWT = 8, 9
WB = {1: 96, 2: 112}
NK = {1: 40, 2: 36}
RS = {1: 3456, 2: 1280}
NA = {1: NA1, 2: NA2}
NR = {1: 29, 2: 19}
NC = {1: 11, 2: 17}
DUM = {1: 252, 2: 96}
assert NA1 <= 19 and NA2 in (0, 3, 6, 9)

f2h = lambda x: hex(struct.unpack('<I', struct.pack('<f', x))[0])
R4 = lambda d: 's[%d:%d]' % (d, d + 3)
P2 = lambda r: 'v[%d:%d]' % (r, r + 1)


def srd(a, d, p, size, add=None):
    if add is None:
        a('s_mov_b32 s%d, s%d' % (d, p)); a('s_mov_b32 s%d, s%d' % (d + 1, p + 1))
    else:
        a('s_add_u32 s%d, s%d, %s' % (d, p, add)); a('s_addc_u32 s%d, s%d, 0' % (d + 1, p + 1))
    a('s_mov_b32 s%d, %s' % (d + 2, size)); a('s_mov_b32 s%d, 0x20000' % (d + 3))


def stamp(a, idx):
    if not STAMP:
        return
    a('%s s[%d:%d]' % ('s_memtime' if os.environ.get('CLK') else 's_memrealtime', sST, sST + 1))
    if isinstance(idx, tuple):
        a('s_mul_i32 s88, s%d, %d' % (idx[0], idx[1]))
        a('s_add_u32 s88, s88, %d' % idx[2])
        a('s_lshl_b64 exec, 1, s88')
        a('s_waitcnt lgkmcnt(0)')
        a('v_mov_b32 v%d, s%d' % (vST, sST))
        a('s_mov_b64 exec, -1')
    else:
        a('s_waitcnt lgkmcnt(0)')
        a('v_writelane_b32 v%d, s%d, %d' % (vST, sST, idx))


def endk(a):
    if STAMP:
        a('s_waitcnt vmcnt(0)')
        stamp(a, 63)
        a('s_lshl_b32 s63, s2, 3')
        a('s_add_u32 s63, s63, s%d' % sW)
        a('s_lshl_b32 s63, s63, 8')
        a('s_add_u32 s63, s63, %s' % hex(STAMPS))
        a('s_mov_b64 exec, -1')
        a('buffer_store_dword v%d, v%d, %s, s63 offen' % (vST, vL4, R4(WS)))
    a('s_endpgm')


def setexec(a, n):
    if n == 64:
        a('s_mov_b64 exec, -1')
    elif n <= 6:
        a('s_mov_b64 exec, %d' % ((1 << n) - 1))
    elif n <= 32:
        a('s_mov_b32 exec_lo, %s' % ('-1' if n == 32 else hex((1 << n) - 1))); a('s_mov_b32 exec_hi, 0')
    else:
        a('s_mov_b32 exec_lo, -1'); a('s_mov_b32 exec_hi, %s' % hex((1 << (n - 32)) - 1))


def emit(a, lst):
    for l in lst:
        a(l)


def flag_store(a, soff, vT, sc1):
    a('v_mov_b32 v%d, s%d' % (vT, sTAG))
    a('s_mov_b64 exec, 1')
    a('buffer_store_dword v%d, off, %s, s%d%s' % (vT, R4(WS), soff, ' sc1' if sc1 else ''))
    a('s_mov_b64 exec, -1')


def hello_load(a, vT, st):
    a('s_lshl_b32 s%d, s%d, 12' % (st, sX))
    a('s_add_u32 s%d, s%d, %d' % (st, st, HELLO))
    a('v_and_b32 v%d, 0x7c, v%d' % (vT + 2, vL4))
    a('v_lshlrev_b32 v%d, 5, v%d' % (vT + 2, vT + 2))
    a('buffer_load_dword v%d, v%d, %s, s%d offen sc1' % (vT, vT + 2, R4(WS), st))


def hello_store(a, young):
    a('s_lshl_b32 s66, s2, 7')
    a('s_and_b32 s66, s66, 0x380')
    a('s_lshl_b32 s66, s66, 5')
    a('s_lshl_b32 s67, s%d, 7' % sI)
    a('s_add_u32 s66, s66, s67')
    a('s_add_u32 s66, s66, %d' % HELLO)
    a('s_cmp_eq_u32 s%d, 7' % sW)
    a('s_cselect_b32 s67, 0, 0x10000000')
    a('v_mov_b32 v5, s67')
    a('s_lshl_b32 s67, s%d, 1' % sXCC)
    a('s_waitcnt vmcnt(%d)' % young)
    get_tag(a, 4)
    a('s_xor_b32 s67, s67, s%d' % sTAG)
    a('v_mov_b32 v4, s67')
    a('s_mov_b64 exec, 1')
    a('buffer_store_dword v4, v5, %s, s66 offen sc1' % R4(WS))
    a('s_mov_b64 exec, -1')


def hello_check(a, vT, st, young):
    L, C, D = a.newlabel('HL'), a.newlabel('HC'), a.newlabel('HD')
    a('s_mov_b32 s%d, 0' % sCNT)
    a('s_waitcnt vmcnt(%d)' % young)
    a('s_branch %s' % C)
    a.label(L)
    a('buffer_load_dword v%d, v%d, %s, s%d offen sc1' % (vT, vT + 2, R4(WS), st))
    a('s_add_u32 s%d, s%d, 1' % (sCNT, sCNT))
    a('s_waitcnt vmcnt(0)')
    a.label(C)
    a('v_xor_b32 v%d, s%d, v%d' % (vT, sTAG, vT))
    a('v_cmp_lt_u32 vcc, 15, v%d' % vT)
    a('v_and_b32 v%d, 1, v%d' % (vT + 1, vT))
    a('v_cmp_ne_u32 s[64:65], 0, v%d' % (vT + 1))
    a('s_or_b64 vcc, vcc, s[64:65]')
    a('s_cbranch_vccz %s' % D)
    a('s_cmp_lt_u32 s%d, s%d' % (sCNT, sLIM))
    a('s_cbranch_scc1 %s' % L)
    a('s_mov_b32 s%d, 0' % sLIM)
    a.label(D)
    a('s_lshl_b32 s%d, s%d, 1' % (st, sXCC))
    a('v_cmp_ne_u32 vcc, s%d, v%d' % (st, vT))
    a('s_cmp_lg_u64 vcc, 0')
    a('s_cselect_b32 s%d, 1, %d' % (sSLOW, FORCE_SLOW))


def get_tag(a, vE):
    a('v_readfirstlane_b32 s%d, v%d' % (sTAG, vE))
    a('s_mul_i32 s%d, s%d, 0x9E3779B1' % (sTAG, sTAG))
    a('s_add_u32 s%d, s%d, 0x7F4A7C15' % (sTAG, sTAG))


class Ool:
    def __init__(self, a):
        self.a, self.q = a, []
    def add(self, fn):
        self.q.append(fn)
    def flush(self):
        while self.q:
            self.q.pop(0)()


def both2(a, ool, texts):
    if isinstance(texts, str):
        texts = [texts]
    S, R = a.newlabel('BS'), a.newlabel('BR')
    def slow():
        a.label(S)
        for t in texts:
            a(t + ' sc1' if t.startswith('buffer_') else t)
        a('s_branch %s' % R)
    ool.add(slow)
    return ['s_cmp_lg_u32 s%d, 0' % sSLOW, 's_cbranch_scc1 %s' % S] + texts + [R + ':']


def oob_lane0(a, v):
    a('v_cmp_eq_u32 vcc, 0, v%d' % vL4)
    a('v_mov_b32 v%d, 0x10000000' % v)
    a('v_cndmask_b32_e64 v%d, v%d, 0, vcc' % (v, v))


def cnt_min(X):
    return ['v_min_u32 v%d, v%d, v%d' % (X, X, X + 1), 'v_min3_u32 v%d, v%d, v%d, v%d' % (X, X, X + 2, X + 3)]


def cnt_spin(a, ool, X, vLine, vCnt, pre=None):
    S, R = a.newlabel('CS'), a.newlabel('CR')
    def spin():
        L = a.newlabel('CL')
        a.label(S)
        if pre:
            pre()
        a('s_mov_b32 s%d, 0' % sCNT)
        a.label(L)
        a('ds_read_b128 %s, v%d' % (vr(X, 4), vLine))
        a('s_add_u32 s%d, s%d, 1' % (sCNT, sCNT))
        a('s_waitcnt lgkmcnt(0)')
        emit(a, cnt_min(X))
        a('v_cmp_gt_u32 vcc, v%d, v%d' % (vCnt, X))
        a('s_cbranch_vccz %s' % R)
        a('s_cmp_lt_u32 s%d, %d' % (sCNT, 4 * LIMIT))
        a('s_cbranch_scc1 %s' % L)
        a('s_branch %s' % R)
    ool.add(spin)
    a('s_waitcnt lgkmcnt(0)')
    emit(a, cnt_min(X))
    a('v_cmp_gt_u32 vcc, v%d, v%d' % (vCnt, X))
    a('s_cbranch_vccnz %s' % S)
    a.label(R)


def block_poll(a, v, vOff, so):
    L, D = a.newlabel('PL'), a.newlabel('PD')
    a('s_mov_b32 s%d, 0' % sCNT)
    a.label(L)
    a('buffer_load_dword v%d, v%d, %s, s%d offen sc1' % (v, vOff, R4(WS), so))
    a('s_add_u32 s%d, s%d, 1' % (sCNT, sCNT))
    a('s_waitcnt vmcnt(0)')
    a('v_cmp_ne_u32 vcc, s%d, v%d' % (sTAG, v))
    a('s_cbranch_vccz %s' % D)
    a('s_cmp_lt_u32 s%d, s%d' % (sCNT, sLIM))
    a('s_cbranch_scc1 %s' % L)
    a('s_mov_b32 s%d, 0' % sLIM)
    a.label(D)


def dummy_off(a, sD):
    a('s_lshl_b32 s%d, s2, 7' % sD)
    a('s_lshl_b32 s63, s%d, 2' % sW)
    a('s_add_u32 s%d, s%d, s63' % (sD, sD))
    a('s_add_u32 s%d, s%d, %d' % (sD, sD, DUMMY))


class LdsQ:
    def __init__(self, a):
        self.a, self.q = a, []
    def issue(self, key, text):
        self.a(text); self.q.append(key)
    def wait(self, keys):
        last = -1
        for i, k in enumerate(self.q):
            if k in keys:
                last = i
        if last >= 0:
            n = len(self.q) - 1 - last
            self.a('s_waitcnt lgkmcnt(%d)' % n)
            self.q = self.q[last + 1:]


def g2_ids(a, sk, sc):
    a('s_sub_u32 s%d, s%d, 14' % (sc, sI))
    a('s_mul_i32 s%d, s%d, 52' % (sk, sc))
    a('s_lshr_b32 s%d, s%d, 8' % (sk, sk))
    a('s_mul_i32 s63, s%d, 5' % sk)
    a('s_sub_u32 s%d, s%d, s63' % (sc, sc))


def w_setup(a, g):
    if g == 1:
        srd(a, RA, pW1, 640 * 3456)
        a('s_lshl_b32 s66, s%d, 8' % sI)
    else:
        srd(a, RA, pW2, 1728 * 1280)
        g2_ids(a, 66, 67)
        a('s_mul_i32 s66, s66, %d' % (576 * 1280))
        a('s_lshl_b32 s67, s67, 8')
        a('s_add_u32 s66, s66, s67')
    a('v_lshrrev_b32 v10, 4, v%d' % vL)
    a('v_bfe_u32 v11, v%d, 2, 2' % vL)
    a('v_xor_b32 v12, v10, v11')
    a('v_and_b32 v13, 3, v%d' % vL)
    a('v_lshl_add_u32 v12, v12, 2, v13')
    a('v_mul_u32_u24 v%d, %d, v10' % (vWO, RS[g]))
    a('v_lshl_add_u32 v%d, v12, 4, v%d' % (vWO, vWO))
    a('v_add_u32 v%d, s66, v%d' % (vWO, vWO))
    a('v_lshrrev_b32 v12, 5, v%d' % vL)
    a('v_lshl_add_u32 v12, v12, 3, v11')
    a('v_lshlrev_b32 v%d, 8, v12' % vWT)
    a('v_xor_b32 v12, s%d, v11' % sQ)
    a('v_lshl_add_u32 v%d, v12, 6, v%d' % (vWT, vWT))
    a('v_and_b32 v12, 1, v13')
    a('v_lshl_add_u32 v%d, v12, 5, v%d' % (vWT, vWT))
    a('v_and_b32 v12, 1, v10')
    a('v_lshl_add_u32 v%d, v12, 4, v%d' % (vWT, vWT))
    a('v_lshrrev_b32 v12, 1, v13')
    a('v_lshl_add_u32 v%d, v12, 3, v%d' % (vWT, vWT))


def w_begin(a, g, ks0, sIdx, sub, nw, lds):
    a('s_sub_u32 s63, s%d, %d' % (sIdx, sub))
    a('s_lshl_b32 s%d, s63, 10' % sWL)
    a('s_add_u32 s%d, s%d, %d' % (sWL, sWL, lds))
    a('s_add_u32 s63, s63, %d' % (4 * ks0))
    a('s_mul_i32 s%d, s63, %d' % (sWO, 4 * RS[g]))
    a('s_mov_b32 s%d, %d' % (sWS, 4 * RS[g] * nw))


def w_piece(nw):
    return ['s_mov_b32 m0, s%d' % sWL, 's_add_u32 s%d, s%d, %d' % (sWL, sWL, 1024 * nw),
            'buffer_load_dwordx4 v%d, %s, s%d offen lds' % (vWO, R4(RA), sWO), 's_add_u32 s%d, s%d, s%d' % (sWO, sWO, sWS)]


def w_stream(a, n, nw, P, dummy=None):
    if n == 0:
        return
    L = a.newlabel('WS')
    a('s_mov_b32 s63, %d' % n)
    a.label(L)
    a('s_waitcnt vmcnt(%d)' % (P - 1))
    if dummy is None:
        emit(a, w_piece(nw))
    else:
        a('buffer_load_dwordx4 %s, v%d, %s, s%d offen' % (vr(dummy, 4), vWO, R4(RA), sWO))
        a('s_add_u32 s%d, s%d, s%d' % (sWO, sWO, sWS))
    a('s_sub_u32 s63, s63, 1')
    a('s_cmp_lg_u32 s63, 0')
    a('s_cbranch_scc1 %s' % L)


def w_read(a, g, ks0, n, lds):
    a('v_add_u32 v10, %d, v%d' % (lds, vWT))
    for k in range(n):
        if k == 16:
            a('v_add_u32 v10, 0x10000, v10')
        for hh in range(2):
            a('ds_read_b64_tr_b16 %s, v10 offset:%d' % (vr(WB[g] + 4 * (ks0 + k) + 2 * hh, 2), 4096 * (k & 15) + 1024 * hh))
        if k % 4 == 3:
            a('s_waitcnt lgkmcnt(6)')
    a('s_waitcnt lgkmcnt(0)')


TAP = 16
HQ, HD = (16, 100), (40, 124)
QT = 76


def conv_channel(a, g, sSlot, sCh, sDum):
    if g == 1:
        a('s_lshl_b32 s%d, s%d, 1' % (sCh, sI))
    else:
        a('s_lshl_b32 s%d, s%d, 2' % (sCh, sI))
        a('s_sub_u32 s%d, s%d, 28' % (sCh, sCh))
    a('s_add_u32 s%d, s%d, s%d' % (sCh, sCh, sSlot))
    a('s_cmp_ge_u32 s%d, 80' % sCh)
    a('s_cselect_b32 s%d, 1, 0' % sDum)
    a('s_cselect_b32 s63, 80, 0')
    a('s_sub_u32 s%d, s%d, s63' % (sCh, sCh))


def ssm_loads(a, g, sSlot, n):
    conv_channel(a, g, sSlot, 66, 67)
    a('s_mul_i32 s67, s%d, 80' % sX)
    a('s_add_u32 s66, s66, s67')
    a('s_lshl_b32 s66, s66, 12')
    srd(a, RD, pH, 4096, 's66')
    a('v_subrev_u32 v10, 32, v%d' % vL16)
    a('v_subrev_u32 v11, 16, v%d' % vL16)
    a('v_add_u32 v12, 992, v%d' % vL16)
    a('buffer_load_dwordx4 %s, v10, %s, 0 offen' % (vr(HQ[n], 4), R4(RD)))
    a('buffer_load_dwordx2 %s, v11, %s, 0 offen' % (vr(HD[n], 2), R4(RD)))
    for j in range(1, 5):
        a('buffer_load_dwordx4 %s, v12, %s, 0 offen offset:%d' % (vr(HQ[n] + 4 * j, 4), R4(RD), 1024 * (j - 1)))
        a('buffer_load_dwordx2 %s, v12, %s, 0 offen offset:%d' % (vr(HD[n] + 2 * j, 2), R4(RD), 1024 * (j - 1) + 16))


def ssm_build(a, sSlot, n):
    a('s_mul_i32 s66, s%d, %d' % (sSlot, CSL))
    a('v_add_u32 v5, s66, v%d' % vL16)
    for r in range(4):
        a('v_mov_b32 v%d, 0' % (56 + r))
    setexec(a, 32)
    a('ds_write_b128 v5, v[56:59] offset:%d' % (CUO + 4096))
    setexec(a, 64)
    for j in range(5):
        if j == 4:
            a('s_mov_b64 exec, 3')
        d = [HQ[n] + 4 * j + e for e in range(4)] + [HD[n] + 2 * j, HD[n] + 2 * j + 1]
        T1, T2, T3 = 60 + 12 * (j & 1), 64 + 12 * (j & 1), 68 + 12 * (j & 1)
        a('ds_write_b128 v5, %s offset:%d' % (vr(d[0], 4), 1024 * j))
        for e in range(4):
            a('v_alignbit_b32 v%d, v%d, v%d, 16' % (T1 + e, d[e + 1], d[e]))
        a('ds_write_b128 v5, %s offset:%d' % (vr(T1, 4), 1024 * j + HSTR))
        for e in range(4):
            a('v_mov_b32 v%d, v%d' % (T2 + e, d[e + 1]))
        a('ds_write_b128 v5, %s offset:%d' % (vr(T2, 4), 1024 * j + 2 * HSTR))
        for e in range(4):
            a('v_alignbit_b32 v%d, v%d, v%d, 16' % (T3 + e, d[e + 2], d[e + 1]))
        a('ds_write_b128 v5, %s offset:%d' % (vr(T3, 4), 1024 * j + 3 * HSTR))
        if j & 1:
            a('s_waitcnt lgkmcnt(4)')
    setexec(a, 64)


def row_table(a, T, tmp):
    a('s_movk_i32 s63, 820')
    for k in range(5):
        a('v_add_u32 v%d, %d, v%d' % (tmp, 64 * k, vL))
        a('v_mul_u32_u24 v%d, s63, v%d' % (tmp + 1, tmp))
        a('v_lshrrev_b32 v%d, 16, v%d' % (tmp + 1, tmp + 1))
        a('v_lshlrev_b32 v%d, 1, v%d' % (tmp + 1, tmp + 1))
        a('v_xor_b32 v%d, v%d, v%d' % (tmp, tmp, tmp + 1))
        a('v_lshlrev_b32 v%d, 4, v%d' % (T + k, tmp))


def s_ids(a, hf=sHF, q=sQ):
    a('s_sub_u32 s70, s%d, 29' % sI)
    a('s_mul_i32 s71, s%d, 3' % hf)
    a('s_add_u32 s70, s70, s71')
    a('s_and_b32 s71, s70, 1')
    a('s_lshr_b32 s70, s70, 1')
    a('s_mul_i32 s72, s%d, 20480' % hf)
    a('s_mul_i32 s63, s%d, 5120' % q)
    a('s_add_u32 s72, s72, s63')
    a('s_lshl_b32 s73, s70, 8')
    a('s_lshl_b32 s63, s%d, 5' % sX)
    a('s_add_u32 s73, s73, s63')
    a('s_lshl_b32 s63, s71, 4')
    a('s_add_u32 s73, s73, s63')
    a('s_lshl_b32 s63, s%d, 2' % q)
    a('s_add_u32 s73, s73, s63')
    a('s_mul_i32 s73, s73, 1280')


def q_dma(a, s, QT=QT):
    a('s_add_u32 s66, s73, %d' % (768 * 1280 * s))
    a('s_min_u32 s66, s66, %d' % (ROWS_B - 5120))
    for k in range(5):
        a('s_add_u32 m0, s72, %d' % (40960 * s + 1024 * k))
        a('buffer_load_dwordx4 v%d, %s, s66 offen lds' % (QT + k, R4(RA)))


def early(a, g, kvw):
    n = 0
    if kvw:
        srd(a, RD, pSH, 5120)
        a('s_mul_i32 s66, s%d, 640' % sX)
        a('s_lshl_b32 s67, s%d, 7' % sW)
        a('s_add_u32 s66, s66, s67')
        a('v_and_b32 v10, 3, v%d' % vL)
        a('v_lshlrev_b32 v10, 3, v10')
        for it in range(4):
            a('buffer_load_dwordx2 %s, v10, %s, s66 offen offset:%d' % (vr(TAP + 2 * it, 2), R4(RD), 32 * it))
        if g:
            w_setup(a, g)
        a('s_waitcnt vmcnt(4)')
        get_tag(a, 4)
        stamp(a, 1)
        a('s_barrier')
        a('s_branch KV')
        return
    if g == 0:
        srd(a, RA, pQ, hex(ROWS_B))
        row_table(a, QT, 10)
        for r in range(3):
            a('s_add_u32 s74, s%d, %d' % (sW, 3 * r - 5))
            a('s_min_u32 s74, s74, 7')
            a('s_lshr_b32 s75, s74, 2')
            a('s_and_b32 s74, s74, 3')
            s_ids(a, 75, 74)
            q_dma(a, 0)
        hello_store(a, 18)
        a('s_waitcnt vmcnt(16)')
        stamp(a, 1)
        a('s_barrier')
        a('s_branch NOBUILD')
        return
    if g == 1:
        a('s_cmp_eq_u32 s%d, 7' % sW)
        a('s_cbranch_scc1 E_LD')
    a('s_sub_u32 s68, s%d, 5' % sW)
    ssm_loads(a, g, 68, 0)
    n += 10
    if g == 2:
        a('s_mov_b32 s69, 3')
        ssm_loads(a, g, 69, 1)
        n += 10
    w_setup(a, g)
    nw = 0
    if g == 2 and NA2:
        w_begin(a, g, 0, sW, 5, 3, RING[g])
        nw = 4 * NA2 // 3
        for k in range(nw):
            emit(a, w_piece(3))
    if g == 2:
        hello_store(a, 3 + n + nw)
        nw += 1
    a('s_waitcnt vmcnt(%d)' % (n + nw))
    if g == 1:
        get_tag(a, 4)
    stamp(a, 1)
    a('s_barrier')
    a('s_waitcnt vmcnt(%d)' % (n - 10 + nw))
    ssm_build(a, 68, 0)
    if g == 2:
        a('s_cmp_lg_u32 s%d, 5' % sW)
        a('s_cbranch_scc1 NOBUILD')
        a('s_waitcnt vmcnt(%d)' % nw)
        ssm_build(a, 69, 1)
    a('s_branch NOBUILD')
    if g == 1:
        a.label('E_LD')
        w_setup(a, g)
        w_begin(a, g, 0, sW, 7, 1, RING[g])
        n0 = min(PA, 4 * NA1)
        for k in range(n0):
            emit(a, w_piece(1))
        hello_store(a, 3 + n0)
        a('s_waitcnt vmcnt(%d)' % (n0 + 1))
        stamp(a, 1)
        a('s_barrier')
        w_stream(a, 4 * NA1 - n0, 1, PA)
        a('s_branch BUILT')


def kv_phase(a):
    PV, CU, VV, T = 24, 32, 40, 48
    a.label('KV')
    a('v_and_b32 v10, 3, v%d' % vL)
    a('v_bfe_u32 v11, v%d, 2, 2' % vL)
    a('v_and_b32 v12, 0x30, v%d' % vL)
    a('v_lshl_add_u32 v12, v10, 2, v12')
    a('v_add_u32 v12, v12, v11')
    a('v_mul_u32_u24 v12, 176, v12')
    a('s_lshl_b32 s66, s%d, 5' % sW)
    a('s_add_u32 s66, s66, %d' % L_KST)
    a('v_add_u32 v12, s66, v12')
    for it in range(4):
        a('ds_read_b64_tr_b16 %s, v12 offset:%d' % (vr(PV + 2 * it, 2), 8 * it))
        a('ds_read_b64_tr_b16 %s, v12 offset:%d' % (vr(CU + 2 * it, 2), 8 * it + 704))
        a('ds_read_b64_tr_b16 %s, v12 offset:%d' % (vr(VV + 2 * it, 2), 8 * it + L_VST - L_KST))
    a('s_waitcnt vmcnt(0)')
    for r in range(8):
        a('v_alignbit_b32 v%d, v%d, v%d, 16' % (TAP + r, TAP + r, TAP + r))
    a('s_mul_i32 s66, s%d, 2560' % sW)
    a('s_add_u32 s66, s66, %d' % L_OST)
    a('v_mul_u32_u24 v13, 160, v10')
    a('v_lshrrev_b32 v11, 2, v%d' % vL)
    a('v_lshlrev_b32 v11, 3, v11')
    a('v_sub_u32 v13, v13, v11')
    a('s_add_u32 s67, s66, 120')
    a('v_add_u32 v13, s67, v13')
    a('v_lshrrev_b32 v10, 3, v%d' % vL)
    a('v_and_b32 v11, 7, v%d' % vL)
    a('v_lshlrev_b32 v11, 4, v11')
    a('v_mul_u32_u24 v14, 160, v10')
    a('v_add3_u32 v14, s66, v14, v11')
    a('v_lshl_add_u32 v5, v10, 12, v11')
    for it in range(4):
        a('s_waitcnt lgkmcnt(%d)' % (9 - 3 * it + it))
        P0, P1, C0, C1, V0, V1, W10, W32 = PV + 2 * it, PV + 2 * it + 1, CU + 2 * it, CU + 2 * it + 1, VV + 2 * it, VV + 2 * it + 1, TAP + 2 * it, TAP + 2 * it + 1
        O0, O1, O2, A, U = T, T + 1, T + 2, T + 4, T + 8
        a('v_alignbit_b32 v%d, v%d, v%d, 16' % (O0, P1, P0))
        a('v_alignbit_b32 v%d, v%d, v%d, 16' % (O1, C0, P1))
        a('v_alignbit_b32 v%d, v%d, v%d, 16' % (O2, C1, C0))
        for t, (h, l) in enumerate(((O1, O0), (C0, P1), (O2, O1), (C1, C0))):
            a('v_dot2_f32_bf16 v%d, v%d, v%d, 0' % (A + t, l, W32))
        a('v_lshlrev_b32 v%d, 16, v%d' % (U, V0))
        a('v_and_b32 v%d, s%d, v%d' % (U + 1, sHI, V0))
        for t, (h, l) in enumerate(((O1, O0), (C0, P1), (O2, O1), (C1, C0))):
            a('v_dot2c_f32_bf16 v%d, v%d, v%d' % (A + t, h, W10))
        a('v_lshlrev_b32 v%d, 16, v%d' % (U + 2, V1))
        a('v_and_b32 v%d, s%d, v%d' % (U + 3, sHI, V1))
        for t in range(4):
            a('v_mul_f32 v%d, v%d, v%d' % (A + t, A + t, U + t))
        a('v_cvt_pk_bf16_f32 v%d, v%d, v%d' % (PV + 2 * it, A + 3, A + 2))
        a('v_cvt_pk_bf16_f32 v%d, v%d, v%d' % (PV + 2 * it + 1, A + 1, A))
        a('ds_write_b64 v13, %s offset:%d' % (vr(PV + 2 * it, 2), 640 * it))
    a('s_mul_i32 s67, s%d, 80' % sX)
    a('s_lshl_b32 s66, s%d, 4' % sW)
    a('s_add_u32 s67, s67, s66')
    a('s_lshl_b32 s67, s67, 12')
    a('s_lshl_b32 s66, s%d, 7' % sI)
    a('s_sub_u32 s67, s67, s66')
    a('s_add_u32 s67, s67, 3968')
    a('ds_read_b128 %s, v14' % vr(CU, 4))
    a('ds_read_b128 %s, v14 offset:1280' % vr(CU + 4, 4))
    a('s_mul_i32 s68, s%d, 5' % sX)
    a('s_add_u32 s68, s68, s%d' % sW)
    a('s_lshl_b32 s68, s68, 7')
    a('s_lshl_b32 s66, s%d, 2' % sI)
    a('s_add_u32 s68, s68, s66')
    for k in range(2):
        a('s_add_u32 s66, s67, %s' % hex(KVA + 32768 * k))
        a('s_waitcnt lgkmcnt(%d)' % (1 - k))
        a('buffer_store_dwordx4 %s, v5, %s, s66 offen' % (vr(CU + 4 * k, 4), R4(WS)))
    stamp(a, 2)
    hello_load(a, 44, 69)
    a('s_lshl_b32 s66, s%d, 1' % sXCC)
    a('s_add_u32 s66, s66, s%d' % sTAG)
    a('v_mov_b32 v4, s66')
    a('s_add_u32 s66, s68, %d' % KVFA)
    a('s_waitcnt vmcnt(1)')
    a('s_mov_b64 exec, 1')
    a('buffer_store_dword v4, off, %s, s66' % R4(WS))
    a('s_mov_b64 exec, -1')
    stamp(a, 3)
    hello_check(a, 44, 69, 1)
    a('s_cmp_eq_u32 s%d, 0' % sSLOW)
    a('s_cbranch_scc1 ROLES')
    for k in range(2):
        a('s_add_u32 s66, s67, %s' % hex(KVB + 32768 * k))
        a('buffer_store_dwordx4 %s, v5, %s, s66 offen sc1' % (vr(CU + 4 * k, 4), R4(WS)))
    a('s_add_u32 s66, s68, %d' % KVFB)
    a('s_waitcnt vmcnt(0)')
    flag_store(a, 66, 4, True)
    a('s_branch ROLES')
    a.label('NOBUILD')
    stamp(a, 2)
    hello_load(a, 44, 69)
    hello_check(a, 44, 69, 0)
    stamp(a, 3)
    a.label('ROLES')
    a('s_cmp_ge_u32 s%d, 29' % sI)
    a('s_cbranch_scc1 S_MAIN')
    a.label('BUILT')
    stamp(a, 12)


CACC, CB, CA, CE, CT = 16, 32, 64, 96, 104
vCA, vCB = 14, 15


def conv_part(a, taus, U, mid=None, each=None):
    mf = [(aa, t - aa, t) for aa in range(max(taus) + 1) for t in taus if t >= aa]
    nf = max(taus) + 1
    D = 8 // nf
    assert U % D == 0
    order, last = [], {}
    for i, (aa, j, t) in enumerate(mf):
        for f in (('B', j), ('A', aa)):
            if f not in last:
                order.append(f)
            last[f] = i
    def reg(f, k):
        return (CA if f[0] == 'A' else CB) + 4 * (f[1] + nf * (k % D))
    def load(f, k):
        if f[0] == 'A':
            off = 512 * f[1] + 64 * k
            return ['ds_read_b64 %s, v%d offset:%d' % (vr(reg(f, k), 2), vCA, off),
                    'ds_read_b64 %s, v%d offset:%d' % (vr(reg(f, k) + 2, 2), vCA, off + 8)]
        return ['ds_read_b128 %s, v%d offset:%d' % (vr(reg(f, k), 4), vCB, 512 * (7 - f[1]) + 64 * k)]
    q, need = [], {}
    for k in range(D):
        for f in order:
            q += [(f, k)] * len(load(f, 0))
    for k in range(8):
        for i, (aa, j, t) in enumerate(mf):
            pos = max(n for n, e in enumerate(q) if e in ((('A', aa), k), (('B', j), k)))
            key = (k % U, i)
            need[key] = min(need.get(key, 15), len(q) - 1 - pos)
            for f in (('A', aa), ('B', j)):
                if last[f] == i and (k + D < 8 or U < 8):
                    q += [(f, k + D)] * len(load(f, 0))
    st = [0]
    def issue(l):
        for x in l:
            if st[0] >= 15:
                a('s_waitcnt lgkmcnt(12)')
                st[0] = 12
            a(x)
            st[0] += 1
    for k in range(D):
        for f in order:
            issue(load(f, k))
    if U < 8:
        for r in range(4 * len(taus)):
            a('v_mov_b32 v%d, 0' % (CACC + r))
        L, X = a.newlabel('CL'), a.newlabel('CX')
        a('s_mov_b32 s63, 0')
        a.label(L)
        st[0] = 15
    for c in range(U):
        for i, (aa, j, t) in enumerate(mf):
            n = need[(c, i)]
            if n < st[0]:
                a('s_waitcnt lgkmcnt(%d)' % n)
                st[0] = n
            acc = CACC + 4 * (t - taus[0])
            cc = '0' if (U == 8 and c == 0 and aa == 0) else vr(acc, 4)
            a('v_mfma_f32_16x16x32_bf16 %s, %s, %s, %s' % (vr(acc, 4), vr(reg(('A', aa), c), 4), vr(reg(('B', j), c), 4), cc))
            for f in (('A', aa), ('B', j)):
                if last[f] == i and (c + D < 8 or U < 8):
                    issue(load(f, c + D))
            if U == 8 and mid and c == 4 and i == 0:
                mid()
    if U < 8:
        if each:
            each()
        a('v_add_u32 v%d, %d, v%d' % (vCA, 64 * U, vCA))
        a('v_add_u32 v%d, %d, v%d' % (vCB, 64 * U, vCB))
        a('s_add_u32 s63, s63, 1')
        a('s_cmp_lt_u32 s63, %d' % (8 // U))
        if mid:
            assert U == 4
            a('s_cbranch_scc0 %s' % X)
            mid()
            a('s_branch %s' % L)
            a.label(X)
        else:
            a('s_cbranch_scc1 %s' % L)
        a('v_subrev_u32 v%d, 512, v%d' % (vCA, vCA))
        a('v_subrev_u32 v%d, 512, v%d' % (vCB, vCB))


def conv_flags(a, stages, young=0):
    a('s_waitcnt vmcnt(%d)' % young)
    a('s_mov_b64 exec, 1')
    for n, stage in enumerate(stages):
        a('ds_add_rtn_u32 v%d, v12, v13 offset:%d' % (10 + n, 4 * stage))
    a('s_mov_b64 exec, -1')
    a('s_waitcnt lgkmcnt(0)')
    for n, stage in enumerate(stages):
        L = a.newlabel('CF')
        a('v_readfirstlane_b32 s66, v%d' % (10 + n))
        a('s_cmp_lg_u32 s66, s71')
        a('s_cbranch_scc1 %s' % L)
        a('s_add_u32 s66, s76, %d' % (32768 * stage))
        flag_store(a, 66, 10 + n, True)
        a.label(L)


def conv_item(a, stages, U, st_, mid=None, defer=False, each=None):
    taus = [t for st in stages for t in (2 * st, 2 * st + 1)]
    conv_part(a, taus, U, mid, each)
    stamp(a, st_)
    T = CT
    a('s_waitcnt lgkmcnt(8)')
    for n, t in enumerate(taus):
        a('ds_read_b64 %s, v4 offset:%d' % (vr(CE + 2 * n, 2), 512 * (7 - t)))
    for m, stage in enumerate(stages):
        a('s_add_u32 s66, s75, %d' % (2 * 327680 * stage))
        a('s_waitcnt lgkmcnt(%d)' % (2 * (len(stages) - 1 - m)))
        Q = CT + 4 + 4 * m + (8 if defer else 0)
        for h in range(2):
            e0, e1 = CE + 4 * m + 2 * h, CE + 4 * m + 2 * h + 1
            acc = CACC + 8 * m + 4 * h
            a('v_and_b32 v%d, s%d, v%d' % (T + 0, sHI, e1))
            a('v_lshlrev_b32 v%d, 16, v%d' % (T + 1, e1))
            a('v_and_b32 v%d, s%d, v%d' % (T + 2, sHI, e0))
            a('v_lshlrev_b32 v%d, 16, v%d' % (T + 3, e0))
            for r in range(4):
                a('v_fmac_f32 v%d, s74, v%d' % (acc + r, T + r))
            a('v_cvt_pk_bf16_f32 v%d, v%d, v%d' % (Q + 2 * h, acc, acc + 1))
            a('v_cvt_pk_bf16_f32 v%d, v%d, v%d' % (Q + 2 * h + 1, acc + 2, acc + 3))
        a('v_permlane16_swap_b32 v%d, v%d' % (Q, Q + 2))
        a('v_permlane16_swap_b32 v%d, v%d' % (Q + 1, Q + 3))
        a('buffer_store_dwordx4 %s, v5, %s, s66 offen sc1' % (vr(Q, 4), R4(WS)))
    if not defer:
        conv_flags(a, stages)


def conv_phase(a):
    a('s_cmp_ge_u32 s%d, 14' % sI)
    a('s_cbranch_scc1 CV_G2')
    a('s_and_b32 s69, s%d, 1' % sW)
    a('s_lshr_b32 s63, s%d, 1' % sW)
    a('s_lshl_b32 s63, s63, 2')
    a('s_lshr_b32 s77, 0x2814, s63')
    a('s_and_b32 s77, s77, 15')
    conv_channel(a, 1, 69, 64, 65)
    a('s_branch CV_COM')
    a.label('CV_G2')
    a('s_mov_b32 s69, s%d' % sQ)
    a('s_cmp_eq_u32 s%d, 0' % sHF)
    a('s_cselect_b32 s77, 16, 9')
    conv_channel(a, 2, 69, 64, 65)
    a.label('CV_COM')
    a('s_lshr_b32 s78, s64, 4')
    a('s_mul_i32 s79, s%d, 5' % sX)
    a('s_add_u32 s78, s78, s79')
    a('s_lshl_b32 s78, s78, 7')
    a('s_add_u32 s78, s78, %d' % KVFA)
    a('s_mul_i32 s79, s%d, 80' % sX)
    a('s_add_u32 s64, s64, s79')
    a('s_and_b32 s66, s64, 0xfffffffe')
    a('s_lshl_b32 s66, s66, 1')
    a('s_load_dword s74, s[%d:%d], s66' % (pD, pD + 1))
    a('s_lshl_b32 s79, s64, 12')
    a('s_mul_i32 s80, s69, %d' % CSL)
    a('s_add_u32 s81, s80, %d' % CUO)
    a('s_bitcmp0_b32 s77, 0')
    a('s_cbranch_scc1 CV_NOLEAD')
    a('v_and_b32 v16, 31, v%d' % vL)
    a('v_lshlrev_b32 v16, 2, v16')
    a('v_lshrrev_b32 v17, 5, v%d' % vL)
    a('v_lshl_add_u32 v16, v17, 13, v16')
    assert KVFB - KVFA == 8192
    a('s_lshl_b32 s66, s%d, 1' % sXCC)
    a('v_mov_b32 v18, s66')
    a('v_cmp_eq_u32 vcc, 0, v17')
    a('v_cndmask_b32 v18, 0, v18, vcc')
    a('v_add_u32 v18, s%d, v18' % sTAG)
    a('s_mov_b32 s%d, 0' % sCNT)
    a.label('CV_POLL')
    a('buffer_load_dword v19, v16, %s, s78 offen sc1' % R4(WS))
    a('s_add_u32 s%d, s%d, 1' % (sCNT, sCNT))
    a('s_waitcnt vmcnt(0)')
    a('v_cmp_ne_u32 vcc, v18, v19')
    a('s_mov_b32 s66, %s' % hex(KVA))
    if not FORCE_SLOW:
        a('s_cmp_eq_u32 vcc_lo, 0')
        a('s_cbranch_scc1 CV_GOT')
    a('s_mov_b32 s66, %s' % hex(KVB))
    a('s_cmp_eq_u32 vcc_hi, 0')
    a('s_cbranch_scc1 CV_GOT')
    a('s_cmp_lt_u32 s%d, s%d' % (sCNT, sLIM))
    a('s_cbranch_scc1 CV_POLL')
    a('s_mov_b32 s%d, 0' % sLIM)
    a.label('CV_GOT')
    a('s_add_u32 s66, s66, s79')
    a('s_mov_b32 m0, s81')
    for k in range(4):
        a('buffer_load_dwordx4 v%d, %s, s66 offen offset:%d sc1 lds' % (vL16, R4(WS), 1024 * k))
    a.label('CV_NOLEAD')
    stamp(a, 4)
    a('s_lshl_b32 s75, s64, 6')
    a('s_add_u32 s75, s75, %s' % hex(YT))
    a('s_lshl_b32 s76, s%d, 5' % sX)
    a('s_add_u32 s76, s76, s%d' % sI)
    a('s_lshl_b32 s76, s76, 7')
    a('s_add_u32 s76, s76, %d' % YF)
    a('s_cmp_ge_u32 s%d, 14' % sI)
    a('s_cselect_b32 s71, 3, 1')
    a('s_add_u32 s66, s71, 1')
    a('s_mul_i32 s66, s66, %d' % CSL)
    a('v_mov_b32 v12, s66')
    a('v_mov_b32 v13, 1')
    a('v_mov_b64 v[16:17], 0')
    a('ds_write2_b64 v12, v[16:17], v[16:17] offset1:1')
    a('s_lshl_b32 s65, s65, 28')
    a('v_and_b32 v16, 15, v%d' % vL)
    a('v_lshrrev_b32 v17, 4, v%d' % vL)
    a('v_add_u32 v18, 1, v16')
    a('v_and_b32 v19, 3, v18')
    a('v_mul_u32_u24 v%d, %d, v19' % (vCA, HSTR))
    a('v_lshrrev_b32 v18, 2, v18')
    a('v_lshl_add_u32 v%d, v18, 3, v%d' % (vCA, vCA))
    a('v_lshl_add_u32 v%d, v17, 4, v%d' % (vCA, vCA))
    a('v_add_u32 v%d, s80, v%d' % (vCA, vCA))
    a('v_lshlrev_b32 v18, 5, v16')
    a('v_lshlrev_b32 v19, 4, v17')
    a('v_sub_u32 v%d, v19, v18' % vCB)
    a('s_add_u32 s66, s81, 480')
    a('v_add_u32 v%d, s66, v%d' % (vCB, vCB))
    a('v_lshl_add_u32 v19, v17, 3, v18')
    a('s_add_u32 s66, s81, 504')
    a('v_sub_u32 v4, s66, v19')
    a('v_and_b32 v19, 1, v17')
    a('v_lshlrev_b32 v19, 3, v19')
    a('v_lshrrev_b32 v18, 1, v16')
    a('v_add_u32 v19, v19, v18')
    a('v_mul_u32_u24 v5, 40960, v19')
    a('v_and_b32 v18, 1, v16')
    a('v_lshl_add_u32 v5, v18, 5, v5')
    a('v_lshrrev_b32 v19, 1, v17')
    a('v_lshl_add_u32 v5, v19, 4, v5')
    a('v_add_u32 v5, s65, v5')
    a('s_waitcnt lgkmcnt(0)')
    a('s_bitcmp1_b32 s64, 0')
    a('s_cbranch_scc1 CV_DHI')
    a('s_lshl_b32 s74, s74, 16')
    a.label('CV_DHI')
    a('s_and_b32 s74, s74, 0xffff0000')
    a('s_bitcmp0_b32 s77, 0')
    a('s_cbranch_scc1 CV_RD')
    a('s_waitcnt vmcnt(0)')
    a.label('CV_RD')
    a('s_barrier')
    stamp(a, 5)
    a('s_bitcmp0_b32 s77, 0')
    a('s_cbranch_scc1 CV_I2')
    a('s_setprio 3')
    conv_item(a, [0], CU_[0], 13, defer=True)
    def mid():
        conv_flags(a, [0])
        stamp(a, 6)
    conv_item(a, [1], CU_[1], 14, mid, defer=True)
    a('s_bitcmp1_b32 s77, 3')
    a('s_cbranch_scc1 CV_L2')
    conv_flags(a, [1])
    stamp(a, 7)
    a.label('CV_I2')
    a('s_bitcmp0_b32 s77, 1')
    a('s_cbranch_scc1 CV_I3')
    conv_item(a, [2], CU_[2], 13)
    stamp(a, 8)
    a.label('CV_I3')
    a('s_setprio 0')
    a('s_bitcmp0_b32 s77, 2')
    a('s_cbranch_scc1 CV_I4')
    conv_item(a, [3], CU_[3], 13)
    stamp(a, 8)
    a.label('CV_I4')
    a('s_bitcmp0_b32 s77, 4')
    a('s_cbranch_scc1 CV_LD')
    if RL:
        nr = NR[2] - NA2
        assert CU_[4] == 2
        w_begin(a, 2, NA2, sW, 0, 4, RING[2] + 4096 * NA2)
        for n in range(nr - 4 * (nr // 4)):
            emit(a, w_piece(4))
        def each():
            for n in range(nr // 4):
                emit(a, w_piece(4))
    conv_item(a, [2, 3], CU_[4], 13, each=each if RL else None)
    stamp(a, 8)
    a.label('CV_LD')
    a('s_bitcmp0_b32 s77, 3')
    a('s_cbranch_scc1 CV_END')
    for g, nw, P, pf in ((1, 2, P1, PF1), (2, 4, P2_, PF2)):
        nr = 4 * (NR[g] - NA[g]) // nw
        npf = 4 * NC[g] // nw if pf else 0
        if g == 2:
            a.label('CV_L2')
            a('s_setprio 0')
            if RL:
                nr = 0
        w_begin(a, g, NA[g] if nr else NR[g], sW, 4, nw, RING[g] + 4096 * NA[g])
        if g == 2:
            n0 = min(P, nr) if nr else min(P, npf)
            w_stream(a, n0, nw, 63, None if nr else DUM[g])
            conv_flags(a, [1], n0)
            stamp(a, 7)
            if nr:
                nr -= n0
            else:
                npf -= n0
        w_stream(a, nr, nw, P)
        w_stream(a, npf, nw, P, DUM[g])
        if g == 1:
            stamp(a, 7)
        if nr:
            a('s_waitcnt vmcnt(%d)' % min(npf, P - 1))
        stamp(a, 8)
        a('s_branch CV_END2')
    a.label('CV_END')
    a('s_cmp_ge_u32 s%d, 14' % sI)
    a('s_cbranch_scc1 CV_END2')
    a('s_cmp_lg_u32 s%d, 7' % sW)
    a('s_cbranch_scc1 CV_END2')
    hello_load(a, 44, 69)
    hello_check(a, 44, 69, 0)
    a.label('CV_END2')
    a('s_barrier')
    stamp(a, 9)
    a('s_cmp_ge_u32 s%d, 14' % sI)
    a('s_cbranch_scc1 G2_INIT')


ZR, NZR, GE, ACC, BIAS = 24, 6, 48, 64, 80
vSO, vLN, vOW, vC1, vRD, vDN, vTH, vOB, vPO, vZ, vTG, vCN, PK, PK2 = 0, 4, 5, 6, 8, 9, 10, 11, 12, 13, 14, 15, 16, 20


def g_phase(a, g):
    N, BUF, NP = NK[g], 1024 * NK[g], NK[g] // 4
    SRC, DSTS = (ZSL, HSL) if g == 1 else (HSL, MSL)
    FST = 32 if g == 1 else 256
    ool = Ool(a)
    T = lambda s: 'G%d_%s' % (g, s)
    a.label(T('INIT'))
    w_begin(a, g, NR[g], sW, 0, 8, 0)
    for k in range(NC[g] // 2):
        emit(a, w_piece(8))
    a('s_cmp_ge_u32 s%d, 4' % sW)
    a('s_cbranch_scc1 %s' % T('I4'))
    emit(a, w_piece(8))
    a.label(T('I4'))
    a('v_lshrrev_b32 v10, 5, v%d' % vL)
    a('v_lshlrev_b32 v10, 5, v10')
    a('s_lshl_b32 s67, s%d, 6' % sQ)
    if g == 1:
        srd(a, RD, pB1, 3456)
        a('s_lshl_b32 s66, s%d, 8' % sI)
    else:
        srd(a, RD, pB2, 1280)
        g2_ids(a, 69, 70)
        a('s_lshl_b32 s66, s70, 8')
        a('s_lshl_b32 s63, s69, 16')
        a('s_add_u32 s66, s66, s63')
    a('s_add_u32 s66, s66, s67')
    a('v_add_u32 v10, s66, v10')
    a('buffer_load_dwordx4 %s, v10, %s, 0 offen' % (vr(GE, 4), R4(RD)))
    a('buffer_load_dwordx4 %s, v10, %s, 0 offen offset:16' % (vr(GE + 4, 4), R4(RD)))
    w_read(a, g, 0, NR[g], RING[g])
    a('s_waitcnt vmcnt(0)')
    a('s_barrier')
    a('v_add_u32 v11, %d, v%d' % (L_SYNC, vL4))
    a('v_mov_b32 v12, 0')
    a('ds_write_b32 v11, v12')
    for i in range(8):
        a('v_lshlrev_b32 v%d, 16, v%d' % (BIAS + 2 * i, GE + i))
        a('v_and_b32 v%d, s%d, v%d' % (BIAS + 2 * i + 1, sHI, GE + i))
    w_read(a, g, NR[g], NC[g], 0)
    a('s_barrier')
    stamp(a, 10)
    a('s_lshl_b32 s66, s%d, 3' % sX)
    a('s_add_u32 s66, s66, s%d' % sHF)
    a('s_mul_i32 s64, s66, %d' % SRC)
    a('s_mul_i32 s74, s66, %d' % DSTS)
    a('s_mul_i32 s67, s%d, %d' % (sQ, 1024 * NP))
    a('s_add_u32 s64, s64, s67')
    a('s_mul_i32 s72, s%d, %d' % (sHF, BUF))
    if g == 1:
        a('s_add_u32 s64, s64, %s' % hex(ZI))
        a('s_lshl_b32 s73, s%d, 10' % sX)
        a('s_lshl_b32 s63, s%d, 5' % sHF)
        a('s_add_u32 s73, s73, s63')
        a('s_add_u32 s73, s73, %d' % ZF)
        a('s_lshl_b32 s68, s%d, 2' % sI)
        a('s_add_u32 s68, s68, s%d' % sQ)
        a('s_lshl_b32 s63, s68, 11')
        a('s_add_u32 s74, s74, s63')
        a('s_add_u32 s74, s74, %s' % hex(HB))
        a('v_and_b32 v%d, 0x1c, v%d' % (vPO, vL4))
        c1 = -2.0 * math.sqrt(2.0 / math.pi) * math.log2(math.e)
        a('v_mov_b32 v%d, %s' % (vC1, f2h(c1)))
    else:
        g2_ids(a, 69, 70)
        a('s_mul_i32 s63, s69, %d' % BUF)
        a('s_add_u32 s64, s64, s63')
        a('s_add_u32 s64, s64, %s' % hex(HB))
        a('s_lshl_b32 s73, s%d, 13' % sX)
        a('s_lshl_b32 s63, s%d, 8' % sHF)
        a('s_add_u32 s73, s73, s63')
        a('s_mul_i32 s63, s69, 72')
        a('s_add_u32 s73, s73, s63')
        a('s_add_u32 s73, s73, %d' % HFL)
        a('s_mul_i32 s63, s69, 40960')
        a('s_add_u32 s74, s74, s63')
        a('s_lshl_b32 s63, s70, 2')
        a('s_add_u32 s63, s63, s%d' % sQ)
        a('s_lshl_b32 s63, s63, 11')
        a('s_add_u32 s74, s74, s63')
        a('s_add_u32 s74, s74, %s' % hex(MR))
        a('s_sub_u32 s68, s%d, 14' % sI)
        a('s_lshl_b32 s68, s68, 2')
        a('s_add_u32 s68, s68, s%d' % sQ)
        a('v_min_u32 v%d, 68, v%d' % (vPO, vL4))
    a('s_lshl_b32 s78, s%d, 13' % sX)
    a('s_lshl_b32 s63, s%d, 8' % sHF)
    a('s_add_u32 s78, s78, s63')
    a('s_lshl_b32 s63, s68, 2')
    a('s_add_u32 s78, s78, s63')
    a('s_add_u32 s78, s78, %d' % (HFL if g == 1 else MFL))
    a('s_mov_b32 s75, %d' % (2 * SRC))
    a('s_mov_b32 s79, %d' % (2 * DSTS))
    a('v_lshrrev_b32 v16, 5, v%d' % vL)
    a('v_and_b32 v17, 31, v%d' % vL)
    a('v_lshlrev_b32 v17, 4, v17')
    a('v_lshl_add_u32 v%d, v16, 10, v17' % vSO)
    a('s_lshl_b32 s63, s%d, 4' % sHF)
    a('s_add_u32 s66, s63, %d' % LF_LND)
    a('v_mov_b32 v%d, s66' % vLN)
    a('s_lshl_b32 s66, s%d, 2' % sW)
    a('s_add_u32 s66, s66, %d' % LF_LND)
    a('v_mov_b32 v%d, s66' % vOW)
    a('s_sub_u32 s66, %d, s63' % (LF_DON + 16))
    a('v_mov_b32 v%d, s66' % vDN)
    a('v_mov_b32 v%d, s%d' % (vTH, sHF))
    a('v_mov_b32 v%d, s%d' % (vTG, sTAG))
    a('v_mov_b32 v%d, 1' % vCN)
    oob_lane0(a, vOB)
    dummy_off(a, 71)
    a('s_mov_b32 s84, s71')
    a('s_mov_b32 s%d, 0' % sP)

    def stage():
        o = []
        for k in range(NP):
            gq = []
            if k == 0:
                gq += ['s_add_u32 m0, s65, s67', 's_mov_b32 s63, s64']
            elif k % 4 == 0:
                gq += ['s_add_u32 m0, m0, 4096', 's_add_u32 s63, s63, 4096']
            gq.append('buffer_load_dwordx4 v%d, %s, s63 offen offset:%d sc1 lds' % (vL16, R4(WS), 1024 * (k & 3)))
            o.append(gq)
        return o
    PEEK = 'ds_read_b128 %s, v%d' % (vr(PK, 4), vLN)
    PEEK2 = 'ds_read_b128 %s, v%d' % (vr(PK2, 4), vDN)
    PLOAD = 'buffer_load_dword v%d, v%d, %s, s73 offen sc1' % (vZ, vPO, R4(WS))
    PCMP = 'v_cmp_ne_u32 vcc, s%d, v%d' % (sTAG, vZ)
    def flag(s):
        return both2(a, ool, 'buffer_store_dword v%d, v%d, %s, s%d offen' % (vTG, vOB, R4(WS), s))
    def store(o, t):
        return both2(a, ool, 'buffer_store_dwordx4 %s, v%d, %s, s74 offen offset:%d' % (vr(o, 4), vSO, R4(WS), 512 * t))

    a('s_mov_b32 s65, s72')
    block_poll(a, vZ, vPO, 73)
    stamp(a, 11)
    for gq in stage():
        emit(a, gq)
    a('s_waitcnt vmcnt(0)')
    a('ds_write_b32 v%d, v%d' % (vOW, vCN))
    a(PEEK)
    a.label(T('LOOP'))
    a('v_add_u32 v%d, s72, v%d' % (vRD, vL16))
    a('s_cmp_eq_u32 s%d, 3' % sP)
    a('s_cselect_b32 s63, %d, s75' % (-6 * SRC))
    a('s_add_u32 s64, s64, s63')
    a('s_add_u32 s73, s73, %d' % (2 * FST))
    a('s_cmp_eq_u32 s72, 0')
    a('s_cselect_b32 s65, %d, s72' % (3 * BUF))
    a('s_sub_u32 s65, s65, %d' % BUF)
    def pend():
        a('s_waitcnt vmcnt(0)')
        emit(a, flag(84))
        a('s_mov_b32 s84, s71')
    cnt_spin(a, ool, PK, vLN, vCN, pend if g == 1 else None)
    PF = NZR - 1
    q = LdsQ(a)
    for n in range(PF):
        q.issue(('z', n), 'ds_read_b128 %s, v%d offset:%d' % (vr(ZR + 4 * n, 4), vRD, 1024 * n))
    a('s_setprio %d' % PRIO[0])
    stamp(a, (sP, 4, 16))
    for ks in range(N):
        q.wait([('z', ks)])
        c = vr(BIAS, 16) if ks == 0 else vr(ACC, 16)
        a('v_mfma_f32_32x32x16_bf16 %s, %s, %s, %s' % (vr(ACC, 16), vr(WB[g] + 4 * ks, 4), vr(ZR + 4 * (ks % NZR), 4), c))
        n = ks + PF
        if n < N:
            q.issue(('z', n), 'ds_read_b128 %s, v%d offset:%d' % (vr(ZR + 4 * (n % NZR), 4), vRD, 1024 * n))
        if ks == HFK and g == 1:
            pend()
        if ks == PRK:
            a('s_setprio %d' % PRIO[1])
        if ks == N - PLK:
            a(PLOAD)
        if ks == N - 3:
            q.issue(('p', 0), PEEK2)
    a('ds_write_b32 v%d, v%d offset:32' % (vOW, vCN))
    a('s_setprio %d' % PRIO[2])
    stamp(a, (sP, 4, 17))
    a('s_waitcnt vmcnt(0) lgkmcnt(1)')
    emit(a, cnt_min(PK2))
    a('v_cmp_gt_u32 s[82:83], v%d, v%d' % (vTH, PK2))
    a(PCMP)
    a('s_cmp_eq_u32 s%d, 7' % sP)
    a('s_cselect_b64 s[82:83], -1, s[82:83]')
    a('s_or_b64 vcc, vcc, s[82:83]')

    def gelu(dma):
        ops = []
        for t in range(2):
            X, U = ACC + 8 * t, GE
            ops += ['v_mul_f32 v%d, v%d, v%d' % (U + i, X + i, X + i) for i in range(8)]
            ops += ['v_fma_f32 v%d, v%d, s%d, v%d' % (U + i, U + i, sC2, vC1) for i in range(8)]
            ops += ['v_mul_f32 v%d, v%d, v%d' % (U + i, U + i, X + i) for i in range(8)]
            ops += ['v_exp_f32 v%d, v%d' % (U + i, U + i) for i in range(8)]
            ops += ['v_add_f32 v%d, 1.0, v%d' % (U + i, U + i) for i in range(8)]
            ops += ['v_rcp_f32 v%d, v%d' % (U + i, U + i) for i in range(8)]
            ops += ['v_mul_f32 v%d, v%d, v%d' % (U + i, U + i, X + i) for i in range(8)]
            o = U + 8 + 4 * t
            ops += ['v_cvt_pk_bf16_f32 v%d, v%d, v%d' % (o + i, U + 2 * i, U + 2 * i + 1) for i in range(4)]
            ops.append(('st', o, t))
        st = stage() if dma else []
        if st:
            emit(a, st.pop(0))
        for i, l in enumerate(ops):
            if isinstance(l, tuple):
                assert not st
                emit(a, store(l[1], l[2]))
            else:
                a(l)
            if st and i % DST == DST - 1:
                emit(a, st.pop(0))

    def landed():
        a('v_add_u32 v%d, 1, v%d' % (vCN, vCN))
        a('ds_write_b32 v%d, v%d' % (vOW, vCN))
    if g == 1:
        a('s_cbranch_vccnz %s' % T('EB'))
        gelu(True)
        stamp(a, (sP, 4, 18))
        a('s_mov_b32 s84, s78')
        a('s_waitcnt vmcnt(2)')
        landed()
    else:
        a('s_mov_b64 s[82:83], vcc')
        for i in range(8):
            a('v_cvt_pk_bf16_f32 v%d, v%d, v%d' % (GE + i, ACC + 2 * i, ACC + 2 * i + 1))
            if i & 3 == 3:
                emit(a, store(GE + i - 3, i >> 2))
        a('s_cmp_lg_u64 s[82:83], 0')
        a('s_cbranch_scc1 %s' % T('EB'))
        for gq in stage():
            emit(a, gq)
        a('s_waitcnt vmcnt(%d)' % NP)
        emit(a, flag(78))
        stamp(a, (sP, 4, 18))
        a('s_waitcnt vmcnt(1)')
        landed()
    a.label(T('NEXT'))
    a(PEEK)
    stamp(a, (sP, 4, 19))
    a('v_add_u32 v%d, 1, v%d' % (vTH, vTH))
    a('s_mov_b32 s72, s65')
    a('s_add_u32 s78, s78, 512')
    a('s_cmp_eq_u32 s%d, 3' % sP)
    a('s_cselect_b32 s63, %d, s79' % (-6 * DSTS))
    a('s_add_u32 s74, s74, s63')
    a('s_add_u32 s%d, s%d, 1' % (sP, sP))
    a('s_branch %s' % T('LOOP'))
    a.label(T('EB'))
    if g == 1:
        gelu(False)
    a(PLOAD)
    a(PEEK2)
    a('s_waitcnt vmcnt(1)')
    emit(a, flag(78))
    stamp(a, (sP, 4, 18))
    a('s_cmp_eq_u32 s%d, 7' % sP)
    a('s_cbranch_scc1 %s' % T('END'))
    a('s_waitcnt vmcnt(1)')
    a(PCMP)
    a('s_cbranch_vccz %s' % T('GOT'))
    block_poll(a, vZ, vPO, 73)
    a.label(T('GOT'))
    cnt_spin(a, ool, PK2, vDN, vTH)
    for gq in stage():
        emit(a, gq)
    a('s_waitcnt vmcnt(0)')
    landed()
    a('s_branch %s' % T('NEXT'))
    a.label(T('END'))
    endk(a)
    ool.flush()


YU, MM, XS, PS, TS = 36, 76, 136, 16, 24
DD, ZP = MM, MM + 40
vIM, vY0, vY1, vYC, vYG, vQA, vT0, vSP = 0, 4, 5, 6, 8, 9, 10, 14


def unpack(dst, src, n):
    o = []
    for i in range(n):
        o.append('v_lshlrev_b32 v%d, 16, v%d' % (dst + 2 * i, src + i))
        o.append('v_and_b32 v%d, s%d, v%d' % (dst + 2 * i + 1, sHI, src + i))
    return o


def accum(dst, src, n):
    o = []
    for i in range(n):
        o.append('v_dot2c_f32_bf16 v%d, s%d, v%d' % (dst + 2 * i, sLO1, src + i))
        o.append('v_dot2c_f32_bf16 v%d, s%d, v%d' % (dst + 2 * i + 1, sHI1, src + i))
    return o


def sums(X, T, k):
    o = []
    for i in range(0, 8, 2):
        x = P2(X + 8 * k + i)
        if k == 0 and i == 0:
            o += ['v_pk_mul_f32 %s, %s, %s' % (P2(T + 2), x, x)]
        elif k == 0 and i == 2:
            o += ['v_pk_add_f32 %s, %s, %s' % (P2(T), P2(X), x), 'v_pk_fma_f32 %s, %s, %s, %s' % (P2(T + 2), x, x, P2(T + 2))]
        else:
            o += ['v_pk_add_f32 %s, %s, %s' % (P2(T), P2(T), x), 'v_pk_fma_f32 %s, %s, %s, %s' % (P2(T + 2), x, x, P2(T + 2))]
    return o


def finish(T, double, U=vSP):
    Q, R = T, T + 2
    o = ['v_add_f32 v%d, v%d, v%d' % (Q, T, T + 1), 'v_add_f32 v%d, v%d, v%d' % (R, T + 2, T + 3),
         'v_permlane32_swap_b32 v%d, v%d' % (Q, R), 'v_add_f32 v%d, v%d, v%d' % (Q, Q, R),
         'v_mov_b32 v%d, v%d' % (R, Q), 'v_permlane16_swap_b32 v%d, v%d' % (Q, R), 'v_add_f32 v%d, v%d, v%d' % (Q, Q, R)]
    for k in (8, 4):
        o.append('v_add_f32 v%d, v%d, v%d row_ror:%d row_mask:0xf bank_mask:0xf' % (Q, Q, Q, k))
    o += ['v_mul_f32 v%d, s%d, v%d' % (Q, sINV, Q), 'v_mov_b32 v%d, v%d' % (R, Q), 'v_permlane32_swap_b32 v%d, v%d' % (Q, R),
          'v_fma_f32 v%d, -v%d, v%d, v%d' % (R, Q, Q, R), 'v_max_f32 v%d, 0, v%d' % (R, R),
          'v_add_f32 v%d, s%d, v%d' % (U, sEPS, R), 'v_rsq_f32 v%d, v%d' % (U, U)]
    if double:
        o += ['v_mul_f32 v%d, v%d, v%d' % (R, R, U), 'v_fma_f32 v%d, v%d, v%d, s%d' % (R, R, U, sEPS),
              'v_rsq_f32 v%d, v%d' % (R, R), 'v_mul_f32 v%d, v%d, v%d' % (U, U, R)]
    o += ['v_mul_f32_e64 v%d, -v%d, v%d' % (U + 1, Q, U)]
    return o


def norm(d, x, n, sp=vSP):
    return ['v_pk_fma_f32 %s, %s, %s, %s op_sel:[0,0,1] op_sel_hi:[1,0,1]' % (P2(d + i), P2(x + i), P2(sp), P2(sp)) for i in range(0, n, 2)]


def gate(k, XW):
    return ['v_pk_fma_f32 %s, %s, %s, %s' % (P2(XW + i), P2(DD + i), P2(YU + i), P2(XW + i)) for i in range(8 * k, 8 * k + 8, 2)]


def s_phase(a):
    ool = Ool(a)
    vOB, vPO, vZ = 11, 12, 13
    vYP, YF4 = 28, 32
    a.label('S_MAIN')
    srd(a, RA, pQ, hex(ROWS_B))
    s_ids(a)
    row_table(a, PS, 10)
    a('s_barrier')
    q_dma(a, 1, PS)
    srd(a, RB, pOUT, hex(ROWS_B))
    a('v_lshrrev_b32 v40, 2, v%d' % vL)
    a('v_and_b32 v41, 3, v%d' % vL)
    a('v_lshlrev_b32 v%d, 9, v40' % vIM)
    a('v_lshl_add_u32 v%d, v41, 4, v%d' % (vIM, vIM))
    a('s_lshl_b32 s66, s71, 8')
    a('s_lshl_b32 s67, s%d, 6' % sQ)
    a('s_add_u32 s66, s66, s67')
    a('v_add_u32 v%d, s66, v%d' % (vIM, vIM))
    a('v_lshlrev_b32 v43, 1, v41')
    a('v_xor_b32 v43, v43, v40')
    a('v_mul_u32_u24 v%d, 1280, v41' % vQA)
    a('v_lshl_add_u32 v%d, v43, 4, v%d' % (vQA, vQA))
    a('v_lshrrev_b32 v43, 4, v%d' % vL)
    a('v_lshl_add_u32 v43, v43, 2, v41')
    a('v_bfe_u32 v44, v%d, 2, 2' % vL)
    a('v_lshlrev_b32 v44, 1, v44')
    a('s_lshr_b32 s66, s%d, 1' % sQ)
    a('v_add_u32 v44, s66, v44')
    a('v_and_b32 v45, 1, v41')
    a('v_xor_b32 v44, v44, v45')
    a('v_and_b32 v45, 2, v41')
    a('v_lshlrev_b32 v45, 2, v45')
    a('v_xor_b32 v44, v44, v45')
    a('v_lshlrev_b32 v%d, 8, v43' % vYC)
    a('v_lshl_add_u32 v%d, v44, 4, v%d' % (vYC, vYC))
    a('s_and_b32 s66, s%d, 1' % sQ)
    a('s_lshl_b32 s66, s66, 3')
    a('s_mul_i32 s67, s%d, 5120' % sQ)
    a('s_sub_u32 s66, s66, s67')
    a('v_add_u32 v%d, s66, v%d' % (vYC, vYC))
    a('v_lshrrev_b32 v43, 4, v%d' % vL)
    a('v_and_b32 v44, 15, v%d' % vL)
    a('v_and_b32 v45, 1, v43')
    a('v_xor_b32 v44, v44, v45')
    a('v_and_b32 v45, 2, v43')
    a('v_lshlrev_b32 v45, 2, v45')
    a('v_xor_b32 v44, v44, v45')
    a('v_lshrrev_b32 v45, 1, v44')
    a('v_lshl_add_u32 v45, v43, 3, v45')
    a('v_lshlrev_b32 v%d, 6, v45' % vYG)
    a('v_and_b32 v44, 1, v44')
    a('v_lshl_add_u32 v%d, v44, 4, v%d' % (vYG, vYG))
    a('s_lshl_b32 s66, s71, 5')
    a('s_mul_i32 s67, s%d, 10240' % sQ)
    a('s_add_u32 s66, s66, s67')
    a('v_add_u32 v%d, s66, v%d' % (vYG, vYG))
    oob_lane0(a, vOB)
    a('v_min_u32 v%d, 236, v%d' % (vPO, vL4))
    a('s_lshl_b32 s79, s71, 2')
    a('s_add_u32 s79, s79, s%d' % sQ)
    a('s_lshl_b32 s79, s79, 2')
    a('s_lshl_b32 s63, s%d, 10' % sX)
    a('s_add_u32 s79, s79, s63')
    a('s_add_u32 s79, s79, %d' % ZF)
    a('v_and_b32 v%d, 31, v%d' % (vYP, vL))
    a('v_min_u32 v%d, 28, v%d' % (vYP, vYP))
    a('v_and_or_b32 v%d, v%d, 32, v%d' % (vYP, vL, vYP))
    a('v_lshlrev_b32 v%d, 7, v%d' % (vYP, vYP))
    a('s_lshl_b32 s66, s%d, 2' % sW)
    a('s_add_u32 s66, s66, %d' % LF_LND)
    a('v_mov_b32 v%d, s66' % (vYP + 1))
    a('s_and_b32 s66, s66, 0xfffffff0')
    a('v_mov_b32 v%d, s66' % (vYP + 2))
    a('s_lshl_b32 s80, s%d, 13' % sQ)
    a('s_add_u32 s80, s80, %d' % YF)
    def head(ph, sl):
        a('s_add_u32 s74, s70, %d' % (3 * sl))
        if sl == 2:
            a('s_cmp_gt_u32 s74, 7')
            a('s_cbranch_scc1 S%s_END' % ph)
        a('s_add_u32 s75, s72, %d' % (40960 * sl))
        if ph != 'C':
            a('v_add_u32 v%d, s75, v%d' % (vY0, vYC))
            a('v_xor_b32 v%d, 0x80, v%d' % (vY1, vY0))
        a('s_lshl_b32 s76, s%d, 3' % sX)
        a('s_add_u32 s76, s76, s74')

    def y_reads():
        for k in range(5):
            a('ds_read_b64_tr_b16 %s, v%d offset:%d' % (vr(ZP + 4 * k, 2), vY0, 4096 * k))
            a('ds_read_b64_tr_b16 %s, v%d offset:%d' % (vr(ZP + 4 * k + 2, 2), vY1, 4096 * k))

    def z_out(lay, X, mid=None):
        emit(a, finish(TS, True))
        a('s_mul_i32 s66, s76, %d' % ZSL)
        a('s_add_u32 s66, s66, %s' % hex(ZI))
        for k in range(5):
            emit(a, norm(DD + 8 * k, X + 8 * k, 8))
            for i in range(4):
                a('v_cvt_pk_bf16_f32 v%d, v%d, v%d' % (ZP + 4 * k + i, DD + 8 * k + 2 * i, DD + 8 * k + 2 * i + 1))
            emit(a, both2(a, ool, 'buffer_store_dwordx4 %s, v%d, %s, s66 offen' % (vr(ZP + 4 * k, 4), vIM, R4(WS))))
            if k < 4:
                a('s_add_u32 s66, s66, 8192')
        a('s_lshl_b32 s68, s74, 5')
        a('s_add_u32 s68, s68, s79')
        a('v_mov_b32 v%d, s%d' % (vZ, sTAG))
        if mid:
            mid()
        else:
            a('s_waitcnt vmcnt(0)')
        emit(a, both2(a, ool, 'buffer_store_dword v%d, v%d, %s, s68 offen offset:%d' % (vZ, vOB, R4(WS), 256 * lay)))

    def m_in(lay, sl, X, per_k):
        a('s_lshl_b32 s66, s%d, 13' % sX)
        a('s_lshl_b32 s67, s74, 8')
        a('s_add_u32 s66, s66, s67')
        a('s_add_u32 s66, s66, %d' % (MFL + 2048 * lay))
        a('s_mul_i32 s67, s76, %d' % MSL)
        a('s_add_u32 s67, s67, %s' % hex(MR))
        a('s_add_u32 s68, s67, 40960')
        a('s_add_u32 s69, s67, 81920')
        block_poll(a, vZ, vPO, 66)
        stamp(a, 4 * sl + 29 + 12 * lay)
        for k in range(5):
            for p in range(3):
                a('buffer_load_dwordx4 %s, v%d, %s, s%d offen sc1' % (vr(MM + 12 * k + 4 * p, 4), vIM, R4(WS), 67 + p))
                if k < 4:
                    a('s_add_u32 s%d, s%d, 8192' % (67 + p, 67 + p))
        for k in range(5):
            for p in range(3):
                a('s_waitcnt vmcnt(%d)' % (14 - 3 * k - p))
                emit(a, accum(X + 8 * k, MM + 12 * k + 4 * p, 4))
            per_k(k)

    def y_line(du):
        a('s_add_u32 s81, s74, %d' % du)
        a('s_lshr_b32 s81, s81, 1')
        a('s_min_u32 s81, s81, 3')
        a('s_lshl_b32 s81, s81, 15')
        a('s_add_u32 s81, s81, s80')
    YLOAD = 'buffer_load_dword v%d, v%d, %s, s81 offen sc1' % (YF4, vYP, R4(WS))

    def y_test():
        a('v_cmp_ne_u32 vcc, s%d, v%d' % (sTAG, YF4))

    def y_dma(du, dl):
        a('s_add_u32 s67, s74, %d' % du)
        a('s_min_u32 s67, s67, 7')
        a('s_lshl_b32 s67, s67, 3')
        a('s_add_u32 s67, s67, s%d' % sX)
        a('s_mul_i32 s67, s67, 40960')
        a('s_add_u32 s67, s67, %s' % hex(YT))
        for k in range(5):
            a('s_add_u32 m0, s75, %d' % (1024 * k + dl))
            a('buffer_load_dwordx4 v%d, %s, s67 offen sc1 lds' % (vYG, R4(WS)))
            if k < 4:
                a('s_add_u32 s67, s67, 2048')

    def q_reads(sl, dl):
        a('s_add_u32 s66, s75, %d' % dl)
        a('v_add_u32 v%d, s66, v%d' % (vT0, vQA))
        for k in range(5):
            a('ds_read_b128 %s, v%d offset:%d' % (vr(XS + 40 * sl + 20 + 4 * k, 4), vT0, 256 * k))

    for sl in range(3):
        X = XS + 40 * sl
        head('A', sl)
        if sl == 0:
            q_reads(0, 0)
            a('s_waitcnt lgkmcnt(0)')
        for k in range(5):
            emit(a, unpack(X + 8 * k, X + 20 + 4 * k, 4))
            emit(a, sums(X, TS, k))
        emit(a, finish(TS, False))
        emit(a, norm(DD, X, 40))
        stamp(a, 4 * sl + 16)
        def fetch(sl=sl):
            a.label('SA_F%d' % sl)
            y_line(0)
            a('s_mov_b32 s%d, 0' % sCNT)
            a('s_mul_i32 s66, s2, 5')
            a('s_add_u32 s66, s66, s74')
            a('s_lshl_b64 exec, 1, s66')
            a('s_mov_b64 s[64:65], -1')
            a.label('SA_YL%d' % sl)
            a(YLOAD)
            a('s_add_u32 s%d, s%d, 1' % (sCNT, sCNT))
            a('s_waitcnt vmcnt(0)')
            y_test()
            a('s_cmp_eq_u64 vcc, 0')
            a('s_cselect_b64 exec, s[64:65], vcc')
            a('s_cselect_b64 s[64:65], 0, s[64:65]')
            a('s_cbranch_execz SA_YD%d' % sl)
            a('s_cmp_lt_u32 s%d, s%d' % (sCNT, sLIM))
            a('s_cbranch_scc1 SA_YL%d' % sl)
            a('s_mov_b32 s%d, 0' % sLIM)
            a.label('SA_YD%d' % sl)
            a('s_mov_b64 exec, -1')
            y_dma(0, 0)
            a('s_waitcnt vmcnt(0)')
            if sl:
                a('s_branch SA_G%d' % sl)
        if sl == 0:
            fetch()
        else:
            a('s_cmp_eq_u32 s77, 0')
            a('s_cbranch_scc1 SA_F%d' % sl)
            ool.add(fetch)
            a('s_waitcnt vmcnt(%d)' % (6 if sl == 1 else 1))
        a.label('SA_G%d' % sl)
        stamp(a, 4 * sl + 17)
        a('v_mov_b32 v%d, %d' % (vYP + 3, sl + 1))
        a('ds_write_b32 v%d, v%d' % (vYP + 1, vYP + 3))
        a('ds_read_b128 %s, v%d' % (vr(ZP, 4), vYP + 2))
        cnt_spin(a, ool, ZP, vYP + 2, vYP + 3)
        y_reads()
        if sl < 2:
            y_line(3)
            a(YLOAD)
        stamp(a, 4 * sl + 18)
        for k in range(5):
            a('s_waitcnt lgkmcnt(%d)' % (8 - 2 * k))
            emit(a, unpack(YU + 8 * k, ZP + 4 * k, 4))
            emit(a, gate(k, X))
            emit(a, sums(X, TS, k))
        def mid(sl=sl):
            N, J = 'SA_N%d' % sl, 'SA_J%d' % sl
            a('s_waitcnt vmcnt(5)')
            q_reads(sl + 1, 40960)
            y_test()
            a('s_waitcnt lgkmcnt(0)')
            a('s_cbranch_vccnz %s' % N)
            y_dma(3, 40960)
            a('s_mov_b32 s77, 1')
            a('s_waitcnt vmcnt(5)')
            a.label(J)
            def no():
                a.label(N)
                a('s_mov_b32 s77, 0')
                a('s_waitcnt vmcnt(0)')
                a('s_branch %s' % J)
            ool.add(no)
        z_out(0, X, mid if sl < 2 else None)
        stamp(a, 4 * sl + 19)
        if sl == 0:
            q_dma(a, 2, PS)
            a('s_cmp_lg_u32 s2, 232')
            a('s_cbranch_scc1 SA_E')
            a('s_cmp_lg_u32 s%d, 0' % sW)
            a('s_cbranch_scc1 SA_E')
            a('s_mov_b32 s66, 0')
            flag_store(a, 66, vZ, True)
            a.label('SA_E')
    a.label('SA_END')
    for sl in range(3):
        X = XS + 40 * sl
        head('B', sl)
        y_reads()
        for k in range(5):
            a('s_waitcnt lgkmcnt(%d)' % (8 - 2 * k))
            emit(a, unpack(YU + 8 * k, ZP + 4 * k, 4))
        stamp(a, 4 * sl + 28)
        m_in(0, sl, X, lambda k: emit(a, sums(X, TS, k)))
        stamp(a, 4 * sl + 30)
        emit(a, finish(TS, False))
        for k in range(5):
            emit(a, norm(DD + 8 * k, X + 8 * k, 8))
            emit(a, gate(k, X))
            emit(a, sums(X, TS, k))
        z_out(1, X)
        stamp(a, 4 * sl + 31)
    a.label('SB_END')
    row_table(a, YU, YU + 6)
    for sl in range(3):
        X = XS + 40 * sl
        head('C', sl)
        a('v_add_u32 v%d, s75, v%d' % (vT0, vQA))
        for k in range(5):
            a('v_add_u32 v%d, s75, v%d' % (PS + k, YU + k))
        a('s_add_u32 s77, s73, %d' % (768 * 1280 * sl))
        stamp(a, 4 * sl + 40)
        def ck(k):
            for i in range(4):
                a('v_cvt_pk_bf16_f32 v%d, v%d, v%d' % (YU + 8 + 4 * k + i, X + 8 * k + 2 * i, X + 8 * k + 2 * i + 1))
            a('ds_write_b128 v%d, %s offset:%d' % (vT0, vr(YU + 8 + 4 * k, 4), 256 * k))
        m_in(1, sl, X, ck)
        stamp(a, 4 * sl + 42)
        for k in range(5):
            a('ds_read_b128 %s, v%d' % (vr(MM + 4 * k, 4), PS + k))
        a('s_add_u32 s66, s77, 4096')
        for k in range(5):
            a('s_waitcnt lgkmcnt(%d)' % (4 - k))
            a('buffer_store_dwordx4 %s, v%d, %s, s%d offen offset:%d' % (vr(MM + 4 * k, 4), vL16, R4(RB), 77 if k < 4 else 66, 1024 * (k & 3)))
        stamp(a, 4 * sl + 43)
    a.label('SC_END')
    endk(a)
    ool.flush()


def kernel():
    a = Asm()
    c1 = -2.0 * math.sqrt(2.0 / math.pi) * math.log2(math.e)
    a('s_cmp_ge_u32 s2, 256')
    a('s_cbranch_scc1 END')
    a('s_load_dwordx2 s[26:27], s[0:1], 104')
    a('s_load_dwordx4 s[4:7], s[0:1], 0')
    a('s_load_dwordx4 s[8:11], s[0:1], 16')
    a('s_load_dwordx4 s[12:15], s[0:1], 32')
    a('s_load_dwordx4 s[16:19], s[0:1], 56')
    a('s_load_dwordx4 s[20:23], s[0:1], 72')
    a('s_load_dwordx2 s[24:25], s[0:1], 88')
    a('v_lshrrev_b32 v1, 6, v0')
    a('v_readfirstlane_b32 s%d, v1' % sW)
    a('v_and_b32 v%d, 63, v0' % vL)
    a('v_lshlrev_b32 v%d, 4, v%d' % (vL16, vL))
    a('v_lshlrev_b32 v%d, 2, v%d' % (vL4, vL))
    a('s_and_b32 s%d, s2, 7' % sX)
    a('s_lshr_b32 s%d, s2, 3' % sI)
    a('s_and_b32 s%d, s%d, 3' % (sQ, sW))
    a('s_lshr_b32 s%d, s%d, 2' % (sHF, sW))
    if STAMP:
        a('v_mov_b32 v%d, 0' % vST)
    for r in (12, 13, 14, 15):
        a('v_mov_b32 v%d, 0' % r)
    a('v_add_u32 v4, %d, v%d' % (L_SYNC, vL4))
    a('ds_write_b32 v4, v12')
    a('s_lshl_b32 s64, s%d, 10' % sW)
    a('s_add_u32 s64, s64, %d' % L_KST)
    a('v_add_u32 v4, s64, v%d' % vL16)
    a('ds_write_b128 v4, v[12:15]')
    a('s_movk_i32 s65, 5958')
    a('s_movk_i32 s66, 1104')
    a('s_add_u32 s67, s%d, 8' % sQ)
    a('s_lshl_b32 s67, s67, 6')
    for d, src in ((8, 'v0'), (9, None)):
        if src is None:
            a('v_add_u32 v9, s67, v%d' % vL)
            src = 'v9'
        a('v_mul_u32_u24 v10, s65, %s' % src)
        a('v_lshrrev_b32 v10, 16, v10')
        a('v_mul_u32_u24 v11, 11, v10')
        a('v_sub_u32 v11, %s, v11' % src)
        a('v_lshlrev_b32 v%d, 4, %s' % (d, src))
        a('v_mad_u32_u24 v%d, v10, s66, v%d' % (d, d))
        a('v_cmp_eq_u32 vcc, 10, v11')
        a('v_mov_b32 v11, 0x40000000')
        a('v_cndmask_b32 v%d, v%d, v11, vcc' % (d, d))
    a('s_mul_i32 s65, s%d, %d' % (sI, 64 * 1280))
    a('s_mul_i32 s66, s%d, 160' % sX)
    a('s_add_u32 s65, s65, s66')
    a('s_sub_u32 s66, s65, 5120')
    a('v_add_u32 v10, s66, v8')
    a('v_add_u32 v8, s65, v8')
    a('s_cmp_eq_u32 s%d, 0' % sHF)
    a('s_cselect_b32 s65, s66, s65')
    a('v_add_u32 v9, s65, v9')
    a('s_getreg_b32 s%d, hwreg(HW_REG_XCC_ID, 0, 3)' % sXCC)
    a('s_mov_b32 s%d, %d' % (sLIM, LIMIT))
    a('s_mov_b32 s%d, 0xffff0000' % sHI)
    a('s_mov_b32 s%d, 0x3acccccd' % sINV)
    a('s_mov_b32 s%d, 0x3727c5ac' % sEPS)
    a('s_mov_b32 s%d, %s' % (sC2, f2h(c1 * 0.044715)))
    a('s_mov_b32 s%d, 0x3f80' % sLO1)
    a('s_mov_b32 s%d, 0x3f800000' % sHI1)
    a('s_mov_b32 s%d, 0' % sSLOW)
    a('s_mov_b32 m0, s64')
    a('s_waitcnt lgkmcnt(0)')
    srd(a, WS, pWS, '0x10000000')
    srd(a, RB, pK, hex(ROWS_B))
    srd(a, RC, pV, hex(ROWS_B))
    a('buffer_load_dword v4, off, %s, 0 sc1' % R4(WS))
    a('buffer_load_dwordx4 v10, %s, 0 offen lds' % R4(RB))
    a('s_add_u32 m0, s64, %d' % (L_VST - L_KST))
    a('buffer_load_dwordx4 v8, %s, 0 offen lds' % R4(RC))
    a('s_cmp_eq_u32 s%d, 0' % sHF)
    a('s_cselect_b64 s[%d:%d], s[%d:%d], s[%d:%d]' % (RC, RC + 1, RB, RB + 1, RC, RC + 1))
    a('s_cselect_b32 s65, %d, s%d' % (L_KST + 8192, sLIM))
    a('s_cselect_b32 s66, 0, %d' % (L_VST + 8192 - LIMIT))
    a('s_add_u32 s65, s65, s66')
    a('s_lshl_b32 s66, s%d, 10' % sQ)
    a('s_add_u32 m0, s65, s66')
    a('buffer_load_dwordx4 v9, %s, 0 offen lds' % R4(RC))
    for r in (RA, RD):
        a('s_mov_b64 s[%d:%d], s[%d:%d]' % (r, r + 1, WS, WS + 1))
        a('s_mov_b64 s[%d:%d], s[%d:%d]' % (r + 2, r + 3, WS + 2, WS + 3))
    for r in range(QT, QT + 5):
        a('v_mov_b32 v%d, 0' % r)
    stamp(a, 0)
    if B0:
        a('s_barrier')
    a('s_cmp_ge_u32 s%d, 5' % sW)
    a('s_cbranch_scc1 E_BLD')
    for kvw in (1, 0):
        if not kvw:
            a.label('E_BLD')
        a('s_cmp_ge_u32 s%d, 29' % sI)
        a('s_cbranch_scc1 E_%d0' % kvw)
        a('s_cmp_ge_u32 s%d, 14' % sI)
        a('s_cbranch_scc1 E_%d2' % kvw)
        early(a, 1, kvw)
        a.label('E_%d2' % kvw)
        early(a, 2, kvw)
        a.label('E_%d0' % kvw)
        early(a, 0, kvw)
    kv_phase(a)
    conv_phase(a)
    g_phase(a, 1)
    g_phase(a, 2)
    s_phase(a)
    a.label('END')
    a('s_endpgm')
    return a.lines


def build():
    ref = open('cdna_kernels/%s.s.ref' % NAME).read().split('\n')
    head = [l for l in ref if l.startswith(';') and '@launch' not in l and 'Override launch' not in l and 'grid=ceil' not in l]
    s = '\n'.join(head) + '\n'
    s += '; @launch grid=(256,1,1) block=(512,1,1) lds=163840\n'
    s += '.amdgcn_target "amdgcn-amd-amdhsa--gfx950"\n.text\n'
    s += kernel_text(NAME + '_kernel', kernel(), 256)
    s += '.section .rodata,"a"\n'
    s += descriptor_text(NAME + '_kernel', 256, 102)
    return s


if __name__ == '__main__':
    open(sys.argv[1], 'w').write(build())
```

```python
import sys, os, math, struct
from asmlib import *

NAME = 'interleave_layers__ssm_conv_h3__mixer_channel_mlp__prompt'
E = lambda k, d: int(os.environ.get(k, d))
STAMP, FORCE_SLOW, LIMIT = E('STAMP', 0), E('FORCE_SLOW', 0), 20000
NA1, NA2 = E('NA1', 12), E('NA2', 0)
PA, P1, P2_ = E('PA', 24), E('P1', 12), E('P2', 6)
PF1, PF2 = E('PF1', 1), E('PF2', 1)
B0 = E('B0', 1)
RL = E('RL', 1)
CU_ = [int(x) for x in os.environ.get('CUN', '8,4,2,2,2').split(',')]
HFK, PLK, DST = E('HFK', 8), E('PLK', 12), E('DST', 6)
PRIO = [int(x) for x in os.environ.get('PRIO', '1,2,0').split(',')]
PRK = E('PRK', 8)

EPOCH, HELLO, KVFA, KVFB, YF, ZF, HFL, MFL, DUMMY = 0, 0x40000, 0x2000, 0x4000, 0x60000, 0xC000, 0x10000, 0x20000, 0x30000
KVA, KVB, YT, ZI, HB, MR = 0x100000, 0x400000, 0x700000, 0x1000000, 0x1400000, 0x1C00000
ZSL, HSL, MSL = 40960, 114688, 122880
STAMPS = 0x8000000
ROWS_B = 2048 * 1280
L_KST, L_VST, L_OST, L_SYNC = 122880, 135168, 147456, 163328
CSL, CUO, HSTR = 21248, 16640, 4160
RING = {1: 45056, 2: 86016}
LF_LND, LF_DON, LF_I0 = L_SYNC, L_SYNC + 32, L_SYNC + 64
pQ, pK, pV, pSH, pH, pD, pW1, pB1, pW2, pB2, pOUT, pWS = 4, 6, 8, 10, 12, 14, 16, 18, 20, 22, 24, 26
sX, sW, sI, sQ = 28, 29, 30, 31
WS, RA, RB, RC, RD = 32, 36, 40, 44, 48
sHF, sTAG, sXCC, sSLOW, sP, sLIM, sCNT = 52, 53, 54, 55, 56, 57, 58
sHI, sINV, sEPS, sC2 = 59, 60, 61, 62
sLO1, sHI1 = 89, 90
sST = 86
sWO, sWL, sWS = 91, 92, 93
vL, vL16, vL4, vST = 1, 2, 3, 7
vWO, vWT = 8, 9
WB = {1: 96, 2: 112}
NK = {1: 40, 2: 36}
RS = {1: 3456, 2: 1280}
NA = {1: NA1, 2: NA2}
NR = {1: 29, 2: 19}
NC = {1: 11, 2: 17}
DUM = {1: 252, 2: 96}
assert NA1 <= 19 and NA2 in (0, 3, 6, 9)

f2h = lambda x: hex(struct.unpack('<I', struct.pack('<f', x))[0])
R4 = lambda d: 's[%d:%d]' % (d, d + 3)
P2 = lambda r: 'v[%d:%d]' % (r, r + 1)


def srd(a, d, p, size, add=None):
    if add is None:
        a('s_mov_b32 s%d, s%d' % (d, p)); a('s_mov_b32 s%d, s%d' % (d + 1, p + 1))
    else:
        a('s_add_u32 s%d, s%d, %s' % (d, p, add)); a('s_addc_u32 s%d, s%d, 0' % (d + 1, p + 1))
    a('s_mov_b32 s%d, %s' % (d + 2, size)); a('s_mov_b32 s%d, 0x20000' % (d + 3))


def stamp(a, idx):
    if not STAMP:
        return
    a('%s s[%d:%d]' % ('s_memtime' if os.environ.get('CLK') else 's_memrealtime', sST, sST + 1))
    if isinstance(idx, tuple):
        a('s_mul_i32 s88, s%d, %d' % (idx[0], idx[1]))
        a('s_add_u32 s88, s88, %d' % idx[2])
        a('s_lshl_b64 exec, 1, s88')
        a('s_waitcnt lgkmcnt(0)')
        a('v_mov_b32 v%d, s%d' % (vST, sST))
        a('s_mov_b64 exec, -1')
    else:
        a('s_waitcnt lgkmcnt(0)')
        a('v_writelane_b32 v%d, s%d, %d' % (vST, sST, idx))


DBGMAP = {1: {0: 1, 3: 2, 6: 3, 10: 6, 16: 7, 44: 10, 63: 12, 12: 15},
          2: {0: 1, 3: 2, 6: 3, 10: 8, 16: 9, 44: 11, 63: 13},
          0: {0: 1, 3: 2, 17: 4, 19: 5, 63: 14}}


def endk(a, role):
    if STAMP == 2:
        a('s_waitcnt vmcnt(0)')
        stamp(a, 63)
        a('s_load_dwordx2 s[64:65], s[0:1], 96')
        a('v_readlane_b32 s63, v%d, 0' % vST)
        a('s_not_b32 s63, s63')
        a('v_writelane_b32 v%d, s63, 62' % vST)
        a('v_mov_b32 v10, 0x1000')
        for k, w in list(DBGMAP[role].items()) + [(62, 0)]:
            a('s_movk_i32 s63, %d' % (4 * w))
            a('v_writelane_b32 v10, s63, %d' % k)
        a('s_waitcnt lgkmcnt(0)')
        srd(a, RD, 64, 256)
        a('buffer_atomic_umax v%d, v10, %s, 0 offen sc1' % (vST, R4(RD)))
    elif STAMP:
        a('s_waitcnt vmcnt(0)')
        stamp(a, 63)
        a('s_lshl_b32 s63, s2, 3')
        a('s_add_u32 s63, s63, s%d' % sW)
        a('s_lshl_b32 s63, s63, 8')
        a('s_add_u32 s63, s63, %s' % hex(STAMPS))
        a('s_mov_b64 exec, -1')
        a('buffer_store_dword v%d, v%d, %s, s63 offen' % (vST, vL4, R4(WS)))
    a('s_endpgm')


def setexec(a, n):
    if n == 64:
        a('s_mov_b64 exec, -1')
    elif n <= 6:
        a('s_mov_b64 exec, %d' % ((1 << n) - 1))
    elif n <= 32:
        a('s_mov_b32 exec_lo, %s' % ('-1' if n == 32 else hex((1 << n) - 1))); a('s_mov_b32 exec_hi, 0')
    else:
        a('s_mov_b32 exec_lo, -1'); a('s_mov_b32 exec_hi, %s' % hex((1 << (n - 32)) - 1))


def emit(a, lst):
    for l in lst:
        a(l)


def flag_store(a, soff, vT, sc1):
    a('v_mov_b32 v%d, s%d' % (vT, sTAG))
    a('s_mov_b64 exec, 1')
    a('buffer_store_dword v%d, off, %s, s%d%s' % (vT, R4(WS), soff, ' sc1' if sc1 else ''))
    a('s_mov_b64 exec, -1')


def hello_load(a, vT, st):
    a('s_lshl_b32 s%d, s%d, 12' % (st, sX))
    a('s_add_u32 s%d, s%d, %d' % (st, st, HELLO))
    a('v_and_b32 v%d, 0x7c, v%d' % (vT + 2, vL4))
    a('v_lshlrev_b32 v%d, 5, v%d' % (vT + 2, vT + 2))
    a('buffer_load_dword v%d, v%d, %s, s%d offen sc1' % (vT, vT + 2, R4(WS), st))


def hello_store(a, young):
    a('s_lshl_b32 s66, s2, 7')
    a('s_and_b32 s66, s66, 0x380')
    a('s_lshl_b32 s66, s66, 5')
    a('s_lshl_b32 s67, s%d, 7' % sI)
    a('s_add_u32 s66, s66, s67')
    a('s_add_u32 s66, s66, %d' % HELLO)
    a('s_cmp_eq_u32 s%d, 7' % sW)
    a('s_cselect_b32 s67, 0, 0x10000000')
    a('v_mov_b32 v5, s67')
    a('s_lshl_b32 s67, s%d, 1' % sXCC)
    a('s_waitcnt vmcnt(%d)' % young)
    get_tag(a, 4)
    a('s_xor_b32 s67, s67, s%d' % sTAG)
    a('v_mov_b32 v4, s67')
    a('s_mov_b64 exec, 1')
    a('buffer_store_dword v4, v5, %s, s66 offen sc1' % R4(WS))
    a('s_mov_b64 exec, -1')


def hello_check(a, vT, st, young):
    L, C, D = a.newlabel('HL'), a.newlabel('HC'), a.newlabel('HD')
    a('s_mov_b32 s%d, 0' % sCNT)
    a('s_waitcnt vmcnt(%d)' % young)
    a('s_branch %s' % C)
    a.label(L)
    a('buffer_load_dword v%d, v%d, %s, s%d offen sc1' % (vT, vT + 2, R4(WS), st))
    a('s_add_u32 s%d, s%d, 1' % (sCNT, sCNT))
    a('s_waitcnt vmcnt(0)')
    a.label(C)
    a('v_xor_b32 v%d, s%d, v%d' % (vT, sTAG, vT))
    a('v_cmp_lt_u32 vcc, 15, v%d' % vT)
    a('v_and_b32 v%d, 1, v%d' % (vT + 1, vT))
    a('v_cmp_ne_u32 s[64:65], 0, v%d' % (vT + 1))
    a('s_or_b64 vcc, vcc, s[64:65]')
    a('s_cbranch_vccz %s' % D)
    a('s_cmp_lt_u32 s%d, s%d' % (sCNT, sLIM))
    a('s_cbranch_scc1 %s' % L)
    a('s_mov_b32 s%d, 0' % sLIM)
    a.label(D)
    a('s_lshl_b32 s%d, s%d, 1' % (st, sXCC))
    a('v_cmp_ne_u32 vcc, s%d, v%d' % (st, vT))
    a('s_cmp_lg_u64 vcc, 0')
    a('s_cselect_b32 s%d, 1, %d' % (sSLOW, FORCE_SLOW))


def get_tag(a, vE):
    a('v_readfirstlane_b32 s%d, v%d' % (sTAG, vE))
    a('s_mul_i32 s%d, s%d, 0x9E3779B1' % (sTAG, sTAG))
    a('s_add_u32 s%d, s%d, 0x7F4A7C15' % (sTAG, sTAG))


class Ool:
    def __init__(self, a):
        self.a, self.q = a, []
    def add(self, fn):
        self.q.append(fn)
    def flush(self):
        while self.q:
            self.q.pop(0)()


def both2(a, ool, texts):
    if isinstance(texts, str):
        texts = [texts]
    S, R = a.newlabel('BS'), a.newlabel('BR')
    def slow():
        a.label(S)
        for t in texts:
            a(t + ' sc1' if t.startswith('buffer_') else t)
        a('s_branch %s' % R)
    ool.add(slow)
    return ['s_cmp_lg_u32 s%d, 0' % sSLOW, 's_cbranch_scc1 %s' % S] + texts + [R + ':']


def oob_lane0(a, v):
    a('v_cmp_eq_u32 vcc, 0, v%d' % vL4)
    a('v_mov_b32 v%d, 0x10000000' % v)
    a('v_cndmask_b32_e64 v%d, v%d, 0, vcc' % (v, v))


def cnt_min(X):
    return ['v_min_u32 v%d, v%d, v%d' % (X, X, X + 1), 'v_min3_u32 v%d, v%d, v%d, v%d' % (X, X, X + 2, X + 3)]


def cnt_spin(a, ool, X, vLine, vCnt, pre=None):
    S, R = a.newlabel('CS'), a.newlabel('CR')
    def spin():
        L = a.newlabel('CL')
        a.label(S)
        if pre:
            pre()
        a('s_mov_b32 s%d, 0' % sCNT)
        a.label(L)
        a('ds_read_b128 %s, v%d' % (vr(X, 4), vLine))
        a('s_add_u32 s%d, s%d, 1' % (sCNT, sCNT))
        a('s_waitcnt lgkmcnt(0)')
        emit(a, cnt_min(X))
        a('v_cmp_gt_u32 vcc, v%d, v%d' % (vCnt, X))
        a('s_cbranch_vccz %s' % R)
        a('s_cmp_lt_u32 s%d, %d' % (sCNT, 4 * LIMIT))
        a('s_cbranch_scc1 %s' % L)
        a('s_branch %s' % R)
    ool.add(spin)
    a('s_waitcnt lgkmcnt(0)')
    emit(a, cnt_min(X))
    a('v_cmp_gt_u32 vcc, v%d, v%d' % (vCnt, X))
    a('s_cbranch_vccnz %s' % S)
    a.label(R)


def block_poll(a, v, vOff, so):
    L, D = a.newlabel('PL'), a.newlabel('PD')
    a('s_mov_b32 s%d, 0' % sCNT)
    a.label(L)
    a('buffer_load_dword v%d, v%d, %s, s%d offen sc1' % (v, vOff, R4(WS), so))
    a('s_add_u32 s%d, s%d, 1' % (sCNT, sCNT))
    a('s_waitcnt vmcnt(0)')
    a('v_cmp_ne_u32 vcc, s%d, v%d' % (sTAG, v))
    a('s_cbranch_vccz %s' % D)
    a('s_cmp_lt_u32 s%d, s%d' % (sCNT, sLIM))
    a('s_cbranch_scc1 %s' % L)
    a('s_mov_b32 s%d, 0' % sLIM)
    a.label(D)


def dummy_off(a, sD):
    a('s_lshl_b32 s%d, s2, 7' % sD)
    a('s_lshl_b32 s63, s%d, 2' % sW)
    a('s_add_u32 s%d, s%d, s63' % (sD, sD))
    a('s_add_u32 s%d, s%d, %d' % (sD, sD, DUMMY))


class LdsQ:
    def __init__(self, a):
        self.a, self.q = a, []
    def issue(self, key, text):
        self.a(text); self.q.append(key)
    def wait(self, keys):
        last = -1
        for i, k in enumerate(self.q):
            if k in keys:
                last = i
        if last >= 0:
            n = len(self.q) - 1 - last
            self.a('s_waitcnt lgkmcnt(%d)' % n)
            self.q = self.q[last + 1:]


def g2_ids(a, sk, sc):
    a('s_sub_u32 s%d, s%d, 14' % (sc, sI))
    a('s_mul_i32 s%d, s%d, 52' % (sk, sc))
    a('s_lshr_b32 s%d, s%d, 8' % (sk, sk))
    a('s_mul_i32 s63, s%d, 5' % sk)
    a('s_sub_u32 s%d, s%d, s63' % (sc, sc))


def w_setup(a, g):
    if g == 1:
        srd(a, RA, pW1, 640 * 3456)
        a('s_lshl_b32 s66, s%d, 8' % sI)
    else:
        srd(a, RA, pW2, 1728 * 1280)
        g2_ids(a, 66, 67)
        a('s_mul_i32 s66, s66, %d' % (576 * 1280))
        a('s_lshl_b32 s67, s67, 8')
        a('s_add_u32 s66, s66, s67')
    a('v_lshrrev_b32 v10, 4, v%d' % vL)
    a('v_bfe_u32 v11, v%d, 2, 2' % vL)
    a('v_xor_b32 v12, v10, v11')
    a('v_and_b32 v13, 3, v%d' % vL)
    a('v_lshl_add_u32 v12, v12, 2, v13')
    a('v_mul_u32_u24 v%d, %d, v10' % (vWO, RS[g]))
    a('v_lshl_add_u32 v%d, v12, 4, v%d' % (vWO, vWO))
    a('v_add_u32 v%d, s66, v%d' % (vWO, vWO))
    a('v_lshrrev_b32 v12, 5, v%d' % vL)
    a('v_lshl_add_u32 v12, v12, 3, v11')
    a('v_lshlrev_b32 v%d, 8, v12' % vWT)
    a('v_xor_b32 v12, s%d, v11' % sQ)
    a('v_lshl_add_u32 v%d, v12, 6, v%d' % (vWT, vWT))
    a('v_and_b32 v12, 1, v13')
    a('v_lshl_add_u32 v%d, v12, 5, v%d' % (vWT, vWT))
    a('v_and_b32 v12, 1, v10')
    a('v_lshl_add_u32 v%d, v12, 4, v%d' % (vWT, vWT))
    a('v_lshrrev_b32 v12, 1, v13')
    a('v_lshl_add_u32 v%d, v12, 3, v%d' % (vWT, vWT))


def w_begin(a, g, ks0, sIdx, sub, nw, lds):
    a('s_sub_u32 s63, s%d, %d' % (sIdx, sub))
    a('s_lshl_b32 s%d, s63, 10' % sWL)
    a('s_add_u32 s%d, s%d, %d' % (sWL, sWL, lds))
    a('s_add_u32 s63, s63, %d' % (4 * ks0))
    a('s_mul_i32 s%d, s63, %d' % (sWO, 4 * RS[g]))
    a('s_mov_b32 s%d, %d' % (sWS, 4 * RS[g] * nw))


def w_piece(nw):
    return ['s_mov_b32 m0, s%d' % sWL, 's_add_u32 s%d, s%d, %d' % (sWL, sWL, 1024 * nw),
            'buffer_load_dwordx4 v%d, %s, s%d offen lds' % (vWO, R4(RA), sWO), 's_add_u32 s%d, s%d, s%d' % (sWO, sWO, sWS)]


def w_stream(a, n, nw, P, dummy=None):
    if n == 0:
        return
    L = a.newlabel('WS')
    a('s_mov_b32 s63, %d' % n)
    a.label(L)
    a('s_waitcnt vmcnt(%d)' % (P - 1))
    if dummy is None:
        emit(a, w_piece(nw))
    else:
        a('buffer_load_dwordx4 %s, v%d, %s, s%d offen' % (vr(dummy, 4), vWO, R4(RA), sWO))
        a('s_add_u32 s%d, s%d, s%d' % (sWO, sWO, sWS))
    a('s_sub_u32 s63, s63, 1')
    a('s_cmp_lg_u32 s63, 0')
    a('s_cbranch_scc1 %s' % L)


def w_read(a, g, ks0, n, lds):
    a('v_add_u32 v10, %d, v%d' % (lds, vWT))
    for k in range(n):
        if k == 16:
            a('v_add_u32 v10, 0x10000, v10')
        for hh in range(2):
            a('ds_read_b64_tr_b16 %s, v10 offset:%d' % (vr(WB[g] + 4 * (ks0 + k) + 2 * hh, 2), 4096 * (k & 15) + 1024 * hh))
        if k % 4 == 3:
            a('s_waitcnt lgkmcnt(6)')
    a('s_waitcnt lgkmcnt(0)')


TAP = 16
HQ, HD = (16, 100), (40, 124)
QT = 76


def conv_channel(a, g, sSlot, sCh, sDum):
    if g == 1:
        a('s_lshl_b32 s%d, s%d, 1' % (sCh, sI))
    else:
        a('s_lshl_b32 s%d, s%d, 2' % (sCh, sI))
        a('s_sub_u32 s%d, s%d, 28' % (sCh, sCh))
    a('s_add_u32 s%d, s%d, s%d' % (sCh, sCh, sSlot))
    a('s_cmp_ge_u32 s%d, 80' % sCh)
    a('s_cselect_b32 s%d, 1, 0' % sDum)
    a('s_cselect_b32 s63, 80, 0')
    a('s_sub_u32 s%d, s%d, s63' % (sCh, sCh))


def ssm_loads(a, g, sSlot, n):
    conv_channel(a, g, sSlot, 66, 67)
    a('s_mul_i32 s67, s%d, 80' % sX)
    a('s_add_u32 s66, s66, s67')
    a('s_lshl_b32 s66, s66, 12')
    srd(a, RD, pH, 4096, 's66')
    a('v_subrev_u32 v10, 32, v%d' % vL16)
    a('v_subrev_u32 v11, 16, v%d' % vL16)
    a('v_add_u32 v12, 992, v%d' % vL16)
    a('buffer_load_dwordx4 %s, v10, %s, 0 offen' % (vr(HQ[n], 4), R4(RD)))
    a('buffer_load_dwordx2 %s, v11, %s, 0 offen' % (vr(HD[n], 2), R4(RD)))
    for j in range(1, 5):
        a('buffer_load_dwordx4 %s, v12, %s, 0 offen offset:%d' % (vr(HQ[n] + 4 * j, 4), R4(RD), 1024 * (j - 1)))
        a('buffer_load_dwordx2 %s, v12, %s, 0 offen offset:%d' % (vr(HD[n] + 2 * j, 2), R4(RD), 1024 * (j - 1) + 16))


def ssm_build(a, sSlot, n):
    a('s_mul_i32 s66, s%d, %d' % (sSlot, CSL))
    a('v_add_u32 v5, s66, v%d' % vL16)
    for r in range(4):
        a('v_mov_b32 v%d, 0' % (56 + r))
    setexec(a, 32)
    a('ds_write_b128 v5, v[56:59] offset:%d' % (CUO + 4096))
    setexec(a, 64)
    for j in range(5):
        if j == 4:
            a('s_mov_b64 exec, 3')
        d = [HQ[n] + 4 * j + e for e in range(4)] + [HD[n] + 2 * j, HD[n] + 2 * j + 1]
        T1, T2, T3 = 60 + 12 * (j & 1), 64 + 12 * (j & 1), 68 + 12 * (j & 1)
        a('ds_write_b128 v5, %s offset:%d' % (vr(d[0], 4), 1024 * j))
        for e in range(4):
            a('v_alignbit_b32 v%d, v%d, v%d, 16' % (T1 + e, d[e + 1], d[e]))
        a('ds_write_b128 v5, %s offset:%d' % (vr(T1, 4), 1024 * j + HSTR))
        for e in range(4):
            a('v_mov_b32 v%d, v%d' % (T2 + e, d[e + 1]))
        a('ds_write_b128 v5, %s offset:%d' % (vr(T2, 4), 1024 * j + 2 * HSTR))
        for e in range(4):
            a('v_alignbit_b32 v%d, v%d, v%d, 16' % (T3 + e, d[e + 2], d[e + 1]))
        a('ds_write_b128 v5, %s offset:%d' % (vr(T3, 4), 1024 * j + 3 * HSTR))
        if j & 1:
            a('s_waitcnt lgkmcnt(4)')
    setexec(a, 64)


def row_table(a, T, tmp):
    a('s_movk_i32 s63, 820')
    for k in range(5):
        a('v_add_u32 v%d, %d, v%d' % (tmp, 64 * k, vL))
        a('v_mul_u32_u24 v%d, s63, v%d' % (tmp + 1, tmp))
        a('v_lshrrev_b32 v%d, 16, v%d' % (tmp + 1, tmp + 1))
        a('v_lshlrev_b32 v%d, 1, v%d' % (tmp + 1, tmp + 1))
        a('v_xor_b32 v%d, v%d, v%d' % (tmp, tmp, tmp + 1))
        a('v_lshlrev_b32 v%d, 4, v%d' % (T + k, tmp))


def s_ids(a, hf=sHF, q=sQ):
    a('s_sub_u32 s70, s%d, 29' % sI)
    a('s_mul_i32 s71, s%d, 3' % hf)
    a('s_add_u32 s70, s70, s71')
    a('s_and_b32 s71, s70, 1')
    a('s_lshr_b32 s70, s70, 1')
    a('s_mul_i32 s72, s%d, 20480' % hf)
    a('s_mul_i32 s63, s%d, 5120' % q)
    a('s_add_u32 s72, s72, s63')
    a('s_lshl_b32 s73, s70, 8')
    a('s_lshl_b32 s63, s%d, 5' % sX)
    a('s_add_u32 s73, s73, s63')
    a('s_lshl_b32 s63, s71, 4')
    a('s_add_u32 s73, s73, s63')
    a('s_lshl_b32 s63, s%d, 2' % q)
    a('s_add_u32 s73, s73, s63')
    a('s_mul_i32 s73, s73, 1280')


def q_dma(a, s, QT=QT):
    a('s_add_u32 s66, s73, %d' % (768 * 1280 * s))
    a('s_min_u32 s66, s66, %d' % (ROWS_B - 5120))
    for k in range(5):
        a('s_add_u32 m0, s72, %d' % (40960 * s + 1024 * k))
        a('buffer_load_dwordx4 v%d, %s, s66 offen lds' % (QT + k, R4(RA)))


def early(a, g, kvw):
    n = 0
    if kvw:
        srd(a, RD, pSH, 5120)
        a('s_mul_i32 s66, s%d, 640' % sX)
        a('s_lshl_b32 s67, s%d, 7' % sW)
        a('s_add_u32 s66, s66, s67')
        a('v_and_b32 v10, 3, v%d' % vL)
        a('v_lshlrev_b32 v10, 3, v10')
        for it in range(4):
            a('buffer_load_dwordx2 %s, v10, %s, s66 offen offset:%d' % (vr(TAP + 2 * it, 2), R4(RD), 32 * it))
        if g:
            w_setup(a, g)
        a('s_waitcnt vmcnt(4)')
        get_tag(a, 4)
        stamp(a, 1)
        a('s_barrier')
        a('s_branch KV')
        return
    if g == 0:
        srd(a, RA, pQ, hex(ROWS_B))
        row_table(a, QT, 10)
        for r in range(3):
            a('s_add_u32 s74, s%d, %d' % (sW, 3 * r - 5))
            a('s_min_u32 s74, s74, 7')
            a('s_lshr_b32 s75, s74, 2')
            a('s_and_b32 s74, s74, 3')
            s_ids(a, 75, 74)
            q_dma(a, 0)
        hello_store(a, 18)
        a('s_waitcnt vmcnt(16)')
        stamp(a, 1)
        a('s_barrier')
        a('s_branch NOBUILD')
        return
    if g == 1:
        a('s_cmp_eq_u32 s%d, 7' % sW)
        a('s_cbranch_scc1 E_LD')
    a('s_sub_u32 s68, s%d, 5' % sW)
    ssm_loads(a, g, 68, 0)
    n += 10
    if g == 2:
        a('s_mov_b32 s69, 3')
        ssm_loads(a, g, 69, 1)
        n += 10
    w_setup(a, g)
    nw = 0
    if g == 2 and NA2:
        w_begin(a, g, 0, sW, 5, 3, RING[g])
        nw = 4 * NA2 // 3
        for k in range(nw):
            emit(a, w_piece(3))
    if g == 2:
        hello_store(a, 3 + n + nw)
        nw += 1
    a('s_waitcnt vmcnt(%d)' % (n + nw))
    if g == 1:
        get_tag(a, 4)
    stamp(a, 1)
    a('s_barrier')
    a('s_waitcnt vmcnt(%d)' % (n - 10 + nw))
    ssm_build(a, 68, 0)
    if g == 2:
        a('s_cmp_lg_u32 s%d, 5' % sW)
        a('s_cbranch_scc1 NOBUILD')
        a('s_waitcnt vmcnt(%d)' % nw)
        ssm_build(a, 69, 1)
    a('s_branch NOBUILD')
    if g == 1:
        a.label('E_LD')
        w_setup(a, g)
        w_begin(a, g, 0, sW, 7, 1, RING[g])
        n0 = min(PA, 4 * NA1)
        for k in range(n0):
            emit(a, w_piece(1))
        hello_store(a, 3 + n0)
        a('s_waitcnt vmcnt(%d)' % (n0 + 1))
        stamp(a, 1)
        a('s_barrier')
        w_stream(a, 4 * NA1 - n0, 1, PA)
        a('s_branch BUILT')


def kv_phase(a):
    PV, CU, VV, T = 24, 32, 40, 48
    a.label('KV')
    a('v_and_b32 v10, 3, v%d' % vL)
    a('v_bfe_u32 v11, v%d, 2, 2' % vL)
    a('v_and_b32 v12, 0x30, v%d' % vL)
    a('v_lshl_add_u32 v12, v10, 2, v12')
    a('v_add_u32 v12, v12, v11')
    a('v_mul_u32_u24 v12, 176, v12')
    a('s_lshl_b32 s66, s%d, 5' % sW)
    a('s_add_u32 s66, s66, %d' % L_KST)
    a('v_add_u32 v12, s66, v12')
    for it in range(4):
        a('ds_read_b64_tr_b16 %s, v12 offset:%d' % (vr(PV + 2 * it, 2), 8 * it))
        a('ds_read_b64_tr_b16 %s, v12 offset:%d' % (vr(CU + 2 * it, 2), 8 * it + 704))
        a('ds_read_b64_tr_b16 %s, v12 offset:%d' % (vr(VV + 2 * it, 2), 8 * it + L_VST - L_KST))
    a('s_waitcnt vmcnt(0)')
    for r in range(8):
        a('v_alignbit_b32 v%d, v%d, v%d, 16' % (TAP + r, TAP + r, TAP + r))
    a('s_mul_i32 s66, s%d, 2560' % sW)
    a('s_add_u32 s66, s66, %d' % L_OST)
    a('v_mul_u32_u24 v13, 160, v10')
    a('v_lshrrev_b32 v11, 2, v%d' % vL)
    a('v_lshlrev_b32 v11, 3, v11')
    a('v_sub_u32 v13, v13, v11')
    a('s_add_u32 s67, s66, 120')
    a('v_add_u32 v13, s67, v13')
    a('v_lshrrev_b32 v10, 3, v%d' % vL)
    a('v_and_b32 v11, 7, v%d' % vL)
    a('v_lshlrev_b32 v11, 4, v11')
    a('v_mul_u32_u24 v14, 160, v10')
    a('v_add3_u32 v14, s66, v14, v11')
    a('v_lshl_add_u32 v5, v10, 12, v11')
    for it in range(4):
        a('s_waitcnt lgkmcnt(%d)' % (9 - 3 * it + it))
        P0, P1, C0, C1, V0, V1, W10, W32 = PV + 2 * it, PV + 2 * it + 1, CU + 2 * it, CU + 2 * it + 1, VV + 2 * it, VV + 2 * it + 1, TAP + 2 * it, TAP + 2 * it + 1
        O0, O1, O2, A, U = T, T + 1, T + 2, T + 4, T + 8
        a('v_alignbit_b32 v%d, v%d, v%d, 16' % (O0, P1, P0))
        a('v_alignbit_b32 v%d, v%d, v%d, 16' % (O1, C0, P1))
        a('v_alignbit_b32 v%d, v%d, v%d, 16' % (O2, C1, C0))
        for t, (h, l) in enumerate(((O1, O0), (C0, P1), (O2, O1), (C1, C0))):
            a('v_dot2_f32_bf16 v%d, v%d, v%d, 0' % (A + t, l, W32))
        a('v_lshlrev_b32 v%d, 16, v%d' % (U, V0))
        a('v_and_b32 v%d, s%d, v%d' % (U + 1, sHI, V0))
        for t, (h, l) in enumerate(((O1, O0), (C0, P1), (O2, O1), (C1, C0))):
            a('v_dot2c_f32_bf16 v%d, v%d, v%d' % (A + t, h, W10))
        a('v_lshlrev_b32 v%d, 16, v%d' % (U + 2, V1))
        a('v_and_b32 v%d, s%d, v%d' % (U + 3, sHI, V1))
        for t in range(4):
            a('v_mul_f32 v%d, v%d, v%d' % (A + t, A + t, U + t))
        a('v_cvt_pk_bf16_f32 v%d, v%d, v%d' % (PV + 2 * it, A + 3, A + 2))
        a('v_cvt_pk_bf16_f32 v%d, v%d, v%d' % (PV + 2 * it + 1, A + 1, A))
        a('ds_write_b64 v13, %s offset:%d' % (vr(PV + 2 * it, 2), 640 * it))
    a('s_mul_i32 s67, s%d, 80' % sX)
    a('s_lshl_b32 s66, s%d, 4' % sW)
    a('s_add_u32 s67, s67, s66')
    a('s_lshl_b32 s67, s67, 12')
    a('s_lshl_b32 s66, s%d, 7' % sI)
    a('s_sub_u32 s67, s67, s66')
    a('s_add_u32 s67, s67, 3968')
    a('ds_read_b128 %s, v14' % vr(CU, 4))
    a('ds_read_b128 %s, v14 offset:1280' % vr(CU + 4, 4))
    a('s_mul_i32 s68, s%d, 5' % sX)
    a('s_add_u32 s68, s68, s%d' % sW)
    a('s_lshl_b32 s68, s68, 7')
    a('s_lshl_b32 s66, s%d, 2' % sI)
    a('s_add_u32 s68, s68, s66')
    for k in range(2):
        a('s_add_u32 s66, s67, %s' % hex(KVA + 32768 * k))
        a('s_waitcnt lgkmcnt(%d)' % (1 - k))
        a('buffer_store_dwordx4 %s, v5, %s, s66 offen' % (vr(CU + 4 * k, 4), R4(WS)))
    stamp(a, 2)
    hello_load(a, 44, 69)
    a('s_lshl_b32 s66, s%d, 1' % sXCC)
    a('s_add_u32 s66, s66, s%d' % sTAG)
    a('v_mov_b32 v4, s66')
    a('s_add_u32 s66, s68, %d' % KVFA)
    a('s_waitcnt vmcnt(1)')
    a('s_mov_b64 exec, 1')
    a('buffer_store_dword v4, off, %s, s66' % R4(WS))
    a('s_mov_b64 exec, -1')
    stamp(a, 3)
    hello_check(a, 44, 69, 1)
    a('s_cmp_eq_u32 s%d, 0' % sSLOW)
    a('s_cbranch_scc1 ROLES')
    for k in range(2):
        a('s_add_u32 s66, s67, %s' % hex(KVB + 32768 * k))
        a('buffer_store_dwordx4 %s, v5, %s, s66 offen sc1' % (vr(CU + 4 * k, 4), R4(WS)))
    a('s_add_u32 s66, s68, %d' % KVFB)
    a('s_waitcnt vmcnt(0)')
    flag_store(a, 66, 4, True)
    a('s_branch ROLES')
    a.label('NOBUILD')
    stamp(a, 2)
    hello_load(a, 44, 69)
    hello_check(a, 44, 69, 0)
    stamp(a, 3)
    a.label('ROLES')
    a('s_cmp_ge_u32 s%d, 29' % sI)
    a('s_cbranch_scc1 S_MAIN')
    a.label('BUILT')
    stamp(a, 12)


CACC, CB, CA, CE, CT = 16, 32, 64, 96, 104
vCA, vCB = 14, 15


def conv_part(a, taus, U, mid=None, each=None):
    mf = [(aa, t - aa, t) for aa in range(max(taus) + 1) for t in taus if t >= aa]
    nf = max(taus) + 1
    D = 8 // nf
    assert U % D == 0
    order, last = [], {}
    for i, (aa, j, t) in enumerate(mf):
        for f in (('B', j), ('A', aa)):
            if f not in last:
                order.append(f)
            last[f] = i
    def reg(f, k):
        return (CA if f[0] == 'A' else CB) + 4 * (f[1] + nf * (k % D))
    def load(f, k):
        if f[0] == 'A':
            off = 512 * f[1] + 64 * k
            return ['ds_read_b64 %s, v%d offset:%d' % (vr(reg(f, k), 2), vCA, off),
                    'ds_read_b64 %s, v%d offset:%d' % (vr(reg(f, k) + 2, 2), vCA, off + 8)]
        return ['ds_read_b128 %s, v%d offset:%d' % (vr(reg(f, k), 4), vCB, 512 * (7 - f[1]) + 64 * k)]
    q, need = [], {}
    for k in range(D):
        for f in order:
            q += [(f, k)] * len(load(f, 0))
    for k in range(8):
        for i, (aa, j, t) in enumerate(mf):
            pos = max(n for n, e in enumerate(q) if e in ((('A', aa), k), (('B', j), k)))
            key = (k % U, i)
            need[key] = min(need.get(key, 15), len(q) - 1 - pos)
            for f in (('A', aa), ('B', j)):
                if last[f] == i and (k + D < 8 or U < 8):
                    q += [(f, k + D)] * len(load(f, 0))
    st = [0]
    def issue(l):
        for x in l:
            if st[0] >= 15:
                a('s_waitcnt lgkmcnt(12)')
                st[0] = 12
            a(x)
            st[0] += 1
    for k in range(D):
        for f in order:
            issue(load(f, k))
    if U < 8:
        for r in range(4 * len(taus)):
            a('v_mov_b32 v%d, 0' % (CACC + r))
        L, X = a.newlabel('CL'), a.newlabel('CX')
        a('s_mov_b32 s63, 0')
        a.label(L)
        st[0] = 15
    for c in range(U):
        for i, (aa, j, t) in enumerate(mf):
            n = need[(c, i)]
            if n < st[0]:
                a('s_waitcnt lgkmcnt(%d)' % n)
                st[0] = n
            acc = CACC + 4 * (t - taus[0])
            cc = '0' if (U == 8 and c == 0 and aa == 0) else vr(acc, 4)
            a('v_mfma_f32_16x16x32_bf16 %s, %s, %s, %s' % (vr(acc, 4), vr(reg(('A', aa), c), 4), vr(reg(('B', j), c), 4), cc))
            for f in (('A', aa), ('B', j)):
                if last[f] == i and (c + D < 8 or U < 8):
                    issue(load(f, c + D))
            if U == 8 and mid and c == 4 and i == 0:
                mid()
    if U < 8:
        if each:
            each()
        a('v_add_u32 v%d, %d, v%d' % (vCA, 64 * U, vCA))
        a('v_add_u32 v%d, %d, v%d' % (vCB, 64 * U, vCB))
        a('s_add_u32 s63, s63, 1')
        a('s_cmp_lt_u32 s63, %d' % (8 // U))
        if mid:
            assert U == 4
            a('s_cbranch_scc0 %s' % X)
            mid()
            a('s_branch %s' % L)
            a.label(X)
        else:
            a('s_cbranch_scc1 %s' % L)
        a('v_subrev_u32 v%d, 512, v%d' % (vCA, vCA))
        a('v_subrev_u32 v%d, 512, v%d' % (vCB, vCB))


def conv_flags(a, stages, young=0):
    a('s_waitcnt vmcnt(%d)' % young)
    a('s_mov_b64 exec, 1')
    for n, stage in enumerate(stages):
        a('ds_add_rtn_u32 v%d, v12, v13 offset:%d' % (10 + n, 4 * stage))
    a('s_mov_b64 exec, -1')
    a('s_waitcnt lgkmcnt(0)')
    for n, stage in enumerate(stages):
        L = a.newlabel('CF')
        a('v_readfirstlane_b32 s66, v%d' % (10 + n))
        a('s_cmp_lg_u32 s66, s71')
        a('s_cbranch_scc1 %s' % L)
        a('s_add_u32 s66, s76, %d' % (32768 * stage))
        flag_store(a, 66, 10 + n, True)
        a.label(L)


def conv_item(a, stages, U, st_, mid=None, defer=False, each=None):
    taus = [t for st in stages for t in (2 * st, 2 * st + 1)]
    conv_part(a, taus, U, mid, each)
    stamp(a, st_)
    T = CT
    a('s_waitcnt lgkmcnt(8)')
    for n, t in enumerate(taus):
        a('ds_read_b64 %s, v4 offset:%d' % (vr(CE + 2 * n, 2), 512 * (7 - t)))
    for m, stage in enumerate(stages):
        a('s_add_u32 s66, s75, %d' % (2 * 327680 * stage))
        a('s_waitcnt lgkmcnt(%d)' % (2 * (len(stages) - 1 - m)))
        Q = CT + 4 + 4 * m + (8 if defer else 0)
        for h in range(2):
            e0, e1 = CE + 4 * m + 2 * h, CE + 4 * m + 2 * h + 1
            acc = CACC + 8 * m + 4 * h
            a('v_and_b32 v%d, s%d, v%d' % (T + 0, sHI, e1))
            a('v_lshlrev_b32 v%d, 16, v%d' % (T + 1, e1))
            a('v_and_b32 v%d, s%d, v%d' % (T + 2, sHI, e0))
            a('v_lshlrev_b32 v%d, 16, v%d' % (T + 3, e0))
            for r in range(4):
                a('v_fmac_f32 v%d, s74, v%d' % (acc + r, T + r))
            a('v_cvt_pk_bf16_f32 v%d, v%d, v%d' % (Q + 2 * h, acc, acc + 1))
            a('v_cvt_pk_bf16_f32 v%d, v%d, v%d' % (Q + 2 * h + 1, acc + 2, acc + 3))
        a('v_permlane16_swap_b32 v%d, v%d' % (Q, Q + 2))
        a('v_permlane16_swap_b32 v%d, v%d' % (Q + 1, Q + 3))
        a('buffer_store_dwordx4 %s, v5, %s, s66 offen sc1' % (vr(Q, 4), R4(WS)))
    if not defer:
        conv_flags(a, stages)


def conv_phase(a):
    a('s_cmp_ge_u32 s%d, 14' % sI)
    a('s_cbranch_scc1 CV_G2')
    a('s_and_b32 s69, s%d, 1' % sW)
    a('s_lshr_b32 s63, s%d, 1' % sW)
    a('s_lshl_b32 s63, s63, 2')
    a('s_lshr_b32 s77, 0x2814, s63')
    a('s_and_b32 s77, s77, 15')
    conv_channel(a, 1, 69, 64, 65)
    a('s_branch CV_COM')
    a.label('CV_G2')
    a('s_mov_b32 s69, s%d' % sQ)
    a('s_cmp_eq_u32 s%d, 0' % sHF)
    a('s_cselect_b32 s77, 16, 9')
    conv_channel(a, 2, 69, 64, 65)
    a.label('CV_COM')
    a('s_lshr_b32 s78, s64, 4')
    a('s_mul_i32 s79, s%d, 5' % sX)
    a('s_add_u32 s78, s78, s79')
    a('s_lshl_b32 s78, s78, 7')
    a('s_add_u32 s78, s78, %d' % KVFA)
    a('s_mul_i32 s79, s%d, 80' % sX)
    a('s_add_u32 s64, s64, s79')
    a('s_and_b32 s66, s64, 0xfffffffe')
    a('s_lshl_b32 s66, s66, 1')
    a('s_load_dword s74, s[%d:%d], s66' % (pD, pD + 1))
    a('s_lshl_b32 s79, s64, 12')
    a('s_mul_i32 s80, s69, %d' % CSL)
    a('s_add_u32 s81, s80, %d' % CUO)
    a('s_bitcmp0_b32 s77, 0')
    a('s_cbranch_scc1 CV_NOLEAD')
    a('v_and_b32 v16, 31, v%d' % vL)
    a('v_lshlrev_b32 v16, 2, v16')
    a('v_lshrrev_b32 v17, 5, v%d' % vL)
    a('v_lshl_add_u32 v16, v17, 13, v16')
    assert KVFB - KVFA == 8192
    a('s_lshl_b32 s66, s%d, 1' % sXCC)
    a('v_mov_b32 v18, s66')
    a('v_cmp_eq_u32 vcc, 0, v17')
    a('v_cndmask_b32 v18, 0, v18, vcc')
    a('v_add_u32 v18, s%d, v18' % sTAG)
    a('s_mov_b32 s%d, 0' % sCNT)
    a.label('CV_POLL')
    a('buffer_load_dword v19, v16, %s, s78 offen sc1' % R4(WS))
    a('s_add_u32 s%d, s%d, 1' % (sCNT, sCNT))
    a('s_waitcnt vmcnt(0)')
    a('v_cmp_ne_u32 vcc, v18, v19')
    a('s_mov_b32 s66, %s' % hex(KVA))
    if not FORCE_SLOW:
        a('s_cmp_eq_u32 vcc_lo, 0')
        a('s_cbranch_scc1 CV_GOT')
    a('s_mov_b32 s66, %s' % hex(KVB))
    a('s_cmp_eq_u32 vcc_hi, 0')
    a('s_cbranch_scc1 CV_GOT')
    a('s_cmp_lt_u32 s%d, s%d' % (sCNT, sLIM))
    a('s_cbranch_scc1 CV_POLL')
    a('s_mov_b32 s%d, 0' % sLIM)
    a.label('CV_GOT')
    a('s_add_u32 s66, s66, s79')
    a('s_mov_b32 m0, s81')
    for k in range(4):
        a('buffer_load_dwordx4 v%d, %s, s66 offen offset:%d sc1 lds' % (vL16, R4(WS), 1024 * k))
    a.label('CV_NOLEAD')
    stamp(a, 4)
    a('s_lshl_b32 s75, s64, 6')
    a('s_add_u32 s75, s75, %s' % hex(YT))
    a('s_lshl_b32 s76, s%d, 5' % sX)
    a('s_add_u32 s76, s76, s%d' % sI)
    a('s_lshl_b32 s76, s76, 7')
    a('s_add_u32 s76, s76, %d' % YF)
    a('s_cmp_ge_u32 s%d, 14' % sI)
    a('s_cselect_b32 s71, 3, 1')
    a('s_add_u32 s66, s71, 1')
    a('s_mul_i32 s66, s66, %d' % CSL)
    a('v_mov_b32 v12, s66')
    a('v_mov_b32 v13, 1')
    a('v_mov_b64 v[16:17], 0')
    a('ds_write2_b64 v12, v[16:17], v[16:17] offset1:1')
    a('s_lshl_b32 s65, s65, 28')
    a('v_and_b32 v16, 15, v%d' % vL)
    a('v_lshrrev_b32 v17, 4, v%d' % vL)
    a('v_add_u32 v18, 1, v16')
    a('v_and_b32 v19, 3, v18')
    a('v_mul_u32_u24 v%d, %d, v19' % (vCA, HSTR))
    a('v_lshrrev_b32 v18, 2, v18')
    a('v_lshl_add_u32 v%d, v18, 3, v%d' % (vCA, vCA))
    a('v_lshl_add_u32 v%d, v17, 4, v%d' % (vCA, vCA))
    a('v_add_u32 v%d, s80, v%d' % (vCA, vCA))
    a('v_lshlrev_b32 v18, 5, v16')
    a('v_lshlrev_b32 v19, 4, v17')
    a('v_sub_u32 v%d, v19, v18' % vCB)
    a('s_add_u32 s66, s81, 480')
    a('v_add_u32 v%d, s66, v%d' % (vCB, vCB))
    a('v_lshl_add_u32 v19, v17, 3, v18')
    a('s_add_u32 s66, s81, 504')
    a('v_sub_u32 v4, s66, v19')
    a('v_and_b32 v19, 1, v17')
    a('v_lshlrev_b32 v19, 3, v19')
    a('v_lshrrev_b32 v18, 1, v16')
    a('v_add_u32 v19, v19, v18')
    a('v_mul_u32_u24 v5, 40960, v19')
    a('v_and_b32 v18, 1, v16')
    a('v_lshl_add_u32 v5, v18, 5, v5')
    a('v_lshrrev_b32 v19, 1, v17')
    a('v_lshl_add_u32 v5, v19, 4, v5')
    a('v_add_u32 v5, s65, v5')
    a('s_waitcnt lgkmcnt(0)')
    a('s_bitcmp1_b32 s64, 0')
    a('s_cbranch_scc1 CV_DHI')
    a('s_lshl_b32 s74, s74, 16')
    a.label('CV_DHI')
    a('s_and_b32 s74, s74, 0xffff0000')
    a('s_bitcmp0_b32 s77, 0')
    a('s_cbranch_scc1 CV_RD')
    a('s_waitcnt vmcnt(0)')
    a.label('CV_RD')
    a('s_barrier')
    stamp(a, 5)
    a('s_bitcmp0_b32 s77, 0')
    a('s_cbranch_scc1 CV_I2')
    a('s_setprio 3')
    conv_item(a, [0], CU_[0], 13, defer=True)
    def mid():
        conv_flags(a, [0])
        stamp(a, 6)
    conv_item(a, [1], CU_[1], 14, mid, defer=True)
    a('s_bitcmp1_b32 s77, 3')
    a('s_cbranch_scc1 CV_L2')
    conv_flags(a, [1])
    stamp(a, 7)
    a.label('CV_I2')
    a('s_bitcmp0_b32 s77, 1')
    a('s_cbranch_scc1 CV_I3')
    conv_item(a, [2], CU_[2], 13)
    stamp(a, 8)
    a.label('CV_I3')
    a('s_setprio 0')
    a('s_bitcmp0_b32 s77, 2')
    a('s_cbranch_scc1 CV_I4')
    conv_item(a, [3], CU_[3], 13)
    stamp(a, 8)
    a.label('CV_I4')
    a('s_bitcmp0_b32 s77, 4')
    a('s_cbranch_scc1 CV_LD')
    if RL:
        nr = NR[2] - NA2
        assert CU_[4] == 2
        w_begin(a, 2, NA2, sW, 0, 4, RING[2] + 4096 * NA2)
        for n in range(nr - 4 * (nr // 4)):
            emit(a, w_piece(4))
        def each():
            for n in range(nr // 4):
                emit(a, w_piece(4))
    conv_item(a, [2, 3], CU_[4], 13, each=each if RL else None)
    stamp(a, 8)
    a.label('CV_LD')
    a('s_bitcmp0_b32 s77, 3')
    a('s_cbranch_scc1 CV_END')
    for g, nw, P, pf in ((1, 2, P1, PF1), (2, 4, P2_, PF2)):
        nr = 4 * (NR[g] - NA[g]) // nw
        npf = 4 * NC[g] // nw if pf else 0
        if g == 2:
            a.label('CV_L2')
            a('s_setprio 0')
            if RL:
                nr = 0
        w_begin(a, g, NA[g] if nr else NR[g], sW, 4, nw, RING[g] + 4096 * NA[g])
        if g == 2:
            n0 = min(P, nr) if nr else min(P, npf)
            w_stream(a, n0, nw, 63, None if nr else DUM[g])
            conv_flags(a, [1], n0)
            stamp(a, 7)
            if nr:
                nr -= n0
            else:
                npf -= n0
        w_stream(a, nr, nw, P)
        w_stream(a, npf, nw, P, DUM[g])
        if g == 1:
            stamp(a, 7)
        if nr:
            a('s_waitcnt vmcnt(%d)' % min(npf, P - 1))
        stamp(a, 8)
        a('s_branch CV_END2')
    a.label('CV_END')
    a('s_cmp_ge_u32 s%d, 14' % sI)
    a('s_cbranch_scc1 CV_END2')
    a('s_cmp_lg_u32 s%d, 7' % sW)
    a('s_cbranch_scc1 CV_END2')
    hello_load(a, 44, 69)
    hello_check(a, 44, 69, 0)
    a.label('CV_END2')
    a('s_barrier')
    stamp(a, 9)
    a('s_cmp_ge_u32 s%d, 14' % sI)
    a('s_cbranch_scc1 G2_INIT')


ZR, NZR, GE, ACC, BIAS = 24, 6, 48, 64, 80
vSO, vLN, vOW, vC1, vRD, vDN, vTH, vOB, vPO, vZ, vTG, vCN, PK, PK2 = 0, 4, 5, 6, 8, 9, 10, 11, 12, 13, 14, 15, 16, 20


def g_phase(a, g):
    N, BUF, NP = NK[g], 1024 * NK[g], NK[g] // 4
    SRC, DSTS = (ZSL, HSL) if g == 1 else (HSL, MSL)
    FST = 32 if g == 1 else 256
    ool = Ool(a)
    T = lambda s: 'G%d_%s' % (g, s)
    a.label(T('INIT'))
    w_begin(a, g, NR[g], sW, 0, 8, 0)
    for k in range(NC[g] // 2):
        emit(a, w_piece(8))
    a('s_cmp_ge_u32 s%d, 4' % sW)
    a('s_cbranch_scc1 %s' % T('I4'))
    emit(a, w_piece(8))
    a.label(T('I4'))
    a('v_lshrrev_b32 v10, 5, v%d' % vL)
    a('v_lshlrev_b32 v10, 5, v10')
    a('s_lshl_b32 s67, s%d, 6' % sQ)
    if g == 1:
        srd(a, RD, pB1, 3456)
        a('s_lshl_b32 s66, s%d, 8' % sI)
    else:
        srd(a, RD, pB2, 1280)
        g2_ids(a, 69, 70)
        a('s_lshl_b32 s66, s70, 8')
        a('s_lshl_b32 s63, s69, 16')
        a('s_add_u32 s66, s66, s63')
    a('s_add_u32 s66, s66, s67')
    a('v_add_u32 v10, s66, v10')
    a('buffer_load_dwordx4 %s, v10, %s, 0 offen' % (vr(GE, 4), R4(RD)))
    a('buffer_load_dwordx4 %s, v10, %s, 0 offen offset:16' % (vr(GE + 4, 4), R4(RD)))
    w_read(a, g, 0, NR[g], RING[g])
    a('s_waitcnt vmcnt(0)')
    a('s_barrier')
    a('v_add_u32 v11, %d, v%d' % (L_SYNC, vL4))
    a('v_mov_b32 v12, 0')
    a('ds_write_b32 v11, v12')
    for i in range(8):
        a('v_lshlrev_b32 v%d, 16, v%d' % (BIAS + 2 * i, GE + i))
        a('v_and_b32 v%d, s%d, v%d' % (BIAS + 2 * i + 1, sHI, GE + i))
    w_read(a, g, NR[g], NC[g], 0)
    a('s_barrier')
    stamp(a, 10)
    a('s_lshl_b32 s66, s%d, 3' % sX)
    a('s_add_u32 s66, s66, s%d' % sHF)
    a('s_mul_i32 s64, s66, %d' % SRC)
    a('s_mul_i32 s74, s66, %d' % DSTS)
    a('s_mul_i32 s67, s%d, %d' % (sQ, 1024 * NP))
    a('s_add_u32 s64, s64, s67')
    a('s_mul_i32 s72, s%d, %d' % (sHF, BUF))
    if g == 1:
        a('s_add_u32 s64, s64, %s' % hex(ZI))
        a('s_lshl_b32 s73, s%d, 10' % sX)
        a('s_lshl_b32 s63, s%d, 5' % sHF)
        a('s_add_u32 s73, s73, s63')
        a('s_add_u32 s73, s73, %d' % ZF)
        a('s_lshl_b32 s68, s%d, 2' % sI)
        a('s_add_u32 s68, s68, s%d' % sQ)
        a('s_lshl_b32 s63, s68, 11')
        a('s_add_u32 s74, s74, s63')
        a('s_add_u32 s74, s74, %s' % hex(HB))
        a('v_and_b32 v%d, 0x1c, v%d' % (vPO, vL4))
        c1 = -2.0 * math.sqrt(2.0 / math.pi) * math.log2(math.e)
        a('v_mov_b32 v%d, %s' % (vC1, f2h(c1)))
    else:
        g2_ids(a, 69, 70)
        a('s_mul_i32 s63, s69, %d' % BUF)
        a('s_add_u32 s64, s64, s63')
        a('s_add_u32 s64, s64, %s' % hex(HB))
        a('s_lshl_b32 s73, s%d, 13' % sX)
        a('s_lshl_b32 s63, s%d, 8' % sHF)
        a('s_add_u32 s73, s73, s63')
        a('s_mul_i32 s63, s69, 72')
        a('s_add_u32 s73, s73, s63')
        a('s_add_u32 s73, s73, %d' % HFL)
        a('s_mul_i32 s63, s69, 40960')
        a('s_add_u32 s74, s74, s63')
        a('s_lshl_b32 s63, s70, 2')
        a('s_add_u32 s63, s63, s%d' % sQ)
        a('s_lshl_b32 s63, s63, 11')
        a('s_add_u32 s74, s74, s63')
        a('s_add_u32 s74, s74, %s' % hex(MR))
        a('s_sub_u32 s68, s%d, 14' % sI)
        a('s_lshl_b32 s68, s68, 2')
        a('s_add_u32 s68, s68, s%d' % sQ)
        a('v_min_u32 v%d, 68, v%d' % (vPO, vL4))
    a('s_lshl_b32 s78, s%d, 13' % sX)
    a('s_lshl_b32 s63, s%d, 8' % sHF)
    a('s_add_u32 s78, s78, s63')
    a('s_lshl_b32 s63, s68, 2')
    a('s_add_u32 s78, s78, s63')
    a('s_add_u32 s78, s78, %d' % (HFL if g == 1 else MFL))
    a('s_mov_b32 s75, %d' % (2 * SRC))
    a('s_mov_b32 s79, %d' % (2 * DSTS))
    a('v_lshrrev_b32 v16, 5, v%d' % vL)
    a('v_and_b32 v17, 31, v%d' % vL)
    a('v_lshlrev_b32 v17, 4, v17')
    a('v_lshl_add_u32 v%d, v16, 10, v17' % vSO)
    a('s_lshl_b32 s63, s%d, 4' % sHF)
    a('s_add_u32 s66, s63, %d' % LF_LND)
    a('v_mov_b32 v%d, s66' % vLN)
    a('s_lshl_b32 s66, s%d, 2' % sW)
    a('s_add_u32 s66, s66, %d' % LF_LND)
    a('v_mov_b32 v%d, s66' % vOW)
    a('s_sub_u32 s66, %d, s63' % (LF_DON + 16))
    a('v_mov_b32 v%d, s66' % vDN)
    a('v_mov_b32 v%d, s%d' % (vTH, sHF))
    a('v_mov_b32 v%d, s%d' % (vTG, sTAG))
    a('v_mov_b32 v%d, 1' % vCN)
    oob_lane0(a, vOB)
    dummy_off(a, 71)
    a('s_mov_b32 s84, s71')
    a('s_mov_b32 s%d, 0' % sP)

    def stage():
        o = []
        for k in range(NP):
            gq = []
            if k == 0:
                gq += ['s_add_u32 m0, s65, s67', 's_mov_b32 s63, s64']
            elif k % 4 == 0:
                gq += ['s_add_u32 m0, m0, 4096', 's_add_u32 s63, s63, 4096']
            gq.append('buffer_load_dwordx4 v%d, %s, s63 offen offset:%d sc1 lds' % (vL16, R4(WS), 1024 * (k & 3)))
            o.append(gq)
        return o
    PEEK = 'ds_read_b128 %s, v%d' % (vr(PK, 4), vLN)
    PEEK2 = 'ds_read_b128 %s, v%d' % (vr(PK2, 4), vDN)
    PLOAD = 'buffer_load_dword v%d, v%d, %s, s73 offen sc1' % (vZ, vPO, R4(WS))
    PCMP = 'v_cmp_ne_u32 vcc, s%d, v%d' % (sTAG, vZ)
    def flag(s):
        return both2(a, ool, 'buffer_store_dword v%d, v%d, %s, s%d offen' % (vTG, vOB, R4(WS), s))
    def store(o, t):
        return both2(a, ool, 'buffer_store_dwordx4 %s, v%d, %s, s74 offen offset:%d' % (vr(o, 4), vSO, R4(WS), 512 * t))

    a('s_mov_b32 s65, s72')
    block_poll(a, vZ, vPO, 73)
    stamp(a, 11)
    for gq in stage():
        emit(a, gq)
    a('s_waitcnt vmcnt(0)')
    a('ds_write_b32 v%d, v%d' % (vOW, vCN))
    a(PEEK)
    a.label(T('LOOP'))
    a('v_add_u32 v%d, s72, v%d' % (vRD, vL16))
    a('s_cmp_eq_u32 s%d, 3' % sP)
    a('s_cselect_b32 s63, %d, s75' % (-6 * SRC))
    a('s_add_u32 s64, s64, s63')
    a('s_add_u32 s73, s73, %d' % (2 * FST))
    a('s_cmp_eq_u32 s72, 0')
    a('s_cselect_b32 s65, %d, s72' % (3 * BUF))
    a('s_sub_u32 s65, s65, %d' % BUF)
    def pend():
        a('s_waitcnt vmcnt(0)')
        emit(a, flag(84))
        a('s_mov_b32 s84, s71')
    cnt_spin(a, ool, PK, vLN, vCN, pend if g == 1 else None)
    PF = NZR - 1
    q = LdsQ(a)
    for n in range(PF):
        q.issue(('z', n), 'ds_read_b128 %s, v%d offset:%d' % (vr(ZR + 4 * n, 4), vRD, 1024 * n))
    a('s_setprio %d' % PRIO[0])
    stamp(a, (sP, 4, 16))
    for ks in range(N):
        q.wait([('z', ks)])
        c = vr(BIAS, 16) if ks == 0 else vr(ACC, 16)
        a('v_mfma_f32_32x32x16_bf16 %s, %s, %s, %s' % (vr(ACC, 16), vr(WB[g] + 4 * ks, 4), vr(ZR + 4 * (ks % NZR), 4), c))
        n = ks + PF
        if n < N:
            q.issue(('z', n), 'ds_read_b128 %s, v%d offset:%d' % (vr(ZR + 4 * (n % NZR), 4), vRD, 1024 * n))
        if ks == HFK and g == 1:
            pend()
        if ks == PRK:
            a('s_setprio %d' % PRIO[1])
        if ks == N - PLK:
            a(PLOAD)
        if ks == N - 3:
            q.issue(('p', 0), PEEK2)
    a('ds_write_b32 v%d, v%d offset:32' % (vOW, vCN))
    a('s_setprio %d' % PRIO[2])
    stamp(a, (sP, 4, 17))
    a('s_waitcnt vmcnt(0) lgkmcnt(1)')
    emit(a, cnt_min(PK2))
    a('v_cmp_gt_u32 s[82:83], v%d, v%d' % (vTH, PK2))
    a(PCMP)
    a('s_cmp_eq_u32 s%d, 7' % sP)
    a('s_cselect_b64 s[82:83], -1, s[82:83]')
    a('s_or_b64 vcc, vcc, s[82:83]')

    def gelu(dma):
        ops = []
        for t in range(2):
            X, U = ACC + 8 * t, GE
            ops += ['v_mul_f32 v%d, v%d, v%d' % (U + i, X + i, X + i) for i in range(8)]
            ops += ['v_fma_f32 v%d, v%d, s%d, v%d' % (U + i, U + i, sC2, vC1) for i in range(8)]
            ops += ['v_mul_f32 v%d, v%d, v%d' % (U + i, U + i, X + i) for i in range(8)]
            ops += ['v_exp_f32 v%d, v%d' % (U + i, U + i) for i in range(8)]
            ops += ['v_add_f32 v%d, 1.0, v%d' % (U + i, U + i) for i in range(8)]
            ops += ['v_rcp_f32 v%d, v%d' % (U + i, U + i) for i in range(8)]
            ops += ['v_mul_f32 v%d, v%d, v%d' % (U + i, U + i, X + i) for i in range(8)]
            o = U + 8 + 4 * t
            ops += ['v_cvt_pk_bf16_f32 v%d, v%d, v%d' % (o + i, U + 2 * i, U + 2 * i + 1) for i in range(4)]
            ops.append(('st', o, t))
        st = stage() if dma else []
        if st:
            emit(a, st.pop(0))
        for i, l in enumerate(ops):
            if isinstance(l, tuple):
                assert not st
                emit(a, store(l[1], l[2]))
            else:
                a(l)
            if st and i % DST == DST - 1:
                emit(a, st.pop(0))

    def landed():
        a('v_add_u32 v%d, 1, v%d' % (vCN, vCN))
        a('ds_write_b32 v%d, v%d' % (vOW, vCN))
    if g == 1:
        a('s_cbranch_vccnz %s' % T('EB'))
        gelu(True)
        stamp(a, (sP, 4, 18))
        a('s_mov_b32 s84, s78')
        a('s_waitcnt vmcnt(2)')
        landed()
    else:
        a('s_mov_b64 s[82:83], vcc')
        for i in range(8):
            a('v_cvt_pk_bf16_f32 v%d, v%d, v%d' % (GE + i, ACC + 2 * i, ACC + 2 * i + 1))
            if i & 3 == 3:
                emit(a, store(GE + i - 3, i >> 2))
        a('s_cmp_lg_u64 s[82:83], 0')
        a('s_cbranch_scc1 %s' % T('EB'))
        for gq in stage():
            emit(a, gq)
        a('s_waitcnt vmcnt(%d)' % NP)
        emit(a, flag(78))
        stamp(a, (sP, 4, 18))
        a('s_waitcnt vmcnt(1)')
        landed()
    a.label(T('NEXT'))
    a(PEEK)
    stamp(a, (sP, 4, 19))
    a('v_add_u32 v%d, 1, v%d' % (vTH, vTH))
    a('s_mov_b32 s72, s65')
    a('s_add_u32 s78, s78, 512')
    a('s_cmp_eq_u32 s%d, 3' % sP)
    a('s_cselect_b32 s63, %d, s79' % (-6 * DSTS))
    a('s_add_u32 s74, s74, s63')
    a('s_add_u32 s%d, s%d, 1' % (sP, sP))
    a('s_branch %s' % T('LOOP'))
    a.label(T('EB'))
    if g == 1:
        gelu(False)
    a(PLOAD)
    a(PEEK2)
    a('s_waitcnt vmcnt(1)')
    emit(a, flag(78))
    stamp(a, (sP, 4, 18))
    a('s_cmp_eq_u32 s%d, 7' % sP)
    a('s_cbranch_scc1 %s' % T('END'))
    a('s_waitcnt vmcnt(1)')
    a(PCMP)
    a('s_cbranch_vccz %s' % T('GOT'))
    block_poll(a, vZ, vPO, 73)
    a.label(T('GOT'))
    cnt_spin(a, ool, PK2, vDN, vTH)
    for gq in stage():
        emit(a, gq)
    a('s_waitcnt vmcnt(0)')
    landed()
    a('s_branch %s' % T('NEXT'))
    a.label(T('END'))
    endk(a, g)
    ool.flush()


YU, MM, XS, PS, TS = 36, 76, 136, 16, 24
DD, ZP = MM, MM + 40
vIM, vY0, vY1, vYC, vYG, vQA, vT0, vSP = 0, 4, 5, 6, 8, 9, 10, 14


def unpack(dst, src, n):
    o = []
    for i in range(n):
        o.append('v_lshlrev_b32 v%d, 16, v%d' % (dst + 2 * i, src + i))
        o.append('v_and_b32 v%d, s%d, v%d' % (dst + 2 * i + 1, sHI, src + i))
    return o


def accum(dst, src, n):
    o = []
    for i in range(n):
        o.append('v_dot2c_f32_bf16 v%d, s%d, v%d' % (dst + 2 * i, sLO1, src + i))
        o.append('v_dot2c_f32_bf16 v%d, s%d, v%d' % (dst + 2 * i + 1, sHI1, src + i))
    return o


def sums(X, T, k):
    o = []
    for i in range(0, 8, 2):
        x = P2(X + 8 * k + i)
        if k == 0 and i == 0:
            o += ['v_pk_mul_f32 %s, %s, %s' % (P2(T + 2), x, x)]
        elif k == 0 and i == 2:
            o += ['v_pk_add_f32 %s, %s, %s' % (P2(T), P2(X), x), 'v_pk_fma_f32 %s, %s, %s, %s' % (P2(T + 2), x, x, P2(T + 2))]
        else:
            o += ['v_pk_add_f32 %s, %s, %s' % (P2(T), P2(T), x), 'v_pk_fma_f32 %s, %s, %s, %s' % (P2(T + 2), x, x, P2(T + 2))]
    return o


def finish(T, double, U=vSP):
    Q, R = T, T + 2
    o = ['v_add_f32 v%d, v%d, v%d' % (Q, T, T + 1), 'v_add_f32 v%d, v%d, v%d' % (R, T + 2, T + 3),
         'v_permlane32_swap_b32 v%d, v%d' % (Q, R), 'v_add_f32 v%d, v%d, v%d' % (Q, Q, R),
         'v_mov_b32 v%d, v%d' % (R, Q), 'v_permlane16_swap_b32 v%d, v%d' % (Q, R), 'v_add_f32 v%d, v%d, v%d' % (Q, Q, R)]
    for k in (8, 4):
        o.append('v_add_f32 v%d, v%d, v%d row_ror:%d row_mask:0xf bank_mask:0xf' % (Q, Q, Q, k))
    o += ['v_mul_f32 v%d, s%d, v%d' % (Q, sINV, Q), 'v_mov_b32 v%d, v%d' % (R, Q), 'v_permlane32_swap_b32 v%d, v%d' % (Q, R),
          'v_fma_f32 v%d, -v%d, v%d, v%d' % (R, Q, Q, R), 'v_max_f32 v%d, 0, v%d' % (R, R),
          'v_add_f32 v%d, s%d, v%d' % (U, sEPS, R), 'v_rsq_f32 v%d, v%d' % (U, U)]
    if double:
        o += ['v_mul_f32 v%d, v%d, v%d' % (R, R, U), 'v_fma_f32 v%d, v%d, v%d, s%d' % (R, R, U, sEPS),
              'v_rsq_f32 v%d, v%d' % (R, R), 'v_mul_f32 v%d, v%d, v%d' % (U, U, R)]
    o += ['v_mul_f32_e64 v%d, -v%d, v%d' % (U + 1, Q, U)]
    return o


def norm(d, x, n, sp=vSP):
    return ['v_pk_fma_f32 %s, %s, %s, %s op_sel:[0,0,1] op_sel_hi:[1,0,1]' % (P2(d + i), P2(x + i), P2(sp), P2(sp)) for i in range(0, n, 2)]


def gate(k, XW):
    return ['v_pk_fma_f32 %s, %s, %s, %s' % (P2(XW + i), P2(DD + i), P2(YU + i), P2(XW + i)) for i in range(8 * k, 8 * k + 8, 2)]


def s_phase(a):
    ool = Ool(a)
    vOB, vPO, vZ = 11, 12, 13
    vYP, YF4 = 28, 32
    a.label('S_MAIN')
    srd(a, RA, pQ, hex(ROWS_B))
    s_ids(a)
    row_table(a, PS, 10)
    a('s_barrier')
    q_dma(a, 1, PS)
    srd(a, RB, pOUT, hex(ROWS_B))
    a('v_lshrrev_b32 v40, 2, v%d' % vL)
    a('v_and_b32 v41, 3, v%d' % vL)
    a('v_lshlrev_b32 v%d, 9, v40' % vIM)
    a('v_lshl_add_u32 v%d, v41, 4, v%d' % (vIM, vIM))
    a('s_lshl_b32 s66, s71, 8')
    a('s_lshl_b32 s67, s%d, 6' % sQ)
    a('s_add_u32 s66, s66, s67')
    a('v_add_u32 v%d, s66, v%d' % (vIM, vIM))
    a('v_lshlrev_b32 v43, 1, v41')
    a('v_xor_b32 v43, v43, v40')
    a('v_mul_u32_u24 v%d, 1280, v41' % vQA)
    a('v_lshl_add_u32 v%d, v43, 4, v%d' % (vQA, vQA))
    a('v_lshrrev_b32 v43, 4, v%d' % vL)
    a('v_lshl_add_u32 v43, v43, 2, v41')
    a('v_bfe_u32 v44, v%d, 2, 2' % vL)
    a('v_lshlrev_b32 v44, 1, v44')
    a('s_lshr_b32 s66, s%d, 1' % sQ)
    a('v_add_u32 v44, s66, v44')
    a('v_and_b32 v45, 1, v41')
    a('v_xor_b32 v44, v44, v45')
    a('v_and_b32 v45, 2, v41')
    a('v_lshlrev_b32 v45, 2, v45')
    a('v_xor_b32 v44, v44, v45')
    a('v_lshlrev_b32 v%d, 8, v43' % vYC)
    a('v_lshl_add_u32 v%d, v44, 4, v%d' % (vYC, vYC))
    a('s_and_b32 s66, s%d, 1' % sQ)
    a('s_lshl_b32 s66, s66, 3')
    a('s_mul_i32 s67, s%d, 5120' % sQ)
    a('s_sub_u32 s66, s66, s67')
    a('v_add_u32 v%d, s66, v%d' % (vYC, vYC))
    a('v_lshrrev_b32 v43, 4, v%d' % vL)
    a('v_and_b32 v44, 15, v%d' % vL)
    a('v_and_b32 v45, 1, v43')
    a('v_xor_b32 v44, v44, v45')
    a('v_and_b32 v45, 2, v43')
    a('v_lshlrev_b32 v45, 2, v45')
    a('v_xor_b32 v44, v44, v45')
    a('v_lshrrev_b32 v45, 1, v44')
    a('v_lshl_add_u32 v45, v43, 3, v45')
    a('v_lshlrev_b32 v%d, 6, v45' % vYG)
    a('v_and_b32 v44, 1, v44')
    a('v_lshl_add_u32 v%d, v44, 4, v%d' % (vYG, vYG))
    a('s_lshl_b32 s66, s71, 5')
    a('s_mul_i32 s67, s%d, 10240' % sQ)
    a('s_add_u32 s66, s66, s67')
    a('v_add_u32 v%d, s66, v%d' % (vYG, vYG))
    oob_lane0(a, vOB)
    a('v_min_u32 v%d, 236, v%d' % (vPO, vL4))
    a('s_lshl_b32 s79, s71, 2')
    a('s_add_u32 s79, s79, s%d' % sQ)
    a('s_lshl_b32 s79, s79, 2')
    a('s_lshl_b32 s63, s%d, 10' % sX)
    a('s_add_u32 s79, s79, s63')
    a('s_add_u32 s79, s79, %d' % ZF)
    a('v_and_b32 v%d, 31, v%d' % (vYP, vL))
    a('v_min_u32 v%d, 28, v%d' % (vYP, vYP))
    a('v_and_or_b32 v%d, v%d, 32, v%d' % (vYP, vL, vYP))
    a('v_lshlrev_b32 v%d, 7, v%d' % (vYP, vYP))
    a('s_lshl_b32 s66, s%d, 2' % sW)
    a('s_add_u32 s66, s66, %d' % LF_LND)
    a('v_mov_b32 v%d, s66' % (vYP + 1))
    a('s_and_b32 s66, s66, 0xfffffff0')
    a('v_mov_b32 v%d, s66' % (vYP + 2))
    a('s_lshl_b32 s80, s%d, 13' % sQ)
    a('s_add_u32 s80, s80, %d' % YF)
    def head(ph, sl):
        a('s_add_u32 s74, s70, %d' % (3 * sl))
        if sl == 2:
            a('s_cmp_gt_u32 s74, 7')
            a('s_cbranch_scc1 S%s_END' % ph)
        a('s_add_u32 s75, s72, %d' % (40960 * sl))
        if ph != 'C':
            a('v_add_u32 v%d, s75, v%d' % (vY0, vYC))
            a('v_xor_b32 v%d, 0x80, v%d' % (vY1, vY0))
        a('s_lshl_b32 s76, s%d, 3' % sX)
        a('s_add_u32 s76, s76, s74')

    def y_reads():
        for k in range(5):
            a('ds_read_b64_tr_b16 %s, v%d offset:%d' % (vr(ZP + 4 * k, 2), vY0, 4096 * k))
            a('ds_read_b64_tr_b16 %s, v%d offset:%d' % (vr(ZP + 4 * k + 2, 2), vY1, 4096 * k))

    def z_out(lay, X, mid=None):
        emit(a, finish(TS, True))
        a('s_mul_i32 s66, s76, %d' % ZSL)
        a('s_add_u32 s66, s66, %s' % hex(ZI))
        for k in range(5):
            emit(a, norm(DD + 8 * k, X + 8 * k, 8))
            for i in range(4):
                a('v_cvt_pk_bf16_f32 v%d, v%d, v%d' % (ZP + 4 * k + i, DD + 8 * k + 2 * i, DD + 8 * k + 2 * i + 1))
            emit(a, both2(a, ool, 'buffer_store_dwordx4 %s, v%d, %s, s66 offen' % (vr(ZP + 4 * k, 4), vIM, R4(WS))))
            if k < 4:
                a('s_add_u32 s66, s66, 8192')
        a('s_lshl_b32 s68, s74, 5')
        a('s_add_u32 s68, s68, s79')
        a('v_mov_b32 v%d, s%d' % (vZ, sTAG))
        if mid:
            mid()
        else:
            a('s_waitcnt vmcnt(0)')
        emit(a, both2(a, ool, 'buffer_store_dword v%d, v%d, %s, s68 offen offset:%d' % (vZ, vOB, R4(WS), 256 * lay)))

    def m_in(lay, sl, X, per_k):
        a('s_lshl_b32 s66, s%d, 13' % sX)
        a('s_lshl_b32 s67, s74, 8')
        a('s_add_u32 s66, s66, s67')
        a('s_add_u32 s66, s66, %d' % (MFL + 2048 * lay))
        a('s_mul_i32 s67, s76, %d' % MSL)
        a('s_add_u32 s67, s67, %s' % hex(MR))
        a('s_add_u32 s68, s67, 40960')
        a('s_add_u32 s69, s67, 81920')
        block_poll(a, vZ, vPO, 66)
        stamp(a, 4 * sl + 29 + 12 * lay)
        for k in range(5):
            for p in range(3):
                a('buffer_load_dwordx4 %s, v%d, %s, s%d offen sc1' % (vr(MM + 12 * k + 4 * p, 4), vIM, R4(WS), 67 + p))
                if k < 4:
                    a('s_add_u32 s%d, s%d, 8192' % (67 + p, 67 + p))
        for k in range(5):
            for p in range(3):
                a('s_waitcnt vmcnt(%d)' % (14 - 3 * k - p))
                emit(a, accum(X + 8 * k, MM + 12 * k + 4 * p, 4))
            per_k(k)

    def y_line(du):
        a('s_add_u32 s81, s74, %d' % du)
        a('s_lshr_b32 s81, s81, 1')
        a('s_min_u32 s81, s81, 3')
        a('s_lshl_b32 s81, s81, 15')
        a('s_add_u32 s81, s81, s80')
    YLOAD = 'buffer_load_dword v%d, v%d, %s, s81 offen sc1' % (YF4, vYP, R4(WS))

    def y_test():
        a('v_cmp_ne_u32 vcc, s%d, v%d' % (sTAG, YF4))

    def y_dma(du, dl):
        a('s_add_u32 s67, s74, %d' % du)
        a('s_min_u32 s67, s67, 7')
        a('s_lshl_b32 s67, s67, 3')
        a('s_add_u32 s67, s67, s%d' % sX)
        a('s_mul_i32 s67, s67, 40960')
        a('s_add_u32 s67, s67, %s' % hex(YT))
        for k in range(5):
            a('s_add_u32 m0, s75, %d' % (1024 * k + dl))
            a('buffer_load_dwordx4 v%d, %s, s67 offen sc1 lds' % (vYG, R4(WS)))
            if k < 4:
                a('s_add_u32 s67, s67, 2048')

    def q_reads(sl, dl):
        a('s_add_u32 s66, s75, %d' % dl)
        a('v_add_u32 v%d, s66, v%d' % (vT0, vQA))
        for k in range(5):
            a('ds_read_b128 %s, v%d offset:%d' % (vr(XS + 40 * sl + 20 + 4 * k, 4), vT0, 256 * k))

    for sl in range(3):
        X = XS + 40 * sl
        head('A', sl)
        if sl == 0:
            q_reads(0, 0)
            a('s_waitcnt lgkmcnt(0)')
        for k in range(5):
            emit(a, unpack(X + 8 * k, X + 20 + 4 * k, 4))
            emit(a, sums(X, TS, k))
        emit(a, finish(TS, False))
        emit(a, norm(DD, X, 40))
        stamp(a, 4 * sl + 16)
        def fetch(sl=sl):
            a.label('SA_F%d' % sl)
            y_line(0)
            a('s_mov_b32 s%d, 0' % sCNT)
            a('s_mul_i32 s66, s2, 5')
            a('s_add_u32 s66, s66, s74')
            a('s_lshl_b64 exec, 1, s66')
            a('s_mov_b64 s[64:65], -1')
            a.label('SA_YL%d' % sl)
            a(YLOAD)
            a('s_add_u32 s%d, s%d, 1' % (sCNT, sCNT))
            a('s_waitcnt vmcnt(0)')
            y_test()
            a('s_cmp_eq_u64 vcc, 0')
            a('s_cselect_b64 exec, s[64:65], vcc')
            a('s_cselect_b64 s[64:65], 0, s[64:65]')
            a('s_cbranch_execz SA_YD%d' % sl)
            a('s_cmp_lt_u32 s%d, s%d' % (sCNT, sLIM))
            a('s_cbranch_scc1 SA_YL%d' % sl)
            a('s_mov_b32 s%d, 0' % sLIM)
            a.label('SA_YD%d' % sl)
            a('s_mov_b64 exec, -1')
            y_dma(0, 0)
            a('s_waitcnt vmcnt(0)')
            if sl:
                a('s_branch SA_G%d' % sl)
        if sl == 0:
            fetch()
        else:
            a('s_cmp_eq_u32 s77, 0')
            a('s_cbranch_scc1 SA_F%d' % sl)
            ool.add(fetch)
            a('s_waitcnt vmcnt(%d)' % (6 if sl == 1 else 1))
        a.label('SA_G%d' % sl)
        stamp(a, 4 * sl + 17)
        a('v_mov_b32 v%d, %d' % (vYP + 3, sl + 1))
        a('ds_write_b32 v%d, v%d' % (vYP + 1, vYP + 3))
        a('ds_read_b128 %s, v%d' % (vr(ZP, 4), vYP + 2))
        cnt_spin(a, ool, ZP, vYP + 2, vYP + 3)
        y_reads()
        if sl < 2:
            y_line(3)
            a(YLOAD)
        stamp(a, 4 * sl + 18)
        for k in range(5):
            a('s_waitcnt lgkmcnt(%d)' % (8 - 2 * k))
            emit(a, unpack(YU + 8 * k, ZP + 4 * k, 4))
            emit(a, gate(k, X))
            emit(a, sums(X, TS, k))
        def mid(sl=sl):
            N, J = 'SA_N%d' % sl, 'SA_J%d' % sl
            a('s_waitcnt vmcnt(5)')
            q_reads(sl + 1, 40960)
            y_test()
            a('s_waitcnt lgkmcnt(0)')
            a('s_cbranch_vccnz %s' % N)
            y_dma(3, 40960)
            a('s_mov_b32 s77, 1')
            a('s_waitcnt vmcnt(5)')
            a.label(J)
            def no():
                a.label(N)
                a('s_mov_b32 s77, 0')
                a('s_waitcnt vmcnt(0)')
                a('s_branch %s' % J)
            ool.add(no)
        z_out(0, X, mid if sl < 2 else None)
        stamp(a, 4 * sl + 19)
        if sl == 0:
            q_dma(a, 2, PS)
            a('s_cmp_lg_u32 s2, 232')
            a('s_cbranch_scc1 SA_E')
            a('s_cmp_lg_u32 s%d, 0' % sW)
            a('s_cbranch_scc1 SA_E')
            a('s_mov_b32 s66, 0')
            flag_store(a, 66, vZ, True)
            a.label('SA_E')
    a.label('SA_END')
    for sl in range(3):
        X = XS + 40 * sl
        head('B', sl)
        y_reads()
        for k in range(5):
            a('s_waitcnt lgkmcnt(%d)' % (8 - 2 * k))
            emit(a, unpack(YU + 8 * k, ZP + 4 * k, 4))
        stamp(a, 4 * sl + 28)
        m_in(0, sl, X, lambda k: emit(a, sums(X, TS, k)))
        stamp(a, 4 * sl + 30)
        emit(a, finish(TS, False))
        for k in range(5):
            emit(a, norm(DD + 8 * k, X + 8 * k, 8))
            emit(a, gate(k, X))
            emit(a, sums(X, TS, k))
        z_out(1, X)
        stamp(a, 4 * sl + 31)
    a.label('SB_END')
    row_table(a, YU, YU + 6)
    for sl in range(3):
        X = XS + 40 * sl
        head('C', sl)
        a('v_add_u32 v%d, s75, v%d' % (vT0, vQA))
        for k in range(5):
            a('v_add_u32 v%d, s75, v%d' % (PS + k, YU + k))
        a('s_add_u32 s77, s73, %d' % (768 * 1280 * sl))
        stamp(a, 4 * sl + 40)
        def ck(k):
            for i in range(4):
                a('v_cvt_pk_bf16_f32 v%d, v%d, v%d' % (YU + 8 + 4 * k + i, X + 8 * k + 2 * i, X + 8 * k + 2 * i + 1))
            a('ds_write_b128 v%d, %s offset:%d' % (vT0, vr(YU + 8 + 4 * k, 4), 256 * k))
        m_in(1, sl, X, ck)
        stamp(a, 4 * sl + 42)
        for k in range(5):
            a('ds_read_b128 %s, v%d' % (vr(MM + 4 * k, 4), PS + k))
        a('s_add_u32 s66, s77, 4096')
        for k in range(5):
            a('s_waitcnt lgkmcnt(%d)' % (4 - k))
            a('buffer_store_dwordx4 %s, v%d, %s, s%d offen offset:%d' % (vr(MM + 4 * k, 4), vL16, R4(RB), 77 if k < 4 else 66, 1024 * (k & 3)))
        stamp(a, 4 * sl + 43)
    a.label('SC_END')
    endk(a, 0)
    ool.flush()


def kernel():
    a = Asm()
    c1 = -2.0 * math.sqrt(2.0 / math.pi) * math.log2(math.e)
    a('s_cmp_ge_u32 s2, 256')
    a('s_cbranch_scc1 END')
    a('s_load_dwordx2 s[26:27], s[0:1], 104')
    a('s_load_dwordx4 s[4:7], s[0:1], 0')
    a('s_load_dwordx4 s[8:11], s[0:1], 16')
    a('s_load_dwordx4 s[12:15], s[0:1], 32')
    a('s_load_dwordx4 s[16:19], s[0:1], 56')
    a('s_load_dwordx4 s[20:23], s[0:1], 72')
    a('s_load_dwordx2 s[24:25], s[0:1], 88')
    a('v_lshrrev_b32 v1, 6, v0')
    a('v_readfirstlane_b32 s%d, v1' % sW)
    a('v_and_b32 v%d, 63, v0' % vL)
    a('v_lshlrev_b32 v%d, 4, v%d' % (vL16, vL))
    a('v_lshlrev_b32 v%d, 2, v%d' % (vL4, vL))
    a('s_and_b32 s%d, s2, 7' % sX)
    a('s_lshr_b32 s%d, s2, 3' % sI)
    a('s_and_b32 s%d, s%d, 3' % (sQ, sW))
    a('s_lshr_b32 s%d, s%d, 2' % (sHF, sW))
    if STAMP:
        a('v_mov_b32 v%d, 0' % vST)
    for r in (12, 13, 14, 15):
        a('v_mov_b32 v%d, 0' % r)
    a('v_add_u32 v4, %d, v%d' % (L_SYNC, vL4))
    a('ds_write_b32 v4, v12')
    a('s_lshl_b32 s64, s%d, 10' % sW)
    a('s_add_u32 s64, s64, %d' % L_KST)
    a('v_add_u32 v4, s64, v%d' % vL16)
    a('ds_write_b128 v4, v[12:15]')
    a('s_movk_i32 s65, 5958')
    a('s_movk_i32 s66, 1104')
    a('s_add_u32 s67, s%d, 8' % sQ)
    a('s_lshl_b32 s67, s67, 6')
    for d, src in ((8, 'v0'), (9, None)):
        if src is None:
            a('v_add_u32 v9, s67, v%d' % vL)
            src = 'v9'
        a('v_mul_u32_u24 v10, s65, %s' % src)
        a('v_lshrrev_b32 v10, 16, v10')
        a('v_mul_u32_u24 v11, 11, v10')
        a('v_sub_u32 v11, %s, v11' % src)
        a('v_lshlrev_b32 v%d, 4, %s' % (d, src))
        a('v_mad_u32_u24 v%d, v10, s66, v%d' % (d, d))
        a('v_cmp_eq_u32 vcc, 10, v11')
        a('v_mov_b32 v11, 0x40000000')
        a('v_cndmask_b32 v%d, v%d, v11, vcc' % (d, d))
    a('s_mul_i32 s65, s%d, %d' % (sI, 64 * 1280))
    a('s_mul_i32 s66, s%d, 160' % sX)
    a('s_add_u32 s65, s65, s66')
    a('s_sub_u32 s66, s65, 5120')
    a('v_add_u32 v10, s66, v8')
    a('v_add_u32 v8, s65, v8')
    a('s_cmp_eq_u32 s%d, 0' % sHF)
    a('s_cselect_b32 s65, s66, s65')
    a('v_add_u32 v9, s65, v9')
    a('s_getreg_b32 s%d, hwreg(HW_REG_XCC_ID, 0, 3)' % sXCC)
    a('s_mov_b32 s%d, %d' % (sLIM, LIMIT))
    a('s_mov_b32 s%d, 0xffff0000' % sHI)
    a('s_mov_b32 s%d, 0x3acccccd' % sINV)
    a('s_mov_b32 s%d, 0x3727c5ac' % sEPS)
    a('s_mov_b32 s%d, %s' % (sC2, f2h(c1 * 0.044715)))
    a('s_mov_b32 s%d, 0x3f80' % sLO1)
    a('s_mov_b32 s%d, 0x3f800000' % sHI1)
    a('s_mov_b32 s%d, 0' % sSLOW)
    a('s_mov_b32 m0, s64')
    a('s_waitcnt lgkmcnt(0)')
    srd(a, WS, pWS, '0x10000000')
    srd(a, RB, pK, hex(ROWS_B))
    srd(a, RC, pV, hex(ROWS_B))
    a('buffer_load_dword v4, off, %s, 0 sc1' % R4(WS))
    a('buffer_load_dwordx4 v10, %s, 0 offen lds' % R4(RB))
    a('s_add_u32 m0, s64, %d' % (L_VST - L_KST))
    a('buffer_load_dwordx4 v8, %s, 0 offen lds' % R4(RC))
    a('s_cmp_eq_u32 s%d, 0' % sHF)
    a('s_cselect_b64 s[%d:%d], s[%d:%d], s[%d:%d]' % (RC, RC + 1, RB, RB + 1, RC, RC + 1))
    a('s_cselect_b32 s65, %d, s%d' % (L_KST + 8192, sLIM))
    a('s_cselect_b32 s66, 0, %d' % (L_VST + 8192 - LIMIT))
    a('s_add_u32 s65, s65, s66')
    a('s_lshl_b32 s66, s%d, 10' % sQ)
    a('s_add_u32 m0, s65, s66')
    a('buffer_load_dwordx4 v9, %s, 0 offen lds' % R4(RC))
    for r in (RA, RD):
        a('s_mov_b64 s[%d:%d], s[%d:%d]' % (r, r + 1, WS, WS + 1))
        a('s_mov_b64 s[%d:%d], s[%d:%d]' % (r + 2, r + 3, WS + 2, WS + 3))
    for r in range(QT, QT + 5):
        a('v_mov_b32 v%d, 0' % r)
    stamp(a, 0)
    if B0:
        a('s_barrier')
    a('s_cmp_ge_u32 s%d, 5' % sW)
    a('s_cbranch_scc1 E_BLD')
    for kvw in (1, 0):
        if not kvw:
            a.label('E_BLD')
        a('s_cmp_ge_u32 s%d, 29' % sI)
        a('s_cbranch_scc1 E_%d0' % kvw)
        a('s_cmp_ge_u32 s%d, 14' % sI)
        a('s_cbranch_scc1 E_%d2' % kvw)
        early(a, 1, kvw)
        a.label('E_%d2' % kvw)
        early(a, 2, kvw)
        a.label('E_%d0' % kvw)
        early(a, 0, kvw)
    kv_phase(a)
    conv_phase(a)
    g_phase(a, 1)
    g_phase(a, 2)
    s_phase(a)
    a.label('END')
    a('s_endpgm')
    return a.lines


def build():
    ref = open('cdna_kernels/%s.s.ref' % NAME).read().split('\n')
    head = [l for l in ref if l.startswith(';') and '@launch' not in l and 'Override launch' not in l and 'grid=ceil' not in l]
    s = '\n'.join(head) + '\n'
    s += '; @launch grid=(256,1,1) block=(512,1,1) lds=163840\n'
    s += '.amdgcn_target "amdgcn-amd-amdhsa--gfx950"\n.text\n'
    s += kernel_text(NAME + '_kernel', kernel(), 256)
    s += '.section .rodata,"a"\n'
    s += descriptor_text(NAME + '_kernel', 256, 102)
    return s


if __name__ == '__main__':
    open(sys.argv[1], 'w').write(build())
```

```python
import sys, os, math, struct
from asmlib import *

NAME = 'interleave_layers__ssm_conv_h3__mixer_channel_mlp__prompt'
E = lambda k, d: int(os.environ.get(k, d))
STAMP, FORCE_SLOW, LIMIT = E('STAMP', 0), E('FORCE_SLOW', 0), 20000
NA1, NA2 = E('NA1', 12), E('NA2', 0)
PA, P1, P2_ = E('PA', 24), E('P1', 12), E('P2', 6)
PF1, PF2 = E('PF1', 1), E('PF2', 1)
B0 = E('B0', 1)
RL = E('RL', 1)
CU_ = [int(x) for x in os.environ.get('CUN', '8,4,2,2,2').split(',')]
HFK, PLK, DST = E('HFK', 8), E('PLK', 12), E('DST', 6)
PRIO = [int(x) for x in os.environ.get('PRIO', '1,2,0').split(',')]
PRK = E('PRK', 8)

EPOCH, HELLO, KVFA, KVFB, YF, ZF, HFL, MFL, DUMMY = 0, 0x40000, 0x2000, 0x4000, 0x60000, 0xC000, 0x10000, 0x20000, 0x30000
KVA, KVB, YT, ZI, HB, MR = 0x100000, 0x400000, 0x700000, 0x1000000, 0x1400000, 0x1C00000
ZSL, HSL, MSL = 40960, 114688, 122880
STAMPS = 0x8000000
ROWS_B = 2048 * 1280
L_KST, L_VST, L_OST, L_SYNC = 122880, 135168, 147456, 163328
CSL, CUO, HSTR = 21248, 16640, 4160
RING = {1: 45056, 2: 86016}
LF_LND, LF_DON, LF_I0 = L_SYNC, L_SYNC + 32, L_SYNC + 64
pQ, pK, pV, pSH, pH, pD, pW1, pB1, pW2, pB2, pOUT, pWS = 4, 6, 8, 10, 12, 14, 16, 18, 20, 22, 24, 26
sX, sW, sI, sQ = 28, 29, 30, 31
WS, RA, RB, RC, RD = 32, 36, 40, 44, 48
sHF, sTAG, sXCC, sSLOW, sP, sLIM, sCNT = 52, 53, 54, 55, 56, 57, 58
sHI, sINV, sEPS, sC2 = 59, 60, 61, 62
sLO1, sHI1 = 89, 90
sST = 86
sWO, sWL, sWS = 91, 92, 93
vL, vL16, vL4, vST = 1, 2, 3, 7
vWO, vWT = 8, 9
WB = {1: 96, 2: 112}
NK = {1: 40, 2: 36}
RS = {1: 3456, 2: 1280}
NA = {1: NA1, 2: NA2}
NR = {1: 29, 2: 19}
NC = {1: 11, 2: 17}
DUM = {1: 252, 2: 96}
assert NA1 <= 19 and NA2 in (0, 3, 6, 9)

f2h = lambda x: hex(struct.unpack('<I', struct.pack('<f', x))[0])
R4 = lambda d: 's[%d:%d]' % (d, d + 3)
P2 = lambda r: 'v[%d:%d]' % (r, r + 1)


def srd(a, d, p, size, add=None):
    if add is None:
        a('s_mov_b32 s%d, s%d' % (d, p)); a('s_mov_b32 s%d, s%d' % (d + 1, p + 1))
    else:
        a('s_add_u32 s%d, s%d, %s' % (d, p, add)); a('s_addc_u32 s%d, s%d, 0' % (d + 1, p + 1))
    a('s_mov_b32 s%d, %s' % (d + 2, size)); a('s_mov_b32 s%d, 0x20000' % (d + 3))


def stamp(a, idx):
    if not STAMP:
        return
    a('%s s[%d:%d]' % ('s_memtime' if os.environ.get('CLK') else 's_memrealtime', sST, sST + 1))
    if isinstance(idx, tuple):
        a('s_mul_i32 s88, s%d, %d' % (idx[0], idx[1]))
        a('s_add_u32 s88, s88, %d' % idx[2])
        a('s_lshl_b64 exec, 1, s88')
        a('s_waitcnt lgkmcnt(0)')
        a('v_mov_b32 v%d, s%d' % (vST, sST))
        a('s_mov_b64 exec, -1')
    else:
        a('s_waitcnt lgkmcnt(0)')
        a('v_writelane_b32 v%d, s%d, %d' % (vST, sST, idx))


DBGMAP = {1: {0: 1, 3: 2, 6: 3, 10: 6, 16: 7, 44: 10, 63: 12, 12: 15},
          2: {0: 1, 3: 2, 6: 3, 10: 8, 16: 9, 44: 11, 63: 13},
          0: {0: 1, 3: 2, 17: 4, 19: 5, 63: 14}}


def endk(a, role):
    if STAMP == 2:
        a('s_waitcnt vmcnt(0)')
        stamp(a, 63)
        if role:
            a('s_cmp_lg_u32 s%d, %d' % (sI, 3 if role == 1 else 17))
            a('s_cbranch_scc1 END')
            a('s_and_b32 s63, s%d, 3' % sW)
            a('s_cmp_lg_u32 s63, %d' % (3 if role == 1 else 0))
            a('s_cbranch_scc1 END')
        else:
            a('s_cmp_lg_u32 s%d, 0' % sQ)
            a('s_cbranch_scc1 END')
        a('s_load_dwordx2 s[64:65], s[0:1], 96')
        a('v_readlane_b32 s63, v%d, 0' % vST)
        a('s_not_b32 s63, s63')
        a('v_writelane_b32 v%d, s63, 62' % vST)
        a('v_mov_b32 v10, 0x1000')
        for k, w in list(DBGMAP[role].items()) + [(62, 0)]:
            a('s_movk_i32 s63, %d' % (4 * w))
            a('v_writelane_b32 v10, s63, %d' % k)
        a('s_waitcnt lgkmcnt(0)')
        srd(a, RD, 64, 256)
        a('buffer_atomic_umax v%d, v10, %s, 0 offen sc1' % (vST, R4(RD)))
    elif STAMP:
        a('s_waitcnt vmcnt(0)')
        stamp(a, 63)
        a('s_lshl_b32 s63, s2, 3')
        a('s_add_u32 s63, s63, s%d' % sW)
        a('s_lshl_b32 s63, s63, 8')
        a('s_add_u32 s63, s63, %s' % hex(STAMPS))
        a('s_mov_b64 exec, -1')
        a('buffer_store_dword v%d, v%d, %s, s63 offen' % (vST, vL4, R4(WS)))
    a('s_endpgm')


def setexec(a, n):
    if n == 64:
        a('s_mov_b64 exec, -1')
    elif n <= 6:
        a('s_mov_b64 exec, %d' % ((1 << n) - 1))
    elif n <= 32:
        a('s_mov_b32 exec_lo, %s' % ('-1' if n == 32 else hex((1 << n) - 1))); a('s_mov_b32 exec_hi, 0')
    else:
        a('s_mov_b32 exec_lo, -1'); a('s_mov_b32 exec_hi, %s' % hex((1 << (n - 32)) - 1))


def emit(a, lst):
    for l in lst:
        a(l)


def flag_store(a, soff, vT, sc1):
    a('v_mov_b32 v%d, s%d' % (vT, sTAG))
    a('s_mov_b64 exec, 1')
    a('buffer_store_dword v%d, off, %s, s%d%s' % (vT, R4(WS), soff, ' sc1' if sc1 else ''))
    a('s_mov_b64 exec, -1')


def hello_load(a, vT, st):
    a('s_lshl_b32 s%d, s%d, 12' % (st, sX))
    a('s_add_u32 s%d, s%d, %d' % (st, st, HELLO))
    a('v_and_b32 v%d, 0x7c, v%d' % (vT + 2, vL4))
    a('v_lshlrev_b32 v%d, 5, v%d' % (vT + 2, vT + 2))
    a('buffer_load_dword v%d, v%d, %s, s%d offen sc1' % (vT, vT + 2, R4(WS), st))


def hello_store(a, young):
    a('s_lshl_b32 s66, s2, 7')
    a('s_and_b32 s66, s66, 0x380')
    a('s_lshl_b32 s66, s66, 5')
    a('s_lshl_b32 s67, s%d, 7' % sI)
    a('s_add_u32 s66, s66, s67')
    a('s_add_u32 s66, s66, %d' % HELLO)
    a('s_cmp_eq_u32 s%d, 7' % sW)
    a('s_cselect_b32 s67, 0, 0x10000000')
    a('v_mov_b32 v5, s67')
    a('s_lshl_b32 s67, s%d, 1' % sXCC)
    a('s_waitcnt vmcnt(%d)' % young)
    get_tag(a, 4)
    a('s_xor_b32 s67, s67, s%d' % sTAG)
    a('v_mov_b32 v4, s67')
    a('s_mov_b64 exec, 1')
    a('buffer_store_dword v4, v5, %s, s66 offen sc1' % R4(WS))
    a('s_mov_b64 exec, -1')


def hello_check(a, vT, st, young):
    L, C, D = a.newlabel('HL'), a.newlabel('HC'), a.newlabel('HD')
    a('s_mov_b32 s%d, 0' % sCNT)
    a('s_waitcnt vmcnt(%d)' % young)
    a('s_branch %s' % C)
    a.label(L)
    a('buffer_load_dword v%d, v%d, %s, s%d offen sc1' % (vT, vT + 2, R4(WS), st))
    a('s_add_u32 s%d, s%d, 1' % (sCNT, sCNT))
    a('s_waitcnt vmcnt(0)')
    a.label(C)
    a('v_xor_b32 v%d, s%d, v%d' % (vT, sTAG, vT))
    a('v_cmp_lt_u32 vcc, 15, v%d' % vT)
    a('v_and_b32 v%d, 1, v%d' % (vT + 1, vT))
    a('v_cmp_ne_u32 s[64:65], 0, v%d' % (vT + 1))
    a('s_or_b64 vcc, vcc, s[64:65]')
    a('s_cbranch_vccz %s' % D)
    a('s_cmp_lt_u32 s%d, s%d' % (sCNT, sLIM))
    a('s_cbranch_scc1 %s' % L)
    a('s_mov_b32 s%d, 0' % sLIM)
    a.label(D)
    a('s_lshl_b32 s%d, s%d, 1' % (st, sXCC))
    a('v_cmp_ne_u32 vcc, s%d, v%d' % (st, vT))
    a('s_cmp_lg_u64 vcc, 0')
    a('s_cselect_b32 s%d, 1, %d' % (sSLOW, FORCE_SLOW))


def get_tag(a, vE):
    a('v_readfirstlane_b32 s%d, v%d' % (sTAG, vE))
    a('s_mul_i32 s%d, s%d, 0x9E3779B1' % (sTAG, sTAG))
    a('s_add_u32 s%d, s%d, 0x7F4A7C15' % (sTAG, sTAG))


class Ool:
    def __init__(self, a):
        self.a, self.q = a, []
    def add(self, fn):
        self.q.append(fn)
    def flush(self):
        while self.q:
            self.q.pop(0)()


def both2(a, ool, texts):
    if isinstance(texts, str):
        texts = [texts]
    S, R = a.newlabel('BS'), a.newlabel('BR')
    def slow():
        a.label(S)
        for t in texts:
            a(t + ' sc1' if t.startswith('buffer_') else t)
        a('s_branch %s' % R)
    ool.add(slow)
    return ['s_cmp_lg_u32 s%d, 0' % sSLOW, 's_cbranch_scc1 %s' % S] + texts + [R + ':']


def oob_lane0(a, v):
    a('v_cmp_eq_u32 vcc, 0, v%d' % vL4)
    a('v_mov_b32 v%d, 0x10000000' % v)
    a('v_cndmask_b32_e64 v%d, v%d, 0, vcc' % (v, v))


def cnt_min(X):
    return ['v_min_u32 v%d, v%d, v%d' % (X, X, X + 1), 'v_min3_u32 v%d, v%d, v%d, v%d' % (X, X, X + 2, X + 3)]


def cnt_spin(a, ool, X, vLine, vCnt, pre=None):
    S, R = a.newlabel('CS'), a.newlabel('CR')
    def spin():
        L = a.newlabel('CL')
        a.label(S)
        if pre:
            pre()
        a('s_mov_b32 s%d, 0' % sCNT)
        a.label(L)
        a('ds_read_b128 %s, v%d' % (vr(X, 4), vLine))
        a('s_add_u32 s%d, s%d, 1' % (sCNT, sCNT))
        a('s_waitcnt lgkmcnt(0)')
        emit(a, cnt_min(X))
        a('v_cmp_gt_u32 vcc, v%d, v%d' % (vCnt, X))
        a('s_cbranch_vccz %s' % R)
        a('s_cmp_lt_u32 s%d, %d' % (sCNT, 4 * LIMIT))
        a('s_cbranch_scc1 %s' % L)
        a('s_branch %s' % R)
    ool.add(spin)
    a('s_waitcnt lgkmcnt(0)')
    emit(a, cnt_min(X))
    a('v_cmp_gt_u32 vcc, v%d, v%d' % (vCnt, X))
    a('s_cbranch_vccnz %s' % S)
    a.label(R)


def block_poll(a, v, vOff, so):
    L, D = a.newlabel('PL'), a.newlabel('PD')
    a('s_mov_b32 s%d, 0' % sCNT)
    a.label(L)
    a('buffer_load_dword v%d, v%d, %s, s%d offen sc1' % (v, vOff, R4(WS), so))
    a('s_add_u32 s%d, s%d, 1' % (sCNT, sCNT))
    a('s_waitcnt vmcnt(0)')
    a('v_cmp_ne_u32 vcc, s%d, v%d' % (sTAG, v))
    a('s_cbranch_vccz %s' % D)
    a('s_cmp_lt_u32 s%d, s%d' % (sCNT, sLIM))
    a('s_cbranch_scc1 %s' % L)
    a('s_mov_b32 s%d, 0' % sLIM)
    a.label(D)


def dummy_off(a, sD):
    a('s_lshl_b32 s%d, s2, 7' % sD)
    a('s_lshl_b32 s63, s%d, 2' % sW)
    a('s_add_u32 s%d, s%d, s63' % (sD, sD))
    a('s_add_u32 s%d, s%d, %d' % (sD, sD, DUMMY))


class LdsQ:
    def __init__(self, a):
        self.a, self.q = a, []
    def issue(self, key, text):
        self.a(text); self.q.append(key)
    def wait(self, keys):
        last = -1
        for i, k in enumerate(self.q):
            if k in keys:
                last = i
        if last >= 0:
            n = len(self.q) - 1 - last
            self.a('s_waitcnt lgkmcnt(%d)' % n)
            self.q = self.q[last + 1:]


def g2_ids(a, sk, sc):
    a('s_sub_u32 s%d, s%d, 14' % (sc, sI))
    a('s_mul_i32 s%d, s%d, 52' % (sk, sc))
    a('s_lshr_b32 s%d, s%d, 8' % (sk, sk))
    a('s_mul_i32 s63, s%d, 5' % sk)
    a('s_sub_u32 s%d, s%d, s63' % (sc, sc))


def w_setup(a, g):
    if g == 1:
        srd(a, RA, pW1, 640 * 3456)
        a('s_lshl_b32 s66, s%d, 8' % sI)
    else:
        srd(a, RA, pW2, 1728 * 1280)
        g2_ids(a, 66, 67)
        a('s_mul_i32 s66, s66, %d' % (576 * 1280))
        a('s_lshl_b32 s67, s67, 8')
        a('s_add_u32 s66, s66, s67')
    a('v_lshrrev_b32 v10, 4, v%d' % vL)
    a('v_bfe_u32 v11, v%d, 2, 2' % vL)
    a('v_xor_b32 v12, v10, v11')
    a('v_and_b32 v13, 3, v%d' % vL)
    a('v_lshl_add_u32 v12, v12, 2, v13')
    a('v_mul_u32_u24 v%d, %d, v10' % (vWO, RS[g]))
    a('v_lshl_add_u32 v%d, v12, 4, v%d' % (vWO, vWO))
    a('v_add_u32 v%d, s66, v%d' % (vWO, vWO))
    a('v_lshrrev_b32 v12, 5, v%d' % vL)
    a('v_lshl_add_u32 v12, v12, 3, v11')
    a('v_lshlrev_b32 v%d, 8, v12' % vWT)
    a('v_xor_b32 v12, s%d, v11' % sQ)
    a('v_lshl_add_u32 v%d, v12, 6, v%d' % (vWT, vWT))
    a('v_and_b32 v12, 1, v13')
    a('v_lshl_add_u32 v%d, v12, 5, v%d' % (vWT, vWT))
    a('v_and_b32 v12, 1, v10')
    a('v_lshl_add_u32 v%d, v12, 4, v%d' % (vWT, vWT))
    a('v_lshrrev_b32 v12, 1, v13')
    a('v_lshl_add_u32 v%d, v12, 3, v%d' % (vWT, vWT))


def w_begin(a, g, ks0, sIdx, sub, nw, lds):
    a('s_sub_u32 s63, s%d, %d' % (sIdx, sub))
    a('s_lshl_b32 s%d, s63, 10' % sWL)
    a('s_add_u32 s%d, s%d, %d' % (sWL, sWL, lds))
    a('s_add_u32 s63, s63, %d' % (4 * ks0))
    a('s_mul_i32 s%d, s63, %d' % (sWO, 4 * RS[g]))
    a('s_mov_b32 s%d, %d' % (sWS, 4 * RS[g] * nw))


def w_piece(nw):
    return ['s_mov_b32 m0, s%d' % sWL, 's_add_u32 s%d, s%d, %d' % (sWL, sWL, 1024 * nw),
            'buffer_load_dwordx4 v%d, %s, s%d offen lds' % (vWO, R4(RA), sWO), 's_add_u32 s%d, s%d, s%d' % (sWO, sWO, sWS)]


def w_stream(a, n, nw, P, dummy=None):
    if n == 0:
        return
    L = a.newlabel('WS')
    a('s_mov_b32 s63, %d' % n)
    a.label(L)
    a('s_waitcnt vmcnt(%d)' % (P - 1))
    if dummy is None:
        emit(a, w_piece(nw))
    else:
        a('buffer_load_dwordx4 %s, v%d, %s, s%d offen' % (vr(dummy, 4), vWO, R4(RA), sWO))
        a('s_add_u32 s%d, s%d, s%d' % (sWO, sWO, sWS))
    a('s_sub_u32 s63, s63, 1')
    a('s_cmp_lg_u32 s63, 0')
    a('s_cbranch_scc1 %s' % L)


def w_read(a, g, ks0, n, lds):
    a('v_add_u32 v10, %d, v%d' % (lds, vWT))
    for k in range(n):
        if k == 16:
            a('v_add_u32 v10, 0x10000, v10')
        for hh in range(2):
            a('ds_read_b64_tr_b16 %s, v10 offset:%d' % (vr(WB[g] + 4 * (ks0 + k) + 2 * hh, 2), 4096 * (k & 15) + 1024 * hh))
        if k % 4 == 3:
            a('s_waitcnt lgkmcnt(6)')
    a('s_waitcnt lgkmcnt(0)')


TAP = 16
HQ, HD = (16, 100), (40, 124)
QT = 76


def conv_channel(a, g, sSlot, sCh, sDum):
    if g == 1:
        a('s_lshl_b32 s%d, s%d, 1' % (sCh, sI))
    else:
        a('s_lshl_b32 s%d, s%d, 2' % (sCh, sI))
        a('s_sub_u32 s%d, s%d, 28' % (sCh, sCh))
    a('s_add_u32 s%d, s%d, s%d' % (sCh, sCh, sSlot))
    a('s_cmp_ge_u32 s%d, 80' % sCh)
    a('s_cselect_b32 s%d, 1, 0' % sDum)
    a('s_cselect_b32 s63, 80, 0')
    a('s_sub_u32 s%d, s%d, s63' % (sCh, sCh))


def ssm_loads(a, g, sSlot, n):
    conv_channel(a, g, sSlot, 66, 67)
    a('s_mul_i32 s67, s%d, 80' % sX)
    a('s_add_u32 s66, s66, s67')
    a('s_lshl_b32 s66, s66, 12')
    srd(a, RD, pH, 4096, 's66')
    a('v_subrev_u32 v10, 32, v%d' % vL16)
    a('v_subrev_u32 v11, 16, v%d' % vL16)
    a('v_add_u32 v12, 992, v%d' % vL16)
    a('buffer_load_dwordx4 %s, v10, %s, 0 offen' % (vr(HQ[n], 4), R4(RD)))
    a('buffer_load_dwordx2 %s, v11, %s, 0 offen' % (vr(HD[n], 2), R4(RD)))
    for j in range(1, 5):
        a('buffer_load_dwordx4 %s, v12, %s, 0 offen offset:%d' % (vr(HQ[n] + 4 * j, 4), R4(RD), 1024 * (j - 1)))
        a('buffer_load_dwordx2 %s, v12, %s, 0 offen offset:%d' % (vr(HD[n] + 2 * j, 2), R4(RD), 1024 * (j - 1) + 16))


def ssm_build(a, sSlot, n):
    a('s_mul_i32 s66, s%d, %d' % (sSlot, CSL))
    a('v_add_u32 v5, s66, v%d' % vL16)
    for r in range(4):
        a('v_mov_b32 v%d, 0' % (56 + r))
    setexec(a, 32)
    a('ds_write_b128 v5, v[56:59] offset:%d' % (CUO + 4096))
    setexec(a, 64)
    for j in range(5):
        if j == 4:
            a('s_mov_b64 exec, 3')
        d = [HQ[n] + 4 * j + e for e in range(4)] + [HD[n] + 2 * j, HD[n] + 2 * j + 1]
        T1, T2, T3 = 60 + 12 * (j & 1), 64 + 12 * (j & 1), 68 + 12 * (j & 1)
        a('ds_write_b128 v5, %s offset:%d' % (vr(d[0], 4), 1024 * j))
        for e in range(4):
            a('v_alignbit_b32 v%d, v%d, v%d, 16' % (T1 + e, d[e + 1], d[e]))
        a('ds_write_b128 v5, %s offset:%d' % (vr(T1, 4), 1024 * j + HSTR))
        for e in range(4):
            a('v_mov_b32 v%d, v%d' % (T2 + e, d[e + 1]))
        a('ds_write_b128 v5, %s offset:%d' % (vr(T2, 4), 1024 * j + 2 * HSTR))
        for e in range(4):
            a('v_alignbit_b32 v%d, v%d, v%d, 16' % (T3 + e, d[e + 2], d[e + 1]))
        a('ds_write_b128 v5, %s offset:%d' % (vr(T3, 4), 1024 * j + 3 * HSTR))
        if j & 1:
            a('s_waitcnt lgkmcnt(4)')
    setexec(a, 64)


def row_table(a, T, tmp):
    a('s_movk_i32 s63, 820')
    for k in range(5):
        a('v_add_u32 v%d, %d, v%d' % (tmp, 64 * k, vL))
        a('v_mul_u32_u24 v%d, s63, v%d' % (tmp + 1, tmp))
        a('v_lshrrev_b32 v%d, 16, v%d' % (tmp + 1, tmp + 1))
        a('v_lshlrev_b32 v%d, 1, v%d' % (tmp + 1, tmp + 1))
        a('v_xor_b32 v%d, v%d, v%d' % (tmp, tmp, tmp + 1))
        a('v_lshlrev_b32 v%d, 4, v%d' % (T + k, tmp))


def s_ids(a, hf=sHF, q=sQ):
    a('s_sub_u32 s70, s%d, 29' % sI)
    a('s_mul_i32 s71, s%d, 3' % hf)
    a('s_add_u32 s70, s70, s71')
    a('s_and_b32 s71, s70, 1')
    a('s_lshr_b32 s70, s70, 1')
    a('s_mul_i32 s72, s%d, 20480' % hf)
    a('s_mul_i32 s63, s%d, 5120' % q)
    a('s_add_u32 s72, s72, s63')
    a('s_lshl_b32 s73, s70, 8')
    a('s_lshl_b32 s63, s%d, 5' % sX)
    a('s_add_u32 s73, s73, s63')
    a('s_lshl_b32 s63, s71, 4')
    a('s_add_u32 s73, s73, s63')
    a('s_lshl_b32 s63, s%d, 2' % q)
    a('s_add_u32 s73, s73, s63')
    a('s_mul_i32 s73, s73, 1280')


def q_dma(a, s, QT=QT):
    a('s_add_u32 s66, s73, %d' % (768 * 1280 * s))
    a('s_min_u32 s66, s66, %d' % (ROWS_B - 5120))
    for k in range(5):
        a('s_add_u32 m0, s72, %d' % (40960 * s + 1024 * k))
        a('buffer_load_dwordx4 v%d, %s, s66 offen lds' % (QT + k, R4(RA)))


def early(a, g, kvw):
    n = 0
    if kvw:
        srd(a, RD, pSH, 5120)
        a('s_mul_i32 s66, s%d, 640' % sX)
        a('s_lshl_b32 s67, s%d, 7' % sW)
        a('s_add_u32 s66, s66, s67')
        a('v_and_b32 v10, 3, v%d' % vL)
        a('v_lshlrev_b32 v10, 3, v10')
        for it in range(4):
            a('buffer_load_dwordx2 %s, v10, %s, s66 offen offset:%d' % (vr(TAP + 2 * it, 2), R4(RD), 32 * it))
        if g:
            w_setup(a, g)
        a('s_waitcnt vmcnt(4)')
        get_tag(a, 4)
        stamp(a, 1)
        a('s_barrier')
        a('s_branch KV')
        return
    if g == 0:
        srd(a, RA, pQ, hex(ROWS_B))
        row_table(a, QT, 10)
        for r in range(3):
            a('s_add_u32 s74, s%d, %d' % (sW, 3 * r - 5))
            a('s_min_u32 s74, s74, 7')
            a('s_lshr_b32 s75, s74, 2')
            a('s_and_b32 s74, s74, 3')
            s_ids(a, 75, 74)
            q_dma(a, 0)
        hello_store(a, 18)
        a('s_waitcnt vmcnt(16)')
        stamp(a, 1)
        a('s_barrier')
        a('s_branch NOBUILD')
        return
    if g == 1:
        a('s_cmp_eq_u32 s%d, 7' % sW)
        a('s_cbranch_scc1 E_LD')
    a('s_sub_u32 s68, s%d, 5' % sW)
    ssm_loads(a, g, 68, 0)
    n += 10
    if g == 2:
        a('s_mov_b32 s69, 3')
        ssm_loads(a, g, 69, 1)
        n += 10
    w_setup(a, g)
    nw = 0
    if g == 2 and NA2:
        w_begin(a, g, 0, sW, 5, 3, RING[g])
        nw = 4 * NA2 // 3
        for k in range(nw):
            emit(a, w_piece(3))
    if g == 2:
        hello_store(a, 3 + n + nw)
        nw += 1
    a('s_waitcnt vmcnt(%d)' % (n + nw))
    if g == 1:
        get_tag(a, 4)
    stamp(a, 1)
    a('s_barrier')
    a('s_waitcnt vmcnt(%d)' % (n - 10 + nw))
    ssm_build(a, 68, 0)
    if g == 2:
        a('s_cmp_lg_u32 s%d, 5' % sW)
        a('s_cbranch_scc1 NOBUILD')
        a('s_waitcnt vmcnt(%d)' % nw)
        ssm_build(a, 69, 1)
    a('s_branch NOBUILD')
    if g == 1:
        a.label('E_LD')
        w_setup(a, g)
        w_begin(a, g, 0, sW, 7, 1, RING[g])
        n0 = min(PA, 4 * NA1)
        for k in range(n0):
            emit(a, w_piece(1))
        hello_store(a, 3 + n0)
        a('s_waitcnt vmcnt(%d)' % (n0 + 1))
        stamp(a, 1)
        a('s_barrier')
        w_stream(a, 4 * NA1 - n0, 1, PA)
        a('s_branch BUILT')


def kv_phase(a):
    PV, CU, VV, T = 24, 32, 40, 48
    a.label('KV')
    a('v_and_b32 v10, 3, v%d' % vL)
    a('v_bfe_u32 v11, v%d, 2, 2' % vL)
    a('v_and_b32 v12, 0x30, v%d' % vL)
    a('v_lshl_add_u32 v12, v10, 2, v12')
    a('v_add_u32 v12, v12, v11')
    a('v_mul_u32_u24 v12, 176, v12')
    a('s_lshl_b32 s66, s%d, 5' % sW)
    a('s_add_u32 s66, s66, %d' % L_KST)
    a('v_add_u32 v12, s66, v12')
    for it in range(4):
        a('ds_read_b64_tr_b16 %s, v12 offset:%d' % (vr(PV + 2 * it, 2), 8 * it))
        a('ds_read_b64_tr_b16 %s, v12 offset:%d' % (vr(CU + 2 * it, 2), 8 * it + 704))
        a('ds_read_b64_tr_b16 %s, v12 offset:%d' % (vr(VV + 2 * it, 2), 8 * it + L_VST - L_KST))
    a('s_waitcnt vmcnt(0)')
    for r in range(8):
        a('v_alignbit_b32 v%d, v%d, v%d, 16' % (TAP + r, TAP + r, TAP + r))
    a('s_mul_i32 s66, s%d, 2560' % sW)
    a('s_add_u32 s66, s66, %d' % L_OST)
    a('v_mul_u32_u24 v13, 160, v10')
    a('v_lshrrev_b32 v11, 2, v%d' % vL)
    a('v_lshlrev_b32 v11, 3, v11')
    a('v_sub_u32 v13, v13, v11')
    a('s_add_u32 s67, s66, 120')
    a('v_add_u32 v13, s67, v13')
    a('v_lshrrev_b32 v10, 3, v%d' % vL)
    a('v_and_b32 v11, 7, v%d' % vL)
    a('v_lshlrev_b32 v11, 4, v11')
    a('v_mul_u32_u24 v14, 160, v10')
    a('v_add3_u32 v14, s66, v14, v11')
    a('v_lshl_add_u32 v5, v10, 12, v11')
    for it in range(4):
        a('s_waitcnt lgkmcnt(%d)' % (9 - 3 * it + it))
        P0, P1, C0, C1, V0, V1, W10, W32 = PV + 2 * it, PV + 2 * it + 1, CU + 2 * it, CU + 2 * it + 1, VV + 2 * it, VV + 2 * it + 1, TAP + 2 * it, TAP + 2 * it + 1
        O0, O1, O2, A, U = T, T + 1, T + 2, T + 4, T + 8
        a('v_alignbit_b32 v%d, v%d, v%d, 16' % (O0, P1, P0))
        a('v_alignbit_b32 v%d, v%d, v%d, 16' % (O1, C0, P1))
        a('v_alignbit_b32 v%d, v%d, v%d, 16' % (O2, C1, C0))
        for t, (h, l) in enumerate(((O1, O0), (C0, P1), (O2, O1), (C1, C0))):
            a('v_dot2_f32_bf16 v%d, v%d, v%d, 0' % (A + t, l, W32))
        a('v_lshlrev_b32 v%d, 16, v%d' % (U, V0))
        a('v_and_b32 v%d, s%d, v%d' % (U + 1, sHI, V0))
        for t, (h, l) in enumerate(((O1, O0), (C0, P1), (O2, O1), (C1, C0))):
            a('v_dot2c_f32_bf16 v%d, v%d, v%d' % (A + t, h, W10))
        a('v_lshlrev_b32 v%d, 16, v%d' % (U + 2, V1))
        a('v_and_b32 v%d, s%d, v%d' % (U + 3, sHI, V1))
        for t in range(4):
            a('v_mul_f32 v%d, v%d, v%d' % (A + t, A + t, U + t))
        a('v_cvt_pk_bf16_f32 v%d, v%d, v%d' % (PV + 2 * it, A + 3, A + 2))
        a('v_cvt_pk_bf16_f32 v%d, v%d, v%d' % (PV + 2 * it + 1, A + 1, A))
        a('ds_write_b64 v13, %s offset:%d' % (vr(PV + 2 * it, 2), 640 * it))
    a('s_mul_i32 s67, s%d, 80' % sX)
    a('s_lshl_b32 s66, s%d, 4' % sW)
    a('s_add_u32 s67, s67, s66')
    a('s_lshl_b32 s67, s67, 12')
    a('s_lshl_b32 s66, s%d, 7' % sI)
    a('s_sub_u32 s67, s67, s66')
    a('s_add_u32 s67, s67, 3968')
    a('ds_read_b128 %s, v14' % vr(CU, 4))
    a('ds_read_b128 %s, v14 offset:1280' % vr(CU + 4, 4))
    a('s_mul_i32 s68, s%d, 5' % sX)
    a('s_add_u32 s68, s68, s%d' % sW)
    a('s_lshl_b32 s68, s68, 7')
    a('s_lshl_b32 s66, s%d, 2' % sI)
    a('s_add_u32 s68, s68, s66')
    for k in range(2):
        a('s_add_u32 s66, s67, %s' % hex(KVA + 32768 * k))
        a('s_waitcnt lgkmcnt(%d)' % (1 - k))
        a('buffer_store_dwordx4 %s, v5, %s, s66 offen' % (vr(CU + 4 * k, 4), R4(WS)))
    stamp(a, 2)
    hello_load(a, 44, 69)
    a('s_lshl_b32 s66, s%d, 1' % sXCC)
    a('s_add_u32 s66, s66, s%d' % sTAG)
    a('v_mov_b32 v4, s66')
    a('s_add_u32 s66, s68, %d' % KVFA)
    a('s_waitcnt vmcnt(1)')
    a('s_mov_b64 exec, 1')
    a('buffer_store_dword v4, off, %s, s66' % R4(WS))
    a('s_mov_b64 exec, -1')
    stamp(a, 3)
    hello_check(a, 44, 69, 1)
    a('s_cmp_eq_u32 s%d, 0' % sSLOW)
    a('s_cbranch_scc1 ROLES')
    for k in range(2):
        a('s_add_u32 s66, s67, %s' % hex(KVB + 32768 * k))
        a('buffer_store_dwordx4 %s, v5, %s, s66 offen sc1' % (vr(CU + 4 * k, 4), R4(WS)))
    a('s_add_u32 s66, s68, %d' % KVFB)
    a('s_waitcnt vmcnt(0)')
    flag_store(a, 66, 4, True)
    a('s_branch ROLES')
    a.label('NOBUILD')
    stamp(a, 2)
    hello_load(a, 44, 69)
    hello_check(a, 44, 69, 0)
    stamp(a, 3)
    a.label('ROLES')
    a('s_cmp_ge_u32 s%d, 29' % sI)
    a('s_cbranch_scc1 S_MAIN')
    a.label('BUILT')
    stamp(a, 12)


CACC, CB, CA, CE, CT = 16, 32, 64, 96, 104
vCA, vCB = 14, 15


def conv_part(a, taus, U, mid=None, each=None):
    mf = [(aa, t - aa, t) for aa in range(max(taus) + 1) for t in taus if t >= aa]
    nf = max(taus) + 1
    D = 8 // nf
    assert U % D == 0
    order, last = [], {}
    for i, (aa, j, t) in enumerate(mf):
        for f in (('B', j), ('A', aa)):
            if f not in last:
                order.append(f)
            last[f] = i
    def reg(f, k):
        return (CA if f[0] == 'A' else CB) + 4 * (f[1] + nf * (k % D))
    def load(f, k):
        if f[0] == 'A':
            off = 512 * f[1] + 64 * k
            return ['ds_read_b64 %s, v%d offset:%d' % (vr(reg(f, k), 2), vCA, off),
                    'ds_read_b64 %s, v%d offset:%d' % (vr(reg(f, k) + 2, 2), vCA, off + 8)]
        return ['ds_read_b128 %s, v%d offset:%d' % (vr(reg(f, k), 4), vCB, 512 * (7 - f[1]) + 64 * k)]
    q, need = [], {}
    for k in range(D):
        for f in order:
            q += [(f, k)] * len(load(f, 0))
    for k in range(8):
        for i, (aa, j, t) in enumerate(mf):
            pos = max(n for n, e in enumerate(q) if e in ((('A', aa), k), (('B', j), k)))
            key = (k % U, i)
            need[key] = min(need.get(key, 15), len(q) - 1 - pos)
            for f in (('A', aa), ('B', j)):
                if last[f] == i and (k + D < 8 or U < 8):
                    q += [(f, k + D)] * len(load(f, 0))
    st = [0]
    def issue(l):
        for x in l:
            if st[0] >= 15:
                a('s_waitcnt lgkmcnt(12)')
                st[0] = 12
            a(x)
            st[0] += 1
    for k in range(D):
        for f in order:
            issue(load(f, k))
    if U < 8:
        for r in range(4 * len(taus)):
            a('v_mov_b32 v%d, 0' % (CACC + r))
        L, X = a.newlabel('CL'), a.newlabel('CX')
        a('s_mov_b32 s63, 0')
        a.label(L)
        st[0] = 15
    for c in range(U):
        for i, (aa, j, t) in enumerate(mf):
            n = need[(c, i)]
            if n < st[0]:
                a('s_waitcnt lgkmcnt(%d)' % n)
                st[0] = n
            acc = CACC + 4 * (t - taus[0])
            cc = '0' if (U == 8 and c == 0 and aa == 0) else vr(acc, 4)
            a('v_mfma_f32_16x16x32_bf16 %s, %s, %s, %s' % (vr(acc, 4), vr(reg(('A', aa), c), 4), vr(reg(('B', j), c), 4), cc))
            for f in (('A', aa), ('B', j)):
                if last[f] == i and (c + D < 8 or U < 8):
                    issue(load(f, c + D))
            if U == 8 and mid and c == 4 and i == 0:
                mid()
    if U < 8:
        if each:
            each()
        a('v_add_u32 v%d, %d, v%d' % (vCA, 64 * U, vCA))
        a('v_add_u32 v%d, %d, v%d' % (vCB, 64 * U, vCB))
        a('s_add_u32 s63, s63, 1')
        a('s_cmp_lt_u32 s63, %d' % (8 // U))
        if mid:
            assert U == 4
            a('s_cbranch_scc0 %s' % X)
            mid()
            a('s_branch %s' % L)
            a.label(X)
        else:
            a('s_cbranch_scc1 %s' % L)
        a('v_subrev_u32 v%d, 512, v%d' % (vCA, vCA))
        a('v_subrev_u32 v%d, 512, v%d' % (vCB, vCB))


def conv_flags(a, stages, young=0):
    a('s_waitcnt vmcnt(%d)' % young)
    a('s_mov_b64 exec, 1')
    for n, stage in enumerate(stages):
        a('ds_add_rtn_u32 v%d, v12, v13 offset:%d' % (10 + n, 4 * stage))
    a('s_mov_b64 exec, -1')
    a('s_waitcnt lgkmcnt(0)')
    for n, stage in enumerate(stages):
        L = a.newlabel('CF')
        a('v_readfirstlane_b32 s66, v%d' % (10 + n))
        a('s_cmp_lg_u32 s66, s71')
        a('s_cbranch_scc1 %s' % L)
        a('s_add_u32 s66, s76, %d' % (32768 * stage))
        flag_store(a, 66, 10 + n, True)
        a.label(L)


def conv_item(a, stages, U, st_, mid=None, defer=False, each=None):
    taus = [t for st in stages for t in (2 * st, 2 * st + 1)]
    conv_part(a, taus, U, mid, each)
    stamp(a, st_)
    T = CT
    a('s_waitcnt lgkmcnt(8)')
    for n, t in enumerate(taus):
        a('ds_read_b64 %s, v4 offset:%d' % (vr(CE + 2 * n, 2), 512 * (7 - t)))
    for m, stage in enumerate(stages):
        a('s_add_u32 s66, s75, %d' % (2 * 327680 * stage))
        a('s_waitcnt lgkmcnt(%d)' % (2 * (len(stages) - 1 - m)))
        Q = CT + 4 + 4 * m + (8 if defer else 0)
        for h in range(2):
            e0, e1 = CE + 4 * m + 2 * h, CE + 4 * m + 2 * h + 1
            acc = CACC + 8 * m + 4 * h
            a('v_and_b32 v%d, s%d, v%d' % (T + 0, sHI, e1))
            a('v_lshlrev_b32 v%d, 16, v%d' % (T + 1, e1))
            a('v_and_b32 v%d, s%d, v%d' % (T + 2, sHI, e0))
            a('v_lshlrev_b32 v%d, 16, v%d' % (T + 3, e0))
            for r in range(4):
                a('v_fmac_f32 v%d, s74, v%d' % (acc + r, T + r))
            a('v_cvt_pk_bf16_f32 v%d, v%d, v%d' % (Q + 2 * h, acc, acc + 1))
            a('v_cvt_pk_bf16_f32 v%d, v%d, v%d' % (Q + 2 * h + 1, acc + 2, acc + 3))
        a('v_permlane16_swap_b32 v%d, v%d' % (Q, Q + 2))
        a('v_permlane16_swap_b32 v%d, v%d' % (Q + 1, Q + 3))
        a('buffer_store_dwordx4 %s, v5, %s, s66 offen sc1' % (vr(Q, 4), R4(WS)))
    if not defer:
        conv_flags(a, stages)


def conv_phase(a):
    a('s_cmp_ge_u32 s%d, 14' % sI)
    a('s_cbranch_scc1 CV_G2')
    a('s_and_b32 s69, s%d, 1' % sW)
    a('s_lshr_b32 s63, s%d, 1' % sW)
    a('s_lshl_b32 s63, s63, 2')
    a('s_lshr_b32 s77, 0x2814, s63')
    a('s_and_b32 s77, s77, 15')
    conv_channel(a, 1, 69, 64, 65)
    a('s_branch CV_COM')
    a.label('CV_G2')
    a('s_mov_b32 s69, s%d' % sQ)
    a('s_cmp_eq_u32 s%d, 0' % sHF)
    a('s_cselect_b32 s77, 16, 9')
    conv_channel(a, 2, 69, 64, 65)
    a.label('CV_COM')
    a('s_lshr_b32 s78, s64, 4')
    a('s_mul_i32 s79, s%d, 5' % sX)
    a('s_add_u32 s78, s78, s79')
    a('s_lshl_b32 s78, s78, 7')
    a('s_add_u32 s78, s78, %d' % KVFA)
    a('s_mul_i32 s79, s%d, 80' % sX)
    a('s_add_u32 s64, s64, s79')
    a('s_and_b32 s66, s64, 0xfffffffe')
    a('s_lshl_b32 s66, s66, 1')
    a('s_load_dword s74, s[%d:%d], s66' % (pD, pD + 1))
    a('s_lshl_b32 s79, s64, 12')
    a('s_mul_i32 s80, s69, %d' % CSL)
    a('s_add_u32 s81, s80, %d' % CUO)
    a('s_bitcmp0_b32 s77, 0')
    a('s_cbranch_scc1 CV_NOLEAD')
    a('v_and_b32 v16, 31, v%d' % vL)
    a('v_lshlrev_b32 v16, 2, v16')
    a('v_lshrrev_b32 v17, 5, v%d' % vL)
    a('v_lshl_add_u32 v16, v17, 13, v16')
    assert KVFB - KVFA == 8192
    a('s_lshl_b32 s66, s%d, 1' % sXCC)
    a('v_mov_b32 v18, s66')
    a('v_cmp_eq_u32 vcc, 0, v17')
    a('v_cndmask_b32 v18, 0, v18, vcc')
    a('v_add_u32 v18, s%d, v18' % sTAG)
    a('s_mov_b32 s%d, 0' % sCNT)
    a.label('CV_POLL')
    a('buffer_load_dword v19, v16, %s, s78 offen sc1' % R4(WS))
    a('s_add_u32 s%d, s%d, 1' % (sCNT, sCNT))
    a('s_waitcnt vmcnt(0)')
    a('v_cmp_ne_u32 vcc, v18, v19')
    a('s_mov_b32 s66, %s' % hex(KVA))
    if not FORCE_SLOW:
        a('s_cmp_eq_u32 vcc_lo, 0')
        a('s_cbranch_scc1 CV_GOT')
    a('s_mov_b32 s66, %s' % hex(KVB))
    a('s_cmp_eq_u32 vcc_hi, 0')
    a('s_cbranch_scc1 CV_GOT')
    a('s_cmp_lt_u32 s%d, s%d' % (sCNT, sLIM))
    a('s_cbranch_scc1 CV_POLL')
    a('s_mov_b32 s%d, 0' % sLIM)
    a.label('CV_GOT')
    a('s_add_u32 s66, s66, s79')
    a('s_mov_b32 m0, s81')
    for k in range(4):
        a('buffer_load_dwordx4 v%d, %s, s66 offen offset:%d sc1 lds' % (vL16, R4(WS), 1024 * k))
    a.label('CV_NOLEAD')
    stamp(a, 4)
    a('s_lshl_b32 s75, s64, 6')
    a('s_add_u32 s75, s75, %s' % hex(YT))
    a('s_lshl_b32 s76, s%d, 5' % sX)
    a('s_add_u32 s76, s76, s%d' % sI)
    a('s_lshl_b32 s76, s76, 7')
    a('s_add_u32 s76, s76, %d' % YF)
    a('s_cmp_ge_u32 s%d, 14' % sI)
    a('s_cselect_b32 s71, 3, 1')
    a('s_add_u32 s66, s71, 1')
    a('s_mul_i32 s66, s66, %d' % CSL)
    a('v_mov_b32 v12, s66')
    a('v_mov_b32 v13, 1')
    a('v_mov_b64 v[16:17], 0')
    a('ds_write2_b64 v12, v[16:17], v[16:17] offset1:1')
    a('s_lshl_b32 s65, s65, 28')
    a('v_and_b32 v16, 15, v%d' % vL)
    a('v_lshrrev_b32 v17, 4, v%d' % vL)
    a('v_add_u32 v18, 1, v16')
    a('v_and_b32 v19, 3, v18')
    a('v_mul_u32_u24 v%d, %d, v19' % (vCA, HSTR))
    a('v_lshrrev_b32 v18, 2, v18')
    a('v_lshl_add_u32 v%d, v18, 3, v%d' % (vCA, vCA))
    a('v_lshl_add_u32 v%d, v17, 4, v%d' % (vCA, vCA))
    a('v_add_u32 v%d, s80, v%d' % (vCA, vCA))
    a('v_lshlrev_b32 v18, 5, v16')
    a('v_lshlrev_b32 v19, 4, v17')
    a('v_sub_u32 v%d, v19, v18' % vCB)
    a('s_add_u32 s66, s81, 480')
    a('v_add_u32 v%d, s66, v%d' % (vCB, vCB))
    a('v_lshl_add_u32 v19, v17, 3, v18')
    a('s_add_u32 s66, s81, 504')
    a('v_sub_u32 v4, s66, v19')
    a('v_and_b32 v19, 1, v17')
    a('v_lshlrev_b32 v19, 3, v19')
    a('v_lshrrev_b32 v18, 1, v16')
    a('v_add_u32 v19, v19, v18')
    a('v_mul_u32_u24 v5, 40960, v19')
    a('v_and_b32 v18, 1, v16')
    a('v_lshl_add_u32 v5, v18, 5, v5')
    a('v_lshrrev_b32 v19, 1, v17')
    a('v_lshl_add_u32 v5, v19, 4, v5')
    a('v_add_u32 v5, s65, v5')
    a('s_waitcnt lgkmcnt(0)')
    a('s_bitcmp1_b32 s64, 0')
    a('s_cbranch_scc1 CV_DHI')
    a('s_lshl_b32 s74, s74, 16')
    a.label('CV_DHI')
    a('s_and_b32 s74, s74, 0xffff0000')
    a('s_bitcmp0_b32 s77, 0')
    a('s_cbranch_scc1 CV_RD')
    a('s_waitcnt vmcnt(0)')
    a.label('CV_RD')
    a('s_barrier')
    stamp(a, 5)
    a('s_bitcmp0_b32 s77, 0')
    a('s_cbranch_scc1 CV_I2')
    a('s_setprio 3')
    conv_item(a, [0], CU_[0], 13, defer=True)
    def mid():
        conv_flags(a, [0])
        stamp(a, 6)
    conv_item(a, [1], CU_[1], 14, mid, defer=True)
    a('s_bitcmp1_b32 s77, 3')
    a('s_cbranch_scc1 CV_L2')
    conv_flags(a, [1])
    stamp(a, 7)
    a.label('CV_I2')
    a('s_bitcmp0_b32 s77, 1')
    a('s_cbranch_scc1 CV_I3')
    conv_item(a, [2], CU_[2], 13)
    stamp(a, 8)
    a.label('CV_I3')
    a('s_setprio 0')
    a('s_bitcmp0_b32 s77, 2')
    a('s_cbranch_scc1 CV_I4')
    conv_item(a, [3], CU_[3], 13)
    stamp(a, 8)
    a.label('CV_I4')
    a('s_bitcmp0_b32 s77, 4')
    a('s_cbranch_scc1 CV_LD')
    if RL:
        nr = NR[2] - NA2
        assert CU_[4] == 2
        w_begin(a, 2, NA2, sW, 0, 4, RING[2] + 4096 * NA2)
        for n in range(nr - 4 * (nr // 4)):
            emit(a, w_piece(4))
        def each():
            for n in range(nr // 4):
                emit(a, w_piece(4))
    conv_item(a, [2, 3], CU_[4], 13, each=each if RL else None)
    stamp(a, 8)
    a.label('CV_LD')
    a('s_bitcmp0_b32 s77, 3')
    a('s_cbranch_scc1 CV_END')
    for g, nw, P, pf in ((1, 2, P1, PF1), (2, 4, P2_, PF2)):
        nr = 4 * (NR[g] - NA[g]) // nw
        npf = 4 * NC[g] // nw if pf else 0
        if g == 2:
            a.label('CV_L2')
            a('s_setprio 0')
            if RL:
                nr = 0
        w_begin(a, g, NA[g] if nr else NR[g], sW, 4, nw, RING[g] + 4096 * NA[g])
        if g == 2:
            n0 = min(P, nr) if nr else min(P, npf)
            w_stream(a, n0, nw, 63, None if nr else DUM[g])
            conv_flags(a, [1], n0)
            stamp(a, 7)
            if nr:
                nr -= n0
            else:
                npf -= n0
        w_stream(a, nr, nw, P)
        w_stream(a, npf, nw, P, DUM[g])
        if g == 1:
            stamp(a, 7)
        if nr:
            a('s_waitcnt vmcnt(%d)' % min(npf, P - 1))
        stamp(a, 8)
        a('s_branch CV_END2')
    a.label('CV_END')
    a('s_cmp_ge_u32 s%d, 14' % sI)
    a('s_cbranch_scc1 CV_END2')
    a('s_cmp_lg_u32 s%d, 7' % sW)
    a('s_cbranch_scc1 CV_END2')
    hello_load(a, 44, 69)
    hello_check(a, 44, 69, 0)
    a.label('CV_END2')
    a('s_barrier')
    stamp(a, 9)
    a('s_cmp_ge_u32 s%d, 14' % sI)
    a('s_cbranch_scc1 G2_INIT')


ZR, NZR, GE, ACC, BIAS = 24, 6, 48, 64, 80
vSO, vLN, vOW, vC1, vRD, vDN, vTH, vOB, vPO, vZ, vTG, vCN, PK, PK2 = 0, 4, 5, 6, 8, 9, 10, 11, 12, 13, 14, 15, 16, 20


def g_phase(a, g):
    N, BUF, NP = NK[g], 1024 * NK[g], NK[g] // 4
    SRC, DSTS = (ZSL, HSL) if g == 1 else (HSL, MSL)
    FST = 32 if g == 1 else 256
    ool = Ool(a)
    T = lambda s: 'G%d_%s' % (g, s)
    a.label(T('INIT'))
    w_begin(a, g, NR[g], sW, 0, 8, 0)
    for k in range(NC[g] // 2):
        emit(a, w_piece(8))
    a('s_cmp_ge_u32 s%d, 4' % sW)
    a('s_cbranch_scc1 %s' % T('I4'))
    emit(a, w_piece(8))
    a.label(T('I4'))
    a('v_lshrrev_b32 v10, 5, v%d' % vL)
    a('v_lshlrev_b32 v10, 5, v10')
    a('s_lshl_b32 s67, s%d, 6' % sQ)
    if g == 1:
        srd(a, RD, pB1, 3456)
        a('s_lshl_b32 s66, s%d, 8' % sI)
    else:
        srd(a, RD, pB2, 1280)
        g2_ids(a, 69, 70)
        a('s_lshl_b32 s66, s70, 8')
        a('s_lshl_b32 s63, s69, 16')
        a('s_add_u32 s66, s66, s63')
    a('s_add_u32 s66, s66, s67')
    a('v_add_u32 v10, s66, v10')
    a('buffer_load_dwordx4 %s, v10, %s, 0 offen' % (vr(GE, 4), R4(RD)))
    a('buffer_load_dwordx4 %s, v10, %s, 0 offen offset:16' % (vr(GE + 4, 4), R4(RD)))
    w_read(a, g, 0, NR[g], RING[g])
    a('s_waitcnt vmcnt(0)')
    a('s_barrier')
    a('v_add_u32 v11, %d, v%d' % (L_SYNC, vL4))
    a('v_mov_b32 v12, 0')
    a('ds_write_b32 v11, v12')
    for i in range(8):
        a('v_lshlrev_b32 v%d, 16, v%d' % (BIAS + 2 * i, GE + i))
        a('v_and_b32 v%d, s%d, v%d' % (BIAS + 2 * i + 1, sHI, GE + i))
    w_read(a, g, NR[g], NC[g], 0)
    a('s_barrier')
    stamp(a, 10)
    a('s_lshl_b32 s66, s%d, 3' % sX)
    a('s_add_u32 s66, s66, s%d' % sHF)
    a('s_mul_i32 s64, s66, %d' % SRC)
    a('s_mul_i32 s74, s66, %d' % DSTS)
    a('s_mul_i32 s67, s%d, %d' % (sQ, 1024 * NP))
    a('s_add_u32 s64, s64, s67')
    a('s_mul_i32 s72, s%d, %d' % (sHF, BUF))
    if g == 1:
        a('s_add_u32 s64, s64, %s' % hex(ZI))
        a('s_lshl_b32 s73, s%d, 10' % sX)
        a('s_lshl_b32 s63, s%d, 5' % sHF)
        a('s_add_u32 s73, s73, s63')
        a('s_add_u32 s73, s73, %d' % ZF)
        a('s_lshl_b32 s68, s%d, 2' % sI)
        a('s_add_u32 s68, s68, s%d' % sQ)
        a('s_lshl_b32 s63, s68, 11')
        a('s_add_u32 s74, s74, s63')
        a('s_add_u32 s74, s74, %s' % hex(HB))
        a('v_and_b32 v%d, 0x1c, v%d' % (vPO, vL4))
        c1 = -2.0 * math.sqrt(2.0 / math.pi) * math.log2(math.e)
        a('v_mov_b32 v%d, %s' % (vC1, f2h(c1)))
    else:
        g2_ids(a, 69, 70)
        a('s_mul_i32 s63, s69, %d' % BUF)
        a('s_add_u32 s64, s64, s63')
        a('s_add_u32 s64, s64, %s' % hex(HB))
        a('s_lshl_b32 s73, s%d, 13' % sX)
        a('s_lshl_b32 s63, s%d, 8' % sHF)
        a('s_add_u32 s73, s73, s63')
        a('s_mul_i32 s63, s69, 72')
        a('s_add_u32 s73, s73, s63')
        a('s_add_u32 s73, s73, %d' % HFL)
        a('s_mul_i32 s63, s69, 40960')
        a('s_add_u32 s74, s74, s63')
        a('s_lshl_b32 s63, s70, 2')
        a('s_add_u32 s63, s63, s%d' % sQ)
        a('s_lshl_b32 s63, s63, 11')
        a('s_add_u32 s74, s74, s63')
        a('s_add_u32 s74, s74, %s' % hex(MR))
        a('s_sub_u32 s68, s%d, 14' % sI)
        a('s_lshl_b32 s68, s68, 2')
        a('s_add_u32 s68, s68, s%d' % sQ)
        a('v_min_u32 v%d, 68, v%d' % (vPO, vL4))
    a('s_lshl_b32 s78, s%d, 13' % sX)
    a('s_lshl_b32 s63, s%d, 8' % sHF)
    a('s_add_u32 s78, s78, s63')
    a('s_lshl_b32 s63, s68, 2')
    a('s_add_u32 s78, s78, s63')
    a('s_add_u32 s78, s78, %d' % (HFL if g == 1 else MFL))
    a('s_mov_b32 s75, %d' % (2 * SRC))
    a('s_mov_b32 s79, %d' % (2 * DSTS))
    a('v_lshrrev_b32 v16, 5, v%d' % vL)
    a('v_and_b32 v17, 31, v%d' % vL)
    a('v_lshlrev_b32 v17, 4, v17')
    a('v_lshl_add_u32 v%d, v16, 10, v17' % vSO)
    a('s_lshl_b32 s63, s%d, 4' % sHF)
    a('s_add_u32 s66, s63, %d' % LF_LND)
    a('v_mov_b32 v%d, s66' % vLN)
    a('s_lshl_b32 s66, s%d, 2' % sW)
    a('s_add_u32 s66, s66, %d' % LF_LND)
    a('v_mov_b32 v%d, s66' % vOW)
    a('s_sub_u32 s66, %d, s63' % (LF_DON + 16))
    a('v_mov_b32 v%d, s66' % vDN)
    a('v_mov_b32 v%d, s%d' % (vTH, sHF))
    a('v_mov_b32 v%d, s%d' % (vTG, sTAG))
    a('v_mov_b32 v%d, 1' % vCN)
    oob_lane0(a, vOB)
    dummy_off(a, 71)
    a('s_mov_b32 s84, s71')
    a('s_mov_b32 s%d, 0' % sP)

    def stage():
        o = []
        for k in range(NP):
            gq = []
            if k == 0:
                gq += ['s_add_u32 m0, s65, s67', 's_mov_b32 s63, s64']
            elif k % 4 == 0:
                gq += ['s_add_u32 m0, m0, 4096', 's_add_u32 s63, s63, 4096']
            gq.append('buffer_load_dwordx4 v%d, %s, s63 offen offset:%d sc1 lds' % (vL16, R4(WS), 1024 * (k & 3)))
            o.append(gq)
        return o
    PEEK = 'ds_read_b128 %s, v%d' % (vr(PK, 4), vLN)
    PEEK2 = 'ds_read_b128 %s, v%d' % (vr(PK2, 4), vDN)
    PLOAD = 'buffer_load_dword v%d, v%d, %s, s73 offen sc1' % (vZ, vPO, R4(WS))
    PCMP = 'v_cmp_ne_u32 vcc, s%d, v%d' % (sTAG, vZ)
    def flag(s):
        return both2(a, ool, 'buffer_store_dword v%d, v%d, %s, s%d offen' % (vTG, vOB, R4(WS), s))
    def store(o, t):
        return both2(a, ool, 'buffer_store_dwordx4 %s, v%d, %s, s74 offen offset:%d' % (vr(o, 4), vSO, R4(WS), 512 * t))

    a('s_mov_b32 s65, s72')
    block_poll(a, vZ, vPO, 73)
    stamp(a, 11)
    for gq in stage():
        emit(a, gq)
    a('s_waitcnt vmcnt(0)')
    a('ds_write_b32 v%d, v%d' % (vOW, vCN))
    a(PEEK)
    a.label(T('LOOP'))
    a('v_add_u32 v%d, s72, v%d' % (vRD, vL16))
    a('s_cmp_eq_u32 s%d, 3' % sP)
    a('s_cselect_b32 s63, %d, s75' % (-6 * SRC))
    a('s_add_u32 s64, s64, s63')
    a('s_add_u32 s73, s73, %d' % (2 * FST))
    a('s_cmp_eq_u32 s72, 0')
    a('s_cselect_b32 s65, %d, s72' % (3 * BUF))
    a('s_sub_u32 s65, s65, %d' % BUF)
    def pend():
        a('s_waitcnt vmcnt(0)')
        emit(a, flag(84))
        a('s_mov_b32 s84, s71')
    cnt_spin(a, ool, PK, vLN, vCN, pend if g == 1 else None)
    PF = NZR - 1
    q = LdsQ(a)
    for n in range(PF):
        q.issue(('z', n), 'ds_read_b128 %s, v%d offset:%d' % (vr(ZR + 4 * n, 4), vRD, 1024 * n))
    a('s_setprio %d' % PRIO[0])
    stamp(a, (sP, 4, 16))
    for ks in range(N):
        q.wait([('z', ks)])
        c = vr(BIAS, 16) if ks == 0 else vr(ACC, 16)
        a('v_mfma_f32_32x32x16_bf16 %s, %s, %s, %s' % (vr(ACC, 16), vr(WB[g] + 4 * ks, 4), vr(ZR + 4 * (ks % NZR), 4), c))
        n = ks + PF
        if n < N:
            q.issue(('z', n), 'ds_read_b128 %s, v%d offset:%d' % (vr(ZR + 4 * (n % NZR), 4), vRD, 1024 * n))
        if ks == HFK and g == 1:
            pend()
        if ks == PRK:
            a('s_setprio %d' % PRIO[1])
        if ks == N - PLK:
            a(PLOAD)
        if ks == N - 3:
            q.issue(('p', 0), PEEK2)
    a('ds_write_b32 v%d, v%d offset:32' % (vOW, vCN))
    a('s_setprio %d' % PRIO[2])
    stamp(a, (sP, 4, 17))
    a('s_waitcnt vmcnt(0) lgkmcnt(1)')
    emit(a, cnt_min(PK2))
    a('v_cmp_gt_u32 s[82:83], v%d, v%d' % (vTH, PK2))
    a(PCMP)
    a('s_cmp_eq_u32 s%d, 7' % sP)
    a('s_cselect_b64 s[82:83], -1, s[82:83]')
    a('s_or_b64 vcc, vcc, s[82:83]')

    def gelu(dma):
        ops = []
        for t in range(2):
            X, U = ACC + 8 * t, GE
            ops += ['v_mul_f32 v%d, v%d, v%d' % (U + i, X + i, X + i) for i in range(8)]
            ops += ['v_fma_f32 v%d, v%d, s%d, v%d' % (U + i, U + i, sC2, vC1) for i in range(8)]
            ops += ['v_mul_f32 v%d, v%d, v%d' % (U + i, U + i, X + i) for i in range(8)]
            ops += ['v_exp_f32 v%d, v%d' % (U + i, U + i) for i in range(8)]
            ops += ['v_add_f32 v%d, 1.0, v%d' % (U + i, U + i) for i in range(8)]
            ops += ['v_rcp_f32 v%d, v%d' % (U + i, U + i) for i in range(8)]
            ops += ['v_mul_f32 v%d, v%d, v%d' % (U + i, U + i, X + i) for i in range(8)]
            o = U + 8 + 4 * t
            ops += ['v_cvt_pk_bf16_f32 v%d, v%d, v%d' % (o + i, U + 2 * i, U + 2 * i + 1) for i in range(4)]
            ops.append(('st', o, t))
        st = stage() if dma else []
        if st:
            emit(a, st.pop(0))
        for i, l in enumerate(ops):
            if isinstance(l, tuple):
                assert not st
                emit(a, store(l[1], l[2]))
            else:
                a(l)
            if st and i % DST == DST - 1:
                emit(a, st.pop(0))

    def landed():
        a('v_add_u32 v%d, 1, v%d' % (vCN, vCN))
        a('ds_write_b32 v%d, v%d' % (vOW, vCN))
    if g == 1:
        a('s_cbranch_vccnz %s' % T('EB'))
        gelu(True)
        stamp(a, (sP, 4, 18))
        a('s_mov_b32 s84, s78')
        a('s_waitcnt vmcnt(2)')
        landed()
    else:
        a('s_mov_b64 s[82:83], vcc')
        for i in range(8):
            a('v_cvt_pk_bf16_f32 v%d, v%d, v%d' % (GE + i, ACC + 2 * i, ACC + 2 * i + 1))
            if i & 3 == 3:
                emit(a, store(GE + i - 3, i >> 2))
        a('s_cmp_lg_u64 s[82:83], 0')
        a('s_cbranch_scc1 %s' % T('EB'))
        for gq in stage():
            emit(a, gq)
        a('s_waitcnt vmcnt(%d)' % NP)
        emit(a, flag(78))
        stamp(a, (sP, 4, 18))
        a('s_waitcnt vmcnt(1)')
        landed()
    a.label(T('NEXT'))
    a(PEEK)
    stamp(a, (sP, 4, 19))
    a('v_add_u32 v%d, 1, v%d' % (vTH, vTH))
    a('s_mov_b32 s72, s65')
    a('s_add_u32 s78, s78, 512')
    a('s_cmp_eq_u32 s%d, 3' % sP)
    a('s_cselect_b32 s63, %d, s79' % (-6 * DSTS))
    a('s_add_u32 s74, s74, s63')
    a('s_add_u32 s%d, s%d, 1' % (sP, sP))
    a('s_branch %s' % T('LOOP'))
    a.label(T('EB'))
    if g == 1:
        gelu(False)
    a(PLOAD)
    a(PEEK2)
    a('s_waitcnt vmcnt(1)')
    emit(a, flag(78))
    stamp(a, (sP, 4, 18))
    a('s_cmp_eq_u32 s%d, 7' % sP)
    a('s_cbranch_scc1 %s' % T('END'))
    a('s_waitcnt vmcnt(1)')
    a(PCMP)
    a('s_cbranch_vccz %s' % T('GOT'))
    block_poll(a, vZ, vPO, 73)
    a.label(T('GOT'))
    cnt_spin(a, ool, PK2, vDN, vTH)
    for gq in stage():
        emit(a, gq)
    a('s_waitcnt vmcnt(0)')
    landed()
    a('s_branch %s' % T('NEXT'))
    a.label(T('END'))
    endk(a, g)
    ool.flush()


YU, MM, XS, PS, TS = 36, 76, 136, 16, 24
DD, ZP = MM, MM + 40
vIM, vY0, vY1, vYC, vYG, vQA, vT0, vSP = 0, 4, 5, 6, 8, 9, 10, 14


def unpack(dst, src, n):
    o = []
    for i in range(n):
        o.append('v_lshlrev_b32 v%d, 16, v%d' % (dst + 2 * i, src + i))
        o.append('v_and_b32 v%d, s%d, v%d' % (dst + 2 * i + 1, sHI, src + i))
    return o


def accum(dst, src, n):
    o = []
    for i in range(n):
        o.append('v_dot2c_f32_bf16 v%d, s%d, v%d' % (dst + 2 * i, sLO1, src + i))
        o.append('v_dot2c_f32_bf16 v%d, s%d, v%d' % (dst + 2 * i + 1, sHI1, src + i))
    return o


def sums(X, T, k):
    o = []
    for i in range(0, 8, 2):
        x = P2(X + 8 * k + i)
        if k == 0 and i == 0:
            o += ['v_pk_mul_f32 %s, %s, %s' % (P2(T + 2), x, x)]
        elif k == 0 and i == 2:
            o += ['v_pk_add_f32 %s, %s, %s' % (P2(T), P2(X), x), 'v_pk_fma_f32 %s, %s, %s, %s' % (P2(T + 2), x, x, P2(T + 2))]
        else:
            o += ['v_pk_add_f32 %s, %s, %s' % (P2(T), P2(T), x), 'v_pk_fma_f32 %s, %s, %s, %s' % (P2(T + 2), x, x, P2(T + 2))]
    return o


def finish(T, double, U=vSP):
    Q, R = T, T + 2
    o = ['v_add_f32 v%d, v%d, v%d' % (Q, T, T + 1), 'v_add_f32 v%d, v%d, v%d' % (R, T + 2, T + 3),
         'v_permlane32_swap_b32 v%d, v%d' % (Q, R), 'v_add_f32 v%d, v%d, v%d' % (Q, Q, R),
         'v_mov_b32 v%d, v%d' % (R, Q), 'v_permlane16_swap_b32 v%d, v%d' % (Q, R), 'v_add_f32 v%d, v%d, v%d' % (Q, Q, R)]
    for k in (8, 4):
        o.append('v_add_f32 v%d, v%d, v%d row_ror:%d row_mask:0xf bank_mask:0xf' % (Q, Q, Q, k))
    o += ['v_mul_f32 v%d, s%d, v%d' % (Q, sINV, Q), 'v_mov_b32 v%d, v%d' % (R, Q), 'v_permlane32_swap_b32 v%d, v%d' % (Q, R),
          'v_fma_f32 v%d, -v%d, v%d, v%d' % (R, Q, Q, R), 'v_max_f32 v%d, 0, v%d' % (R, R),
          'v_add_f32 v%d, s%d, v%d' % (U, sEPS, R), 'v_rsq_f32 v%d, v%d' % (U, U)]
    if double:
        o += ['v_mul_f32 v%d, v%d, v%d' % (R, R, U), 'v_fma_f32 v%d, v%d, v%d, s%d' % (R, R, U, sEPS),
              'v_rsq_f32 v%d, v%d' % (R, R), 'v_mul_f32 v%d, v%d, v%d' % (U, U, R)]
    o += ['v_mul_f32_e64 v%d, -v%d, v%d' % (U + 1, Q, U)]
    return o


def norm(d, x, n, sp=vSP):
    return ['v_pk_fma_f32 %s, %s, %s, %s op_sel:[0,0,1] op_sel_hi:[1,0,1]' % (P2(d + i), P2(x + i), P2(sp), P2(sp)) for i in range(0, n, 2)]


def gate(k, XW):
    return ['v_pk_fma_f32 %s, %s, %s, %s' % (P2(XW + i), P2(DD + i), P2(YU + i), P2(XW + i)) for i in range(8 * k, 8 * k + 8, 2)]


def s_phase(a):
    ool = Ool(a)
    vOB, vPO, vZ = 11, 12, 13
    vYP, YF4 = 28, 32
    a.label('S_MAIN')
    srd(a, RA, pQ, hex(ROWS_B))
    s_ids(a)
    row_table(a, PS, 10)
    a('s_barrier')
    q_dma(a, 1, PS)
    srd(a, RB, pOUT, hex(ROWS_B))
    a('v_lshrrev_b32 v40, 2, v%d' % vL)
    a('v_and_b32 v41, 3, v%d' % vL)
    a('v_lshlrev_b32 v%d, 9, v40' % vIM)
    a('v_lshl_add_u32 v%d, v41, 4, v%d' % (vIM, vIM))
    a('s_lshl_b32 s66, s71, 8')
    a('s_lshl_b32 s67, s%d, 6' % sQ)
    a('s_add_u32 s66, s66, s67')
    a('v_add_u32 v%d, s66, v%d' % (vIM, vIM))
    a('v_lshlrev_b32 v43, 1, v41')
    a('v_xor_b32 v43, v43, v40')
    a('v_mul_u32_u24 v%d, 1280, v41' % vQA)
    a('v_lshl_add_u32 v%d, v43, 4, v%d' % (vQA, vQA))
    a('v_lshrrev_b32 v43, 4, v%d' % vL)
    a('v_lshl_add_u32 v43, v43, 2, v41')
    a('v_bfe_u32 v44, v%d, 2, 2' % vL)
    a('v_lshlrev_b32 v44, 1, v44')
    a('s_lshr_b32 s66, s%d, 1' % sQ)
    a('v_add_u32 v44, s66, v44')
    a('v_and_b32 v45, 1, v41')
    a('v_xor_b32 v44, v44, v45')
    a('v_and_b32 v45, 2, v41')
    a('v_lshlrev_b32 v45, 2, v45')
    a('v_xor_b32 v44, v44, v45')
    a('v_lshlrev_b32 v%d, 8, v43' % vYC)
    a('v_lshl_add_u32 v%d, v44, 4, v%d' % (vYC, vYC))
    a('s_and_b32 s66, s%d, 1' % sQ)
    a('s_lshl_b32 s66, s66, 3')
    a('s_mul_i32 s67, s%d, 5120' % sQ)
    a('s_sub_u32 s66, s66, s67')
    a('v_add_u32 v%d, s66, v%d' % (vYC, vYC))
    a('v_lshrrev_b32 v43, 4, v%d' % vL)
    a('v_and_b32 v44, 15, v%d' % vL)
    a('v_and_b32 v45, 1, v43')
    a('v_xor_b32 v44, v44, v45')
    a('v_and_b32 v45, 2, v43')
    a('v_lshlrev_b32 v45, 2, v45')
    a('v_xor_b32 v44, v44, v45')
    a('v_lshrrev_b32 v45, 1, v44')
    a('v_lshl_add_u32 v45, v43, 3, v45')
    a('v_lshlrev_b32 v%d, 6, v45' % vYG)
    a('v_and_b32 v44, 1, v44')
    a('v_lshl_add_u32 v%d, v44, 4, v%d' % (vYG, vYG))
    a('s_lshl_b32 s66, s71, 5')
    a('s_mul_i32 s67, s%d, 10240' % sQ)
    a('s_add_u32 s66, s66, s67')
    a('v_add_u32 v%d, s66, v%d' % (vYG, vYG))
    oob_lane0(a, vOB)
    a('v_min_u32 v%d, 236, v%d' % (vPO, vL4))
    a('s_lshl_b32 s79, s71, 2')
    a('s_add_u32 s79, s79, s%d' % sQ)
    a('s_lshl_b32 s79, s79, 2')
    a('s_lshl_b32 s63, s%d, 10' % sX)
    a('s_add_u32 s79, s79, s63')
    a('s_add_u32 s79, s79, %d' % ZF)
    a('v_and_b32 v%d, 31, v%d' % (vYP, vL))
    a('v_min_u32 v%d, 28, v%d' % (vYP, vYP))
    a('v_and_or_b32 v%d, v%d, 32, v%d' % (vYP, vL, vYP))
    a('v_lshlrev_b32 v%d, 7, v%d' % (vYP, vYP))
    a('s_lshl_b32 s66, s%d, 2' % sW)
    a('s_add_u32 s66, s66, %d' % LF_LND)
    a('v_mov_b32 v%d, s66' % (vYP + 1))
    a('s_and_b32 s66, s66, 0xfffffff0')
    a('v_mov_b32 v%d, s66' % (vYP + 2))
    a('s_lshl_b32 s80, s%d, 13' % sQ)
    a('s_add_u32 s80, s80, %d' % YF)
    def head(ph, sl):
        a('s_add_u32 s74, s70, %d' % (3 * sl))
        if sl == 2:
            a('s_cmp_gt_u32 s74, 7')
            a('s_cbranch_scc1 S%s_END' % ph)
        a('s_add_u32 s75, s72, %d' % (40960 * sl))
        if ph != 'C':
            a('v_add_u32 v%d, s75, v%d' % (vY0, vYC))
            a('v_xor_b32 v%d, 0x80, v%d' % (vY1, vY0))
        a('s_lshl_b32 s76, s%d, 3' % sX)
        a('s_add_u32 s76, s76, s74')

    def y_reads():
        for k in range(5):
            a('ds_read_b64_tr_b16 %s, v%d offset:%d' % (vr(ZP + 4 * k, 2), vY0, 4096 * k))
            a('ds_read_b64_tr_b16 %s, v%d offset:%d' % (vr(ZP + 4 * k + 2, 2), vY1, 4096 * k))

    def z_out(lay, X, mid=None):
        emit(a, finish(TS, True))
        a('s_mul_i32 s66, s76, %d' % ZSL)
        a('s_add_u32 s66, s66, %s' % hex(ZI))
        for k in range(5):
            emit(a, norm(DD + 8 * k, X + 8 * k, 8))
            for i in range(4):
                a('v_cvt_pk_bf16_f32 v%d, v%d, v%d' % (ZP + 4 * k + i, DD + 8 * k + 2 * i, DD + 8 * k + 2 * i + 1))
            emit(a, both2(a, ool, 'buffer_store_dwordx4 %s, v%d, %s, s66 offen' % (vr(ZP + 4 * k, 4), vIM, R4(WS))))
            if k < 4:
                a('s_add_u32 s66, s66, 8192')
        a('s_lshl_b32 s68, s74, 5')
        a('s_add_u32 s68, s68, s79')
        a('v_mov_b32 v%d, s%d' % (vZ, sTAG))
        if mid:
            mid()
        else:
            a('s_waitcnt vmcnt(0)')
        emit(a, both2(a, ool, 'buffer_store_dword v%d, v%d, %s, s68 offen offset:%d' % (vZ, vOB, R4(WS), 256 * lay)))

    def m_in(lay, sl, X, per_k):
        a('s_lshl_b32 s66, s%d, 13' % sX)
        a('s_lshl_b32 s67, s74, 8')
        a('s_add_u32 s66, s66, s67')
        a('s_add_u32 s66, s66, %d' % (MFL + 2048 * lay))
        a('s_mul_i32 s67, s76, %d' % MSL)
        a('s_add_u32 s67, s67, %s' % hex(MR))
        a('s_add_u32 s68, s67, 40960')
        a('s_add_u32 s69, s67, 81920')
        block_poll(a, vZ, vPO, 66)
        stamp(a, 4 * sl + 29 + 12 * lay)
        for k in range(5):
            for p in range(3):
                a('buffer_load_dwordx4 %s, v%d, %s, s%d offen sc1' % (vr(MM + 12 * k + 4 * p, 4), vIM, R4(WS), 67 + p))
                if k < 4:
                    a('s_add_u32 s%d, s%d, 8192' % (67 + p, 67 + p))
        for k in range(5):
            for p in range(3):
                a('s_waitcnt vmcnt(%d)' % (14 - 3 * k - p))
                emit(a, accum(X + 8 * k, MM + 12 * k + 4 * p, 4))
            per_k(k)

    def y_line(du):
        a('s_add_u32 s81, s74, %d' % du)
        a('s_lshr_b32 s81, s81, 1')
        a('s_min_u32 s81, s81, 3')
        a('s_lshl_b32 s81, s81, 15')
        a('s_add_u32 s81, s81, s80')
    YLOAD = 'buffer_load_dword v%d, v%d, %s, s81 offen sc1' % (YF4, vYP, R4(WS))

    def y_test():
        a('v_cmp_ne_u32 vcc, s%d, v%d' % (sTAG, YF4))

    def y_dma(du, dl):
        a('s_add_u32 s67, s74, %d' % du)
        a('s_min_u32 s67, s67, 7')
        a('s_lshl_b32 s67, s67, 3')
        a('s_add_u32 s67, s67, s%d' % sX)
        a('s_mul_i32 s67, s67, 40960')
        a('s_add_u32 s67, s67, %s' % hex(YT))
        for k in range(5):
            a('s_add_u32 m0, s75, %d' % (1024 * k + dl))
            a('buffer_load_dwordx4 v%d, %s, s67 offen sc1 lds' % (vYG, R4(WS)))
            if k < 4:
                a('s_add_u32 s67, s67, 2048')

    def q_reads(sl, dl):
        a('s_add_u32 s66, s75, %d' % dl)
        a('v_add_u32 v%d, s66, v%d' % (vT0, vQA))
        for k in range(5):
            a('ds_read_b128 %s, v%d offset:%d' % (vr(XS + 40 * sl + 20 + 4 * k, 4), vT0, 256 * k))

    for sl in range(3):
        X = XS + 40 * sl
        head('A', sl)
        if sl == 0:
            q_reads(0, 0)
            a('s_waitcnt lgkmcnt(0)')
        for k in range(5):
            emit(a, unpack(X + 8 * k, X + 20 + 4 * k, 4))
            emit(a, sums(X, TS, k))
        emit(a, finish(TS, False))
        emit(a, norm(DD, X, 40))
        stamp(a, 4 * sl + 16)
        def fetch(sl=sl):
            a.label('SA_F%d' % sl)
            y_line(0)
            a('s_mov_b32 s%d, 0' % sCNT)
            a('s_mul_i32 s66, s2, 5')
            a('s_add_u32 s66, s66, s74')
            a('s_lshl_b64 exec, 1, s66')
            a('s_mov_b64 s[64:65], -1')
            a.label('SA_YL%d' % sl)
            a(YLOAD)
            a('s_add_u32 s%d, s%d, 1' % (sCNT, sCNT))
            a('s_waitcnt vmcnt(0)')
            y_test()
            a('s_cmp_eq_u64 vcc, 0')
            a('s_cselect_b64 exec, s[64:65], vcc')
            a('s_cselect_b64 s[64:65], 0, s[64:65]')
            a('s_cbranch_execz SA_YD%d' % sl)
            a('s_cmp_lt_u32 s%d, s%d' % (sCNT, sLIM))
            a('s_cbranch_scc1 SA_YL%d' % sl)
            a('s_mov_b32 s%d, 0' % sLIM)
            a.label('SA_YD%d' % sl)
            a('s_mov_b64 exec, -1')
            y_dma(0, 0)
            a('s_waitcnt vmcnt(0)')
            if sl:
                a('s_branch SA_G%d' % sl)
        if sl == 0:
            fetch()
        else:
            a('s_cmp_eq_u32 s77, 0')
            a('s_cbranch_scc1 SA_F%d' % sl)
            ool.add(fetch)
            a('s_waitcnt vmcnt(%d)' % (6 if sl == 1 else 1))
        a.label('SA_G%d' % sl)
        stamp(a, 4 * sl + 17)
        a('v_mov_b32 v%d, %d' % (vYP + 3, sl + 1))
        a('ds_write_b32 v%d, v%d' % (vYP + 1, vYP + 3))
        a('ds_read_b128 %s, v%d' % (vr(ZP, 4), vYP + 2))
        cnt_spin(a, ool, ZP, vYP + 2, vYP + 3)
        y_reads()
        if sl < 2:
            y_line(3)
            a(YLOAD)
        stamp(a, 4 * sl + 18)
        for k in range(5):
            a('s_waitcnt lgkmcnt(%d)' % (8 - 2 * k))
            emit(a, unpack(YU + 8 * k, ZP + 4 * k, 4))
            emit(a, gate(k, X))
            emit(a, sums(X, TS, k))
        def mid(sl=sl):
            N, J = 'SA_N%d' % sl, 'SA_J%d' % sl
            a('s_waitcnt vmcnt(5)')
            q_reads(sl + 1, 40960)
            y_test()
            a('s_waitcnt lgkmcnt(0)')
            a('s_cbranch_vccnz %s' % N)
            y_dma(3, 40960)
            a('s_mov_b32 s77, 1')
            a('s_waitcnt vmcnt(5)')
            a.label(J)
            def no():
                a.label(N)
                a('s_mov_b32 s77, 0')
                a('s_waitcnt vmcnt(0)')
                a('s_branch %s' % J)
            ool.add(no)
        z_out(0, X, mid if sl < 2 else None)
        stamp(a, 4 * sl + 19)
        if sl == 0:
            q_dma(a, 2, PS)
            a('s_cmp_lg_u32 s2, 232')
            a('s_cbranch_scc1 SA_E')
            a('s_cmp_lg_u32 s%d, 0' % sW)
            a('s_cbranch_scc1 SA_E')
            a('s_mov_b32 s66, 0')
            flag_store(a, 66, vZ, True)
            a.label('SA_E')
    a.label('SA_END')
    for sl in range(3):
        X = XS + 40 * sl
        head('B', sl)
        y_reads()
        for k in range(5):
            a('s_waitcnt lgkmcnt(%d)' % (8 - 2 * k))
            emit(a, unpack(YU + 8 * k, ZP + 4 * k, 4))
        stamp(a, 4 * sl + 28)
        m_in(0, sl, X, lambda k: emit(a, sums(X, TS, k)))
        stamp(a, 4 * sl + 30)
        emit(a, finish(TS, False))
        for k in range(5):
            emit(a, norm(DD + 8 * k, X + 8 * k, 8))
            emit(a, gate(k, X))
            emit(a, sums(X, TS, k))
        z_out(1, X)
        stamp(a, 4 * sl + 31)
    a.label('SB_END')
    row_table(a, YU, YU + 6)
    for sl in range(3):
        X = XS + 40 * sl
        head('C', sl)
        a('v_add_u32 v%d, s75, v%d' % (vT0, vQA))
        for k in range(5):
            a('v_add_u32 v%d, s75, v%d' % (PS + k, YU + k))
        a('s_add_u32 s77, s73, %d' % (768 * 1280 * sl))
        stamp(a, 4 * sl + 40)
        def ck(k):
            for i in range(4):
                a('v_cvt_pk_bf16_f32 v%d, v%d, v%d' % (YU + 8 + 4 * k + i, X + 8 * k + 2 * i, X + 8 * k + 2 * i + 1))
            a('ds_write_b128 v%d, %s offset:%d' % (vT0, vr(YU + 8 + 4 * k, 4), 256 * k))
        m_in(1, sl, X, ck)
        stamp(a, 4 * sl + 42)
        for k in range(5):
            a('ds_read_b128 %s, v%d' % (vr(MM + 4 * k, 4), PS + k))
        a('s_add_u32 s66, s77, 4096')
        for k in range(5):
            a('s_waitcnt lgkmcnt(%d)' % (4 - k))
            a('buffer_store_dwordx4 %s, v%d, %s, s%d offen offset:%d' % (vr(MM + 4 * k, 4), vL16, R4(RB), 77 if k < 4 else 66, 1024 * (k & 3)))
        stamp(a, 4 * sl + 43)
    a.label('SC_END')
    endk(a, 0)
    ool.flush()


def kernel():
    a = Asm()
    c1 = -2.0 * math.sqrt(2.0 / math.pi) * math.log2(math.e)
    a('s_cmp_ge_u32 s2, 256')
    a('s_cbranch_scc1 END')
    a('s_load_dwordx2 s[26:27], s[0:1], 104')
    a('s_load_dwordx4 s[4:7], s[0:1], 0')
    a('s_load_dwordx4 s[8:11], s[0:1], 16')
    a('s_load_dwordx4 s[12:15], s[0:1], 32')
    a('s_load_dwordx4 s[16:19], s[0:1], 56')
    a('s_load_dwordx4 s[20:23], s[0:1], 72')
    a('s_load_dwordx2 s[24:25], s[0:1], 88')
    a('v_lshrrev_b32 v1, 6, v0')
    a('v_readfirstlane_b32 s%d, v1' % sW)
    a('v_and_b32 v%d, 63, v0' % vL)
    a('v_lshlrev_b32 v%d, 4, v%d' % (vL16, vL))
    a('v_lshlrev_b32 v%d, 2, v%d' % (vL4, vL))
    a('s_and_b32 s%d, s2, 7' % sX)
    a('s_lshr_b32 s%d, s2, 3' % sI)
    a('s_and_b32 s%d, s%d, 3' % (sQ, sW))
    a('s_lshr_b32 s%d, s%d, 2' % (sHF, sW))
    if STAMP:
        a('v_mov_b32 v%d, 0' % vST)
    for r in (12, 13, 14, 15):
        a('v_mov_b32 v%d, 0' % r)
    a('v_add_u32 v4, %d, v%d' % (L_SYNC, vL4))
    a('ds_write_b32 v4, v12')
    a('s_lshl_b32 s64, s%d, 10' % sW)
    a('s_add_u32 s64, s64, %d' % L_KST)
    a('v_add_u32 v4, s64, v%d' % vL16)
    a('ds_write_b128 v4, v[12:15]')
    a('s_movk_i32 s65, 5958')
    a('s_movk_i32 s66, 1104')
    a('s_add_u32 s67, s%d, 8' % sQ)
    a('s_lshl_b32 s67, s67, 6')
    for d, src in ((8, 'v0'), (9, None)):
        if src is None:
            a('v_add_u32 v9, s67, v%d' % vL)
            src = 'v9'
        a('v_mul_u32_u24 v10, s65, %s' % src)
        a('v_lshrrev_b32 v10, 16, v10')
        a('v_mul_u32_u24 v11, 11, v10')
        a('v_sub_u32 v11, %s, v11' % src)
        a('v_lshlrev_b32 v%d, 4, %s' % (d, src))
        a('v_mad_u32_u24 v%d, v10, s66, v%d' % (d, d))
        a('v_cmp_eq_u32 vcc, 10, v11')
        a('v_mov_b32 v11, 0x40000000')
        a('v_cndmask_b32 v%d, v%d, v11, vcc' % (d, d))
    a('s_mul_i32 s65, s%d, %d' % (sI, 64 * 1280))
    a('s_mul_i32 s66, s%d, 160' % sX)
    a('s_add_u32 s65, s65, s66')
    a('s_sub_u32 s66, s65, 5120')
    a('v_add_u32 v10, s66, v8')
    a('v_add_u32 v8, s65, v8')
    a('s_cmp_eq_u32 s%d, 0' % sHF)
    a('s_cselect_b32 s65, s66, s65')
    a('v_add_u32 v9, s65, v9')
    a('s_getreg_b32 s%d, hwreg(HW_REG_XCC_ID, 0, 3)' % sXCC)
    a('s_mov_b32 s%d, %d' % (sLIM, LIMIT))
    a('s_mov_b32 s%d, 0xffff0000' % sHI)
    a('s_mov_b32 s%d, 0x3acccccd' % sINV)
    a('s_mov_b32 s%d, 0x3727c5ac' % sEPS)
    a('s_mov_b32 s%d, %s' % (sC2, f2h(c1 * 0.044715)))
    a('s_mov_b32 s%d, 0x3f80' % sLO1)
    a('s_mov_b32 s%d, 0x3f800000' % sHI1)
    a('s_mov_b32 s%d, 0' % sSLOW)
    a('s_mov_b32 m0, s64')
    a('s_waitcnt lgkmcnt(0)')
    srd(a, WS, pWS, '0x10000000')
    srd(a, RB, pK, hex(ROWS_B))
    srd(a, RC, pV, hex(ROWS_B))
    a('buffer_load_dword v4, off, %s, 0 sc1' % R4(WS))
    a('buffer_load_dwordx4 v10, %s, 0 offen lds' % R4(RB))
    a('s_add_u32 m0, s64, %d' % (L_VST - L_KST))
    a('buffer_load_dwordx4 v8, %s, 0 offen lds' % R4(RC))
    a('s_cmp_eq_u32 s%d, 0' % sHF)
    a('s_cselect_b64 s[%d:%d], s[%d:%d], s[%d:%d]' % (RC, RC + 1, RB, RB + 1, RC, RC + 1))
    a('s_cselect_b32 s65, %d, s%d' % (L_KST + 8192, sLIM))
    a('s_cselect_b32 s66, 0, %d' % (L_VST + 8192 - LIMIT))
    a('s_add_u32 s65, s65, s66')
    a('s_lshl_b32 s66, s%d, 10' % sQ)
    a('s_add_u32 m0, s65, s66')
    a('buffer_load_dwordx4 v9, %s, 0 offen lds' % R4(RC))
    for r in (RA, RD):
        a('s_mov_b64 s[%d:%d], s[%d:%d]' % (r, r + 1, WS, WS + 1))
        a('s_mov_b64 s[%d:%d], s[%d:%d]' % (r + 2, r + 3, WS + 2, WS + 3))
    for r in range(QT, QT + 5):
        a('v_mov_b32 v%d, 0' % r)
    stamp(a, 0)
    if B0:
        a('s_barrier')
    a('s_cmp_ge_u32 s%d, 5' % sW)
    a('s_cbranch_scc1 E_BLD')
    for kvw in (1, 0):
        if not kvw:
            a.label('E_BLD')
        a('s_cmp_ge_u32 s%d, 29' % sI)
        a('s_cbranch_scc1 E_%d0' % kvw)
        a('s_cmp_ge_u32 s%d, 14' % sI)
        a('s_cbranch_scc1 E_%d2' % kvw)
        early(a, 1, kvw)
        a.label('E_%d2' % kvw)
        early(a, 2, kvw)
        a.label('E_%d0' % kvw)
        early(a, 0, kvw)
    kv_phase(a)
    conv_phase(a)
    g_phase(a, 1)
    g_phase(a, 2)
    s_phase(a)
    a.label('END')
    a('s_endpgm')
    return a.lines


def build():
    ref = open('cdna_kernels/%s.s.ref' % NAME).read().split('\n')
    head = [l for l in ref if l.startswith(';') and '@launch' not in l and 'Override launch' not in l and 'grid=ceil' not in l]
    s = '\n'.join(head) + '\n'
    s += '; @launch grid=(256,1,1) block=(512,1,1) lds=163840\n'
    s += '.amdgcn_target "amdgcn-amd-amdhsa--gfx950"\n.text\n'
    s += kernel_text(NAME + '_kernel', kernel(), 256)
    s += '.section .rodata,"a"\n'
    s += descriptor_text(NAME + '_kernel', 256, 102)
    return s


if __name__ == '__main__':
    open(sys.argv[1], 'w').write(build())
```

```python
import sys, os, math, struct
from asmlib import *

NAME = 'interleave_layers__ssm_conv_h3__mixer_channel_mlp__prompt'
E = lambda k, d: int(os.environ.get(k, d))
STAMP, FORCE_SLOW, LIMIT = E('STAMP', 0), E('FORCE_SLOW', 0), 20000
NA1, NA2 = E('NA1', 12), E('NA2', 0)
PA, P1, P2_ = E('PA', 24), E('P1', 12), E('P2', 6)
PF1, PF2 = E('PF1', 1), E('PF2', 1)
B0 = E('B0', 1)
PB = E('PB', 24)
P1A, P2A = E('P1A', 0), E('P2A', 0)
RL = E('RL', 0)
CU_ = [int(x) for x in os.environ.get('CUN', '8,4,2,2,2').split(',')]
HFK, PLK, DST = E('HFK', 8), E('PLK', 12), E('DST', 6)
PRIO = [int(x) for x in os.environ.get('PRIO', '1,2,0').split(',')]
PRK = E('PRK', 8)
SMOOTH = E('SMOOTH', 1)

EPOCH, HELLO, KVFA, KVFB, CLR, ZF, HFL, MFL, DUMMY = 0, 0x40000, 0x2000, 0x4000, 0x50000, 0xC000, 0x10000, 0x20000, 0x30000
KVA, KVB, YT, ZI, HB, MR = 0x100000, 0x400000, 0x700000, 0x1000000, 0x1400000, 0x1C00000
ZSL, HSL, MSL = 40960, 114688, 122880
STAMPS = 0x8000000
ROWS_B = 2048 * 1280
L_KST, L_VST, L_OST, L_SYNC = 122880, 135168, 147456, 163328
CSL, CUO, HSTR = 21248, 16640, 4160
RING = {1: 45056, 2: 86016}
LF_LND, LF_DON, LF_I0 = L_SYNC, L_SYNC + 32, L_SYNC + 64
pQ, pK, pV, pSH, pH, pD, pW1, pB1, pW2, pB2, pOUT, pWS = 4, 6, 8, 10, 12, 14, 16, 18, 20, 22, 24, 26
sX, sW, sI, sQ = 28, 29, 30, 31
WS, RA, RB, RC, RD = 32, 36, 40, 44, 48
sHF, sTAG, sXCC, sSLOW, sP, sLIM, sCNT = 52, 53, 54, 55, 56, 57, 58
sHI, sINV, sEPS, sC2 = 59, 60, 61, 62
sLO1, sHI1 = 89, 90
sST = 86
sWO, sWL, sWS = 91, 92, 93
vL, vL16, vL4, vST = 1, 2, 3, 7
vWO, vWT = 8, 9
WB = {1: 96, 2: 112}
NK = {1: 40, 2: 36}
RS = {1: 3456, 2: 1280}
NA = {1: NA1, 2: NA2}
NR = {1: 29, 2: 19}
NC = {1: 11, 2: 17}
DUM = {1: 252, 2: 96}
assert NA1 <= 19 and NA2 in (0, 3, 6, 9)

f2h = lambda x: hex(struct.unpack('<I', struct.pack('<f', x))[0])
R4 = lambda d: 's[%d:%d]' % (d, d + 3)
P2 = lambda r: 'v[%d:%d]' % (r, r + 1)


def srd(a, d, p, size, add=None):
    if add is None:
        a('s_mov_b32 s%d, s%d' % (d, p)); a('s_mov_b32 s%d, s%d' % (d + 1, p + 1))
    else:
        a('s_add_u32 s%d, s%d, %s' % (d, p, add)); a('s_addc_u32 s%d, s%d, 0' % (d + 1, p + 1))
    a('s_mov_b32 s%d, %s' % (d + 2, size)); a('s_mov_b32 s%d, 0x20000' % (d + 3))


def stamp(a, idx):
    if not STAMP:
        return
    a('%s s[%d:%d]' % ('s_memtime' if os.environ.get('CLK') else 's_memrealtime', sST, sST + 1))
    if isinstance(idx, tuple):
        a('s_mul_i32 s88, s%d, %d' % (idx[0], idx[1]))
        a('s_add_u32 s88, s88, %d' % idx[2])
        a('s_lshl_b64 exec, 1, s88')
        a('s_waitcnt lgkmcnt(0)')
        a('v_mov_b32 v%d, s%d' % (vST, sST))
        a('s_mov_b64 exec, -1')
    else:
        a('s_waitcnt lgkmcnt(0)')
        a('v_writelane_b32 v%d, s%d, %d' % (vST, sST, idx))


DBGMAP = {1: {0: 1, 3: 2, 6: 3, 10: 6, 16: 7, 44: 10, 63: 12, 12: 15},
          2: {0: 1, 3: 2, 6: 3, 10: 8, 16: 9, 44: 11, 63: 13},
          0: {0: 1, 3: 2, 17: 4, 19: 5, 63: 14}}


def endk(a, role):
    if STAMP == 2:
        a('s_waitcnt vmcnt(0)')
        stamp(a, 63)
        if role:
            a('s_cmp_lg_u32 s%d, %d' % (sI, 3 if role == 1 else 17))
            a('s_cbranch_scc1 END')
            a('s_and_b32 s63, s%d, 3' % sW)
            a('s_cmp_lg_u32 s63, %d' % (3 if role == 1 else 0))
            a('s_cbranch_scc1 END')
        else:
            a('s_cmp_lg_u32 s%d, 0' % sQ)
            a('s_cbranch_scc1 END')
        a('s_load_dwordx2 s[64:65], s[0:1], 96')
        a('v_readlane_b32 s63, v%d, 0' % vST)
        a('s_not_b32 s63, s63')
        a('v_writelane_b32 v%d, s63, 62' % vST)
        a('v_mov_b32 v10, 0x1000')
        for k, w in list(DBGMAP[role].items()) + [(62, 0)]:
            a('s_movk_i32 s63, %d' % (4 * w))
            a('v_writelane_b32 v10, s63, %d' % k)
        a('s_waitcnt lgkmcnt(0)')
        srd(a, RD, 64, 256)
        a('buffer_atomic_umax v%d, v10, %s, 0 offen sc1' % (vST, R4(RD)))
    elif STAMP:
        a('s_waitcnt vmcnt(0)')
        stamp(a, 63)
        a('s_lshl_b32 s63, s2, 3')
        a('s_add_u32 s63, s63, s%d' % sW)
        a('s_lshl_b32 s63, s63, 8')
        a('s_add_u32 s63, s63, %s' % hex(STAMPS))
        a('s_mov_b64 exec, -1')
        a('buffer_store_dword v%d, v%d, %s, s63 offen' % (vST, vL4, R4(WS)))
    a('s_endpgm')


def setexec(a, n):
    if n == 64:
        a('s_mov_b64 exec, -1')
    elif n <= 6:
        a('s_mov_b64 exec, %d' % ((1 << n) - 1))
    elif n <= 32:
        a('s_mov_b32 exec_lo, %s' % ('-1' if n == 32 else hex((1 << n) - 1))); a('s_mov_b32 exec_hi, 0')
    else:
        a('s_mov_b32 exec_lo, -1'); a('s_mov_b32 exec_hi, %s' % hex((1 << (n - 32)) - 1))


def emit(a, lst):
    for l in lst:
        a(l)


def flag_store(a, soff, vT, sc1):
    a('v_mov_b32 v%d, s%d' % (vT, sTAG))
    a('s_mov_b64 exec, 1')
    a('buffer_store_dword v%d, off, %s, s%d%s' % (vT, R4(WS), soff, ' sc1' if sc1 else ''))
    a('s_mov_b64 exec, -1')


def hello_load(a, vT, st):
    a('s_lshl_b32 s%d, s%d, 12' % (st, sX))
    a('s_add_u32 s%d, s%d, %d' % (st, st, HELLO))
    a('v_and_b32 v%d, 0x7c, v%d' % (vT + 2, vL4))
    a('v_lshlrev_b32 v%d, 5, v%d' % (vT + 2, vT + 2))
    a('buffer_load_dword v%d, v%d, %s, s%d offen sc1' % (vT, vT + 2, R4(WS), st))


def hello_store(a, young):
    a('s_lshl_b32 s66, s2, 7')
    a('s_and_b32 s66, s66, 0x380')
    a('s_lshl_b32 s66, s66, 5')
    a('s_lshl_b32 s67, s%d, 7' % sI)
    a('s_add_u32 s66, s66, s67')
    a('s_add_u32 s66, s66, %d' % HELLO)
    a('s_cmp_eq_u32 s%d, 7' % sW)
    a('s_cselect_b32 s67, 0, 0x10000000')
    a('v_mov_b32 v5, s67')
    a('s_lshl_b32 s67, s%d, 1' % sXCC)
    a('s_waitcnt vmcnt(%d)' % young)
    get_tag(a, 4)
    a('s_xor_b32 s67, s67, s%d' % sTAG)
    a('v_mov_b32 v4, s67')
    a('s_mov_b64 exec, 1')
    a('buffer_store_dword v4, v5, %s, s66 offen sc1' % R4(WS))
    a('s_mov_b64 exec, -1')


def hello_check(a, vT, st, young):
    L, C, D = a.newlabel('HL'), a.newlabel('HC'), a.newlabel('HD')
    a('s_mov_b32 s%d, 0' % sCNT)
    a('s_waitcnt vmcnt(%d)' % young)
    a('s_branch %s' % C)
    a.label(L)
    a('buffer_load_dword v%d, v%d, %s, s%d offen sc1' % (vT, vT + 2, R4(WS), st))
    a('s_add_u32 s%d, s%d, 1' % (sCNT, sCNT))
    a('s_waitcnt vmcnt(0)')
    a.label(C)
    a('v_xor_b32 v%d, s%d, v%d' % (vT, sTAG, vT))
    a('v_cmp_lt_u32 vcc, 15, v%d' % vT)
    a('v_and_b32 v%d, 1, v%d' % (vT + 1, vT))
    a('v_cmp_ne_u32 s[64:65], 0, v%d' % (vT + 1))
    a('s_or_b64 vcc, vcc, s[64:65]')
    a('s_cbranch_vccz %s' % D)
    a('s_cmp_lt_u32 s%d, s%d' % (sCNT, sLIM))
    a('s_cbranch_scc1 %s' % L)
    a('s_mov_b32 s%d, 0' % sLIM)
    a.label(D)
    a('s_lshl_b32 s%d, s%d, 1' % (st, sXCC))
    a('v_cmp_ne_u32 vcc, s%d, v%d' % (st, vT))
    a('s_cmp_lg_u64 vcc, 0')
    a('s_cselect_b32 s%d, 1, %d' % (sSLOW, FORCE_SLOW))


def get_tag(a, vE):
    a('v_readfirstlane_b32 s%d, v%d' % (sTAG, vE))
    a('s_mul_i32 s%d, s%d, 0x9E3779B1' % (sTAG, sTAG))
    a('s_add_u32 s%d, s%d, 0x7F4A7C15' % (sTAG, sTAG))


class Ool:
    def __init__(self, a):
        self.a, self.q = a, []
    def add(self, fn):
        self.q.append(fn)
    def flush(self):
        while self.q:
            self.q.pop(0)()


def both2(a, ool, texts):
    if isinstance(texts, str):
        texts = [texts]
    S, R = a.newlabel('BS'), a.newlabel('BR')
    def slow():
        a.label(S)
        for t in texts:
            a(t + ' sc1' if t.startswith('buffer_') else t)
        a('s_branch %s' % R)
    ool.add(slow)
    return ['s_cmp_lg_u32 s%d, 0' % sSLOW, 's_cbranch_scc1 %s' % S] + texts + [R + ':']


def oob_lane0(a, v):
    a('v_cmp_eq_u32 vcc, 0, v%d' % vL4)
    a('v_mov_b32 v%d, 0x10000000' % v)
    a('v_cndmask_b32_e64 v%d, v%d, 0, vcc' % (v, v))


def cnt_min(X):
    return ['v_min_u32 v%d, v%d, v%d' % (X, X, X + 1), 'v_min3_u32 v%d, v%d, v%d, v%d' % (X, X, X + 2, X + 3)]


def cnt_spin(a, ool, X, vLine, vCnt, pre=None):
    S, R = a.newlabel('CS'), a.newlabel('CR')
    def spin():
        L = a.newlabel('CL')
        a.label(S)
        if pre:
            pre()
        a('s_mov_b32 s%d, 0' % sCNT)
        a.label(L)
        a('ds_read_b128 %s, v%d' % (vr(X, 4), vLine))
        a('s_add_u32 s%d, s%d, 1' % (sCNT, sCNT))
        a('s_waitcnt lgkmcnt(0)')
        emit(a, cnt_min(X))
        a('v_cmp_gt_u32 vcc, v%d, v%d' % (vCnt, X))
        a('s_cbranch_vccz %s' % R)
        a('s_cmp_lt_u32 s%d, %d' % (sCNT, 4 * LIMIT))
        a('s_cbranch_scc1 %s' % L)
        a('s_branch %s' % R)
    ool.add(spin)
    a('s_waitcnt lgkmcnt(0)')
    emit(a, cnt_min(X))
    a('v_cmp_gt_u32 vcc, v%d, v%d' % (vCnt, X))
    a('s_cbranch_vccnz %s' % S)
    a.label(R)


def block_poll(a, v, vOff, so):
    L, D = a.newlabel('PL'), a.newlabel('PD')
    a('s_mov_b32 s%d, 0' % sCNT)
    a.label(L)
    a('buffer_load_dword v%d, v%d, %s, s%d offen sc1' % (v, vOff, R4(WS), so))
    a('s_add_u32 s%d, s%d, 1' % (sCNT, sCNT))
    a('s_waitcnt vmcnt(0)')
    a('v_cmp_ne_u32 vcc, s%d, v%d' % (sTAG, v))
    a('s_cbranch_vccz %s' % D)
    a('s_cmp_lt_u32 s%d, s%d' % (sCNT, sLIM))
    a('s_cbranch_scc1 %s' % L)
    a('s_mov_b32 s%d, 0' % sLIM)
    a.label(D)


def dummy_off(a, sD):
    a('s_lshl_b32 s%d, s2, 7' % sD)
    a('s_lshl_b32 s63, s%d, 2' % sW)
    a('s_add_u32 s%d, s%d, s63' % (sD, sD))
    a('s_add_u32 s%d, s%d, %d' % (sD, sD, DUMMY))


class LdsQ:
    def __init__(self, a):
        self.a, self.q = a, []
    def issue(self, key, text):
        self.a(text); self.q.append(key)
    def wait(self, keys):
        last = -1
        for i, k in enumerate(self.q):
            if k in keys:
                last = i
        if last >= 0:
            n = len(self.q) - 1 - last
            self.a('s_waitcnt lgkmcnt(%d)' % n)
            self.q = self.q[last + 1:]


def g2_ids(a, sk, sc):
    a('s_sub_u32 s%d, s%d, 14' % (sc, sI))
    a('s_mul_i32 s%d, s%d, 52' % (sk, sc))
    a('s_lshr_b32 s%d, s%d, 8' % (sk, sk))
    a('s_mul_i32 s63, s%d, 5' % sk)
    a('s_sub_u32 s%d, s%d, s63' % (sc, sc))


def w_setup(a, g):
    if g == 1:
        srd(a, RA, pW1, 640 * 3456)
        a('s_lshl_b32 s66, s%d, 8' % sI)
    else:
        srd(a, RA, pW2, 1728 * 1280)
        g2_ids(a, 66, 67)
        a('s_mul_i32 s66, s66, %d' % (576 * 1280))
        a('s_lshl_b32 s67, s67, 8')
        a('s_add_u32 s66, s66, s67')
    a('v_lshrrev_b32 v10, 4, v%d' % vL)
    a('v_bfe_u32 v11, v%d, 2, 2' % vL)
    a('v_xor_b32 v12, v10, v11')
    a('v_and_b32 v13, 3, v%d' % vL)
    a('v_lshl_add_u32 v12, v12, 2, v13')
    a('v_mul_u32_u24 v%d, %d, v10' % (vWO, RS[g]))
    a('v_lshl_add_u32 v%d, v12, 4, v%d' % (vWO, vWO))
    a('v_add_u32 v%d, s66, v%d' % (vWO, vWO))
    a('v_lshrrev_b32 v12, 5, v%d' % vL)
    a('v_lshl_add_u32 v12, v12, 3, v11')
    a('v_lshlrev_b32 v%d, 8, v12' % vWT)
    a('v_xor_b32 v12, s%d, v11' % sQ)
    a('v_lshl_add_u32 v%d, v12, 6, v%d' % (vWT, vWT))
    a('v_and_b32 v12, 1, v13')
    a('v_lshl_add_u32 v%d, v12, 5, v%d' % (vWT, vWT))
    a('v_and_b32 v12, 1, v10')
    a('v_lshl_add_u32 v%d, v12, 4, v%d' % (vWT, vWT))
    a('v_lshrrev_b32 v12, 1, v13')
    a('v_lshl_add_u32 v%d, v12, 3, v%d' % (vWT, vWT))


def w_begin(a, g, ks0, sIdx, sub, nw, lds):
    a('s_sub_u32 s63, s%d, %d' % (sIdx, sub))
    a('s_lshl_b32 s%d, s63, 10' % sWL)
    a('s_add_u32 s%d, s%d, %d' % (sWL, sWL, lds))
    a('s_add_u32 s63, s63, %d' % (4 * ks0))
    a('s_mul_i32 s%d, s63, %d' % (sWO, 4 * RS[g]))
    a('s_mov_b32 s%d, %d' % (sWS, 4 * RS[g] * nw))


def w_piece(nw):
    return ['s_mov_b32 m0, s%d' % sWL, 's_add_u32 s%d, s%d, %d' % (sWL, sWL, 1024 * nw),
            'buffer_load_dwordx4 v%d, %s, s%d offen lds' % (vWO, R4(RA), sWO), 's_add_u32 s%d, s%d, s%d' % (sWO, sWO, sWS)]


def w_stream(a, n, nw, P, dummy=None):
    if n == 0:
        return
    L = a.newlabel('WS')
    a('s_mov_b32 s63, %d' % n)
    a.label(L)
    a('s_waitcnt vmcnt(%d)' % (P - 1))
    if dummy is None:
        emit(a, w_piece(nw))
    else:
        a('buffer_load_dwordx4 %s, v%d, %s, s%d offen' % (vr(dummy, 4), vWO, R4(RA), sWO))
        a('s_add_u32 s%d, s%d, s%d' % (sWO, sWO, sWS))
    a('s_sub_u32 s63, s63, 1')
    a('s_cmp_lg_u32 s63, 0')
    a('s_cbranch_scc1 %s' % L)


def w_read(a, g, ks0, n, lds):
    a('v_add_u32 v10, %d, v%d' % (lds, vWT))
    for k in range(n):
        if k == 16:
            a('v_add_u32 v10, 0x10000, v10')
        for hh in range(2):
            a('ds_read_b64_tr_b16 %s, v10 offset:%d' % (vr(WB[g] + 4 * (ks0 + k) + 2 * hh, 2), 4096 * (k & 15) + 1024 * hh))
        if k % 4 == 3:
            a('s_waitcnt lgkmcnt(6)')
    a('s_waitcnt lgkmcnt(0)')


TAP = 16
HQ, HD = (16, 100), (40, 124)
QT = 76


def conv_channel(a, g, sSlot, sCh, sDum):
    if g == 1:
        a('s_lshl_b32 s%d, s%d, 1' % (sCh, sI))
    else:
        a('s_lshl_b32 s%d, s%d, 2' % (sCh, sI))
        a('s_sub_u32 s%d, s%d, 28' % (sCh, sCh))
    a('s_add_u32 s%d, s%d, s%d' % (sCh, sCh, sSlot))
    a('s_cmp_ge_u32 s%d, 80' % sCh)
    a('s_cselect_b32 s%d, 1, 0' % sDum)
    a('s_cselect_b32 s63, 80, 0')
    a('s_sub_u32 s%d, s%d, s63' % (sCh, sCh))


def ssm_loads(a, g, sSlot, n):
    conv_channel(a, g, sSlot, 66, 67)
    a('s_mul_i32 s67, s%d, 80' % sX)
    a('s_add_u32 s66, s66, s67')
    a('s_lshl_b32 s66, s66, 12')
    srd(a, RD, pH, 4096, 's66')
    a('v_subrev_u32 v10, 32, v%d' % vL16)
    a('v_subrev_u32 v11, 16, v%d' % vL16)
    a('v_add_u32 v12, 992, v%d' % vL16)
    a('buffer_load_dwordx4 %s, v10, %s, 0 offen' % (vr(HQ[n], 4), R4(RD)))
    a('buffer_load_dwordx2 %s, v11, %s, 0 offen' % (vr(HD[n], 2), R4(RD)))
    for j in range(1, 5):
        a('buffer_load_dwordx4 %s, v12, %s, 0 offen offset:%d' % (vr(HQ[n] + 4 * j, 4), R4(RD), 1024 * (j - 1)))
        a('buffer_load_dwordx2 %s, v12, %s, 0 offen offset:%d' % (vr(HD[n] + 2 * j, 2), R4(RD), 1024 * (j - 1) + 16))


def ssm_build(a, sSlot, n):
    a('s_mul_i32 s66, s%d, %d' % (sSlot, CSL))
    a('v_add_u32 v5, s66, v%d' % vL16)
    for r in range(4):
        a('v_mov_b32 v%d, 0' % (56 + r))
    setexec(a, 32)
    a('ds_write_b128 v5, v[56:59] offset:%d' % (CUO + 4096))
    setexec(a, 64)
    for j in range(5):
        if j == 4:
            a('s_mov_b64 exec, 3')
        d = [HQ[n] + 4 * j + e for e in range(4)] + [HD[n] + 2 * j, HD[n] + 2 * j + 1]
        T1, T2, T3 = 60 + 12 * (j & 1), 64 + 12 * (j & 1), 68 + 12 * (j & 1)
        a('ds_write_b128 v5, %s offset:%d' % (vr(d[0], 4), 1024 * j))
        for e in range(4):
            a('v_alignbit_b32 v%d, v%d, v%d, 16' % (T1 + e, d[e + 1], d[e]))
        a('ds_write_b128 v5, %s offset:%d' % (vr(T1, 4), 1024 * j + HSTR))
        for e in range(4):
            a('v_mov_b32 v%d, v%d' % (T2 + e, d[e + 1]))
        a('ds_write_b128 v5, %s offset:%d' % (vr(T2, 4), 1024 * j + 2 * HSTR))
        for e in range(4):
            a('v_alignbit_b32 v%d, v%d, v%d, 16' % (T3 + e, d[e + 2], d[e + 1]))
        a('ds_write_b128 v5, %s offset:%d' % (vr(T3, 4), 1024 * j + 3 * HSTR))
        if j & 1:
            a('s_waitcnt lgkmcnt(4)')
    setexec(a, 64)


def row_table(a, T, tmp):
    a('s_movk_i32 s63, 820')
    for k in range(5):
        a('v_add_u32 v%d, %d, v%d' % (tmp, 64 * k, vL))
        a('v_mul_u32_u24 v%d, s63, v%d' % (tmp + 1, tmp))
        a('v_lshrrev_b32 v%d, 16, v%d' % (tmp + 1, tmp + 1))
        a('v_lshlrev_b32 v%d, 1, v%d' % (tmp + 1, tmp + 1))
        a('v_xor_b32 v%d, v%d, v%d' % (tmp, tmp, tmp + 1))
        a('v_lshlrev_b32 v%d, 4, v%d' % (T + k, tmp))


def s_ids(a, hf=sHF, q=sQ):
    a('s_sub_u32 s70, s%d, 29' % sI)
    a('s_mul_i32 s71, s%d, 3' % hf)
    a('s_add_u32 s70, s70, s71')
    a('s_and_b32 s71, s70, 1')
    a('s_lshr_b32 s70, s70, 1')
    a('s_mul_i32 s72, s%d, 20480' % hf)
    a('s_mul_i32 s63, s%d, 5120' % q)
    a('s_add_u32 s72, s72, s63')
    a('s_lshl_b32 s73, s70, 8')
    a('s_lshl_b32 s63, s%d, 5' % sX)
    a('s_add_u32 s73, s73, s63')
    a('s_lshl_b32 s63, s71, 4')
    a('s_add_u32 s73, s73, s63')
    a('s_lshl_b32 s63, s%d, 2' % q)
    a('s_add_u32 s73, s73, s63')
    a('s_mul_i32 s73, s73, 1280')


def q_dma(a, s, QT=QT):
    a('s_add_u32 s66, s73, %d' % (768 * 1280 * s))
    a('s_min_u32 s66, s66, %d' % (ROWS_B - 5120))
    for k in range(5):
        a('s_add_u32 m0, s72, %d' % (40960 * s + 1024 * k))
        a('buffer_load_dwordx4 v%d, %s, s66 offen lds' % (QT + k, R4(RA)))


def clear(a):
    a('s_cmp_eq_u32 s%d, 6' % sW)
    a('s_cselect_b32 s67, 0, 0x10000000')
    a('v_add_u32 v6, s67, v%d' % vL16)
    for r in range(4):
        a('v_mov_b32 v%d, -1' % (12 + r))
    a('s_lshr_b32 s66, s%d, 2' % sI)
    a('s_lshl_b32 s66, s66, 3')
    a('s_add_u32 s66, s66, s%d' % sX)
    a('s_lshl_b32 s66, s66, 2')
    a('s_and_b32 s67, s%d, 3' % sI)
    a('s_add_u32 s66, s66, s67')
    a('s_mul_i32 s66, s66, 10240')
    a('s_add_u32 s66, s66, %s' % hex(YT))
    for k in range(10):
        if k and k % 4 == 0:
            a('s_add_u32 s66, s66, 4096')
        a('buffer_store_dwordx4 v[12:15], v6, %s, s66 offen offset:%d sc1' % (R4(WS), 1024 * (k & 3)))


def cleared(a):
    a('s_lshr_b32 s66, s2, 2')
    a('s_lshl_b32 s66, s66, 5')
    a('s_and_b32 s67, s2, 3')
    a('s_add_u32 s66, s66, s67')
    a('s_lshl_b32 s66, s66, 2')
    a('s_add_u32 s66, s66, %d' % CLR)
    a('v_mov_b32 v4, s%d' % sTAG)
    a('s_mov_b64 exec, 1')
    a('buffer_store_dword v4, v6, %s, s66 offen sc1' % R4(WS))
    a('s_mov_b64 exec, -1')
    stamp(a, 15)


def early(a, g, kvw):
    n = 0
    if kvw:
        srd(a, RD, pSH, 5120)
        a('s_mul_i32 s66, s%d, 640' % sX)
        a('s_lshl_b32 s67, s%d, 7' % sW)
        a('s_add_u32 s66, s66, s67')
        a('v_and_b32 v10, 3, v%d' % vL)
        a('v_lshlrev_b32 v10, 3, v10')
        for it in range(4):
            a('buffer_load_dwordx2 %s, v10, %s, s66 offen offset:%d' % (vr(TAP + 2 * it, 2), R4(RD), 32 * it))
        if g:
            w_setup(a, g)
        a('s_waitcnt vmcnt(4)')
        get_tag(a, 4)
        stamp(a, 1)
        a('s_barrier')
        a('s_branch KV')
        return
    if g == 0:
        clear(a)
        srd(a, RA, pQ, hex(ROWS_B))
        row_table(a, QT, 10)
        for r in range(3):
            a('s_add_u32 s74, s%d, %d' % (sW, 3 * r - 5))
            a('s_min_u32 s74, s74, 7')
            a('s_lshr_b32 s75, s74, 2')
            a('s_and_b32 s74, s74, 3')
            s_ids(a, 75, 74)
            q_dma(a, 0)
        hello_store(a, 28)
        a('s_waitcnt vmcnt(26)')
        stamp(a, 1)
        a('s_barrier')
        a('s_waitcnt vmcnt(16)')
        cleared(a)
        a('s_branch NOBUILD')
        return
    if g == 1:
        a('s_cmp_eq_u32 s%d, 7' % sW)
        a('s_cbranch_scc1 E_LD')
    clear(a)
    a('s_sub_u32 s68, s%d, 5' % sW)
    ssm_loads(a, g, 68, 0)
    n += 10
    if g == 2:
        a('s_mov_b32 s69, 3')
        ssm_loads(a, g, 69, 1)
        n += 10
    w_setup(a, g)
    nw = 0
    if g == 2:
        hello_store(a, 13 + n + nw)
        nw += 1
    a('s_waitcnt vmcnt(%d)' % (10 + n + nw))
    if g == 1:
        get_tag(a, 4)
    stamp(a, 1)
    a('s_barrier')
    a('s_waitcnt vmcnt(%d)' % (n - 10 + nw))
    cleared(a)
    nw += 1
    if g == 2 and NA2:
        w_begin(a, g, 0, sW, 5, 3, RING[g])
        nw += 4 * NA2 // 3
        for k in range(4 * NA2 // 3):
            emit(a, w_piece(3))
    ssm_build(a, 68, 0)
    if g == 2:
        a('s_cmp_lg_u32 s%d, 5' % sW)
        a('s_cbranch_scc1 NOBUILD')
        a('s_waitcnt vmcnt(%d)' % nw)
        ssm_build(a, 69, 1)
    a('s_branch NOBUILD')
    if g == 1:
        a.label('E_LD')
        w_setup(a, g)
        w_begin(a, g, 0, sW, 7, 1, RING[g])
        n0 = min(PA, 4 * NA1)
        for k in range(n0):
            emit(a, w_piece(1))
        hello_store(a, 3 + n0)
        a('s_waitcnt vmcnt(%d)' % (n0 + 1))
        stamp(a, 1)
        a('s_barrier')
        a('v_mov_b32 v12, %d' % (2 * CSL + 28))
        a('v_mov_b32 v10, 1')
        a('ds_write_b32 v12, v10')
        w_stream(a, 4 * NA1 - n0, 1, PB)
        a('s_branch BUILT')


def kv_phase(a):
    PV, CU, VV, T = 24, 32, 40, 48
    a.label('KV')
    a('v_and_b32 v10, 3, v%d' % vL)
    a('v_bfe_u32 v11, v%d, 2, 2' % vL)
    a('v_and_b32 v12, 0x30, v%d' % vL)
    a('v_lshl_add_u32 v12, v10, 2, v12')
    a('v_add_u32 v12, v12, v11')
    a('v_mul_u32_u24 v12, 176, v12')
    a('s_lshl_b32 s66, s%d, 5' % sW)
    a('s_add_u32 s66, s66, %d' % L_KST)
    a('v_add_u32 v12, s66, v12')
    for it in range(4):
        a('ds_read_b64_tr_b16 %s, v12 offset:%d' % (vr(PV + 2 * it, 2), 8 * it))
        a('ds_read_b64_tr_b16 %s, v12 offset:%d' % (vr(CU + 2 * it, 2), 8 * it + 704))
        a('ds_read_b64_tr_b16 %s, v12 offset:%d' % (vr(VV + 2 * it, 2), 8 * it + L_VST - L_KST))
    a('s_waitcnt vmcnt(0)')
    for r in range(8):
        a('v_alignbit_b32 v%d, v%d, v%d, 16' % (TAP + r, TAP + r, TAP + r))
    a('s_mul_i32 s66, s%d, 2560' % sW)
    a('s_add_u32 s66, s66, %d' % L_OST)
    a('v_mul_u32_u24 v13, 160, v10')
    a('v_lshrrev_b32 v11, 2, v%d' % vL)
    a('v_lshlrev_b32 v11, 3, v11')
    a('v_sub_u32 v13, v13, v11')
    a('s_add_u32 s67, s66, 120')
    a('v_add_u32 v13, s67, v13')
    a('v_lshrrev_b32 v10, 3, v%d' % vL)
    a('v_and_b32 v11, 7, v%d' % vL)
    a('v_lshlrev_b32 v11, 4, v11')
    a('v_mul_u32_u24 v14, 160, v10')
    a('v_add3_u32 v14, s66, v14, v11')
    a('v_lshl_add_u32 v5, v10, 12, v11')
    for it in range(4):
        a('s_waitcnt lgkmcnt(%d)' % (9 - 3 * it + it))
        P0, P1, C0, C1, V0, V1, W10, W32 = PV + 2 * it, PV + 2 * it + 1, CU + 2 * it, CU + 2 * it + 1, VV + 2 * it, VV + 2 * it + 1, TAP + 2 * it, TAP + 2 * it + 1
        O0, O1, O2, A, U = T, T + 1, T + 2, T + 4, T + 8
        a('v_alignbit_b32 v%d, v%d, v%d, 16' % (O0, P1, P0))
        a('v_alignbit_b32 v%d, v%d, v%d, 16' % (O1, C0, P1))
        a('v_alignbit_b32 v%d, v%d, v%d, 16' % (O2, C1, C0))
        for t, (h, l) in enumerate(((O1, O0), (C0, P1), (O2, O1), (C1, C0))):
            a('v_dot2_f32_bf16 v%d, v%d, v%d, 0' % (A + t, l, W32))
        a('v_lshlrev_b32 v%d, 16, v%d' % (U, V0))
        a('v_and_b32 v%d, s%d, v%d' % (U + 1, sHI, V0))
        for t, (h, l) in enumerate(((O1, O0), (C0, P1), (O2, O1), (C1, C0))):
            a('v_dot2c_f32_bf16 v%d, v%d, v%d' % (A + t, h, W10))
        a('v_lshlrev_b32 v%d, 16, v%d' % (U + 2, V1))
        a('v_and_b32 v%d, s%d, v%d' % (U + 3, sHI, V1))
        for t in range(4):
            a('v_mul_f32 v%d, v%d, v%d' % (A + t, A + t, U + t))
        a('v_cvt_pk_bf16_f32 v%d, v%d, v%d' % (PV + 2 * it, A + 3, A + 2))
        a('v_cvt_pk_bf16_f32 v%d, v%d, v%d' % (PV + 2 * it + 1, A + 1, A))
        a('ds_write_b64 v13, %s offset:%d' % (vr(PV + 2 * it, 2), 640 * it))
    a('s_mul_i32 s67, s%d, 80' % sX)
    a('s_lshl_b32 s66, s%d, 4' % sW)
    a('s_add_u32 s67, s67, s66')
    a('s_lshl_b32 s67, s67, 12')
    a('s_lshl_b32 s66, s%d, 7' % sI)
    a('s_sub_u32 s67, s67, s66')
    a('s_add_u32 s67, s67, 3968')
    a('ds_read_b128 %s, v14' % vr(CU, 4))
    a('ds_read_b128 %s, v14 offset:1280' % vr(CU + 4, 4))
    a('s_mul_i32 s68, s%d, 5' % sX)
    a('s_add_u32 s68, s68, s%d' % sW)
    a('s_lshl_b32 s68, s68, 7')
    a('s_lshl_b32 s66, s%d, 2' % sI)
    a('s_add_u32 s68, s68, s66')
    for k in range(2):
        a('s_add_u32 s66, s67, %s' % hex(KVA + 32768 * k))
        a('s_waitcnt lgkmcnt(%d)' % (1 - k))
        a('buffer_store_dwordx4 %s, v5, %s, s66 offen' % (vr(CU + 4 * k, 4), R4(WS)))
    stamp(a, 2)
    hello_load(a, 44, 69)
    a('s_lshl_b32 s66, s%d, 1' % sXCC)
    a('s_add_u32 s66, s66, s%d' % sTAG)
    a('v_mov_b32 v4, s66')
    a('s_add_u32 s66, s68, %d' % KVFA)
    a('s_waitcnt vmcnt(1)')
    a('s_mov_b64 exec, 1')
    a('buffer_store_dword v4, off, %s, s66' % R4(WS))
    a('s_mov_b64 exec, -1')
    stamp(a, 3)
    hello_check(a, 44, 69, 1)
    a('s_cmp_eq_u32 s%d, 0' % sSLOW)
    a('s_cbranch_scc1 ROLES')
    for k in range(2):
        a('s_add_u32 s66, s67, %s' % hex(KVB + 32768 * k))
        a('buffer_store_dwordx4 %s, v5, %s, s66 offen sc1' % (vr(CU + 4 * k, 4), R4(WS)))
    a('s_add_u32 s66, s68, %d' % KVFB)
    a('s_waitcnt vmcnt(0)')
    flag_store(a, 66, 4, True)
    a('s_branch ROLES')
    a.label('NOBUILD')
    stamp(a, 2)
    hello_load(a, 44, 69)
    hello_check(a, 44, 69, 0)
    stamp(a, 3)
    a.label('ROLES')
    a('s_cmp_ge_u32 s%d, 29' % sI)
    a('s_cbranch_scc1 S_MAIN')
    a.label('BUILT')
    stamp(a, 12)


CACC, CB, CA, CE, CT = 16, 32, 64, 96, 104
vCA, vCB = 14, 15


def conv_part(a, taus, U, mid=None, each=None):
    mf = [(aa, t - aa, t) for aa in range(max(taus) + 1) for t in taus if t >= aa]
    M = len(mf)
    nf = max(taus) + 1
    D = 8 // nf
    assert U % D == 0
    order, last, first = [], {}, {}
    for i, (aa, j, t) in enumerate(mf):
        for f in (('B', j), ('A', aa)):
            if f not in last:
                order.append(f)
                first[f] = i
            last[f] = i
    def reg(f, k):
        return (CA if f[0] == 'A' else CB) + 4 * (f[1] + nf * (k % D))
    def load(f, k):
        if f[0] == 'A':
            off = 512 * f[1] + 64 * k
            return ['ds_read_b64 %s, v%d offset:%d' % (vr(reg(f, k), 2), vCA, off),
                    'ds_read_b64 %s, v%d offset:%d' % (vr(reg(f, k) + 2, 2), vCA, off + 8)]
        return ['ds_read_b128 %s, v%d offset:%d' % (vr(reg(f, k), 4), vCB, 512 * (7 - f[1]) + 64 * k)]
    jobs = sorted((first[f] + D * M, last[f], n, f, p) for n, f in enumerate(order) for p in range(len(load(f, 0))))
    cap = -(-len(jobs) // M) if SMOOTH else 99
    slot = [[] for g in range(M)]
    t, todo = 0, list(jobs)
    while todo:
        while len(slot[t % M]) < cap:
            rdy = [x for x in todo if x[1] <= t]
            if not rdy:
                break
            todo.remove(rdy[0])
            assert t < rdy[0][0] - 2 and t < 2 * M, (taus, t, rdy[0])
            slot[t % M].append((rdy[0][3], rdy[0][4], t // M))
            if SMOOTH and cap > 1 and sum(len(x) for x in slot) * M >= (t + 1) * len(jobs) and t < M:
                break
        t += 1
    wrapped = {(f, p) for g in slot for f, p, w in g if w}
    pro = [(f, p, k) for k in range(D) for f in order for p in range(len(load(f, 0))) if not (k == D - 1 and (f, p) in wrapped)]
    live = lambda k: k < 8 or U < 8
    q, need = [(f, k) for f, p, k in pro], {}
    for k in range(8):
        for i, (aa, j, t) in enumerate(mf):
            pos = max(n for n, e in enumerate(q) if e in ((('A', aa), k), (('B', j), k)))
            assert q.count((('A', aa), k)) == 2 and q.count((('B', j), k)) == 1
            key = (k % U, i)
            need[key] = min(need.get(key, 15), len(q) - 1 - pos)
            q += [(f, k - w + D) for f, p, w in slot[i] if live(k - w + D)]
    st = [0]
    def issue(x):
        if st[0] >= 15:
            a('s_waitcnt lgkmcnt(12)')
            st[0] = 12
        a(x)
        st[0] += 1
    for f, p, k in pro:
        issue(load(f, k)[p])
    if U < 8:
        for r in range(4 * len(taus)):
            a('v_mov_b32 v%d, 0' % (CACC + r))
        L, X = a.newlabel('CL'), a.newlabel('CX')
        a('s_mov_b32 s63, 0')
        a.label(L)
        st[0] = 15
    for c in range(U):
        for i, (aa, j, t) in enumerate(mf):
            n = need[(c, i)]
            if n < st[0]:
                a('s_waitcnt lgkmcnt(%d)' % n)
                st[0] = n
            acc = CACC + 4 * (t - taus[0])
            cc = '0' if (U == 8 and c == 0 and aa == 0) else vr(acc, 4)
            a('v_mfma_f32_16x16x32_bf16 %s, %s, %s, %s' % (vr(acc, 4), vr(reg(('A', aa), c), 4), vr(reg(('B', j), c), 4), cc))
            for f, p, w in slot[i]:
                if live(c - w + D):
                    issue(load(f, c - w + D)[p])
            if U == 8 and mid and c == 4 and i == 0:
                mid()
    if U < 8:
        if each:
            each()
        a('v_add_u32 v%d, %d, v%d' % (vCA, 64 * U, vCA))
        a('v_add_u32 v%d, %d, v%d' % (vCB, 64 * U, vCB))
        a('s_add_u32 s63, s63, 1')
        a('s_cmp_lt_u32 s63, %d' % (8 // U))
        if mid:
            assert U == 4
            a('s_cbranch_scc0 %s' % X)
            mid()
            a('s_branch %s' % L)
            a.label(X)
        else:
            a('s_cbranch_scc1 %s' % L)
        a('v_subrev_u32 v%d, 512, v%d' % (vCA, vCA))
        a('v_subrev_u32 v%d, 512, v%d' % (vCB, vCB))


def conv_item(a, stages, U, st_, each=None):
    taus = [t for st in stages for t in (2 * st, 2 * st + 1)]
    conv_part(a, taus, U, None, each)
    stamp(a, st_)
    T = CT
    a('s_waitcnt lgkmcnt(8)')
    L, D = a.newlabel('CC'), a.newlabel('CD')
    a('s_mov_b32 s%d, 0' % sCNT)
    a.label(L)
    a('ds_read_b32 v10, v12 offset:32')
    for n, t in enumerate(taus):
        a('ds_read_b64 %s, v4 offset:%d' % (vr(CE + 2 * n, 2), 512 * (7 - t)))
    a('s_add_u32 s%d, s%d, 1' % (sCNT, sCNT))
    a('s_waitcnt lgkmcnt(%d)' % len(taus))
    a('v_cmp_eq_u32 vcc, 0, v10')
    a('s_cbranch_vccz %s' % D)
    a('s_cmp_lt_u32 s%d, %d' % (sCNT, 4 * LIMIT))
    a('s_cbranch_scc1 %s' % L)
    a.label(D)
    for m, stage in enumerate(stages):
        a('s_add_u32 s66, s75, %d' % (2 * 327680 * stage))
        a('s_waitcnt lgkmcnt(%d)' % (2 * (len(stages) - 1 - m)))
        Q = CT + 4 + 4 * m
        for h in range(2):
            e0, e1 = CE + 4 * m + 2 * h, CE + 4 * m + 2 * h + 1
            acc = CACC + 8 * m + 4 * h
            a('v_and_b32 v%d, s%d, v%d' % (T + 0, sHI, e1))
            a('v_lshlrev_b32 v%d, 16, v%d' % (T + 1, e1))
            a('v_and_b32 v%d, s%d, v%d' % (T + 2, sHI, e0))
            a('v_lshlrev_b32 v%d, 16, v%d' % (T + 3, e0))
            for r in range(4):
                a('v_fmac_f32 v%d, s74, v%d' % (acc + r, T + r))
            a('v_cvt_pk_bf16_f32 v%d, v%d, v%d' % (Q + 2 * h, acc, acc + 1))
            a('v_cvt_pk_bf16_f32 v%d, v%d, v%d' % (Q + 2 * h + 1, acc + 2, acc + 3))
        a('v_permlane16_swap_b32 v%d, v%d' % (Q, Q + 2))
        a('v_permlane16_swap_b32 v%d, v%d' % (Q + 1, Q + 3))
        for r in range(4):
            a('v_min_u32 v%d, -2, v%d' % (Q + r, Q + r))
        a('buffer_store_dwordx4 %s, v5, %s, s66 offen sc1' % (vr(Q, 4), R4(WS)))


def rdy_wait(a, body, off=0):
    L, D = a.newlabel('RW'), a.newlabel('RD')
    a('s_mov_b32 s%d, 0' % sCNT)
    a.label(L)
    a('ds_read_b128 v[16:19], v12 offset:%d' % off)
    a('ds_read_b128 v[20:23], v12 offset:%d' % (off + 16))
    if body:
        body()
    a('s_add_u32 s%d, s%d, 1' % (sCNT, sCNT))
    a('s_waitcnt lgkmcnt(0)')
    a('v_min3_u32 v16, v16, v17, v18')
    a('v_min3_u32 v20, v20, v21, v22')
    a('v_min3_u32 v16, v16, v19, v23')
    a('v_min_u32 v16, v16, v20')
    a('v_cmp_eq_u32 vcc, 0, v16')
    a('s_cbranch_vccz %s' % D)
    a('s_cmp_lt_u32 s%d, %d' % (sCNT, 4 * LIMIT))
    a('s_cbranch_scc1 %s' % L)
    a.label(D)


def conv_phase(a):
    a('s_cmp_ge_u32 s%d, 14' % sI)
    a('s_cbranch_scc1 CV_G2')
    a('s_and_b32 s69, s%d, 1' % sW)
    a('s_lshr_b32 s63, s%d, 1' % sW)
    a('s_lshl_b32 s63, s63, 2')
    a('s_lshr_b32 s77, 0x2814, s63')
    a('s_and_b32 s77, s77, 15')
    conv_channel(a, 1, 69, 64, 65)
    a('s_branch CV_COM')
    a.label('CV_G2')
    a('s_mov_b32 s69, s%d' % sQ)
    a('s_cmp_eq_u32 s%d, 0' % sHF)
    a('s_cselect_b32 s77, 16, 9')
    conv_channel(a, 2, 69, 64, 65)
    a.label('CV_COM')
    a('s_lshr_b32 s78, s64, 4')
    a('s_mul_i32 s79, s%d, 5' % sX)
    a('s_add_u32 s78, s78, s79')
    a('s_lshl_b32 s78, s78, 7')
    a('s_add_u32 s78, s78, %d' % KVFA)
    a('s_mul_i32 s79, s%d, 80' % sX)
    a('s_add_u32 s64, s64, s79')
    a('s_and_b32 s66, s64, 0xfffffffe')
    a('s_lshl_b32 s66, s66, 1')
    a('s_load_dword s74, s[%d:%d], s66' % (pD, pD + 1))
    a('s_lshl_b32 s79, s64, 12')
    a('s_mul_i32 s80, s69, %d' % CSL)
    a('s_add_u32 s81, s80, %d' % CUO)
    a('s_bitcmp0_b32 s77, 0')
    a('s_cbranch_scc1 CV_NOLEAD')
    a('v_and_b32 v16, 31, v%d' % vL)
    a('v_lshlrev_b32 v16, 2, v16')
    a('v_lshrrev_b32 v17, 5, v%d' % vL)
    a('v_lshl_add_u32 v16, v17, 13, v16')
    assert KVFB - KVFA == 8192
    a('s_lshl_b32 s66, s%d, 1' % sXCC)
    a('v_mov_b32 v18, s66')
    a('v_cmp_eq_u32 vcc, 0, v17')
    a('v_cndmask_b32 v18, 0, v18, vcc')
    a('v_add_u32 v18, s%d, v18' % sTAG)
    a('s_mov_b32 s%d, 0' % sCNT)
    a.label('CV_POLL')
    a('buffer_load_dword v19, v16, %s, s78 offen sc1' % R4(WS))
    a('s_add_u32 s%d, s%d, 1' % (sCNT, sCNT))
    a('s_waitcnt vmcnt(0)')
    a('v_cmp_ne_u32 vcc, v18, v19')
    a('s_mov_b32 s66, %s' % hex(KVA))
    if not FORCE_SLOW:
        a('s_cmp_eq_u32 vcc_lo, 0')
        a('s_cbranch_scc1 CV_GOT')
    a('s_mov_b32 s66, %s' % hex(KVB))
    a('s_cmp_eq_u32 vcc_hi, 0')
    a('s_cbranch_scc1 CV_GOT')
    a('s_cmp_lt_u32 s%d, s%d' % (sCNT, sLIM))
    a('s_cbranch_scc1 CV_POLL')
    a('s_mov_b32 s%d, 0' % sLIM)
    a.label('CV_GOT')
    a('s_add_u32 s66, s66, s79')
    a('s_mov_b32 m0, s81')
    for k in range(4):
        a('buffer_load_dwordx4 v%d, %s, s66 offen offset:%d sc1 lds' % (vL16, R4(WS), 1024 * k))
    a.label('CV_NOLEAD')
    stamp(a, 4)
    a('s_lshl_b32 s75, s64, 6')
    a('s_add_u32 s75, s75, %s' % hex(YT))
    a('s_lshl_b32 s65, s65, 28')
    a('v_and_b32 v16, 15, v%d' % vL)
    a('v_lshrrev_b32 v17, 4, v%d' % vL)
    a('v_add_u32 v18, 1, v16')
    a('v_and_b32 v19, 3, v18')
    a('v_mul_u32_u24 v%d, %d, v19' % (vCA, HSTR))
    a('v_lshrrev_b32 v18, 2, v18')
    a('v_lshl_add_u32 v%d, v18, 3, v%d' % (vCA, vCA))
    a('v_lshl_add_u32 v%d, v17, 4, v%d' % (vCA, vCA))
    a('v_add_u32 v%d, s80, v%d' % (vCA, vCA))
    a('v_lshlrev_b32 v18, 5, v16')
    a('v_lshlrev_b32 v19, 4, v17')
    a('v_sub_u32 v%d, v19, v18' % vCB)
    a('s_add_u32 s66, s81, 480')
    a('v_add_u32 v%d, s66, v%d' % (vCB, vCB))
    a('v_lshl_add_u32 v19, v17, 3, v18')
    a('s_add_u32 s66, s81, 504')
    a('v_sub_u32 v4, s66, v19')
    a('v_and_b32 v19, 1, v17')
    a('v_lshlrev_b32 v19, 3, v19')
    a('v_lshrrev_b32 v18, 1, v16')
    a('v_add_u32 v19, v19, v18')
    a('v_mul_u32_u24 v5, 40960, v19')
    a('v_and_b32 v18, 1, v16')
    a('v_lshl_add_u32 v5, v18, 5, v5')
    a('v_lshrrev_b32 v19, 1, v17')
    a('v_lshl_add_u32 v5, v19, 4, v5')
    a('v_add_u32 v5, s65, v5')
    a('s_waitcnt lgkmcnt(0)')
    a('s_bitcmp1_b32 s64, 0')
    a('s_cbranch_scc1 CV_DHI')
    a('s_lshl_b32 s74, s74, 16')
    a.label('CV_DHI')
    a('s_and_b32 s74, s74, 0xffff0000')
    a('s_bitcmp0_b32 s77, 0')
    a('s_cbranch_scc1 CV_RD')
    a('s_waitcnt vmcnt(0)')
    a.label('CV_RD')
    a('s_cmp_ge_u32 s%d, 14' % sI)
    a('s_cselect_b32 s66, 2, 1')
    a('s_mul_i32 s66, s66, %d' % (2 * CSL))
    a('v_mov_b32 v12, s66')
    a('s_lshl_b32 s67, s%d, 2' % sW)
    a('v_add_u32 v13, s67, v12')
    a('v_add_u32 v10, 1, s%d' % sSLOW)
    a('ds_write_b32 v13, v10')
    a('s_cmp_eq_u32 s77, 8')
    a('s_cbranch_scc1 CV_L1')
    a('s_cmp_lg_u32 s%d, 0' % sW)
    a('s_cbranch_scc1 CV_CLR')
    a('v_lshlrev_b32 v16, 7, v%d' % vL)
    a('s_mov_b32 s66, %d' % CLR)
    a('s_mov_b32 s%d, 0' % sCNT)
    a.label('CV_CL')
    a('buffer_load_dwordx4 v[20:23], v16, %s, s66 offen sc1' % R4(WS))
    a('s_add_u32 s%d, s%d, 1' % (sCNT, sCNT))
    a('s_waitcnt vmcnt(0)')
    for r in range(4):
        a('v_xor_b32 v%d, s%d, v%d' % (20 + r, sTAG, 20 + r))
    a('v_or3_b32 v20, v20, v21, v22')
    a('v_or_b32 v20, v20, v23')
    a('v_cmp_ne_u32 vcc, 0, v20')
    a('s_cbranch_vccz CV_CD')
    a('s_cmp_lt_u32 s%d, s%d' % (sCNT, sLIM))
    a('s_cbranch_scc1 CV_CL')
    a('s_mov_b32 s%d, 0' % sLIM)
    a.label('CV_CD')
    a('ds_write_b32 v12, v10 offset:32')
    a.label('CV_CLR')
    a('s_cmp_eq_u32 s77, 16')
    a('s_cbranch_scc1 CV_V2')
    rdy_wait(a, None)
    a('v_readfirstlane_b32 s%d, v22' % sSLOW)
    a('s_sub_u32 s%d, s%d, 1' % (sSLOW, sSLOW))
    a.label('CV_GO')
    stamp(a, 5)
    a('s_bitcmp0_b32 s77, 0')
    a('s_cbranch_scc1 CV_I2')
    a('s_setprio 3')
    conv_item(a, [0], CU_[0], 13)
    stamp(a, 6)
    conv_item(a, [1], CU_[1], 14)
    stamp(a, 7)
    a('s_bitcmp1_b32 s77, 3')
    a('s_cbranch_scc1 CV_L2')
    a.label('CV_I2')
    a('s_bitcmp0_b32 s77, 1')
    a('s_cbranch_scc1 CV_I3')
    conv_item(a, [2], CU_[2], 13)
    stamp(a, 8)
    a.label('CV_I3')
    a('s_setprio 0')
    a('s_bitcmp0_b32 s77, 2')
    a('s_cbranch_scc1 CV_I4')
    conv_item(a, [3], CU_[3], 13)
    stamp(a, 8)
    a.label('CV_I4')
    a('s_bitcmp0_b32 s77, 4')
    a('s_cbranch_scc1 CV_END')
    if RL:
        nr = NR[2] - NA2
        assert CU_[4] == 2
        w_begin(a, 2, NA2, sW, 0, 4, RING[2] + 4096 * NA2)
        for n in range(nr - 4 * (nr // 4)):
            emit(a, w_piece(4))
        def each():
            for n in range(nr // 4):
                emit(a, w_piece(4))
    conv_item(a, [2, 3], CU_[4], 13, each=each if RL else None)
    a('v_mov_b32 v10, 1')
    a('ds_write_b32 v13, v10 offset:64')
    a('s_waitcnt vmcnt(2)')
    stamp(a, 8)
    a('s_branch CV_END2')
    a.label('CV_V2')
    if P2A:
        w_begin(a, 2, NA2, sW, 0, 4, 0)
        a('s_mul_i32 s68, s%d, %d' % (sWS, NK[2] - NA2 - 1))
        a('s_add_u32 s68, s68, s%d' % sWO)
        def pull():
            a('s_waitcnt vmcnt(%d)' % (P2A - 1))
            a('buffer_load_dwordx4 v[128:131], v%d, %s, s%d offen' % (vWO, R4(RA), sWO))
            a('s_add_u32 s%d, s%d, s%d' % (sWO, sWO, sWS))
            a('s_min_u32 s%d, s%d, s68' % (sWO, sWO))
    rdy_wait(a, pull if P2A else None)
    a('s_branch CV_GO')
    for g, nw, P, pf in ((1, 2, P1, PF1), (2, 4, P2_, PF2)):
        nr = 4 * (NR[g] - NA[g]) // nw
        npf = 4 * NC[g] // nw if pf else 0
        if g == 2:
            a.label('CV_L2')
            a('s_setprio 0')
            if RL:
                nr = 0
        if g == 1:
            a.label('CV_L1')
            if P1A:
                w_begin(a, g, NR[g], sW, 4, nw, 0)
                w_stream(a, npf, nw, P1A, DUM[g])
                npf = 0
            stamp(a, 6)
            rdy_wait(a, None)
            stamp(a, 5)
        w_begin(a, g, NA[g] if nr else NR[g], sW, 4, nw, RING[g] + 4096 * NA[g])
        w_stream(a, nr, nw, P)
        stamp(a, 15)
        a('v_mov_b32 v10, 1')
        a('ds_write_b32 v13, v10 offset:64')
        if npf:
            a('s_mul_i32 s68, s%d, %d' % (sWS, npf - 1))
            a('s_add_u32 s68, s68, s%d' % sWO)
            def pull(g=g, P=P):
                a('s_waitcnt vmcnt(%d)' % (P - 1))
                a('buffer_load_dwordx4 %s, v%d, %s, s%d offen' % (vr(DUM[g], 4), vWO, R4(RA), sWO))
                a('s_add_u32 s%d, s%d, s%d' % (sWO, sWO, sWS))
                a('s_min_u32 s%d, s%d, s68' % (sWO, sWO))
            rdy_wait(a, pull, 64)
            a('s_cmp_lt_u32 s%d, %d' % (sCNT, P - 1))
            a('s_cbranch_scc1 CV_W%d' % g)
            a('s_waitcnt vmcnt(%d)' % (P - 1))
            stamp(a, 8)
            a('s_branch CV_END2')
            a.label('CV_W%d' % g)
        a('s_waitcnt vmcnt(0)')
        stamp(a, 8)
        a('s_branch CV_END2')
    a.label('CV_END')
    a('v_mov_b32 v10, 1')
    a('ds_write_b32 v13, v10 offset:64')
    a('s_waitcnt vmcnt(1)')
    a.label('CV_END2')
    a('s_barrier')
    stamp(a, 9)
    a('s_cmp_ge_u32 s%d, 14' % sI)
    a('s_cbranch_scc1 G2_INIT')


ZR, NZR, GE, ACC, BIAS = 24, 6, 48, 64, 80
vSO, vLN, vOW, vC1, vRD, vDN, vTH, vOB, vPO, vZ, vTG, vCN, PK, PK2 = 0, 4, 5, 6, 8, 9, 10, 11, 12, 13, 14, 15, 16, 20


def g_phase(a, g):
    N, BUF, NP = NK[g], 1024 * NK[g], NK[g] // 4
    SRC, DSTS = (ZSL, HSL) if g == 1 else (HSL, MSL)
    FST = 32 if g == 1 else 256
    ool = Ool(a)
    T = lambda s: 'G%d_%s' % (g, s)
    a.label(T('INIT'))
    w_begin(a, g, NR[g], sW, 0, 8, 0)
    for k in range(NC[g] // 2):
        emit(a, w_piece(8))
    a('s_cmp_ge_u32 s%d, 4' % sW)
    a('s_cbranch_scc1 %s' % T('I4'))
    emit(a, w_piece(8))
    a.label(T('I4'))
    a('v_lshrrev_b32 v10, 5, v%d' % vL)
    a('v_lshlrev_b32 v10, 5, v10')
    a('s_lshl_b32 s67, s%d, 6' % sQ)
    if g == 1:
        srd(a, RD, pB1, 3456)
        a('s_lshl_b32 s66, s%d, 8' % sI)
    else:
        srd(a, RD, pB2, 1280)
        g2_ids(a, 69, 70)
        a('s_lshl_b32 s66, s70, 8')
        a('s_lshl_b32 s63, s69, 16')
        a('s_add_u32 s66, s66, s63')
    a('s_add_u32 s66, s66, s67')
    a('v_add_u32 v10, s66, v10')
    a('buffer_load_dwordx4 %s, v10, %s, 0 offen' % (vr(GE, 4), R4(RD)))
    a('buffer_load_dwordx4 %s, v10, %s, 0 offen offset:16' % (vr(GE + 4, 4), R4(RD)))
    w_read(a, g, 0, NR[g], RING[g])
    a('s_waitcnt vmcnt(0)')
    a('s_barrier')
    a('v_add_u32 v11, %d, v%d' % (L_SYNC, vL4))
    a('v_mov_b32 v12, 0')
    a('ds_write_b32 v11, v12')
    for i in range(8):
        a('v_lshlrev_b32 v%d, 16, v%d' % (BIAS + 2 * i, GE + i))
        a('v_and_b32 v%d, s%d, v%d' % (BIAS + 2 * i + 1, sHI, GE + i))
    w_read(a, g, NR[g], NC[g], 0)
    a('s_barrier')
    stamp(a, 10)
    a('s_lshl_b32 s66, s%d, 3' % sX)
    a('s_add_u32 s66, s66, s%d' % sHF)
    a('s_mul_i32 s64, s66, %d' % SRC)
    a('s_mul_i32 s74, s66, %d' % DSTS)
    a('s_mul_i32 s67, s%d, %d' % (sQ, 1024 * NP))
    a('s_add_u32 s64, s64, s67')
    a('s_mul_i32 s72, s%d, %d' % (sHF, BUF))
    if g == 1:
        a('s_add_u32 s64, s64, %s' % hex(ZI))
        a('s_lshl_b32 s73, s%d, 10' % sX)
        a('s_lshl_b32 s63, s%d, 5' % sHF)
        a('s_add_u32 s73, s73, s63')
        a('s_add_u32 s73, s73, %d' % ZF)
        a('s_lshl_b32 s68, s%d, 2' % sI)
        a('s_add_u32 s68, s68, s%d' % sQ)
        a('s_lshl_b32 s63, s68, 11')
        a('s_add_u32 s74, s74, s63')
        a('s_add_u32 s74, s74, %s' % hex(HB))
        a('v_and_b32 v%d, 0x1c, v%d' % (vPO, vL4))
        c1 = -2.0 * math.sqrt(2.0 / math.pi) * math.log2(math.e)
        a('v_mov_b32 v%d, %s' % (vC1, f2h(c1)))
    else:
        g2_ids(a, 69, 70)
        a('s_mul_i32 s63, s69, %d' % BUF)
        a('s_add_u32 s64, s64, s63')
        a('s_add_u32 s64, s64, %s' % hex(HB))
        a('s_lshl_b32 s73, s%d, 13' % sX)
        a('s_lshl_b32 s63, s%d, 8' % sHF)
        a('s_add_u32 s73, s73, s63')
        a('s_mul_i32 s63, s69, 72')
        a('s_add_u32 s73, s73, s63')
        a('s_add_u32 s73, s73, %d' % HFL)
        a('s_mul_i32 s63, s69, 40960')
        a('s_add_u32 s74, s74, s63')
        a('s_lshl_b32 s63, s70, 2')
        a('s_add_u32 s63, s63, s%d' % sQ)
        a('s_lshl_b32 s63, s63, 11')
        a('s_add_u32 s74, s74, s63')
        a('s_add_u32 s74, s74, %s' % hex(MR))
        a('s_sub_u32 s68, s%d, 14' % sI)
        a('s_lshl_b32 s68, s68, 2')
        a('s_add_u32 s68, s68, s%d' % sQ)
        a('v_min_u32 v%d, 68, v%d' % (vPO, vL4))
    a('s_lshl_b32 s78, s%d, 13' % sX)
    a('s_lshl_b32 s63, s%d, 8' % sHF)
    a('s_add_u32 s78, s78, s63')
    a('s_lshl_b32 s63, s68, 2')
    a('s_add_u32 s78, s78, s63')
    a('s_add_u32 s78, s78, %d' % (HFL if g == 1 else MFL))
    a('s_mov_b32 s75, %d' % (2 * SRC))
    a('s_mov_b32 s79, %d' % (2 * DSTS))
    a('v_lshrrev_b32 v16, 5, v%d' % vL)
    a('v_and_b32 v17, 31, v%d' % vL)
    a('v_lshlrev_b32 v17, 4, v17')
    a('v_lshl_add_u32 v%d, v16, 10, v17' % vSO)
    a('s_lshl_b32 s63, s%d, 4' % sHF)
    a('s_add_u32 s66, s63, %d' % LF_LND)
    a('v_mov_b32 v%d, s66' % vLN)
    a('s_lshl_b32 s66, s%d, 2' % sW)
    a('s_add_u32 s66, s66, %d' % LF_LND)
    a('v_mov_b32 v%d, s66' % vOW)
    a('s_sub_u32 s66, %d, s63' % (LF_DON + 16))
    a('v_mov_b32 v%d, s66' % vDN)
    a('v_mov_b32 v%d, s%d' % (vTH, sHF))
    a('v_mov_b32 v%d, s%d' % (vTG, sTAG))
    a('v_mov_b32 v%d, 1' % vCN)
    oob_lane0(a, vOB)
    dummy_off(a, 71)
    a('s_mov_b32 s84, s71')
    a('s_mov_b32 s%d, 0' % sP)

    def stage():
        o = []
        for k in range(NP):
            gq = []
            if k == 0:
                gq += ['s_add_u32 m0, s65, s67', 's_mov_b32 s63, s64']
            elif k % 4 == 0:
                gq += ['s_add_u32 m0, m0, 4096', 's_add_u32 s63, s63, 4096']
            gq.append('buffer_load_dwordx4 v%d, %s, s63 offen offset:%d sc1 lds' % (vL16, R4(WS), 1024 * (k & 3)))
            o.append(gq)
        return o
    PEEK = 'ds_read_b128 %s, v%d' % (vr(PK, 4), vLN)
    PEEK2 = 'ds_read_b128 %s, v%d' % (vr(PK2, 4), vDN)
    PLOAD = 'buffer_load_dword v%d, v%d, %s, s73 offen sc1' % (vZ, vPO, R4(WS))
    PCMP = 'v_cmp_ne_u32 vcc, s%d, v%d' % (sTAG, vZ)
    def flag(s):
        return both2(a, ool, 'buffer_store_dword v%d, v%d, %s, s%d offen' % (vTG, vOB, R4(WS), s))
    def store(o, t):
        return both2(a, ool, 'buffer_store_dwordx4 %s, v%d, %s, s74 offen offset:%d' % (vr(o, 4), vSO, R4(WS), 512 * t))

    a('s_mov_b32 s65, s72')
    block_poll(a, vZ, vPO, 73)
    stamp(a, 11)
    for gq in stage():
        emit(a, gq)
    a('s_waitcnt vmcnt(0)')
    a('ds_write_b32 v%d, v%d' % (vOW, vCN))
    a(PEEK)
    a.label(T('LOOP'))
    a('v_add_u32 v%d, s72, v%d' % (vRD, vL16))
    a('s_cmp_eq_u32 s%d, 3' % sP)
    a('s_cselect_b32 s63, %d, s75' % (-6 * SRC))
    a('s_add_u32 s64, s64, s63')
    a('s_add_u32 s73, s73, %d' % (2 * FST))
    a('s_cmp_eq_u32 s72, 0')
    a('s_cselect_b32 s65, %d, s72' % (3 * BUF))
    a('s_sub_u32 s65, s65, %d' % BUF)
    def pend():
        a('s_waitcnt vmcnt(0)')
        emit(a, flag(84))
        a('s_mov_b32 s84, s71')
    cnt_spin(a, ool, PK, vLN, vCN, pend if g == 1 else None)
    PF = NZR - 1
    q = LdsQ(a)
    for n in range(PF):
        q.issue(('z', n), 'ds_read_b128 %s, v%d offset:%d' % (vr(ZR + 4 * n, 4), vRD, 1024 * n))
    a('s_setprio %d' % PRIO[0])
    stamp(a, (sP, 4, 16))
    for ks in range(N):
        q.wait([('z', ks)])
        c = vr(BIAS, 16) if ks == 0 else vr(ACC, 16)
        a('v_mfma_f32_32x32x16_bf16 %s, %s, %s, %s' % (vr(ACC, 16), vr(WB[g] + 4 * ks, 4), vr(ZR + 4 * (ks % NZR), 4), c))
        n = ks + PF
        if n < N:
            q.issue(('z', n), 'ds_read_b128 %s, v%d offset:%d' % (vr(ZR + 4 * (n % NZR), 4), vRD, 1024 * n))
        if ks == HFK and g == 1:
            pend()
        if ks == PRK:
            a('s_setprio %d' % PRIO[1])
        if ks == N - PLK:
            a(PLOAD)
        if ks == N - 3:
            q.issue(('p', 0), PEEK2)
    a('ds_write_b32 v%d, v%d offset:32' % (vOW, vCN))
    a('s_setprio %d' % PRIO[2])
    stamp(a, (sP, 4, 17))
    a('s_waitcnt vmcnt(0) lgkmcnt(1)')
    emit(a, cnt_min(PK2))
    a('v_cmp_gt_u32 s[82:83], v%d, v%d' % (vTH, PK2))
    a(PCMP)
    a('s_cmp_eq_u32 s%d, 7' % sP)
    a('s_cselect_b64 s[82:83], -1, s[82:83]')
    a('s_or_b64 vcc, vcc, s[82:83]')

    def gelu(dma):
        ops = []
        for t in range(2):
            X, U = ACC + 8 * t, GE
            ops += ['v_mul_f32 v%d, v%d, v%d' % (U + i, X + i, X + i) for i in range(8)]
            ops += ['v_fma_f32 v%d, v%d, s%d, v%d' % (U + i, U + i, sC2, vC1) for i in range(8)]
            ops += ['v_mul_f32 v%d, v%d, v%d' % (U + i, U + i, X + i) for i in range(8)]
            ops += ['v_exp_f32 v%d, v%d' % (U + i, U + i) for i in range(8)]
            ops += ['v_add_f32 v%d, 1.0, v%d' % (U + i, U + i) for i in range(8)]
            ops += ['v_rcp_f32 v%d, v%d' % (U + i, U + i) for i in range(8)]
            ops += ['v_mul_f32 v%d, v%d, v%d' % (U + i, U + i, X + i) for i in range(8)]
            o = U + 8 + 4 * t
            ops += ['v_cvt_pk_bf16_f32 v%d, v%d, v%d' % (o + i, U + 2 * i, U + 2 * i + 1) for i in range(4)]
            ops.append(('st', o, t))
        st = stage() if dma else []
        if st:
            emit(a, st.pop(0))
        for i, l in enumerate(ops):
            if isinstance(l, tuple):
                assert not st
                emit(a, store(l[1], l[2]))
            else:
                a(l)
            if st and i % DST == DST - 1:
                emit(a, st.pop(0))

    def landed():
        a('v_add_u32 v%d, 1, v%d' % (vCN, vCN))
        a('ds_write_b32 v%d, v%d' % (vOW, vCN))
    if g == 1:
        a('s_cbranch_vccnz %s' % T('EB'))
        gelu(True)
        stamp(a, (sP, 4, 18))
        a('s_mov_b32 s84, s78')
        a('s_waitcnt vmcnt(2)')
        landed()
    else:
        a('s_mov_b64 s[82:83], vcc')
        for i in range(8):
            a('v_cvt_pk_bf16_f32 v%d, v%d, v%d' % (GE + i, ACC + 2 * i, ACC + 2 * i + 1))
            if i & 3 == 3:
                emit(a, store(GE + i - 3, i >> 2))
        a('s_cmp_lg_u64 s[82:83], 0')
        a('s_cbranch_scc1 %s' % T('EB'))
        for gq in stage():
            emit(a, gq)
        a('s_waitcnt vmcnt(%d)' % NP)
        emit(a, flag(78))
        stamp(a, (sP, 4, 18))
        a('s_waitcnt vmcnt(1)')
        landed()
    a.label(T('NEXT'))
    a(PEEK)
    stamp(a, (sP, 4, 19))
    a('v_add_u32 v%d, 1, v%d' % (vTH, vTH))
    a('s_mov_b32 s72, s65')
    a('s_add_u32 s78, s78, 512')
    a('s_cmp_eq_u32 s%d, 3' % sP)
    a('s_cselect_b32 s63, %d, s79' % (-6 * DSTS))
    a('s_add_u32 s74, s74, s63')
    a('s_add_u32 s%d, s%d, 1' % (sP, sP))
    a('s_branch %s' % T('LOOP'))
    a.label(T('EB'))
    if g == 1:
        gelu(False)
    a(PLOAD)
    a(PEEK2)
    a('s_waitcnt vmcnt(1)')
    emit(a, flag(78))
    stamp(a, (sP, 4, 18))
    a('s_cmp_eq_u32 s%d, 7' % sP)
    a('s_cbranch_scc1 %s' % T('END'))
    a('s_waitcnt vmcnt(1)')
    a(PCMP)
    a('s_cbranch_vccz %s' % T('GOT'))
    block_poll(a, vZ, vPO, 73)
    a.label(T('GOT'))
    cnt_spin(a, ool, PK2, vDN, vTH)
    for gq in stage():
        emit(a, gq)
    a('s_waitcnt vmcnt(0)')
    landed()
    a('s_branch %s' % T('NEXT'))
    a.label(T('END'))
    endk(a, g)
    ool.flush()


YU, MM, XS, PS, TS = 36, 76, 136, 16, 24
DD, ZP = MM, MM + 40
vIM, vY0, vY1, vYC, vYG, vQA, vT0, vSP = 0, 4, 5, 6, 8, 9, 10, 14


def unpack(dst, src, n):
    o = []
    for i in range(n):
        o.append('v_lshlrev_b32 v%d, 16, v%d' % (dst + 2 * i, src + i))
        o.append('v_and_b32 v%d, s%d, v%d' % (dst + 2 * i + 1, sHI, src + i))
    return o


def accum(dst, src, n):
    o = []
    for i in range(n):
        o.append('v_dot2c_f32_bf16 v%d, s%d, v%d' % (dst + 2 * i, sLO1, src + i))
        o.append('v_dot2c_f32_bf16 v%d, s%d, v%d' % (dst + 2 * i + 1, sHI1, src + i))
    return o


def sums(X, T, k):
    o = []
    for i in range(0, 8, 2):
        x = P2(X + 8 * k + i)
        if k == 0 and i == 0:
            o += ['v_pk_mul_f32 %s, %s, %s' % (P2(T + 2), x, x)]
        elif k == 0 and i == 2:
            o += ['v_pk_add_f32 %s, %s, %s' % (P2(T), P2(X), x), 'v_pk_fma_f32 %s, %s, %s, %s' % (P2(T + 2), x, x, P2(T + 2))]
        else:
            o += ['v_pk_add_f32 %s, %s, %s' % (P2(T), P2(T), x), 'v_pk_fma_f32 %s, %s, %s, %s' % (P2(T + 2), x, x, P2(T + 2))]
    return o


def finish(T, double, U=vSP):
    Q, R = T, T + 2
    o = ['v_add_f32 v%d, v%d, v%d' % (Q, T, T + 1), 'v_add_f32 v%d, v%d, v%d' % (R, T + 2, T + 3),
         'v_permlane32_swap_b32 v%d, v%d' % (Q, R), 'v_add_f32 v%d, v%d, v%d' % (Q, Q, R),
         'v_mov_b32 v%d, v%d' % (R, Q), 'v_permlane16_swap_b32 v%d, v%d' % (Q, R), 'v_add_f32 v%d, v%d, v%d' % (Q, Q, R)]
    for k in (8, 4):
        o.append('v_add_f32 v%d, v%d, v%d row_ror:%d row_mask:0xf bank_mask:0xf' % (Q, Q, Q, k))
    o += ['v_mul_f32 v%d, s%d, v%d' % (Q, sINV, Q), 'v_mov_b32 v%d, v%d' % (R, Q), 'v_permlane32_swap_b32 v%d, v%d' % (Q, R),
          'v_fma_f32 v%d, -v%d, v%d, v%d' % (R, Q, Q, R), 'v_max_f32 v%d, 0, v%d' % (R, R),
          'v_add_f32 v%d, s%d, v%d' % (U, sEPS, R), 'v_rsq_f32 v%d, v%d' % (U, U)]
    if double:
        o += ['v_mul_f32 v%d, v%d, v%d' % (R, R, U), 'v_fma_f32 v%d, v%d, v%d, s%d' % (R, R, U, sEPS),
              'v_rsq_f32 v%d, v%d' % (R, R), 'v_mul_f32 v%d, v%d, v%d' % (U, U, R)]
    o += ['v_mul_f32_e64 v%d, -v%d, v%d' % (U + 1, Q, U)]
    return o


def norm(d, x, n, sp=vSP):
    return ['v_pk_fma_f32 %s, %s, %s, %s op_sel:[0,0,1] op_sel_hi:[1,0,1]' % (P2(d + i), P2(x + i), P2(sp), P2(sp)) for i in range(0, n, 2)]


def gate(k, XW):
    return ['v_pk_fma_f32 %s, %s, %s, %s' % (P2(XW + i), P2(DD + i), P2(YU + i), P2(XW + i)) for i in range(8 * k, 8 * k + 8, 2)]


def s_phase(a):
    ool = Ool(a)
    vOB, vPO, vZ = 11, 12, 13
    vYP = 28
    MK = (94, 96, 98, 100, 82)
    a.label('S_MAIN')
    srd(a, RA, pQ, hex(ROWS_B))
    s_ids(a)
    row_table(a, PS, 10)
    a('s_barrier')
    q_dma(a, 1, PS)
    srd(a, RB, pOUT, hex(ROWS_B))
    a('v_lshrrev_b32 v40, 2, v%d' % vL)
    a('v_and_b32 v41, 3, v%d' % vL)
    a('v_lshlrev_b32 v%d, 9, v40' % vIM)
    a('v_lshl_add_u32 v%d, v41, 4, v%d' % (vIM, vIM))
    a('s_lshl_b32 s66, s71, 8')
    a('s_lshl_b32 s67, s%d, 6' % sQ)
    a('s_add_u32 s66, s66, s67')
    a('v_add_u32 v%d, s66, v%d' % (vIM, vIM))
    a('v_lshlrev_b32 v43, 1, v41')
    a('v_xor_b32 v43, v43, v40')
    a('v_mul_u32_u24 v%d, 1280, v41' % vQA)
    a('v_lshl_add_u32 v%d, v43, 4, v%d' % (vQA, vQA))
    a('v_lshrrev_b32 v43, 4, v%d' % vL)
    a('v_lshl_add_u32 v43, v43, 2, v41')
    a('v_bfe_u32 v44, v%d, 2, 2' % vL)
    a('v_lshlrev_b32 v44, 1, v44')
    a('s_lshr_b32 s66, s%d, 1' % sQ)
    a('v_add_u32 v44, s66, v44')
    a('v_and_b32 v45, 1, v41')
    a('v_xor_b32 v44, v44, v45')
    a('v_and_b32 v45, 2, v41')
    a('v_lshlrev_b32 v45, 2, v45')
    a('v_xor_b32 v44, v44, v45')
    a('v_lshlrev_b32 v%d, 8, v43' % vYC)
    a('v_lshl_add_u32 v%d, v44, 4, v%d' % (vYC, vYC))
    a('s_and_b32 s66, s%d, 1' % sQ)
    a('s_lshl_b32 s66, s66, 3')
    a('s_mul_i32 s67, s%d, 5120' % sQ)
    a('s_sub_u32 s66, s66, s67')
    a('v_add_u32 v%d, s66, v%d' % (vYC, vYC))
    a('v_lshrrev_b32 v43, 4, v%d' % vL)
    a('v_and_b32 v44, 15, v%d' % vL)
    a('v_and_b32 v45, 1, v43')
    a('v_xor_b32 v44, v44, v45')
    a('v_and_b32 v45, 2, v43')
    a('v_lshlrev_b32 v45, 2, v45')
    a('v_xor_b32 v44, v44, v45')
    a('v_lshrrev_b32 v45, 1, v44')
    a('v_lshl_add_u32 v45, v43, 3, v45')
    a('v_lshlrev_b32 v%d, 6, v45' % vYG)
    a('v_and_b32 v44, 1, v44')
    a('v_lshl_add_u32 v%d, v44, 4, v%d' % (vYG, vYG))
    a('s_lshl_b32 s66, s71, 5')
    a('s_mul_i32 s67, s%d, 10240' % sQ)
    a('s_add_u32 s66, s66, s67')
    a('v_add_u32 v%d, s66, v%d' % (vYG, vYG))
    oob_lane0(a, vOB)
    a('v_min_u32 v%d, 236, v%d' % (vPO, vL4))
    a('s_lshl_b32 s79, s71, 2')
    a('s_add_u32 s79, s79, s%d' % sQ)
    a('s_lshl_b32 s79, s79, 2')
    a('s_lshl_b32 s63, s%d, 10' % sX)
    a('s_add_u32 s79, s79, s63')
    a('s_add_u32 s79, s79, %d' % ZF)
    a('s_lshl_b32 s66, s%d, 2' % sW)
    a('s_add_u32 s66, s66, %d' % LF_LND)
    a('v_mov_b32 v%d, s66' % (vYP + 1))
    a('s_and_b32 s66, s66, 0xfffffff0')
    a('v_mov_b32 v%d, s66' % (vYP + 2))
    def head(ph, sl):
        a('s_add_u32 s74, s70, %d' % (3 * sl))
        if sl == 2:
            a('s_cmp_gt_u32 s74, 7')
            a('s_cbranch_scc1 S%s_END' % ph)
        a('s_add_u32 s75, s72, %d' % (40960 * sl))
        if ph != 'C':
            a('v_add_u32 v%d, s75, v%d' % (vY0, vYC))
            a('v_xor_b32 v%d, 0x80, v%d' % (vY1, vY0))
        a('s_lshl_b32 s76, s%d, 3' % sX)
        a('s_add_u32 s76, s76, s74')

    def y_reads():
        for k in range(5):
            a('ds_read_b64_tr_b16 %s, v%d offset:%d' % (vr(ZP + 4 * k, 2), vY0, 4096 * k))
            a('ds_read_b64_tr_b16 %s, v%d offset:%d' % (vr(ZP + 4 * k + 2, 2), vY1, 4096 * k))

    def z_out(lay, X, mid=None):
        emit(a, finish(TS, True))
        a('s_mul_i32 s66, s76, %d' % ZSL)
        a('s_add_u32 s66, s66, %s' % hex(ZI))
        for k in range(5):
            emit(a, norm(DD + 8 * k, X + 8 * k, 8))
            for i in range(4):
                a('v_cvt_pk_bf16_f32 v%d, v%d, v%d' % (ZP + 4 * k + i, DD + 8 * k + 2 * i, DD + 8 * k + 2 * i + 1))
            emit(a, both2(a, ool, 'buffer_store_dwordx4 %s, v%d, %s, s66 offen' % (vr(ZP + 4 * k, 4), vIM, R4(WS))))
            if k < 4:
                a('s_add_u32 s66, s66, 8192')
        a('s_lshl_b32 s68, s74, 5')
        a('s_add_u32 s68, s68, s79')
        a('v_mov_b32 v%d, s%d' % (vZ, sTAG))
        if mid:
            mid()
        else:
            a('s_waitcnt vmcnt(0)')
        emit(a, both2(a, ool, 'buffer_store_dword v%d, v%d, %s, s68 offen offset:%d' % (vZ, vOB, R4(WS), 256 * lay)))

    def m_in(lay, sl, X, per_k):
        a('s_lshl_b32 s66, s%d, 13' % sX)
        a('s_lshl_b32 s67, s74, 8')
        a('s_add_u32 s66, s66, s67')
        a('s_add_u32 s66, s66, %d' % (MFL + 2048 * lay))
        a('s_mul_i32 s67, s76, %d' % MSL)
        a('s_add_u32 s67, s67, %s' % hex(MR))
        a('s_add_u32 s68, s67, 40960')
        a('s_add_u32 s69, s67, 81920')
        block_poll(a, vZ, vPO, 66)
        stamp(a, 4 * sl + 29 + 12 * lay)
        for k in range(5):
            for p in range(3):
                a('buffer_load_dwordx4 %s, v%d, %s, s%d offen sc1' % (vr(MM + 12 * k + 4 * p, 4), vIM, R4(WS), 67 + p))
                if k < 4:
                    a('s_add_u32 s%d, s%d, 8192' % (67 + p, 67 + p))
        for k in range(5):
            for p in range(3):
                a('s_waitcnt vmcnt(%d)' % (14 - 3 * k - p))
                emit(a, accum(X + 8 * k, MM + 12 * k + 4 * p, 4))
            per_k(k)

    def y_load(du, R, masked):
        a('s_add_u32 s67, s74, %d' % du)
        a('s_min_u32 s67, s67, 7')
        a('s_lshl_b32 s67, s67, 3')
        a('s_add_u32 s67, s67, s%d' % sX)
        a('s_mul_i32 s67, s67, 40960')
        a('s_add_u32 s67, s67, %s' % hex(YT))
        for k in range(5):
            if masked:
                a('s_mov_b64 exec, s[%d:%d]' % (MK[k], MK[k] + 1))
            if k & 1 == 0 and k:
                a('s_add_u32 s67, s67, 4096')
            a('buffer_load_dwordx4 %s, v%d, %s, s67 offen offset:%d sc1' % (vr(R + 4 * k, 4), vYG, R4(WS), 2048 * (k & 1)))

    def y_take(R, masked, young):
        for k in range(5):
            if masked:
                a('s_mov_b64 exec, s[%d:%d]' % (MK[k], MK[k] + 1))
            a('s_waitcnt vmcnt(%d)' % (young + 4 - k))
            a('v_max3_u32 v%d, v%d, v%d, v%d' % (vT0, R + 4 * k, R + 4 * k + 1, R + 4 * k + 2))
            a('ds_write_b128 v%d, %s offset:%d' % (vYP, vr(R + 4 * k, 4), 1024 * k))
            a('v_max_u32 v%d, v%d, v%d' % (vT0, vT0, R + 4 * k + 3))
            a('v_cmp_eq_u32 s[%d:%d], -1, v%d' % (MK[k], MK[k] + 1, vT0))
        if masked:
            a('s_mov_b64 exec, -1')
        a('s_or_b64 s[64:65], s[%d:%d], s[%d:%d]' % (MK[0], MK[0] + 1, MK[1], MK[1] + 1))
        a('s_or_b64 s[80:81], s[%d:%d], s[%d:%d]' % (MK[2], MK[2] + 1, MK[3], MK[3] + 1))
        a('s_or_b64 s[64:65], s[64:65], s[%d:%d]' % (MK[4], MK[4] + 1))
        a('s_or_b64 s[80:81], s[80:81], s[64:65]')

    def q_reads(sl, dl):
        a('s_add_u32 s66, s75, %d' % dl)
        a('v_add_u32 v%d, s66, v%d' % (vT0, vQA))
        for k in range(5):
            a('ds_read_b128 %s, v%d offset:%d' % (vr(XS + 40 * sl + 20 + 4 * k, 4), vT0, 256 * k))

    for sl in range(3):
        X = XS + 40 * sl
        head('A', sl)
        a('v_add_u32 v%d, s75, v%d' % (vYP, vL16))
        if sl == 0:
            q_reads(0, 0)
            for k in range(5):
                a('s_mov_b64 s[%d:%d], -1' % (MK[k], MK[k] + 1))
            a('s_waitcnt lgkmcnt(0)')
        else:
            y_take(X, False, 6 if sl == 1 else 1)
            a('s_waitcnt lgkmcnt(5)')
        for k in range(5):
            emit(a, unpack(X + 8 * k, X + 20 + 4 * k, 4))
            emit(a, sums(X, TS, k))
        emit(a, finish(TS, False))
        emit(a, norm(DD, X, 40))
        stamp(a, 4 * sl + 16)
        def fetch(sl=sl):
            a.label('SA_F%d' % sl)
            a('s_mov_b32 s%d, 0' % sCNT)
            a.label('SA_YL%d' % sl)
            y_load(0, ZP, True)
            a('s_add_u32 s%d, s%d, 1' % (sCNT, sCNT))
            y_take(ZP, True, 0)
            a('s_cbranch_scc0 SA_G%d' % sl)
            a('s_cmp_lt_u32 s%d, s%d' % (sCNT, sLIM))
            a('s_cbranch_scc1 SA_YL%d' % sl)
            a('s_mov_b32 s%d, 0' % sLIM)
            if sl:
                a('s_branch SA_G%d' % sl)
        if sl == 0:
            fetch()
        else:
            a('s_cmp_lg_u64 s[80:81], 0')
            a('s_cbranch_scc1 SA_F%d' % sl)
            ool.add(fetch)
        a.label('SA_G%d' % sl)
        stamp(a, 4 * sl + 17)
        a('v_mov_b32 v%d, %d' % (vYP + 3, sl + 1))
        a('ds_write_b32 v%d, v%d' % (vYP + 1, vYP + 3))
        a('ds_read_b128 %s, v%d' % (vr(ZP, 4), vYP + 2))
        cnt_spin(a, ool, ZP, vYP + 2, vYP + 3)
        y_reads()
        stamp(a, 4 * sl + 18)
        for k in range(5):
            a('s_waitcnt lgkmcnt(%d)' % (8 - 2 * k))
            emit(a, unpack(YU + 8 * k, ZP + 4 * k, 4))
            emit(a, gate(k, X))
            emit(a, sums(X, TS, k))
        def mid(sl=sl):
            a('s_waitcnt vmcnt(5)')
            q_reads(sl + 1, 40960)
            y_load(3, XS + 40 * sl + 40, False)
            a('s_waitcnt vmcnt(5)')
        z_out(0, X, mid if sl < 2 else None)
        stamp(a, 4 * sl + 19)
        if sl == 0:
            q_dma(a, 2, PS)
            a('s_cmp_lg_u32 s2, 232')
            a('s_cbranch_scc1 SA_E')
            a('s_cmp_lg_u32 s%d, 0' % sW)
            a('s_cbranch_scc1 SA_E')
            a('s_mov_b32 s66, 0')
            flag_store(a, 66, vZ, True)
            a.label('SA_E')
    a.label('SA_END')
    for sl in range(3):
        X = XS + 40 * sl
        head('B', sl)
        y_reads()
        for k in range(5):
            a('s_waitcnt lgkmcnt(%d)' % (8 - 2 * k))
            emit(a, unpack(YU + 8 * k, ZP + 4 * k, 4))
        stamp(a, 4 * sl + 28)
        m_in(0, sl, X, lambda k: emit(a, sums(X, TS, k)))
        stamp(a, 4 * sl + 30)
        emit(a, finish(TS, False))
        for k in range(5):
            emit(a, norm(DD + 8 * k, X + 8 * k, 8))
            emit(a, gate(k, X))
            emit(a, sums(X, TS, k))
        z_out(1, X)
        stamp(a, 4 * sl + 31)
    a.label('SB_END')
    row_table(a, YU, YU + 6)
    for sl in range(3):
        X = XS + 40 * sl
        head('C', sl)
        a('v_add_u32 v%d, s75, v%d' % (vT0, vQA))
        for k in range(5):
            a('v_add_u32 v%d, s75, v%d' % (PS + k, YU + k))
        a('s_add_u32 s77, s73, %d' % (768 * 1280 * sl))
        stamp(a, 4 * sl + 40)
        def ck(k):
            for i in range(4):
                a('v_cvt_pk_bf16_f32 v%d, v%d, v%d' % (YU + 8 + 4 * k + i, X + 8 * k + 2 * i, X + 8 * k + 2 * i + 1))
            a('ds_write_b128 v%d, %s offset:%d' % (vT0, vr(YU + 8 + 4 * k, 4), 256 * k))
        m_in(1, sl, X, ck)
        stamp(a, 4 * sl + 42)
        for k in range(5):
            a('ds_read_b128 %s, v%d' % (vr(MM + 4 * k, 4), PS + k))
        a('s_add_u32 s66, s77, 4096')
        for k in range(5):
            a('s_waitcnt lgkmcnt(%d)' % (4 - k))
            a('buffer_store_dwordx4 %s, v%d, %s, s%d offen offset:%d' % (vr(MM + 4 * k, 4), vL16, R4(RB), 77 if k < 4 else 66, 1024 * (k & 3)))
        stamp(a, 4 * sl + 43)
    a.label('SC_END')
    endk(a, 0)
    ool.flush()


def kernel():
    a = Asm()
    c1 = -2.0 * math.sqrt(2.0 / math.pi) * math.log2(math.e)
    a('s_cmp_ge_u32 s2, 256')
    a('s_cbranch_scc1 END')
    a('s_load_dwordx2 s[26:27], s[0:1], 104')
    a('s_load_dwordx4 s[4:7], s[0:1], 0')
    a('s_load_dwordx4 s[8:11], s[0:1], 16')
    a('s_load_dwordx4 s[12:15], s[0:1], 32')
    a('s_load_dwordx4 s[16:19], s[0:1], 56')
    a('s_load_dwordx4 s[20:23], s[0:1], 72')
    a('s_load_dwordx2 s[24:25], s[0:1], 88')
    a('v_lshrrev_b32 v1, 6, v0')
    a('v_readfirstlane_b32 s%d, v1' % sW)
    a('v_and_b32 v%d, 63, v0' % vL)
    a('v_lshlrev_b32 v%d, 4, v%d' % (vL16, vL))
    a('v_lshlrev_b32 v%d, 2, v%d' % (vL4, vL))
    a('s_and_b32 s%d, s2, 7' % sX)
    a('s_lshr_b32 s%d, s2, 3' % sI)
    a('s_and_b32 s%d, s%d, 3' % (sQ, sW))
    a('s_lshr_b32 s%d, s%d, 2' % (sHF, sW))
    if STAMP:
        a('v_mov_b32 v%d, 0' % vST)
    for r in (12, 13, 14, 15):
        a('v_mov_b32 v%d, 0' % r)
    a('v_add_u32 v4, %d, v%d' % (L_SYNC, vL4))
    a('ds_write_b32 v4, v12')
    a('ds_write_b32 v%d, v12 offset:%d' % (vL4, 2 * CSL))
    a('v_add_u32 v4, %d, v%d' % (4 * CSL, vL4))
    a('ds_write_b32 v4, v12')
    a('s_lshl_b32 s64, s%d, 10' % sW)
    a('s_add_u32 s64, s64, %d' % L_KST)
    a('v_add_u32 v4, s64, v%d' % vL16)
    a('ds_write_b128 v4, v[12:15]')
    a('s_movk_i32 s65, 5958')
    a('s_movk_i32 s66, 1104')
    a('s_add_u32 s67, s%d, 8' % sQ)
    a('s_lshl_b32 s67, s67, 6')
    for d, src in ((8, 'v0'), (9, None)):
        if src is None:
            a('v_add_u32 v9, s67, v%d' % vL)
            src = 'v9'
        a('v_mul_u32_u24 v10, s65, %s' % src)
        a('v_lshrrev_b32 v10, 16, v10')
        a('v_mul_u32_u24 v11, 11, v10')
        a('v_sub_u32 v11, %s, v11' % src)
        a('v_lshlrev_b32 v%d, 4, %s' % (d, src))
        a('v_mad_u32_u24 v%d, v10, s66, v%d' % (d, d))
        a('v_cmp_eq_u32 vcc, 10, v11')
        a('v_mov_b32 v11, 0x40000000')
        a('v_cndmask_b32 v%d, v%d, v11, vcc' % (d, d))
    a('s_mul_i32 s65, s%d, %d' % (sI, 64 * 1280))
    a('s_mul_i32 s66, s%d, 160' % sX)
    a('s_add_u32 s65, s65, s66')
    a('s_sub_u32 s66, s65, 5120')
    a('v_add_u32 v10, s66, v8')
    a('v_add_u32 v8, s65, v8')
    a('s_cmp_eq_u32 s%d, 0' % sHF)
    a('s_cselect_b32 s65, s66, s65')
    a('v_add_u32 v9, s65, v9')
    a('s_getreg_b32 s%d, hwreg(HW_REG_XCC_ID, 0, 3)' % sXCC)
    a('s_mov_b32 s%d, %d' % (sLIM, LIMIT))
    a('s_mov_b32 s%d, 0xffff0000' % sHI)
    a('s_mov_b32 s%d, 0x3acccccd' % sINV)
    a('s_mov_b32 s%d, 0x3727c5ac' % sEPS)
    a('s_mov_b32 s%d, %s' % (sC2, f2h(c1 * 0.044715)))
    a('s_mov_b32 s%d, 0x3f80' % sLO1)
    a('s_mov_b32 s%d, 0x3f800000' % sHI1)
    a('s_mov_b32 s%d, 0' % sSLOW)
    a('s_mov_b32 m0, s64')
    a('s_waitcnt lgkmcnt(0)')
    srd(a, WS, pWS, '0x10000000')
    srd(a, RB, pK, hex(ROWS_B))
    srd(a, RC, pV, hex(ROWS_B))
    a('buffer_load_dword v4, off, %s, 0 sc1' % R4(WS))
    a('buffer_load_dwordx4 v10, %s, 0 offen lds' % R4(RB))
    a('s_add_u32 m0, s64, %d' % (L_VST - L_KST))
    a('buffer_load_dwordx4 v8, %s, 0 offen lds' % R4(RC))
    a('s_cmp_eq_u32 s%d, 0' % sHF)
    a('s_cselect_b64 s[%d:%d], s[%d:%d], s[%d:%d]' % (RC, RC + 1, RB, RB + 1, RC, RC + 1))
    a('s_cselect_b32 s65, %d, s%d' % (L_KST + 8192, sLIM))
    a('s_cselect_b32 s66, 0, %d' % (L_VST + 8192 - LIMIT))
    a('s_add_u32 s65, s65, s66')
    a('s_lshl_b32 s66, s%d, 10' % sQ)
    a('s_add_u32 m0, s65, s66')
    a('buffer_load_dwordx4 v9, %s, 0 offen lds' % R4(RC))
    for r in (RA, RD):
        a('s_mov_b64 s[%d:%d], s[%d:%d]' % (r, r + 1, WS, WS + 1))
        a('s_mov_b64 s[%d:%d], s[%d:%d]' % (r + 2, r + 3, WS + 2, WS + 3))
    for r in range(QT, QT + 5):
        a('v_mov_b32 v%d, 0' % r)
    stamp(a, 0)
    a('s_barrier')
    a('s_cmp_ge_u32 s%d, 5' % sW)
    a('s_cbranch_scc1 E_BLD')
    for kvw in (1, 0):
        if not kvw:
            a.label('E_BLD')
        a('s_cmp_ge_u32 s%d, 29' % sI)
        a('s_cbranch_scc1 E_%d0' % kvw)
        a('s_cmp_ge_u32 s%d, 14' % sI)
        a('s_cbranch_scc1 E_%d2' % kvw)
        early(a, 1, kvw)
        a.label('E_%d2' % kvw)
        early(a, 2, kvw)
        a.label('E_%d0' % kvw)
        early(a, 0, kvw)
    kv_phase(a)
    conv_phase(a)
    g_phase(a, 1)
    g_phase(a, 2)
    s_phase(a)
    a.label('END')
    a('s_endpgm')
    return a.lines


def build():
    ref = open('cdna_kernels/%s.s.ref' % NAME).read().split('\n')
    head = [l for l in ref if l.startswith(';') and '@launch' not in l and 'Override launch' not in l and 'grid=ceil' not in l]
    s = '\n'.join(head) + '\n'
    s += '; @launch grid=(256,1,1) block=(512,1,1) lds=163840\n'
    s += '.amdgcn_target "amdgcn-amd-amdhsa--gfx950"\n.text\n'
    s += kernel_text(NAME + '_kernel', kernel(), 256)
    s += '.section .rodata,"a"\n'
    s += descriptor_text(NAME + '_kernel', 256, 102)
    return s


if __name__ == '__main__':
    open(sys.argv[1], 'w').write(build())
```

```python
import sys, os, math, struct
from asmlib import *

NAME = 'interleave_layers__ssm_conv_h3__mixer_channel_mlp__prompt'
E = lambda k, d: int(os.environ.get(k, d))
STAMP, FORCE_SLOW, LIMIT = E('STAMP', 0), E('FORCE_SLOW', 0), 20000
NA1, NA2 = E('NA1', 12), E('NA2', 0)
PA, P1, P2_ = E('PA', 24), E('P1', 12), E('P2', 6)
PF1, PF2 = E('PF1', 1), E('PF2', 1)
B0 = E('B0', 1)
PB = E('PB', 24)
P1A, P2A = E('P1A', 0), E('P2A', 0)
RL = E('RL', 0)
CU_ = [int(x) for x in os.environ.get('CUN', '8,4,2,2,2').split(',')]
HFK, PLK, DST = E('HFK', 8), E('PLK', 12), E('DST', 6)
PRIO = [int(x) for x in os.environ.get('PRIO', '1,2,0').split(',')]
PRK = E('PRK', 8)
SMOOTH = E('SMOOTH', 1)
EARLYF = E('EARLYF', 0)
SPA = [int(x) for x in os.environ.get('SPA', '2,3').split(',')]
SPB = [int(x) for x in os.environ.get('SPB', '1,2,3').split(',')]
SPC = E('SPC', 0)
WBL = E('WBL', 0)
OSC = E('OSC', 0)
NOCHK = E('NOCHK', 0)

EPOCH, HELLO, KVFA, KVFB, CLR, ZF, HFL, MFL, DUMMY = 0, 0x40000, 0x2000, 0x4000, 0x50000, 0xC000, 0x10000, 0x20000, 0x30000
KVA, KVB, YT, ZI, HB, MR = 0x100000, 0x400000, 0x700000, 0x1000000, 0x1400000, 0x1C00000
ZSL, HSL, MSL = 40960, 114688, 122880
STAMPS = 0x8000000
ROWS_B = 2048 * 1280
L_KST, L_VST, L_OST, L_SYNC = 122880, 135168, 147456, 163328
CSL, CUO, HSTR = 21248, 16640, 4160
RING = {1: 45056, 2: 86016}
LF_LND, LF_DON, LF_I0 = L_SYNC, L_SYNC + 32, L_SYNC + 64
pQ, pK, pV, pSH, pH, pD, pW1, pB1, pW2, pB2, pOUT, pWS = 4, 6, 8, 10, 12, 14, 16, 18, 20, 22, 24, 26
sX, sW, sI, sQ = 28, 29, 30, 31
WS, RA, RB, RC, RD = 32, 36, 40, 44, 48
sHF, sTAG, sXCC, sSLOW, sP, sLIM, sCNT = 52, 53, 54, 55, 56, 57, 58
sHI, sINV, sEPS, sC2 = 59, 60, 61, 62
sLO1, sHI1 = 89, 90
sST = 86
sWO, sWL, sWS = 91, 92, 93
vL, vL16, vL4, vST = 1, 2, 3, 7
vWO, vWT = 8, 9
WB = {1: 96, 2: 112}
NK = {1: 40, 2: 36}
RS = {1: 3456, 2: 1280}
NA = {1: NA1, 2: NA2}
NR = {1: 29, 2: 19}
NC = {1: 11, 2: 17}
DUM = {1: 252, 2: 96}
assert NA1 <= 19 and NA2 in (0, 3, 6, 9)

f2h = lambda x: hex(struct.unpack('<I', struct.pack('<f', x))[0])
R4 = lambda d: 's[%d:%d]' % (d, d + 3)
P2 = lambda r: 'v[%d:%d]' % (r, r + 1)


def srd(a, d, p, size, add=None):
    if add is None:
        a('s_mov_b32 s%d, s%d' % (d, p)); a('s_mov_b32 s%d, s%d' % (d + 1, p + 1))
    else:
        a('s_add_u32 s%d, s%d, %s' % (d, p, add)); a('s_addc_u32 s%d, s%d, 0' % (d + 1, p + 1))
    a('s_mov_b32 s%d, %s' % (d + 2, size)); a('s_mov_b32 s%d, 0x20000' % (d + 3))


def stamp(a, idx):
    if not STAMP:
        return
    a('%s s[%d:%d]' % ('s_memtime' if os.environ.get('CLK') else 's_memrealtime', sST, sST + 1))
    if isinstance(idx, tuple):
        a('s_mul_i32 s88, s%d, %d' % (idx[0], idx[1]))
        a('s_add_u32 s88, s88, %d' % idx[2])
        a('s_lshl_b64 exec, 1, s88')
        a('s_waitcnt lgkmcnt(0)')
        a('v_mov_b32 v%d, s%d' % (vST, sST))
        a('s_mov_b64 exec, -1')
    else:
        a('s_waitcnt lgkmcnt(0)')
        a('v_writelane_b32 v%d, s%d, %d' % (vST, sST, idx))


DBGMAP = {1: {0: 1, 3: 2, 6: 3, 10: 6, 16: 7, 44: 10, 63: 12, 12: 15},
          2: {0: 1, 3: 2, 6: 3, 10: 8, 16: 9, 44: 11, 63: 13},
          0: {0: 1, 3: 2, 17: 4, 19: 5, 63: 14}}


def endk(a, role):
    if STAMP == 2:
        a('s_waitcnt vmcnt(0)')
        stamp(a, 63)
        if role:
            a('s_cmp_lg_u32 s%d, %d' % (sI, 3 if role == 1 else 17))
            a('s_cbranch_scc1 END')
            a('s_and_b32 s63, s%d, 3' % sW)
            a('s_cmp_lg_u32 s63, %d' % (3 if role == 1 else 0))
            a('s_cbranch_scc1 END')
        else:
            a('s_cmp_lg_u32 s%d, 0' % sQ)
            a('s_cbranch_scc1 END')
        a('s_load_dwordx2 s[64:65], s[0:1], 96')
        a('v_readlane_b32 s63, v%d, 0' % vST)
        a('s_not_b32 s63, s63')
        a('v_writelane_b32 v%d, s63, 62' % vST)
        a('v_mov_b32 v10, 0x1000')
        for k, w in list(DBGMAP[role].items()) + [(62, 0)]:
            a('s_movk_i32 s63, %d' % (4 * w))
            a('v_writelane_b32 v10, s63, %d' % k)
        a('s_waitcnt lgkmcnt(0)')
        srd(a, RD, 64, 256)
        a('buffer_atomic_umax v%d, v10, %s, 0 offen sc1' % (vST, R4(RD)))
    elif STAMP:
        a('s_waitcnt vmcnt(0)')
        stamp(a, 63)
        a('s_lshl_b32 s63, s2, 3')
        a('s_add_u32 s63, s63, s%d' % sW)
        a('s_lshl_b32 s63, s63, 8')
        a('s_add_u32 s63, s63, %s' % hex(STAMPS))
        a('s_mov_b64 exec, -1')
        a('v_mbcnt_lo_u32_b32 v10, -1, 0')
        a('v_mbcnt_hi_u32_b32 v10, -1, v10')
        a('v_lshlrev_b32 v10, 2, v10')
        a('buffer_store_dword v%d, v10, %s, s63 offen' % (vST, R4(WS)))
    a('s_endpgm')


def setexec(a, n):
    if n == 64:
        a('s_mov_b64 exec, -1')
    elif n <= 6:
        a('s_mov_b64 exec, %d' % ((1 << n) - 1))
    elif n <= 32:
        a('s_mov_b32 exec_lo, %s' % ('-1' if n == 32 else hex((1 << n) - 1))); a('s_mov_b32 exec_hi, 0')
    else:
        a('s_mov_b32 exec_lo, -1'); a('s_mov_b32 exec_hi, %s' % hex((1 << (n - 32)) - 1))


def emit(a, lst):
    for l in lst:
        a(l)


def flag_store(a, soff, vT, sc1):
    a('v_mov_b32 v%d, s%d' % (vT, sTAG))
    a('s_mov_b64 exec, 1')
    a('buffer_store_dword v%d, off, %s, s%d%s' % (vT, R4(WS), soff, ' sc1' if sc1 else ''))
    a('s_mov_b64 exec, -1')


def hello_load(a, vT, st):
    a('s_lshl_b32 s%d, s%d, 12' % (st, sX))
    a('s_add_u32 s%d, s%d, %d' % (st, st, HELLO))
    a('v_and_b32 v%d, 0x7c, v%d' % (vT + 2, vL4))
    a('v_lshlrev_b32 v%d, 5, v%d' % (vT + 2, vT + 2))
    a('buffer_load_dword v%d, v%d, %s, s%d offen sc1' % (vT, vT + 2, R4(WS), st))


def hello_store(a, young):
    a('s_lshl_b32 s66, s2, 7')
    a('s_and_b32 s66, s66, 0x380')
    a('s_lshl_b32 s66, s66, 5')
    a('s_lshl_b32 s67, s%d, 7' % sI)
    a('s_add_u32 s66, s66, s67')
    a('s_add_u32 s66, s66, %d' % HELLO)
    a('s_cmp_eq_u32 s%d, 7' % sW)
    a('s_cselect_b32 s67, 0, 0x10000000')
    a('v_mov_b32 v5, s67')
    a('s_lshl_b32 s67, s%d, 1' % sXCC)
    a('s_waitcnt vmcnt(%d)' % young)
    get_tag(a, 4)
    a('s_xor_b32 s67, s67, s%d' % sTAG)
    a('v_mov_b32 v4, s67')
    a('s_mov_b64 exec, 1')
    a('buffer_store_dword v4, v5, %s, s66 offen sc1' % R4(WS))
    a('s_mov_b64 exec, -1')


def hello_check(a, vT, st, young):
    L, C, D = a.newlabel('HL'), a.newlabel('HC'), a.newlabel('HD')
    a('s_mov_b32 s%d, 0' % sCNT)
    a('s_waitcnt vmcnt(%d)' % young)
    a('s_branch %s' % C)
    a.label(L)
    a('buffer_load_dword v%d, v%d, %s, s%d offen sc1' % (vT, vT + 2, R4(WS), st))
    a('s_add_u32 s%d, s%d, 1' % (sCNT, sCNT))
    a('s_waitcnt vmcnt(0)')
    a.label(C)
    a('v_xor_b32 v%d, s%d, v%d' % (vT, sTAG, vT))
    a('v_cmp_lt_u32 vcc, 15, v%d' % vT)
    a('v_and_b32 v%d, 1, v%d' % (vT + 1, vT))
    a('v_cmp_ne_u32 s[64:65], 0, v%d' % (vT + 1))
    a('s_or_b64 vcc, vcc, s[64:65]')
    a('s_cbranch_vccz %s' % D)
    a('s_cmp_lt_u32 s%d, s%d' % (sCNT, sLIM))
    a('s_cbranch_scc1 %s' % L)
    a('s_mov_b32 s%d, 0' % sLIM)
    a.label(D)
    a('s_lshl_b32 s%d, s%d, 1' % (st, sXCC))
    a('v_cmp_ne_u32 vcc, s%d, v%d' % (st, vT))
    a('s_cmp_lg_u64 vcc, 0')
    a('s_cselect_b32 s%d, 1, %d' % (sSLOW, FORCE_SLOW))


def get_tag(a, vE):
    a('v_readfirstlane_b32 s%d, v%d' % (sTAG, vE))
    a('s_mul_i32 s%d, s%d, 0x9E3779B1' % (sTAG, sTAG))
    a('s_add_u32 s%d, s%d, 0x7F4A7C15' % (sTAG, sTAG))


class Ool:
    def __init__(self, a):
        self.a, self.q = a, []
    def add(self, fn):
        self.q.append(fn)
    def flush(self):
        while self.q:
            self.q.pop(0)()


def both2(a, ool, texts):
    if isinstance(texts, str):
        texts = [texts]
    S, R = a.newlabel('BS'), a.newlabel('BR')
    def slow():
        a.label(S)
        for t in texts:
            a(t + ' sc1' if t.startswith('buffer_') else t)
        a('s_branch %s' % R)
    ool.add(slow)
    return ['s_cmp_lg_u32 s%d, 0' % sSLOW, 's_cbranch_scc1 %s' % S] + texts + [R + ':']


def oob_lane0(a, v):
    a('v_cmp_eq_u32 vcc, 0, v%d' % vL4)
    a('v_mov_b32 v%d, 0x10000000' % v)
    a('v_cndmask_b32_e64 v%d, v%d, 0, vcc' % (v, v))


def cnt_min(X):
    return ['v_min_u32 v%d, v%d, v%d' % (X, X, X + 1), 'v_min3_u32 v%d, v%d, v%d, v%d' % (X, X, X + 2, X + 3)]


def cnt_spin(a, ool, X, vLine, vCnt, pre=None):
    S, R = a.newlabel('CS'), a.newlabel('CR')
    def spin():
        L = a.newlabel('CL')
        a.label(S)
        if pre:
            pre()
        a('s_mov_b32 s%d, 0' % sCNT)
        a.label(L)
        a('ds_read_b128 %s, v%d' % (vr(X, 4), vLine))
        a('s_add_u32 s%d, s%d, 1' % (sCNT, sCNT))
        a('s_waitcnt lgkmcnt(0)')
        emit(a, cnt_min(X))
        a('v_cmp_gt_u32 vcc, v%d, v%d' % (vCnt, X))
        a('s_cbranch_vccz %s' % R)
        a('s_cmp_lt_u32 s%d, %d' % (sCNT, 4 * LIMIT))
        a('s_cbranch_scc1 %s' % L)
        a('s_branch %s' % R)
    ool.add(spin)
    a('s_waitcnt lgkmcnt(0)')
    emit(a, cnt_min(X))
    a('v_cmp_gt_u32 vcc, v%d, v%d' % (vCnt, X))
    a('s_cbranch_vccnz %s' % S)
    a.label(R)


def block_poll(a, v, vOff, so):
    L, D = a.newlabel('PL'), a.newlabel('PD')
    a('s_mov_b32 s%d, 0' % sCNT)
    a.label(L)
    a('buffer_load_dword v%d, v%d, %s, s%d offen sc1' % (v, vOff, R4(WS), so))
    a('s_add_u32 s%d, s%d, 1' % (sCNT, sCNT))
    a('s_waitcnt vmcnt(0)')
    a('v_cmp_ne_u32 vcc, s%d, v%d' % (sTAG, v))
    a('s_cbranch_vccz %s' % D)
    a('s_cmp_lt_u32 s%d, s%d' % (sCNT, sLIM))
    a('s_cbranch_scc1 %s' % L)
    a('s_mov_b32 s%d, 0' % sLIM)
    a.label(D)


def dummy_off(a, sD):
    a('s_lshl_b32 s%d, s2, 7' % sD)
    a('s_lshl_b32 s63, s%d, 2' % sW)
    a('s_add_u32 s%d, s%d, s63' % (sD, sD))
    a('s_add_u32 s%d, s%d, %d' % (sD, sD, DUMMY))


class LdsQ:
    def __init__(self, a):
        self.a, self.q = a, []
    def issue(self, key, text):
        self.a(text); self.q.append(key)
    def wait(self, keys):
        last = -1
        for i, k in enumerate(self.q):
            if k in keys:
                last = i
        if last >= 0:
            n = len(self.q) - 1 - last
            self.a('s_waitcnt lgkmcnt(%d)' % n)
            self.q = self.q[last + 1:]


def g2_ids(a, sk, sc):
    a('s_sub_u32 s%d, s%d, 14' % (sc, sI))
    a('s_mul_i32 s%d, s%d, 52' % (sk, sc))
    a('s_lshr_b32 s%d, s%d, 8' % (sk, sk))
    a('s_mul_i32 s63, s%d, 5' % sk)
    a('s_sub_u32 s%d, s%d, s63' % (sc, sc))


def w_setup(a, g):
    if g == 1:
        srd(a, RA, pW1, 640 * 3456)
        a('s_lshl_b32 s66, s%d, 8' % sI)
    else:
        srd(a, RA, pW2, 1728 * 1280)
        g2_ids(a, 66, 67)
        a('s_mul_i32 s66, s66, %d' % (576 * 1280))
        a('s_lshl_b32 s67, s67, 8')
        a('s_add_u32 s66, s66, s67')
    a('v_lshrrev_b32 v10, 4, v%d' % vL)
    a('v_bfe_u32 v11, v%d, 2, 2' % vL)
    a('v_xor_b32 v12, v10, v11')
    a('v_and_b32 v13, 3, v%d' % vL)
    a('v_lshl_add_u32 v12, v12, 2, v13')
    a('v_mul_u32_u24 v%d, %d, v10' % (vWO, RS[g]))
    a('v_lshl_add_u32 v%d, v12, 4, v%d' % (vWO, vWO))
    a('v_add_u32 v%d, s66, v%d' % (vWO, vWO))
    a('v_lshrrev_b32 v12, 5, v%d' % vL)
    a('v_lshl_add_u32 v12, v12, 3, v11')
    a('v_lshlrev_b32 v%d, 8, v12' % vWT)
    a('v_xor_b32 v12, s%d, v11' % sQ)
    a('v_lshl_add_u32 v%d, v12, 6, v%d' % (vWT, vWT))
    a('v_and_b32 v12, 1, v13')
    a('v_lshl_add_u32 v%d, v12, 5, v%d' % (vWT, vWT))
    a('v_and_b32 v12, 1, v10')
    a('v_lshl_add_u32 v%d, v12, 4, v%d' % (vWT, vWT))
    a('v_lshrrev_b32 v12, 1, v13')
    a('v_lshl_add_u32 v%d, v12, 3, v%d' % (vWT, vWT))


def w_begin(a, g, ks0, sIdx, sub, nw, lds):
    a('s_sub_u32 s63, s%d, %d' % (sIdx, sub))
    a('s_lshl_b32 s%d, s63, 10' % sWL)
    a('s_add_u32 s%d, s%d, %d' % (sWL, sWL, lds))
    a('s_add_u32 s63, s63, %d' % (4 * ks0))
    a('s_mul_i32 s%d, s63, %d' % (sWO, 4 * RS[g]))
    a('s_mov_b32 s%d, %d' % (sWS, 4 * RS[g] * nw))


def w_piece(nw):
    return ['s_mov_b32 m0, s%d' % sWL, 's_add_u32 s%d, s%d, %d' % (sWL, sWL, 1024 * nw),
            'buffer_load_dwordx4 v%d, %s, s%d offen lds' % (vWO, R4(RA), sWO), 's_add_u32 s%d, s%d, s%d' % (sWO, sWO, sWS)]


def w_stream(a, n, nw, P, dummy=None):
    if n == 0:
        return
    L = a.newlabel('WS')
    a('s_mov_b32 s63, %d' % n)
    a.label(L)
    a('s_waitcnt vmcnt(%d)' % (P - 1))
    if dummy is None:
        emit(a, w_piece(nw))
    else:
        a('buffer_load_dwordx4 %s, v%d, %s, s%d offen' % (vr(dummy, 4), vWO, R4(RA), sWO))
        a('s_add_u32 s%d, s%d, s%d' % (sWO, sWO, sWS))
    a('s_sub_u32 s63, s63, 1')
    a('s_cmp_lg_u32 s63, 0')
    a('s_cbranch_scc1 %s' % L)


def w_read(a, g, ks0, n, lds):
    a('v_add_u32 v10, %d, v%d' % (lds, vWT))
    for k in range(n):
        if k == 16:
            a('v_add_u32 v10, 0x10000, v10')
        for hh in range(2):
            a('ds_read_b64_tr_b16 %s, v10 offset:%d' % (vr(WB[g] + 4 * (ks0 + k) + 2 * hh, 2), 4096 * (k & 15) + 1024 * hh))
        if k % 4 == 3:
            a('s_waitcnt lgkmcnt(6)')
    a('s_waitcnt lgkmcnt(0)')


TAP = 16
HQ, HD = (16, 100), (40, 124)
QT = 76


def conv_channel(a, g, sSlot, sCh, sDum):
    if g == 1:
        a('s_lshl_b32 s%d, s%d, 1' % (sCh, sI))
    else:
        a('s_lshl_b32 s%d, s%d, 2' % (sCh, sI))
        a('s_sub_u32 s%d, s%d, 28' % (sCh, sCh))
    a('s_add_u32 s%d, s%d, s%d' % (sCh, sCh, sSlot))
    a('s_cmp_ge_u32 s%d, 80' % sCh)
    a('s_cselect_b32 s%d, 1, 0' % sDum)
    a('s_cselect_b32 s63, 80, 0')
    a('s_sub_u32 s%d, s%d, s63' % (sCh, sCh))


def ssm_loads(a, g, sSlot, n):
    conv_channel(a, g, sSlot, 66, 67)
    a('s_mul_i32 s67, s%d, 80' % sX)
    a('s_add_u32 s66, s66, s67')
    a('s_lshl_b32 s66, s66, 12')
    srd(a, RD, pH, 4096, 's66')
    a('v_subrev_u32 v10, 32, v%d' % vL16)
    a('v_subrev_u32 v11, 16, v%d' % vL16)
    a('v_add_u32 v12, 992, v%d' % vL16)
    a('buffer_load_dwordx4 %s, v10, %s, 0 offen' % (vr(HQ[n], 4), R4(RD)))
    a('buffer_load_dwordx2 %s, v11, %s, 0 offen' % (vr(HD[n], 2), R4(RD)))
    for j in range(1, 5):
        a('buffer_load_dwordx4 %s, v12, %s, 0 offen offset:%d' % (vr(HQ[n] + 4 * j, 4), R4(RD), 1024 * (j - 1)))
        a('buffer_load_dwordx2 %s, v12, %s, 0 offen offset:%d' % (vr(HD[n] + 2 * j, 2), R4(RD), 1024 * (j - 1) + 16))


def ssm_build(a, sSlot, n):
    a('s_mul_i32 s66, s%d, %d' % (sSlot, CSL))
    a('v_add_u32 v5, s66, v%d' % vL16)
    for r in range(4):
        a('v_mov_b32 v%d, 0' % (56 + r))
    setexec(a, 32)
    a('ds_write_b128 v5, v[56:59] offset:%d' % (CUO + 4096))
    setexec(a, 64)
    for j in range(5):
        if j == 4:
            a('s_mov_b64 exec, 3')
        d = [HQ[n] + 4 * j + e for e in range(4)] + [HD[n] + 2 * j, HD[n] + 2 * j + 1]
        T1, T2, T3 = 60 + 12 * (j & 1), 64 + 12 * (j & 1), 68 + 12 * (j & 1)
        a('ds_write_b128 v5, %s offset:%d' % (vr(d[0], 4), 1024 * j))
        for e in range(4):
            a('v_alignbit_b32 v%d, v%d, v%d, 16' % (T1 + e, d[e + 1], d[e]))
        a('ds_write_b128 v5, %s offset:%d' % (vr(T1, 4), 1024 * j + HSTR))
        for e in range(4):
            a('v_mov_b32 v%d, v%d' % (T2 + e, d[e + 1]))
        a('ds_write_b128 v5, %s offset:%d' % (vr(T2, 4), 1024 * j + 2 * HSTR))
        for e in range(4):
            a('v_alignbit_b32 v%d, v%d, v%d, 16' % (T3 + e, d[e + 2], d[e + 1]))
        a('ds_write_b128 v5, %s offset:%d' % (vr(T3, 4), 1024 * j + 3 * HSTR))
        if j & 1:
            a('s_waitcnt lgkmcnt(4)')
    setexec(a, 64)


def row_table(a, T, tmp):
    a('s_movk_i32 s63, 820')
    for k in range(5):
        a('v_add_u32 v%d, %d, v%d' % (tmp, 64 * k, vL))
        a('v_mul_u32_u24 v%d, s63, v%d' % (tmp + 1, tmp))
        a('v_lshrrev_b32 v%d, 16, v%d' % (tmp + 1, tmp + 1))
        a('v_lshlrev_b32 v%d, 1, v%d' % (tmp + 1, tmp + 1))
        a('v_xor_b32 v%d, v%d, v%d' % (tmp, tmp, tmp + 1))
        a('v_lshlrev_b32 v%d, 4, v%d' % (T + k, tmp))


def s_ids(a, hf=sHF, q=sQ):
    a('s_sub_u32 s70, s%d, 29' % sI)
    a('s_mul_i32 s71, s%d, 3' % hf)
    a('s_add_u32 s70, s70, s71')
    a('s_and_b32 s71, s70, 1')
    a('s_lshr_b32 s70, s70, 1')
    a('s_mul_i32 s72, s%d, 20480' % hf)
    a('s_mul_i32 s63, s%d, 5120' % q)
    a('s_add_u32 s72, s72, s63')
    a('s_lshl_b32 s73, s70, 8')
    a('s_lshl_b32 s63, s%d, 5' % sX)
    a('s_add_u32 s73, s73, s63')
    a('s_lshl_b32 s63, s71, 4')
    a('s_add_u32 s73, s73, s63')
    a('s_lshl_b32 s63, s%d, 2' % q)
    a('s_add_u32 s73, s73, s63')
    a('s_mul_i32 s73, s73, 1280')


def q_dma(a, s, QT=QT):
    a('s_add_u32 s66, s73, %d' % (768 * 1280 * s))
    a('s_min_u32 s66, s66, %d' % (ROWS_B - 5120))
    for k in range(5):
        a('s_add_u32 m0, s72, %d' % (40960 * s + 1024 * k))
        a('buffer_load_dwordx4 v%d, %s, s66 offen lds' % (QT + k, R4(RA)))


def clear(a):
    a('s_cmp_eq_u32 s%d, 6' % sW)
    a('s_cselect_b32 s67, 0, 0x10000000')
    a('v_add_u32 v6, s67, v%d' % vL16)
    for r in range(4):
        a('v_mov_b32 v%d, -1' % (12 + r))
    a('s_lshr_b32 s66, s%d, 2' % sI)
    a('s_lshl_b32 s66, s66, 3')
    a('s_add_u32 s66, s66, s%d' % sX)
    a('s_lshl_b32 s66, s66, 2')
    a('s_and_b32 s67, s%d, 3' % sI)
    a('s_add_u32 s66, s66, s67')
    a('s_mul_i32 s66, s66, 10240')
    a('s_add_u32 s66, s66, %s' % hex(YT))
    for k in range(10):
        if k and k % 4 == 0:
            a('s_add_u32 s66, s66, 4096')
        a('buffer_store_dwordx4 v[12:15], v6, %s, s66 offen offset:%d sc1' % (R4(WS), 1024 * (k & 3)))


def cleared(a):
    a('s_lshr_b32 s66, s2, 2')
    a('s_lshl_b32 s66, s66, 5')
    a('s_and_b32 s67, s2, 3')
    a('s_add_u32 s66, s66, s67')
    a('s_lshl_b32 s66, s66, 2')
    a('s_add_u32 s66, s66, %d' % CLR)
    a('v_mov_b32 v4, s%d' % sTAG)
    a('s_mov_b64 exec, 1')
    a('buffer_store_dword v4, v6, %s, s66 offen sc1' % R4(WS))
    a('s_mov_b64 exec, -1')
    stamp(a, 15)


def early(a, g, kvw):
    n = 0
    if kvw:
        srd(a, RD, pSH, 5120)
        a('s_mul_i32 s66, s%d, 640' % sX)
        a('s_lshl_b32 s67, s%d, 7' % sW)
        a('s_add_u32 s66, s66, s67')
        a('v_and_b32 v10, 3, v%d' % vL)
        a('v_lshlrev_b32 v10, 3, v10')
        for it in range(4):
            a('buffer_load_dwordx2 %s, v10, %s, s66 offen offset:%d' % (vr(TAP + 2 * it, 2), R4(RD), 32 * it))
        if g:
            w_setup(a, g)
        a('s_waitcnt vmcnt(4)')
        get_tag(a, 4)
        stamp(a, 1)
        a('s_barrier')
        a('s_branch KV')
        return
    if g == 0:
        clear(a)
        srd(a, RA, pQ, hex(ROWS_B))
        row_table(a, QT, 10)
        for r in range(3):
            a('s_add_u32 s74, s%d, %d' % (sW, 3 * r - 5))
            a('s_min_u32 s74, s74, 7')
            a('s_lshr_b32 s75, s74, 2')
            a('s_and_b32 s74, s74, 3')
            s_ids(a, 75, 74)
            q_dma(a, 0)
        hello_store(a, 28)
        a('s_waitcnt vmcnt(26)')
        stamp(a, 1)
        a('s_barrier')
        a('s_waitcnt vmcnt(16)')
        cleared(a)
        a('s_branch NOBUILD')
        return
    if g == 1:
        a('s_cmp_eq_u32 s%d, 7' % sW)
        a('s_cbranch_scc1 E_LD')
    clear(a)
    a('s_sub_u32 s68, s%d, 5' % sW)
    ssm_loads(a, g, 68, 0)
    n += 10
    if g == 2:
        a('s_mov_b32 s69, 3')
        ssm_loads(a, g, 69, 1)
        n += 10
    w_setup(a, g)
    nw = 0
    if g == 2:
        hello_store(a, 13 + n + nw)
        nw += 1
    a('s_waitcnt vmcnt(%d)' % (10 + n + nw))
    if g == 1:
        get_tag(a, 4)
    stamp(a, 1)
    a('s_barrier')
    a('s_waitcnt vmcnt(%d)' % (n - 10 + nw))
    cleared(a)
    nw += 1
    if g == 2 and NA2:
        w_begin(a, g, 0, sW, 5, 3, RING[g])
        nw += 4 * NA2 // 3
        for k in range(4 * NA2 // 3):
            emit(a, w_piece(3))
    ssm_build(a, 68, 0)
    if g == 2:
        a('s_cmp_lg_u32 s%d, 5' % sW)
        a('s_cbranch_scc1 NOBUILD')
        a('s_waitcnt vmcnt(%d)' % nw)
        ssm_build(a, 69, 1)
    a('s_branch NOBUILD')
    if g == 1:
        a.label('E_LD')
        w_setup(a, g)
        w_begin(a, g, 0, sW, 7, 1, RING[g])
        n0 = min(PA, 4 * NA1)
        for k in range(n0):
            emit(a, w_piece(1))
        hello_store(a, 3 + n0)
        a('s_waitcnt vmcnt(%d)' % (n0 + 1))
        stamp(a, 1)
        a('s_barrier')
        a('v_mov_b32 v12, %d' % (2 * CSL + 28))
        a('v_mov_b32 v10, 1')
        a('ds_write_b32 v12, v10')
        w_stream(a, 4 * NA1 - n0, 1, PB)
        a('s_branch BUILT')


def kv_phase(a):
    PV, CU, VV, T = 24, 32, 40, 48
    a.label('KV')
    a('v_and_b32 v10, 3, v%d' % vL)
    a('v_bfe_u32 v11, v%d, 2, 2' % vL)
    a('v_and_b32 v12, 0x30, v%d' % vL)
    a('v_lshl_add_u32 v12, v10, 2, v12')
    a('v_add_u32 v12, v12, v11')
    a('v_mul_u32_u24 v12, 176, v12')
    a('s_lshl_b32 s66, s%d, 5' % sW)
    a('s_add_u32 s66, s66, %d' % L_KST)
    a('v_add_u32 v12, s66, v12')
    for it in range(4):
        a('ds_read_b64_tr_b16 %s, v12 offset:%d' % (vr(PV + 2 * it, 2), 8 * it))
        a('ds_read_b64_tr_b16 %s, v12 offset:%d' % (vr(CU + 2 * it, 2), 8 * it + 704))
        a('ds_read_b64_tr_b16 %s, v12 offset:%d' % (vr(VV + 2 * it, 2), 8 * it + L_VST - L_KST))
    a('s_waitcnt vmcnt(0)')
    for r in range(8):
        a('v_alignbit_b32 v%d, v%d, v%d, 16' % (TAP + r, TAP + r, TAP + r))
    a('s_mul_i32 s66, s%d, 2560' % sW)
    a('s_add_u32 s66, s66, %d' % L_OST)
    a('v_mul_u32_u24 v13, 160, v10')
    a('v_lshrrev_b32 v11, 2, v%d' % vL)
    a('v_lshlrev_b32 v11, 3, v11')
    a('v_sub_u32 v13, v13, v11')
    a('s_add_u32 s67, s66, 120')
    a('v_add_u32 v13, s67, v13')
    a('v_lshrrev_b32 v10, 3, v%d' % vL)
    a('v_and_b32 v11, 7, v%d' % vL)
    a('v_lshlrev_b32 v11, 4, v11')
    a('v_mul_u32_u24 v14, 160, v10')
    a('v_add3_u32 v14, s66, v14, v11')
    a('v_lshl_add_u32 v5, v10, 12, v11')
    for it in range(4):
        a('s_waitcnt lgkmcnt(%d)' % (9 - 3 * it + it))
        P0, P1, C0, C1, V0, V1, W10, W32 = PV + 2 * it, PV + 2 * it + 1, CU + 2 * it, CU + 2 * it + 1, VV + 2 * it, VV + 2 * it + 1, TAP + 2 * it, TAP + 2 * it + 1
        O0, O1, O2, A, U = T, T + 1, T + 2, T + 4, T + 8
        a('v_alignbit_b32 v%d, v%d, v%d, 16' % (O0, P1, P0))
        a('v_alignbit_b32 v%d, v%d, v%d, 16' % (O1, C0, P1))
        a('v_alignbit_b32 v%d, v%d, v%d, 16' % (O2, C1, C0))
        for t, (h, l) in enumerate(((O1, O0), (C0, P1), (O2, O1), (C1, C0))):
            a('v_dot2_f32_bf16 v%d, v%d, v%d, 0' % (A + t, l, W32))
        a('v_lshlrev_b32 v%d, 16, v%d' % (U, V0))
        a('v_and_b32 v%d, s%d, v%d' % (U + 1, sHI, V0))
        for t, (h, l) in enumerate(((O1, O0), (C0, P1), (O2, O1), (C1, C0))):
            a('v_dot2c_f32_bf16 v%d, v%d, v%d' % (A + t, h, W10))
        a('v_lshlrev_b32 v%d, 16, v%d' % (U + 2, V1))
        a('v_and_b32 v%d, s%d, v%d' % (U + 3, sHI, V1))
        for t in range(4):
            a('v_mul_f32 v%d, v%d, v%d' % (A + t, A + t, U + t))
        a('v_cvt_pk_bf16_f32 v%d, v%d, v%d' % (PV + 2 * it, A + 3, A + 2))
        a('v_cvt_pk_bf16_f32 v%d, v%d, v%d' % (PV + 2 * it + 1, A + 1, A))
        a('ds_write_b64 v13, %s offset:%d' % (vr(PV + 2 * it, 2), 640 * it))
    a('s_mul_i32 s67, s%d, 80' % sX)
    a('s_lshl_b32 s66, s%d, 4' % sW)
    a('s_add_u32 s67, s67, s66')
    a('s_lshl_b32 s67, s67, 12')
    a('s_lshl_b32 s66, s%d, 7' % sI)
    a('s_sub_u32 s67, s67, s66')
    a('s_add_u32 s67, s67, 3968')
    a('ds_read_b128 %s, v14' % vr(CU, 4))
    a('ds_read_b128 %s, v14 offset:1280' % vr(CU + 4, 4))
    a('s_mul_i32 s68, s%d, 5' % sX)
    a('s_add_u32 s68, s68, s%d' % sW)
    a('s_lshl_b32 s68, s68, 7')
    a('s_lshl_b32 s66, s%d, 2' % sI)
    a('s_add_u32 s68, s68, s66')
    for k in range(2):
        a('s_add_u32 s66, s67, %s' % hex(KVA + 32768 * k))
        a('s_waitcnt lgkmcnt(%d)' % (1 - k))
        a('buffer_store_dwordx4 %s, v5, %s, s66 offen' % (vr(CU + 4 * k, 4), R4(WS)))
    stamp(a, 2)
    hello_load(a, 44, 69)
    a('s_lshl_b32 s66, s%d, 1' % sXCC)
    a('s_add_u32 s66, s66, s%d' % sTAG)
    a('v_mov_b32 v4, s66')
    a('s_add_u32 s66, s68, %d' % KVFA)
    a('s_waitcnt vmcnt(1)')
    a('s_mov_b64 exec, 1')
    a('buffer_store_dword v4, off, %s, s66' % R4(WS))
    a('s_mov_b64 exec, -1')
    stamp(a, 3)
    hello_check(a, 44, 69, 1)
    a('s_cmp_eq_u32 s%d, 0' % sSLOW)
    a('s_cbranch_scc1 ROLES')
    for k in range(2):
        a('s_add_u32 s66, s67, %s' % hex(KVB + 32768 * k))
        a('buffer_store_dwordx4 %s, v5, %s, s66 offen sc1' % (vr(CU + 4 * k, 4), R4(WS)))
    a('s_add_u32 s66, s68, %d' % KVFB)
    a('s_waitcnt vmcnt(0)')
    flag_store(a, 66, 4, True)
    a('s_branch ROLES')
    a.label('NOBUILD')
    stamp(a, 2)
    hello_load(a, 44, 69)
    hello_check(a, 44, 69, 0)
    stamp(a, 3)
    a.label('ROLES')
    a('s_cmp_ge_u32 s%d, 29' % sI)
    a('s_cbranch_scc1 S_MAIN')
    a.label('BUILT')
    stamp(a, 12)


CACC, CB, CA, CE, CT = 16, 32, 64, 96, 104
vCA, vCB = 14, 15


def conv_part(a, taus, U, mid=None, each=None):
    mf = [(aa, t - aa, t) for aa in range(max(taus) + 1) for t in taus if t >= aa]
    M = len(mf)
    nf = max(taus) + 1
    D = 8 // nf
    assert U % D == 0
    order, last, first = [], {}, {}
    for i, (aa, j, t) in enumerate(mf):
        for f in (('B', j), ('A', aa)):
            if f not in last:
                order.append(f)
                first[f] = i
            last[f] = i
    def reg(f, k):
        return (CA if f[0] == 'A' else CB) + 4 * (f[1] + nf * (k % D))
    def load(f, k):
        if f[0] == 'A':
            off = 512 * f[1] + 64 * k
            return ['ds_read_b64 %s, v%d offset:%d' % (vr(reg(f, k), 2), vCA, off),
                    'ds_read_b64 %s, v%d offset:%d' % (vr(reg(f, k) + 2, 2), vCA, off + 8)]
        return ['ds_read_b128 %s, v%d offset:%d' % (vr(reg(f, k), 4), vCB, 512 * (7 - f[1]) + 64 * k)]
    jobs = sorted((first[f] + D * M, last[f], n, f, p) for n, f in enumerate(order) for p in range(len(load(f, 0))))
    cap = -(-len(jobs) // M) if SMOOTH else 99
    slot = [[] for g in range(M)]
    t, todo = 0, list(jobs)
    while todo:
        while len(slot[t % M]) < cap:
            rdy = [x for x in todo if x[1] <= t]
            if not rdy:
                break
            todo.remove(rdy[0])
            assert t < rdy[0][0] - 2 and t < 2 * M, (taus, t, rdy[0])
            slot[t % M].append((rdy[0][3], rdy[0][4], t // M))
            if SMOOTH and cap > 1 and sum(len(x) for x in slot) * M >= (t + 1) * len(jobs) and t < M:
                break
        t += 1
    wrapped = {(f, p) for g in slot for f, p, w in g if w}
    pro = [(f, p, k) for k in range(D) for f in order for p in range(len(load(f, 0))) if not (k == D - 1 and (f, p) in wrapped)]
    live = lambda k: k < 8 or U < 8
    q, need = [(f, k) for f, p, k in pro], {}
    for k in range(8):
        for i, (aa, j, t) in enumerate(mf):
            pos = max(n for n, e in enumerate(q) if e in ((('A', aa), k), (('B', j), k)))
            assert q.count((('A', aa), k)) == 2 and q.count((('B', j), k)) == 1
            key = (k % U, i)
            need[key] = min(need.get(key, 15), len(q) - 1 - pos)
            q += [(f, k - w + D) for f, p, w in slot[i] if live(k - w + D)]
    st = [0]
    def issue(x):
        if st[0] >= 15:
            a('s_waitcnt lgkmcnt(12)')
            st[0] = 12
        a(x)
        st[0] += 1
    for f, p, k in pro:
        issue(load(f, k)[p])
    if U < 8:
        for r in range(4 * len(taus)):
            a('v_mov_b32 v%d, 0' % (CACC + r))
        L, X = a.newlabel('CL'), a.newlabel('CX')
        a('s_mov_b32 s63, 0')
        a.label(L)
        st[0] = 15
    for c in range(U):
        for i, (aa, j, t) in enumerate(mf):
            n = need[(c, i)]
            if n < st[0]:
                a('s_waitcnt lgkmcnt(%d)' % n)
                st[0] = n
            acc = CACC + 4 * (t - taus[0])
            cc = '0' if (U == 8 and c == 0 and aa == 0) else vr(acc, 4)
            a('v_mfma_f32_16x16x32_bf16 %s, %s, %s, %s' % (vr(acc, 4), vr(reg(('A', aa), c), 4), vr(reg(('B', j), c), 4), cc))
            for f, p, w in slot[i]:
                if live(c - w + D):
                    issue(load(f, c - w + D)[p])
            if U == 8 and mid and c == 4 and i == 0:
                mid()
    if U < 8:
        if each:
            each()
        a('v_add_u32 v%d, %d, v%d' % (vCA, 64 * U, vCA))
        a('v_add_u32 v%d, %d, v%d' % (vCB, 64 * U, vCB))
        a('s_add_u32 s63, s63, 1')
        a('s_cmp_lt_u32 s63, %d' % (8 // U))
        if mid:
            assert U == 4
            a('s_cbranch_scc0 %s' % X)
            mid()
            a('s_branch %s' % L)
            a.label(X)
        else:
            a('s_cbranch_scc1 %s' % L)
        a('v_subrev_u32 v%d, 512, v%d' % (vCA, vCA))
        a('v_subrev_u32 v%d, 512, v%d' % (vCB, vCB))


def conv_item(a, stages, U, st_, each=None):
    taus = [t for st in stages for t in (2 * st, 2 * st + 1)]
    conv_part(a, taus, U, None, each)
    stamp(a, st_)
    T = CT
    a('s_waitcnt lgkmcnt(8)')
    L, D = a.newlabel('CC'), a.newlabel('CD')
    a('s_mov_b32 s%d, 0' % sCNT)
    a.label(L)
    a('ds_read_b32 v10, v12 offset:32')
    for n, t in enumerate(taus):
        a('ds_read_b64 %s, v4 offset:%d' % (vr(CE + 2 * n, 2), 512 * (7 - t)))
    a('s_add_u32 s%d, s%d, 1' % (sCNT, sCNT))
    a('s_waitcnt lgkmcnt(%d)' % len(taus))
    a('v_cmp_eq_u32 vcc, 0, v10')
    a('s_cbranch_vccz %s' % D)
    a('s_cmp_lt_u32 s%d, %d' % (sCNT, 4 * LIMIT))
    a('s_cbranch_scc1 %s' % L)
    a.label(D)
    for m, stage in enumerate(stages):
        a('s_add_u32 s66, s75, %d' % (2 * 327680 * stage))
        a('s_waitcnt lgkmcnt(%d)' % (2 * (len(stages) - 1 - m)))
        Q = CT + 4 + 4 * m
        for h in range(2):
            e0, e1 = CE + 4 * m + 2 * h, CE + 4 * m + 2 * h + 1
            acc = CACC + 8 * m + 4 * h
            a('v_and_b32 v%d, s%d, v%d' % (T + 0, sHI, e1))
            a('v_lshlrev_b32 v%d, 16, v%d' % (T + 1, e1))
            a('v_and_b32 v%d, s%d, v%d' % (T + 2, sHI, e0))
            a('v_lshlrev_b32 v%d, 16, v%d' % (T + 3, e0))
            for r in range(4):
                a('v_fmac_f32 v%d, s74, v%d' % (acc + r, T + r))
            a('v_cvt_pk_bf16_f32 v%d, v%d, v%d' % (Q + 2 * h, acc, acc + 1))
            a('v_cvt_pk_bf16_f32 v%d, v%d, v%d' % (Q + 2 * h + 1, acc + 2, acc + 3))
        a('v_permlane16_swap_b32 v%d, v%d' % (Q, Q + 2))
        a('v_permlane16_swap_b32 v%d, v%d' % (Q + 1, Q + 3))
        for r in range(4):
            a('v_min_u32 v%d, -2, v%d' % (Q + r, Q + r))
        a('buffer_store_dwordx4 %s, v5, %s, s66 offen sc1' % (vr(Q, 4), R4(WS)))


def rdy_wait(a, body, off=0):
    L, D = a.newlabel('RW'), a.newlabel('RD')
    a('s_mov_b32 s%d, 0' % sCNT)
    a.label(L)
    a('ds_read_b128 v[16:19], v12 offset:%d' % off)
    a('ds_read_b128 v[20:23], v12 offset:%d' % (off + 16))
    if body:
        body()
    a('s_add_u32 s%d, s%d, 1' % (sCNT, sCNT))
    a('s_waitcnt lgkmcnt(0)')
    a('v_min3_u32 v16, v16, v17, v18')
    a('v_min3_u32 v20, v20, v21, v22')
    a('v_min3_u32 v16, v16, v19, v23')
    a('v_min_u32 v16, v16, v20')
    a('v_cmp_eq_u32 vcc, 0, v16')
    a('s_cbranch_vccz %s' % D)
    a('s_cmp_lt_u32 s%d, %d' % (sCNT, 4 * LIMIT))
    a('s_cbranch_scc1 %s' % L)
    a.label(D)


EMPTY = 0x10001


def conv_phase(a):
    a('s_cmp_ge_u32 s%d, 14' % sI)
    a('s_cbranch_scc1 CV_G2')
    a('s_and_b32 s69, s%d, 1' % sW)
    a('s_lshr_b32 s63, s%d, 1' % sW)
    a('s_lshl_b32 s63, s63, 2')
    a('s_lshr_b32 s77, 0x2814, s63')
    a('s_and_b32 s77, s77, 15')
    conv_channel(a, 1, 69, 64, 65)
    a('s_branch CV_COM')
    a.label('CV_G2')
    a('s_mov_b32 s69, s%d' % sQ)
    a('s_cmp_eq_u32 s%d, 0' % sHF)
    a('s_cselect_b32 s77, 16, 9')
    conv_channel(a, 2, 69, 64, 65)
    a.label('CV_COM')
    a('s_lshr_b32 s78, s64, 4')
    a('s_mul_i32 s79, s%d, 5' % sX)
    a('s_add_u32 s78, s78, s79')
    a('s_lshl_b32 s78, s78, 7')
    a('s_add_u32 s78, s78, %d' % KVFA)
    a('s_mul_i32 s79, s%d, 80' % sX)
    a('s_add_u32 s64, s64, s79')
    a('s_and_b32 s66, s64, 0xfffffffe')
    a('s_lshl_b32 s66, s66, 1')
    a('s_load_dword s74, s[%d:%d], s66' % (pD, pD + 1))
    a('s_lshl_b32 s79, s64, 12')
    a('s_mul_i32 s80, s69, %d' % CSL)
    a('s_add_u32 s81, s80, %d' % CUO)
    a('s_bitcmp0_b32 s77, 0')
    a('s_cbranch_scc1 CV_NOLEAD')
    a('v_and_b32 v16, 31, v%d' % vL)
    a('v_lshlrev_b32 v16, 2, v16')
    a('v_lshrrev_b32 v17, 5, v%d' % vL)
    a('v_lshl_add_u32 v16, v17, 13, v16')
    assert KVFB - KVFA == 8192
    a('s_lshl_b32 s66, s%d, 1' % sXCC)
    a('v_mov_b32 v18, s66')
    a('v_cmp_eq_u32 vcc, 0, v17')
    a('v_cndmask_b32 v18, 0, v18, vcc')
    a('v_add_u32 v18, s%d, v18' % sTAG)
    a('s_mov_b32 s%d, 0' % sCNT)
    a.label('CV_POLL')
    a('buffer_load_dword v19, v16, %s, s78 offen sc1' % R4(WS))
    a('s_add_u32 s%d, s%d, 1' % (sCNT, sCNT))
    a('s_waitcnt vmcnt(0)')
    a('v_cmp_ne_u32 vcc, v18, v19')
    a('s_mov_b32 s66, %s' % hex(KVA))
    if not FORCE_SLOW:
        a('s_cmp_eq_u32 vcc_lo, 0')
        a('s_cbranch_scc1 CV_GOT')
    a('s_mov_b32 s66, %s' % hex(KVB))
    a('s_cmp_eq_u32 vcc_hi, 0')
    a('s_cbranch_scc1 CV_GOT')
    a('s_cmp_lt_u32 s%d, s%d' % (sCNT, sLIM))
    a('s_cbranch_scc1 CV_POLL')
    a('s_mov_b32 s%d, 0' % sLIM)
    a.label('CV_GOT')
    a('s_add_u32 s66, s66, s79')
    a('s_mov_b32 m0, s81')
    for k in range(4):
        a('buffer_load_dwordx4 v%d, %s, s66 offen offset:%d sc1 lds' % (vL16, R4(WS), 1024 * k))
    a.label('CV_NOLEAD')
    stamp(a, 4)
    a('s_lshl_b32 s75, s64, 6')
    a('s_add_u32 s75, s75, %s' % hex(YT))
    a('s_lshl_b32 s65, s65, 28')
    a('v_and_b32 v16, 15, v%d' % vL)
    a('v_lshrrev_b32 v17, 4, v%d' % vL)
    a('v_add_u32 v18, 1, v16')
    a('v_and_b32 v19, 3, v18')
    a('v_mul_u32_u24 v%d, %d, v19' % (vCA, HSTR))
    a('v_lshrrev_b32 v18, 2, v18')
    a('v_lshl_add_u32 v%d, v18, 3, v%d' % (vCA, vCA))
    a('v_lshl_add_u32 v%d, v17, 4, v%d' % (vCA, vCA))
    a('v_add_u32 v%d, s80, v%d' % (vCA, vCA))
    a('v_lshlrev_b32 v18, 5, v16')
    a('v_lshlrev_b32 v19, 4, v17')
    a('v_sub_u32 v%d, v19, v18' % vCB)
    a('s_add_u32 s66, s81, 480')
    a('v_add_u32 v%d, s66, v%d' % (vCB, vCB))
    a('v_lshl_add_u32 v19, v17, 3, v18')
    a('s_add_u32 s66, s81, 504')
    a('v_sub_u32 v4, s66, v19')
    a('v_and_b32 v19, 1, v17')
    a('v_lshlrev_b32 v19, 3, v19')
    a('v_lshrrev_b32 v18, 1, v16')
    a('v_add_u32 v19, v19, v18')
    a('v_mul_u32_u24 v5, 40960, v19')
    a('v_and_b32 v18, 1, v16')
    a('v_lshl_add_u32 v5, v18, 5, v5')
    a('v_lshrrev_b32 v19, 1, v17')
    a('v_lshl_add_u32 v5, v19, 4, v5')
    a('v_add_u32 v5, s65, v5')
    a('s_waitcnt lgkmcnt(0)')
    a('s_bitcmp1_b32 s64, 0')
    a('s_cbranch_scc1 CV_DHI')
    a('s_lshl_b32 s74, s74, 16')
    a.label('CV_DHI')
    a('s_and_b32 s74, s74, 0xffff0000')
    a('s_bitcmp0_b32 s77, 0')
    a('s_cbranch_scc1 CV_RD')
    a('s_waitcnt vmcnt(0)')
    a.label('CV_RD')
    a('s_cmp_ge_u32 s%d, 14' % sI)
    a('s_cselect_b32 s66, 2, 1')
    a('s_mul_i32 s66, s66, %d' % (2 * CSL))
    a('v_mov_b32 v12, s66')
    a('s_lshl_b32 s67, s%d, 2' % sW)
    a('v_add_u32 v13, s67, v12')
    a('v_add_u32 v10, 1, s%d' % sSLOW)
    a('ds_write_b32 v13, v10')
    a('s_cmp_eq_u32 s77, 8')
    a('s_cbranch_scc1 CV_L1')
    a('s_cmp_lg_u32 s%d, 0' % sW)
    a('s_cbranch_scc1 CV_CLR')
    a('v_lshlrev_b32 v16, 7, v%d' % vL)
    a('s_mov_b32 s66, %d' % CLR)
    a('s_mov_b32 s%d, 0' % sCNT)
    a.label('CV_CL')
    a('buffer_load_dwordx4 v[20:23], v16, %s, s66 offen sc1' % R4(WS))
    a('s_add_u32 s%d, s%d, 1' % (sCNT, sCNT))
    a('s_waitcnt vmcnt(0)')
    for r in range(4):
        a('v_xor_b32 v%d, s%d, v%d' % (20 + r, sTAG, 20 + r))
    a('v_or3_b32 v20, v20, v21, v22')
    a('v_or_b32 v20, v20, v23')
    a('v_cmp_ne_u32 vcc, 0, v20')
    a('s_cbranch_vccz CV_CD')
    a('s_cmp_lt_u32 s%d, s%d' % (sCNT, sLIM))
    a('s_cbranch_scc1 CV_CL')
    a('s_mov_b32 s%d, 0' % sLIM)
    a.label('CV_CD')
    a('ds_write_b32 v12, v10 offset:32')
    a.label('CV_CLR')
    a('s_cmp_eq_u32 s77, 16')
    a('s_cbranch_scc1 CV_V2')
    rdy_wait(a, None)
    a('v_readfirstlane_b32 s%d, v22' % sSLOW)
    a('s_sub_u32 s%d, s%d, 1' % (sSLOW, sSLOW))
    a.label('CV_GO')
    stamp(a, 5)
    a('s_bitcmp0_b32 s77, 0')
    a('s_cbranch_scc1 CV_I2')
    a('s_setprio 3')
    conv_item(a, [0], CU_[0], 13)
    stamp(a, 6)
    conv_item(a, [1], CU_[1], 14)
    stamp(a, 7)
    a('s_bitcmp1_b32 s77, 3')
    a('s_cbranch_scc1 CV_L2')
    a.label('CV_I2')
    a('s_bitcmp0_b32 s77, 1')
    a('s_cbranch_scc1 CV_I3')
    conv_item(a, [2], CU_[2], 13)
    stamp(a, 8)
    a.label('CV_I3')
    a('s_setprio 0')
    a('s_bitcmp0_b32 s77, 2')
    a('s_cbranch_scc1 CV_I4')
    conv_item(a, [3], CU_[3], 13)
    stamp(a, 8)
    a.label('CV_I4')
    a('s_bitcmp0_b32 s77, 4')
    a('s_cbranch_scc1 CV_END')
    if RL:
        nr = NR[2] - NA2
        assert CU_[4] == 2
        w_begin(a, 2, NA2, sW, 0, 4, RING[2] + 4096 * NA2)
        for n in range(nr - 4 * (nr // 4)):
            emit(a, w_piece(4))
        def each():
            for n in range(nr // 4):
                emit(a, w_piece(4))
    conv_item(a, [2, 3], CU_[4], 13, each=each if RL else None)
    a('v_mov_b32 v10, 1')
    a('ds_write_b32 v13, v10 offset:64')
    a('s_waitcnt vmcnt(2)')
    stamp(a, 8)
    a('s_branch CV_END2')
    a.label('CV_V2')
    if P2A:
        w_begin(a, 2, NA2, sW, 0, 4, 0)
        a('s_mul_i32 s68, s%d, %d' % (sWS, NK[2] - NA2 - 1))
        a('s_add_u32 s68, s68, s%d' % sWO)
        def pull():
            a('s_waitcnt vmcnt(%d)' % (P2A - 1))
            a('buffer_load_dwordx4 v[128:131], v%d, %s, s%d offen' % (vWO, R4(RA), sWO))
            a('s_add_u32 s%d, s%d, s%d' % (sWO, sWO, sWS))
            a('s_min_u32 s%d, s%d, s68' % (sWO, sWO))
    rdy_wait(a, pull if P2A else None)
    a('s_branch CV_GO')
    for g, nw, P, pf in ((1, 2, P1, PF1), (2, 4, P2_, PF2)):
        nr = 4 * (NR[g] - NA[g]) // nw
        npf = 4 * NC[g] // nw if pf else 0
        if g == 2:
            a.label('CV_L2')
            a('s_setprio 0')
            if RL:
                nr = 0
        if g == 1:
            a.label('CV_L1')
            if P1A:
                w_begin(a, g, NR[g], sW, 4, nw, 0)
                w_stream(a, npf, nw, P1A, DUM[g])
                npf = 0
            stamp(a, 6)
            rdy_wait(a, None)
            stamp(a, 5)
        w_begin(a, g, NA[g] if nr else NR[g], sW, 4, nw, RING[g] + 4096 * NA[g])
        w_stream(a, nr, nw, P)
        stamp(a, 15)
        a('v_mov_b32 v10, 1')
        a('ds_write_b32 v13, v10 offset:64')
        if npf:
            a('s_mul_i32 s68, s%d, %d' % (sWS, npf - 1))
            a('s_add_u32 s68, s68, s%d' % sWO)
            def pull(g=g, P=P):
                a('s_waitcnt vmcnt(%d)' % (P - 1))
                a('buffer_load_dwordx4 %s, v%d, %s, s%d offen' % (vr(DUM[g], 4), vWO, R4(RA), sWO))
                a('s_add_u32 s%d, s%d, s%d' % (sWO, sWO, sWS))
                a('s_min_u32 s%d, s%d, s68' % (sWO, sWO))
            rdy_wait(a, pull, 64)
            a('s_cmp_lt_u32 s%d, %d' % (sCNT, P - 1))
            a('s_cbranch_scc1 CV_W%d' % g)
            a('s_waitcnt vmcnt(%d)' % (P - 1))
            stamp(a, 8)
            a('s_branch CV_END2')
            a.label('CV_W%d' % g)
        a('s_waitcnt vmcnt(0)')
        stamp(a, 8)
        a('s_branch CV_END2')
    a.label('CV_END')
    a('v_mov_b32 v10, 1')
    a('ds_write_b32 v13, v10 offset:64')
    a('s_waitcnt vmcnt(1)')
    a.label('CV_END2')
    a('s_barrier')
    stamp(a, 9)
    a('s_cmp_ge_u32 s%d, 14' % sI)
    a('s_cbranch_scc1 G2_INIT')


ZR, NZR, GE, ACC, BIAS = 24, 6, 48, 64, 80
vSO, vLN, vOW, vC1, vRD, vDN, vTH, vOB, vPO, vZ, vTG, vCN, PK, PK2 = 0, 4, 5, 6, 8, 9, 10, 11, 12, 13, 14, 15, 16, 20
vAC, vVAL = 1, 3
sMSK, sCHK = 76, 77


def hold(a):
    L = a.newlabel('HO')
    a('s_mov_b32 s63, %d' % EARLYF)
    a.label(L)
    a('s_sub_u32 s63, s63, 1')
    a('s_cmp_lg_u32 s63, 0')
    a('s_cbranch_scc1 %s' % L)


def g_phase(a, g):
    N, BUF, NP = NK[g], 1024 * NK[g], NK[g] // 4
    SRC, DSTS = (ZSL, HSL) if g == 1 else (HSL, MSL)
    FST = 32 if g == 1 else 256
    ool = Ool(a)
    T = lambda s: 'G%d_%s' % (g, s)
    a.label(T('INIT'))
    w_begin(a, g, NR[g], sW, 0, 8, 0)
    for k in range(NC[g] // 2):
        emit(a, w_piece(8))
    a('s_cmp_ge_u32 s%d, 4' % sW)
    a('s_cbranch_scc1 %s' % T('I4'))
    emit(a, w_piece(8))
    a.label(T('I4'))
    a('v_lshrrev_b32 v10, 5, v%d' % vL)
    a('v_lshlrev_b32 v10, 5, v10')
    a('s_lshl_b32 s67, s%d, 6' % sQ)
    if g == 1:
        srd(a, RD, pB1, 3456)
        a('s_lshl_b32 s66, s%d, 8' % sI)
    else:
        srd(a, RD, pB2, 1280)
        g2_ids(a, 69, 70)
        a('s_lshl_b32 s66, s70, 8')
        a('s_lshl_b32 s63, s69, 16')
        a('s_add_u32 s66, s66, s63')
    a('s_add_u32 s66, s66, s67')
    a('v_add_u32 v10, s66, v10')
    a('buffer_load_dwordx4 %s, v10, %s, 0 offen' % (vr(GE, 4), R4(RD)))
    a('buffer_load_dwordx4 %s, v10, %s, 0 offen offset:16' % (vr(GE + 4, 4), R4(RD)))
    a('s_lshl_b32 s66, s%d, 3' % sX)
    a('s_add_u32 s66, s66, s%d' % sHF)
    a('s_mul_i32 s64, s66, %d' % SRC)
    a('s_mul_i32 s74, s66, %d' % DSTS)
    a('s_mul_i32 s67, s%d, %d' % (sQ, 1024 * NP))
    a('s_add_u32 s64, s64, s67')
    a('s_mul_i32 s72, s%d, %d' % (sHF, BUF))
    if g == 1:
        a('s_add_u32 s64, s64, %s' % hex(ZI))
        a('s_lshl_b32 s73, s%d, 10' % sX)
        a('s_lshl_b32 s63, s%d, 5' % sHF)
        a('s_add_u32 s73, s73, s63')
        a('s_add_u32 s73, s73, %d' % ZF)
        a('s_lshl_b32 s68, s%d, 2' % sI)
        a('s_add_u32 s68, s68, s%d' % sQ)
        a('s_lshl_b32 s63, s68, 11')
        a('s_add_u32 s74, s74, s63')
        a('s_add_u32 s74, s74, %s' % hex(HB))
        a('v_and_b32 v%d, 0x1c, v%d' % (vPO, vL4))
        c1 = -2.0 * math.sqrt(2.0 / math.pi) * math.log2(math.e)
        a('v_mov_b32 v%d, %s' % (vC1, f2h(c1)))
    else:
        a('s_mul_i32 s63, s69, %d' % BUF)
        a('s_add_u32 s64, s64, s63')
        a('s_add_u32 s64, s64, %s' % hex(HB))
        a('s_lshl_b32 s73, s%d, 13' % sX)
        a('s_lshl_b32 s63, s%d, 8' % sHF)
        a('s_add_u32 s73, s73, s63')
        a('s_mul_i32 s63, s69, 72')
        a('s_add_u32 s73, s73, s63')
        a('s_add_u32 s73, s73, %d' % HFL)
        a('s_mul_i32 s63, s69, 40960')
        a('s_add_u32 s74, s74, s63')
        a('s_lshl_b32 s63, s70, 2')
        a('s_add_u32 s63, s63, s%d' % sQ)
        a('s_lshl_b32 s63, s63, 11')
        a('s_add_u32 s74, s74, s63')
        a('s_add_u32 s74, s74, %s' % hex(MR))
        a('s_sub_u32 s68, s%d, 14' % sI)
        a('s_lshl_b32 s68, s68, 2')
        a('s_add_u32 s68, s68, s%d' % sQ)
        a('v_min_u32 v%d, 68, v%d' % (vPO, vL4))
    a('s_lshl_b32 s78, s%d, 13' % sX)
    a('s_lshl_b32 s63, s%d, 8' % sHF)
    a('s_add_u32 s78, s78, s63')
    a('s_lshl_b32 s63, s68, 2')
    a('s_add_u32 s78, s78, s63')
    a('s_add_u32 s78, s78, %d' % (HFL if g == 1 else MFL))
    a('s_mov_b32 s75, %d' % (2 * SRC))
    a('s_mov_b32 s79, %d' % (2 * DSTS))
    a('v_lshrrev_b32 v16, 5, v%d' % vL)
    a('v_and_b32 v17, 31, v%d' % vL)
    a('v_lshlrev_b32 v17, 4, v17')
    a('v_lshl_add_u32 v%d, v16, 10, v17' % vSO)
    a('s_mov_b32 s%d, %s' % (sMSK, hex(EMPTY)))
    a('s_mov_b32 s%d, 0x10000' % sCHK)
    def wipe(first=False):
        WP, WA = (PK2, PK2 + 1) if g == 1 else (104, 108)
        for r in range(4 if g == 2 and first else g & 1):
            a('v_mov_b32 v%d, %s' % (WP + r, hex(EMPTY)))
        if first:
            a('s_mov_b32 s63, s74')
        else:
            a('s_cmp_lt_u32 s%d, 3' % sP)
            a('s_cselect_b32 s63, 0, 0x10000000')
            a('v_add_u32 v%d, s63, v%d' % (WA, vSO))
            a('s_add_u32 s63, s74, s79')
        emit(a, both2(a, ool, ['buffer_store_dwordx4 %s, v%d, %s, s63 offen offset:%d' % (vr(WP, 4), vSO if first else WA, R4(WS), 512 * t) for t in range(2)]))
    wipe(True)
    w_read(a, g, 0, NR[g], RING[g])
    a('s_waitcnt vmcnt(0)')
    a('s_barrier')
    a('v_add_u32 v11, %d, v%d' % (L_SYNC, vL4))
    a('v_mov_b32 v10, 0')
    a('ds_write_b32 v11, v10')
    for i in range(8):
        a('v_lshlrev_b32 v%d, 16, v%d' % (BIAS + 2 * i, GE + i))
        a('v_and_b32 v%d, s%d, v%d' % (BIAS + 2 * i + 1, sHI, GE + i))
    w_read(a, g, NR[g], NC[g], 0)
    a('s_barrier')
    stamp(a, 10)
    a('s_lshl_b32 s63, s%d, 4' % sHF)
    a('s_add_u32 s66, s63, %d' % LF_LND)
    a('v_mov_b32 v%d, s66' % vLN)
    a('s_lshl_b32 s66, s%d, 2' % sW)
    a('s_add_u32 s66, s66, %d' % LF_LND)
    a('v_mov_b32 v%d, s66' % vOW)
    a('s_sub_u32 s66, %d, s63' % (LF_DON + 16))
    a('v_mov_b32 v%d, s66' % vDN)
    a('v_mov_b32 v%d, s%d' % (vTH, sHF))
    a('v_mov_b32 v%d, s%d' % (vTG, sTAG))
    a('v_mov_b32 v%d, 1' % vCN)
    oob_lane0(a, vOB)
    a('v_mov_b32 v%d, 1' % vVAL)
    a('s_mov_b32 s%d, 0' % sP)

    def stage():
        o = []
        for k in range(NP):
            gq = []
            if k == 0:
                gq += ['s_add_u32 m0, s65, s67', 's_mov_b32 s63, s64']
            elif k % 4 == 0:
                gq += ['s_add_u32 m0, m0, 4096', 's_add_u32 s63, s63, 4096']
            gq.append('buffer_load_dwordx4 v%d, %s, s63 offen offset:%d sc1 lds' % (vL16, R4(WS), 1024 * (k & 3)))
            o.append(gq)
        return o
    PEEK = 'ds_read_b128 %s, v%d' % (vr(PK, 4), vLN)
    PEEK2 = 'ds_read_b128 %s, v%d' % (vr(PK2, 4), vDN)
    PLOAD = 'buffer_load_dword v%d, v%d, %s, s73 offen sc1' % (vZ, vPO, R4(WS))
    PCMP = 'v_cmp_ne_u32 vcc, s%d, v%d' % (sTAG, vZ)
    FLAG = 'buffer_store_dword v%d, v%d, %s, s78 offen' % (vTG, vOB, R4(WS))
    def store(o, t):
        st = ['buffer_store_dwordx4 %s, v%d, %s, s74 offen offset:%d' % (vr(o, 4), vSO, R4(WS), 512 * t)]
        if EARLYF:
            if t == 0:
                emit(a, both2(a, ool, FLAG))
                hold(a)
        elif t:
            st.append(FLAG)
        a('v_bfi_b32 v%d, s%d, v%d, v%d' % (o, sMSK, vVAL, o))
        emit(a, both2(a, ool, st))

    a('s_mov_b32 s65, s72')
    block_poll(a, vZ, vPO, 73)
    stamp(a, 11)
    for gq in stage():
        emit(a, gq)
    a('s_waitcnt vmcnt(0)')
    a('ds_write_b32 v%d, v%d' % (vOW, vCN))
    a(PEEK)
    a.label(T('LOOP'))
    a('v_add_u32 v%d, s72, v%d' % (vRD, vL16))
    a('s_sub_u32 s80, s64, s67')
    a('s_cmp_eq_u32 s%d, 3' % sP)
    a('s_cselect_b32 s63, %d, s75' % (-6 * SRC))
    a('s_add_u32 s64, s64, s63')
    a('s_add_u32 s73, s73, %d' % (2 * FST))
    a('s_cmp_eq_u32 s72, 0')
    a('s_cselect_b32 s65, %d, s72' % (3 * BUF))
    a('s_sub_u32 s65, s65, %d' % BUF)
    cnt_spin(a, ool, PK, vLN, vCN)
    PF = NZR - 1
    q = LdsQ(a)
    Z = lambda n: ZR + 4 * (n % NZR)
    for n in range(PF):
        q.issue(('z', n), 'ds_read_b128 %s, v%d offset:%d' % (vr(Z(n), 4), vRD, 1024 * n))
    a('s_setprio %d' % PRIO[0])
    stamp(a, (sP, 4, 16))
    def mfma(ks, z):
        c = vr(BIAS, 16) if ks == 0 else vr(ACC, 16)
        a('v_mfma_f32_32x32x16_bf16 %s, %s, %s, %s' % (vr(ACC, 16), vr(WB[g] + 4 * ks, 4), vr(z, 4), c))
    for ks in range(N):
        q.wait([('z', ks)])
        mfma(ks, Z(ks))
        if ks == 1:
            a('v_or_b32 v%d, v%d, v%d' % (vAC, Z(0), Z(1)))
        elif ks & 1 and not NOCHK:
            a('v_or3_b32 v%d, v%d, v%d, v%d' % (vAC, vAC, Z(ks - 1), Z(ks)))
        n = ks + PF
        if n < N:
            q.issue(('z', n), 'ds_read_b128 %s, v%d offset:%d' % (vr(Z(n), 4), vRD, 1024 * n))
        if ks == PRK:
            a('s_setprio %d' % PRIO[1])
        if ks == N - PLK:
            a(PLOAD)
        if ks == N - 3:
            q.issue(('p', 0), PEEK2)
    a('ds_write_b32 v%d, v%d offset:32' % (vOW, vCN))
    a('v_and_b32 v%d, s%d, v%d' % (vAC, sCHK, vAC))
    a('v_cmp_ne_u32 vcc, 0, v%d' % vAC)
    a('s_setprio %d' % PRIO[2])
    a('s_cbranch_vccnz %s' % T('REDO'))
    a.label(T('BACK'))
    def redo():
        a.label(T('REDO'))
        a('s_mov_b32 s%d, 0' % sCNT)
        for ks in range(N):
            L, D = a.newlabel('RL'), a.newlabel('RO')
            a.label(L)
            a('buffer_load_dwordx4 %s, v%d, %s, s80 offen offset:%d sc1' % (vr(ZR, 4), vL16, R4(WS), 1024 * (ks & 3)))
            a('s_add_u32 s%d, s%d, 1' % (sCNT, sCNT))
            a('s_waitcnt vmcnt(0)')
            a('v_and_b32 v%d, s%d, v%d' % (vAC, sCHK, ZR))
            a('v_cmp_ne_u32 vcc, 0, v%d' % vAC)
            a('s_cbranch_vccz %s' % D)
            a('s_cmp_lt_u32 s%d, s%d' % (sCNT, sLIM))
            a('s_cbranch_scc1 %s' % L)
            a.label(D)
            mfma(ks, ZR)
            if ks & 3 == 3:
                a('s_add_u32 s80, s80, 4096')
        if STAMP == 1:
            a('v_readlane_b32 s63, v%d, 61' % vST)
            a('s_add_u32 s63, s63, 1')
            a('v_writelane_b32 v%d, s63, 61' % vST)
        a('s_branch %s' % T('BACK'))
    ool.add(redo)
    stamp(a, (sP, 4, 17))
    a('s_waitcnt vmcnt(0) lgkmcnt(1)')
    emit(a, cnt_min(PK2))
    a('v_cmp_gt_u32 s[82:83], v%d, v%d' % (vTH, PK2))
    a(PCMP)
    a('s_cmp_eq_u32 s%d, 7' % sP)
    a('s_cselect_b64 s[82:83], -1, s[82:83]')
    a('s_or_b64 vcc, vcc, s[82:83]')

    def gelu(dma):
        ops = []
        for t in range(2):
            X, U = ACC + 8 * t, GE
            ops += ['v_mul_f32 v%d, v%d, v%d' % (U + i, X + i, X + i) for i in range(8)]
            ops += ['v_fma_f32 v%d, v%d, s%d, v%d' % (U + i, U + i, sC2, vC1) for i in range(8)]
            ops += ['v_mul_f32 v%d, v%d, v%d' % (U + i, U + i, X + i) for i in range(8)]
            ops += ['v_exp_f32 v%d, v%d' % (U + i, U + i) for i in range(8)]
            ops += ['v_add_f32 v%d, 1.0, v%d' % (U + i, U + i) for i in range(8)]
            ops += ['v_rcp_f32 v%d, v%d' % (U + i, U + i) for i in range(8)]
            ops += ['v_mul_f32 v%d, v%d, v%d' % (U + i, U + i, X + i) for i in range(8)]
            o = U + 8 + 4 * t
            ops += ['v_cvt_pk_bf16_f32 v%d, v%d, v%d' % (o + i, U + 2 * i, U + 2 * i + 1) for i in range(4)]
            if t == 0 and not dma:
                ops += [PLOAD, PEEK2]
            ops.append(('st', o, t))
        st = stage() if dma else []
        if st:
            emit(a, st.pop(0))
        for i, l in enumerate(ops):
            if isinstance(l, tuple):
                assert not st
                store(l[1], l[2])
            else:
                a(l)
            if st and i % DST == DST - 1:
                emit(a, st.pop(0))

    def landed():
        a('v_add_u32 v%d, 1, v%d' % (vCN, vCN))
        a('ds_write_b32 v%d, v%d' % (vOW, vCN))
    if g == 1:
        a('s_cbranch_vccnz %s' % T('EB'))
        gelu(True)
        stamp(a, (sP, 4, 18))
        wipe()
        a('s_waitcnt vmcnt(5)')
        landed()
    else:
        a('s_mov_b64 s[82:83], vcc')
        a(PLOAD)
        for i in range(8):
            a('v_cvt_pk_bf16_f32 v%d, v%d, v%d' % (GE + i, ACC + 2 * i, ACC + 2 * i + 1))
            if i & 3 == 3:
                store(GE + i - 3, i >> 2)
        a('s_cmp_lg_u64 s[82:83], 0')
        a('s_cbranch_scc1 %s' % T('EB'))
        for gq in stage():
            emit(a, gq)
        stamp(a, (sP, 4, 18))
        wipe()
        a('s_waitcnt vmcnt(2)')
        landed()
    a.label(T('NEXT'))
    a(PEEK)
    stamp(a, (sP, 4, 19))
    a('v_add_u32 v%d, 1, v%d' % (vTH, vTH))
    a('s_mov_b32 s72, s65')
    a('s_add_u32 s78, s78, 512')
    a('s_cmp_eq_u32 s%d, 3' % sP)
    a('s_cselect_b32 s63, %d, s79' % (-6 * DSTS))
    a('s_cselect_b32 s%d, 1, s%d' % (sMSK, sMSK))
    a('s_cselect_b32 s%d, 1, s%d' % (sCHK, sCHK))
    a('s_add_u32 s74, s74, s63')
    a('v_lshrrev_b32_e64 v%d, 16, s%d' % (vVAL, sMSK))
    a('s_add_u32 s%d, s%d, 1' % (sP, sP))
    a('s_branch %s' % T('LOOP'))
    a.label(T('EB'))
    if g == 1:
        gelu(False)
    else:
        a(PEEK2)
    stamp(a, (sP, 4, 18))
    a('s_cmp_eq_u32 s%d, 7' % sP)
    a('s_cbranch_scc1 %s' % T('END'))
    a('s_waitcnt vmcnt(3)')
    a(PCMP)
    a('s_cbranch_vccz %s' % T('GOT'))
    block_poll(a, vZ, vPO, 73)
    a.label(T('GOT'))
    cnt_spin(a, ool, PK2, vDN, vTH)
    for gq in stage():
        emit(a, gq)
    wipe()
    a('s_waitcnt vmcnt(2)')
    landed()
    a('s_branch %s' % T('NEXT'))
    a.label(T('END'))
    for hf in range(2):
        if WBL & (g << (2 * hf)):
            L = a.newlabel('WB')
            a('s_cmp_lg_u32 s%d, %d' % (sI, 0 if g == 1 else 14))
            a('s_cbranch_scc1 %s' % L)
            a('s_cmp_lg_u32 s%d, %d' % (sW, 4 * hf))
            a('s_cbranch_scc1 %s' % L)
            a('buffer_wbl2 sc1')
            a('s_endpgm')
            a.label(L)
    endk(a, g)
    ool.flush()


YU, MM, XS, PS, TS = 36, 76, 136, 16, 24
DD, ZP = MM, MM + 40
vIM, vY0, vY1, vYC, vYG, vQA, vT0, vSP = 0, 4, 5, 6, 8, 9, 10, 14


def unpack(dst, src, n):
    o = []
    for i in range(n):
        o.append('v_lshlrev_b32 v%d, 16, v%d' % (dst + 2 * i, src + i))
        o.append('v_and_b32 v%d, s%d, v%d' % (dst + 2 * i + 1, sHI, src + i))
    return o


def accum(dst, src, n):
    o = []
    for i in range(n):
        o.append('v_dot2c_f32_bf16 v%d, s%d, v%d' % (dst + 2 * i, sLO1, src + i))
        o.append('v_dot2c_f32_bf16 v%d, s%d, v%d' % (dst + 2 * i + 1, sHI1, src + i))
    return o


def sums(X, T, k):
    o = []
    for i in range(0, 8, 2):
        x = P2(X + 8 * k + i)
        if k == 0 and i == 0:
            o += ['v_pk_mul_f32 %s, %s, %s' % (P2(T + 2), x, x)]
        elif k == 0 and i == 2:
            o += ['v_pk_add_f32 %s, %s, %s' % (P2(T), P2(X), x), 'v_pk_fma_f32 %s, %s, %s, %s' % (P2(T + 2), x, x, P2(T + 2))]
        else:
            o += ['v_pk_add_f32 %s, %s, %s' % (P2(T), P2(T), x), 'v_pk_fma_f32 %s, %s, %s, %s' % (P2(T + 2), x, x, P2(T + 2))]
    return o


def finish(T, double, U=vSP):
    Q, R = T, T + 2
    o = ['v_add_f32 v%d, v%d, v%d' % (Q, T, T + 1), 'v_add_f32 v%d, v%d, v%d' % (R, T + 2, T + 3),
         'v_permlane32_swap_b32 v%d, v%d' % (Q, R), 'v_add_f32 v%d, v%d, v%d' % (Q, Q, R),
         'v_mov_b32 v%d, v%d' % (R, Q), 'v_permlane16_swap_b32 v%d, v%d' % (Q, R), 'v_add_f32 v%d, v%d, v%d' % (Q, Q, R)]
    for k in (8, 4):
        o.append('v_add_f32 v%d, v%d, v%d row_ror:%d row_mask:0xf bank_mask:0xf' % (Q, Q, Q, k))
    o += ['v_mul_f32 v%d, s%d, v%d' % (Q, sINV, Q), 'v_mov_b32 v%d, v%d' % (R, Q), 'v_permlane32_swap_b32 v%d, v%d' % (Q, R),
          'v_fma_f32 v%d, -v%d, v%d, v%d' % (R, Q, Q, R), 'v_max_f32 v%d, 0, v%d' % (R, R),
          'v_add_f32 v%d, s%d, v%d' % (U, sEPS, R), 'v_rsq_f32 v%d, v%d' % (U, U)]
    if double:
        o += ['v_mul_f32 v%d, v%d, v%d' % (R, R, U), 'v_fma_f32 v%d, v%d, v%d, s%d' % (R, R, U, sEPS),
              'v_rsq_f32 v%d, v%d' % (R, R), 'v_mul_f32 v%d, v%d, v%d' % (U, U, R)]
    o += ['v_mul_f32_e64 v%d, -v%d, v%d' % (U + 1, Q, U)]
    return o


def norm(d, x, n, sp=vSP):
    return ['v_pk_fma_f32 %s, %s, %s, %s op_sel:[0,0,1] op_sel_hi:[1,0,1]' % (P2(d + i), P2(x + i), P2(sp), P2(sp)) for i in range(0, n, 2)]


def gate(k, XW):
    return ['v_pk_fma_f32 %s, %s, %s, %s' % (P2(XW + i), P2(DD + i), P2(YU + i), P2(XW + i)) for i in range(8 * k, 8 * k + 8, 2)]


def s_phase(a):
    ool = Ool(a)
    vOB, vPO, vZ = 11, 12, 13
    vYP = 28
    MK = (94, 96, 98, 100, 82)
    a.label('S_MAIN')
    srd(a, RA, pQ, hex(ROWS_B))
    s_ids(a)
    row_table(a, PS, 10)
    a('s_barrier')
    q_dma(a, 1, PS)
    q_dma(a, 2, PS)
    srd(a, RB, pOUT, hex(ROWS_B))
    a('v_lshrrev_b32 v40, 2, v%d' % vL)
    a('v_and_b32 v41, 3, v%d' % vL)
    a('v_lshlrev_b32 v%d, 9, v40' % vIM)
    a('v_lshl_add_u32 v%d, v41, 4, v%d' % (vIM, vIM))
    a('s_lshl_b32 s66, s71, 8')
    a('s_lshl_b32 s67, s%d, 6' % sQ)
    a('s_add_u32 s66, s66, s67')
    a('v_add_u32 v%d, s66, v%d' % (vIM, vIM))
    a('v_lshlrev_b32 v43, 1, v41')
    a('v_xor_b32 v43, v43, v40')
    a('v_mul_u32_u24 v%d, 1280, v41' % vQA)
    a('v_lshl_add_u32 v%d, v43, 4, v%d' % (vQA, vQA))
    a('v_lshrrev_b32 v43, 4, v%d' % vL)
    a('v_lshl_add_u32 v43, v43, 2, v41')
    a('v_bfe_u32 v44, v%d, 2, 2' % vL)
    a('v_lshlrev_b32 v44, 1, v44')
    a('s_lshr_b32 s66, s%d, 1' % sQ)
    a('v_add_u32 v44, s66, v44')
    a('v_and_b32 v45, 1, v41')
    a('v_xor_b32 v44, v44, v45')
    a('v_and_b32 v45, 2, v41')
    a('v_lshlrev_b32 v45, 2, v45')
    a('v_xor_b32 v44, v44, v45')
    a('v_lshlrev_b32 v%d, 8, v43' % vYC)
    a('v_lshl_add_u32 v%d, v44, 4, v%d' % (vYC, vYC))
    a('s_and_b32 s66, s%d, 1' % sQ)
    a('s_lshl_b32 s66, s66, 3')
    a('s_mul_i32 s67, s%d, 5120' % sQ)
    a('s_sub_u32 s66, s66, s67')
    a('v_add_u32 v%d, s66, v%d' % (vYC, vYC))
    a('v_lshrrev_b32 v43, 4, v%d' % vL)
    a('v_and_b32 v44, 15, v%d' % vL)
    a('v_and_b32 v45, 1, v43')
    a('v_xor_b32 v44, v44, v45')
    a('v_and_b32 v45, 2, v43')
    a('v_lshlrev_b32 v45, 2, v45')
    a('v_xor_b32 v44, v44, v45')
    a('v_lshrrev_b32 v45, 1, v44')
    a('v_lshl_add_u32 v45, v43, 3, v45')
    a('v_lshlrev_b32 v%d, 6, v45' % vYG)
    a('v_and_b32 v44, 1, v44')
    a('v_lshl_add_u32 v%d, v44, 4, v%d' % (vYG, vYG))
    a('s_lshl_b32 s66, s71, 5')
    a('s_mul_i32 s67, s%d, 10240' % sQ)
    a('s_add_u32 s66, s66, s67')
    a('v_add_u32 v%d, s66, v%d' % (vYG, vYG))
    oob_lane0(a, vOB)
    a('v_min_u32 v%d, 236, v%d' % (vPO, vL4))
    a('s_lshl_b32 s79, s71, 2')
    a('s_add_u32 s79, s79, s%d' % sQ)
    a('s_lshl_b32 s79, s79, 2')
    a('s_lshl_b32 s63, s%d, 10' % sX)
    a('s_add_u32 s79, s79, s63')
    a('s_add_u32 s79, s79, %d' % ZF)
    a('s_lshl_b32 s66, s%d, 2' % sW)
    a('s_add_u32 s66, s66, %d' % LF_LND)
    a('v_mov_b32 v%d, s66' % (vYP + 1))
    a('s_and_b32 s66, s66, 0xfffffff0')
    a('v_mov_b32 v%d, s66' % (vYP + 2))
    a('s_mov_b32 s77, %s' % hex(EMPTY))
    def head(ph, sl):
        a('s_add_u32 s74, s70, %d' % (3 * sl))
        if sl == 2:
            a('s_cmp_gt_u32 s74, 7')
            a('s_cbranch_scc1 S%s_END' % ph)
        a('s_add_u32 s75, s72, %d' % (40960 * sl))
        if ph != 'C':
            a('v_add_u32 v%d, s75, v%d' % (vY0, vYC))
            a('v_xor_b32 v%d, 0x80, v%d' % (vY1, vY0))
        a('s_lshl_b32 s76, s%d, 3' % sX)
        a('s_add_u32 s76, s76, s74')

    def y_reads():
        for k in range(5):
            a('ds_read_b64_tr_b16 %s, v%d offset:%d' % (vr(ZP + 4 * k, 2), vY0, 4096 * k))
            a('ds_read_b64_tr_b16 %s, v%d offset:%d' % (vr(ZP + 4 * k + 2, 2), vY1, 4096 * k))

    def z_out(lay, X, prio):
        emit(a, finish(TS, True))
        a('s_setprio %d' % prio)
        a('s_mul_i32 s66, s76, %d' % ZSL)
        a('s_add_u32 s66, s66, %s' % hex(ZI))
        a('s_lshl_b32 s68, s74, 5')
        a('s_add_u32 s68, s68, s79')
        a('v_mov_b32 v%d, s%d' % (vZ, sTAG))
        FLAG = 'buffer_store_dword v%d, v%d, %s, s68 offen offset:%d' % (vZ, vOB, R4(WS), 256 * lay)
        if EARLYF:
            emit(a, both2(a, ool, FLAG))
            hold(a)
        for k in range(5):
            emit(a, norm(DD + 8 * k, X + 8 * k, 8))
            for i in range(4):
                a('v_cvt_pk_bf16_f32 v%d, v%d, v%d' % (ZP + 4 * k + i, DD + 8 * k + 2 * i, DD + 8 * k + 2 * i + 1))
            if lay == 0:
                a('v_bfi_b32 v%d, s77, 1, v%d' % (ZP + 4 * k, ZP + 4 * k))
            else:
                a('v_and_b32 v%d, -2, v%d' % (ZP + 4 * k, ZP + 4 * k))
            st = ['buffer_store_dwordx4 %s, v%d, %s, s66 offen' % (vr(ZP + 4 * k, 4), vIM, R4(WS))]
            if k == 4 and not EARLYF:
                st.append(FLAG)
            emit(a, both2(a, ool, st))
            if k < 4:
                a('s_add_u32 s66, s66, 8192')
        a('s_setprio 0')

    def z_wipe(du):
        a('v_mov_b32 v%d, s77' % YU)
        a('s_add_u32 s66, s76, %d' % du)
        a('s_mul_i32 s66, s66, %d' % ZSL)
        a('s_add_u32 s66, s66, %s' % hex(ZI))
        cl = []
        for k in range(5):
            cl.append('buffer_store_dwordx4 %s, v%d, %s, s66 offen' % (vr(YU, 4), vIM, R4(WS)))
            if k < 4:
                cl.append('s_add_u32 s66, s66, 8192')
        emit(a, both2(a, ool, cl))

    def m_in(lay, sl, X, per_k, prio):
        a('s_lshl_b32 s66, s%d, 13' % sX)
        a('s_lshl_b32 s67, s74, 8')
        a('s_add_u32 s66, s66, s67')
        a('s_add_u32 s66, s66, %d' % (MFL + 2048 * lay))
        a('s_mul_i32 s67, s76, %d' % MSL)
        a('s_add_u32 s67, s67, %s' % hex(MR))
        a('s_add_u32 s68, s67, 40960')
        a('s_add_u32 s69, s67, 81920')
        block_poll(a, vZ, vPO, 66)
        a('s_setprio %d' % prio)
        stamp(a, 4 * sl + 29 + 12 * lay)
        LD, FX, OK = a.newlabel('ML'), a.newlabel('MF'), a.newlabel('MO')
        a.label(LD)
        for k in range(5):
            for p in range(3):
                a('buffer_load_dwordx4 %s, v%d, %s, s%d offen sc1' % (vr(MM + 12 * k + 4 * p, 4), vIM, R4(WS), 67 + p))
                if k < 4:
                    a('s_add_u32 s%d, s%d, 8192' % (67 + p, 67 + p))
        for k in range(5):
            for p in range(3):
                a('s_waitcnt vmcnt(%d)' % (14 - 3 * k - p))
                n = 3 * k + p
                if n == 2:
                    a('v_or3_b32 v%d, v%d, v%d, v%d' % (vZ, MM, MM + 4, MM + 8))
                elif n > 2 and n & 1 == 0:
                    a('v_or3_b32 v%d, v%d, v%d, v%d' % (vZ, vZ, MM + 4 * n - 4, MM + 4 * n))
                if n == 14:
                    a('v_and_b32 v%d, %s, v%d' % (vZ, '1' if lay else '0x10000', vZ))
                    a('v_cmp_ne_u32 vcc, 0, v%d' % vZ)
                emit(a, accum(X + 8 * k, MM + 12 * k + 4 * p, 4))
            if k == 4:
                a('s_cbranch_vccnz %s' % FX)
                a.label(OK)
            per_k(k)
        def fix():
            a.label(FX)
            if STAMP == 1:
                a('v_readlane_b32 s63, v%d, 61' % vST)
                a('s_add_u32 s63, s63, 1')
                a('v_writelane_b32 v%d, s63, 61' % vST)
            a('s_add_u32 s%d, s%d, 1' % (sCNT, sCNT))
            a('s_cmp_ge_u32 s%d, s%d' % (sCNT, sLIM))
            a('s_cbranch_scc1 %s' % OK)
            a('s_xor_b32 s%d, s%d, 0x8000' % (sLO1, sLO1))
            a('s_xor_b32 s%d, s%d, 0x80000000' % (sHI1, sHI1))
            for k in range(5):
                for p in range(3):
                    emit(a, accum(X + 8 * k, MM + 12 * k + 4 * p, 4))
            a('s_xor_b32 s%d, s%d, 0x8000' % (sLO1, sLO1))
            a('s_xor_b32 s%d, s%d, 0x80000000' % (sHI1, sHI1))
            for p in range(3):
                a('s_sub_u32 s%d, s%d, 32768' % (67 + p, 67 + p))
            a('s_branch %s' % LD)
        ool.add(fix)

    def y_load(du, R, masked):
        a('s_add_u32 s67, s74, %d' % du)
        a('s_min_u32 s67, s67, 7')
        a('s_lshl_b32 s67, s67, 3')
        a('s_add_u32 s67, s67, s%d' % sX)
        a('s_mul_i32 s67, s67, 40960')
        a('s_add_u32 s67, s67, %s' % hex(YT))
        for k in range(5):
            if masked:
                a('s_mov_b64 exec, s[%d:%d]' % (MK[k], MK[k] + 1))
            if k & 1 == 0 and k:
                a('s_add_u32 s67, s67, 4096')
            a('buffer_load_dwordx4 %s, v%d, %s, s67 offen offset:%d sc1' % (vr(R + 4 * k, 4), vYG, R4(WS), 2048 * (k & 1)))

    def y_take(R, masked, young):
        for k in range(5):
            if masked:
                a('s_mov_b64 exec, s[%d:%d]' % (MK[k], MK[k] + 1))
            a('s_waitcnt vmcnt(%d)' % (young + 4 - k))
            a('v_max3_u32 v%d, v%d, v%d, v%d' % (vT0, R + 4 * k, R + 4 * k + 1, R + 4 * k + 2))
            a('ds_write_b128 v%d, %s offset:%d' % (vYP, vr(R + 4 * k, 4), 1024 * k))
            a('v_max_u32 v%d, v%d, v%d' % (vT0, vT0, R + 4 * k + 3))
            a('v_cmp_eq_u32 s[%d:%d], -1, v%d' % (MK[k], MK[k] + 1, vT0))
        if masked:
            a('s_mov_b64 exec, -1')
        a('s_or_b64 s[64:65], s[%d:%d], s[%d:%d]' % (MK[0], MK[0] + 1, MK[1], MK[1] + 1))
        a('s_or_b64 s[80:81], s[%d:%d], s[%d:%d]' % (MK[2], MK[2] + 1, MK[3], MK[3] + 1))
        a('s_or_b64 s[64:65], s[64:65], s[%d:%d]' % (MK[4], MK[4] + 1))
        a('s_or_b64 s[80:81], s[80:81], s[64:65]')

    def q_reads(sl, dl):
        a('s_add_u32 s66, s75, %d' % dl)
        a('v_add_u32 v%d, s66, v%d' % (vT0, vQA))
        for k in range(5):
            a('ds_read_b128 %s, v%d offset:%d' % (vr(XS + 40 * sl + 20 + 4 * k, 4), vT0, 256 * k))

    for sl in range(3):
        X = XS + 40 * sl
        head('A', sl)
        a('v_add_u32 v%d, s75, v%d' % (vYP, vL16))
        if sl == 0:
            q_reads(0, 0)
            for k in range(5):
                a('s_mov_b64 s[%d:%d], -1' % (MK[k], MK[k] + 1))
            a('s_waitcnt lgkmcnt(0)')
        else:
            y_take(X, False, 5)
            a('s_waitcnt lgkmcnt(5)')
        for k in range(5):
            emit(a, unpack(X + 8 * k, X + 20 + 4 * k, 4))
            emit(a, sums(X, TS, k))
        emit(a, finish(TS, False))
        emit(a, norm(DD, X, 40))
        stamp(a, 4 * sl + 16)
        def fetch(sl=sl):
            a.label('SA_F%d' % sl)
            a('s_mov_b32 s%d, 0' % sCNT)
            a.label('SA_YL%d' % sl)
            y_load(0, ZP, True)
            a('s_add_u32 s%d, s%d, 1' % (sCNT, sCNT))
            y_take(ZP, True, 0)
            a('s_cbranch_scc0 SA_G%d' % sl)
            a('s_cmp_lt_u32 s%d, s%d' % (sCNT, sLIM))
            a('s_cbranch_scc1 SA_YL%d' % sl)
            a('s_mov_b32 s%d, 0' % sLIM)
            if sl:
                a('s_branch SA_G%d' % sl)
        if sl == 0:
            z_wipe(0)
            fetch()
        else:
            a('s_cmp_lg_u64 s[80:81], 0')
            a('s_cbranch_scc1 SA_F%d' % sl)
            ool.add(fetch)
        a.label('SA_G%d' % sl)
        stamp(a, 4 * sl + 17)
        a('v_mov_b32 v%d, %d' % (vYP + 3, sl + 1))
        a('ds_write_b32 v%d, v%d' % (vYP + 1, vYP + 3))
        a('ds_read_b128 %s, v%d' % (vr(ZP, 4), vYP + 2))
        cnt_spin(a, ool, ZP, vYP + 2, vYP + 3)
        a('s_setprio %d' % SPA[0])
        a('s_waitcnt vmcnt(0)')
        y_reads()
        stamp(a, 4 * sl + 18)
        for k in range(5):
            a('s_waitcnt lgkmcnt(%d)' % (8 - 2 * k))
            emit(a, unpack(YU + 8 * k, ZP + 4 * k, 4))
            emit(a, gate(k, X))
            emit(a, sums(X, TS, k))
        z_out(0, X, SPA[1])
        stamp(a, 4 * sl + 19)
        if sl < 2:
            q_reads(sl + 1, 40960)
            y_load(3, XS + 40 * sl + 40, False)
            if sl == 1:
                a('s_cmp_eq_u32 s70, 2')
                a('s_cbranch_scc1 SA_END')
            z_wipe(3)
        if sl == 0:
            a('s_cmp_lg_u32 s2, 232')
            a('s_cbranch_scc1 SA_E')
            a('s_cmp_lg_u32 s%d, 0' % sW)
            a('s_cbranch_scc1 SA_E')
            a('s_mov_b32 s66, 0')
            flag_store(a, 66, vZ, True)
            a.label('SA_E')
    a.label('SA_END')
    for sl in range(3):
        X = XS + 40 * sl
        head('B', sl)
        y_reads()
        for k in range(5):
            a('s_waitcnt lgkmcnt(%d)' % (8 - 2 * k))
            emit(a, unpack(YU + 8 * k, ZP + 4 * k, 4))
        stamp(a, 4 * sl + 28)
        m_in(0, sl, X, lambda k: emit(a, sums(X, TS, k)), SPB[0])
        a('s_setprio %d' % SPB[1])
        stamp(a, 4 * sl + 30)
        emit(a, finish(TS, False))
        for k in range(5):
            emit(a, norm(DD + 8 * k, X + 8 * k, 8))
            emit(a, gate(k, X))
            emit(a, sums(X, TS, k))
        z_out(1, X, SPB[2])
        stamp(a, 4 * sl + 31)
    a.label('SB_END')
    row_table(a, YU, YU + 6)
    for sl in range(3):
        X = XS + 40 * sl
        head('C', sl)
        a('v_add_u32 v%d, s75, v%d' % (vT0, vQA))
        for k in range(5):
            a('v_add_u32 v%d, s75, v%d' % (PS + k, YU + k))
        a('s_add_u32 s77, s73, %d' % (768 * 1280 * sl))
        stamp(a, 4 * sl + 40)
        def ck(k):
            for i in range(4):
                a('v_cvt_pk_bf16_f32 v%d, v%d, v%d' % (YU + 8 + 4 * k + i, X + 8 * k + 2 * i, X + 8 * k + 2 * i + 1))
            a('ds_write_b128 v%d, %s offset:%d' % (vT0, vr(YU + 8 + 4 * k, 4), 256 * k))
        m_in(1, sl, X, ck, SPC)
        stamp(a, 4 * sl + 42)
        for k in range(5):
            a('ds_read_b128 %s, v%d' % (vr(MM + 4 * k, 4), PS + k))
        a('s_add_u32 s66, s77, 4096')
        for k in range(5):
            a('s_waitcnt lgkmcnt(%d)' % (4 - k))
            a('buffer_store_dwordx4 %s, v%d, %s, s%d offen offset:%d' % (vr(MM + 4 * k, 4), vL16, R4(RB), 77 if k < 4 else 66, 1024 * (k & 3)) + (' sc1' if OSC else ''))
        a('s_setprio 0')
        stamp(a, 4 * sl + 43)
    a.label('SC_END')
    endk(a, 0)
    ool.flush()


def kernel():
    a = Asm()
    c1 = -2.0 * math.sqrt(2.0 / math.pi) * math.log2(math.e)
    a('s_cmp_ge_u32 s2, 256')
    a('s_cbranch_scc1 END')
    a('s_load_dwordx2 s[26:27], s[0:1], 104')
    a('s_load_dwordx4 s[4:7], s[0:1], 0')
    a('s_load_dwordx4 s[8:11], s[0:1], 16')
    a('s_load_dwordx4 s[12:15], s[0:1], 32')
    a('s_load_dwordx4 s[16:19], s[0:1], 56')
    a('s_load_dwordx4 s[20:23], s[0:1], 72')
    a('s_load_dwordx2 s[24:25], s[0:1], 88')
    a('v_lshrrev_b32 v1, 6, v0')
    a('v_readfirstlane_b32 s%d, v1' % sW)
    a('v_and_b32 v%d, 63, v0' % vL)
    a('v_lshlrev_b32 v%d, 4, v%d' % (vL16, vL))
    a('v_lshlrev_b32 v%d, 2, v%d' % (vL4, vL))
    a('s_and_b32 s%d, s2, 7' % sX)
    a('s_lshr_b32 s%d, s2, 3' % sI)
    a('s_and_b32 s%d, s%d, 3' % (sQ, sW))
    a('s_lshr_b32 s%d, s%d, 2' % (sHF, sW))
    if STAMP:
        a('v_mov_b32 v%d, 0' % vST)
    for r in (12, 13, 14, 15):
        a('v_mov_b32 v%d, 0' % r)
    a('v_add_u32 v4, %d, v%d' % (L_SYNC, vL4))
    a('ds_write_b32 v4, v12')
    a('ds_write_b32 v%d, v12 offset:%d' % (vL4, 2 * CSL))
    a('v_add_u32 v4, %d, v%d' % (4 * CSL, vL4))
    a('ds_write_b32 v4, v12')
    a('s_lshl_b32 s64, s%d, 10' % sW)
    a('s_add_u32 s64, s64, %d' % L_KST)
    a('v_add_u32 v4, s64, v%d' % vL16)
    a('ds_write_b128 v4, v[12:15]')
    a('s_movk_i32 s65, 5958')
    a('s_movk_i32 s66, 1104')
    a('s_add_u32 s67, s%d, 8' % sQ)
    a('s_lshl_b32 s67, s67, 6')
    for d, src in ((8, 'v0'), (9, None)):
        if src is None:
            a('v_add_u32 v9, s67, v%d' % vL)
            src = 'v9'
        a('v_mul_u32_u24 v10, s65, %s' % src)
        a('v_lshrrev_b32 v10, 16, v10')
        a('v_mul_u32_u24 v11, 11, v10')
        a('v_sub_u32 v11, %s, v11' % src)
        a('v_lshlrev_b32 v%d, 4, %s' % (d, src))
        a('v_mad_u32_u24 v%d, v10, s66, v%d' % (d, d))
        a('v_cmp_eq_u32 vcc, 10, v11')
        a('v_mov_b32 v11, 0x40000000')
        a('v_cndmask_b32 v%d, v%d, v11, vcc' % (d, d))
    a('s_mul_i32 s65, s%d, %d' % (sI, 64 * 1280))
    a('s_mul_i32 s66, s%d, 160' % sX)
    a('s_add_u32 s65, s65, s66')
    a('s_sub_u32 s66, s65, 5120')
    a('v_add_u32 v10, s66, v8')
    a('v_add_u32 v8, s65, v8')
    a('s_cmp_eq_u32 s%d, 0' % sHF)
    a('s_cselect_b32 s65, s66, s65')
    a('v_add_u32 v9, s65, v9')
    a('s_getreg_b32 s%d, hwreg(HW_REG_XCC_ID, 0, 3)' % sXCC)
    a('s_mov_b32 s%d, %d' % (sLIM, LIMIT))
    a('s_mov_b32 s%d, 0xffff0000' % sHI)
    a('s_mov_b32 s%d, 0x3acccccd' % sINV)
    a('s_mov_b32 s%d, 0x3727c5ac' % sEPS)
    a('s_mov_b32 s%d, %s' % (sC2, f2h(c1 * 0.044715)))
    a('s_mov_b32 s%d, 0x3f80' % sLO1)
    a('s_mov_b32 s%d, 0x3f800000' % sHI1)
    a('s_mov_b32 s%d, 0' % sSLOW)
    a('s_mov_b32 m0, s64')
    a('s_waitcnt lgkmcnt(0)')
    srd(a, WS, pWS, '0x10000000')
    srd(a, RB, pK, hex(ROWS_B))
    srd(a, RC, pV, hex(ROWS_B))
    a('buffer_load_dword v4, off, %s, 0 sc1' % R4(WS))
    a('buffer_load_dwordx4 v10, %s, 0 offen lds' % R4(RB))
    a('s_add_u32 m0, s64, %d' % (L_VST - L_KST))
    a('buffer_load_dwordx4 v8, %s, 0 offen lds' % R4(RC))
    a('s_cmp_eq_u32 s%d, 0' % sHF)
    a('s_cselect_b64 s[%d:%d], s[%d:%d], s[%d:%d]' % (RC, RC + 1, RB, RB + 1, RC, RC + 1))
    a('s_cselect_b32 s65, %d, s%d' % (L_KST + 8192, sLIM))
    a('s_cselect_b32 s66, 0, %d' % (L_VST + 8192 - LIMIT))
    a('s_add_u32 s65, s65, s66')
    a('s_lshl_b32 s66, s%d, 10' % sQ)
    a('s_add_u32 m0, s65, s66')
    a('buffer_load_dwordx4 v9, %s, 0 offen lds' % R4(RC))
    for r in (RA, RD):
        a('s_mov_b64 s[%d:%d], s[%d:%d]' % (r, r + 1, WS, WS + 1))
        a('s_mov_b64 s[%d:%d], s[%d:%d]' % (r + 2, r + 3, WS + 2, WS + 3))
    for r in range(QT, QT + 5):
        a('v_mov_b32 v%d, 0' % r)
    stamp(a, 0)
    a('s_barrier')
    a('s_cmp_ge_u32 s%d, 5' % sW)
    a('s_cbranch_scc1 E_BLD')
    for kvw in (1, 0):
        if not kvw:
            a.label('E_BLD')
        a('s_cmp_ge_u32 s%d, 29' % sI)
        a('s_cbranch_scc1 E_%d0' % kvw)
        a('s_cmp_ge_u32 s%d, 14' % sI)
        a('s_cbranch_scc1 E_%d2' % kvw)
        early(a, 1, kvw)
        a.label('E_%d2' % kvw)
        early(a, 2, kvw)
        a.label('E_%d0' % kvw)
        early(a, 0, kvw)
    kv_phase(a)
    conv_phase(a)
    g_phase(a, 1)
    g_phase(a, 2)
    s_phase(a)
    a.label('END')
    a('s_endpgm')
    return a.lines


def build():
    ref = open('cdna_kernels/%s.s.ref' % NAME).read().split('\n')
    head = [l for l in ref if l.startswith(';') and '@launch' not in l and 'Override launch' not in l and 'grid=ceil' not in l]
    s = '\n'.join(head) + '\n'
    s += '; @launch grid=(256,1,1) block=(512,1,1) lds=163840\n'
    s += '.amdgcn_target "amdgcn-amd-amdhsa--gfx950"\n.text\n'
    s += kernel_text(NAME + '_kernel', kernel(), 256)
    s += '.section .rodata,"a"\n'
    s += descriptor_text(NAME + '_kernel', 256, 102)
    return s


if __name__ == '__main__':
    open(sys.argv[1], 'w').write(build())
```

```python
import sys, os, math, struct
from asmlib import *

NAME = 'interleave_layers__ssm_conv_h3__mixer_channel_mlp__prompt'
E = lambda k, d: int(os.environ.get(k, d))
STAMP, FORCE_SLOW, LIMIT = E('STAMP', 0), E('FORCE_SLOW', 0), 20000
NA1, NA2 = E('NA1', 12), E('NA2', 0)
PA, P1, P2_ = E('PA', 24), E('P1', 12), E('P2', 6)
PF1, PF2 = E('PF1', 1), E('PF2', 1)
B0 = E('B0', 1)
PB = E('PB', 24)
P1A, P2A = E('P1A', 0), E('P2A', 0)
RL = E('RL', 0)
CU_ = [int(x) for x in os.environ.get('CUN', '8,4,2,2,2').split(',')]
HFK, PLK, DST = E('HFK', 8), E('PLK', 12), E('DST', 6)
PRIO = [int(x) for x in os.environ.get('PRIO', '1,2,0').split(',')]
PRK = E('PRK', 8)
SMOOTH = E('SMOOTH', 1)
EARLYF = E('EARLYF', 0)
SPA = [int(x) for x in os.environ.get('SPA', '2,3').split(',')]
SPB = [int(x) for x in os.environ.get('SPB', '1,2,3').split(',')]
SPC = E('SPC', 0)
WBL = E('WBL', 0)
OSC = E('OSC', 0)
NOREDO, NOWIPE = E('NOREDO', 0), E('NOWIPE', 0)
RCNT = E('RCNT', 0)
NOCHK = E('NOCHK', 0)

EPOCH, HELLO, KVFA, KVFB, CLR, ZF, HFL, MFL, DUMMY = 0, 0x40000, 0x2000, 0x4000, 0x50000, 0xC000, 0x10000, 0x20000, 0x30000
KVA, KVB, YT, ZI, HB, MR = 0x100000, 0x400000, 0x700000, 0x1000000, 0x1400000, 0x1C00000
ZSL, HSL, MSL = 40960, 114688, 122880
STAMPS = 0x8000000
ROWS_B = 2048 * 1280
L_KST, L_VST, L_OST, L_SYNC = 122880, 135168, 147456, 163328
CSL, CUO, HSTR = 21248, 16640, 4160
RING = {1: 45056, 2: 86016}
LF_LND, LF_DON, LF_I0 = L_SYNC, L_SYNC + 32, L_SYNC + 64
pQ, pK, pV, pSH, pH, pD, pW1, pB1, pW2, pB2, pOUT, pWS = 4, 6, 8, 10, 12, 14, 16, 18, 20, 22, 24, 26
sX, sW, sI, sQ = 28, 29, 30, 31
WS, RA, RB, RC, RD = 32, 36, 40, 44, 48
sHF, sTAG, sXCC, sSLOW, sP, sLIM, sCNT = 52, 53, 54, 55, 56, 57, 58
sHI, sINV, sEPS, sC2 = 59, 60, 61, 62
sLO1, sHI1 = 89, 90
sST = 86
sWO, sWL, sWS = 91, 92, 93
vL, vL16, vL4, vST = 1, 2, 3, 7
vWO, vWT = 8, 9
WB = {1: 96, 2: 112}
NK = {1: 40, 2: 36}
RS = {1: 3456, 2: 1280}
NA = {1: NA1, 2: NA2}
NR = {1: 29, 2: 19}
NC = {1: 11, 2: 17}
DUM = {1: 252, 2: 96}
assert NA1 <= 19 and NA2 in (0, 3, 6, 9)

f2h = lambda x: hex(struct.unpack('<I', struct.pack('<f', x))[0])
R4 = lambda d: 's[%d:%d]' % (d, d + 3)
P2 = lambda r: 'v[%d:%d]' % (r, r + 1)


def srd(a, d, p, size, add=None):
    if add is None:
        a('s_mov_b32 s%d, s%d' % (d, p)); a('s_mov_b32 s%d, s%d' % (d + 1, p + 1))
    else:
        a('s_add_u32 s%d, s%d, %s' % (d, p, add)); a('s_addc_u32 s%d, s%d, 0' % (d + 1, p + 1))
    a('s_mov_b32 s%d, %s' % (d + 2, size)); a('s_mov_b32 s%d, 0x20000' % (d + 3))


def stamp(a, idx):
    if not STAMP:
        return
    a('%s s[%d:%d]' % ('s_memtime' if os.environ.get('CLK') else 's_memrealtime', sST, sST + 1))
    if isinstance(idx, tuple):
        a('s_mul_i32 s88, s%d, %d' % (idx[0], idx[1]))
        a('s_add_u32 s88, s88, %d' % idx[2])
        a('s_lshl_b64 exec, 1, s88')
        a('s_waitcnt lgkmcnt(0)')
        a('v_mov_b32 v%d, s%d' % (vST, sST))
        a('s_mov_b64 exec, -1')
    else:
        a('s_waitcnt lgkmcnt(0)')
        a('v_writelane_b32 v%d, s%d, %d' % (vST, sST, idx))


DBGMAP = {1: {0: 1, 3: 2, 6: 3, 10: 6, 16: 7, 44: 10, 63: 12, 12: 15},
          2: {0: 1, 3: 2, 6: 3, 10: 8, 16: 9, 44: 11, 63: 13},
          0: {0: 1, 3: 2, 17: 4, 19: 5, 63: 14}}


def endk(a, role):
    if STAMP == 2:
        a('s_waitcnt vmcnt(0)')
        stamp(a, 63)
        if role:
            a('s_cmp_lg_u32 s%d, %d' % (sI, 3 if role == 1 else 17))
            a('s_cbranch_scc1 END')
            a('s_and_b32 s63, s%d, 3' % sW)
            a('s_cmp_lg_u32 s63, %d' % (3 if role == 1 else 0))
            a('s_cbranch_scc1 END')
        else:
            a('s_cmp_lg_u32 s%d, 0' % sQ)
            a('s_cbranch_scc1 END')
        a('s_load_dwordx2 s[64:65], s[0:1], 96')
        a('v_readlane_b32 s63, v%d, 0' % vST)
        a('s_not_b32 s63, s63')
        a('v_writelane_b32 v%d, s63, 62' % vST)
        a('v_mov_b32 v10, 0x1000')
        for k, w in list(DBGMAP[role].items()) + [(62, 0)]:
            a('s_movk_i32 s63, %d' % (4 * w))
            a('v_writelane_b32 v10, s63, %d' % k)
        a('s_waitcnt lgkmcnt(0)')
        srd(a, RD, 64, 256)
        a('buffer_atomic_umax v%d, v10, %s, 0 offen sc1' % (vST, R4(RD)))
    elif STAMP:
        a('s_waitcnt vmcnt(0)')
        stamp(a, 63)
        a('s_lshl_b32 s63, s2, 3')
        a('s_add_u32 s63, s63, s%d' % sW)
        a('s_lshl_b32 s63, s63, 8')
        a('s_add_u32 s63, s63, %s' % hex(STAMPS))
        a('s_mov_b64 exec, -1')
        a('v_mbcnt_lo_u32_b32 v10, -1, 0')
        a('v_mbcnt_hi_u32_b32 v10, -1, v10')
        a('v_lshlrev_b32 v10, 2, v10')
        a('buffer_store_dword v%d, v10, %s, s63 offen' % (vST, R4(WS)))
    a('s_endpgm')


def setexec(a, n):
    if n == 64:
        a('s_mov_b64 exec, -1')
    elif n <= 6:
        a('s_mov_b64 exec, %d' % ((1 << n) - 1))
    elif n <= 32:
        a('s_mov_b32 exec_lo, %s' % ('-1' if n == 32 else hex((1 << n) - 1))); a('s_mov_b32 exec_hi, 0')
    else:
        a('s_mov_b32 exec_lo, -1'); a('s_mov_b32 exec_hi, %s' % hex((1 << (n - 32)) - 1))


def emit(a, lst):
    for l in lst:
        a(l)


def flag_store(a, soff, vT, sc1):
    a('v_mov_b32 v%d, s%d' % (vT, sTAG))
    a('s_mov_b64 exec, 1')
    a('buffer_store_dword v%d, off, %s, s%d%s' % (vT, R4(WS), soff, ' sc1' if sc1 else ''))
    a('s_mov_b64 exec, -1')


def hello_load(a, vT, st):
    a('s_lshl_b32 s%d, s%d, 12' % (st, sX))
    a('s_add_u32 s%d, s%d, %d' % (st, st, HELLO))
    a('v_and_b32 v%d, 0x7c, v%d' % (vT + 2, vL4))
    a('v_lshlrev_b32 v%d, 5, v%d' % (vT + 2, vT + 2))
    a('buffer_load_dword v%d, v%d, %s, s%d offen sc1' % (vT, vT + 2, R4(WS), st))


def hello_store(a, young):
    a('s_lshl_b32 s66, s2, 7')
    a('s_and_b32 s66, s66, 0x380')
    a('s_lshl_b32 s66, s66, 5')
    a('s_lshl_b32 s67, s%d, 7' % sI)
    a('s_add_u32 s66, s66, s67')
    a('s_add_u32 s66, s66, %d' % HELLO)
    a('s_cmp_eq_u32 s%d, 7' % sW)
    a('s_cselect_b32 s67, 0, 0x10000000')
    a('v_mov_b32 v5, s67')
    a('s_lshl_b32 s67, s%d, 1' % sXCC)
    a('s_waitcnt vmcnt(%d)' % young)
    get_tag(a, 4)
    a('s_xor_b32 s67, s67, s%d' % sTAG)
    a('v_mov_b32 v4, s67')
    a('s_mov_b64 exec, 1')
    a('buffer_store_dword v4, v5, %s, s66 offen sc1' % R4(WS))
    a('s_mov_b64 exec, -1')


def hello_check(a, vT, st, young):
    L, C, D = a.newlabel('HL'), a.newlabel('HC'), a.newlabel('HD')
    a('s_mov_b32 s%d, 0' % sCNT)
    a('s_waitcnt vmcnt(%d)' % young)
    a('s_branch %s' % C)
    a.label(L)
    a('buffer_load_dword v%d, v%d, %s, s%d offen sc1' % (vT, vT + 2, R4(WS), st))
    a('s_add_u32 s%d, s%d, 1' % (sCNT, sCNT))
    a('s_waitcnt vmcnt(0)')
    a.label(C)
    a('v_xor_b32 v%d, s%d, v%d' % (vT, sTAG, vT))
    a('v_cmp_lt_u32 vcc, 15, v%d' % vT)
    a('v_and_b32 v%d, 1, v%d' % (vT + 1, vT))
    a('v_cmp_ne_u32 s[64:65], 0, v%d' % (vT + 1))
    a('s_or_b64 vcc, vcc, s[64:65]')
    a('s_cbranch_vccz %s' % D)
    a('s_cmp_lt_u32 s%d, s%d' % (sCNT, sLIM))
    a('s_cbranch_scc1 %s' % L)
    a('s_mov_b32 s%d, 0' % sLIM)
    a.label(D)
    a('s_lshl_b32 s%d, s%d, 1' % (st, sXCC))
    a('v_cmp_ne_u32 vcc, s%d, v%d' % (st, vT))
    a('s_cmp_lg_u64 vcc, 0')
    a('s_cselect_b32 s%d, 1, %d' % (sSLOW, FORCE_SLOW))


def get_tag(a, vE):
    a('v_readfirstlane_b32 s%d, v%d' % (sTAG, vE))
    a('s_mul_i32 s%d, s%d, 0x9E3779B1' % (sTAG, sTAG))
    a('s_add_u32 s%d, s%d, 0x7F4A7C15' % (sTAG, sTAG))


class Ool:
    def __init__(self, a):
        self.a, self.q = a, []
    def add(self, fn):
        self.q.append(fn)
    def flush(self):
        while self.q:
            self.q.pop(0)()


def both2(a, ool, texts):
    if isinstance(texts, str):
        texts = [texts]
    S, R = a.newlabel('BS'), a.newlabel('BR')
    def slow():
        a.label(S)
        for t in texts:
            a(t + ' sc1' if t.startswith('buffer_') else t)
        a('s_branch %s' % R)
    ool.add(slow)
    return ['s_cmp_lg_u32 s%d, 0' % sSLOW, 's_cbranch_scc1 %s' % S] + texts + [R + ':']


def oob_lane0(a, v):
    a('v_cmp_eq_u32 vcc, 0, v%d' % vL4)
    a('v_mov_b32 v%d, 0x10000000' % v)
    a('v_cndmask_b32_e64 v%d, v%d, 0, vcc' % (v, v))


def cnt_min(X):
    return ['v_min_u32 v%d, v%d, v%d' % (X, X, X + 1), 'v_min3_u32 v%d, v%d, v%d, v%d' % (X, X, X + 2, X + 3)]


def cnt_spin(a, ool, X, vLine, vCnt, pre=None):
    S, R = a.newlabel('CS'), a.newlabel('CR')
    def spin():
        L = a.newlabel('CL')
        a.label(S)
        if pre:
            pre()
        a('s_mov_b32 s%d, 0' % sCNT)
        a.label(L)
        a('ds_read_b128 %s, v%d' % (vr(X, 4), vLine))
        a('s_add_u32 s%d, s%d, 1' % (sCNT, sCNT))
        a('s_waitcnt lgkmcnt(0)')
        emit(a, cnt_min(X))
        a('v_cmp_gt_u32 vcc, v%d, v%d' % (vCnt, X))
        a('s_cbranch_vccz %s' % R)
        a('s_cmp_lt_u32 s%d, %d' % (sCNT, 4 * LIMIT))
        a('s_cbranch_scc1 %s' % L)
        a('s_branch %s' % R)
    ool.add(spin)
    a('s_waitcnt lgkmcnt(0)')
    emit(a, cnt_min(X))
    a('v_cmp_gt_u32 vcc, v%d, v%d' % (vCnt, X))
    a('s_cbranch_vccnz %s' % S)
    a.label(R)


def block_poll(a, v, vOff, so):
    L, D = a.newlabel('PL'), a.newlabel('PD')
    a('s_mov_b32 s%d, 0' % sCNT)
    a.label(L)
    a('buffer_load_dword v%d, v%d, %s, s%d offen sc1' % (v, vOff, R4(WS), so))
    a('s_add_u32 s%d, s%d, 1' % (sCNT, sCNT))
    a('s_waitcnt vmcnt(0)')
    a('v_cmp_ne_u32 vcc, s%d, v%d' % (sTAG, v))
    a('s_cbranch_vccz %s' % D)
    a('s_cmp_lt_u32 s%d, s%d' % (sCNT, sLIM))
    a('s_cbranch_scc1 %s' % L)
    a('s_mov_b32 s%d, 0' % sLIM)
    a.label(D)


def dummy_off(a, sD):
    a('s_lshl_b32 s%d, s2, 7' % sD)
    a('s_lshl_b32 s63, s%d, 2' % sW)
    a('s_add_u32 s%d, s%d, s63' % (sD, sD))
    a('s_add_u32 s%d, s%d, %d' % (sD, sD, DUMMY))


class LdsQ:
    def __init__(self, a):
        self.a, self.q = a, []
    def issue(self, key, text):
        self.a(text); self.q.append(key)
    def wait(self, keys):
        last = -1
        for i, k in enumerate(self.q):
            if k in keys:
                last = i
        if last >= 0:
            n = len(self.q) - 1 - last
            self.a('s_waitcnt lgkmcnt(%d)' % n)
            self.q = self.q[last + 1:]


def g2_ids(a, sk, sc):
    a('s_sub_u32 s%d, s%d, 14' % (sc, sI))
    a('s_mul_i32 s%d, s%d, 52' % (sk, sc))
    a('s_lshr_b32 s%d, s%d, 8' % (sk, sk))
    a('s_mul_i32 s63, s%d, 5' % sk)
    a('s_sub_u32 s%d, s%d, s63' % (sc, sc))


def w_setup(a, g):
    if g == 1:
        srd(a, RA, pW1, 640 * 3456)
        a('s_lshl_b32 s66, s%d, 8' % sI)
    else:
        srd(a, RA, pW2, 1728 * 1280)
        g2_ids(a, 66, 67)
        a('s_mul_i32 s66, s66, %d' % (576 * 1280))
        a('s_lshl_b32 s67, s67, 8')
        a('s_add_u32 s66, s66, s67')
    a('v_lshrrev_b32 v10, 4, v%d' % vL)
    a('v_bfe_u32 v11, v%d, 2, 2' % vL)
    a('v_xor_b32 v12, v10, v11')
    a('v_and_b32 v13, 3, v%d' % vL)
    a('v_lshl_add_u32 v12, v12, 2, v13')
    a('v_mul_u32_u24 v%d, %d, v10' % (vWO, RS[g]))
    a('v_lshl_add_u32 v%d, v12, 4, v%d' % (vWO, vWO))
    a('v_add_u32 v%d, s66, v%d' % (vWO, vWO))
    a('v_lshrrev_b32 v12, 5, v%d' % vL)
    a('v_lshl_add_u32 v12, v12, 3, v11')
    a('v_lshlrev_b32 v%d, 8, v12' % vWT)
    a('v_xor_b32 v12, s%d, v11' % sQ)
    a('v_lshl_add_u32 v%d, v12, 6, v%d' % (vWT, vWT))
    a('v_and_b32 v12, 1, v13')
    a('v_lshl_add_u32 v%d, v12, 5, v%d' % (vWT, vWT))
    a('v_and_b32 v12, 1, v10')
    a('v_lshl_add_u32 v%d, v12, 4, v%d' % (vWT, vWT))
    a('v_lshrrev_b32 v12, 1, v13')
    a('v_lshl_add_u32 v%d, v12, 3, v%d' % (vWT, vWT))


def w_begin(a, g, ks0, sIdx, sub, nw, lds):
    a('s_sub_u32 s63, s%d, %d' % (sIdx, sub))
    a('s_lshl_b32 s%d, s63, 10' % sWL)
    a('s_add_u32 s%d, s%d, %d' % (sWL, sWL, lds))
    a('s_add_u32 s63, s63, %d' % (4 * ks0))
    a('s_mul_i32 s%d, s63, %d' % (sWO, 4 * RS[g]))
    a('s_mov_b32 s%d, %d' % (sWS, 4 * RS[g] * nw))


def w_piece(nw):
    return ['s_mov_b32 m0, s%d' % sWL, 's_add_u32 s%d, s%d, %d' % (sWL, sWL, 1024 * nw),
            'buffer_load_dwordx4 v%d, %s, s%d offen lds' % (vWO, R4(RA), sWO), 's_add_u32 s%d, s%d, s%d' % (sWO, sWO, sWS)]


def w_stream(a, n, nw, P, dummy=None):
    if n == 0:
        return
    L = a.newlabel('WS')
    a('s_mov_b32 s63, %d' % n)
    a.label(L)
    a('s_waitcnt vmcnt(%d)' % (P - 1))
    if dummy is None:
        emit(a, w_piece(nw))
    else:
        a('buffer_load_dwordx4 %s, v%d, %s, s%d offen' % (vr(dummy, 4), vWO, R4(RA), sWO))
        a('s_add_u32 s%d, s%d, s%d' % (sWO, sWO, sWS))
    a('s_sub_u32 s63, s63, 1')
    a('s_cmp_lg_u32 s63, 0')
    a('s_cbranch_scc1 %s' % L)


def w_read(a, g, ks0, n, lds):
    a('v_add_u32 v10, %d, v%d' % (lds, vWT))
    for k in range(n):
        if k == 16:
            a('v_add_u32 v10, 0x10000, v10')
        for hh in range(2):
            a('ds_read_b64_tr_b16 %s, v10 offset:%d' % (vr(WB[g] + 4 * (ks0 + k) + 2 * hh, 2), 4096 * (k & 15) + 1024 * hh))
        if k % 4 == 3:
            a('s_waitcnt lgkmcnt(6)')
    a('s_waitcnt lgkmcnt(0)')


TAP = 16
HQ, HD = (16, 100), (40, 124)
QT = 76


def conv_channel(a, g, sSlot, sCh, sDum):
    if g == 1:
        a('s_lshl_b32 s%d, s%d, 1' % (sCh, sI))
    else:
        a('s_lshl_b32 s%d, s%d, 2' % (sCh, sI))
        a('s_sub_u32 s%d, s%d, 28' % (sCh, sCh))
    a('s_add_u32 s%d, s%d, s%d' % (sCh, sCh, sSlot))
    a('s_cmp_ge_u32 s%d, 80' % sCh)
    a('s_cselect_b32 s%d, 1, 0' % sDum)
    a('s_cselect_b32 s63, 80, 0')
    a('s_sub_u32 s%d, s%d, s63' % (sCh, sCh))


def ssm_loads(a, g, sSlot, n):
    conv_channel(a, g, sSlot, 66, 67)
    a('s_mul_i32 s67, s%d, 80' % sX)
    a('s_add_u32 s66, s66, s67')
    a('s_lshl_b32 s66, s66, 12')
    srd(a, RD, pH, 4096, 's66')
    a('v_subrev_u32 v10, 32, v%d' % vL16)
    a('v_subrev_u32 v11, 16, v%d' % vL16)
    a('v_add_u32 v12, 992, v%d' % vL16)
    a('buffer_load_dwordx4 %s, v10, %s, 0 offen' % (vr(HQ[n], 4), R4(RD)))
    a('buffer_load_dwordx2 %s, v11, %s, 0 offen' % (vr(HD[n], 2), R4(RD)))
    for j in range(1, 5):
        a('buffer_load_dwordx4 %s, v12, %s, 0 offen offset:%d' % (vr(HQ[n] + 4 * j, 4), R4(RD), 1024 * (j - 1)))
        a('buffer_load_dwordx2 %s, v12, %s, 0 offen offset:%d' % (vr(HD[n] + 2 * j, 2), R4(RD), 1024 * (j - 1) + 16))


def ssm_build(a, sSlot, n):
    a('s_mul_i32 s66, s%d, %d' % (sSlot, CSL))
    a('v_add_u32 v5, s66, v%d' % vL16)
    for r in range(4):
        a('v_mov_b32 v%d, 0' % (56 + r))
    setexec(a, 32)
    a('ds_write_b128 v5, v[56:59] offset:%d' % (CUO + 4096))
    setexec(a, 64)
    for j in range(5):
        if j == 4:
            a('s_mov_b64 exec, 3')
        d = [HQ[n] + 4 * j + e for e in range(4)] + [HD[n] + 2 * j, HD[n] + 2 * j + 1]
        T1, T2, T3 = 60 + 12 * (j & 1), 64 + 12 * (j & 1), 68 + 12 * (j & 1)
        a('ds_write_b128 v5, %s offset:%d' % (vr(d[0], 4), 1024 * j))
        for e in range(4):
            a('v_alignbit_b32 v%d, v%d, v%d, 16' % (T1 + e, d[e + 1], d[e]))
        a('ds_write_b128 v5, %s offset:%d' % (vr(T1, 4), 1024 * j + HSTR))
        for e in range(4):
            a('v_mov_b32 v%d, v%d' % (T2 + e, d[e + 1]))
        a('ds_write_b128 v5, %s offset:%d' % (vr(T2, 4), 1024 * j + 2 * HSTR))
        for e in range(4):
            a('v_alignbit_b32 v%d, v%d, v%d, 16' % (T3 + e, d[e + 2], d[e + 1]))
        a('ds_write_b128 v5, %s offset:%d' % (vr(T3, 4), 1024 * j + 3 * HSTR))
        if j & 1:
            a('s_waitcnt lgkmcnt(4)')
    setexec(a, 64)


def row_table(a, T, tmp):
    a('s_movk_i32 s63, 820')
    for k in range(5):
        a('v_add_u32 v%d, %d, v%d' % (tmp, 64 * k, vL))
        a('v_mul_u32_u24 v%d, s63, v%d' % (tmp + 1, tmp))
        a('v_lshrrev_b32 v%d, 16, v%d' % (tmp + 1, tmp + 1))
        a('v_lshlrev_b32 v%d, 1, v%d' % (tmp + 1, tmp + 1))
        a('v_xor_b32 v%d, v%d, v%d' % (tmp, tmp, tmp + 1))
        a('v_lshlrev_b32 v%d, 4, v%d' % (T + k, tmp))


def s_ids(a, hf=sHF, q=sQ):
    a('s_sub_u32 s70, s%d, 29' % sI)
    a('s_mul_i32 s71, s%d, 3' % hf)
    a('s_add_u32 s70, s70, s71')
    a('s_and_b32 s71, s70, 1')
    a('s_lshr_b32 s70, s70, 1')
    a('s_mul_i32 s72, s%d, 20480' % hf)
    a('s_mul_i32 s63, s%d, 5120' % q)
    a('s_add_u32 s72, s72, s63')
    a('s_lshl_b32 s73, s70, 8')
    a('s_lshl_b32 s63, s%d, 5' % sX)
    a('s_add_u32 s73, s73, s63')
    a('s_lshl_b32 s63, s71, 4')
    a('s_add_u32 s73, s73, s63')
    a('s_lshl_b32 s63, s%d, 2' % q)
    a('s_add_u32 s73, s73, s63')
    a('s_mul_i32 s73, s73, 1280')


def q_dma(a, s, QT=QT):
    a('s_add_u32 s66, s73, %d' % (768 * 1280 * s))
    a('s_min_u32 s66, s66, %d' % (ROWS_B - 5120))
    for k in range(5):
        a('s_add_u32 m0, s72, %d' % (40960 * s + 1024 * k))
        a('buffer_load_dwordx4 v%d, %s, s66 offen lds' % (QT + k, R4(RA)))


def clear(a):
    a('s_cmp_eq_u32 s%d, 6' % sW)
    a('s_cselect_b32 s67, 0, 0x10000000')
    a('v_add_u32 v6, s67, v%d' % vL16)
    for r in range(4):
        a('v_mov_b32 v%d, -1' % (12 + r))
    a('s_lshr_b32 s66, s%d, 2' % sI)
    a('s_lshl_b32 s66, s66, 3')
    a('s_add_u32 s66, s66, s%d' % sX)
    a('s_lshl_b32 s66, s66, 2')
    a('s_and_b32 s67, s%d, 3' % sI)
    a('s_add_u32 s66, s66, s67')
    a('s_mul_i32 s66, s66, 10240')
    a('s_add_u32 s66, s66, %s' % hex(YT))
    for k in range(10):
        if k and k % 4 == 0:
            a('s_add_u32 s66, s66, 4096')
        a('buffer_store_dwordx4 v[12:15], v6, %s, s66 offen offset:%d sc1' % (R4(WS), 1024 * (k & 3)))


def cleared(a):
    a('s_lshr_b32 s66, s2, 2')
    a('s_lshl_b32 s66, s66, 5')
    a('s_and_b32 s67, s2, 3')
    a('s_add_u32 s66, s66, s67')
    a('s_lshl_b32 s66, s66, 2')
    a('s_add_u32 s66, s66, %d' % CLR)
    a('v_mov_b32 v4, s%d' % sTAG)
    a('s_mov_b64 exec, 1')
    a('buffer_store_dword v4, v6, %s, s66 offen sc1' % R4(WS))
    a('s_mov_b64 exec, -1')
    stamp(a, 15)


def early(a, g, kvw):
    n = 0
    if kvw:
        srd(a, RD, pSH, 5120)
        a('s_mul_i32 s66, s%d, 640' % sX)
        a('s_lshl_b32 s67, s%d, 7' % sW)
        a('s_add_u32 s66, s66, s67')
        a('v_and_b32 v10, 3, v%d' % vL)
        a('v_lshlrev_b32 v10, 3, v10')
        for it in range(4):
            a('buffer_load_dwordx2 %s, v10, %s, s66 offen offset:%d' % (vr(TAP + 2 * it, 2), R4(RD), 32 * it))
        if g:
            w_setup(a, g)
        a('s_waitcnt vmcnt(4)')
        get_tag(a, 4)
        stamp(a, 1)
        a('s_barrier')
        a('s_branch KV')
        return
    if g == 0:
        clear(a)
        srd(a, RA, pQ, hex(ROWS_B))
        row_table(a, QT, 10)
        for r in range(3):
            a('s_add_u32 s74, s%d, %d' % (sW, 3 * r - 5))
            a('s_min_u32 s74, s74, 7')
            a('s_lshr_b32 s75, s74, 2')
            a('s_and_b32 s74, s74, 3')
            s_ids(a, 75, 74)
            q_dma(a, 0)
        hello_store(a, 28)
        a('s_waitcnt vmcnt(26)')
        stamp(a, 1)
        a('s_barrier')
        a('s_waitcnt vmcnt(16)')
        cleared(a)
        a('s_branch NOBUILD')
        return
    if g == 1:
        a('s_cmp_eq_u32 s%d, 7' % sW)
        a('s_cbranch_scc1 E_LD')
    clear(a)
    a('s_sub_u32 s68, s%d, 5' % sW)
    ssm_loads(a, g, 68, 0)
    n += 10
    if g == 2:
        a('s_mov_b32 s69, 3')
        ssm_loads(a, g, 69, 1)
        n += 10
    w_setup(a, g)
    nw = 0
    if g == 2:
        hello_store(a, 13 + n + nw)
        nw += 1
    a('s_waitcnt vmcnt(%d)' % (10 + n + nw))
    if g == 1:
        get_tag(a, 4)
    stamp(a, 1)
    a('s_barrier')
    a('s_waitcnt vmcnt(%d)' % (n - 10 + nw))
    cleared(a)
    nw += 1
    if g == 2 and NA2:
        w_begin(a, g, 0, sW, 5, 3, RING[g])
        nw += 4 * NA2 // 3
        for k in range(4 * NA2 // 3):
            emit(a, w_piece(3))
    ssm_build(a, 68, 0)
    if g == 2:
        a('s_cmp_lg_u32 s%d, 5' % sW)
        a('s_cbranch_scc1 NOBUILD')
        a('s_waitcnt vmcnt(%d)' % nw)
        ssm_build(a, 69, 1)
    a('s_branch NOBUILD')
    if g == 1:
        a.label('E_LD')
        w_setup(a, g)
        w_begin(a, g, 0, sW, 7, 1, RING[g])
        n0 = min(PA, 4 * NA1)
        for k in range(n0):
            emit(a, w_piece(1))
        hello_store(a, 3 + n0)
        a('s_waitcnt vmcnt(%d)' % (n0 + 1))
        stamp(a, 1)
        a('s_barrier')
        a('v_mov_b32 v12, %d' % (2 * CSL + 28))
        a('v_mov_b32 v10, 1')
        a('ds_write_b32 v12, v10')
        w_stream(a, 4 * NA1 - n0, 1, PB)
        a('s_branch BUILT')


def kv_phase(a):
    PV, CU, VV, T = 24, 32, 40, 48
    a.label('KV')
    a('v_and_b32 v10, 3, v%d' % vL)
    a('v_bfe_u32 v11, v%d, 2, 2' % vL)
    a('v_and_b32 v12, 0x30, v%d' % vL)
    a('v_lshl_add_u32 v12, v10, 2, v12')
    a('v_add_u32 v12, v12, v11')
    a('v_mul_u32_u24 v12, 176, v12')
    a('s_lshl_b32 s66, s%d, 5' % sW)
    a('s_add_u32 s66, s66, %d' % L_KST)
    a('v_add_u32 v12, s66, v12')
    for it in range(4):
        a('ds_read_b64_tr_b16 %s, v12 offset:%d' % (vr(PV + 2 * it, 2), 8 * it))
        a('ds_read_b64_tr_b16 %s, v12 offset:%d' % (vr(CU + 2 * it, 2), 8 * it + 704))
        a('ds_read_b64_tr_b16 %s, v12 offset:%d' % (vr(VV + 2 * it, 2), 8 * it + L_VST - L_KST))
    a('s_waitcnt vmcnt(0)')
    for r in range(8):
        a('v_alignbit_b32 v%d, v%d, v%d, 16' % (TAP + r, TAP + r, TAP + r))
    a('s_mul_i32 s66, s%d, 2560' % sW)
    a('s_add_u32 s66, s66, %d' % L_OST)
    a('v_mul_u32_u24 v13, 160, v10')
    a('v_lshrrev_b32 v11, 2, v%d' % vL)
    a('v_lshlrev_b32 v11, 3, v11')
    a('v_sub_u32 v13, v13, v11')
    a('s_add_u32 s67, s66, 120')
    a('v_add_u32 v13, s67, v13')
    a('v_lshrrev_b32 v10, 3, v%d' % vL)
    a('v_and_b32 v11, 7, v%d' % vL)
    a('v_lshlrev_b32 v11, 4, v11')
    a('v_mul_u32_u24 v14, 160, v10')
    a('v_add3_u32 v14, s66, v14, v11')
    a('v_lshl_add_u32 v5, v10, 12, v11')
    for it in range(4):
        a('s_waitcnt lgkmcnt(%d)' % (9 - 3 * it + it))
        P0, P1, C0, C1, V0, V1, W10, W32 = PV + 2 * it, PV + 2 * it + 1, CU + 2 * it, CU + 2 * it + 1, VV + 2 * it, VV + 2 * it + 1, TAP + 2 * it, TAP + 2 * it + 1
        O0, O1, O2, A, U = T, T + 1, T + 2, T + 4, T + 8
        a('v_alignbit_b32 v%d, v%d, v%d, 16' % (O0, P1, P0))
        a('v_alignbit_b32 v%d, v%d, v%d, 16' % (O1, C0, P1))
        a('v_alignbit_b32 v%d, v%d, v%d, 16' % (O2, C1, C0))
        for t, (h, l) in enumerate(((O1, O0), (C0, P1), (O2, O1), (C1, C0))):
            a('v_dot2_f32_bf16 v%d, v%d, v%d, 0' % (A + t, l, W32))
        a('v_lshlrev_b32 v%d, 16, v%d' % (U, V0))
        a('v_and_b32 v%d, s%d, v%d' % (U + 1, sHI, V0))
        for t, (h, l) in enumerate(((O1, O0), (C0, P1), (O2, O1), (C1, C0))):
            a('v_dot2c_f32_bf16 v%d, v%d, v%d' % (A + t, h, W10))
        a('v_lshlrev_b32 v%d, 16, v%d' % (U + 2, V1))
        a('v_and_b32 v%d, s%d, v%d' % (U + 3, sHI, V1))
        for t in range(4):
            a('v_mul_f32 v%d, v%d, v%d' % (A + t, A + t, U + t))
        a('v_cvt_pk_bf16_f32 v%d, v%d, v%d' % (PV + 2 * it, A + 3, A + 2))
        a('v_cvt_pk_bf16_f32 v%d, v%d, v%d' % (PV + 2 * it + 1, A + 1, A))
        a('ds_write_b64 v13, %s offset:%d' % (vr(PV + 2 * it, 2), 640 * it))
    a('s_mul_i32 s67, s%d, 80' % sX)
    a('s_lshl_b32 s66, s%d, 4' % sW)
    a('s_add_u32 s67, s67, s66')
    a('s_lshl_b32 s67, s67, 12')
    a('s_lshl_b32 s66, s%d, 7' % sI)
    a('s_sub_u32 s67, s67, s66')
    a('s_add_u32 s67, s67, 3968')
    a('ds_read_b128 %s, v14' % vr(CU, 4))
    a('ds_read_b128 %s, v14 offset:1280' % vr(CU + 4, 4))
    a('s_mul_i32 s68, s%d, 5' % sX)
    a('s_add_u32 s68, s68, s%d' % sW)
    a('s_lshl_b32 s68, s68, 7')
    a('s_lshl_b32 s66, s%d, 2' % sI)
    a('s_add_u32 s68, s68, s66')
    for k in range(2):
        a('s_add_u32 s66, s67, %s' % hex(KVA + 32768 * k))
        a('s_waitcnt lgkmcnt(%d)' % (1 - k))
        a('buffer_store_dwordx4 %s, v5, %s, s66 offen' % (vr(CU + 4 * k, 4), R4(WS)))
    stamp(a, 2)
    hello_load(a, 44, 69)
    a('s_lshl_b32 s66, s%d, 1' % sXCC)
    a('s_add_u32 s66, s66, s%d' % sTAG)
    a('v_mov_b32 v4, s66')
    a('s_add_u32 s66, s68, %d' % KVFA)
    a('s_waitcnt vmcnt(1)')
    a('s_mov_b64 exec, 1')
    a('buffer_store_dword v4, off, %s, s66' % R4(WS))
    a('s_mov_b64 exec, -1')
    stamp(a, 3)
    hello_check(a, 44, 69, 1)
    a('s_cmp_eq_u32 s%d, 0' % sSLOW)
    a('s_cbranch_scc1 ROLES')
    for k in range(2):
        a('s_add_u32 s66, s67, %s' % hex(KVB + 32768 * k))
        a('buffer_store_dwordx4 %s, v5, %s, s66 offen sc1' % (vr(CU + 4 * k, 4), R4(WS)))
    a('s_add_u32 s66, s68, %d' % KVFB)
    a('s_waitcnt vmcnt(0)')
    flag_store(a, 66, 4, True)
    a('s_branch ROLES')
    a.label('NOBUILD')
    stamp(a, 2)
    hello_load(a, 44, 69)
    hello_check(a, 44, 69, 0)
    stamp(a, 3)
    a.label('ROLES')
    a('s_cmp_ge_u32 s%d, 29' % sI)
    a('s_cbranch_scc1 S_MAIN')
    a.label('BUILT')
    stamp(a, 12)


CACC, CB, CA, CE, CT = 16, 32, 64, 96, 104
vCA, vCB = 14, 15


def conv_part(a, taus, U, mid=None, each=None):
    mf = [(aa, t - aa, t) for aa in range(max(taus) + 1) for t in taus if t >= aa]
    M = len(mf)
    nf = max(taus) + 1
    D = 8 // nf
    assert U % D == 0
    order, last, first = [], {}, {}
    for i, (aa, j, t) in enumerate(mf):
        for f in (('B', j), ('A', aa)):
            if f not in last:
                order.append(f)
                first[f] = i
            last[f] = i
    def reg(f, k):
        return (CA if f[0] == 'A' else CB) + 4 * (f[1] + nf * (k % D))
    def load(f, k):
        if f[0] == 'A':
            off = 512 * f[1] + 64 * k
            return ['ds_read_b64 %s, v%d offset:%d' % (vr(reg(f, k), 2), vCA, off),
                    'ds_read_b64 %s, v%d offset:%d' % (vr(reg(f, k) + 2, 2), vCA, off + 8)]
        return ['ds_read_b128 %s, v%d offset:%d' % (vr(reg(f, k), 4), vCB, 512 * (7 - f[1]) + 64 * k)]
    jobs = sorted((first[f] + D * M, last[f], n, f, p) for n, f in enumerate(order) for p in range(len(load(f, 0))))
    cap = -(-len(jobs) // M) if SMOOTH else 99
    slot = [[] for g in range(M)]
    t, todo = 0, list(jobs)
    while todo:
        while len(slot[t % M]) < cap:
            rdy = [x for x in todo if x[1] <= t]
            if not rdy:
                break
            todo.remove(rdy[0])
            assert t < rdy[0][0] - 2 and t < 2 * M, (taus, t, rdy[0])
            slot[t % M].append((rdy[0][3], rdy[0][4], t // M))
            if SMOOTH and cap > 1 and sum(len(x) for x in slot) * M >= (t + 1) * len(jobs) and t < M:
                break
        t += 1
    wrapped = {(f, p) for g in slot for f, p, w in g if w}
    pro = [(f, p, k) for k in range(D) for f in order for p in range(len(load(f, 0))) if not (k == D - 1 and (f, p) in wrapped)]
    live = lambda k: k < 8 or U < 8
    q, need = [(f, k) for f, p, k in pro], {}
    for k in range(8):
        for i, (aa, j, t) in enumerate(mf):
            pos = max(n for n, e in enumerate(q) if e in ((('A', aa), k), (('B', j), k)))
            assert q.count((('A', aa), k)) == 2 and q.count((('B', j), k)) == 1
            key = (k % U, i)
            need[key] = min(need.get(key, 15), len(q) - 1 - pos)
            q += [(f, k - w + D) for f, p, w in slot[i] if live(k - w + D)]
    st = [0]
    def issue(x):
        if st[0] >= 15:
            a('s_waitcnt lgkmcnt(12)')
            st[0] = 12
        a(x)
        st[0] += 1
    for f, p, k in pro:
        issue(load(f, k)[p])
    if U < 8:
        for r in range(4 * len(taus)):
            a('v_mov_b32 v%d, 0' % (CACC + r))
        L, X = a.newlabel('CL'), a.newlabel('CX')
        a('s_mov_b32 s63, 0')
        a.label(L)
        st[0] = 15
    for c in range(U):
        for i, (aa, j, t) in enumerate(mf):
            n = need[(c, i)]
            if n < st[0]:
                a('s_waitcnt lgkmcnt(%d)' % n)
                st[0] = n
            acc = CACC + 4 * (t - taus[0])
            cc = '0' if (U == 8 and c == 0 and aa == 0) else vr(acc, 4)
            a('v_mfma_f32_16x16x32_bf16 %s, %s, %s, %s' % (vr(acc, 4), vr(reg(('A', aa), c), 4), vr(reg(('B', j), c), 4), cc))
            for f, p, w in slot[i]:
                if live(c - w + D):
                    issue(load(f, c - w + D)[p])
            if U == 8 and mid and c == 4 and i == 0:
                mid()
    if U < 8:
        if each:
            each()
        a('v_add_u32 v%d, %d, v%d' % (vCA, 64 * U, vCA))
        a('v_add_u32 v%d, %d, v%d' % (vCB, 64 * U, vCB))
        a('s_add_u32 s63, s63, 1')
        a('s_cmp_lt_u32 s63, %d' % (8 // U))
        if mid:
            assert U == 4
            a('s_cbranch_scc0 %s' % X)
            mid()
            a('s_branch %s' % L)
            a.label(X)
        else:
            a('s_cbranch_scc1 %s' % L)
        a('v_subrev_u32 v%d, 512, v%d' % (vCA, vCA))
        a('v_subrev_u32 v%d, 512, v%d' % (vCB, vCB))


def conv_item(a, stages, U, st_, each=None):
    taus = [t for st in stages for t in (2 * st, 2 * st + 1)]
    conv_part(a, taus, U, None, each)
    stamp(a, st_)
    T = CT
    a('s_waitcnt lgkmcnt(8)')
    L, D = a.newlabel('CC'), a.newlabel('CD')
    a('s_mov_b32 s%d, 0' % sCNT)
    a.label(L)
    a('ds_read_b32 v10, v12 offset:32')
    for n, t in enumerate(taus):
        a('ds_read_b64 %s, v4 offset:%d' % (vr(CE + 2 * n, 2), 512 * (7 - t)))
    a('s_add_u32 s%d, s%d, 1' % (sCNT, sCNT))
    a('s_waitcnt lgkmcnt(%d)' % len(taus))
    a('v_cmp_eq_u32 vcc, 0, v10')
    a('s_cbranch_vccz %s' % D)
    a('s_cmp_lt_u32 s%d, %d' % (sCNT, 4 * LIMIT))
    a('s_cbranch_scc1 %s' % L)
    a.label(D)
    for m, stage in enumerate(stages):
        a('s_add_u32 s66, s75, %d' % (2 * 327680 * stage))
        a('s_waitcnt lgkmcnt(%d)' % (2 * (len(stages) - 1 - m)))
        Q = CT + 4 + 4 * m
        for h in range(2):
            e0, e1 = CE + 4 * m + 2 * h, CE + 4 * m + 2 * h + 1
            acc = CACC + 8 * m + 4 * h
            a('v_and_b32 v%d, s%d, v%d' % (T + 0, sHI, e1))
            a('v_lshlrev_b32 v%d, 16, v%d' % (T + 1, e1))
            a('v_and_b32 v%d, s%d, v%d' % (T + 2, sHI, e0))
            a('v_lshlrev_b32 v%d, 16, v%d' % (T + 3, e0))
            for r in range(4):
                a('v_fmac_f32 v%d, s74, v%d' % (acc + r, T + r))
            a('v_cvt_pk_bf16_f32 v%d, v%d, v%d' % (Q + 2 * h, acc, acc + 1))
            a('v_cvt_pk_bf16_f32 v%d, v%d, v%d' % (Q + 2 * h + 1, acc + 2, acc + 3))
        a('v_permlane16_swap_b32 v%d, v%d' % (Q, Q + 2))
        a('v_permlane16_swap_b32 v%d, v%d' % (Q + 1, Q + 3))
        for r in range(4):
            a('v_min_u32 v%d, -2, v%d' % (Q + r, Q + r))
        a('buffer_store_dwordx4 %s, v5, %s, s66 offen sc1' % (vr(Q, 4), R4(WS)))


def rdy_wait(a, body, off=0):
    L, D = a.newlabel('RW'), a.newlabel('RD')
    a('s_mov_b32 s%d, 0' % sCNT)
    a.label(L)
    a('ds_read_b128 v[16:19], v12 offset:%d' % off)
    a('ds_read_b128 v[20:23], v12 offset:%d' % (off + 16))
    if body:
        body()
    a('s_add_u32 s%d, s%d, 1' % (sCNT, sCNT))
    a('s_waitcnt lgkmcnt(0)')
    a('v_min3_u32 v16, v16, v17, v18')
    a('v_min3_u32 v20, v20, v21, v22')
    a('v_min3_u32 v16, v16, v19, v23')
    a('v_min_u32 v16, v16, v20')
    a('v_cmp_eq_u32 vcc, 0, v16')
    a('s_cbranch_vccz %s' % D)
    a('s_cmp_lt_u32 s%d, %d' % (sCNT, 4 * LIMIT))
    a('s_cbranch_scc1 %s' % L)
    a.label(D)


EMPTY = 0x10001


def conv_phase(a):
    a('s_cmp_ge_u32 s%d, 14' % sI)
    a('s_cbranch_scc1 CV_G2')
    a('s_and_b32 s69, s%d, 1' % sW)
    a('s_lshr_b32 s63, s%d, 1' % sW)
    a('s_lshl_b32 s63, s63, 2')
    a('s_lshr_b32 s77, 0x2814, s63')
    a('s_and_b32 s77, s77, 15')
    conv_channel(a, 1, 69, 64, 65)
    a('s_branch CV_COM')
    a.label('CV_G2')
    a('s_mov_b32 s69, s%d' % sQ)
    a('s_cmp_eq_u32 s%d, 0' % sHF)
    a('s_cselect_b32 s77, 16, 9')
    conv_channel(a, 2, 69, 64, 65)
    a.label('CV_COM')
    a('s_lshr_b32 s78, s64, 4')
    a('s_mul_i32 s79, s%d, 5' % sX)
    a('s_add_u32 s78, s78, s79')
    a('s_lshl_b32 s78, s78, 7')
    a('s_add_u32 s78, s78, %d' % KVFA)
    a('s_mul_i32 s79, s%d, 80' % sX)
    a('s_add_u32 s64, s64, s79')
    a('s_and_b32 s66, s64, 0xfffffffe')
    a('s_lshl_b32 s66, s66, 1')
    a('s_load_dword s74, s[%d:%d], s66' % (pD, pD + 1))
    a('s_lshl_b32 s79, s64, 12')
    a('s_mul_i32 s80, s69, %d' % CSL)
    a('s_add_u32 s81, s80, %d' % CUO)
    a('s_bitcmp0_b32 s77, 0')
    a('s_cbranch_scc1 CV_NOLEAD')
    a('v_and_b32 v16, 31, v%d' % vL)
    a('v_lshlrev_b32 v16, 2, v16')
    a('v_lshrrev_b32 v17, 5, v%d' % vL)
    a('v_lshl_add_u32 v16, v17, 13, v16')
    assert KVFB - KVFA == 8192
    a('s_lshl_b32 s66, s%d, 1' % sXCC)
    a('v_mov_b32 v18, s66')
    a('v_cmp_eq_u32 vcc, 0, v17')
    a('v_cndmask_b32 v18, 0, v18, vcc')
    a('v_add_u32 v18, s%d, v18' % sTAG)
    a('s_mov_b32 s%d, 0' % sCNT)
    a.label('CV_POLL')
    a('buffer_load_dword v19, v16, %s, s78 offen sc1' % R4(WS))
    a('s_add_u32 s%d, s%d, 1' % (sCNT, sCNT))
    a('s_waitcnt vmcnt(0)')
    a('v_cmp_ne_u32 vcc, v18, v19')
    a('s_mov_b32 s66, %s' % hex(KVA))
    if not FORCE_SLOW:
        a('s_cmp_eq_u32 vcc_lo, 0')
        a('s_cbranch_scc1 CV_GOT')
    a('s_mov_b32 s66, %s' % hex(KVB))
    a('s_cmp_eq_u32 vcc_hi, 0')
    a('s_cbranch_scc1 CV_GOT')
    a('s_cmp_lt_u32 s%d, s%d' % (sCNT, sLIM))
    a('s_cbranch_scc1 CV_POLL')
    a('s_mov_b32 s%d, 0' % sLIM)
    a.label('CV_GOT')
    a('s_add_u32 s66, s66, s79')
    a('s_mov_b32 m0, s81')
    for k in range(4):
        a('buffer_load_dwordx4 v%d, %s, s66 offen offset:%d sc1 lds' % (vL16, R4(WS), 1024 * k))
    a.label('CV_NOLEAD')
    stamp(a, 4)
    a('s_lshl_b32 s75, s64, 6')
    a('s_add_u32 s75, s75, %s' % hex(YT))
    a('s_lshl_b32 s65, s65, 28')
    a('v_and_b32 v16, 15, v%d' % vL)
    a('v_lshrrev_b32 v17, 4, v%d' % vL)
    a('v_add_u32 v18, 1, v16')
    a('v_and_b32 v19, 3, v18')
    a('v_mul_u32_u24 v%d, %d, v19' % (vCA, HSTR))
    a('v_lshrrev_b32 v18, 2, v18')
    a('v_lshl_add_u32 v%d, v18, 3, v%d' % (vCA, vCA))
    a('v_lshl_add_u32 v%d, v17, 4, v%d' % (vCA, vCA))
    a('v_add_u32 v%d, s80, v%d' % (vCA, vCA))
    a('v_lshlrev_b32 v18, 5, v16')
    a('v_lshlrev_b32 v19, 4, v17')
    a('v_sub_u32 v%d, v19, v18' % vCB)
    a('s_add_u32 s66, s81, 480')
    a('v_add_u32 v%d, s66, v%d' % (vCB, vCB))
    a('v_lshl_add_u32 v19, v17, 3, v18')
    a('s_add_u32 s66, s81, 504')
    a('v_sub_u32 v4, s66, v19')
    a('v_and_b32 v19, 1, v17')
    a('v_lshlrev_b32 v19, 3, v19')
    a('v_lshrrev_b32 v18, 1, v16')
    a('v_add_u32 v19, v19, v18')
    a('v_mul_u32_u24 v5, 40960, v19')
    a('v_and_b32 v18, 1, v16')
    a('v_lshl_add_u32 v5, v18, 5, v5')
    a('v_lshrrev_b32 v19, 1, v17')
    a('v_lshl_add_u32 v5, v19, 4, v5')
    a('v_add_u32 v5, s65, v5')
    a('s_waitcnt lgkmcnt(0)')
    a('s_bitcmp1_b32 s64, 0')
    a('s_cbranch_scc1 CV_DHI')
    a('s_lshl_b32 s74, s74, 16')
    a.label('CV_DHI')
    a('s_and_b32 s74, s74, 0xffff0000')
    a('s_bitcmp0_b32 s77, 0')
    a('s_cbranch_scc1 CV_RD')
    a('s_waitcnt vmcnt(0)')
    a.label('CV_RD')
    a('s_cmp_ge_u32 s%d, 14' % sI)
    a('s_cselect_b32 s66, 2, 1')
    a('s_mul_i32 s66, s66, %d' % (2 * CSL))
    a('v_mov_b32 v12, s66')
    a('s_lshl_b32 s67, s%d, 2' % sW)
    a('v_add_u32 v13, s67, v12')
    a('v_add_u32 v10, 1, s%d' % sSLOW)
    a('ds_write_b32 v13, v10')
    a('s_cmp_eq_u32 s77, 8')
    a('s_cbranch_scc1 CV_L1')
    a('s_cmp_lg_u32 s%d, 0' % sW)
    a('s_cbranch_scc1 CV_CLR')
    a('v_lshlrev_b32 v16, 7, v%d' % vL)
    a('s_mov_b32 s66, %d' % CLR)
    a('s_mov_b32 s%d, 0' % sCNT)
    a.label('CV_CL')
    a('buffer_load_dwordx4 v[20:23], v16, %s, s66 offen sc1' % R4(WS))
    a('s_add_u32 s%d, s%d, 1' % (sCNT, sCNT))
    a('s_waitcnt vmcnt(0)')
    for r in range(4):
        a('v_xor_b32 v%d, s%d, v%d' % (20 + r, sTAG, 20 + r))
    a('v_or3_b32 v20, v20, v21, v22')
    a('v_or_b32 v20, v20, v23')
    a('v_cmp_ne_u32 vcc, 0, v20')
    a('s_cbranch_vccz CV_CD')
    a('s_cmp_lt_u32 s%d, s%d' % (sCNT, sLIM))
    a('s_cbranch_scc1 CV_CL')
    a('s_mov_b32 s%d, 0' % sLIM)
    a.label('CV_CD')
    a('ds_write_b32 v12, v10 offset:32')
    a.label('CV_CLR')
    a('s_cmp_eq_u32 s77, 16')
    a('s_cbranch_scc1 CV_V2')
    rdy_wait(a, None)
    a('v_readfirstlane_b32 s%d, v22' % sSLOW)
    a('s_sub_u32 s%d, s%d, 1' % (sSLOW, sSLOW))
    a.label('CV_GO')
    stamp(a, 5)
    a('s_bitcmp0_b32 s77, 0')
    a('s_cbranch_scc1 CV_I2')
    a('s_setprio 3')
    conv_item(a, [0], CU_[0], 13)
    stamp(a, 6)
    conv_item(a, [1], CU_[1], 14)
    stamp(a, 7)
    a('s_bitcmp1_b32 s77, 3')
    a('s_cbranch_scc1 CV_L2')
    a.label('CV_I2')
    a('s_bitcmp0_b32 s77, 1')
    a('s_cbranch_scc1 CV_I3')
    conv_item(a, [2], CU_[2], 13)
    stamp(a, 8)
    a.label('CV_I3')
    a('s_setprio 0')
    a('s_bitcmp0_b32 s77, 2')
    a('s_cbranch_scc1 CV_I4')
    conv_item(a, [3], CU_[3], 13)
    stamp(a, 8)
    a.label('CV_I4')
    a('s_bitcmp0_b32 s77, 4')
    a('s_cbranch_scc1 CV_END')
    if RL:
        nr = NR[2] - NA2
        assert CU_[4] == 2
        w_begin(a, 2, NA2, sW, 0, 4, RING[2] + 4096 * NA2)
        for n in range(nr - 4 * (nr // 4)):
            emit(a, w_piece(4))
        def each():
            for n in range(nr // 4):
                emit(a, w_piece(4))
    conv_item(a, [2, 3], CU_[4], 13, each=each if RL else None)
    a('v_mov_b32 v10, 1')
    a('ds_write_b32 v13, v10 offset:64')
    a('s_waitcnt vmcnt(2)')
    stamp(a, 8)
    a('s_branch CV_END2')
    a.label('CV_V2')
    if P2A:
        w_begin(a, 2, NA2, sW, 0, 4, 0)
        a('s_mul_i32 s68, s%d, %d' % (sWS, NK[2] - NA2 - 1))
        a('s_add_u32 s68, s68, s%d' % sWO)
        def pull():
            a('s_waitcnt vmcnt(%d)' % (P2A - 1))
            a('buffer_load_dwordx4 v[128:131], v%d, %s, s%d offen' % (vWO, R4(RA), sWO))
            a('s_add_u32 s%d, s%d, s%d' % (sWO, sWO, sWS))
            a('s_min_u32 s%d, s%d, s68' % (sWO, sWO))
    rdy_wait(a, pull if P2A else None)
    a('s_branch CV_GO')
    for g, nw, P, pf in ((1, 2, P1, PF1), (2, 4, P2_, PF2)):
        nr = 4 * (NR[g] - NA[g]) // nw
        npf = 4 * NC[g] // nw if pf else 0
        if g == 2:
            a.label('CV_L2')
            a('s_setprio 0')
            if RL:
                nr = 0
        if g == 1:
            a.label('CV_L1')
            if P1A:
                w_begin(a, g, NR[g], sW, 4, nw, 0)
                w_stream(a, npf, nw, P1A, DUM[g])
                npf = 0
            stamp(a, 6)
            rdy_wait(a, None)
            stamp(a, 5)
        w_begin(a, g, NA[g] if nr else NR[g], sW, 4, nw, RING[g] + 4096 * NA[g])
        w_stream(a, nr, nw, P)
        stamp(a, 15)
        a('v_mov_b32 v10, 1')
        a('ds_write_b32 v13, v10 offset:64')
        if npf:
            a('s_mul_i32 s68, s%d, %d' % (sWS, npf - 1))
            a('s_add_u32 s68, s68, s%d' % sWO)
            def pull(g=g, P=P):
                a('s_waitcnt vmcnt(%d)' % (P - 1))
                a('buffer_load_dwordx4 %s, v%d, %s, s%d offen' % (vr(DUM[g], 4), vWO, R4(RA), sWO))
                a('s_add_u32 s%d, s%d, s%d' % (sWO, sWO, sWS))
                a('s_min_u32 s%d, s%d, s68' % (sWO, sWO))
            rdy_wait(a, pull, 64)
            a('s_cmp_lt_u32 s%d, %d' % (sCNT, P - 1))
            a('s_cbranch_scc1 CV_W%d' % g)
            a('s_waitcnt vmcnt(%d)' % (P - 1))
            stamp(a, 8)
            a('s_branch CV_END2')
            a.label('CV_W%d' % g)
        a('s_waitcnt vmcnt(0)')
        stamp(a, 8)
        a('s_branch CV_END2')
    a.label('CV_END')
    a('v_mov_b32 v10, 1')
    a('ds_write_b32 v13, v10 offset:64')
    a('s_waitcnt vmcnt(1)')
    a.label('CV_END2')
    a('s_barrier')
    stamp(a, 9)
    a('s_cmp_ge_u32 s%d, 14' % sI)
    a('s_cbranch_scc1 G2_INIT')


ZR, NZR, GE, ACC, BIAS = 24, 6, 48, 64, 80
vSO, vLN, vOW, vC1, vRD, vDN, vTH, vOB, vPO, vZ, vTG, vCN, PK, PK2 = 0, 4, 5, 6, 8, 9, 10, 11, 12, 13, 14, 15, 16, 20
vAC, vVAL = 1, 3
sMSK, sCHK = 76, 77


def count(a, sIdx):
    a('s_load_dwordx2 s[100:101], s[0:1], 96')
    a('s_lshl_b32 s%d, s%d, 2' % (sIdx, sIdx))
    a('s_waitcnt lgkmcnt(0)')
    srd(a, RC, 100, 256)
    a('v_mov_b32 v%d, 1' % vST)
    a('s_mov_b64 exec, 1')
    a('buffer_atomic_add v%d, off, %s, s%d sc1' % (vST, R4(RC), sIdx))
    a('s_mov_b64 exec, -1')


def hold(a):
    L = a.newlabel('HO')
    a('s_mov_b32 s63, %d' % EARLYF)
    a.label(L)
    a('s_sub_u32 s63, s63, 1')
    a('s_cmp_lg_u32 s63, 0')
    a('s_cbranch_scc1 %s' % L)


def g_phase(a, g):
    N, BUF, NP = NK[g], 1024 * NK[g], NK[g] // 4
    SRC, DSTS = (ZSL, HSL) if g == 1 else (HSL, MSL)
    FST = 32 if g == 1 else 256
    ool = Ool(a)
    T = lambda s: 'G%d_%s' % (g, s)
    a.label(T('INIT'))
    w_begin(a, g, NR[g], sW, 0, 8, 0)
    for k in range(NC[g] // 2):
        emit(a, w_piece(8))
    a('s_cmp_ge_u32 s%d, 4' % sW)
    a('s_cbranch_scc1 %s' % T('I4'))
    emit(a, w_piece(8))
    a.label(T('I4'))
    a('v_lshrrev_b32 v10, 5, v%d' % vL)
    a('v_lshlrev_b32 v10, 5, v10')
    a('s_lshl_b32 s67, s%d, 6' % sQ)
    if g == 1:
        srd(a, RD, pB1, 3456)
        a('s_lshl_b32 s66, s%d, 8' % sI)
    else:
        srd(a, RD, pB2, 1280)
        g2_ids(a, 69, 70)
        a('s_lshl_b32 s66, s70, 8')
        a('s_lshl_b32 s63, s69, 16')
        a('s_add_u32 s66, s66, s63')
    a('s_add_u32 s66, s66, s67')
    a('v_add_u32 v10, s66, v10')
    a('buffer_load_dwordx4 %s, v10, %s, 0 offen' % (vr(GE, 4), R4(RD)))
    a('buffer_load_dwordx4 %s, v10, %s, 0 offen offset:16' % (vr(GE + 4, 4), R4(RD)))
    a('s_lshl_b32 s66, s%d, 3' % sX)
    a('s_add_u32 s66, s66, s%d' % sHF)
    a('s_mul_i32 s64, s66, %d' % SRC)
    a('s_mul_i32 s74, s66, %d' % DSTS)
    a('s_mul_i32 s67, s%d, %d' % (sQ, 1024 * NP))
    a('s_add_u32 s64, s64, s67')
    a('s_mul_i32 s72, s%d, %d' % (sHF, BUF))
    if g == 1:
        a('s_add_u32 s64, s64, %s' % hex(ZI))
        a('s_lshl_b32 s73, s%d, 10' % sX)
        a('s_lshl_b32 s63, s%d, 5' % sHF)
        a('s_add_u32 s73, s73, s63')
        a('s_add_u32 s73, s73, %d' % ZF)
        a('s_lshl_b32 s68, s%d, 2' % sI)
        a('s_add_u32 s68, s68, s%d' % sQ)
        a('s_lshl_b32 s63, s68, 11')
        a('s_add_u32 s74, s74, s63')
        a('s_add_u32 s74, s74, %s' % hex(HB))
        a('v_and_b32 v%d, 0x1c, v%d' % (vPO, vL4))
        c1 = -2.0 * math.sqrt(2.0 / math.pi) * math.log2(math.e)
        a('v_mov_b32 v%d, %s' % (vC1, f2h(c1)))
    else:
        a('s_mul_i32 s63, s69, %d' % BUF)
        a('s_add_u32 s64, s64, s63')
        a('s_add_u32 s64, s64, %s' % hex(HB))
        a('s_lshl_b32 s73, s%d, 13' % sX)
        a('s_lshl_b32 s63, s%d, 8' % sHF)
        a('s_add_u32 s73, s73, s63')
        a('s_mul_i32 s63, s69, 72')
        a('s_add_u32 s73, s73, s63')
        a('s_add_u32 s73, s73, %d' % HFL)
        a('s_mul_i32 s63, s69, 40960')
        a('s_add_u32 s74, s74, s63')
        a('s_lshl_b32 s63, s70, 2')
        a('s_add_u32 s63, s63, s%d' % sQ)
        a('s_lshl_b32 s63, s63, 11')
        a('s_add_u32 s74, s74, s63')
        a('s_add_u32 s74, s74, %s' % hex(MR))
        a('s_sub_u32 s68, s%d, 14' % sI)
        a('s_lshl_b32 s68, s68, 2')
        a('s_add_u32 s68, s68, s%d' % sQ)
        a('v_min_u32 v%d, 68, v%d' % (vPO, vL4))
    a('s_lshl_b32 s78, s%d, 13' % sX)
    a('s_lshl_b32 s63, s%d, 8' % sHF)
    a('s_add_u32 s78, s78, s63')
    a('s_lshl_b32 s63, s68, 2')
    a('s_add_u32 s78, s78, s63')
    a('s_add_u32 s78, s78, %d' % (HFL if g == 1 else MFL))
    a('s_mov_b32 s75, %d' % (2 * SRC))
    a('s_mov_b32 s79, %d' % (2 * DSTS))
    a('v_lshrrev_b32 v16, 5, v%d' % vL)
    a('v_and_b32 v17, 31, v%d' % vL)
    a('v_lshlrev_b32 v17, 4, v17')
    a('v_lshl_add_u32 v%d, v16, 10, v17' % vSO)
    a('s_mov_b32 s%d, %s' % (sMSK, hex(EMPTY)))
    a('s_mov_b32 s%d, 0x10000' % sCHK)
    def wipe(first=False):
        WP, WA = (PK2, PK2 + 1) if g == 1 else (104, 108)
        for r in range(4 if g == 2 and first else g & 1):
            a('v_mov_b32 v%d, %s' % (WP + r, hex(EMPTY)))
        if first:
            a('s_mov_b32 s63, s74')
        else:
            a('s_cmp_lt_u32 s%d, 3' % sP)
            a('s_cselect_b32 s63, %s, %s' % (('s61', 's61') if NOWIPE else ('0', '0x10000000')))
            a('v_add_u32 v%d, s63, v%d' % (WA, vSO))
            a('s_add_u32 s63, s74, s79')
        emit(a, both2(a, ool, ['buffer_store_dwordx4 %s, v%d, %s, s63 offen offset:%d' % (vr(WP, 4), vSO if first else WA, R4(WS), 512 * t) for t in range(2)]))
    wipe(True)
    w_read(a, g, 0, NR[g], RING[g])
    a('s_waitcnt vmcnt(0)')
    a('s_barrier')
    a('v_add_u32 v11, %d, v%d' % (L_SYNC, vL4))
    a('v_mov_b32 v10, 0')
    a('ds_write_b32 v11, v10')
    for i in range(8):
        a('v_lshlrev_b32 v%d, 16, v%d' % (BIAS + 2 * i, GE + i))
        a('v_and_b32 v%d, s%d, v%d' % (BIAS + 2 * i + 1, sHI, GE + i))
    w_read(a, g, NR[g], NC[g], 0)
    a('s_barrier')
    stamp(a, 10)
    a('s_lshl_b32 s63, s%d, 4' % sHF)
    a('s_add_u32 s66, s63, %d' % LF_LND)
    a('v_mov_b32 v%d, s66' % vLN)
    a('s_lshl_b32 s66, s%d, 2' % sW)
    a('s_add_u32 s66, s66, %d' % LF_LND)
    a('v_mov_b32 v%d, s66' % vOW)
    a('s_sub_u32 s66, %d, s63' % (LF_DON + 16))
    a('v_mov_b32 v%d, s66' % vDN)
    a('v_mov_b32 v%d, s%d' % (vTH, sHF))
    a('v_mov_b32 v%d, s%d' % (vTG, sTAG))
    a('v_mov_b32 v%d, 1' % vCN)
    oob_lane0(a, vOB)
    a('v_mov_b32 v%d, 1' % vVAL)
    a('s_mov_b32 s%d, 0' % sP)

    def stage():
        o = []
        for k in range(NP):
            gq = []
            if k == 0:
                gq += ['s_add_u32 m0, s65, s67', 's_mov_b32 s63, s64']
            elif k % 4 == 0:
                gq += ['s_add_u32 m0, m0, 4096', 's_add_u32 s63, s63, 4096']
            gq.append('buffer_load_dwordx4 v%d, %s, s63 offen offset:%d sc1 lds' % (vL16, R4(WS), 1024 * (k & 3)))
            o.append(gq)
        return o
    PEEK = 'ds_read_b128 %s, v%d' % (vr(PK, 4), vLN)
    PEEK2 = 'ds_read_b128 %s, v%d' % (vr(PK2, 4), vDN)
    PLOAD = 'buffer_load_dword v%d, v%d, %s, s73 offen sc1' % (vZ, vPO, R4(WS))
    PCMP = 'v_cmp_ne_u32 vcc, s%d, v%d' % (sTAG, vZ)
    FLAG = 'buffer_store_dword v%d, v%d, %s, s78 offen' % (vTG, vOB, R4(WS))
    def store(o, t):
        st = ['buffer_store_dwordx4 %s, v%d, %s, s74 offen offset:%d' % (vr(o, 4), vSO, R4(WS), 512 * t)]
        if EARLYF:
            if t == 0:
                emit(a, both2(a, ool, FLAG))
                hold(a)
        elif t:
            st.append(FLAG)
        a('v_bfi_b32 v%d, s%d, v%d, v%d' % (o, sMSK, vVAL, o))
        emit(a, both2(a, ool, st))

    a('s_mov_b32 s65, s72')
    block_poll(a, vZ, vPO, 73)
    stamp(a, 11)
    for gq in stage():
        emit(a, gq)
    a('s_waitcnt vmcnt(0)')
    a('ds_write_b32 v%d, v%d' % (vOW, vCN))
    a(PEEK)
    a.label(T('LOOP'))
    a('v_add_u32 v%d, s72, v%d' % (vRD, vL16))
    a('s_sub_u32 s80, s64, s67')
    a('s_cmp_eq_u32 s%d, 3' % sP)
    a('s_cselect_b32 s63, %d, s75' % (-6 * SRC))
    a('s_add_u32 s64, s64, s63')
    a('s_add_u32 s73, s73, %d' % (2 * FST))
    a('s_cmp_eq_u32 s72, 0')
    a('s_cselect_b32 s65, %d, s72' % (3 * BUF))
    a('s_sub_u32 s65, s65, %d' % BUF)
    cnt_spin(a, ool, PK, vLN, vCN)
    PF = NZR - 1
    q = LdsQ(a)
    Z = lambda n: ZR + 4 * (n % NZR)
    for n in range(PF):
        q.issue(('z', n), 'ds_read_b128 %s, v%d offset:%d' % (vr(Z(n), 4), vRD, 1024 * n))
    a('s_setprio %d' % PRIO[0])
    stamp(a, (sP, 4, 16))
    def mfma(ks, z):
        c = vr(BIAS, 16) if ks == 0 else vr(ACC, 16)
        a('v_mfma_f32_32x32x16_bf16 %s, %s, %s, %s' % (vr(ACC, 16), vr(WB[g] + 4 * ks, 4), vr(z, 4), c))
    for ks in range(N):
        q.wait([('z', ks)])
        mfma(ks, Z(ks))
        if ks == 1:
            a('v_or_b32 v%d, v%d, v%d' % (vAC, Z(0), Z(1)))
        elif ks & 1 and not NOCHK:
            a('v_or3_b32 v%d, v%d, v%d, v%d' % (vAC, vAC, Z(ks - 1), Z(ks)))
        n = ks + PF
        if n < N:
            q.issue(('z', n), 'ds_read_b128 %s, v%d offset:%d' % (vr(Z(n), 4), vRD, 1024 * n))
        if ks == PRK:
            a('s_setprio %d' % PRIO[1])
        if ks == N - PLK:
            a(PLOAD)
        if ks == N - 3:
            q.issue(('p', 0), PEEK2)
    a('ds_write_b32 v%d, v%d offset:32' % (vOW, vCN))
    a('v_and_b32 v%d, s%d, v%d' % (vAC, sCHK, vAC))
    a('v_cmp_ne_u32 vcc, 0, v%d' % vAC)
    a('s_setprio %d' % PRIO[2])
    if not NOREDO:
        a('s_cbranch_vccnz %s' % T('REDO'))
    a.label(T('BACK'))
    def redo():
        a.label(T('REDO'))
        a('s_mov_b32 s%d, 0' % sCNT)
        for ks in range(N):
            L, D = a.newlabel('RL'), a.newlabel('RO')
            a.label(L)
            a('buffer_load_dwordx4 %s, v%d, %s, s80 offen offset:%d sc1' % (vr(ZR, 4), vL16, R4(WS), 1024 * (ks & 3)))
            a('s_add_u32 s%d, s%d, 1' % (sCNT, sCNT))
            a('s_waitcnt vmcnt(0)')
            a('v_and_b32 v%d, s%d, v%d' % (vAC, sCHK, ZR))
            a('v_cmp_ne_u32 vcc, 0, v%d' % vAC)
            a('s_cbranch_vccz %s' % D)
            a('s_cmp_lt_u32 s%d, s%d' % (sCNT, sLIM))
            a('s_cbranch_scc1 %s' % L)
            a.label(D)
            mfma(ks, ZR)
            if ks & 3 == 3:
                a('s_add_u32 s80, s80, 4096')
        if STAMP == 1:
            a('v_readlane_b32 s63, v%d, 61' % vST)
            a('s_add_u32 s63, s63, 1')
            a('v_writelane_b32 v%d, s63, 61' % vST)
        if RCNT == g:
            a('s_lshl_b32 s63, s%d, 1' % sP)
            a('s_add_u32 s63, s63, s%d' % sHF)
            count(a, 63)
        if RCNT == 4:
            a('s_lshr_b32 s63, s%d, 2' % sP)
            a('s_add_u32 s63, s63, %d' % (2 * g - 2))
            count(a, 63)
        a('s_branch %s' % T('BACK'))
    if not NOREDO:
        ool.add(redo)
    stamp(a, (sP, 4, 17))
    a('s_waitcnt vmcnt(0) lgkmcnt(1)')
    emit(a, cnt_min(PK2))
    a('v_cmp_gt_u32 s[82:83], v%d, v%d' % (vTH, PK2))
    a(PCMP)
    a('s_cmp_eq_u32 s%d, 7' % sP)
    a('s_cselect_b64 s[82:83], -1, s[82:83]')
    a('s_or_b64 vcc, vcc, s[82:83]')

    def gelu(dma):
        ops = []
        for t in range(2):
            X, U = ACC + 8 * t, GE
            ops += ['v_mul_f32 v%d, v%d, v%d' % (U + i, X + i, X + i) for i in range(8)]
            ops += ['v_fma_f32 v%d, v%d, s%d, v%d' % (U + i, U + i, sC2, vC1) for i in range(8)]
            ops += ['v_mul_f32 v%d, v%d, v%d' % (U + i, U + i, X + i) for i in range(8)]
            ops += ['v_exp_f32 v%d, v%d' % (U + i, U + i) for i in range(8)]
            ops += ['v_add_f32 v%d, 1.0, v%d' % (U + i, U + i) for i in range(8)]
            ops += ['v_rcp_f32 v%d, v%d' % (U + i, U + i) for i in range(8)]
            ops += ['v_mul_f32 v%d, v%d, v%d' % (U + i, U + i, X + i) for i in range(8)]
            o = U + 8 + 4 * t
            ops += ['v_cvt_pk_bf16_f32 v%d, v%d, v%d' % (o + i, U + 2 * i, U + 2 * i + 1) for i in range(4)]
            if t == 0 and not dma:
                ops += [PLOAD, PEEK2]
            ops.append(('st', o, t))
        st = stage() if dma else []
        if st:
            emit(a, st.pop(0))
        for i, l in enumerate(ops):
            if isinstance(l, tuple):
                assert not st
                store(l[1], l[2])
            else:
                a(l)
            if st and i % DST == DST - 1:
                emit(a, st.pop(0))

    def landed():
        a('v_add_u32 v%d, 1, v%d' % (vCN, vCN))
        a('ds_write_b32 v%d, v%d' % (vOW, vCN))
    if g == 1:
        a('s_cbranch_vccnz %s' % T('EB'))
        gelu(True)
        stamp(a, (sP, 4, 18))
        wipe()
        a('s_waitcnt vmcnt(5)')
        landed()
    else:
        a('s_mov_b64 s[82:83], vcc')
        a(PLOAD)
        for i in range(8):
            a('v_cvt_pk_bf16_f32 v%d, v%d, v%d' % (GE + i, ACC + 2 * i, ACC + 2 * i + 1))
            if i & 3 == 3:
                store(GE + i - 3, i >> 2)
        a('s_cmp_lg_u64 s[82:83], 0')
        a('s_cbranch_scc1 %s' % T('EB'))
        for gq in stage():
            emit(a, gq)
        stamp(a, (sP, 4, 18))
        wipe()
        a('s_waitcnt vmcnt(2)')
        landed()
    a.label(T('NEXT'))
    a(PEEK)
    stamp(a, (sP, 4, 19))
    a('v_add_u32 v%d, 1, v%d' % (vTH, vTH))
    a('s_mov_b32 s72, s65')
    a('s_add_u32 s78, s78, 512')
    a('s_cmp_eq_u32 s%d, 3' % sP)
    a('s_cselect_b32 s63, %d, s79' % (-6 * DSTS))
    a('s_cselect_b32 s%d, 1, s%d' % (sMSK, sMSK))
    a('s_cselect_b32 s%d, 1, s%d' % (sCHK, sCHK))
    a('s_add_u32 s74, s74, s63')
    a('v_lshrrev_b32_e64 v%d, 16, s%d' % (vVAL, sMSK))
    a('s_add_u32 s%d, s%d, 1' % (sP, sP))
    a('s_branch %s' % T('LOOP'))
    a.label(T('EB'))
    if g == 1:
        gelu(False)
    else:
        a(PEEK2)
    stamp(a, (sP, 4, 18))
    a('s_cmp_eq_u32 s%d, 7' % sP)
    a('s_cbranch_scc1 %s' % T('END'))
    a('s_waitcnt vmcnt(3)')
    a(PCMP)
    a('s_cbranch_vccz %s' % T('GOT'))
    block_poll(a, vZ, vPO, 73)
    a.label(T('GOT'))
    cnt_spin(a, ool, PK2, vDN, vTH)
    for gq in stage():
        emit(a, gq)
    wipe()
    a('s_waitcnt vmcnt(2)')
    landed()
    a('s_branch %s' % T('NEXT'))
    a.label(T('END'))
    for hf in range(2):
        if WBL & (g << (2 * hf)):
            L = a.newlabel('WB')
            a('s_cmp_lg_u32 s%d, %d' % (sI, 0 if g == 1 else 14))
            a('s_cbranch_scc1 %s' % L)
            a('s_cmp_lg_u32 s%d, %d' % (sW, 4 * hf))
            a('s_cbranch_scc1 %s' % L)
            a('buffer_wbl2 sc1')
            a('s_endpgm')
            a.label(L)
    endk(a, g)
    ool.flush()


YU, MM, XS, PS, TS = 36, 76, 136, 16, 24
DD, ZP = MM, MM + 40
vIM, vY0, vY1, vYC, vYG, vQA, vT0, vSP = 0, 4, 5, 6, 8, 9, 10, 14


def unpack(dst, src, n):
    o = []
    for i in range(n):
        o.append('v_lshlrev_b32 v%d, 16, v%d' % (dst + 2 * i, src + i))
        o.append('v_and_b32 v%d, s%d, v%d' % (dst + 2 * i + 1, sHI, src + i))
    return o


def accum(dst, src, n):
    o = []
    for i in range(n):
        o.append('v_dot2c_f32_bf16 v%d, s%d, v%d' % (dst + 2 * i, sLO1, src + i))
        o.append('v_dot2c_f32_bf16 v%d, s%d, v%d' % (dst + 2 * i + 1, sHI1, src + i))
    return o


def sums(X, T, k):
    o = []
    for i in range(0, 8, 2):
        x = P2(X + 8 * k + i)
        if k == 0 and i == 0:
            o += ['v_pk_mul_f32 %s, %s, %s' % (P2(T + 2), x, x)]
        elif k == 0 and i == 2:
            o += ['v_pk_add_f32 %s, %s, %s' % (P2(T), P2(X), x), 'v_pk_fma_f32 %s, %s, %s, %s' % (P2(T + 2), x, x, P2(T + 2))]
        else:
            o += ['v_pk_add_f32 %s, %s, %s' % (P2(T), P2(T), x), 'v_pk_fma_f32 %s, %s, %s, %s' % (P2(T + 2), x, x, P2(T + 2))]
    return o


def finish(T, double, U=vSP):
    Q, R = T, T + 2
    o = ['v_add_f32 v%d, v%d, v%d' % (Q, T, T + 1), 'v_add_f32 v%d, v%d, v%d' % (R, T + 2, T + 3),
         'v_permlane32_swap_b32 v%d, v%d' % (Q, R), 'v_add_f32 v%d, v%d, v%d' % (Q, Q, R),
         'v_mov_b32 v%d, v%d' % (R, Q), 'v_permlane16_swap_b32 v%d, v%d' % (Q, R), 'v_add_f32 v%d, v%d, v%d' % (Q, Q, R)]
    for k in (8, 4):
        o.append('v_add_f32 v%d, v%d, v%d row_ror:%d row_mask:0xf bank_mask:0xf' % (Q, Q, Q, k))
    o += ['v_mul_f32 v%d, s%d, v%d' % (Q, sINV, Q), 'v_mov_b32 v%d, v%d' % (R, Q), 'v_permlane32_swap_b32 v%d, v%d' % (Q, R),
          'v_fma_f32 v%d, -v%d, v%d, v%d' % (R, Q, Q, R), 'v_max_f32 v%d, 0, v%d' % (R, R),
          'v_add_f32 v%d, s%d, v%d' % (U, sEPS, R), 'v_rsq_f32 v%d, v%d' % (U, U)]
    if double:
        o += ['v_mul_f32 v%d, v%d, v%d' % (R, R, U), 'v_fma_f32 v%d, v%d, v%d, s%d' % (R, R, U, sEPS),
              'v_rsq_f32 v%d, v%d' % (R, R), 'v_mul_f32 v%d, v%d, v%d' % (U, U, R)]
    o += ['v_mul_f32_e64 v%d, -v%d, v%d' % (U + 1, Q, U)]
    return o


def norm(d, x, n, sp=vSP):
    return ['v_pk_fma_f32 %s, %s, %s, %s op_sel:[0,0,1] op_sel_hi:[1,0,1]' % (P2(d + i), P2(x + i), P2(sp), P2(sp)) for i in range(0, n, 2)]


def gate(k, XW):
    return ['v_pk_fma_f32 %s, %s, %s, %s' % (P2(XW + i), P2(DD + i), P2(YU + i), P2(XW + i)) for i in range(8 * k, 8 * k + 8, 2)]


def s_phase(a):
    ool = Ool(a)
    vOB, vPO, vZ = 11, 12, 13
    vYP = 28
    MK = (94, 96, 98, 100, 82)
    a.label('S_MAIN')
    srd(a, RA, pQ, hex(ROWS_B))
    s_ids(a)
    row_table(a, PS, 10)
    a('s_barrier')
    q_dma(a, 1, PS)
    q_dma(a, 2, PS)
    srd(a, RB, pOUT, hex(ROWS_B))
    a('v_lshrrev_b32 v40, 2, v%d' % vL)
    a('v_and_b32 v41, 3, v%d' % vL)
    a('v_lshlrev_b32 v%d, 9, v40' % vIM)
    a('v_lshl_add_u32 v%d, v41, 4, v%d' % (vIM, vIM))
    a('s_lshl_b32 s66, s71, 8')
    a('s_lshl_b32 s67, s%d, 6' % sQ)
    a('s_add_u32 s66, s66, s67')
    a('v_add_u32 v%d, s66, v%d' % (vIM, vIM))
    a('v_lshlrev_b32 v43, 1, v41')
    a('v_xor_b32 v43, v43, v40')
    a('v_mul_u32_u24 v%d, 1280, v41' % vQA)
    a('v_lshl_add_u32 v%d, v43, 4, v%d' % (vQA, vQA))
    a('v_lshrrev_b32 v43, 4, v%d' % vL)
    a('v_lshl_add_u32 v43, v43, 2, v41')
    a('v_bfe_u32 v44, v%d, 2, 2' % vL)
    a('v_lshlrev_b32 v44, 1, v44')
    a('s_lshr_b32 s66, s%d, 1' % sQ)
    a('v_add_u32 v44, s66, v44')
    a('v_and_b32 v45, 1, v41')
    a('v_xor_b32 v44, v44, v45')
    a('v_and_b32 v45, 2, v41')
    a('v_lshlrev_b32 v45, 2, v45')
    a('v_xor_b32 v44, v44, v45')
    a('v_lshlrev_b32 v%d, 8, v43' % vYC)
    a('v_lshl_add_u32 v%d, v44, 4, v%d' % (vYC, vYC))
    a('s_and_b32 s66, s%d, 1' % sQ)
    a('s_lshl_b32 s66, s66, 3')
    a('s_mul_i32 s67, s%d, 5120' % sQ)
    a('s_sub_u32 s66, s66, s67')
    a('v_add_u32 v%d, s66, v%d' % (vYC, vYC))
    a('v_lshrrev_b32 v43, 4, v%d' % vL)
    a('v_and_b32 v44, 15, v%d' % vL)
    a('v_and_b32 v45, 1, v43')
    a('v_xor_b32 v44, v44, v45')
    a('v_and_b32 v45, 2, v43')
    a('v_lshlrev_b32 v45, 2, v45')
    a('v_xor_b32 v44, v44, v45')
    a('v_lshrrev_b32 v45, 1, v44')
    a('v_lshl_add_u32 v45, v43, 3, v45')
    a('v_lshlrev_b32 v%d, 6, v45' % vYG)
    a('v_and_b32 v44, 1, v44')
    a('v_lshl_add_u32 v%d, v44, 4, v%d' % (vYG, vYG))
    a('s_lshl_b32 s66, s71, 5')
    a('s_mul_i32 s67, s%d, 10240' % sQ)
    a('s_add_u32 s66, s66, s67')
    a('v_add_u32 v%d, s66, v%d' % (vYG, vYG))
    oob_lane0(a, vOB)
    a('v_min_u32 v%d, 236, v%d' % (vPO, vL4))
    a('s_lshl_b32 s79, s71, 2')
    a('s_add_u32 s79, s79, s%d' % sQ)
    a('s_lshl_b32 s79, s79, 2')
    a('s_lshl_b32 s63, s%d, 10' % sX)
    a('s_add_u32 s79, s79, s63')
    a('s_add_u32 s79, s79, %d' % ZF)
    a('s_lshl_b32 s66, s%d, 2' % sW)
    a('s_add_u32 s66, s66, %d' % LF_LND)
    a('v_mov_b32 v%d, s66' % (vYP + 1))
    a('s_and_b32 s66, s66, 0xfffffff0')
    a('v_mov_b32 v%d, s66' % (vYP + 2))
    a('s_mov_b32 s77, %s' % hex(EMPTY))
    def head(ph, sl):
        a('s_add_u32 s74, s70, %d' % (3 * sl))
        if sl == 2:
            a('s_cmp_gt_u32 s74, 7')
            a('s_cbranch_scc1 S%s_END' % ph)
        a('s_add_u32 s75, s72, %d' % (40960 * sl))
        if ph != 'C':
            a('v_add_u32 v%d, s75, v%d' % (vY0, vYC))
            a('v_xor_b32 v%d, 0x80, v%d' % (vY1, vY0))
        a('s_lshl_b32 s76, s%d, 3' % sX)
        a('s_add_u32 s76, s76, s74')

    def y_reads():
        for k in range(5):
            a('ds_read_b64_tr_b16 %s, v%d offset:%d' % (vr(ZP + 4 * k, 2), vY0, 4096 * k))
            a('ds_read_b64_tr_b16 %s, v%d offset:%d' % (vr(ZP + 4 * k + 2, 2), vY1, 4096 * k))

    def z_out(lay, X, prio):
        emit(a, finish(TS, True))
        a('s_setprio %d' % prio)
        a('s_mul_i32 s66, s76, %d' % ZSL)
        a('s_add_u32 s66, s66, %s' % hex(ZI))
        a('s_lshl_b32 s68, s74, 5')
        a('s_add_u32 s68, s68, s79')
        a('v_mov_b32 v%d, s%d' % (vZ, sTAG))
        FLAG = 'buffer_store_dword v%d, v%d, %s, s68 offen offset:%d' % (vZ, vOB, R4(WS), 256 * lay)
        if EARLYF:
            emit(a, both2(a, ool, FLAG))
            hold(a)
        for k in range(5):
            emit(a, norm(DD + 8 * k, X + 8 * k, 8))
            for i in range(4):
                a('v_cvt_pk_bf16_f32 v%d, v%d, v%d' % (ZP + 4 * k + i, DD + 8 * k + 2 * i, DD + 8 * k + 2 * i + 1))
            if lay == 0:
                a('v_bfi_b32 v%d, s77, 1, v%d' % (ZP + 4 * k, ZP + 4 * k))
            else:
                a('v_and_b32 v%d, -2, v%d' % (ZP + 4 * k, ZP + 4 * k))
            st = ['buffer_store_dwordx4 %s, v%d, %s, s66 offen' % (vr(ZP + 4 * k, 4), vIM, R4(WS))]
            if k == 4 and not EARLYF:
                st.append(FLAG)
            emit(a, both2(a, ool, st))
            if k < 4:
                a('s_add_u32 s66, s66, 8192')
        a('s_setprio 0')

    def z_wipe(du):
        if NOWIPE:
            return
        a('v_mov_b32 v%d, s77' % YU)
        a('s_add_u32 s66, s76, %d' % du)
        a('s_mul_i32 s66, s66, %d' % ZSL)
        a('s_add_u32 s66, s66, %s' % hex(ZI))
        cl = []
        for k in range(5):
            cl.append('buffer_store_dwordx4 %s, v%d, %s, s66 offen' % (vr(YU, 4), vIM, R4(WS)))
            if k < 4:
                cl.append('s_add_u32 s66, s66, 8192')
        emit(a, both2(a, ool, cl))

    def m_in(lay, sl, X, per_k, prio):
        a('s_lshl_b32 s66, s%d, 13' % sX)
        a('s_lshl_b32 s67, s74, 8')
        a('s_add_u32 s66, s66, s67')
        a('s_add_u32 s66, s66, %d' % (MFL + 2048 * lay))
        a('s_mul_i32 s67, s76, %d' % MSL)
        a('s_add_u32 s67, s67, %s' % hex(MR))
        a('s_add_u32 s68, s67, 40960')
        a('s_add_u32 s69, s67, 81920')
        block_poll(a, vZ, vPO, 66)
        a('s_setprio %d' % prio)
        stamp(a, 4 * sl + 29 + 12 * lay)
        LD, FX, OK = a.newlabel('ML'), a.newlabel('MF'), a.newlabel('MO')
        a.label(LD)
        for k in range(5):
            for p in range(3):
                a('buffer_load_dwordx4 %s, v%d, %s, s%d offen sc1' % (vr(MM + 12 * k + 4 * p, 4), vIM, R4(WS), 67 + p))
                if k < 4:
                    a('s_add_u32 s%d, s%d, 8192' % (67 + p, 67 + p))
        for k in range(5):
            for p in range(3):
                a('s_waitcnt vmcnt(%d)' % (14 - 3 * k - p))
                n = 3 * k + p
                if n == 2:
                    a('v_or3_b32 v%d, v%d, v%d, v%d' % (vZ, MM, MM + 4, MM + 8))
                elif n > 2 and n & 1 == 0:
                    a('v_or3_b32 v%d, v%d, v%d, v%d' % (vZ, vZ, MM + 4 * n - 4, MM + 4 * n))
                if n == 14:
                    a('v_and_b32 v%d, %s, v%d' % (vZ, '1' if lay else '0x10000', vZ))
                    a('v_cmp_ne_u32 vcc, 0, v%d' % vZ)
                emit(a, accum(X + 8 * k, MM + 12 * k + 4 * p, 4))
            if k == 4:
                if not NOREDO:
                    a('s_cbranch_vccnz %s' % FX)
                a.label(OK)
            per_k(k)
        def fix():
            a.label(FX)
            if STAMP == 1:
                a('v_readlane_b32 s63, v%d, 61' % vST)
                a('s_add_u32 s63, s63, 1')
                a('v_writelane_b32 v%d, s63, 61' % vST)
            if RCNT == 3:
                a('s_add_u32 s63, s74, %d' % (8 * lay))
                count(a, 63)
            if RCNT == 4:
                a('s_mov_b32 s63, %d' % (4 + lay))
                count(a, 63)
            a('s_add_u32 s%d, s%d, 1' % (sCNT, sCNT))
            a('s_cmp_ge_u32 s%d, s%d' % (sCNT, sLIM))
            a('s_cbranch_scc1 %s' % OK)
            a('s_xor_b32 s%d, s%d, 0x8000' % (sLO1, sLO1))
            a('s_xor_b32 s%d, s%d, 0x80000000' % (sHI1, sHI1))
            for k in range(5):
                for p in range(3):
                    emit(a, accum(X + 8 * k, MM + 12 * k + 4 * p, 4))
            a('s_xor_b32 s%d, s%d, 0x8000' % (sLO1, sLO1))
            a('s_xor_b32 s%d, s%d, 0x80000000' % (sHI1, sHI1))
            for p in range(3):
                a('s_sub_u32 s%d, s%d, 32768' % (67 + p, 67 + p))
            a('s_branch %s' % LD)
        if not NOREDO:
            ool.add(fix)

    def y_load(du, R, masked):
        a('s_add_u32 s67, s74, %d' % du)
        a('s_min_u32 s67, s67, 7')
        a('s_lshl_b32 s67, s67, 3')
        a('s_add_u32 s67, s67, s%d' % sX)
        a('s_mul_i32 s67, s67, 40960')
        a('s_add_u32 s67, s67, %s' % hex(YT))
        for k in range(5):
            if masked:
                a('s_mov_b64 exec, s[%d:%d]' % (MK[k], MK[k] + 1))
            if k & 1 == 0 and k:
                a('s_add_u32 s67, s67, 4096')
            a('buffer_load_dwordx4 %s, v%d, %s, s67 offen offset:%d sc1' % (vr(R + 4 * k, 4), vYG, R4(WS), 2048 * (k & 1)))

    def y_take(R, masked, young):
        for k in range(5):
            if masked:
                a('s_mov_b64 exec, s[%d:%d]' % (MK[k], MK[k] + 1))
            a('s_waitcnt vmcnt(%d)' % (young + 4 - k))
            a('v_max3_u32 v%d, v%d, v%d, v%d' % (vT0, R + 4 * k, R + 4 * k + 1, R + 4 * k + 2))
            a('ds_write_b128 v%d, %s offset:%d' % (vYP, vr(R + 4 * k, 4), 1024 * k))
            a('v_max_u32 v%d, v%d, v%d' % (vT0, vT0, R + 4 * k + 3))
            a('v_cmp_eq_u32 s[%d:%d], -1, v%d' % (MK[k], MK[k] + 1, vT0))
        if masked:
            a('s_mov_b64 exec, -1')
        a('s_or_b64 s[64:65], s[%d:%d], s[%d:%d]' % (MK[0], MK[0] + 1, MK[1], MK[1] + 1))
        a('s_or_b64 s[80:81], s[%d:%d], s[%d:%d]' % (MK[2], MK[2] + 1, MK[3], MK[3] + 1))
        a('s_or_b64 s[64:65], s[64:65], s[%d:%d]' % (MK[4], MK[4] + 1))
        a('s_or_b64 s[80:81], s[80:81], s[64:65]')

    def q_reads(sl, dl):
        a('s_add_u32 s66, s75, %d' % dl)
        a('v_add_u32 v%d, s66, v%d' % (vT0, vQA))
        for k in range(5):
            a('ds_read_b128 %s, v%d offset:%d' % (vr(XS + 40 * sl + 20 + 4 * k, 4), vT0, 256 * k))

    for sl in range(3):
        X = XS + 40 * sl
        head('A', sl)
        a('v_add_u32 v%d, s75, v%d' % (vYP, vL16))
        if sl == 0:
            q_reads(0, 0)
            for k in range(5):
                a('s_mov_b64 s[%d:%d], -1' % (MK[k], MK[k] + 1))
            a('s_waitcnt lgkmcnt(0)')
        else:
            y_take(X, False, 0 if NOWIPE else 5)
            a('s_waitcnt lgkmcnt(5)')
        for k in range(5):
            emit(a, unpack(X + 8 * k, X + 20 + 4 * k, 4))
            emit(a, sums(X, TS, k))
        emit(a, finish(TS, False))
        emit(a, norm(DD, X, 40))
        stamp(a, 4 * sl + 16)
        def fetch(sl=sl):
            a.label('SA_F%d' % sl)
            a('s_mov_b32 s%d, 0' % sCNT)
            a.label('SA_YL%d' % sl)
            y_load(0, ZP, True)
            a('s_add_u32 s%d, s%d, 1' % (sCNT, sCNT))
            y_take(ZP, True, 0)
            a('s_cbranch_scc0 SA_G%d' % sl)
            a('s_cmp_lt_u32 s%d, s%d' % (sCNT, sLIM))
            a('s_cbranch_scc1 SA_YL%d' % sl)
            a('s_mov_b32 s%d, 0' % sLIM)
            if sl:
                a('s_branch SA_G%d' % sl)
        if sl == 0:
            z_wipe(0)
            fetch()
        else:
            a('s_cmp_lg_u64 s[80:81], 0')
            a('s_cbranch_scc1 SA_F%d' % sl)
            ool.add(fetch)
        a.label('SA_G%d' % sl)
        stamp(a, 4 * sl + 17)
        a('v_mov_b32 v%d, %d' % (vYP + 3, sl + 1))
        a('ds_write_b32 v%d, v%d' % (vYP + 1, vYP + 3))
        a('ds_read_b128 %s, v%d' % (vr(ZP, 4), vYP + 2))
        cnt_spin(a, ool, ZP, vYP + 2, vYP + 3)
        a('s_setprio %d' % SPA[0])
        a('s_waitcnt vmcnt(0)')
        y_reads()
        stamp(a, 4 * sl + 18)
        for k in range(5):
            a('s_waitcnt lgkmcnt(%d)' % (8 - 2 * k))
            emit(a, unpack(YU + 8 * k, ZP + 4 * k, 4))
            emit(a, gate(k, X))
            emit(a, sums(X, TS, k))
        z_out(0, X, SPA[1])
        stamp(a, 4 * sl + 19)
        if sl < 2:
            q_reads(sl + 1, 40960)
            y_load(3, XS + 40 * sl + 40, False)
            if sl == 1:
                a('s_cmp_eq_u32 s70, 2')
                a('s_cbranch_scc1 SA_END')
            z_wipe(3)
        if sl == 0:
            a('s_cmp_lg_u32 s2, 232')
            a('s_cbranch_scc1 SA_E')
            a('s_cmp_lg_u32 s%d, 0' % sW)
            a('s_cbranch_scc1 SA_E')
            a('s_mov_b32 s66, 0')
            flag_store(a, 66, vZ, True)
            a.label('SA_E')
    a.label('SA_END')
    for sl in range(3):
        X = XS + 40 * sl
        head('B', sl)
        y_reads()
        for k in range(5):
            a('s_waitcnt lgkmcnt(%d)' % (8 - 2 * k))
            emit(a, unpack(YU + 8 * k, ZP + 4 * k, 4))
        stamp(a, 4 * sl + 28)
        m_in(0, sl, X, lambda k: emit(a, sums(X, TS, k)), SPB[0])
        a('s_setprio %d' % SPB[1])
        stamp(a, 4 * sl + 30)
        emit(a, finish(TS, False))
        for k in range(5):
            emit(a, norm(DD + 8 * k, X + 8 * k, 8))
            emit(a, gate(k, X))
            emit(a, sums(X, TS, k))
        z_out(1, X, SPB[2])
        stamp(a, 4 * sl + 31)
    a.label('SB_END')
    row_table(a, YU, YU + 6)
    for sl in range(3):
        X = XS + 40 * sl
        head('C', sl)
        a('v_add_u32 v%d, s75, v%d' % (vT0, vQA))
        for k in range(5):
            a('v_add_u32 v%d, s75, v%d' % (PS + k, YU + k))
        a('s_add_u32 s77, s73, %d' % (768 * 1280 * sl))
        stamp(a, 4 * sl + 40)
        def ck(k):
            for i in range(4):
                a('v_cvt_pk_bf16_f32 v%d, v%d, v%d' % (YU + 8 + 4 * k + i, X + 8 * k + 2 * i, X + 8 * k + 2 * i + 1))
            a('ds_write_b128 v%d, %s offset:%d' % (vT0, vr(YU + 8 + 4 * k, 4), 256 * k))
        m_in(1, sl, X, ck, SPC)
        stamp(a, 4 * sl + 42)
        for k in range(5):
            a('ds_read_b128 %s, v%d' % (vr(MM + 4 * k, 4), PS + k))
        a('s_add_u32 s66, s77, 4096')
        for k in range(5):
            a('s_waitcnt lgkmcnt(%d)' % (4 - k))
            a('buffer_store_dwordx4 %s, v%d, %s, s%d offen offset:%d' % (vr(MM + 4 * k, 4), vL16, R4(RB), 77 if k < 4 else 66, 1024 * (k & 3)) + (' sc1' if OSC else ''))
        a('s_setprio 0')
        stamp(a, 4 * sl + 43)
    a.label('SC_END')
    endk(a, 0)
    ool.flush()


def kernel():
    a = Asm()
    c1 = -2.0 * math.sqrt(2.0 / math.pi) * math.log2(math.e)
    a('s_cmp_ge_u32 s2, 256')
    a('s_cbranch_scc1 END')
    a('s_load_dwordx2 s[26:27], s[0:1], 104')
    a('s_load_dwordx4 s[4:7], s[0:1], 0')
    a('s_load_dwordx4 s[8:11], s[0:1], 16')
    a('s_load_dwordx4 s[12:15], s[0:1], 32')
    a('s_load_dwordx4 s[16:19], s[0:1], 56')
    a('s_load_dwordx4 s[20:23], s[0:1], 72')
    a('s_load_dwordx2 s[24:25], s[0:1], 88')
    a('v_lshrrev_b32 v1, 6, v0')
    a('v_readfirstlane_b32 s%d, v1' % sW)
    a('v_and_b32 v%d, 63, v0' % vL)
    a('v_lshlrev_b32 v%d, 4, v%d' % (vL16, vL))
    a('v_lshlrev_b32 v%d, 2, v%d' % (vL4, vL))
    a('s_and_b32 s%d, s2, 7' % sX)
    a('s_lshr_b32 s%d, s2, 3' % sI)
    a('s_and_b32 s%d, s%d, 3' % (sQ, sW))
    a('s_lshr_b32 s%d, s%d, 2' % (sHF, sW))
    if STAMP:
        a('v_mov_b32 v%d, 0' % vST)
    for r in (12, 13, 14, 15):
        a('v_mov_b32 v%d, 0' % r)
    a('v_add_u32 v4, %d, v%d' % (L_SYNC, vL4))
    a('ds_write_b32 v4, v12')
    a('ds_write_b32 v%d, v12 offset:%d' % (vL4, 2 * CSL))
    a('v_add_u32 v4, %d, v%d' % (4 * CSL, vL4))
    a('ds_write_b32 v4, v12')
    a('s_lshl_b32 s64, s%d, 10' % sW)
    a('s_add_u32 s64, s64, %d' % L_KST)
    a('v_add_u32 v4, s64, v%d' % vL16)
    a('ds_write_b128 v4, v[12:15]')
    a('s_movk_i32 s65, 5958')
    a('s_movk_i32 s66, 1104')
    a('s_add_u32 s67, s%d, 8' % sQ)
    a('s_lshl_b32 s67, s67, 6')
    for d, src in ((8, 'v0'), (9, None)):
        if src is None:
            a('v_add_u32 v9, s67, v%d' % vL)
            src = 'v9'
        a('v_mul_u32_u24 v10, s65, %s' % src)
        a('v_lshrrev_b32 v10, 16, v10')
        a('v_mul_u32_u24 v11, 11, v10')
        a('v_sub_u32 v11, %s, v11' % src)
        a('v_lshlrev_b32 v%d, 4, %s' % (d, src))
        a('v_mad_u32_u24 v%d, v10, s66, v%d' % (d, d))
        a('v_cmp_eq_u32 vcc, 10, v11')
        a('v_mov_b32 v11, 0x40000000')
        a('v_cndmask_b32 v%d, v%d, v11, vcc' % (d, d))
    a('s_mul_i32 s65, s%d, %d' % (sI, 64 * 1280))
    a('s_mul_i32 s66, s%d, 160' % sX)
    a('s_add_u32 s65, s65, s66')
    a('s_sub_u32 s66, s65, 5120')
    a('v_add_u32 v10, s66, v8')
    a('v_add_u32 v8, s65, v8')
    a('s_cmp_eq_u32 s%d, 0' % sHF)
    a('s_cselect_b32 s65, s66, s65')
    a('v_add_u32 v9, s65, v9')
    a('s_getreg_b32 s%d, hwreg(HW_REG_XCC_ID, 0, 3)' % sXCC)
    a('s_mov_b32 s%d, %d' % (sLIM, LIMIT))
    a('s_mov_b32 s%d, 0xffff0000' % sHI)
    a('s_mov_b32 s%d, 0x3acccccd' % sINV)
    a('s_mov_b32 s%d, 0x3727c5ac' % sEPS)
    a('s_mov_b32 s%d, %s' % (sC2, f2h(c1 * 0.044715)))
    a('s_mov_b32 s%d, 0x3f80' % sLO1)
    a('s_mov_b32 s%d, 0x3f800000' % sHI1)
    a('s_mov_b32 s%d, 0' % sSLOW)
    a('s_mov_b32 m0, s64')
    a('s_waitcnt lgkmcnt(0)')
    srd(a, WS, pWS, '0x10000000')
    srd(a, RB, pK, hex(ROWS_B))
    srd(a, RC, pV, hex(ROWS_B))
    a('buffer_load_dword v4, off, %s, 0 sc1' % R4(WS))
    a('buffer_load_dwordx4 v10, %s, 0 offen lds' % R4(RB))
    a('s_add_u32 m0, s64, %d' % (L_VST - L_KST))
    a('buffer_load_dwordx4 v8, %s, 0 offen lds' % R4(RC))
    a('s_cmp_eq_u32 s%d, 0' % sHF)
    a('s_cselect_b64 s[%d:%d], s[%d:%d], s[%d:%d]' % (RC, RC + 1, RB, RB + 1, RC, RC + 1))
    a('s_cselect_b32 s65, %d, s%d' % (L_KST + 8192, sLIM))
    a('s_cselect_b32 s66, 0, %d' % (L_VST + 8192 - LIMIT))
    a('s_add_u32 s65, s65, s66')
    a('s_lshl_b32 s66, s%d, 10' % sQ)
    a('s_add_u32 m0, s65, s66')
    a('buffer_load_dwordx4 v9, %s, 0 offen lds' % R4(RC))
    for r in (RA, RD):
        a('s_mov_b64 s[%d:%d], s[%d:%d]' % (r, r + 1, WS, WS + 1))
        a('s_mov_b64 s[%d:%d], s[%d:%d]' % (r + 2, r + 3, WS + 2, WS + 3))
    for r in range(QT, QT + 5):
        a('v_mov_b32 v%d, 0' % r)
    stamp(a, 0)
    a('s_barrier')
    a('s_cmp_ge_u32 s%d, 5' % sW)
    a('s_cbranch_scc1 E_BLD')
    for kvw in (1, 0):
        if not kvw:
            a.label('E_BLD')
        a('s_cmp_ge_u32 s%d, 29' % sI)
        a('s_cbranch_scc1 E_%d0' % kvw)
        a('s_cmp_ge_u32 s%d, 14' % sI)
        a('s_cbranch_scc1 E_%d2' % kvw)
        early(a, 1, kvw)
        a.label('E_%d2' % kvw)
        early(a, 2, kvw)
        a.label('E_%d0' % kvw)
        early(a, 0, kvw)
    kv_phase(a)
    conv_phase(a)
    g_phase(a, 1)
    g_phase(a, 2)
    s_phase(a)
    a.label('END')
    a('s_endpgm')
    return a.lines


def build():
    ref = open('cdna_kernels/%s.s.ref' % NAME).read().split('\n')
    head = [l for l in ref if l.startswith(';') and '@launch' not in l and 'Override launch' not in l and 'grid=ceil' not in l]
    s = '\n'.join(head) + '\n'
    s += '; @launch grid=(256,1,1) block=(512,1,1) lds=163840\n'
    s += '.amdgcn_target "amdgcn-amd-amdhsa--gfx950"\n.text\n'
    s += kernel_text(NAME + '_kernel', kernel(), 256)
    s += '.section .rodata,"a"\n'
    s += descriptor_text(NAME + '_kernel', 256, 102)
    return s


if __name__ == '__main__':
    open(sys.argv[1], 'w').write(build())
```

```python
import sys, os, math, struct
from asmlib import *

NAME = 'interleave_layers__ssm_conv_h3__mixer_channel_mlp__prompt'
E = lambda k, d: int(os.environ.get(k, d))
STAMP, FORCE_SLOW, LIMIT = E('STAMP', 0), E('FORCE_SLOW', 0), 20000
NA1, NA2 = E('NA1', 12), E('NA2', 0)
PA, P1, P2_ = E('PA', 24), E('P1', 12), E('P2', 6)
PF1, PF2 = E('PF1', 1), E('PF2', 1)
B0 = E('B0', 1)
PB = E('PB', 24)
P1A, P2A = E('P1A', 0), E('P2A', 0)
RL = E('RL', 0)
CU_ = [int(x) for x in os.environ.get('CUN', '8,4,2,2,2').split(',')]
HFK, PLK, DST = E('HFK', 8), E('PLK', 12), E('DST', 6)
PRIO = [int(x) for x in os.environ.get('PRIO', '1,2,0').split(',')]
PRK = E('PRK', 8)
SMOOTH = E('SMOOTH', 1)
EARLYF = E('EARLYF', 0)
SPA = [int(x) for x in os.environ.get('SPA', '2,3').split(',')]
SPB = [int(x) for x in os.environ.get('SPB', '1,2,3').split(',')]
SPC = E('SPC', 0)
WBL = E('WBL', 0)
OSC = E('OSC', 0)
NOREDO, NOWIPE = E('NOREDO', 0), E('NOWIPE', 0)
RCNT = E('RCNT', 0)
NOCHK = E('NOCHK', 0)

EPOCH, HELLO, KVFA, KVFB, CLR, ZF, HFL, MFL, DUMMY = 0, 0x40000, 0x2000, 0x4000, 0x50000, 0xC000, 0x10000, 0x20000, 0x30000
KVA, KVB, YT, ZI, HB, MR = 0x100000, 0x400000, 0x700000, 0x1000000, 0x1400000, 0x1C00000
ZSL, HSL, MSL = 40960, 114688, 122880
STAMPS = 0x8000000
ROWS_B = 2048 * 1280
L_KST, L_VST, L_OST, L_SYNC = 122880, 135168, 147456, 163328
CSL, CUO, HSTR = 21248, 16640, 4160
RING = {1: 45056, 2: 86016}
LF_LND, LF_DON, LF_I0 = L_SYNC, L_SYNC + 32, L_SYNC + 64
pQ, pK, pV, pSH, pH, pD, pW1, pB1, pW2, pB2, pOUT, pWS = 4, 6, 8, 10, 12, 14, 16, 18, 20, 22, 24, 26
sX, sW, sI, sQ = 28, 29, 30, 31
WS, RA, RB, RC, RD = 32, 36, 40, 44, 48
sHF, sTAG, sXCC, sSLOW, sP, sLIM, sCNT = 52, 53, 54, 55, 56, 57, 58
sHI, sINV, sEPS, sC2 = 59, 60, 61, 62
sLO1, sHI1 = 89, 90
sST = 86
sWO, sWL, sWS = 91, 92, 93
vL, vL16, vL4, vST = 1, 2, 3, 7
vWO, vWT = 8, 9
WB = {1: 96, 2: 112}
NK = {1: 40, 2: 36}
RS = {1: 3456, 2: 1280}
NA = {1: NA1, 2: NA2}
NR = {1: 29, 2: 19}
NC = {1: 11, 2: 17}
DUM = {1: 252, 2: 96}
assert NA1 <= 19 and NA2 in (0, 3, 6, 9)

f2h = lambda x: hex(struct.unpack('<I', struct.pack('<f', x))[0])
R4 = lambda d: 's[%d:%d]' % (d, d + 3)
P2 = lambda r: 'v[%d:%d]' % (r, r + 1)


def srd(a, d, p, size, add=None):
    if add is None:
        a('s_mov_b32 s%d, s%d' % (d, p)); a('s_mov_b32 s%d, s%d' % (d + 1, p + 1))
    else:
        a('s_add_u32 s%d, s%d, %s' % (d, p, add)); a('s_addc_u32 s%d, s%d, 0' % (d + 1, p + 1))
    a('s_mov_b32 s%d, %s' % (d + 2, size)); a('s_mov_b32 s%d, 0x20000' % (d + 3))


def stamp(a, idx):
    if not STAMP:
        return
    a('%s s[%d:%d]' % ('s_memtime' if os.environ.get('CLK') else 's_memrealtime', sST, sST + 1))
    if isinstance(idx, tuple):
        a('s_mul_i32 s88, s%d, %d' % (idx[0], idx[1]))
        a('s_add_u32 s88, s88, %d' % idx[2])
        a('s_lshl_b64 exec, 1, s88')
        a('s_waitcnt lgkmcnt(0)')
        a('v_mov_b32 v%d, s%d' % (vST, sST))
        a('s_mov_b64 exec, -1')
    else:
        a('s_waitcnt lgkmcnt(0)')
        a('v_writelane_b32 v%d, s%d, %d' % (vST, sST, idx))


DBGMAP = {1: {0: 1, 3: 2, 6: 3, 10: 6, 16: 7, 44: 10, 63: 12, 12: 15},
          2: {0: 1, 3: 2, 6: 3, 10: 8, 16: 9, 44: 11, 63: 13},
          0: {0: 1, 3: 2, 17: 4, 19: 5, 63: 14}}


def endk(a, role):
    if STAMP == 2:
        a('s_waitcnt vmcnt(0)')
        stamp(a, 63)
        if role:
            a('s_cmp_lg_u32 s%d, %d' % (sI, 3 if role == 1 else 17))
            a('s_cbranch_scc1 END')
            a('s_and_b32 s63, s%d, 3' % sW)
            a('s_cmp_lg_u32 s63, %d' % (3 if role == 1 else 0))
            a('s_cbranch_scc1 END')
        else:
            a('s_cmp_lg_u32 s%d, 0' % sQ)
            a('s_cbranch_scc1 END')
        a('s_load_dwordx2 s[64:65], s[0:1], 96')
        a('v_readlane_b32 s63, v%d, 0' % vST)
        a('s_not_b32 s63, s63')
        a('v_writelane_b32 v%d, s63, 62' % vST)
        a('v_mov_b32 v10, 0x1000')
        for k, w in list(DBGMAP[role].items()) + [(62, 0)]:
            a('s_movk_i32 s63, %d' % (4 * w))
            a('v_writelane_b32 v10, s63, %d' % k)
        a('s_waitcnt lgkmcnt(0)')
        srd(a, RD, 64, 256)
        a('buffer_atomic_umax v%d, v10, %s, 0 offen sc1' % (vST, R4(RD)))
    elif STAMP:
        a('s_waitcnt vmcnt(0)')
        stamp(a, 63)
        a('s_lshl_b32 s63, s2, 3')
        a('s_add_u32 s63, s63, s%d' % sW)
        a('s_lshl_b32 s63, s63, 8')
        a('s_add_u32 s63, s63, %s' % hex(STAMPS))
        a('s_mov_b64 exec, -1')
        a('v_mbcnt_lo_u32_b32 v10, -1, 0')
        a('v_mbcnt_hi_u32_b32 v10, -1, v10')
        a('v_lshlrev_b32 v10, 2, v10')
        a('buffer_store_dword v%d, v10, %s, s63 offen' % (vST, R4(WS)))
    a('s_endpgm')


def setexec(a, n):
    if n == 64:
        a('s_mov_b64 exec, -1')
    elif n <= 6:
        a('s_mov_b64 exec, %d' % ((1 << n) - 1))
    elif n <= 32:
        a('s_mov_b32 exec_lo, %s' % ('-1' if n == 32 else hex((1 << n) - 1))); a('s_mov_b32 exec_hi, 0')
    else:
        a('s_mov_b32 exec_lo, -1'); a('s_mov_b32 exec_hi, %s' % hex((1 << (n - 32)) - 1))


def emit(a, lst):
    for l in lst:
        a(l)


def flag_store(a, soff, vT, sc1):
    a('v_mov_b32 v%d, s%d' % (vT, sTAG))
    a('s_mov_b64 exec, 1')
    a('buffer_store_dword v%d, off, %s, s%d%s' % (vT, R4(WS), soff, ' sc1' if sc1 else ''))
    a('s_mov_b64 exec, -1')


def hello_load(a, vT, st):
    a('s_lshl_b32 s%d, s%d, 12' % (st, sX))
    a('s_add_u32 s%d, s%d, %d' % (st, st, HELLO))
    a('v_and_b32 v%d, 0x7c, v%d' % (vT + 2, vL4))
    a('v_lshlrev_b32 v%d, 5, v%d' % (vT + 2, vT + 2))
    a('buffer_load_dword v%d, v%d, %s, s%d offen sc1' % (vT, vT + 2, R4(WS), st))


def hello_store(a, young):
    a('s_lshl_b32 s66, s2, 7')
    a('s_and_b32 s66, s66, 0x380')
    a('s_lshl_b32 s66, s66, 5')
    a('s_lshl_b32 s67, s%d, 7' % sI)
    a('s_add_u32 s66, s66, s67')
    a('s_add_u32 s66, s66, %d' % HELLO)
    a('s_cmp_eq_u32 s%d, 7' % sW)
    a('s_cselect_b32 s67, 0, 0x10000000')
    a('v_mov_b32 v5, s67')
    a('s_lshl_b32 s67, s%d, 1' % sXCC)
    a('s_waitcnt vmcnt(%d)' % young)
    get_tag(a, 4)
    a('s_xor_b32 s67, s67, s%d' % sTAG)
    a('v_mov_b32 v4, s67')
    a('s_mov_b64 exec, 1')
    a('buffer_store_dword v4, v5, %s, s66 offen sc1' % R4(WS))
    a('s_mov_b64 exec, -1')


def hello_check(a, vT, st, young):
    L, C, D = a.newlabel('HL'), a.newlabel('HC'), a.newlabel('HD')
    a('s_mov_b32 s%d, 0' % sCNT)
    a('s_waitcnt vmcnt(%d)' % young)
    a('s_branch %s' % C)
    a.label(L)
    a('buffer_load_dword v%d, v%d, %s, s%d offen sc1' % (vT, vT + 2, R4(WS), st))
    a('s_add_u32 s%d, s%d, 1' % (sCNT, sCNT))
    a('s_waitcnt vmcnt(0)')
    a.label(C)
    a('v_xor_b32 v%d, s%d, v%d' % (vT, sTAG, vT))
    a('v_cmp_lt_u32 vcc, 15, v%d' % vT)
    a('v_and_b32 v%d, 1, v%d' % (vT + 1, vT))
    a('v_cmp_ne_u32 s[64:65], 0, v%d' % (vT + 1))
    a('s_or_b64 vcc, vcc, s[64:65]')
    a('s_cbranch_vccz %s' % D)
    a('s_cmp_lt_u32 s%d, s%d' % (sCNT, sLIM))
    a('s_cbranch_scc1 %s' % L)
    a('s_mov_b32 s%d, 0' % sLIM)
    a.label(D)
    a('s_lshl_b32 s%d, s%d, 1' % (st, sXCC))
    a('v_cmp_ne_u32 vcc, s%d, v%d' % (st, vT))
    a('s_cmp_lg_u64 vcc, 0')
    a('s_cselect_b32 s%d, 1, %d' % (sSLOW, FORCE_SLOW))


def get_tag(a, vE):
    a('v_readfirstlane_b32 s%d, v%d' % (sTAG, vE))
    a('s_mul_i32 s%d, s%d, 0x9E3779B1' % (sTAG, sTAG))
    a('s_add_u32 s%d, s%d, 0x7F4A7C15' % (sTAG, sTAG))


class Ool:
    def __init__(self, a):
        self.a, self.q = a, []
    def add(self, fn):
        self.q.append(fn)
    def flush(self):
        while self.q:
            self.q.pop(0)()


def both2(a, ool, texts):
    if isinstance(texts, str):
        texts = [texts]
    S, R = a.newlabel('BS'), a.newlabel('BR')
    def slow():
        a.label(S)
        for t in texts:
            a(t + ' sc1' if t.startswith('buffer_') else t)
        a('s_branch %s' % R)
    ool.add(slow)
    return ['s_cmp_lg_u32 s%d, 0' % sSLOW, 's_cbranch_scc1 %s' % S] + texts + [R + ':']


def oob_lane0(a, v):
    a('v_cmp_eq_u32 vcc, 0, v%d' % vL4)
    a('v_mov_b32 v%d, 0x10000000' % v)
    a('v_cndmask_b32_e64 v%d, v%d, 0, vcc' % (v, v))


def cnt_min(X):
    return ['v_min_u32 v%d, v%d, v%d' % (X, X, X + 1), 'v_min3_u32 v%d, v%d, v%d, v%d' % (X, X, X + 2, X + 3)]


def cnt_spin(a, ool, X, vLine, vCnt, pre=None):
    S, R = a.newlabel('CS'), a.newlabel('CR')
    def spin():
        L = a.newlabel('CL')
        a.label(S)
        if pre:
            pre()
        a('s_mov_b32 s%d, 0' % sCNT)
        a.label(L)
        a('ds_read_b128 %s, v%d' % (vr(X, 4), vLine))
        a('s_add_u32 s%d, s%d, 1' % (sCNT, sCNT))
        a('s_waitcnt lgkmcnt(0)')
        emit(a, cnt_min(X))
        a('v_cmp_gt_u32 vcc, v%d, v%d' % (vCnt, X))
        a('s_cbranch_vccz %s' % R)
        a('s_cmp_lt_u32 s%d, %d' % (sCNT, 4 * LIMIT))
        a('s_cbranch_scc1 %s' % L)
        a('s_branch %s' % R)
    ool.add(spin)
    a('s_waitcnt lgkmcnt(0)')
    emit(a, cnt_min(X))
    a('v_cmp_gt_u32 vcc, v%d, v%d' % (vCnt, X))
    a('s_cbranch_vccnz %s' % S)
    a.label(R)


def block_poll(a, v, vOff, so):
    L, D = a.newlabel('PL'), a.newlabel('PD')
    a('s_mov_b32 s%d, 0' % sCNT)
    a.label(L)
    a('buffer_load_dword v%d, v%d, %s, s%d offen sc1' % (v, vOff, R4(WS), so))
    a('s_add_u32 s%d, s%d, 1' % (sCNT, sCNT))
    a('s_waitcnt vmcnt(0)')
    a('v_cmp_ne_u32 vcc, s%d, v%d' % (sTAG, v))
    a('s_cbranch_vccz %s' % D)
    a('s_cmp_lt_u32 s%d, s%d' % (sCNT, sLIM))
    a('s_cbranch_scc1 %s' % L)
    a('s_mov_b32 s%d, 0' % sLIM)
    a.label(D)


def dummy_off(a, sD):
    a('s_lshl_b32 s%d, s2, 7' % sD)
    a('s_lshl_b32 s63, s%d, 2' % sW)
    a('s_add_u32 s%d, s%d, s63' % (sD, sD))
    a('s_add_u32 s%d, s%d, %d' % (sD, sD, DUMMY))


class LdsQ:
    def __init__(self, a):
        self.a, self.q = a, []
    def issue(self, key, text):
        self.a(text); self.q.append(key)
    def wait(self, keys):
        last = -1
        for i, k in enumerate(self.q):
            if k in keys:
                last = i
        if last >= 0:
            n = len(self.q) - 1 - last
            self.a('s_waitcnt lgkmcnt(%d)' % n)
            self.q = self.q[last + 1:]


def g2_ids(a, sk, sc):
    a('s_sub_u32 s%d, s%d, 14' % (sc, sI))
    a('s_mul_i32 s%d, s%d, 52' % (sk, sc))
    a('s_lshr_b32 s%d, s%d, 8' % (sk, sk))
    a('s_mul_i32 s63, s%d, 5' % sk)
    a('s_sub_u32 s%d, s%d, s63' % (sc, sc))


def w_setup(a, g):
    if g == 1:
        srd(a, RA, pW1, 640 * 3456)
        a('s_lshl_b32 s66, s%d, 8' % sI)
    else:
        srd(a, RA, pW2, 1728 * 1280)
        g2_ids(a, 66, 67)
        a('s_mul_i32 s66, s66, %d' % (576 * 1280))
        a('s_lshl_b32 s67, s67, 8')
        a('s_add_u32 s66, s66, s67')
    a('v_lshrrev_b32 v10, 4, v%d' % vL)
    a('v_bfe_u32 v11, v%d, 2, 2' % vL)
    a('v_xor_b32 v12, v10, v11')
    a('v_and_b32 v13, 3, v%d' % vL)
    a('v_lshl_add_u32 v12, v12, 2, v13')
    a('v_mul_u32_u24 v%d, %d, v10' % (vWO, RS[g]))
    a('v_lshl_add_u32 v%d, v12, 4, v%d' % (vWO, vWO))
    a('v_add_u32 v%d, s66, v%d' % (vWO, vWO))
    a('v_lshrrev_b32 v12, 5, v%d' % vL)
    a('v_lshl_add_u32 v12, v12, 3, v11')
    a('v_lshlrev_b32 v%d, 8, v12' % vWT)
    a('v_xor_b32 v12, s%d, v11' % sQ)
    a('v_lshl_add_u32 v%d, v12, 6, v%d' % (vWT, vWT))
    a('v_and_b32 v12, 1, v13')
    a('v_lshl_add_u32 v%d, v12, 5, v%d' % (vWT, vWT))
    a('v_and_b32 v12, 1, v10')
    a('v_lshl_add_u32 v%d, v12, 4, v%d' % (vWT, vWT))
    a('v_lshrrev_b32 v12, 1, v13')
    a('v_lshl_add_u32 v%d, v12, 3, v%d' % (vWT, vWT))


def w_begin(a, g, ks0, sIdx, sub, nw, lds):
    a('s_sub_u32 s63, s%d, %d' % (sIdx, sub))
    a('s_lshl_b32 s%d, s63, 10' % sWL)
    a('s_add_u32 s%d, s%d, %d' % (sWL, sWL, lds))
    a('s_add_u32 s63, s63, %d' % (4 * ks0))
    a('s_mul_i32 s%d, s63, %d' % (sWO, 4 * RS[g]))
    a('s_mov_b32 s%d, %d' % (sWS, 4 * RS[g] * nw))


def w_piece(nw):
    return ['s_mov_b32 m0, s%d' % sWL, 's_add_u32 s%d, s%d, %d' % (sWL, sWL, 1024 * nw),
            'buffer_load_dwordx4 v%d, %s, s%d offen lds' % (vWO, R4(RA), sWO), 's_add_u32 s%d, s%d, s%d' % (sWO, sWO, sWS)]


def w_stream(a, n, nw, P, dummy=None):
    if n == 0:
        return
    L = a.newlabel('WS')
    a('s_mov_b32 s63, %d' % n)
    a.label(L)
    a('s_waitcnt vmcnt(%d)' % (P - 1))
    if dummy is None:
        emit(a, w_piece(nw))
    else:
        a('buffer_load_dwordx4 %s, v%d, %s, s%d offen' % (vr(dummy, 4), vWO, R4(RA), sWO))
        a('s_add_u32 s%d, s%d, s%d' % (sWO, sWO, sWS))
    a('s_sub_u32 s63, s63, 1')
    a('s_cmp_lg_u32 s63, 0')
    a('s_cbranch_scc1 %s' % L)


def w_read(a, g, ks0, n, lds):
    a('v_add_u32 v10, %d, v%d' % (lds, vWT))
    for k in range(n):
        if k == 16:
            a('v_add_u32 v10, 0x10000, v10')
        for hh in range(2):
            a('ds_read_b64_tr_b16 %s, v10 offset:%d' % (vr(WB[g] + 4 * (ks0 + k) + 2 * hh, 2), 4096 * (k & 15) + 1024 * hh))
        if k % 4 == 3:
            a('s_waitcnt lgkmcnt(6)')
    a('s_waitcnt lgkmcnt(0)')


TAP = 16
HQ, HD = (16, 100), (40, 124)
QT = 76


def conv_channel(a, g, sSlot, sCh, sDum):
    if g == 1:
        a('s_lshl_b32 s%d, s%d, 1' % (sCh, sI))
    else:
        a('s_lshl_b32 s%d, s%d, 2' % (sCh, sI))
        a('s_sub_u32 s%d, s%d, 28' % (sCh, sCh))
    a('s_add_u32 s%d, s%d, s%d' % (sCh, sCh, sSlot))
    a('s_cmp_ge_u32 s%d, 80' % sCh)
    a('s_cselect_b32 s%d, 1, 0' % sDum)
    a('s_cselect_b32 s63, 80, 0')
    a('s_sub_u32 s%d, s%d, s63' % (sCh, sCh))


def ssm_loads(a, g, sSlot, n):
    conv_channel(a, g, sSlot, 66, 67)
    a('s_mul_i32 s67, s%d, 80' % sX)
    a('s_add_u32 s66, s66, s67')
    a('s_lshl_b32 s66, s66, 12')
    srd(a, RD, pH, 4096, 's66')
    a('v_subrev_u32 v10, 32, v%d' % vL16)
    a('v_subrev_u32 v11, 16, v%d' % vL16)
    a('v_add_u32 v12, 992, v%d' % vL16)
    a('buffer_load_dwordx4 %s, v10, %s, 0 offen' % (vr(HQ[n], 4), R4(RD)))
    a('buffer_load_dwordx2 %s, v11, %s, 0 offen' % (vr(HD[n], 2), R4(RD)))
    for j in range(1, 5):
        a('buffer_load_dwordx4 %s, v12, %s, 0 offen offset:%d' % (vr(HQ[n] + 4 * j, 4), R4(RD), 1024 * (j - 1)))
        a('buffer_load_dwordx2 %s, v12, %s, 0 offen offset:%d' % (vr(HD[n] + 2 * j, 2), R4(RD), 1024 * (j - 1) + 16))


def ssm_build(a, sSlot, n):
    a('s_mul_i32 s66, s%d, %d' % (sSlot, CSL))
    a('v_add_u32 v5, s66, v%d' % vL16)
    for r in range(4):
        a('v_mov_b32 v%d, 0' % (56 + r))
    setexec(a, 32)
    a('ds_write_b128 v5, v[56:59] offset:%d' % (CUO + 4096))
    setexec(a, 64)
    for j in range(5):
        if j == 4:
            a('s_mov_b64 exec, 3')
        d = [HQ[n] + 4 * j + e for e in range(4)] + [HD[n] + 2 * j, HD[n] + 2 * j + 1]
        T1, T2, T3 = 60 + 12 * (j & 1), 64 + 12 * (j & 1), 68 + 12 * (j & 1)
        a('ds_write_b128 v5, %s offset:%d' % (vr(d[0], 4), 1024 * j))
        for e in range(4):
            a('v_alignbit_b32 v%d, v%d, v%d, 16' % (T1 + e, d[e + 1], d[e]))
        a('ds_write_b128 v5, %s offset:%d' % (vr(T1, 4), 1024 * j + HSTR))
        for e in range(4):
            a('v_mov_b32 v%d, v%d' % (T2 + e, d[e + 1]))
        a('ds_write_b128 v5, %s offset:%d' % (vr(T2, 4), 1024 * j + 2 * HSTR))
        for e in range(4):
            a('v_alignbit_b32 v%d, v%d, v%d, 16' % (T3 + e, d[e + 2], d[e + 1]))
        a('ds_write_b128 v5, %s offset:%d' % (vr(T3, 4), 1024 * j + 3 * HSTR))
        if j & 1:
            a('s_waitcnt lgkmcnt(4)')
    setexec(a, 64)


def row_table(a, T, tmp):
    a('s_movk_i32 s63, 820')
    for k in range(5):
        a('v_add_u32 v%d, %d, v%d' % (tmp, 64 * k, vL))
        a('v_mul_u32_u24 v%d, s63, v%d' % (tmp + 1, tmp))
        a('v_lshrrev_b32 v%d, 16, v%d' % (tmp + 1, tmp + 1))
        a('v_lshlrev_b32 v%d, 1, v%d' % (tmp + 1, tmp + 1))
        a('v_xor_b32 v%d, v%d, v%d' % (tmp, tmp, tmp + 1))
        a('v_lshlrev_b32 v%d, 4, v%d' % (T + k, tmp))


def s_ids(a, hf=sHF, q=sQ):
    a('s_sub_u32 s70, s%d, 29' % sI)
    a('s_mul_i32 s71, s%d, 3' % hf)
    a('s_add_u32 s70, s70, s71')
    a('s_and_b32 s71, s70, 1')
    a('s_lshr_b32 s70, s70, 1')
    a('s_mul_i32 s72, s%d, 20480' % hf)
    a('s_mul_i32 s63, s%d, 5120' % q)
    a('s_add_u32 s72, s72, s63')
    a('s_lshl_b32 s73, s70, 8')
    a('s_lshl_b32 s63, s%d, 5' % sX)
    a('s_add_u32 s73, s73, s63')
    a('s_lshl_b32 s63, s71, 4')
    a('s_add_u32 s73, s73, s63')
    a('s_lshl_b32 s63, s%d, 2' % q)
    a('s_add_u32 s73, s73, s63')
    a('s_mul_i32 s73, s73, 1280')


def q_dma(a, s, QT=QT):
    a('s_add_u32 s66, s73, %d' % (768 * 1280 * s))
    a('s_min_u32 s66, s66, %d' % (ROWS_B - 5120))
    for k in range(5):
        a('s_add_u32 m0, s72, %d' % (40960 * s + 1024 * k))
        a('buffer_load_dwordx4 v%d, %s, s66 offen lds' % (QT + k, R4(RA)))


def clear(a):
    a('s_cmp_eq_u32 s%d, 6' % sW)
    a('s_cselect_b32 s67, 0, 0x10000000')
    a('v_add_u32 v6, s67, v%d' % vL16)
    for r in range(4):
        a('v_mov_b32 v%d, -1' % (12 + r))
    a('s_lshr_b32 s66, s%d, 2' % sI)
    a('s_lshl_b32 s66, s66, 3')
    a('s_add_u32 s66, s66, s%d' % sX)
    a('s_lshl_b32 s66, s66, 2')
    a('s_and_b32 s67, s%d, 3' % sI)
    a('s_add_u32 s66, s66, s67')
    a('s_mul_i32 s66, s66, 10240')
    a('s_add_u32 s66, s66, %s' % hex(YT))
    for k in range(10):
        if k and k % 4 == 0:
            a('s_add_u32 s66, s66, 4096')
        a('buffer_store_dwordx4 v[12:15], v6, %s, s66 offen offset:%d sc1' % (R4(WS), 1024 * (k & 3)))


def cleared(a):
    a('s_lshr_b32 s66, s2, 2')
    a('s_lshl_b32 s66, s66, 5')
    a('s_and_b32 s67, s2, 3')
    a('s_add_u32 s66, s66, s67')
    a('s_lshl_b32 s66, s66, 2')
    a('s_add_u32 s66, s66, %d' % CLR)
    a('v_mov_b32 v4, s%d' % sTAG)
    a('s_mov_b64 exec, 1')
    a('buffer_store_dword v4, v6, %s, s66 offen sc1' % R4(WS))
    a('s_mov_b64 exec, -1')
    stamp(a, 15)


def early(a, g, kvw):
    n = 0
    if kvw:
        srd(a, RD, pSH, 5120)
        a('s_mul_i32 s66, s%d, 640' % sX)
        a('s_lshl_b32 s67, s%d, 7' % sW)
        a('s_add_u32 s66, s66, s67')
        a('v_and_b32 v10, 3, v%d' % vL)
        a('v_lshlrev_b32 v10, 3, v10')
        for it in range(4):
            a('buffer_load_dwordx2 %s, v10, %s, s66 offen offset:%d' % (vr(TAP + 2 * it, 2), R4(RD), 32 * it))
        if g:
            w_setup(a, g)
        a('s_waitcnt vmcnt(4)')
        get_tag(a, 4)
        stamp(a, 1)
        a('s_barrier')
        a('s_branch KV')
        return
    if g == 0:
        clear(a)
        srd(a, RA, pQ, hex(ROWS_B))
        row_table(a, QT, 10)
        for r in range(3):
            a('s_add_u32 s74, s%d, %d' % (sW, 3 * r - 5))
            a('s_min_u32 s74, s74, 7')
            a('s_lshr_b32 s75, s74, 2')
            a('s_and_b32 s74, s74, 3')
            s_ids(a, 75, 74)
            q_dma(a, 0)
        hello_store(a, 28)
        a('s_waitcnt vmcnt(26)')
        stamp(a, 1)
        a('s_barrier')
        a('s_waitcnt vmcnt(16)')
        cleared(a)
        a('s_branch NOBUILD')
        return
    if g == 1:
        a('s_cmp_eq_u32 s%d, 7' % sW)
        a('s_cbranch_scc1 E_LD')
    clear(a)
    a('s_sub_u32 s68, s%d, 5' % sW)
    ssm_loads(a, g, 68, 0)
    n += 10
    if g == 2:
        a('s_mov_b32 s69, 3')
        ssm_loads(a, g, 69, 1)
        n += 10
    w_setup(a, g)
    nw = 0
    if g == 2:
        hello_store(a, 13 + n + nw)
        nw += 1
    a('s_waitcnt vmcnt(%d)' % (10 + n + nw))
    if g == 1:
        get_tag(a, 4)
    stamp(a, 1)
    a('s_barrier')
    a('s_waitcnt vmcnt(%d)' % (n - 10 + nw))
    cleared(a)
    nw += 1
    if g == 2 and NA2:
        w_begin(a, g, 0, sW, 5, 3, RING[g])
        nw += 4 * NA2 // 3
        for k in range(4 * NA2 // 3):
            emit(a, w_piece(3))
    ssm_build(a, 68, 0)
    if g == 2:
        a('s_cmp_lg_u32 s%d, 5' % sW)
        a('s_cbranch_scc1 NOBUILD')
        a('s_waitcnt vmcnt(%d)' % nw)
        ssm_build(a, 69, 1)
    a('s_branch NOBUILD')
    if g == 1:
        a.label('E_LD')
        w_setup(a, g)
        w_begin(a, g, 0, sW, 7, 1, RING[g])
        n0 = min(PA, 4 * NA1)
        for k in range(n0):
            emit(a, w_piece(1))
        hello_store(a, 3 + n0)
        a('s_waitcnt vmcnt(%d)' % (n0 + 1))
        stamp(a, 1)
        a('s_barrier')
        a('v_mov_b32 v12, %d' % (2 * CSL + 28))
        a('v_mov_b32 v10, 1')
        a('ds_write_b32 v12, v10')
        w_stream(a, 4 * NA1 - n0, 1, PB)
        a('s_branch BUILT')


def kv_phase(a):
    PV, CU, VV, T = 24, 32, 40, 48
    a.label('KV')
    a('v_and_b32 v10, 3, v%d' % vL)
    a('v_bfe_u32 v11, v%d, 2, 2' % vL)
    a('v_and_b32 v12, 0x30, v%d' % vL)
    a('v_lshl_add_u32 v12, v10, 2, v12')
    a('v_add_u32 v12, v12, v11')
    a('v_mul_u32_u24 v12, 176, v12')
    a('s_lshl_b32 s66, s%d, 5' % sW)
    a('s_add_u32 s66, s66, %d' % L_KST)
    a('v_add_u32 v12, s66, v12')
    for it in range(4):
        a('ds_read_b64_tr_b16 %s, v12 offset:%d' % (vr(PV + 2 * it, 2), 8 * it))
        a('ds_read_b64_tr_b16 %s, v12 offset:%d' % (vr(CU + 2 * it, 2), 8 * it + 704))
        a('ds_read_b64_tr_b16 %s, v12 offset:%d' % (vr(VV + 2 * it, 2), 8 * it + L_VST - L_KST))
    a('s_waitcnt vmcnt(0)')
    for r in range(8):
        a('v_alignbit_b32 v%d, v%d, v%d, 16' % (TAP + r, TAP + r, TAP + r))
    a('s_mul_i32 s66, s%d, 2560' % sW)
    a('s_add_u32 s66, s66, %d' % L_OST)
    a('v_mul_u32_u24 v13, 160, v10')
    a('v_lshrrev_b32 v11, 2, v%d' % vL)
    a('v_lshlrev_b32 v11, 3, v11')
    a('v_sub_u32 v13, v13, v11')
    a('s_add_u32 s67, s66, 120')
    a('v_add_u32 v13, s67, v13')
    a('v_lshrrev_b32 v10, 3, v%d' % vL)
    a('v_and_b32 v11, 7, v%d' % vL)
    a('v_lshlrev_b32 v11, 4, v11')
    a('v_mul_u32_u24 v14, 160, v10')
    a('v_add3_u32 v14, s66, v14, v11')
    a('v_lshl_add_u32 v5, v10, 12, v11')
    for it in range(4):
        a('s_waitcnt lgkmcnt(%d)' % (9 - 3 * it + it))
        P0, P1, C0, C1, V0, V1, W10, W32 = PV + 2 * it, PV + 2 * it + 1, CU + 2 * it, CU + 2 * it + 1, VV + 2 * it, VV + 2 * it + 1, TAP + 2 * it, TAP + 2 * it + 1
        O0, O1, O2, A, U = T, T + 1, T + 2, T + 4, T + 8
        a('v_alignbit_b32 v%d, v%d, v%d, 16' % (O0, P1, P0))
        a('v_alignbit_b32 v%d, v%d, v%d, 16' % (O1, C0, P1))
        a('v_alignbit_b32 v%d, v%d, v%d, 16' % (O2, C1, C0))
        for t, (h, l) in enumerate(((O1, O0), (C0, P1), (O2, O1), (C1, C0))):
            a('v_dot2_f32_bf16 v%d, v%d, v%d, 0' % (A + t, l, W32))
        a('v_lshlrev_b32 v%d, 16, v%d' % (U, V0))
        a('v_and_b32 v%d, s%d, v%d' % (U + 1, sHI, V0))
        for t, (h, l) in enumerate(((O1, O0), (C0, P1), (O2, O1), (C1, C0))):
            a('v_dot2c_f32_bf16 v%d, v%d, v%d' % (A + t, h, W10))
        a('v_lshlrev_b32 v%d, 16, v%d' % (U + 2, V1))
        a('v_and_b32 v%d, s%d, v%d' % (U + 3, sHI, V1))
        for t in range(4):
            a('v_mul_f32 v%d, v%d, v%d' % (A + t, A + t, U + t))
        a('v_cvt_pk_bf16_f32 v%d, v%d, v%d' % (PV + 2 * it, A + 3, A + 2))
        a('v_cvt_pk_bf16_f32 v%d, v%d, v%d' % (PV + 2 * it + 1, A + 1, A))
        a('ds_write_b64 v13, %s offset:%d' % (vr(PV + 2 * it, 2), 640 * it))
    a('s_mul_i32 s67, s%d, 80' % sX)
    a('s_lshl_b32 s66, s%d, 4' % sW)
    a('s_add_u32 s67, s67, s66')
    a('s_lshl_b32 s67, s67, 12')
    a('s_lshl_b32 s66, s%d, 7' % sI)
    a('s_sub_u32 s67, s67, s66')
    a('s_add_u32 s67, s67, 3968')
    a('ds_read_b128 %s, v14' % vr(CU, 4))
    a('ds_read_b128 %s, v14 offset:1280' % vr(CU + 4, 4))
    a('s_mul_i32 s68, s%d, 5' % sX)
    a('s_add_u32 s68, s68, s%d' % sW)
    a('s_lshl_b32 s68, s68, 7')
    a('s_lshl_b32 s66, s%d, 2' % sI)
    a('s_add_u32 s68, s68, s66')
    for k in range(2):
        a('s_add_u32 s66, s67, %s' % hex(KVA + 32768 * k))
        a('s_waitcnt lgkmcnt(%d)' % (1 - k))
        a('buffer_store_dwordx4 %s, v5, %s, s66 offen' % (vr(CU + 4 * k, 4), R4(WS)))
    stamp(a, 2)
    hello_load(a, 44, 69)
    a('s_lshl_b32 s66, s%d, 1' % sXCC)
    a('s_add_u32 s66, s66, s%d' % sTAG)
    a('v_mov_b32 v4, s66')
    a('s_add_u32 s66, s68, %d' % KVFA)
    a('s_waitcnt vmcnt(1)')
    a('s_mov_b64 exec, 1')
    a('buffer_store_dword v4, off, %s, s66' % R4(WS))
    a('s_mov_b64 exec, -1')
    stamp(a, 3)
    hello_check(a, 44, 69, 1)
    a('s_cmp_eq_u32 s%d, 0' % sSLOW)
    a('s_cbranch_scc1 ROLES')
    for k in range(2):
        a('s_add_u32 s66, s67, %s' % hex(KVB + 32768 * k))
        a('buffer_store_dwordx4 %s, v5, %s, s66 offen sc1' % (vr(CU + 4 * k, 4), R4(WS)))
    a('s_add_u32 s66, s68, %d' % KVFB)
    a('s_waitcnt vmcnt(0)')
    flag_store(a, 66, 4, True)
    a('s_branch ROLES')
    a.label('NOBUILD')
    stamp(a, 2)
    hello_load(a, 44, 69)
    hello_check(a, 44, 69, 0)
    stamp(a, 3)
    a.label('ROLES')
    a('s_cmp_ge_u32 s%d, 29' % sI)
    a('s_cbranch_scc1 S_MAIN')
    a.label('BUILT')
    stamp(a, 12)


CACC, CB, CA, CE, CT = 16, 32, 64, 96, 104
vCA, vCB = 14, 15


def conv_part(a, taus, U, mid=None, each=None):
    mf = [(aa, t - aa, t) for aa in range(max(taus) + 1) for t in taus if t >= aa]
    M = len(mf)
    nf = max(taus) + 1
    D = 8 // nf
    assert U % D == 0
    order, last, first = [], {}, {}
    for i, (aa, j, t) in enumerate(mf):
        for f in (('B', j), ('A', aa)):
            if f not in last:
                order.append(f)
                first[f] = i
            last[f] = i
    def reg(f, k):
        return (CA if f[0] == 'A' else CB) + 4 * (f[1] + nf * (k % D))
    def load(f, k):
        if f[0] == 'A':
            off = 512 * f[1] + 64 * k
            return ['ds_read_b64 %s, v%d offset:%d' % (vr(reg(f, k), 2), vCA, off),
                    'ds_read_b64 %s, v%d offset:%d' % (vr(reg(f, k) + 2, 2), vCA, off + 8)]
        return ['ds_read_b128 %s, v%d offset:%d' % (vr(reg(f, k), 4), vCB, 512 * (7 - f[1]) + 64 * k)]
    jobs = sorted((first[f] + D * M, last[f], n, f, p) for n, f in enumerate(order) for p in range(len(load(f, 0))))
    cap = -(-len(jobs) // M) if SMOOTH else 99
    slot = [[] for g in range(M)]
    t, todo = 0, list(jobs)
    while todo:
        while len(slot[t % M]) < cap:
            rdy = [x for x in todo if x[1] <= t]
            if not rdy:
                break
            todo.remove(rdy[0])
            assert t < rdy[0][0] - 2 and t < 2 * M, (taus, t, rdy[0])
            slot[t % M].append((rdy[0][3], rdy[0][4], t // M))
            if SMOOTH and cap > 1 and sum(len(x) for x in slot) * M >= (t + 1) * len(jobs) and t < M:
                break
        t += 1
    wrapped = {(f, p) for g in slot for f, p, w in g if w}
    pro = [(f, p, k) for k in range(D) for f in order for p in range(len(load(f, 0))) if not (k == D - 1 and (f, p) in wrapped)]
    live = lambda k: k < 8 or U < 8
    q, need = [(f, k) for f, p, k in pro], {}
    for k in range(8):
        for i, (aa, j, t) in enumerate(mf):
            pos = max(n for n, e in enumerate(q) if e in ((('A', aa), k), (('B', j), k)))
            assert q.count((('A', aa), k)) == 2 and q.count((('B', j), k)) == 1
            key = (k % U, i)
            need[key] = min(need.get(key, 15), len(q) - 1 - pos)
            q += [(f, k - w + D) for f, p, w in slot[i] if live(k - w + D)]
    st = [0]
    def issue(x):
        if st[0] >= 15:
            a('s_waitcnt lgkmcnt(12)')
            st[0] = 12
        a(x)
        st[0] += 1
    for f, p, k in pro:
        issue(load(f, k)[p])
    if U < 8:
        for r in range(4 * len(taus)):
            a('v_mov_b32 v%d, 0' % (CACC + r))
        L, X = a.newlabel('CL'), a.newlabel('CX')
        a('s_mov_b32 s63, 0')
        a.label(L)
        st[0] = 15
    for c in range(U):
        for i, (aa, j, t) in enumerate(mf):
            n = need[(c, i)]
            if n < st[0]:
                a('s_waitcnt lgkmcnt(%d)' % n)
                st[0] = n
            acc = CACC + 4 * (t - taus[0])
            cc = '0' if (U == 8 and c == 0 and aa == 0) else vr(acc, 4)
            a('v_mfma_f32_16x16x32_bf16 %s, %s, %s, %s' % (vr(acc, 4), vr(reg(('A', aa), c), 4), vr(reg(('B', j), c), 4), cc))
            for f, p, w in slot[i]:
                if live(c - w + D):
                    issue(load(f, c - w + D)[p])
            if U == 8 and mid and c == 4 and i == 0:
                mid()
    if U < 8:
        if each:
            each()
        a('v_add_u32 v%d, %d, v%d' % (vCA, 64 * U, vCA))
        a('v_add_u32 v%d, %d, v%d' % (vCB, 64 * U, vCB))
        a('s_add_u32 s63, s63, 1')
        a('s_cmp_lt_u32 s63, %d' % (8 // U))
        if mid:
            assert U == 4
            a('s_cbranch_scc0 %s' % X)
            mid()
            a('s_branch %s' % L)
            a.label(X)
        else:
            a('s_cbranch_scc1 %s' % L)
        a('v_subrev_u32 v%d, 512, v%d' % (vCA, vCA))
        a('v_subrev_u32 v%d, 512, v%d' % (vCB, vCB))


def conv_item(a, stages, U, st_, each=None):
    taus = [t for st in stages for t in (2 * st, 2 * st + 1)]
    conv_part(a, taus, U, None, each)
    stamp(a, st_)
    T = CT
    a('s_waitcnt lgkmcnt(8)')
    L, D = a.newlabel('CC'), a.newlabel('CD')
    a('s_mov_b32 s%d, 0' % sCNT)
    a.label(L)
    a('ds_read_b32 v10, v12 offset:32')
    for n, t in enumerate(taus):
        a('ds_read_b64 %s, v4 offset:%d' % (vr(CE + 2 * n, 2), 512 * (7 - t)))
    a('s_add_u32 s%d, s%d, 1' % (sCNT, sCNT))
    a('s_waitcnt lgkmcnt(%d)' % len(taus))
    a('v_cmp_eq_u32 vcc, 0, v10')
    a('s_cbranch_vccz %s' % D)
    a('s_cmp_lt_u32 s%d, %d' % (sCNT, 4 * LIMIT))
    a('s_cbranch_scc1 %s' % L)
    a.label(D)
    for m, stage in enumerate(stages):
        a('s_add_u32 s66, s75, %d' % (2 * 327680 * stage))
        a('s_waitcnt lgkmcnt(%d)' % (2 * (len(stages) - 1 - m)))
        Q = CT + 4 + 4 * m
        for h in range(2):
            e0, e1 = CE + 4 * m + 2 * h, CE + 4 * m + 2 * h + 1
            acc = CACC + 8 * m + 4 * h
            a('v_and_b32 v%d, s%d, v%d' % (T + 0, sHI, e1))
            a('v_lshlrev_b32 v%d, 16, v%d' % (T + 1, e1))
            a('v_and_b32 v%d, s%d, v%d' % (T + 2, sHI, e0))
            a('v_lshlrev_b32 v%d, 16, v%d' % (T + 3, e0))
            for r in range(4):
                a('v_fmac_f32 v%d, s74, v%d' % (acc + r, T + r))
            a('v_cvt_pk_bf16_f32 v%d, v%d, v%d' % (Q + 2 * h, acc, acc + 1))
            a('v_cvt_pk_bf16_f32 v%d, v%d, v%d' % (Q + 2 * h + 1, acc + 2, acc + 3))
        a('v_permlane16_swap_b32 v%d, v%d' % (Q, Q + 2))
        a('v_permlane16_swap_b32 v%d, v%d' % (Q + 1, Q + 3))
        for r in range(4):
            a('v_min_u32 v%d, -2, v%d' % (Q + r, Q + r))
        a('buffer_store_dwordx4 %s, v5, %s, s66 offen sc1' % (vr(Q, 4), R4(WS)))


def rdy_wait(a, body, off=0):
    L, D = a.newlabel('RW'), a.newlabel('RD')
    a('s_mov_b32 s%d, 0' % sCNT)
    a.label(L)
    a('ds_read_b128 v[16:19], v12 offset:%d' % off)
    a('ds_read_b128 v[20:23], v12 offset:%d' % (off + 16))
    if body:
        body()
    a('s_add_u32 s%d, s%d, 1' % (sCNT, sCNT))
    a('s_waitcnt lgkmcnt(0)')
    a('v_min3_u32 v16, v16, v17, v18')
    a('v_min3_u32 v20, v20, v21, v22')
    a('v_min3_u32 v16, v16, v19, v23')
    a('v_min_u32 v16, v16, v20')
    a('v_cmp_eq_u32 vcc, 0, v16')
    a('s_cbranch_vccz %s' % D)
    a('s_cmp_lt_u32 s%d, %d' % (sCNT, 4 * LIMIT))
    a('s_cbranch_scc1 %s' % L)
    a.label(D)


EMPTY = 0x10001


def conv_phase(a):
    a('s_cmp_ge_u32 s%d, 14' % sI)
    a('s_cbranch_scc1 CV_G2')
    a('s_and_b32 s69, s%d, 1' % sW)
    a('s_lshr_b32 s63, s%d, 1' % sW)
    a('s_lshl_b32 s63, s63, 2')
    a('s_lshr_b32 s77, 0x2814, s63')
    a('s_and_b32 s77, s77, 15')
    conv_channel(a, 1, 69, 64, 65)
    a('s_branch CV_COM')
    a.label('CV_G2')
    a('s_mov_b32 s69, s%d' % sQ)
    a('s_cmp_eq_u32 s%d, 0' % sHF)
    a('s_cselect_b32 s77, 16, 9')
    conv_channel(a, 2, 69, 64, 65)
    a.label('CV_COM')
    a('s_lshr_b32 s78, s64, 4')
    a('s_mul_i32 s79, s%d, 5' % sX)
    a('s_add_u32 s78, s78, s79')
    a('s_lshl_b32 s78, s78, 7')
    a('s_add_u32 s78, s78, %d' % KVFA)
    a('s_mul_i32 s79, s%d, 80' % sX)
    a('s_add_u32 s64, s64, s79')
    a('s_and_b32 s66, s64, 0xfffffffe')
    a('s_lshl_b32 s66, s66, 1')
    a('s_load_dword s74, s[%d:%d], s66' % (pD, pD + 1))
    a('s_lshl_b32 s79, s64, 12')
    a('s_mul_i32 s80, s69, %d' % CSL)
    a('s_add_u32 s81, s80, %d' % CUO)
    a('s_bitcmp0_b32 s77, 0')
    a('s_cbranch_scc1 CV_NOLEAD')
    a('v_and_b32 v16, 31, v%d' % vL)
    a('v_lshlrev_b32 v16, 2, v16')
    a('v_lshrrev_b32 v17, 5, v%d' % vL)
    a('v_lshl_add_u32 v16, v17, 13, v16')
    assert KVFB - KVFA == 8192
    a('s_lshl_b32 s66, s%d, 1' % sXCC)
    a('v_mov_b32 v18, s66')
    a('v_cmp_eq_u32 vcc, 0, v17')
    a('v_cndmask_b32 v18, 0, v18, vcc')
    a('v_add_u32 v18, s%d, v18' % sTAG)
    a('s_mov_b32 s%d, 0' % sCNT)
    a.label('CV_POLL')
    a('buffer_load_dword v19, v16, %s, s78 offen sc1' % R4(WS))
    a('s_add_u32 s%d, s%d, 1' % (sCNT, sCNT))
    a('s_waitcnt vmcnt(0)')
    a('v_cmp_ne_u32 vcc, v18, v19')
    a('s_mov_b32 s66, %s' % hex(KVA))
    if not FORCE_SLOW:
        a('s_cmp_eq_u32 vcc_lo, 0')
        a('s_cbranch_scc1 CV_GOT')
    a('s_mov_b32 s66, %s' % hex(KVB))
    a('s_cmp_eq_u32 vcc_hi, 0')
    a('s_cbranch_scc1 CV_GOT')
    a('s_cmp_lt_u32 s%d, s%d' % (sCNT, sLIM))
    a('s_cbranch_scc1 CV_POLL')
    a('s_mov_b32 s%d, 0' % sLIM)
    a.label('CV_GOT')
    a('s_add_u32 s66, s66, s79')
    a('s_mov_b32 m0, s81')
    for k in range(4):
        a('buffer_load_dwordx4 v%d, %s, s66 offen offset:%d sc1 lds' % (vL16, R4(WS), 1024 * k))
    a.label('CV_NOLEAD')
    stamp(a, 4)
    a('s_lshl_b32 s75, s64, 6')
    a('s_add_u32 s75, s75, %s' % hex(YT))
    a('s_lshl_b32 s65, s65, 28')
    a('v_and_b32 v16, 15, v%d' % vL)
    a('v_lshrrev_b32 v17, 4, v%d' % vL)
    a('v_add_u32 v18, 1, v16')
    a('v_and_b32 v19, 3, v18')
    a('v_mul_u32_u24 v%d, %d, v19' % (vCA, HSTR))
    a('v_lshrrev_b32 v18, 2, v18')
    a('v_lshl_add_u32 v%d, v18, 3, v%d' % (vCA, vCA))
    a('v_lshl_add_u32 v%d, v17, 4, v%d' % (vCA, vCA))
    a('v_add_u32 v%d, s80, v%d' % (vCA, vCA))
    a('v_lshlrev_b32 v18, 5, v16')
    a('v_lshlrev_b32 v19, 4, v17')
    a('v_sub_u32 v%d, v19, v18' % vCB)
    a('s_add_u32 s66, s81, 480')
    a('v_add_u32 v%d, s66, v%d' % (vCB, vCB))
    a('v_lshl_add_u32 v19, v17, 3, v18')
    a('s_add_u32 s66, s81, 504')
    a('v_sub_u32 v4, s66, v19')
    a('v_and_b32 v19, 1, v17')
    a('v_lshlrev_b32 v19, 3, v19')
    a('v_lshrrev_b32 v18, 1, v16')
    a('v_add_u32 v19, v19, v18')
    a('v_mul_u32_u24 v5, 40960, v19')
    a('v_and_b32 v18, 1, v16')
    a('v_lshl_add_u32 v5, v18, 5, v5')
    a('v_lshrrev_b32 v19, 1, v17')
    a('v_lshl_add_u32 v5, v19, 4, v5')
    a('v_add_u32 v5, s65, v5')
    a('s_waitcnt lgkmcnt(0)')
    a('s_bitcmp1_b32 s64, 0')
    a('s_cbranch_scc1 CV_DHI')
    a('s_lshl_b32 s74, s74, 16')
    a.label('CV_DHI')
    a('s_and_b32 s74, s74, 0xffff0000')
    a('s_bitcmp0_b32 s77, 0')
    a('s_cbranch_scc1 CV_RD')
    a('s_waitcnt vmcnt(0)')
    a.label('CV_RD')
    a('s_cmp_ge_u32 s%d, 14' % sI)
    a('s_cselect_b32 s66, 2, 1')
    a('s_mul_i32 s66, s66, %d' % (2 * CSL))
    a('v_mov_b32 v12, s66')
    a('s_lshl_b32 s67, s%d, 2' % sW)
    a('v_add_u32 v13, s67, v12')
    a('v_add_u32 v10, 1, s%d' % sSLOW)
    a('ds_write_b32 v13, v10')
    a('s_cmp_eq_u32 s77, 8')
    a('s_cbranch_scc1 CV_L1')
    a('s_cmp_lg_u32 s%d, 0' % sW)
    a('s_cbranch_scc1 CV_CLR')
    a('v_lshlrev_b32 v16, 7, v%d' % vL)
    a('s_mov_b32 s66, %d' % CLR)
    a('s_mov_b32 s%d, 0' % sCNT)
    a.label('CV_CL')
    a('buffer_load_dwordx4 v[20:23], v16, %s, s66 offen sc1' % R4(WS))
    a('s_add_u32 s%d, s%d, 1' % (sCNT, sCNT))
    a('s_waitcnt vmcnt(0)')
    for r in range(4):
        a('v_xor_b32 v%d, s%d, v%d' % (20 + r, sTAG, 20 + r))
    a('v_or3_b32 v20, v20, v21, v22')
    a('v_or_b32 v20, v20, v23')
    a('v_cmp_ne_u32 vcc, 0, v20')
    a('s_cbranch_vccz CV_CD')
    a('s_cmp_lt_u32 s%d, s%d' % (sCNT, sLIM))
    a('s_cbranch_scc1 CV_CL')
    a('s_mov_b32 s%d, 0' % sLIM)
    a.label('CV_CD')
    a('ds_write_b32 v12, v10 offset:32')
    a.label('CV_CLR')
    a('s_cmp_eq_u32 s77, 16')
    a('s_cbranch_scc1 CV_V2')
    rdy_wait(a, None)
    a('v_readfirstlane_b32 s%d, v22' % sSLOW)
    a('s_sub_u32 s%d, s%d, 1' % (sSLOW, sSLOW))
    a.label('CV_GO')
    stamp(a, 5)
    a('s_bitcmp0_b32 s77, 0')
    a('s_cbranch_scc1 CV_I2')
    a('s_setprio 3')
    conv_item(a, [0], CU_[0], 13)
    stamp(a, 6)
    conv_item(a, [1], CU_[1], 14)
    stamp(a, 7)
    a('s_bitcmp1_b32 s77, 3')
    a('s_cbranch_scc1 CV_L2')
    a.label('CV_I2')
    a('s_bitcmp0_b32 s77, 1')
    a('s_cbranch_scc1 CV_I3')
    conv_item(a, [2], CU_[2], 13)
    stamp(a, 8)
    a.label('CV_I3')
    a('s_setprio 0')
    a('s_bitcmp0_b32 s77, 2')
    a('s_cbranch_scc1 CV_I4')
    conv_item(a, [3], CU_[3], 13)
    stamp(a, 8)
    a.label('CV_I4')
    a('s_bitcmp0_b32 s77, 4')
    a('s_cbranch_scc1 CV_END')
    if RL:
        nr = NR[2] - NA2
        assert CU_[4] == 2
        w_begin(a, 2, NA2, sW, 0, 4, RING[2] + 4096 * NA2)
        for n in range(nr - 4 * (nr // 4)):
            emit(a, w_piece(4))
        def each():
            for n in range(nr // 4):
                emit(a, w_piece(4))
    conv_item(a, [2, 3], CU_[4], 13, each=each if RL else None)
    a('v_mov_b32 v10, 1')
    a('ds_write_b32 v13, v10 offset:64')
    a('s_waitcnt vmcnt(2)')
    stamp(a, 8)
    a('s_branch CV_END2')
    a.label('CV_V2')
    if P2A:
        w_begin(a, 2, NA2, sW, 0, 4, 0)
        a('s_mul_i32 s68, s%d, %d' % (sWS, NK[2] - NA2 - 1))
        a('s_add_u32 s68, s68, s%d' % sWO)
        def pull():
            a('s_waitcnt vmcnt(%d)' % (P2A - 1))
            a('buffer_load_dwordx4 v[128:131], v%d, %s, s%d offen' % (vWO, R4(RA), sWO))
            a('s_add_u32 s%d, s%d, s%d' % (sWO, sWO, sWS))
            a('s_min_u32 s%d, s%d, s68' % (sWO, sWO))
    rdy_wait(a, pull if P2A else None)
    a('s_branch CV_GO')
    for g, nw, P, pf in ((1, 2, P1, PF1), (2, 4, P2_, PF2)):
        nr = 4 * (NR[g] - NA[g]) // nw
        npf = 4 * NC[g] // nw if pf else 0
        if g == 2:
            a.label('CV_L2')
            a('s_setprio 0')
            if RL:
                nr = 0
        if g == 1:
            a.label('CV_L1')
            if P1A:
                w_begin(a, g, NR[g], sW, 4, nw, 0)
                w_stream(a, npf, nw, P1A, DUM[g])
                npf = 0
            stamp(a, 6)
            rdy_wait(a, None)
            stamp(a, 5)
        w_begin(a, g, NA[g] if nr else NR[g], sW, 4, nw, RING[g] + 4096 * NA[g])
        w_stream(a, nr, nw, P)
        stamp(a, 15)
        a('v_mov_b32 v10, 1')
        a('ds_write_b32 v13, v10 offset:64')
        if npf:
            a('s_mul_i32 s68, s%d, %d' % (sWS, npf - 1))
            a('s_add_u32 s68, s68, s%d' % sWO)
            def pull(g=g, P=P):
                a('s_waitcnt vmcnt(%d)' % (P - 1))
                a('buffer_load_dwordx4 %s, v%d, %s, s%d offen' % (vr(DUM[g], 4), vWO, R4(RA), sWO))
                a('s_add_u32 s%d, s%d, s%d' % (sWO, sWO, sWS))
                a('s_min_u32 s%d, s%d, s68' % (sWO, sWO))
            rdy_wait(a, pull, 64)
            a('s_cmp_lt_u32 s%d, %d' % (sCNT, P - 1))
            a('s_cbranch_scc1 CV_W%d' % g)
            a('s_waitcnt vmcnt(%d)' % (P - 1))
            stamp(a, 8)
            a('s_branch CV_END2')
            a.label('CV_W%d' % g)
        a('s_waitcnt vmcnt(0)')
        stamp(a, 8)
        a('s_branch CV_END2')
    a.label('CV_END')
    a('v_mov_b32 v10, 1')
    a('ds_write_b32 v13, v10 offset:64')
    a('s_waitcnt vmcnt(1)')
    a.label('CV_END2')
    a('s_barrier')
    stamp(a, 9)
    a('s_cmp_ge_u32 s%d, 14' % sI)
    a('s_cbranch_scc1 G2_INIT')


ZR, NZR, GE, ACC, BIAS = 24, 6, 48, 64, 80
vSO, vLN, vOW, vC1, vRD, vDN, vTH, vOB, vPO, vZ, vTG, vCN, PK, PK2 = 0, 4, 5, 6, 8, 9, 10, 11, 12, 13, 14, 15, 16, 20
vAC, vVAL = 1, 3
sMSK, sCHK = 76, 77


def count(a, sIdx):
    a('s_load_dwordx2 s[100:101], s[0:1], 96')
    a('s_lshl_b32 s%d, s%d, 2' % (sIdx, sIdx))
    a('s_waitcnt lgkmcnt(0)')
    srd(a, RC, 100, 256)
    a('v_mov_b32 v%d, 1' % vST)
    a('s_mov_b64 exec, 1')
    a('buffer_atomic_add v%d, off, %s, s%d sc1' % (vST, R4(RC), sIdx))
    a('s_mov_b64 exec, -1')


def hold(a):
    L = a.newlabel('HO')
    a('s_mov_b32 s63, %d' % EARLYF)
    a.label(L)
    a('s_sub_u32 s63, s63, 1')
    a('s_cmp_lg_u32 s63, 0')
    a('s_cbranch_scc1 %s' % L)


def g_phase(a, g):
    N, BUF, NP = NK[g], 1024 * NK[g], NK[g] // 4
    SRC, DSTS = (ZSL, HSL) if g == 1 else (HSL, MSL)
    FST = 32 if g == 1 else 256
    ool = Ool(a)
    T = lambda s: 'G%d_%s' % (g, s)
    a.label(T('INIT'))
    w_begin(a, g, NR[g], sW, 0, 8, 0)
    for k in range(NC[g] // 2):
        emit(a, w_piece(8))
    a('s_cmp_ge_u32 s%d, 4' % sW)
    a('s_cbranch_scc1 %s' % T('I4'))
    emit(a, w_piece(8))
    a.label(T('I4'))
    a('v_lshrrev_b32 v10, 5, v%d' % vL)
    a('v_lshlrev_b32 v10, 5, v10')
    a('s_lshl_b32 s67, s%d, 6' % sQ)
    if g == 1:
        srd(a, RD, pB1, 3456)
        a('s_lshl_b32 s66, s%d, 8' % sI)
    else:
        srd(a, RD, pB2, 1280)
        g2_ids(a, 69, 70)
        a('s_lshl_b32 s66, s70, 8')
        a('s_lshl_b32 s63, s69, 16')
        a('s_add_u32 s66, s66, s63')
    a('s_add_u32 s66, s66, s67')
    a('v_add_u32 v10, s66, v10')
    a('buffer_load_dwordx4 %s, v10, %s, 0 offen' % (vr(GE, 4), R4(RD)))
    a('buffer_load_dwordx4 %s, v10, %s, 0 offen offset:16' % (vr(GE + 4, 4), R4(RD)))
    a('s_lshl_b32 s66, s%d, 3' % sX)
    a('s_add_u32 s66, s66, s%d' % sHF)
    a('s_mul_i32 s64, s66, %d' % SRC)
    a('s_mul_i32 s74, s66, %d' % DSTS)
    a('s_mul_i32 s67, s%d, %d' % (sQ, 1024 * NP))
    a('s_add_u32 s64, s64, s67')
    a('s_mul_i32 s72, s%d, %d' % (sHF, BUF))
    if g == 1:
        a('s_add_u32 s64, s64, %s' % hex(ZI))
        a('s_lshl_b32 s73, s%d, 10' % sX)
        a('s_lshl_b32 s63, s%d, 5' % sHF)
        a('s_add_u32 s73, s73, s63')
        a('s_add_u32 s73, s73, %d' % ZF)
        a('s_lshl_b32 s68, s%d, 2' % sI)
        a('s_add_u32 s68, s68, s%d' % sQ)
        a('s_lshl_b32 s63, s68, 11')
        a('s_add_u32 s74, s74, s63')
        a('s_add_u32 s74, s74, %s' % hex(HB))
        a('v_and_b32 v%d, 0x1c, v%d' % (vPO, vL4))
        c1 = -2.0 * math.sqrt(2.0 / math.pi) * math.log2(math.e)
        a('v_mov_b32 v%d, %s' % (vC1, f2h(c1)))
    else:
        a('s_mul_i32 s63, s69, %d' % BUF)
        a('s_add_u32 s64, s64, s63')
        a('s_add_u32 s64, s64, %s' % hex(HB))
        a('s_lshl_b32 s73, s%d, 13' % sX)
        a('s_lshl_b32 s63, s%d, 8' % sHF)
        a('s_add_u32 s73, s73, s63')
        a('s_mul_i32 s63, s69, 72')
        a('s_add_u32 s73, s73, s63')
        a('s_add_u32 s73, s73, %d' % HFL)
        a('s_mul_i32 s63, s69, 40960')
        a('s_add_u32 s74, s74, s63')
        a('s_lshl_b32 s63, s70, 2')
        a('s_add_u32 s63, s63, s%d' % sQ)
        a('s_lshl_b32 s63, s63, 11')
        a('s_add_u32 s74, s74, s63')
        a('s_add_u32 s74, s74, %s' % hex(MR))
        a('s_sub_u32 s68, s%d, 14' % sI)
        a('s_lshl_b32 s68, s68, 2')
        a('s_add_u32 s68, s68, s%d' % sQ)
        a('v_min_u32 v%d, 68, v%d' % (vPO, vL4))
    a('s_lshl_b32 s78, s%d, 13' % sX)
    a('s_lshl_b32 s63, s%d, 8' % sHF)
    a('s_add_u32 s78, s78, s63')
    a('s_lshl_b32 s63, s68, 2')
    a('s_add_u32 s78, s78, s63')
    a('s_add_u32 s78, s78, %d' % (HFL if g == 1 else MFL))
    a('s_mov_b32 s75, %d' % (2 * SRC))
    a('s_mov_b32 s79, %d' % (2 * DSTS))
    a('v_lshrrev_b32 v16, 5, v%d' % vL)
    a('v_and_b32 v17, 31, v%d' % vL)
    a('v_lshlrev_b32 v17, 4, v17')
    a('v_lshl_add_u32 v%d, v16, 10, v17' % vSO)
    a('s_mov_b32 s%d, %s' % (sMSK, hex(EMPTY)))
    a('s_mov_b32 s%d, 0x10000' % sCHK)
    def wipe(first=False):
        WP, WA = (PK2, PK2 + 1) if g == 1 else (104, 108)
        for r in range(4 if g == 2 and first else g & 1):
            a('v_mov_b32 v%d, %s' % (WP + r, hex(EMPTY)))
        if first:
            a('s_mov_b32 s63, s74')
        else:
            a('s_cmp_lt_u32 s%d, 3' % sP)
            a('s_cselect_b32 s63, %s, %s' % (('s61', 's61') if NOWIPE else ('0', '0x10000000')))
            a('v_add_u32 v%d, s63, v%d' % (WA, vSO))
            a('s_add_u32 s63, s74, s79')
        emit(a, both2(a, ool, ['buffer_store_dwordx4 %s, v%d, %s, s63 offen offset:%d' % (vr(WP, 4), vSO if first else WA, R4(WS), 512 * t) for t in range(2)]))
    wipe(True)
    w_read(a, g, 0, NR[g], RING[g])
    a('s_waitcnt vmcnt(0)')
    a('s_barrier')
    a('v_add_u32 v11, %d, v%d' % (L_SYNC, vL4))
    a('v_mov_b32 v10, 0')
    a('ds_write_b32 v11, v10')
    for i in range(8):
        a('v_lshlrev_b32 v%d, 16, v%d' % (BIAS + 2 * i, GE + i))
        a('v_and_b32 v%d, s%d, v%d' % (BIAS + 2 * i + 1, sHI, GE + i))
    w_read(a, g, NR[g], NC[g], 0)
    a('s_barrier')
    stamp(a, 10)
    a('s_lshl_b32 s63, s%d, 4' % sHF)
    a('s_add_u32 s66, s63, %d' % LF_LND)
    a('v_mov_b32 v%d, s66' % vLN)
    a('s_lshl_b32 s66, s%d, 2' % sW)
    a('s_add_u32 s66, s66, %d' % LF_LND)
    a('v_mov_b32 v%d, s66' % vOW)
    a('s_sub_u32 s66, %d, s63' % (LF_DON + 16))
    a('v_mov_b32 v%d, s66' % vDN)
    a('v_mov_b32 v%d, s%d' % (vTH, sHF))
    a('v_mov_b32 v%d, s%d' % (vTG, sTAG))
    a('v_mov_b32 v%d, 1' % vCN)
    oob_lane0(a, vOB)
    a('v_mov_b32 v%d, 1' % vVAL)
    a('s_mov_b32 s%d, 0' % sP)

    def stage():
        o = []
        for k in range(NP):
            gq = []
            if k == 0:
                gq += ['s_add_u32 m0, s65, s67', 's_mov_b32 s63, s64']
            elif k % 4 == 0:
                gq += ['s_add_u32 m0, m0, 4096', 's_add_u32 s63, s63, 4096']
            gq.append('buffer_load_dwordx4 v%d, %s, s63 offen offset:%d sc1 lds' % (vL16, R4(WS), 1024 * (k & 3)))
            o.append(gq)
        return o
    PEEK = 'ds_read_b128 %s, v%d' % (vr(PK, 4), vLN)
    PEEK2 = 'ds_read_b128 %s, v%d' % (vr(PK2, 4), vDN)
    PLOAD = 'buffer_load_dword v%d, v%d, %s, s73 offen sc1' % (vZ, vPO, R4(WS))
    PCMP = 'v_cmp_ne_u32 vcc, s%d, v%d' % (sTAG, vZ)
    FLAG = 'buffer_store_dword v%d, v%d, %s, s78 offen' % (vTG, vOB, R4(WS))
    def store(o, t):
        st = ['buffer_store_dwordx4 %s, v%d, %s, s74 offen offset:%d' % (vr(o, 4), vSO, R4(WS), 512 * t)]
        if EARLYF:
            if t == 0:
                emit(a, both2(a, ool, FLAG))
                hold(a)
        elif t:
            st.append(FLAG)
        a('v_bfi_b32 v%d, s%d, v%d, v%d' % (o, sMSK, vVAL, o))
        emit(a, both2(a, ool, st))

    def landed(young, inc=True):
        C, R, D = a.newlabel('LC'), a.newlabel('LR'), a.newlabel('LD')
        a('s_add_u32 s63, s65, s67')
        a('v_add_u32 v%d, s63, v%d' % (vAC, vL16))
        a('s_mov_b32 s%d, 0' % sCNT)
        a('s_waitcnt vmcnt(%d)' % young)
        a.label(C)
        for k in range(0, NP, 2):
            if k + 1 < NP:
                a('ds_read2st64_b32 %s, v%d offset0:%d offset1:%d' % (vr(ZR + k, 2), vAC, 4 * k, 4 * k + 4))
            else:
                a('ds_read_b32 v%d, v%d offset:%d' % (ZR + k, vAC, 1024 * k))
        if inc:
            a('v_add_u32 v%d, 1, v%d' % (vCN, vCN))
        n = (NP + 1) // 2
        for k in range(2, NP, 2):
            a('s_waitcnt lgkmcnt(%d)' % (n - 1 - k // 2))
            a('v_or3_b32 v%d, v%d, v%d, v%d' % (ZR, ZR, ZR + k - 1, ZR + k))
        if NP & 1:
            a('v_and_b32 v%d, s%d, v%d' % (ZR, sCHK, ZR))
        else:
            a('v_bitop3_b32 v%d, v%d, v%d, s%d bitop3:0xa8' % (ZR, ZR, ZR + NP - 1, sCHK))
        a('v_cmp_ne_u32 vcc, 0, v%d' % ZR)
        if not NOREDO:
            a('s_cbranch_vccnz %s' % R)
        a.label(D)
        a('ds_write_b32 v%d, v%d' % (vOW, vCN))
        def again():
            a.label(R)
            if STAMP == 1:
                a('v_readlane_b32 s63, v%d, 61' % vST)
                a('s_add_u32 s63, s63, 1')
                a('v_writelane_b32 v%d, s63, 61' % vST)
            if RCNT == g:
                a('s_lshl_b32 s63, s%d, 1' % sP)
                a('s_add_u32 s63, s63, s%d' % sHF)
                count(a, 63)
            if RCNT == 4:
                a('s_mov_b32 s63, %d' % (g - 1))
                count(a, 63)
            a('s_add_u32 s%d, s%d, 1' % (sCNT, sCNT))
            a('s_cmp_ge_u32 s%d, s%d' % (sCNT, sLIM))
            a('s_cbranch_scc1 %s' % D)
            for gq in stage():
                emit(a, gq)
            if inc:
                a('v_subrev_u32 v%d, 1, v%d' % (vCN, vCN))
            a('s_waitcnt vmcnt(0)')
            a('s_branch %s' % C)
        ool.add(again)

    a('s_mov_b32 s65, s72')
    block_poll(a, vZ, vPO, 73)
    stamp(a, 11)
    for gq in stage():
        emit(a, gq)
    landed(0, False)
    a(PEEK)
    a.label(T('LOOP'))
    a('v_add_u32 v%d, s72, v%d' % (vRD, vL16))
    a('s_cmp_eq_u32 s%d, 3' % sP)
    a('s_cselect_b32 s63, %d, s75' % (-6 * SRC))
    a('s_cselect_b32 s%d, 1, s%d' % (sCHK, sCHK))
    a('s_add_u32 s64, s64, s63')
    a('s_add_u32 s73, s73, %d' % (2 * FST))
    a('s_cmp_eq_u32 s72, 0')
    a('s_cselect_b32 s65, %d, s72' % (3 * BUF))
    a('s_sub_u32 s65, s65, %d' % BUF)
    cnt_spin(a, ool, PK, vLN, vCN)
    PF = NZR - 1
    q = LdsQ(a)
    Z = lambda n: ZR + 4 * (n % NZR)
    for n in range(PF):
        q.issue(('z', n), 'ds_read_b128 %s, v%d offset:%d' % (vr(Z(n), 4), vRD, 1024 * n))
    a('s_setprio %d' % PRIO[0])
    stamp(a, (sP, 4, 16))
    def mfma(ks, z):
        c = vr(BIAS, 16) if ks == 0 else vr(ACC, 16)
        a('v_mfma_f32_32x32x16_bf16 %s, %s, %s, %s' % (vr(ACC, 16), vr(WB[g] + 4 * ks, 4), vr(z, 4), c))
    for ks in range(N):
        q.wait([('z', ks)])
        mfma(ks, Z(ks))
        n = ks + PF
        if n < N:
            q.issue(('z', n), 'ds_read_b128 %s, v%d offset:%d' % (vr(Z(n), 4), vRD, 1024 * n))
        if ks == PRK:
            a('s_setprio %d' % PRIO[1])
        if ks == N - PLK:
            a(PLOAD)
        if ks == N - 3:
            q.issue(('p', 0), PEEK2)
    a('ds_write_b32 v%d, v%d offset:32' % (vOW, vCN))
    a('s_setprio %d' % PRIO[2])
    stamp(a, (sP, 4, 17))
    a('s_waitcnt vmcnt(0) lgkmcnt(1)')
    emit(a, cnt_min(PK2))
    a('v_cmp_gt_u32 s[82:83], v%d, v%d' % (vTH, PK2))
    a(PCMP)
    a('s_cmp_eq_u32 s%d, 7' % sP)
    a('s_cselect_b64 s[82:83], -1, s[82:83]')
    a('s_or_b64 vcc, vcc, s[82:83]')

    def gelu(dma):
        ops = []
        for t in range(2):
            X, U = ACC + 8 * t, GE
            ops += ['v_mul_f32 v%d, v%d, v%d' % (U + i, X + i, X + i) for i in range(8)]
            ops += ['v_fma_f32 v%d, v%d, s%d, v%d' % (U + i, U + i, sC2, vC1) for i in range(8)]
            ops += ['v_mul_f32 v%d, v%d, v%d' % (U + i, U + i, X + i) for i in range(8)]
            ops += ['v_exp_f32 v%d, v%d' % (U + i, U + i) for i in range(8)]
            ops += ['v_add_f32 v%d, 1.0, v%d' % (U + i, U + i) for i in range(8)]
            ops += ['v_rcp_f32 v%d, v%d' % (U + i, U + i) for i in range(8)]
            ops += ['v_mul_f32 v%d, v%d, v%d' % (U + i, U + i, X + i) for i in range(8)]
            o = U + 8 + 4 * t
            ops += ['v_cvt_pk_bf16_f32 v%d, v%d, v%d' % (o + i, U + 2 * i, U + 2 * i + 1) for i in range(4)]
            if t == 0 and not dma:
                ops += [PLOAD, PEEK2]
            ops.append(('st', o, t))
        st = stage() if dma else []
        if st:
            emit(a, st.pop(0))
        for i, l in enumerate(ops):
            if isinstance(l, tuple):
                assert not st
                store(l[1], l[2])
            else:
                a(l)
            if st and i % DST == DST - 1:
                emit(a, st.pop(0))

    if g == 1:
        a('s_cbranch_vccnz %s' % T('EB'))
        gelu(True)
        stamp(a, (sP, 4, 18))
        wipe()
        landed(5)
    else:
        a('s_mov_b64 s[82:83], vcc')
        a(PLOAD)
        for i in range(8):
            a('v_cvt_pk_bf16_f32 v%d, v%d, v%d' % (GE + i, ACC + 2 * i, ACC + 2 * i + 1))
            if i & 3 == 3:
                store(GE + i - 3, i >> 2)
        a('s_cmp_lg_u64 s[82:83], 0')
        a('s_cbranch_scc1 %s' % T('EB'))
        for gq in stage():
            emit(a, gq)
        stamp(a, (sP, 4, 18))
        wipe()
        landed(2)
    a.label(T('NEXT'))
    a(PEEK)
    stamp(a, (sP, 4, 19))
    a('v_add_u32 v%d, 1, v%d' % (vTH, vTH))
    a('s_mov_b32 s72, s65')
    a('s_add_u32 s78, s78, 512')
    a('s_cmp_eq_u32 s%d, 3' % sP)
    a('s_cselect_b32 s63, %d, s79' % (-6 * DSTS))
    a('s_cselect_b32 s%d, 1, s%d' % (sMSK, sMSK))
    a('s_add_u32 s74, s74, s63')
    a('v_lshrrev_b32_e64 v%d, 16, s%d' % (vVAL, sMSK))
    a('s_add_u32 s%d, s%d, 1' % (sP, sP))
    a('s_branch %s' % T('LOOP'))
    a.label(T('EB'))
    if g == 1:
        gelu(False)
    else:
        a(PEEK2)
    stamp(a, (sP, 4, 18))
    a('s_cmp_eq_u32 s%d, 7' % sP)
    a('s_cbranch_scc1 %s' % T('END'))
    a('s_waitcnt vmcnt(3)')
    a(PCMP)
    a('s_cbranch_vccz %s' % T('GOT'))
    block_poll(a, vZ, vPO, 73)
    a.label(T('GOT'))
    cnt_spin(a, ool, PK2, vDN, vTH)
    for gq in stage():
        emit(a, gq)
    wipe()
    landed(2)
    a('s_branch %s' % T('NEXT'))
    a.label(T('END'))
    for hf in range(2):
        if WBL & (g << (2 * hf)):
            L = a.newlabel('WB')
            a('s_cmp_lg_u32 s%d, %d' % (sI, 0 if g == 1 else 14))
            a('s_cbranch_scc1 %s' % L)
            a('s_cmp_lg_u32 s%d, %d' % (sW, 4 * hf))
            a('s_cbranch_scc1 %s' % L)
            a('buffer_wbl2 sc1')
            a('s_endpgm')
            a.label(L)
    endk(a, g)
    ool.flush()


YU, MM, XS, PS, TS = 36, 76, 136, 16, 24
DD, ZP = MM, MM + 40
vIM, vY0, vY1, vYC, vYG, vQA, vT0, vSP = 0, 4, 5, 6, 8, 9, 10, 14


def unpack(dst, src, n):
    o = []
    for i in range(n):
        o.append('v_lshlrev_b32 v%d, 16, v%d' % (dst + 2 * i, src + i))
        o.append('v_and_b32 v%d, s%d, v%d' % (dst + 2 * i + 1, sHI, src + i))
    return o


def accum(dst, src, n):
    o = []
    for i in range(n):
        o.append('v_dot2c_f32_bf16 v%d, s%d, v%d' % (dst + 2 * i, sLO1, src + i))
        o.append('v_dot2c_f32_bf16 v%d, s%d, v%d' % (dst + 2 * i + 1, sHI1, src + i))
    return o


def sums(X, T, k):
    o = []
    for i in range(0, 8, 2):
        x = P2(X + 8 * k + i)
        if k == 0 and i == 0:
            o += ['v_pk_mul_f32 %s, %s, %s' % (P2(T + 2), x, x)]
        elif k == 0 and i == 2:
            o += ['v_pk_add_f32 %s, %s, %s' % (P2(T), P2(X), x), 'v_pk_fma_f32 %s, %s, %s, %s' % (P2(T + 2), x, x, P2(T + 2))]
        else:
            o += ['v_pk_add_f32 %s, %s, %s' % (P2(T), P2(T), x), 'v_pk_fma_f32 %s, %s, %s, %s' % (P2(T + 2), x, x, P2(T + 2))]
    return o


def finish(T, double, U=vSP):
    Q, R = T, T + 2
    o = ['v_add_f32 v%d, v%d, v%d' % (Q, T, T + 1), 'v_add_f32 v%d, v%d, v%d' % (R, T + 2, T + 3),
         'v_permlane32_swap_b32 v%d, v%d' % (Q, R), 'v_add_f32 v%d, v%d, v%d' % (Q, Q, R),
         'v_mov_b32 v%d, v%d' % (R, Q), 'v_permlane16_swap_b32 v%d, v%d' % (Q, R), 'v_add_f32 v%d, v%d, v%d' % (Q, Q, R)]
    for k in (8, 4):
        o.append('v_add_f32 v%d, v%d, v%d row_ror:%d row_mask:0xf bank_mask:0xf' % (Q, Q, Q, k))
    o += ['v_mul_f32 v%d, s%d, v%d' % (Q, sINV, Q), 'v_mov_b32 v%d, v%d' % (R, Q), 'v_permlane32_swap_b32 v%d, v%d' % (Q, R),
          'v_fma_f32 v%d, -v%d, v%d, v%d' % (R, Q, Q, R), 'v_max_f32 v%d, 0, v%d' % (R, R),
          'v_add_f32 v%d, s%d, v%d' % (U, sEPS, R), 'v_rsq_f32 v%d, v%d' % (U, U)]
    if double:
        o += ['v_mul_f32 v%d, v%d, v%d' % (R, R, U), 'v_fma_f32 v%d, v%d, v%d, s%d' % (R, R, U, sEPS),
              'v_rsq_f32 v%d, v%d' % (R, R), 'v_mul_f32 v%d, v%d, v%d' % (U, U, R)]
    o += ['v_mul_f32_e64 v%d, -v%d, v%d' % (U + 1, Q, U)]
    return o


def norm(d, x, n, sp=vSP):
    return ['v_pk_fma_f32 %s, %s, %s, %s op_sel:[0,0,1] op_sel_hi:[1,0,1]' % (P2(d + i), P2(x + i), P2(sp), P2(sp)) for i in range(0, n, 2)]


def gate(k, XW):
    return ['v_pk_fma_f32 %s, %s, %s, %s' % (P2(XW + i), P2(DD + i), P2(YU + i), P2(XW + i)) for i in range(8 * k, 8 * k + 8, 2)]


def s_phase(a):
    ool = Ool(a)
    vOB, vPO, vZ = 11, 12, 13
    vYP = 28
    MK = (94, 96, 98, 100, 82)
    a.label('S_MAIN')
    srd(a, RA, pQ, hex(ROWS_B))
    s_ids(a)
    row_table(a, PS, 10)
    a('s_barrier')
    q_dma(a, 1, PS)
    q_dma(a, 2, PS)
    srd(a, RB, pOUT, hex(ROWS_B))
    a('v_lshrrev_b32 v40, 2, v%d' % vL)
    a('v_and_b32 v41, 3, v%d' % vL)
    a('v_lshlrev_b32 v%d, 9, v40' % vIM)
    a('v_lshl_add_u32 v%d, v41, 4, v%d' % (vIM, vIM))
    a('s_lshl_b32 s66, s71, 8')
    a('s_lshl_b32 s67, s%d, 6' % sQ)
    a('s_add_u32 s66, s66, s67')
    a('v_add_u32 v%d, s66, v%d' % (vIM, vIM))
    a('v_lshlrev_b32 v43, 1, v41')
    a('v_xor_b32 v43, v43, v40')
    a('v_mul_u32_u24 v%d, 1280, v41' % vQA)
    a('v_lshl_add_u32 v%d, v43, 4, v%d' % (vQA, vQA))
    a('v_lshrrev_b32 v43, 4, v%d' % vL)
    a('v_lshl_add_u32 v43, v43, 2, v41')
    a('v_bfe_u32 v44, v%d, 2, 2' % vL)
    a('v_lshlrev_b32 v44, 1, v44')
    a('s_lshr_b32 s66, s%d, 1' % sQ)
    a('v_add_u32 v44, s66, v44')
    a('v_and_b32 v45, 1, v41')
    a('v_xor_b32 v44, v44, v45')
    a('v_and_b32 v45, 2, v41')
    a('v_lshlrev_b32 v45, 2, v45')
    a('v_xor_b32 v44, v44, v45')
    a('v_lshlrev_b32 v%d, 8, v43' % vYC)
    a('v_lshl_add_u32 v%d, v44, 4, v%d' % (vYC, vYC))
    a('s_and_b32 s66, s%d, 1' % sQ)
    a('s_lshl_b32 s66, s66, 3')
    a('s_mul_i32 s67, s%d, 5120' % sQ)
    a('s_sub_u32 s66, s66, s67')
    a('v_add_u32 v%d, s66, v%d' % (vYC, vYC))
    a('v_lshrrev_b32 v43, 4, v%d' % vL)
    a('v_and_b32 v44, 15, v%d' % vL)
    a('v_and_b32 v45, 1, v43')
    a('v_xor_b32 v44, v44, v45')
    a('v_and_b32 v45, 2, v43')
    a('v_lshlrev_b32 v45, 2, v45')
    a('v_xor_b32 v44, v44, v45')
    a('v_lshrrev_b32 v45, 1, v44')
    a('v_lshl_add_u32 v45, v43, 3, v45')
    a('v_lshlrev_b32 v%d, 6, v45' % vYG)
    a('v_and_b32 v44, 1, v44')
    a('v_lshl_add_u32 v%d, v44, 4, v%d' % (vYG, vYG))
    a('s_lshl_b32 s66, s71, 5')
    a('s_mul_i32 s67, s%d, 10240' % sQ)
    a('s_add_u32 s66, s66, s67')
    a('v_add_u32 v%d, s66, v%d' % (vYG, vYG))
    oob_lane0(a, vOB)
    a('v_min_u32 v%d, 236, v%d' % (vPO, vL4))
    a('s_lshl_b32 s79, s71, 2')
    a('s_add_u32 s79, s79, s%d' % sQ)
    a('s_lshl_b32 s79, s79, 2')
    a('s_lshl_b32 s63, s%d, 10' % sX)
    a('s_add_u32 s79, s79, s63')
    a('s_add_u32 s79, s79, %d' % ZF)
    a('s_lshl_b32 s66, s%d, 2' % sW)
    a('s_add_u32 s66, s66, %d' % LF_LND)
    a('v_mov_b32 v%d, s66' % (vYP + 1))
    a('s_and_b32 s66, s66, 0xfffffff0')
    a('v_mov_b32 v%d, s66' % (vYP + 2))
    a('s_mov_b32 s77, %s' % hex(EMPTY))
    def head(ph, sl):
        a('s_add_u32 s74, s70, %d' % (3 * sl))
        if sl == 2:
            a('s_cmp_gt_u32 s74, 7')
            a('s_cbranch_scc1 S%s_END' % ph)
        a('s_add_u32 s75, s72, %d' % (40960 * sl))
        if ph != 'C':
            a('v_add_u32 v%d, s75, v%d' % (vY0, vYC))
            a('v_xor_b32 v%d, 0x80, v%d' % (vY1, vY0))
        a('s_lshl_b32 s76, s%d, 3' % sX)
        a('s_add_u32 s76, s76, s74')

    def y_reads():
        for k in range(5):
            a('ds_read_b64_tr_b16 %s, v%d offset:%d' % (vr(ZP + 4 * k, 2), vY0, 4096 * k))
            a('ds_read_b64_tr_b16 %s, v%d offset:%d' % (vr(ZP + 4 * k + 2, 2), vY1, 4096 * k))

    def z_out(lay, X, prio):
        emit(a, finish(TS, True))
        a('s_setprio %d' % prio)
        a('s_mul_i32 s66, s76, %d' % ZSL)
        a('s_add_u32 s66, s66, %s' % hex(ZI))
        a('s_lshl_b32 s68, s74, 5')
        a('s_add_u32 s68, s68, s79')
        a('v_mov_b32 v%d, s%d' % (vZ, sTAG))
        FLAG = 'buffer_store_dword v%d, v%d, %s, s68 offen offset:%d' % (vZ, vOB, R4(WS), 256 * lay)
        if EARLYF:
            emit(a, both2(a, ool, FLAG))
            hold(a)
        for k in range(5):
            emit(a, norm(DD + 8 * k, X + 8 * k, 8))
            for i in range(4):
                a('v_cvt_pk_bf16_f32 v%d, v%d, v%d' % (ZP + 4 * k + i, DD + 8 * k + 2 * i, DD + 8 * k + 2 * i + 1))
            if lay == 0:
                a('v_bfi_b32 v%d, s77, 1, v%d' % (ZP + 4 * k, ZP + 4 * k))
            else:
                a('v_and_b32 v%d, -2, v%d' % (ZP + 4 * k, ZP + 4 * k))
            st = ['buffer_store_dwordx4 %s, v%d, %s, s66 offen' % (vr(ZP + 4 * k, 4), vIM, R4(WS))]
            if k == 4 and not EARLYF:
                st.append(FLAG)
            emit(a, both2(a, ool, st))
            if k < 4:
                a('s_add_u32 s66, s66, 8192')
        a('s_setprio 0')

    def z_wipe(du):
        if NOWIPE:
            return
        a('v_mov_b32 v%d, s77' % YU)
        a('s_add_u32 s66, s76, %d' % du)
        a('s_mul_i32 s66, s66, %d' % ZSL)
        a('s_add_u32 s66, s66, %s' % hex(ZI))
        cl = []
        for k in range(5):
            cl.append('buffer_store_dwordx4 %s, v%d, %s, s66 offen' % (vr(YU, 4), vIM, R4(WS)))
            if k < 4:
                cl.append('s_add_u32 s66, s66, 8192')
        emit(a, both2(a, ool, cl))

    def m_in(lay, sl, X, per_k, prio):
        a('s_lshl_b32 s66, s%d, 13' % sX)
        a('s_lshl_b32 s67, s74, 8')
        a('s_add_u32 s66, s66, s67')
        a('s_add_u32 s66, s66, %d' % (MFL + 2048 * lay))
        a('s_mul_i32 s67, s76, %d' % MSL)
        a('s_add_u32 s67, s67, %s' % hex(MR))
        a('s_add_u32 s68, s67, 40960')
        a('s_add_u32 s69, s67, 81920')
        block_poll(a, vZ, vPO, 66)
        a('s_setprio %d' % prio)
        stamp(a, 4 * sl + 29 + 12 * lay)
        LD, FX, OK = a.newlabel('ML'), a.newlabel('MF'), a.newlabel('MO')
        a.label(LD)
        for k in range(5):
            for p in range(3):
                a('buffer_load_dwordx4 %s, v%d, %s, s%d offen sc1' % (vr(MM + 12 * k + 4 * p, 4), vIM, R4(WS), 67 + p))
                if k < 4:
                    a('s_add_u32 s%d, s%d, 8192' % (67 + p, 67 + p))
        for k in range(5):
            for p in range(3):
                a('s_waitcnt vmcnt(%d)' % (14 - 3 * k - p))
                n = 3 * k + p
                if n == 2:
                    a('v_or3_b32 v%d, v%d, v%d, v%d' % (vZ, MM, MM + 4, MM + 8))
                elif n > 2 and n & 1 == 0:
                    a('v_or3_b32 v%d, v%d, v%d, v%d' % (vZ, vZ, MM + 4 * n - 4, MM + 4 * n))
                if n == 14:
                    a('v_and_b32 v%d, %s, v%d' % (vZ, '1' if lay else '0x10000', vZ))
                    a('v_cmp_ne_u32 vcc, 0, v%d' % vZ)
                emit(a, accum(X + 8 * k, MM + 12 * k + 4 * p, 4))
            if k == 4:
                if not NOREDO:
                    a('s_cbranch_vccnz %s' % FX)
                a.label(OK)
            per_k(k)
        def fix():
            a.label(FX)
            if STAMP == 1:
                a('v_readlane_b32 s63, v%d, 61' % vST)
                a('s_add_u32 s63, s63, 1')
                a('v_writelane_b32 v%d, s63, 61' % vST)
            if RCNT == 3:
                a('s_add_u32 s63, s74, %d' % (8 * lay))
                count(a, 63)
            if RCNT == 4:
                a('s_mov_b32 s63, %d' % (4 + lay))
                count(a, 63)
            a('s_add_u32 s%d, s%d, 1' % (sCNT, sCNT))
            a('s_cmp_ge_u32 s%d, s%d' % (sCNT, sLIM))
            a('s_cbranch_scc1 %s' % OK)
            a('s_xor_b32 s%d, s%d, 0x8000' % (sLO1, sLO1))
            a('s_xor_b32 s%d, s%d, 0x80000000' % (sHI1, sHI1))
            for k in range(5):
                for p in range(3):
                    emit(a, accum(X + 8 * k, MM + 12 * k + 4 * p, 4))
            a('s_xor_b32 s%d, s%d, 0x8000' % (sLO1, sLO1))
            a('s_xor_b32 s%d, s%d, 0x80000000' % (sHI1, sHI1))
            for p in range(3):
                a('s_sub_u32 s%d, s%d, 32768' % (67 + p, 67 + p))
            a('s_branch %s' % LD)
        if not NOREDO:
            ool.add(fix)

    def y_load(du, R, masked):
        a('s_add_u32 s67, s74, %d' % du)
        a('s_min_u32 s67, s67, 7')
        a('s_lshl_b32 s67, s67, 3')
        a('s_add_u32 s67, s67, s%d' % sX)
        a('s_mul_i32 s67, s67, 40960')
        a('s_add_u32 s67, s67, %s' % hex(YT))
        for k in range(5):
            if masked:
                a('s_mov_b64 exec, s[%d:%d]' % (MK[k], MK[k] + 1))
            if k & 1 == 0 and k:
                a('s_add_u32 s67, s67, 4096')
            a('buffer_load_dwordx4 %s, v%d, %s, s67 offen offset:%d sc1' % (vr(R + 4 * k, 4), vYG, R4(WS), 2048 * (k & 1)))

    def y_take(R, masked, young):
        for k in range(5):
            if masked:
                a('s_mov_b64 exec, s[%d:%d]' % (MK[k], MK[k] + 1))
            a('s_waitcnt vmcnt(%d)' % (young + 4 - k))
            a('v_max3_u32 v%d, v%d, v%d, v%d' % (vT0, R + 4 * k, R + 4 * k + 1, R + 4 * k + 2))
            a('ds_write_b128 v%d, %s offset:%d' % (vYP, vr(R + 4 * k, 4), 1024 * k))
            a('v_max_u32 v%d, v%d, v%d' % (vT0, vT0, R + 4 * k + 3))
            a('v_cmp_eq_u32 s[%d:%d], -1, v%d' % (MK[k], MK[k] + 1, vT0))
        if masked:
            a('s_mov_b64 exec, -1')
        a('s_or_b64 s[64:65], s[%d:%d], s[%d:%d]' % (MK[0], MK[0] + 1, MK[1], MK[1] + 1))
        a('s_or_b64 s[80:81], s[%d:%d], s[%d:%d]' % (MK[2], MK[2] + 1, MK[3], MK[3] + 1))
        a('s_or_b64 s[64:65], s[64:65], s[%d:%d]' % (MK[4], MK[4] + 1))
        a('s_or_b64 s[80:81], s[80:81], s[64:65]')

    def q_reads(sl, dl):
        a('s_add_u32 s66, s75, %d' % dl)
        a('v_add_u32 v%d, s66, v%d' % (vT0, vQA))
        for k in range(5):
            a('ds_read_b128 %s, v%d offset:%d' % (vr(XS + 40 * sl + 20 + 4 * k, 4), vT0, 256 * k))

    for sl in range(3):
        X = XS + 40 * sl
        head('A', sl)
        a('v_add_u32 v%d, s75, v%d' % (vYP, vL16))
        if sl == 0:
            q_reads(0, 0)
            for k in range(5):
                a('s_mov_b64 s[%d:%d], -1' % (MK[k], MK[k] + 1))
            a('s_waitcnt lgkmcnt(0)')
        else:
            y_take(X, False, 0 if NOWIPE else 5)
            a('s_waitcnt lgkmcnt(5)')
        for k in range(5):
            emit(a, unpack(X + 8 * k, X + 20 + 4 * k, 4))
            emit(a, sums(X, TS, k))
        emit(a, finish(TS, False))
        emit(a, norm(DD, X, 40))
        stamp(a, 4 * sl + 16)
        def fetch(sl=sl):
            a.label('SA_F%d' % sl)
            a('s_mov_b32 s%d, 0' % sCNT)
            a.label('SA_YL%d' % sl)
            y_load(0, ZP, True)
            a('s_add_u32 s%d, s%d, 1' % (sCNT, sCNT))
            y_take(ZP, True, 0)
            a('s_cbranch_scc0 SA_G%d' % sl)
            a('s_cmp_lt_u32 s%d, s%d' % (sCNT, sLIM))
            a('s_cbranch_scc1 SA_YL%d' % sl)
            a('s_mov_b32 s%d, 0' % sLIM)
            if sl:
                a('s_branch SA_G%d' % sl)
        if sl == 0:
            z_wipe(0)
            fetch()
        else:
            a('s_cmp_lg_u64 s[80:81], 0')
            a('s_cbranch_scc1 SA_F%d' % sl)
            ool.add(fetch)
        a.label('SA_G%d' % sl)
        stamp(a, 4 * sl + 17)
        a('v_mov_b32 v%d, %d' % (vYP + 3, sl + 1))
        a('ds_write_b32 v%d, v%d' % (vYP + 1, vYP + 3))
        a('ds_read_b128 %s, v%d' % (vr(ZP, 4), vYP + 2))
        cnt_spin(a, ool, ZP, vYP + 2, vYP + 3)
        a('s_setprio %d' % SPA[0])
        a('s_waitcnt vmcnt(0)')
        y_reads()
        stamp(a, 4 * sl + 18)
        for k in range(5):
            a('s_waitcnt lgkmcnt(%d)' % (8 - 2 * k))
            emit(a, unpack(YU + 8 * k, ZP + 4 * k, 4))
            emit(a, gate(k, X))
            emit(a, sums(X, TS, k))
        z_out(0, X, SPA[1])
        stamp(a, 4 * sl + 19)
        if sl < 2:
            q_reads(sl + 1, 40960)
            y_load(3, XS + 40 * sl + 40, False)
            if sl == 1:
                a('s_cmp_eq_u32 s70, 2')
                a('s_cbranch_scc1 SA_END')
            z_wipe(3)
        if sl == 0:
            a('s_cmp_lg_u32 s2, 232')
            a('s_cbranch_scc1 SA_E')
            a('s_cmp_lg_u32 s%d, 0' % sW)
            a('s_cbranch_scc1 SA_E')
            a('s_mov_b32 s66, 0')
            flag_store(a, 66, vZ, True)
            a.label('SA_E')
    a.label('SA_END')
    for sl in range(3):
        X = XS + 40 * sl
        head('B', sl)
        y_reads()
        for k in range(5):
            a('s_waitcnt lgkmcnt(%d)' % (8 - 2 * k))
            emit(a, unpack(YU + 8 * k, ZP + 4 * k, 4))
        stamp(a, 4 * sl + 28)
        m_in(0, sl, X, lambda k: emit(a, sums(X, TS, k)), SPB[0])
        a('s_setprio %d' % SPB[1])
        stamp(a, 4 * sl + 30)
        emit(a, finish(TS, False))
        for k in range(5):
            emit(a, norm(DD + 8 * k, X + 8 * k, 8))
            emit(a, gate(k, X))
            emit(a, sums(X, TS, k))
        z_out(1, X, SPB[2])
        stamp(a, 4 * sl + 31)
    a.label('SB_END')
    row_table(a, YU, YU + 6)
    for sl in range(3):
        X = XS + 40 * sl
        head('C', sl)
        a('v_add_u32 v%d, s75, v%d' % (vT0, vQA))
        for k in range(5):
            a('v_add_u32 v%d, s75, v%d' % (PS + k, YU + k))
        a('s_add_u32 s77, s73, %d' % (768 * 1280 * sl))
        stamp(a, 4 * sl + 40)
        def ck(k):
            for i in range(4):
                a('v_cvt_pk_bf16_f32 v%d, v%d, v%d' % (YU + 8 + 4 * k + i, X + 8 * k + 2 * i, X + 8 * k + 2 * i + 1))
            a('ds_write_b128 v%d, %s offset:%d' % (vT0, vr(YU + 8 + 4 * k, 4), 256 * k))
        m_in(1, sl, X, ck, SPC)
        stamp(a, 4 * sl + 42)
        for k in range(5):
            a('ds_read_b128 %s, v%d' % (vr(MM + 4 * k, 4), PS + k))
        a('s_add_u32 s66, s77, 4096')
        for k in range(5):
            a('s_waitcnt lgkmcnt(%d)' % (4 - k))
            a('buffer_store_dwordx4 %s, v%d, %s, s%d offen offset:%d' % (vr(MM + 4 * k, 4), vL16, R4(RB), 77 if k < 4 else 66, 1024 * (k & 3)) + (' sc1' if OSC else ''))
        a('s_setprio 0')
        stamp(a, 4 * sl + 43)
    a.label('SC_END')
    endk(a, 0)
    ool.flush()


def kernel():
    a = Asm()
    c1 = -2.0 * math.sqrt(2.0 / math.pi) * math.log2(math.e)
    a('s_cmp_ge_u32 s2, 256')
    a('s_cbranch_scc1 END')
    a('s_load_dwordx2 s[26:27], s[0:1], 104')
    a('s_load_dwordx4 s[4:7], s[0:1], 0')
    a('s_load_dwordx4 s[8:11], s[0:1], 16')
    a('s_load_dwordx4 s[12:15], s[0:1], 32')
    a('s_load_dwordx4 s[16:19], s[0:1], 56')
    a('s_load_dwordx4 s[20:23], s[0:1], 72')
    a('s_load_dwordx2 s[24:25], s[0:1], 88')
    a('v_lshrrev_b32 v1, 6, v0')
    a('v_readfirstlane_b32 s%d, v1' % sW)
    a('v_and_b32 v%d, 63, v0' % vL)
    a('v_lshlrev_b32 v%d, 4, v%d' % (vL16, vL))
    a('v_lshlrev_b32 v%d, 2, v%d' % (vL4, vL))
    a('s_and_b32 s%d, s2, 7' % sX)
    a('s_lshr_b32 s%d, s2, 3' % sI)
    a('s_and_b32 s%d, s%d, 3' % (sQ, sW))
    a('s_lshr_b32 s%d, s%d, 2' % (sHF, sW))
    if STAMP:
        a('v_mov_b32 v%d, 0' % vST)
    for r in (12, 13, 14, 15):
        a('v_mov_b32 v%d, 0' % r)
    a('v_add_u32 v4, %d, v%d' % (L_SYNC, vL4))
    a('ds_write_b32 v4, v12')
    a('ds_write_b32 v%d, v12 offset:%d' % (vL4, 2 * CSL))
    a('v_add_u32 v4, %d, v%d' % (4 * CSL, vL4))
    a('ds_write_b32 v4, v12')
    a('s_lshl_b32 s64, s%d, 10' % sW)
    a('s_add_u32 s64, s64, %d' % L_KST)
    a('v_add_u32 v4, s64, v%d' % vL16)
    a('ds_write_b128 v4, v[12:15]')
    a('s_movk_i32 s65, 5958')
    a('s_movk_i32 s66, 1104')
    a('s_add_u32 s67, s%d, 8' % sQ)
    a('s_lshl_b32 s67, s67, 6')
    for d, src in ((8, 'v0'), (9, None)):
        if src is None:
            a('v_add_u32 v9, s67, v%d' % vL)
            src = 'v9'
        a('v_mul_u32_u24 v10, s65, %s' % src)
        a('v_lshrrev_b32 v10, 16, v10')
        a('v_mul_u32_u24 v11, 11, v10')
        a('v_sub_u32 v11, %s, v11' % src)
        a('v_lshlrev_b32 v%d, 4, %s' % (d, src))
        a('v_mad_u32_u24 v%d, v10, s66, v%d' % (d, d))
        a('v_cmp_eq_u32 vcc, 10, v11')
        a('v_mov_b32 v11, 0x40000000')
        a('v_cndmask_b32 v%d, v%d, v11, vcc' % (d, d))
    a('s_mul_i32 s65, s%d, %d' % (sI, 64 * 1280))
    a('s_mul_i32 s66, s%d, 160' % sX)
    a('s_add_u32 s65, s65, s66')
    a('s_sub_u32 s66, s65, 5120')
    a('v_add_u32 v10, s66, v8')
    a('v_add_u32 v8, s65, v8')
    a('s_cmp_eq_u32 s%d, 0' % sHF)
    a('s_cselect_b32 s65, s66, s65')
    a('v_add_u32 v9, s65, v9')
    a('s_getreg_b32 s%d, hwreg(HW_REG_XCC_ID, 0, 3)' % sXCC)
    a('s_mov_b32 s%d, %d' % (sLIM, LIMIT))
    a('s_mov_b32 s%d, 0xffff0000' % sHI)
    a('s_mov_b32 s%d, 0x3acccccd' % sINV)
    a('s_mov_b32 s%d, 0x3727c5ac' % sEPS)
    a('s_mov_b32 s%d, %s' % (sC2, f2h(c1 * 0.044715)))
    a('s_mov_b32 s%d, 0x3f80' % sLO1)
    a('s_mov_b32 s%d, 0x3f800000' % sHI1)
    a('s_mov_b32 s%d, 0' % sSLOW)
    a('s_mov_b32 m0, s64')
    a('s_waitcnt lgkmcnt(0)')
    srd(a, WS, pWS, '0x10000000')
    srd(a, RB, pK, hex(ROWS_B))
    srd(a, RC, pV, hex(ROWS_B))
    a('buffer_load_dword v4, off, %s, 0 sc1' % R4(WS))
    a('buffer_load_dwordx4 v10, %s, 0 offen lds' % R4(RB))
    a('s_add_u32 m0, s64, %d' % (L_VST - L_KST))
    a('buffer_load_dwordx4 v8, %s, 0 offen lds' % R4(RC))
    a('s_cmp_eq_u32 s%d, 0' % sHF)
    a('s_cselect_b64 s[%d:%d], s[%d:%d], s[%d:%d]' % (RC, RC + 1, RB, RB + 1, RC, RC + 1))
    a('s_cselect_b32 s65, %d, s%d' % (L_KST + 8192, sLIM))
    a('s_cselect_b32 s66, 0, %d' % (L_VST + 8192 - LIMIT))
    a('s_add_u32 s65, s65, s66')
    a('s_lshl_b32 s66, s%d, 10' % sQ)
    a('s_add_u32 m0, s65, s66')
    a('buffer_load_dwordx4 v9, %s, 0 offen lds' % R4(RC))
    for r in (RA, RD):
        a('s_mov_b64 s[%d:%d], s[%d:%d]' % (r, r + 1, WS, WS + 1))
        a('s_mov_b64 s[%d:%d], s[%d:%d]' % (r + 2, r + 3, WS + 2, WS + 3))
    for r in range(QT, QT + 5):
        a('v_mov_b32 v%d, 0' % r)
    stamp(a, 0)
    a('s_barrier')
    a('s_cmp_ge_u32 s%d, 5' % sW)
    a('s_cbranch_scc1 E_BLD')
    for kvw in (1, 0):
        if not kvw:
            a.label('E_BLD')
        a('s_cmp_ge_u32 s%d, 29' % sI)
        a('s_cbranch_scc1 E_%d0' % kvw)
        a('s_cmp_ge_u32 s%d, 14' % sI)
        a('s_cbranch_scc1 E_%d2' % kvw)
        early(a, 1, kvw)
        a.label('E_%d2' % kvw)
        early(a, 2, kvw)
        a.label('E_%d0' % kvw)
        early(a, 0, kvw)
    kv_phase(a)
    conv_phase(a)
    g_phase(a, 1)
    g_phase(a, 2)
    s_phase(a)
    a.label('END')
    a('s_endpgm')
    return a.lines


def build():
    ref = open('cdna_kernels/%s.s.ref' % NAME).read().split('\n')
    head = [l for l in ref if l.startswith(';') and '@launch' not in l and 'Override launch' not in l and 'grid=ceil' not in l]
    s = '\n'.join(head) + '\n'
    s += '; @launch grid=(256,1,1) block=(512,1,1) lds=163840\n'
    s += '.amdgcn_target "amdgcn-amd-amdhsa--gfx950"\n.text\n'
    s += kernel_text(NAME + '_kernel', kernel(), 256)
    s += '.section .rodata,"a"\n'
    s += descriptor_text(NAME + '_kernel', 256, 102)
    return s


if __name__ == '__main__':
    open(sys.argv[1], 'w').write(build())
```
